```python
import torch

def _softmax(x, axis=-1):
    return torch.softmax(x, dim=axis)

def _gelu(x):
    return torch.nn.functional.gelu(x, approximate='tanh')

def _silu(x):
    return torch.nn.functional.silu(x)

def _sigmoid(x):
    return torch.sigmoid(x)

def _layernorm(x, axis=-1, eps=1e-05):
    m = x.mean(dim=axis, keepdim=True)
    v = x.var(dim=axis, keepdim=True, unbiased=False)
    return (x - m) / torch.sqrt(v + eps)

def _scatter_add(tgt, idx, src, axis=0):
    return tgt.clone().index_add_(axis, idx, src)

def _segment_sum(src, seg, n):
    out = torch.zeros((n,) + src.shape[1:], dtype=src.dtype)
    return out.index_add_(0, seg, src)

def _pad(x, pw):
    flat = tuple((v for pair in reversed(pw) for v in pair))
    return torch.nn.functional.pad(x, flat)
kernel_name = 'gated_mix__memory_aug_recurrent_mem_tr__sliding_block__prompt'

def setup_inputs():

    _w = lambda a: (lambda t: t.to(torch.bfloat16) if t.is_floating_point() else t)(torch.as_tensor(a))

    def _A_setup():
        B, S, Dm = (1, 2048, 512)
        H, Dh = (32, 128)
        M, seg = (8, 32)
        seg = min(seg, S)
        S = S // seg * seg
        return {'x': _w((lambda *s: torch.randn(*s, dtype=torch.bfloat16) * 0.05)(B, S, Dm)), 'mem0': _w((lambda *s: torch.randn(*s, dtype=torch.bfloat16) * 1.6)(B, M, Dm)), 'Wq': _w((lambda *s: torch.randn(*s, dtype=torch.bfloat16) * 0.8)(Dm, H, Dh) * Dm ** (-0.5)), 'Wk': _w((lambda *s: torch.randn(*s, dtype=torch.bfloat16) * 0.8)(Dm, H, Dh) * Dm ** (-0.5)), 'Wv': _w((lambda *s: torch.randn(*s, dtype=torch.bfloat16) * 1.6)(Dm, H, Dh) * Dm ** (-0.5)), 'Wo': _w((lambda *s: torch.randn(*s, dtype=torch.bfloat16) * 1.6)(H, Dh, Dm) * (H * Dh) ** (-0.5)), 'seg_len': seg}
    _A_in = _A_setup()

    def _B_setup():
        B, S, D = (1, 2048, 512)
        return {'x': _w((lambda *s: torch.randn(*s, dtype=torch.bfloat16) * 0.05)(B, S, D)), 'wqkv': _w((lambda *s: torch.randn(*s, dtype=torch.bfloat16) * 1.6)(D, 3 * D)), 'wo': _w((lambda *s: torch.randn(*s, dtype=torch.bfloat16) * 0.05)(D, D))}
    _B_in = _B_setup()
    return {'A_x': _A_in['x'], 'A_mem0': _A_in['mem0'], 'A_Wq': _A_in['Wq'], 'A_Wk': _A_in['Wk'], 'A_Wv': _A_in['Wv'], 'A_Wo': _A_in['Wo'], 'A_seg_len': _A_in['seg_len'], 'B_x': _B_in['x'], 'B_wqkv': _B_in['wqkv'], 'B_wo': _B_in['wo'], 'gate_w': _w((lambda *s: torch.randn(*s, dtype=torch.bfloat16) * 0.05)(512) * 16.0)}

def reference(A_x, A_mem0, A_Wq, A_Wk, A_Wv, A_Wo, A_seg_len, B_x, B_wqkv, B_wo, gate_w):

    def _A_ref(x, mem0, Wq, Wk, Wv, Wo, seg_len):
        B, S, Dm = x.shape
        H, Dh = (Wq.shape[1], Wq.shape[2])
        M = mem0.shape[1]
        scale = Dh ** (-0.5)
        n_seg = S // seg_len
        L = M + seg_len
        idx = torch.arange(L)
        mask = (idx[:, None] < M) | (idx[:, None] >= idx[None, :])
        mem = mem0
        outs = []
        for s in range(n_seg):
            xs = x[:, s * seg_len:(s + 1) * seg_len, :].clone()
            h = torch.concatenate([mem, xs], axis=1)
            q = torch.einsum('btd,dhe->bhte', h, Wq)
            k = torch.einsum('btd,dhe->bhte', h, Wk)
            v = torch.einsum('btd,dhe->bhte', h, Wv)
            scores = torch.einsum('bhqe,bhke->bhqk', q, k) * scale
            scores = torch.where(mask[None, None], scores, -1000000000.0)
            p = _softmax(scores, axis=-1)
            o = torch.einsum('bhqk,bhke->bhqe', p, v)
            o = torch.einsum('bhte,hed->btd', o, Wo)
            mem = o[:, :M, :].clone()
            outs.append(o[:, M:, :])
        return torch.concatenate(outs, axis=1)

    def _B_ref(x, wqkv, wo):
        B, S, D = x.shape
        H = 32
        Dh = D // H
        W = 256
        qkv = (lambda x, *d: x.permute(*d))((x @ wqkv).reshape(B, S, 3, H, Dh), 2, 0, 3, 1, 4)
        q, k, v = (qkv[0], qkv[1], qkv[2])
        scores = torch.einsum('bhqd,bhkd->bhqk', q, k) * Dh ** (-0.5)
        idx = torch.arange(S)
        mask = (idx[:, None] - idx[None, :] >= 0) & (idx[:, None] - idx[None, :] < W)
        scores = torch.where(mask[None, None], scores, -1000000000.0)
        p = _softmax(scores, axis=-1)
        o = torch.einsum('bhqk,bhkd->bhqd', p, v)
        return (lambda x, *d: x.permute(*d))(o, 0, 2, 1, 3).reshape(B, S, D) @ wo
    x = A_x
    g = _sigmoid((x * gate_w).sum(-1, keepdims=True))
    a = _A_ref(x, A_mem0, A_Wq, A_Wk, A_Wv, A_Wo, A_seg_len)
    b = _B_ref(x, B_wqkv, B_wo)
    return g * a + (1 - g) * b
```

```python
from fw import *
from layout import *
import math, struct

S_WS, S_WQ, S_WK, S_WV, S_WO, S_M0, S_DBG = 8, 12, 16, 20, 24, 28, 32
S_H, S_W, S_STEP = 40, 41, 42
S_KV, S_KVM, S_INW0, S_INW1, S_INR0, S_INR1, S_INRST, S_H2W, S_H2R, S_H2RST = 44, 45, 46, 47, 48, 49, 50, 51, 52, 53
S_SPIN, S_T0, S_T1, S_T2 = 54, 55, 56, 57
S_C = 58
S_OR = 60
S_TS = 64

MEMF, ACCQK, ACCV, KVC, KVN, T1 = 0, 32, 48, 56, 72, 88
SELR, SELT = 96, 102
X0, X1 = 100, 101
IDX, L16, L16W, MEMR, SMW, SMR, OW, OR_, ST1, ST2, STRM, IDXR = 104, 105, 106, 107, 110, 111, 112, 113, 114, 115, 116, 117
X2, X3 = 118, 119
SBUF = 120
VSTAT = 144
L_MEM, L_SX, L_SM, L_OX, L_SELR, L_WS = 0, 8192, 12288, 13312, 15360, 16384
WSTRIDE = 36864
OOR = 0x30000
SPIN_MAX = 1 << 20

def f2u(x):
    return struct.unpack('<I', struct.pack('<f', x))[0]

def srd(k, base, ptr_lo, nbytes):
    k('s_mov_b32 %s, %s' % (s(base), s(ptr_lo)))
    k('s_and_b32 %s, %s, 0xffff' % (s(base + 1), s(ptr_lo + 1)))
    k('s_mov_b32 %s, 0x%x' % (s(base + 2), nbytes))
    k('s_mov_b32 %s, 0x00020000' % s(base + 3))

BLOCKS = [(m, kap) for m in 'qkv' for kap in range(8)] + [('o', a_, be) for a_ in range(4) for be in range(2)]
STREAMED = [('q', 0), ('v', 0), ('q', 6), ('q', 7), ('k', 4), ('k', 6), ('v', 2), ('o', 1, 1), ('o', 3, 1)]

def op_locs():
    loc = {}
    na = nv = 0
    for b in BLOCKS:
        for j in range(2):
            if b in STREAMED:
                loc[(b, j)] = ('s', 2 * STREAMED.index(b) + j)
            elif na < 32:
                loc[(b, j)] = ('a', 8 * na); na += 1
            else:
                loc[(b, j)] = ('v', VSTAT + 8 * nv); nv += 1
    assert na == 32 and nv == 14
    return loc

def chain(k, LANE, nsteps=64, prof=False, dump=False, opt={}):
    LOC = op_locs()
    k.c('===== chain: constants =====')
    tA, tB, tC, tD = 0, 1, 2, 3
    k('v_lshlrev_b32 %s, 4, %s' % (v(L16), v(LANE)))
    k('s_lshl_b32 %s, %s, 10' % (s(S_T0), s(S_W)))
    k('v_add_u32 %s, %s, %s' % (v(L16W), s(S_T0), v(L16)))
    for p in (1, 2, 3):
        k('s_add_u32 %s, %s, %d' % (s(S_T0), s(S_W), p))
        k('s_and_b32 %s, %s, 3' % (s(S_T0), s(S_T0)))
        k('s_lshl_b32 %s, %s, 9' % (s(S_OR + p - 1), s(S_T0)))
        k('s_lshl_b32 %s, %s, 10' % (s(S_T0), s(S_T0)))
        k('v_add_u32 %s, %s, %s' % (v(MEMR + p - 1), s(S_T0), v(L16)))
    k('v_and_b32 %s, 15, %s' % (v(tA), v(LANE)))
    k('v_lshrrev_b32 %s, 4, %s' % (v(tB), v(LANE)))
    k('v_and_b32 %s, 7, %s' % (v(tC), v(LANE)))
    k('v_cmp_gt_u32 vcc, 8, %s' % v(tA))
    k('v_mov_b32 %s, 0xeeee' % v(IDX))
    k('v_mov_b32 %s, 0x4444' % v(tD))
    k('v_cndmask_b32 %s, %s, %s, vcc' % (v(IDX), v(IDX), v(tD)))
    k('v_mov_b32 %s, 0x%x' % (v(tD), OOR))
    k('v_lshl_add_u32 %s, %s, 3, %s' % (v(OR_), v(tB), v(tC)))
    k('v_lshlrev_b32 %s, 4, %s' % (v(OR_), v(OR_)))
    k('s_lshl_b32 %s, %s, 9' % (s(S_T0), s(S_W)))
    k('v_add_u32 %s, %s, %s' % (v(OW), s(S_T0), v(OR_)))
    k('v_cndmask_b32 %s, %s, %s, vcc' % (v(OW), v(tD), v(OW)))
    k('v_and_b32 %s, 0xff, %s' % (v(SMR), v(OR_)))
    k('v_and_b32 %s, 8, %s' % (v(4), v(tA)))
    k('v_add_u32 %s, %s, %s' % (v(SMR), v(4), v(SMR)))
    k('v_add_u32 %s, %d, %s' % (v(SMR), L_SM, v(SMR)))
    k('s_lshl_b32 %s, %s, 8' % (s(S_T0), s(S_W)))
    k('v_add_u32 %s, %s, %s' % (v(SMW), s(S_T0), v(SMR)))
    k('v_cmp_gt_u32 vcc, 32, %s' % v(LANE))
    k('v_cndmask_b32 %s, %s, %s, vcc' % (v(SMW), v(tD), v(SMW)))
    k('v_lshlrev_b32 %s, 13, %s' % (v(ST1), v(tB)))
    k('v_lshrrev_b32 %s, 2, %s' % (v(4), v(tA)))
    k('v_lshl_add_u32 %s, %s, 11, %s' % (v(ST1), v(4), v(ST1)))
    k('v_and_b32 %s, 3, %s' % (v(5), v(tA)))
    k('v_lshl_add_u32 %s, %s, 4, %s' % (v(ST1), v(5), v(ST1)))
    k('v_lshlrev_b32 %s, 2, %s' % (v(ST2), v(tA)))
    k('v_lshl_add_u32 %s, %s, 4, %s' % (v(ST2), v(tB), v(ST2)))
    k('s_lshr_b32 %s, %s, 1' % (s(S_T0), s(S_H)))
    k('s_lshl_b32 %s, %s, 9' % (s(S_T0), s(S_T0)))
    k('s_and_b32 %s, %s, 1' % (s(S_T1), s(S_H)))
    k('s_lshl_b32 %s, %s, 6' % (s(S_T1), s(S_T1)))
    k('s_add_u32 %s, %s, %s' % (s(S_T0), s(S_T0), s(S_T1)))
    k('s_lshl_b32 %s, %s, 7' % (s(S_T1), s(S_W)))
    k('s_add_u32 %s, %s, %s' % (s(S_T0), s(S_T0), s(S_T1)))
    k('v_add_u32 %s, %s, %s' % (v(ST2), s(S_T0), v(ST2)))
    k('v_cmp_gt_u32 vcc, 4, %s' % v(tA))
    k('v_bfrev_b32 %s, 1' % v(4))
    k('v_cndmask_b32 %s, %s, %s, vcc' % (v(ST2), v(4), v(ST2)))
    k('s_mul_i32 %s, %s, %d' % (s(S_T2), s(S_W), WSTRIDE))
    k('s_add_u32 %s, %s, %d' % (s(S_T2), s(S_T2), L_WS))
    k('v_add_u32 %s, %s, %s' % (v(STRM), s(S_T2), v(L16)))
    k('v_and_b32 %s, 1, %s' % (v(tD), v(tB)))
    k('v_lshlrev_b32 %s, 2, %s' % (v(tD), v(tD)))
    k('v_sub_u32 %s, %s, %s' % (v(tD), v(tC), v(tD)))
    k('v_mov_b32 %s, 0x3f80' % v(4))
    k('v_mov_b32 %s, 0x3f800000' % v(5))
    for r in range(2):
        k('v_mov_b32 %s, 0' % v(SELT + r))
        k('v_cmp_eq_u32 vcc, %d, %s' % (2 * r, v(tD)))
        k('v_cndmask_b32 %s, %s, %s, vcc' % (v(SELT + r), v(SELT + r), v(4)))
        k('v_cmp_eq_u32 vcc, %d, %s' % (2 * r + 1, v(tD)))
        k('v_cndmask_b32 %s, %s, %s, vcc' % (v(SELT + r), v(SELT + r), v(5)))
    k('v_and_b32 %s, 2, %s' % (v(6), v(tA)))
    k('v_cmp_eq_u32 vcc, 0, %s' % v(6))
    k('v_mov_b32 %s, 0' % v(7))
    k('v_cndmask_b32 %s, %s, %s, vcc' % (v(6), v(7), v(4)))
    k('v_cmp_gt_u32 vcc, 8, %s' % v(tA))
    k('v_cndmask_b32 %s, %s, %s, vcc' % (v(SELR), v(7), v(6)))
    k('v_cndmask_b32 %s, %s, %s, vcc' % (v(SELR + 1), v(6), v(7)))
    k('v_mov_b32 %s, %s' % (v(SELR + 2), v(SELR)))
    k('v_mov_b32 %s, %s' % (v(SELR + 3), v(SELR + 1)))
    for p in range(3):
        k('v_add_u32 %s, %s, %s' % (v([X0, X1, X2][p]), s(S_OR + p), v(OR_)))
    k('v_bfe_u32 %s, %s, 2, 1' % (v(6), v(tA)))
    k('v_and_b32 %s, 1, %s' % (v(7), v(tA)))
    k('v_lshl_add_u32 %s, %s, 1, %s' % (v(6), v(6), v(7)))
    k('v_xor_b32 %s, 1, %s' % (v(7), v(6)))
    k('v_lshl_add_u32 %s, %s, 2, %s' % (v(6), v(7), v(6)))
    k('v_mul_u32_u24 %s, 0x1111, %s' % (v(IDXR), v(6)))

    k.c('===== chain: weight load =====')
    GQ, GO, TRQ, TRO = 16, 17, 18, 19
    TMP = 32
    k('v_lshrrev_b32 %s, 2, %s' % (v(6), v(LANE)))
    k('v_and_b32 %s, 3, %s' % (v(7), v(LANE)))
    k('v_lshlrev_b32 %s, 4, %s' % (v(12), v(7)))
    k('v_lshl_add_u32 %s, %s, 13, %s' % (v(GQ), v(6), v(12)))
    k('v_lshl_add_u32 %s, %s, 10, %s' % (v(GO), v(6), v(12)))
    k('s_lshl_b32 %s, %s, 8' % (s(S_T0), s(S_H)))
    k('s_lshl_b32 %s, %s, 6' % (s(S_T1), s(S_W)))
    k('s_add_u32 %s, %s, %s' % (s(S_T0), s(S_T0), s(S_T1)))
    k('v_add_u32 %s, %s, %s' % (v(GQ), s(S_T0), v(GQ)))
    k('s_lshl_b32 %s, %s, 17' % (s(S_T0), s(S_H)))
    k('s_lshl_b32 %s, %s, 8' % (s(S_T1), s(S_W)))
    k('s_add_u32 %s, %s, %s' % (s(S_T0), s(S_T0), s(S_T1)))
    k('v_add_u32 %s, %s, %s' % (v(GO), s(S_T0), v(GO)))
    k('v_bfe_u32 %s, %s, 5, 1' % (v(12), v(LANE)))
    k('v_lshlrev_b32 %s, 3, %s' % (v(TRQ), v(12)))
    k('v_lshlrev_b32 %s, 2, %s' % (v(TRO), v(12)))
    k('v_bfe_u32 %s, %s, 4, 1' % (v(12), v(LANE)))
    k('v_lshl_add_u32 %s, %s, 1, %s' % (v(TRQ), v(12), v(TRQ)))
    k('v_lshl_add_u32 %s, %s, 4, %s' % (v(TRO), v(12), v(TRO)))
    k('v_bfe_u32 %s, %s, 3, 1' % (v(12), v(LANE)))
    k('v_lshl_add_u32 %s, %s, 2, %s' % (v(TRQ), v(12), v(TRQ)))
    k('v_bfe_u32 %s, %s, 2, 1' % (v(12), v(LANE)))
    k('v_lshl_add_u32 %s, %s, 5, %s' % (v(TRQ), v(12), v(TRQ)))
    k('v_bfe_u32 %s, %s, 2, 2' % (v(12), v(LANE)))
    k('v_add_u32 %s, %s, %s' % (v(TRO), v(TRO), v(12)))
    for R in (TRQ, TRO):
        k('v_lshlrev_b32 %s, 6, %s' % (v(R), v(R)))
        k('v_lshl_add_u32 %s, %s, 3, %s' % (v(R), v(7), v(R)))
        k('v_add_u32 %s, %s, %s' % (v(R), s(S_T2), v(R)))
    order = [b for b in BLOCKS if b not in STREAMED] + list(STREAMED)
    def issue(li):
        blk = order[li]; slot = (li + 4) % 9
        for i in range(4):
            if blk[0] == 'o':
                srdn, ga = S_WO, GO
                if i % 2 == 0:
                    k('s_add_u32 %s, %s, %d' % (s(S_T0), s(S_W), 2 * blk[2] + (i >> 1)))
                    k('s_and_b32 %s, %s, 3' % (s(S_T0), s(S_T0)))
                    k('s_lshl_b32 %s, %s, 15' % (s(S_T0), s(S_T0)))
                    k('s_add_u32 %s, %s, %d' % (s(S_T0), s(S_T0), blk[1] * 64))
                else:
                    k('s_add_u32 %s, %s, %d' % (s(S_T0), s(S_T0), 16 * 1024))
            else:
                srdn, ga = {'q': S_WQ, 'k': S_WK, 'v': S_WV}[blk[0]], GQ
                if i == 0:
                    k('s_lshl_b32 %s, %s, 1' % (s(S_T0), s(S_W)))
                    k('s_add_u32 %s, %s, %d' % (s(S_T0), s(S_T0), blk[1]))
                    k('s_and_b32 %s, %s, 7' % (s(S_T0), s(S_T0)))
                    k('s_lshl_b32 %s, %s, 19' % (s(S_T0), s(S_T0)))
                else:
                    k('s_add_u32 %s, %s, %d' % (s(S_T0), s(S_T0), 16 * 8192))
            k('s_add_u32 m0, %s, %d' % (s(S_T2), slot * 4096 + i * 1024))
            k('buffer_load_dwordx4 %s, %s, %s offen lds' % (v(ga), s(srdn, 4), s(S_T0)), tag=('wl', li))
    def dst(loc, r, n):
        return (a if loc[0] == 'a' else v)(loc[1] + r, n)
    for li in range(9):
        issue(li)
    for li in range(32):
        blk = order[li]; slot = (li + 4) % 9
        k.wait_vm(('wl', li))
        streamed = blk in STREAMED
        if blk[0] != 'o':
            for t in range(2):
                loc = LOC[(blk, t)] if not streamed else ('v', TMP + 8 * t)
                for H in range(2):
                    for Q in range(2):
                        k('ds_read_b64_tr_b16 %s, %s offset:%d' % (dst(loc, 4 * H + 2 * Q, 2), v(TRQ), slot * 4096 + (16 * H + Q) * 64 + 32 * t))
            k('s_waitcnt lgkmcnt(0)')
        else:
            T2 = 56
            for j in range(2):
                for H in range(2):
                    for tau in range(2):
                        k('ds_read_b64_tr_b16 %s, %s offset:%d' % (v(T2 + 8 * j + 4 * H + 2 * tau, 2), v(TRO), slot * 4096 + (32 * j + 8 * H) * 64 + 32 * tau))
            k('s_waitcnt lgkmcnt(0)')
            for j in range(2):
                loc = LOC[(blk, j)] if not streamed else ('v', TMP + 8 * j)
                mv = 'v_accvgpr_write_b32' if loc[0] == 'a' else 'v_mov_b32'
                for H in range(2):
                    for tau in range(2):
                        src = T2 + 8 * j + 4 * H + 2 * tau
                        k('%s %s, %s' % (mv, dst(loc, 4 * H + tau, 1), v(src)))
                        k('%s %s, %s' % (mv, dst(loc, 4 * H + tau + 2, 1), v(src + 1)))
        if streamed:
            for i in range(4):
                k('ds_write_b128 %s, %s offset:%d' % (v(STRM), v(TMP + 4 * i, 4), slot * 4096 + i * 1024))
            k('s_waitcnt lgkmcnt(0)')
        if li + 9 < 32:
            issue(li + 9)

    k.c('===== chain: initial state =====')
    k('v_and_b32 %s, 7, %s' % (v(12), v(LANE)))
    k('v_lshlrev_b32 %s, 10, %s' % (v(13), v(12)))
    k('v_lshrrev_b32 %s, 4, %s' % (v(12), v(LANE)))
    k('v_lshl_add_u32 %s, %s, 4, %s' % (v(13), v(12), v(13)))
    k('v_bfe_u32 %s, %s, 3, 1' % (v(12), v(LANE)))
    k('v_lshl_add_u32 %s, %s, 3, %s' % (v(13), v(12), v(13)))
    k('s_lshl_b32 %s, %s, 8' % (s(S_T0), s(S_W)))
    for k2 in range(2):
        for q in range(4):
            k('buffer_load_ushort %s, %s, %s, %s offen offset:%d' % (v(MEMF + 4 * k2 + q), v(13), s(S_M0, 4), s(S_T0), k2 * 128 + q * 2))
            k('buffer_load_ushort %s, %s, %s, %s offen offset:%d' % (v(16 + 4 * k2 + q), v(13), s(S_M0, 4), s(S_T0), k2 * 128 + q * 2 + 64))
    k('s_waitcnt vmcnt(0)')
    for i in range(8):
        k('v_lshl_or_b32 %s, %s, 16, %s' % (v(MEMF + i), v(16 + i), v(MEMF + i)))
    k('s_lshl_b32 %s, %s, 14' % (s(S_KV), s(S_H)))
    k('s_lshl_b32 %s, %s, 12' % (s(S_T0), s(S_W)))
    k('s_add_u32 %s, %s, %s' % (s(S_KV), s(S_KV), s(S_T0)))
    k('s_lshr_b32 %s, %s, 1' % (s(S_KVM), s(S_KV)))
    k('s_add_u32 %s, %s, 0x%x' % (s(S_INR1), s(S_KVM), SCRATCH))
    k('s_add_u32 %s, %s, 0x%x' % (s(S_KVM), s(S_KVM), KVM))
    k('s_mov_b32 %s, 0' % s(S_STEP))
    if hasattr(k, 'hook_start'): k.hook_start()
    for i in range(4):
        k('buffer_load_dwordx4 %s, %s, %s, %s offen offset:%d sc1' % (v((KVN if i == 1 else KVC) + 4 * i, 4), v(L16), s(S_WS, 4), s(S_KV), 1024 * i))
    k('s_add_u32 %s, %s, 0x80000' % (s(S_KV), s(S_KV)))
    k('s_lshl_b32 %s, %s, 16' % (s(S_INW0), s(S_W)))
    k('s_lshl_b32 %s, %s, 6' % (s(S_T0), s(S_H)))
    k('s_add_u32 %s, %s, %s' % (s(S_INW0), s(S_INW0), s(S_T0)))
    k('s_add_u32 %s, %s, 0x%x' % (s(S_INW0), s(S_INW0), INB))
    k('s_add_u32 %s, %s, 0x8000' % (s(S_INW1), s(S_INW0)))
    k('s_lshl_b32 %s, %s, 13' % (s(S_INR0), s(S_H)))
    k('s_add_u32 %s, %s, 0x%x' % (s(S_INR0), s(S_INR0), INB))
    k('s_lshl_b32 %s, %s, 11' % (s(S_T0), s(S_W)))
    k('s_add_u32 %s, %s, %s' % (s(S_INR0), s(S_INR0), s(S_T0)))
    k('s_xor_b32 %s, %s, 0x40000' % (s(S_INRST), s(S_INR0)))
    k('s_mov_b32 %s, 0x%x' % (s(S_H2W), H2))
    k('s_add_u32 %s, %s, 0x%x' % (s(S_H2R), s(S_T0), H2 + 0x6000))
    k('s_mov_b32 %s, 0x%x' % (s(S_H2RST), H2 + 0x4000))
    cc = (128 ** -0.5) * math.log2(math.e)
    k('s_mov_b32 %s, 0x%x' % (s(S_C), f2u(cc)))
    k('s_mov_b32 %s, 0x%x' % (s(S_C + 1), f2u(cc)))
    def sread(i):
        i %= 18
        bufr = SBUF + 8 * (i % 3)
        k('ds_read_b128 %s, %s offset:%d' % (v(bufr, 4), v(STRM), i * 2048), tag=('st', i))
        k('ds_read_b128 %s, %s offset:%d' % (v(bufr + 4, 4), v(STRM), i * 2048 + 1024), tag=('st', i))
    for i in range(3):
        sread(i)
    for i in range(0, 24, 2): k('v_mov_b64 %s, 0' % v(ACCQK + i, 2))
    for i in range(0, 4, 2): k('v_mov_b64 %s, -1' % v(T1 + i, 2))
    if prof:
        for i in range(8): k('s_mov_b32 %s, 0' % s(S_TS + 16 + i))
        k.raw('  s_memtime %s' % s(S_TS + 24, 2))
    k('s_waitcnt vmcnt(0) lgkmcnt(0)')
    k('s_barrier')

    used = []
    def smf(blk, j, acc, afrag):
        loc = LOC[(blk, j)]
        if loc[0] == 's':
            assert loc[1] == len(used), (loc, used)
            used.append(loc[1])
            assert all(p[0] != loc[1] for p in pend), ('refill not issued', loc)
            k.wait_lg(('st', loc[1]))
            opnd = v(SBUF + 8 * (loc[1] % 3), 8)
        else:
            opnd = dst(loc, 0, 8)
        k('v_smfmac_f32_16x16x64_bf16 %s, %s, %s, %s' % (v(acc, 4), v(afrag, 4), opnd, v(IDX)))
        if loc[0] == 's':
            pend.append(((loc[1] + 3) % 18, 0)); pend.append(((loc[1] + 3) % 18, 1))
    pend = []
    def RF(n=1):
        for _ in range(n):
            if pend:
                i, hf = pend.pop(0)
                k('ds_read_b128 %s, %s offset:%d' % (v(SBUF + 8 * (i % 3) + 4 * hf, 4), v(STRM), i * 2048 + 1024 * hf), tag=('st', i))
    ACC = {'q': ACCQK, 'k': ACCQK + 8, 'v': ACCV}
    def S(m, kap, j):
        if kap >= 2: k.wait_lg(('mf', kap))
        smf((m, kap), j, ACC[m] + 4 * j, MEMF + 4 * kap)
    k.points = []
    def pt(name):
        k.points.append(name)
        if opt.get('pt') == name:
            k.raw('  s_memtime %s' % s(S_TS + 2, 2))
    def cvt(d, x, y):
        k('v_cvt_pk_bf16_f32 %s, %s, %s' % (v(d), v(x), v(y)))
    def mf16(d, A, B, C=None):
        k('v_mfma_f32_16x16x16_bf16 %s, %s, %s, %s' % (v(d, 4), v(A, 2), v(B, 2), '0' if C is None else v(C, 4)))
    def mf32(d, A, B, C=None):
        k('v_mfma_f32_16x16x32_bf16 %s, %s, %s, %s' % (v(d, 4), v(A, 4), v(B, 4), '0' if C is None else v(C, 4)))
    def pkadd(d, x, y):
        k('v_pk_add_f32 %s, %s, %s' % (v(d, 2), v(x, 2), v(y, 2)))
    def pkfma_c(d, x, m):
        k('v_pk_fma_f32 %s, %s, %s, %s op_sel_hi:[1,1,0] neg_lo:[0,0,1] neg_hi:[0,0,1]' % (v(d, 2), v(x, 2), s(S_C, 2), v(m, 2)))
    def pkmul_b(d, x, m):
        k('v_pk_mul_f32 %s, %s, %s op_sel_hi:[1,0]' % (v(d, 2), v(x, 2), v(m, 2)))
    ROR8 = 'row_ror:8 row_mask:0xf bank_mask:0xf'

    LOOP = 'L_chain_loop'; FAIL = 'L_fail'; DONE = 'L_chain_done'; BODY = 'L_chain_body'
    RETRY2 = 'L_retry2'; P1 = 'L_p1'; RETRY1 = 'L_retry1'
    D1 = opt.get('d1', 2); D2 = opt.get('d2', 2)
    HA, HB = X3, OR_
    ORR = [X0, X1, X2]
    H1R = MEMF + 8
    def nops(n):
        while n > 0:
            k('s_nop %d' % (min(n, 16) - 1)); n -= 16
    def check(R):
        k('v_max3_u32 %s, %s, %s, %s' % (v(HA), v(R), v(R + 1), v(R + 2)))
        k('v_max3_u32 %s, %s, %s, %s' % (v(HB), v(R + 3), v(R + 4), v(R + 5)))
        k('v_max3_u32 %s, %s, %s, %s' % (v(HA), v(HA), v(R + 6), v(R + 7)))
        k('v_max_u32 %s, %s, %s' % (v(HA), v(HA), v(HB)))
        k('v_cmp_eq_u32 vcc, -1, %s' % v(HA))
    def add(d, x, y): k('v_add_f32 %s, %s, %s' % (v(d), v(x), v(y)))
    k('s_branch %s' % BODY)
    k.raw('.p2align 6')
    k.label(LOOP)
    k('s_waitcnt vmcnt(%d)' % (2 * (D2 - 1)))
    check(MEMF)
    k('s_cbranch_vccnz %s' % RETRY2)
    k('s_mov_b64 exec, -1')
    if dump:
        k('s_lshl_b32 %s, %s, 13' % (s(S_T0), s(S_STEP)))
        k('s_lshl_b32 %s, %s, 11' % (s(S_T1), s(S_W)))
        k('s_add_u32 %s, %s, %s' % (s(S_T0), s(S_T0), s(S_T1)))
        k('s_add_u32 %s, %s, 0x%x' % (s(S_T0), s(S_T0), DBG - 8192))
        k('buffer_store_dwordx4 %s, %s, %s, %s offen' % (v(MEMF, 4), v(L16), s(S_WS, 4), s(S_T0)))
        k('buffer_store_dwordx4 %s, %s, %s, %s offen offset:1024' % (v(MEMF + 4, 4), v(L16), s(S_WS, 4), s(S_T0)))
    k.label(BODY)
    abl = opt.get('abl', [])
    if abl:
        k0 = k._one
        def filt(t, tag):
            if 'vmem' in abl and t.startswith('buffer_'): return
            if 'bar' in abl and t.startswith('s_barrier'): return
            if 'stream' in abl and t.startswith('ds_read_b128') and (', %s ' % v(STRM)) in t: return
            if 'dsw' in abl and t.startswith('ds_write'): return
            if 'dsr' in abl and t.startswith('ds_read'): return
            if 'valu' in abl and t.startswith('v_') and not t.startswith('v_mfma') and not t.startswith('v_smfmac'): return
            if 'mfma' in abl and (t.startswith('v_mfma') or t.startswith('v_smfmac')): return
            return k0(t, tag)
        k._one = filt
    k.lg = []; k.vm = ['poll'] * (2 * (D2 - 1))
    if opt.get('pt'): k.raw('  s_memtime %s' % s(S_TS, 2))
    S_DEF = S_INR1
    VM = KVC + 4; KA = T1 + 4
    def R(kap):
        p = kap >> 1; k2 = kap & 1
        k('ds_read_b128 %s, %s offset:%d' % (v(MEMF + 4 * kap, 4), v(MEMR + p - 1), L_MEM + 4096 * k2), tag=('mf', kap))
    def rst(i):
        k('buffer_store_dwordx4 %s, %s, %s, %s offen offset:%d' % (v(T1, 4), v(L16), s(S_WS, 4), s(S_INRST), 1024 * i), tag='rst')
    def pf(i):
        k('buffer_load_dwordx4 %s, %s, %s, %s offen offset:%d sc1' % (v(KVN + 4 * i, 4), v(L16), s(S_WS, 4), s(S_KV), 1024 * i))
    def stk(so): k('buffer_store_dwordx4 %s, %s, %s, %s offen sc1' % (v(KA, 4), v(L16), s(S_WS, 4), s(so)))
    def stv(so): k('buffer_store_dwordx4 %s, %s, %s, %s offen offset:1024 sc1' % (v(VM, 4), v(L16), s(S_WS, 4), s(so)))
    def BAR(tag):
        k.wait_lg(tag); k('s_barrier')
    def mov64(d, x): k('v_mov_b64 %s, %s' % (v(d, 2), x))
    k('ds_write_b128 %s, %s offset:%d' % (v(L16W), v(MEMF, 4), L_MEM), tag='mw0')
    S('q', 0, 0); S('q', 0, 1); RF(); S('q', 1, 0); RF(); S('q', 1, 1)
    k('ds_write_b128 %s, %s offset:%d' % (v(L16W), v(MEMF + 4, 4), L_MEM + 4096), tag='mw1')
    S('k', 1, 0); RF(); S('k', 1, 1); RF()
    pt('own0')
    S('k', 0, 0); BAR('mw0'); R(2)
    pt('b1')
    S('k', 0, 1); R(4)
    S('v', 0, 0); R(6)
    S('v', 0, 1); RF(); stv(S_DEF)
    S('v', 1, 0); RF()
    S('v', 1, 1); BAR('mw1'); R(3)
    pt('own1')
    S('q', 2, 0); R(5); mov64(KVC + 4, v(KVN + 4, 2))
    S('q', 2, 1); R(7); mov64(KVC + 6, v(KVN + 6, 2))
    S('q', 4, 0); RF(); stk(S_DEF)
    S('q', 4, 1); RF()
    S('q', 6, 0); RF(); S('q', 6, 1); RF()
    S('q', 3, 0); RF(); rst(0)
    S('q', 3, 1); RF()
    S('q', 5, 0); S('q', 5, 1)
    S('q', 7, 0); RF(); rst(1)
    S('q', 7, 1); RF()
    pt('Q')
    k.wait_vm('poll')
    if hasattr(k, 'hook_prefetch'): k.hook_prefetch()
    MXX, TA, PM = MEMF + 4, MEMF + 5, MEMF + 2
    S('k', 2, 0); RF()
    S('k', 2, 1); RF(); cvt(T1, ACCQK, ACCQK + 1)
    S('k', 3, 0); pf(0); cvt(T1 + 1, ACCQK + 2, ACCQK + 3)
    S('k', 3, 1); cvt(T1 + 2, ACCQK + 4, ACCQK + 5)
    mf16(ACCQK, T1, SELT); cvt(T1 + 3, ACCQK + 6, ACCQK + 7)
    S('k', 4, 0); RF()
    mf16(ACCQK + 4, T1 + 2, SELT); RF(); pf(1)
    S('k', 4, 1); RF(); cvt(T1, ACCQK, ACCQK + 1)
    S('k', 5, 0); RF(); cvt(T1 + 1, ACCQK + 2, ACCQK + 3)
    S('k', 5, 1); cvt(T1 + 2, ACCQK + 4, ACCQK + 5); cvt(T1 + 3, ACCQK + 6, ACCQK + 7)
    S('k', 6, 0); RF(); pf(2)
    mf32(ACCQK, KVC, T1); RF()
    mf32(ACCQK + 4, KVC + 4, T1)
    S('k', 6, 1); RF()
    S('k', 7, 0); RF(); pf(3)
    k('s_add_u32 %s, %s, 0x80000' % (s(S_KV), s(S_KV)))
    def sel(d, x): k('v_mov_b32_dpp %s, %s quad_perm:[0,1,2,3] row_mask:0xf bank_mask:0xc' % (v(d), v(x)))
    S('k', 7, 1)
    pt('K')
    vq = [(kap, j) for kap in range(2, 8) for j in range(2)]
    def V(n=1):
        for _ in range(n):
            kap, j = vq.pop(0)
            S('v', kap, j)
    AK = ACCQK + 8
    for j in range(4): sel(ACCQK + j, ACCQK + 4 + j)
    cvt(T1 + 4, AK, AK + 1); cvt(T1 + 5, AK + 2, AK + 3)
    V(1)
    k('ds_write_b128 %s, %s offset:%d' % (v(L16W), v(ACCQK, 4), L_SX), tag='xw')
    cvt(T1 + 6, AK + 4, AK + 5); cvt(T1 + 7, AK + 6, AK + 7)
    mf16(AK, T1 + 4, SELT); RF()
    mf16(AK + 4, T1 + 6, SELT); RF()
    V(1); RF()
    cvt(T1 + 4, AK, AK + 1); cvt(T1 + 5, AK + 2, AK + 3)
    V(1); RF()
    cvt(T1 + 6, AK + 4, AK + 5); cvt(T1 + 7, AK + 6, AK + 7)
    XSR = [KVC, KVC + 4, ACCQK, ACCQK + 4]
    def XR(w_): k('ds_read_b128 %s, %s offset:%d' % (v(XSR[w_], 4), v(L16), L_SX + 1024 * w_), tag=('xs', w_))
    mf32(AK, T1 + 4, T1); BAR('xw'); XR(0)
    pt('sm')
    V(1); XR(1)
    V(1); XR(2)
    sel(AK, AK + 2); sel(AK + 1, AK + 3)
    V(1)
    k('ds_write_b64 %s, %s' % (v(SMW), v(AK, 2)), tag='sw')
    XR(3)
    pt('swr')
    XS = KVC
    k.wait_lg(('xs', 1))
    for j in range(4): add(XS + j, XS + j, XS + 4 + j)
    k.wait_lg(('xs', 2))
    for j in range(4): add(XS + j, XS + j, ACCQK + j)
    V(1); BAR('sw')
    pt('b2b')
    MS = AK
    k('ds_read2_b64 %s, %s offset0:0 offset1:32' % (v(MS, 4), v(SMR)), tag='ms0')
    k('ds_read2_b64 %s, %s offset0:64 offset1:96' % (v(MS + 4, 4), v(SMR)), tag='ms1')
    k.wait_lg(('xs', 3))
    for j in range(4): add(XS + j, XS + j, ACCQK + 4 + j)
    V(1); k('v_max3_f32 %s, %s, %s, %s' % (v(MXX), v(XS), v(XS + 1), v(XS + 2)))
    k('v_max_f32 %s, %s, %s' % (v(MXX), v(MXX), v(XS + 3)))
    k('v_mov_b32 %s, %s' % (v(TA), v(MXX)))
    V(1)
    k.wait_lg('ms0')
    k('v_permlane32_swap_b32 %s, %s' % (v(MXX), v(TA)))
    add(MS, MS, MS + 2); add(MS + 1, MS + 1, MS + 3)
    k.wait_lg('ms1')
    add(MS + 4, MS + 4, MS + 6); add(MS + 5, MS + 5, MS + 7)
    k('v_max_f32 %s, %s, %s' % (v(MXX), v(MXX), v(TA)))
    add(MS, MS, MS + 4); add(MS + 1, MS + 1, MS + 5)
    k('v_max3_f32 %s, %s, %s, %s' % (v(MXX), v(MXX), v(MS), v(MS + 1)))
    V(1)
    k('v_max_f32_dpp %s, %s, %s %s' % (v(MXX), v(MXX), v(MXX), ROR8))
    k('v_mov_b32 %s, %s' % (v(TA), v(MXX)))
    V(1)
    k('v_permlane16_swap_b32 %s, %s' % (v(MXX), v(TA)))
    k('v_max_f32 %s, %s, %s' % (v(MXX), v(MXX), v(TA)))
    V(1)
    assert not vq
    k('v_mul_f32 %s, %s, %s' % (v(MXX), s(S_C), v(MXX)))
    pt('max')
    def fma_c(d): k('v_fma_f32 %s, %s, %s, -%s' % (v(d), v(d), s(S_C), v(MXX)))
    def ex(d): k('v_exp_f32 %s, %s' % (v(d), v(d)))
    for j in range(4): fma_c(XS + j)
    for j in range(4): ex(XS + j)
    pkfma_c(MS, MS, MXX)
    PX = T1
    cvt(PX, XS, XS + 1); cvt(PX + 1, XS + 2, XS + 3)
    ex(MS); ex(MS + 1)
    for j in range(2): k('v_mov_b32_dpp %s, %s %s' % (v(PX + 2 + j), v(PX + j), ROR8))
    cvt(PM, MS, MS + 1)
    pkadd(XS, XS, XS + 2)
    O0, O1 = ACCQK, ACCQK + 4
    mf32(O0, KVC + 8, PX)
    k('v_mov_b32_dpp %s, %s %s' % (v(PM + 1), v(PM), ROR8))
    cvt(VM, ACCV, ACCV + 1); cvt(VM + 1, ACCV + 2, ACCV + 3)
    mf32(O1, KVC + 12, PX)
    cvt(VM + 2, ACCV + 4, ACCV + 5); cvt(VM + 3, ACCV + 6, ACCV + 7)
    mf16(O0, VM, PM, O0)
    add(MS, MS, MS + 1); add(XS, XS, XS + 1)
    mf16(O1, VM + 2, PM, O1)
    pt('pv')
    LS = MXX
    k('v_fma_f32 %s, %s, 0.5, %s' % (v(LS), v(MS), v(XS)))
    k('s_cmp_eq_u32 %s, %d' % (s(S_STEP), nsteps - 1))
    k('s_cbranch_scc1 %s' % DONE)
    k('v_add_f32_dpp %s, %s, %s %s' % (v(LS), v(LS), v(LS), ROR8))
    WACC = MEMF + 16; OF = MEMF + 4
    k('v_mov_b32 %s, %s' % (v(TA), v(LS)))
    for i in range(0, 4, 2): mov64(WACC + i, '0')
    k('v_permlane16_swap_b32 %s, %s' % (v(LS), v(TA)))
    add(LS, LS, TA)
    k('v_mov_b32 %s, %s' % (v(TA), v(LS)))
    for i in range(4, 8, 2): mov64(WACC + i, '0')
    k('v_permlane32_swap_b32 %s, %s' % (v(LS), v(TA)))
    add(LS, LS, TA)
    k('v_rcp_f32 %s, %s' % (v(LS), v(LS)))
    mov64(WACC + 8, '0')
    pkmul_b(O0, O0, LS); pkmul_b(O0 + 2, O0 + 2, LS); pkmul_b(O1, O1, LS); pkmul_b(O1 + 2, O1 + 2, LS)
    for i in range(4): cvt(T1 + i, O0 + 2 * i, O0 + 2 * i + 1)
    k('ds_write_b128 %s, %s offset:%d' % (v(OW), v(T1, 4), L_OX), tag='ow')
    pt('owr')
    for j in range(4): k('v_mov_b32_dpp %s, %s row_ror:8 row_mask:0xf bank_mask:0xc' % (v(T1 + j), v(T1 + j)))
    for i in range(10, 16, 2): mov64(WACC + i, '0')
    for i in range(0, 8, 2): mov64(ACCV + i, '0')
    def WO(a_, kap):
        if kap: k.wait_lg(('of', kap))
        smf(('o', a_, kap >> 1), kap & 1, WACC + 4 * a_, T1 if kap == 0 else OF + 4 * (kap - 1))
    def OFR(kap): k('ds_read_b128 %s, %s offset:%d' % (v(OF + 4 * (kap - 1), 4), v(ORR[kap - 1]), L_OX), tag=('of', kap))
    k('s_mov_b32 %s, %s' % (s(S_DEF), s(S_KVM)))
    k('s_add_u32 %s, %s, 0x40000' % (s(S_KVM), s(S_KVM)))
    WO(0, 0); BAR('ow'); OFR(1)
    pt('b3')
    WO(1, 0); OFR(2)
    WO(2, 0); OFR(3)
    WO(3, 0)
    PK = ACCQK
    WO(0, 1); mov64(ACCQK + 8, '0'); WO(1, 1); mov64(ACCQK + 10, '0')
    WO(0, 2); mov64(ACCQK + 12, '0'); WO(1, 2); RF(); mov64(ACCQK + 14, '0')
    WO(0, 3); RF(); WO(1, 3); RF()
    pt('wo1')
    WO(2, 1); RF(); mov64(T1, '-1')
    WO(3, 1); mov64(T1 + 2, '-1')
    WO(2, 2); cvt(PK, WACC, WACC + 4); cvt(PK + 1, WACC + 1, WACC + 5)
    WO(3, 2); RF(); cvt(PK + 2, WACC + 2, WACC + 6); cvt(PK + 3, WACC + 3, WACC + 7)
    WO(2, 3)
    k('buffer_store_dwordx4 %s, %s, %s, %s offen' % (v(PK, 4), v(ST1), s(S_WS, 4), s(S_INW0)))
    WO(3, 3); RF()
    pt('wo3')
    k('s_mov_b32 %s, %d' % (s(S_SPIN), SPIN_MAX))
    for j in range(4): cvt(PK + 4 + j, WACC + 8 + j, WACC + 12 + j)
    k('buffer_store_dwordx4 %s, %s, %s, %s offen' % (v(PK + 4, 4), v(ST1), s(S_WS, 4), s(S_INW1)))
    pt('st2')
    RF(8)
    assert len(used) == 18 and not pend
    k.c('--- H1')
    def round1():
        k('buffer_load_dwordx4 %s, %s, %s, %s offen sc1' % (v(H1R, 4), v(L16), s(S_WS, 4), s(S_INR0)))
        k('buffer_load_dwordx4 %s, %s, %s, %s offen offset:1024 sc1' % (v(H1R + 4, 4), v(L16), s(S_WS, 4), s(S_INR0)))
    def round2():
        k('buffer_load_dwordx4 %s, %s, %s, %s offen sc1' % (v(MEMF, 4), v(L16), s(S_WS, 4), s(S_H2R)))
        k('buffer_load_dwordx4 %s, %s, %s, %s offen offset:1024 sc1' % (v(MEMF + 4, 4), v(L16), s(S_WS, 4), s(S_H2R)))
    RA = MEMF + 16
    for i in range(0, 4, 2): k('v_mov_b64 %s, 0' % v(RA + i, 2))
    for i in range(0, 8, 2): k('v_mov_b64 %s, 0' % v(ACCQK + i, 2))
    for r in (S_INW0, S_INW1):
        k('s_xor_b32 %s, %s, 0x40000' % (s(r), s(r)))
    k('s_add_u32 %s, %s, 0x2000' % (s(S_H2R), s(S_H2R)))
    k('s_and_b32 %s, %s, 0x%x' % (s(S_H2R), s(S_H2R), 0xffff7fff))
    k('s_add_u32 %s, %s, 1' % (s(S_STEP), s(S_STEP)))
    if opt.get('nohop'):
        if opt.get('pt'):
            k.raw('  s_waitcnt lgkmcnt(0)')
            k('s_sub_u32 %s, %s, %s' % (s(S_T0), s(S_TS + 2), s(S_TS)))
            k('s_add_u32 %s, %s, %s' % (s(S_TS + 16), s(S_TS + 16), s(S_T0)))
        k('s_waitcnt vmcnt(0) lgkmcnt(0)')
        k.raw('  s_barrier')
        k('s_branch %s' % BODY)
    if abl: k._one = k0
    nops(opt.get('pre1', 32))
    for i in range(D1):
        round1()
        if i < D1 - 1: nops(opt.get('gap1', 32))
    k.label(P1)
    k('s_waitcnt vmcnt(%d)' % (2 * (D1 - 1)))
    check(H1R)
    k('s_cbranch_vccnz %s' % RETRY1)
    k('s_mov_b64 exec, -1')
    k('v_smfmac_f32_16x16x64_bf16 %s, %s, %s, %s' % (v(RA, 4), v(SELR, 4), v(H1R, 8), v(IDXR)))
    for i in (0, 2, 8, 10, 12, 14): k('v_mov_b64 %s, %s' % (v(KVC + i, 2), v(KVN + i, 2)))
    for rr in ('row_ror:4', 'row_ror:8'):
        for j in range(2):
            k('v_add_f32_dpp %s, %s, %s %s row_mask:0xf bank_mask:0xf' % (v(RA + j), v(RA + j), v(RA + j), rr))
    cvt(HB, RA, RA + 1)
    k('v_min_u32 %s, -2, %s' % (v(HB), v(HB)))
    k('buffer_store_dword %s, %s, %s, %s offen' % (v(HB), v(ST2), s(S_WS, 4), s(S_H2W)))
    k('buffer_store_dword %s, %s, %s, %s offen' % (v(T1), v(ST2), s(S_WS, 4), s(S_H2RST)))
    pt('p1ok')
    if opt.get('pt'):
        k.raw('  s_waitcnt lgkmcnt(0)')
        k('s_sub_u32 %s, %s, %s' % (s(S_T0), s(S_TS + 2), s(S_TS)))
        k('s_add_u32 %s, %s, %s' % (s(S_TS + 16), s(S_TS + 16), s(S_T0)))
    for r in (S_INR0, S_INRST):
        k('s_xor_b32 %s, %s, 0x40000' % (s(r), s(r)))
    for r in (S_H2W, S_H2RST):
        k('s_add_u32 %s, %s, 0x2000' % (s(r), s(r)))
        k('s_and_b32 %s, %s, 0x%x' % (s(r), s(r), 0xffff7fff))
    k('s_mov_b32 %s, %d' % (s(S_SPIN), SPIN_MAX))
    k('s_waitcnt lgkmcnt(0)')
    nops(opt.get('pre2', 24))
    for i in range(D2 - 1):
        round2()
        nops(opt.get('gap2', 24))
    k('s_mov_b64 vcc, -1')
    k.label(RETRY2)
    k('s_mov_b64 exec, vcc')
    round2()
    if prof: k('s_add_u32 %s, %s, 1' % (s(S_TS + 23), s(S_TS + 23)))
    k('s_sub_u32 %s, %s, 1' % (s(S_SPIN), s(S_SPIN)))
    k('s_cmp_lg_u32 %s, 0' % s(S_SPIN))
    k('s_cbranch_scc1 %s' % LOOP)
    k('s_branch %s' % FAIL)
    k.label(RETRY1)
    k('s_mov_b64 exec, vcc')
    round1()
    if prof: k('s_add_u32 %s, %s, 0x10000' % (s(S_TS + 23), s(S_TS + 23)))
    k('s_sub_u32 %s, %s, 1' % (s(S_SPIN), s(S_SPIN)))
    k('s_cmp_lg_u32 %s, 0' % s(S_SPIN))
    k('s_cbranch_scc1 %s' % P1)
    k('s_branch %s' % FAIL)
    k.label(DONE)
    stk(S_KVM); stv(S_KVM)
```

```python
import re

_REG = re.compile(r'^(-|\|)?(v|a|s)(\d+)\|?$')
_RNG = re.compile(r'^(v|a|s)\[(\d+):(\d+)\]$')
TRANS = ('v_exp_f32', 'v_log_f32', 'v_rcp_f32', 'v_rsq_f32', 'v_sqrt_f32', 'v_sin_f32', 'v_cos_f32', 'v_rcp_iflag_f32')

def regs_of(op):
    op = op.strip()
    if op.startswith('abs(') and op.endswith(')'):
        op = op[4:-1]
    if op.startswith('-abs(') and op.endswith(')'):
        op = op[5:-1]
    m = _REG.match(op)
    if m:
        return [(m.group(2), int(m.group(3)))]
    m = _RNG.match(op)
    if m:
        return [(m.group(1), i) for i in range(int(m.group(2)), int(m.group(3)) + 1)]
    if op in ('vcc', 'vcc_lo', 'vcc_hi'):
        return [('s', 'vcc')]
    if op in ('exec', 'exec_lo', 'exec_hi'):
        return [('s', 'exec')]
    if op == 'm0':
        return [('s', 'm0')]
    return []

def mfma_passes(opc):
    if '32x32' in opc:
        return 8
    return 4

class Ins:
    __slots__ = ('text', 'opc', 'w', 'r', 'kind', 'ws', 'srcc', 'ab', 'dpp', 'passes', 'wide', 't', 'tc')

def parse(text):
    t = text.split(';')[0].strip()
    parts = t.split(None, 1)
    opc = parts[0]
    rest = parts[1] if len(parts) > 1 else ''
    ops = [o.strip() for o in rest.split(',')] if rest else []
    mods = ''
    mm = re.search(r'\b(quad_perm|op_sel|op_sel_hi|neg_lo|neg_hi):\[', rest)
    if mm:
        i = mm.start()
        mods = rest[i:]
        ops = [o.strip() for o in rest[:i].split(',')]
    if ops:
        last = ops[-1].split(None, 1)
        ops[-1] = last[0] if last else ''
        if len(last) > 1:
            mods = last[1] + ' ' + mods
    I = Ins(); I.text = text; I.opc = opc; I.w = []; I.r = []; I.ws = 1; I.srcc = []; I.ab = []; I.dpp = False; I.passes = 0; I.wide = False
    R = [regs_of(o) for o in ops]
    if opc == 's_nop':
        I.kind = 'nop'; I.ws = int(ops[0], 0) + 1
    elif opc.startswith('v_mfma') or opc.startswith('v_smfmac'):
        I.kind = 'mfma'; I.passes = mfma_passes(opc)
        I.w = R[0]
        if opc.startswith('v_smfmac'):
            I.srcc = R[0]; I.ab = R[1] + R[2] + R[3]
        else:
            I.srcc = R[3]; I.ab = R[1] + R[2]
        I.r = I.srcc + I.ab
    elif opc.startswith('v_'):
        I.kind = 'valu'
        if opc.startswith('v_permlane') and 'swap' in opc:
            I.w = R[0] + R[1]; I.r = R[0] + R[1]
        elif opc.startswith('v_cmpx'):
            I.w = R[0] + [('s', 'exec')]; I.r = sum(R[1:], [])
        elif opc in ('v_add_co_u32', 'v_sub_co_u32', 'v_addc_co_u32', 'v_subb_co_u32'):
            I.w = R[0] + R[1]; I.r = sum(R[2:], [])
        else:
            I.w = R[0]; I.r = sum(R[1:], [])
            if opc.startswith('v_fmac') or opc.startswith('v_mac') or '_dpp' in opc or opc.startswith('v_writelane') or opc.startswith('v_dot2c'):
                I.r = I.r + R[0]
        I.dpp = '_dpp' in opc
    elif opc.startswith('ds_'):
        I.kind = 'ds'
        if opc.startswith('ds_read') or opc.startswith('ds_bpermute') or opc.startswith('ds_permute') or opc.startswith('ds_swizzle') or '_rtn' in opc:
            I.w = R[0]; I.r = sum(R[1:], [])
        else:
            I.r = sum(R, [])
    elif opc.startswith('buffer_') or opc.startswith('global_'):
        I.kind = 'vmem'
        islds = ' lds' in (' ' + mods) or 'load_lds' in opc
        if opc in ('buffer_inv', 'buffer_wbl2'):
            pass
        elif 'load' in opc and not islds:
            I.w = R[0]; I.r = sum(R[1:], [])
            if 'd16' in opc:
                I.r = I.r + R[0]
        elif 'atomic' in opc and 'sc0' in mods:
            I.r = sum(R, []); I.w = R[0]
        else:
            I.r = sum(R, [])
        if islds:
            I.r = I.r + [('s', 'm0')]; I.kind = 'vmem_lds'
        if 'store' in opc and ('x4' in opc or 'x3' in opc):
            I.wide = True
            I.srcc = R[0] if opc.startswith('buffer') else R[1]
    elif opc.startswith('s_'):
        I.kind = 'salu'
        if opc.startswith('s_cmp') or opc.startswith('s_cbranch') or opc in ('s_branch', 's_barrier', 's_waitcnt', 's_endpgm', 's_sleep', 's_setprio'):
            I.r = sum(R, [])
        else:
            I.w = R[0] if R else []; I.r = sum(R[1:], [])
            if 'saveexec' in opc:
                I.w = I.w + [('s', 'exec')]
        if opc.startswith('s_load') or opc.startswith('s_memtime') or opc.startswith('s_memrealtime'):
            I.kind = 'smem'
    else:
        raise ValueError('unknown instr ' + text)
    return I

def need(p, c):
    n = 0
    pw = set(p.w)
    isv = lambda x: x[0] in ('v', 'a')
    if p.kind == 'valu':
        pv = set(x for x in pw if isv(x)); ps = set(x for x in pw if not isv(x))
        if c.kind == 'mfma' and pv & set(c.r): n = max(n, 2)
        if c.kind == 'mfma' and ('s', 'exec') in ps: n = max(n, 4)
        if c.kind == 'valu':
            if c.dpp and pv & set(c.r): n = max(n, 2)
            if c.dpp and ('s', 'exec') in ps: n = max(n, 5)
            if c.opc.startswith('v_permlane'):
                if pv & set(c.r): n = max(n, 2)
                if ('s', 'exec') in ps: n = max(n, 4)
            if (c.opc.startswith('v_readlane') or c.opc.startswith('v_readfirstlane')):
                if pv & set(c.r): n = max(n, 1)
                if ('s', 'exec') in ps: n = max(n, 4)
            if ps & set(c.r):
                n = max(n, 4 if (c.opc.startswith('v_readlane') or c.opc.startswith('v_writelane')) else 2)
            if p.opc.split('_e')[0] in TRANS or any(p.opc.startswith(t) for t in TRANS):
                if pv & set(c.r) and not any(c.opc.startswith(t) for t in TRANS): n = max(n, 1)
        if c.kind in ('vmem', 'vmem_lds') and ps & set(c.r): n = max(n, 5)
        if c.kind in ('salu', 'smem') and ps & set(c.r): n = max(n, 1)
    elif p.kind == 'mfma':
        P = p.passes
        full = {4: 8, 8: 12}[P]; part = {4: 6, 8: 10}[P]; war = {4: 3, 8: 7}[P]
        if c.kind == 'mfma':
            if pw & set(c.ab): n = max(n, full)
            if pw & set(c.srcc):
                if c.srcc == p.w and c.opc == p.opc: pass
                else: n = max(n, part)
            elif pw & set(c.w): n = max(n, full)
        else:
            if pw & (set(c.r) | set(c.w)): n = max(n, full)
            if c.kind == 'valu' and set(p.srcc) & set(c.w): n = max(n, war)
    elif p.kind == 'salu':
        if ('s', 'm0') in pw and c.kind == 'vmem_lds': n = max(n, 1)
    elif p.kind == 'vmem' and p.wide:
        if set(p.srcc) & set(c.w): n = max(n, 2 if c.kind in ('valu', 'mfma') else 1)
    return n

class K:
    def __init__(self):
        self.lines = []
        self.hist = []
        self.vm = []
        self.lg = []
        self.nlabel = 0
        self.nnop = 0
        self.count = 0
    def raw(self, s):
        self.lines.append(s)
    def c(self, s):
        self.lines.append('  ; ' + s)
    def label(self, name):
        self.lines.append(name + ':')
    def newlabel(self, p='L'):
        self.nlabel += 1
        return '%s_%d' % (p, self.nlabel)
    def I(self, text, tag=None):
        for t in text.strip().split('\n'):
            t = t.strip()
            if not t or t.startswith(';'):
                continue
            if t.endswith(':'):
                self.label(t[:-1]); continue
            self._one(t, tag)
    __call__ = I
    def _one(self, t, tag):
        ins = parse(t)
        def place():
            if not self.hist:
                return 0, 0
            p = self.hist[-1]
            tt = p.t + p.ws; tc = p.tc + p.ws
            if ins.kind == 'mfma':
                for q in reversed(self.hist):
                    if q.kind == 'mfma':
                        tt = max(tt, q.t + q.passes); break
            return tt, tc
        tt, tc = place()
        req = 0
        for p in reversed(self.hist):
            n = need(p, ins)
            if n:
                have_c = tc - p.tc - p.ws
                have_t = tt - p.t - p.ws - 1
                have = max(have_c, have_t)
                if n - have > req: req = n - have
        if req > 0:
            while True:
                k = min(req, 16)
                nop = parse('s_nop %d' % (k - 1))
                p = self.hist[-1]
                nop.t = p.t + p.ws; nop.tc = p.tc + p.ws
                self.lines.append('  s_nop %d' % (k - 1)); self.hist.append(nop); self.nnop += k
                tt, tc = place()
                req = 0
                for p in reversed(self.hist):
                    n = need(p, ins)
                    if n:
                        have = max(tc - p.tc - p.ws, tt - p.t - p.ws - 1)
                        if n - have > req: req = n - have
                if req <= 0: break
        ins.t = tt; ins.tc = tc
        self.lines.append('  ' + t)
        self.count += 1
        self.hist.append(ins)
        if len(self.hist) > 40: self.hist = self.hist[-30:]
        if ins.kind in ('vmem', 'vmem_lds') and ins.opc not in ('buffer_inv', 'buffer_wbl2'):
            self.vm.append(tag)
        elif ins.kind == 'ds':
            self.lg.append(tag)
        elif ins.kind == 'smem':
            self.lg.append('SMEM')
        elif ins.opc == 's_waitcnt':
            m = re.search(r'vmcnt\((\d+)\)', t)
            if m:
                n = int(m.group(1)); self.vm = self.vm[len(self.vm) - n:] if n and n < len(self.vm) else ([] if n == 0 else self.vm)
            m = re.search(r'lgkmcnt\((\d+)\)', t)
            if m:
                n = int(m.group(1)); self.lg = self.lg[len(self.lg) - n:] if n and n < len(self.lg) else ([] if n == 0 else self.lg)
    def wait_lg(self, tag):
        if tag not in self.lg: return
        assert 'SMEM' not in self.lg
        idx = len(self.lg) - 1 - self.lg[::-1].index(tag)
        n = len(self.lg) - 1 - idx
        self.I('s_waitcnt lgkmcnt(%d)' % min(n, 15))
    def wait_vm(self, tag):
        if tag not in self.vm: return
        idx = len(self.vm) - 1 - self.vm[::-1].index(tag)
        n = len(self.vm) - 1 - idx
        self.I('s_waitcnt vmcnt(%d)' % min(n, 63))
    def flush(self, n=12):
        self.I('s_nop %d' % (n - 1))
    def text(self):
        return '\n'.join(self.lines) + '\n'

def v(a, n=1):
    return 'v%d' % a if n == 1 else 'v[%d:%d]' % (a, a + n - 1)
def a(x, n=1):
    return 'a%d' % x if n == 1 else 'a[%d:%d]' % (x, x + n - 1)
def s(x, n=1):
    return 's%d' % x if n == 1 else 's[%d:%d]' % (x, x + n - 1)
```

```python
KVX  = 0x0000000
QX   = 0x2000000
KVM  = 0x3000000
MEMX = 0x3000000
WKVF = 0x3800000
WBFR = 0x3400000
INB  = 0x4000000
H2   = 0x4080000
FLG  = 0x40a0000
F_KV = FLG + 0x4000
F_D2 = FLG + 0x1000
F_D3 = FLG + 0x1400
F_PB = FLG + 0x2000
SCRATCH = 0x40c0000
DBG  = 0x4100000
BX   = 0x4400000
OB   = 0x4c00000
PB   = 0x5000000
WS_BYTES = 268435456
```

```python
from fw import *
from layout import *
from chain import srd, f2u, S_WS, S_WQ, S_WK, S_WV, S_WO, S_DBG, S_H, S_W, S_SPIN, S_T0, S_T1, S_T2, SPIN_MAX
import math

S_X, S_AUX, S_OUT = 28, 36, 12
S_R, S_NSEG, S_I, S_XS, S_OO, S_XB, S_FL, S_SEG, S_GRP, S_TK = 42, 43, 44, 45, 46, 47, 48, 49, 50, 51
S_T3, S_T4 = 52, 53
S_M = 92
P_X, P_MEM0, P_WQ, P_WK, P_WV, P_WO, P_SEG, P_BX, P_WB, P_WOB, P_GW, P_OUT, P_DBG, P_WS = [64 + 2 * i for i in range(14)]
FAIL = 'L_fail'

LANE, L16, GA, TR, XG, XR, VZ, VT = 0, 1, 2, 3, 4, 5, 6, 7
L_STG = 65536; STG_STRIDE = 24576

def cvt(k, d, x, y): k('v_cvt_pk_bf16_f32 %s, %s, %s' % (v(d), v(x), v(y)))
def R(loc, r, n): return (a if loc[0] == 'a' else v)(loc[1] + r, n)

def poll_flags(k, soff_reg, nlanes, minval, name, stride=4, srdn=S_WS):
    L = k.newlabel('L_poll_' + name)
    k('v_mul_u32_u24 %s, %d, %s' % (v(VZ), stride, v(LANE)))
    k('s_mov_b32 %s, %d' % (s(S_SPIN), SPIN_MAX))
    k('s_mov_b32 exec_lo, 0x%x' % ((1 << nlanes) - 1))
    k('s_mov_b32 exec_hi, 0')
    k.label(L)
    k('buffer_load_dword %s, %s, %s, %s offen sc1' % (v(VT), v(VZ), s(srdn, 4), s(soff_reg)))
    k('s_sub_u32 %s, %s, 1' % (s(S_SPIN), s(S_SPIN)))
    k('s_cbranch_scc1 %s' % FAIL)
    k('s_waitcnt vmcnt(0)')
    k('v_cmp_gt_u32 vcc, %s, %s' % (minval, v(VT)))
    k('s_cbranch_vccz %s_ok' % L)
    k('s_sleep 8')
    k('s_branch %s' % L)
    k.label(L + '_ok')
    k('s_mov_b64 exec, -1')

def set_flag(k, soff_reg, val, flags='sc1'):
    k('v_mov_b32 %s, %s' % (v(VT), val))
    k('v_mov_b32 %s, 0' % v(VZ))
    k('s_mov_b64 exec, 1')
    k('buffer_store_dword %s, %s, %s, %s offen %s' % (v(VT), v(VZ), s(S_WS, 4), s(soff_reg), flags))
    k('s_mov_b64 exec, -1')

def load_blocks(k, blocks, nslot):
    n = len(blocks)
    for i in range(min(nslot, n)):
        blocks[i]['issue']((i % nslot) * 4096, ('wl', i))
    for i in range(n):
        k.wait_vm(('wl', i))
        blocks[i]['read']((i % nslot) * 4096)
        k('s_waitcnt lgkmcnt(0)')
        if i + nslot < n:
            blocks[i + nslot]['issue']((i % nslot) * 4096, ('wl', i + nslot))

def setup_common(k):
    k('v_lshlrev_b32 %s, 4, %s' % (v(L16), v(LANE)))
    k('s_mul_i32 %s, %s, %d' % (s(S_T2), s(S_W), STG_STRIDE))
    k('s_add_u32 %s, %s, %d' % (s(S_T2), s(S_T2), L_STG))

def qkv_addr(k):
    k('v_lshrrev_b32 %s, 2, %s' % (v(VZ), v(LANE)))
    k('v_and_b32 %s, 3, %s' % (v(VT), v(LANE)))
    k('v_lshlrev_b32 %s, 4, %s' % (v(GA), v(VT)))
    k('v_lshl_add_u32 %s, %s, 13, %s' % (v(GA), v(VZ), v(GA)))
    k('s_lshl_b32 %s, %s, 8' % (s(S_T0), s(S_H)))
    k('s_lshl_b32 %s, %s, 6' % (s(S_T1), s(S_W)))
    k('s_add_u32 %s, %s, %s' % (s(S_T0), s(S_T0), s(S_T1)))
    k('v_add_u32 %s, %s, %s' % (v(GA), s(S_T0), v(GA)))
    k('v_lshrrev_b32 %s, 4, %s' % (v(TR), v(LANE)))
    k('v_lshlrev_b32 %s, 3, %s' % (v(TR), v(TR)))
    k('v_and_b32 %s, 3, %s' % (v(VZ), v(VZ)))
    k('v_add_u32 %s, %s, %s' % (v(TR), v(TR), v(VZ)))
    k('v_lshlrev_b32 %s, 6, %s' % (v(TR), v(TR)))
    k('v_lshl_add_u32 %s, %s, 3, %s' % (v(TR), v(VT), v(TR)))
    k('v_add_u32 %s, %s, %s' % (v(TR), s(S_T2), v(TR)))

def qkv_block(k, srdn, b, dest):
    def issue(off, tag):
        for i in range(4):
            k('s_mov_b32 %s, %d' % (s(S_T0), (64 * b + 16 * i) * 8192))
            k('s_add_u32 m0, %s, %d' % (s(S_T2), off + i * 1024))
            k('buffer_load_dwordx4 %s, %s, %s offen lds' % (v(GA), s(srdn, 4), s(S_T0)), tag=tag)
    def read(off):
        for k2 in range(2):
            for t in range(2):
                for hh in range(2):
                    k('ds_read_b64_tr_b16 %s, %s offset:%d' % (R(dest(t, 2 * b + k2), 2 * hh, 2), v(TR), off + (32 * k2 + 4 * hh) * 64 + 32 * t))
    return dict(issue=issue, read=read)

def x_setup(k):
    k('v_and_b32 %s, 15, %s' % (v(XG), v(LANE)))
    k('v_lshlrev_b32 %s, 10, %s' % (v(XG), v(XG)))
    k('v_lshrrev_b32 %s, 4, %s' % (v(VZ), v(LANE)))
    k('v_lshl_add_u32 %s, %s, 4, %s' % (v(XG), v(VZ), v(XG)))
    k('s_lshl_b32 %s, %s, 8' % (s(S_T0), s(S_W)))
    k('v_add_u32 %s, %s, %s' % (v(XG), s(S_T0), v(XG)))

def x_dma(k, tag):
    k('s_lshl_b32 %s, %s, 12' % (s(S_T0), s(S_W)))
    k('s_add_u32 %s, %s, %s' % (s(S_T0), s(S_T0), s(S_XB)))
    for T in range(2):
        for j in range(4):
            k('s_add_u32 m0, %s, %d' % (s(S_T0), T * 16384 + j * 1024))
            k('s_add_u32 %s, %s, %d' % (s(S_T1), s(S_XS), T * 16384 + j * 64))
            k('buffer_load_dwordx4 %s, %s, %s offen lds' % (v(XG), s(S_X, 4), s(S_T1)), tag=tag)
    k('s_add_u32 %s, %s, %d' % (s(S_XS), s(S_XS), 7 * 32768))
    k('s_min_u32 %s, %s, %d' % (s(S_XS), s(S_XS), 63 * 32768))
    k('s_xor_b32 %s, %s, 0x8000' % (s(S_XB), s(S_XB)))

def seg_loop(k, name, mf, nacc, ACC, XF, epilogue, nstores, midflag):
    k('s_lshl_b32 %s, %s, 15' % (s(S_XS), s(S_R)))
    k('s_mov_b32 %s, 0' % s(S_XB))
    k('s_mov_b32 %s, 0' % s(S_I))
    k('s_mov_b32 %s, %s' % (s(S_SEG), s(S_R)))
    k('v_mov_b32 %s, %s' % (v(XR), v(L16)))
    k('s_barrier')
    x_dma(k, 'x')
    k('s_waitcnt vmcnt(0)')
    L = 'L_%s_loop' % name
    k.label(L)
    k.vm = []; k.lg = []
    k('s_waitcnt vmcnt(%d)' % nstores)
    k('s_barrier')
    x_dma(k, 'x')
    def rd(ks):
        for T in range(2):
            k('ds_read_b128 %s, %s offset:%d' % (v(XF + 8 * (ks % 3) + 4 * T, 4), v(XR), T * 16384 + ks * 1024), tag=('xf', ks))
    rd(0); rd(1)
    for ks in range(16):
        k.wait_lg(('xf', ks))
        ops = mf(ks, XF + 8 * (ks % 3))
        for i, o_ in enumerate(ops):
            k(o_)
            if i == 0 and ks + 2 < 16: rd(ks + 2)
        if ks == 8 and midflag: midflag()
    epilogue()
    k('v_xor_b32 %s, 0x8000, %s' % (v(XR), v(XR)))
    k('s_add_u32 %s, %s, 1' % (s(S_I), s(S_I)))
    k('s_add_u32 %s, %s, 7' % (s(S_SEG), s(S_SEG)))
    k('s_cmp_lt_u32 %s, %s' % (s(S_I), s(S_NSEG)))
    k('s_cbranch_scc1 %s' % L)
    k('s_waitcnt vmcnt(0)')

def mfma32(d, A, B, first):
    return 'v_mfma_f32_16x16x32_bf16 %s, %s, %s, %s' % (v(d, 4), A, B, '0' if first else v(d, 4))

def pass1(k):
    k.c('===== pass 1: K,V =====')
    srd(k, S_WK, P_WK, 4 << 20); srd(k, S_WV, P_WV, 4 << 20); srd(k, S_X, P_X, 2 << 20)
    qkv_addr(k); x_setup(k)
    dK = lambda t, ks: ('a', (t * 16 + ks) * 4)
    dV = lambda t, ks: ('a', 128 + (t * 16 + ks) * 4)
    bl = []
    for b in range(8):
        bl.append(qkv_block(k, S_WK, b, dK)); bl.append(qkv_block(k, S_WV, b, dV))
    load_blocks(k, bl, 6)
    ACC, XF, PKR = 16, 48, 72
    def mf(ks, xf):
        o = []
        for T in range(2):
            for t in range(2):
                o.append(mfma32(ACC + 4 * (2 * T + t), R(dK(t, ks), 0, 4), v(xf + 4 * T, 4), ks == 0))
                o.append(mfma32(ACC + 16 + 4 * (2 * t + T), v(xf + 4 * T, 4), R(dV(t, ks), 0, 4), ks == 0))
        return o
    k('s_lshl_b32 %s, %s, 2' % (s(S_FL), s(S_H)))
    k('s_add_u32 %s, %s, %s' % (s(S_FL), s(S_FL), s(S_W)))
    k('s_lshl_b32 %s, %s, 3' % (s(S_FL), s(S_FL)))
    k('s_add_u32 %s, %s, %s' % (s(S_FL), s(S_FL), s(S_R)))
    k('s_lshl_b32 %s, %s, 2' % (s(S_FL), s(S_FL)))
    k('s_add_u32 %s, %s, 0x%x' % (s(S_FL), s(S_FL), F_KV))
    def epi():
        k('s_lshl_b32 %s, %s, 5' % (s(S_OO), s(S_SEG)))
        k('s_add_u32 %s, %s, %s' % (s(S_OO), s(S_OO), s(S_H)))
        k('s_lshl_b32 %s, %s, 2' % (s(S_OO), s(S_OO)))
        k('s_add_u32 %s, %s, %s' % (s(S_OO), s(S_OO), s(S_W)))
        k('s_lshl_b32 %s, %s, 12' % (s(S_OO), s(S_OO)))
        for q in range(4):
            for i in range(4):
                cvt(k, PKR + 4 * q + i, ACC + 8 * q + 2 * i, ACC + 8 * q + 2 * i + 1)
            k('buffer_store_dwordx4 %s, %s, %s, %s offen offset:%d sc1' % (v(PKR + 4 * q, 4), v(L16), s(S_WS, 4), s(S_OO), 1024 * q))
    def mid():
        k('s_waitcnt vmcnt(8)')
        set_flag(k, S_FL, s(S_I))
    seg_loop(k, 'p1', mf, 8, ACC, XF, epi, 4, mid)
    set_flag(k, S_FL, s(S_I))

def pass2(k):
    k.c('===== pass 2: Q, B-branch qkv, gate =====')
    srd(k, S_WQ, P_WQ, 4 << 20)
    dQ = lambda t, ks: ('a', (t * 16 + ks) * 4)
    dB = lambda ks: ('a', 128 + ks * 4)
    bl = [qkv_block(k, S_WQ, b, dQ) for b in range(8)]
    load_blocks(k, bl, 6)
    LG = k.newlabel('L_p2gate'); LJ = k.newlabel('L_p2j')
    k('s_cmp_eq_u32 %s, 3' % s(S_W))
    k('s_cbranch_scc1 %s' % LG)
    srd(k, S_AUX, P_WB, 512 * 3072)
    k('v_lshrrev_b32 %s, 1, %s' % (v(VZ), v(LANE)))
    k('v_mul_u32_u24 %s, 3072, %s' % (v(GA), v(VZ)))
    k('v_and_b32 %s, 1, %s' % (v(VT), v(LANE)))
    k('v_lshl_add_u32 %s, %s, 4, %s' % (v(GA), v(VT), v(GA)))
    k('s_lshl_b32 %s, %s, 10' % (s(S_T0), s(S_W)))
    k('s_lshl_b32 %s, %s, 5' % (s(S_T1), s(S_H)))
    k('s_add_u32 %s, %s, %s' % (s(S_T0), s(S_T0), s(S_T1)))
    k('v_add_u32 %s, %s, %s' % (v(GA), s(S_T0), v(GA)))
    k('v_lshrrev_b32 %s, 4, %s' % (v(TR), v(LANE)))
    k('v_lshlrev_b32 %s, 3, %s' % (v(TR), v(TR)))
    k('v_bfe_u32 %s, %s, 2, 2' % (v(VZ), v(LANE)))
    k('v_add_u32 %s, %s, %s' % (v(TR), v(TR), v(VZ)))
    k('v_lshlrev_b32 %s, 5, %s' % (v(TR), v(TR)))
    k('v_and_b32 %s, 3, %s' % (v(VT), v(LANE)))
    k('v_lshl_add_u32 %s, %s, 3, %s' % (v(TR), v(VT), v(TR)))
    k('v_add_u32 %s, %s, %s' % (v(TR), s(S_T2), v(TR)))
    for ks in range(16):
        k('s_mov_b32 %s, %d' % (s(S_T0), 32 * ks * 3072))
        k('s_add_u32 m0, %s, %d' % (s(S_T2), ks * 1024))
        k('buffer_load_dwordx4 %s, %s, %s offen lds' % (v(GA), s(S_AUX, 4), s(S_T0)))
    k('s_waitcnt vmcnt(0)')
    for ks in range(16):
        for hh in range(2):
            k('ds_read_b64_tr_b16 %s, %s offset:%d' % (R(dB(ks), 2 * hh, 2), v(TR), ks * 1024 + 4 * hh * 32))
        if ks % 4 == 3: k('s_waitcnt lgkmcnt(0)')
    k('s_branch %s' % LJ)
    k.label(LG)
    srd(k, S_AUX, P_GW, 1024)
    k('v_lshrrev_b32 %s, 4, %s' % (v(GA), v(LANE)))
    k('v_lshlrev_b32 %s, 4, %s' % (v(GA), v(GA)))
    for ks in range(16):
        k('buffer_load_dwordx4 %s, %s, %s, 0 offen offset:%d' % (R(dB(ks), 0, 4), v(GA), s(S_AUX, 4), ks * 64))
    k('s_waitcnt vmcnt(0)')
    k.label(LJ)
    ACC, XF, PKR = 16, 48, 72
    def mf(ks, xf):
        o = []
        for T in range(2):
            for t in range(2):
                o.append(mfma32(ACC + 4 * (2 * T + t), R(dQ(t, ks), 0, 4), v(xf + 4 * T, 4), ks == 0))
            o.append(mfma32(ACC + 16 + 4 * T, R(dB(ks), 0, 4), v(xf + 4 * T, 4), ks == 0))
            o.append(mfma32(ACC + 24 + 4 * T, v(xf + 4 * T, 4), R(dB(ks), 0, 4), ks == 0))
        return o
    def epi():
        k('s_lshl_b32 %s, %s, 5' % (s(S_OO), s(S_SEG)))
        k('s_add_u32 %s, %s, %s' % (s(S_OO), s(S_OO), s(S_H)))
        k('s_lshl_b32 %s, %s, 2' % (s(S_OO), s(S_OO)))
        k('s_add_u32 %s, %s, %s' % (s(S_OO), s(S_OO), s(S_W)))
        k('s_lshl_b32 %s, %s, 10' % (s(S_T3), s(S_OO)))
        k('s_add_u32 %s, %s, 0x%x' % (s(S_T3), s(S_T3), BX))
        k('s_lshl_b32 %s, %s, 11' % (s(S_OO), s(S_OO)))
        k('s_add_u32 %s, %s, 0x%x' % (s(S_OO), s(S_OO), QX))
        for q in range(2):
            for i in range(4):
                cvt(k, PKR + 4 * q + i, ACC + 8 * q + 2 * i, ACC + 8 * q + 2 * i + 1)
            k('buffer_store_dwordx4 %s, %s, %s, %s offen offset:%d sc1' % (v(PKR + 4 * q, 4), v(L16), s(S_WS, 4), s(S_OO), 1024 * q))
        P3 = PKR + 8
        L2 = k.newlabel('L_e2'); L3 = k.newlabel('L_e3'); LS = k.newlabel('L_es')
        k('s_cmp_eq_u32 %s, 2' % s(S_W))
        k('s_cbranch_scc1 %s' % L2)
        k('s_cmp_eq_u32 %s, 3' % s(S_W))
        k('s_cbranch_scc1 %s' % L3)
        for i in range(4): cvt(k, P3 + i, ACC + 16 + 2 * i, ACC + 16 + 2 * i + 1)
        k('s_branch %s' % LS)
        k.label(L2)
        for i in range(4): cvt(k, P3 + i, ACC + 24 + 2 * i, ACC + 24 + 2 * i + 1)
        k('s_branch %s' % LS)
        k.label(L3)
        cvt(k, P3, ACC + 16, ACC + 20)
        k('v_lshlrev_b32 %s, 16, %s' % (v(P3 + 2), v(P3)))
        k('v_and_b32 %s, 0xffff0000, %s' % (v(P3 + 3), v(P3)))
        for i in (2, 3):
            k('v_mul_f32 %s, 0x%x, %s' % (v(P3 + i), f2u(-math.log2(math.e)), v(P3 + i)))
        for i in (2, 3): k('v_exp_f32 %s, %s' % (v(P3 + i), v(P3 + i)))
        for i in (2, 3): k('v_add_f32 %s, 1.0, %s' % (v(P3 + i), v(P3 + i)))
        for i in (2, 3): k('v_rcp_f32 %s, %s' % (v(P3 + i), v(P3 + i)))
        cvt(k, P3 + 1, P3 + 2, P3 + 3)
        k('v_lshlrev_b32 %s, 16, %s' % (v(P3), v(P3 + 1)))
        k('v_and_b32 %s, 0xffff0000, %s' % (v(P3 + 1), v(P3 + 1)))
        k('v_sub_f32 %s, 1.0, %s' % (v(P3 + 2), v(P3)))
        k('v_sub_f32 %s, 1.0, %s' % (v(P3 + 3), v(P3 + 1)))
        cvt(k, P3 + 3, P3 + 2, P3 + 3)
        k('v_lshlrev_b32 %s, 16, %s' % (v(P3 + 2), v(P3 + 3)))
        k('v_and_b32 %s, 0xffff0000, %s' % (v(P3 + 3), v(P3 + 3)))
        k.label(LS)
        k('buffer_store_dwordx4 %s, %s, %s, %s offen sc1' % (v(P3, 4), v(L16), s(S_WS, 4), s(S_T3)))
        k('s_nop 1')
    seg_loop(k, 'p2', mf, 8, ACC, XF, epi, 3, None)
    k('s_barrier')
    k('s_lshl_b32 %s, %s, 3' % (s(S_FL), s(S_H)))
    k('s_add_u32 %s, %s, %s' % (s(S_FL), s(S_FL), s(S_R)))
    k('s_lshl_b32 %s, %s, 2' % (s(S_FL), s(S_FL)))
    k('s_add_u32 %s, %s, 0x%x' % (s(S_FL), s(S_FL), F_D2))
    set_flag(k, S_FL, '1')

def diag_masks(k):
    k('v_lshrrev_b32 %s, 4, %s' % (v(VZ), v(LANE)))
    k('v_lshlrev_b32 %s, 2, %s' % (v(VZ), v(VZ)))
    k('v_and_b32 %s, 15, %s' % (v(VT), v(LANE)))
    k('v_sub_u32 %s, %s, %s' % (v(VT), v(VT), v(VZ)))
    for j in range(4):
        k('v_cmp_le_i32 %s, %d, %s' % (s(S_M + 2 * j, 2), j, v(VT)))

def xreduce(k, op, X, T):
    for sw in ('v_permlane16_swap_b32', 'v_permlane32_swap_b32'):
        k('v_mov_b32 %s, %s' % (v(T), v(X)))
        k('%s %s, %s' % (sw, v(X), v(T)))
        k('%s %s, %s, %s' % (op, v(X), v(X), v(T)))

def round_bf16(k, regs, T):
    for i in range(0, len(regs), 2):
        x, y = regs[i], regs[i + 1]
        cvt(k, y, x, y)
        k('v_lshlrev_b32 %s, 16, %s' % (v(x), v(y)))
        k('v_and_b32 %s, 0xffff0000, %s' % (v(y), v(y)))

def battn(k, waitflags=True):
    k.c('===== B-branch sliding window attention =====')
    if waitflags:
        k('s_lshl_b32 %s, %s, 5' % (s(S_T3), s(S_H)))
        k('s_add_u32 %s, %s, 0x%x' % (s(S_T3), s(S_T3), F_D2))
        poll_flags(k, S_T3, 7, '1', 'd2')
    diag_masks(k)
    QB, KB, VB, SC, NEG, MX, TT, LSUM, OO = 8, 12, 48, 84, 228, 230, 232, 234, 236
    def sc(j, kt, T): return SC + 4 * ((j * 2 + kt) * 2 + T)
    k('v_mov_b32 %s, 0xff800000' % v(NEG))
    k('s_mov_b32 %s, %s' % (s(S_I), s(S_W)))
    LOOP = 'L_ba_loop'; END = 'L_ba_end'
    k.label(LOOP)
    k('s_cmp_ge_u32 %s, %s' % (s(S_I), s(S_NSEG)))
    k('s_cbranch_scc1 %s' % END)
    k('s_mul_i32 %s, %s, 7' % (s(S_SEG), s(S_I)))
    k('s_add_u32 %s, %s, %s' % (s(S_SEG), s(S_SEG), s(S_R)))
    k.vm = []
    k('s_lshl_b32 %s, %s, 12' % (s(S_T3), s(S_H)))
    k('s_add_u32 %s, %s, 0x%x' % (s(S_T3), s(S_T3), BX))
    k('s_lshl_b32 %s, %s, 17' % (s(S_T0), s(S_SEG)))
    k('s_add_u32 %s, %s, %s' % (s(S_T0), s(S_T0), s(S_T3)))
    k('buffer_load_dwordx4 %s, %s, %s, %s offen sc1' % (v(QB, 4), v(L16), s(S_WS, 4), s(S_T0)), tag='q')
    for j in range(9):
        k('s_sub_i32 %s, %s, %d' % (s(S_T0), s(S_SEG), 8 - j))
        k('s_max_i32 %s, %s, 0' % (s(S_T0), s(S_T0)))
        k('s_lshl_b32 %s, %s, 17' % (s(S_T0), s(S_T0)))
        k('s_add_u32 %s, %s, %s' % (s(S_T0), s(S_T0), s(S_T3)))
        k('buffer_load_dwordx4 %s, %s, %s, %s offen offset:1024 sc1' % (v(KB + 4 * j, 4), v(L16), s(S_WS, 4), s(S_T0)), tag=('k', j))
        k('buffer_load_dwordx4 %s, %s, %s, %s offen offset:2048 sc1' % (v(VB + 4 * j, 4), v(L16), s(S_WS, 4), s(S_T0)), tag=('v', j))
    dead = {(0, 0, 1), (8, 1, 0)}
    for j in range(9):
        k.wait_vm(('k', j))
        for kt in range(2):
            for T in range(2):
                if (j, kt, T) in dead: continue
                k('v_mfma_f32_16x16x16_bf16 %s, %s, %s, 0' % (v(sc(j, kt, T), 4), v(KB + 4 * j + 2 * kt, 2), v(QB + 2 * T, 2)))
    k.flush(9)
    for T in range(2):
        for jj in range(4):
            k('v_cndmask_b32 %s, %s, %s, %s' % (v(sc(8, T, T) + jj), v(NEG), v(sc(8, T, T) + jj), s(S_M + 2 * jj, 2)))
            k('v_cndmask_b32 %s, %s, %s, %s' % (v(sc(0, T, T) + jj), v(sc(0, T, T) + jj), v(NEG), s(S_M + 2 * jj, 2)))
    LV = k.newlabel('L_ba_valid')
    for j in range(8):
        k('s_cmp_ge_u32 %s, %d' % (s(S_SEG), 8 - j))
        k('s_cbranch_scc1 %s' % LV)
        for r in range(16):
            k('v_mov_b32 %s, %s' % (v(sc(j, 0, 0) + r), v(NEG)))
    k.label(LV)
    c = 0.25 * math.log2(math.e)
    k('s_mov_b32 %s, 0x%x' % (s(S_T4), f2u(c)))
    for T in range(2):
        regs = [sc(j, kt, T) + r for j in range(9) for kt in range(2) if (j, kt, T) not in dead for r in range(4)]
        round_bf16(k, regs, TT)
        k('v_max3_f32 %s, %s, %s, %s' % (v(MX), v(regs[0]), v(regs[1]), v(regs[2])))
        k('v_max3_f32 %s, %s, %s, %s' % (v(MX + 1), v(regs[3]), v(regs[4]), v(regs[5])))
        rest = regs[6:]
        for i in range(0, len(rest), 2):
            m = MX + ((i >> 1) & 1)
            k('v_max3_f32 %s, %s, %s, %s' % (v(m), v(m), v(rest[i]), v(rest[i + 1])))
        k('v_max_f32 %s, %s, %s' % (v(MX), v(MX), v(MX + 1)))
        xreduce(k, 'v_max_f32', MX, TT)
        k('v_mul_f32 %s, %s, %s' % (v(MX), s(S_T4), v(MX)))
        for r in regs: k('v_fma_f32 %s, %s, %s, -%s' % (v(r), v(r), s(S_T4), v(MX)))
        for r in regs: k('v_exp_f32 %s, %s' % (v(r), v(r)))
        k('v_add_f32 %s, %s, %s' % (v(LSUM), v(regs[0]), v(regs[1])))
        k('v_add_f32 %s, %s, %s' % (v(LSUM + 1), v(regs[2]), v(regs[3])))
        for i, r in enumerate(regs[4:]):
            m = LSUM + (i & 1)
            k('v_add_f32 %s, %s, %s' % (v(m), v(m), v(r)))
        k('v_add_f32 %s, %s, %s' % (v(LSUM), v(LSUM), v(LSUM + 1)))
        xreduce(k, 'v_add_f32', LSUM, TT)
        k('v_rcp_f32 %s, %s' % (v(LSUM), v(LSUM)))
        for r in regs: k('v_mul_f32 %s, %s, %s' % (v(r), v(r), v(LSUM)))
        for j in range(9):
            d = sc(j, 0, T)
            for kt in range(2):
                if (j, kt, T) in dead:
                    k('v_mov_b32 %s, 0' % v(d + 2 * kt)); k('v_mov_b32 %s, 0' % v(d + 2 * kt + 1))
                else:
                    b = sc(j, kt, T)
                    cvt(k, d + 2 * kt, b, b + 1); cvt(k, d + 2 * kt + 1, b + 2, b + 3)
        if T == 0: k('s_waitcnt vmcnt(0)')
        for j in range(9):
            k(mfma32(OO + 4 * T, v(VB + 4 * j, 4), v(sc(j, 0, T), 4), j == 0))
    for i in range(4): cvt(k, QB + i, OO + 2 * i, OO + 2 * i + 1)
    k('s_lshl_b32 %s, %s, 5' % (s(S_T0), s(S_SEG)))
    k('s_add_u32 %s, %s, %s' % (s(S_T0), s(S_T0), s(S_H)))
    k('s_lshl_b32 %s, %s, 10' % (s(S_T0), s(S_T0)))
    k('s_add_u32 %s, %s, 0x%x' % (s(S_T0), s(S_T0), OB))
    k('buffer_store_dwordx4 %s, %s, %s, %s offen sc1' % (v(QB, 4), v(L16), s(S_WS, 4), s(S_T0)))
    k('s_add_u32 %s, %s, 4' % (s(S_I), s(S_I)))
    k('s_waitcnt vmcnt(0)')
    k('s_branch %s' % LOOP)
    k.label(END)
    k('s_barrier')
    k('s_lshl_b32 %s, %s, 3' % (s(S_FL), s(S_H)))
    k('s_add_u32 %s, %s, %s' % (s(S_FL), s(S_FL), s(S_R)))
    k('s_lshl_b32 %s, %s, 2' % (s(S_FL), s(S_FL)))
    k('s_add_u32 %s, %s, 0x%x' % (s(S_FL), s(S_FL), F_D3))
    set_flag(k, S_FL, '1')

def phaseB(k, waitflags=True):
    k.c('===== phase B =====')
    srd(k, S_WO, P_WO, 4 << 20); srd(k, S_AUX, P_WOB, 512 * 1024); srd(k, S_OUT, P_OUT, 2 << 20)
    k('s_barrier')
    GA2, ST, OA = 8, 9, 10
    k('v_lshrrev_b32 %s, 2, %s' % (v(VZ), v(LANE)))
    k('v_and_b32 %s, 3, %s' % (v(VT), v(LANE)))
    k('v_lshlrev_b32 %s, 4, %s' % (v(GA), v(VT)))
    k('v_lshl_add_u32 %s, %s, 10, %s' % (v(GA), v(VZ), v(GA)))
    k('s_lshl_b32 %s, %s, 8' % (s(S_T1), s(S_W)))
    k('s_lshl_b32 %s, %s, 14' % (s(S_T0), s(S_H)))
    k('s_add_u32 %s, %s, %s' % (s(S_T0), s(S_T0), s(S_T1)))
    k('v_add_u32 %s, %s, %s' % (v(GA2), s(S_T0), v(GA)))
    k('s_lshl_b32 %s, %s, 17' % (s(S_T0), s(S_H)))
    k('s_add_u32 %s, %s, %s' % (s(S_T0), s(S_T0), s(S_T1)))
    k('v_add_u32 %s, %s, %s' % (v(GA), s(S_T0), v(GA)))
    k('v_lshlrev_b32 %s, 6, %s' % (v(TR), v(VZ)))
    k('v_lshl_add_u32 %s, %s, 3, %s' % (v(TR), v(VT), v(TR)))
    k('v_add_u32 %s, %s, %s' % (v(TR), s(S_T2), v(TR)))
    wof = lambda dt, kk: (dt * 4 + kk) * 4
    wbf = lambda dt: 128 + 2 * dt
    bl = []
    for dp in range(4):
        for be in range(2):
            def issue(off, tag, dp=dp, be=be):
                for i in range(4):
                    k('s_mov_b32 %s, %d' % (s(S_T0), (64 * be + 16 * i) * 1024 + dp * 64))
                    k('s_add_u32 m0, %s, %d' % (s(S_T2), off + i * 1024))
                    k('buffer_load_dwordx4 %s, %s, %s offen lds' % (v(GA), s(S_WO, 4), s(S_T0)), tag=tag)
            def read(off, dp=dp, be=be):
                for k2 in range(2):
                    for t in range(2):
                        for hh in range(2):
                            k('ds_read_b64_tr_b16 %s, %s offset:%d' % (a(wof(2 * dp + t, 2 * be + k2) + 2 * hh, 2), v(TR), off + (32 * k2 + 16 * hh) * 64 + 32 * t))
            bl.append(dict(issue=issue, read=read))
    def issueB(off, tag):
        for dp in range(4):
            k('s_mov_b32 %s, %d' % (s(S_T0), dp * 64))
            k('s_add_u32 m0, %s, %d' % (s(S_T2), off + dp * 1024))
            k('buffer_load_dwordx4 %s, %s, %s offen lds' % (v(GA2), s(S_AUX, 4), s(S_T0)), tag=tag)
    def readB(off):
        for dp in range(4):
            for t in range(2):
                k('ds_read_b64_tr_b16 %s, %s offset:%d' % (a(wbf(2 * dp + t), 2), v(TR), off + dp * 1024 + 32 * t))
    bl.append(dict(issue=issueB, read=readB))
    load_blocks(k, bl, 6)
    diag_masks(k)
    k('v_lshrrev_b32 %s, 5, %s' % (v(VZ), v(LANE)))
    k('v_and_b32 %s, 31, %s' % (v(VT), v(LANE)))
    k('v_lshlrev_b32 %s, 4, %s' % (v(ST), v(VT)))
    k('v_lshl_add_u32 %s, %s, 14, %s' % (v(ST), v(VZ), v(ST)))
    k('v_and_b32 %s, 15, %s' % (v(OA), v(LANE)))
    k('v_lshlrev_b32 %s, 10, %s' % (v(OA), v(OA)))
    k('v_lshl_add_u32 %s, %s, 2, %s' % (v(OA), v(VZ), v(OA)))
    k('v_bfe_u32 %s, %s, 4, 1' % (v(VT), v(LANE)))
    k('v_lshl_add_u32 %s, %s, 3, %s' % (v(OA), v(VT), v(OA)))
    k('s_lshr_b32 %s, %s, 1' % (s(S_T0), s(S_W)))
    k('s_lshl_b32 %s, %s, 14' % (s(S_T0), s(S_T0)))
    k('s_and_b32 %s, %s, 1' % (s(S_T1), s(S_W)))
    k('s_lshl_b32 %s, %s, 4' % (s(S_T1), s(S_T1)))
    k('s_add_u32 %s, %s, %s' % (s(S_T0), s(S_T0), s(S_T1)))
    k('s_lshl_b32 %s, %s, 5' % (s(S_T1), s(S_H)))
    k('s_add_u32 %s, %s, %s' % (s(S_T0), s(S_T0), s(S_T1)))
    k('v_add_u32 %s, %s, %s' % (v(OA), s(S_T0), v(OA)))
    OXW = 11
    k('s_lshl_b32 %s, %s, 11' % (s(S_T0), s(S_W)))
    k('v_add_u32 %s, %s, %s' % (v(OXW), s(S_T0), v(L16)))
    if waitflags:
        k('s_lshl_b32 %s, %s, 3' % (s(S_T3), s(S_H)))
        k('s_add_u32 %s, %s, %s' % (s(S_T3), s(S_T3), s(S_R)))
        k('s_lshl_b32 %s, %s, 2' % (s(S_T3), s(S_T3)))
        k('s_add_u32 %s, %s, 0x%x' % (s(S_T3), s(S_T3), F_D3))
        poll_flags(k, S_T3, 1, '1', 'd3')
    ACC, QF, KF, VF, OBF, GT, KM, VMF, SX, PX, PM, O = 16, 80, 112, 144, 152, 156, 160, 176, 180, 200, 208, 212
    NEG, MX, TT, LS = 228, 230, 232, 234
    acc = lambda dt, T: ACC + 4 * (2 * dt + T)
    S_PBW, S_PBR, S_PF, S_PFS = S_XS, S_XB, S_FL, S_TK
    k('s_lshl_b32 %s, %s, 22' % (s(S_T0), s(S_GRP)))
    k('s_add_u32 %s, %s, 0x%x' % (s(S_T0), s(S_T0), PB))
    k('s_lshl_b32 %s, %s, 19' % (s(S_PBW), s(S_W)))
    k('s_add_u32 %s, %s, %s' % (s(S_PBW), s(S_PBW), s(S_T0)))
    k('s_lshl_b32 %s, %s, 9' % (s(S_T1), s(S_H)))
    k('s_add_u32 %s, %s, %s' % (s(S_PBW), s(S_PBW), s(S_T1)))
    k('s_lshl_b32 %s, %s, 16' % (s(S_PBR), s(S_H)))
    k('s_add_u32 %s, %s, %s' % (s(S_PBR), s(S_PBR), s(S_T0)))
    k('s_lshl_b32 %s, %s, 14' % (s(S_T1), s(S_W)))
    k('s_add_u32 %s, %s, %s' % (s(S_PBR), s(S_PBR), s(S_T1)))
    k('s_lshl_b32 %s, %s, 7' % (s(S_PF), s(S_GRP)))
    k('s_add_u32 %s, %s, 0x%x' % (s(S_PF), s(S_PF), F_PB))
    k('s_lshl_b32 %s, %s, 2' % (s(S_T1), s(S_H)))
    k('s_add_u32 %s, %s, %s' % (s(S_PFS), s(S_PF), s(S_T1)))
    k('v_mov_b32 %s, 0xff800000' % v(NEG))
    k('s_mov_b32 %s, 0' % s(S_I))
    k('s_mov_b32 %s, %s' % (s(S_SEG), s(S_R)))
    LOOP = 'L_pb_loop'
    k.label(LOOP)
    k.vm = []; k.lg = []
    k('s_lshl_b32 %s, %s, 5' % (s(S_OO), s(S_SEG)))
    k('s_add_u32 %s, %s, %s' % (s(S_OO), s(S_OO), s(S_H)))
    ld = lambda d, so, off, tag: k('buffer_load_dwordx4 %s, %s, %s, %s offen offset:%d sc1' % (v(d, 4), v(L16), s(S_WS, 4), s(so), off), tag=tag)
    k('s_lshl_b32 %s, %s, 10' % (s(S_T0), s(S_OO)))
    k('s_add_u32 %s, %s, 0x%x' % (s(S_T0), s(S_T0), OB))
    ld(OBF, S_T0, 0, 'ob')
    k('s_lshl_b32 %s, %s, 12' % (s(S_T0), s(S_OO)))
    k('s_add_u32 %s, %s, 0x%x' % (s(S_T0), s(S_T0), BX))
    ld(GT, S_T0, 3072, 'gt')
    k('s_lshl_b32 %s, %s, 13' % (s(S_T0), s(S_OO)))
    k('s_add_u32 %s, %s, 0x%x' % (s(S_T0), s(S_T0), QX))
    k('s_lshl_b32 %s, %s, 14' % (s(S_T1), s(S_OO)))
    for w_ in range(4):
        for T in range(2):
            ld(QF + 8 * w_ + 4 * T, S_T0, (w_ & 1) * 2048 + T * 1024, ('q', w_))
            ld(KF + 8 * w_ + 4 * T, S_T1, T * 1024, ('q', w_))
        if w_ == 1: k('s_add_u32 %s, %s, 4096' % (s(S_T0), s(S_T0)))
        k('s_add_u32 %s, %s, 4096' % (s(S_T1), s(S_T1)))
    k('s_lshl_b32 %s, %s, 2' % (s(S_T1), s(S_OO)))
    k('s_add_u32 %s, %s, %s' % (s(S_T1), s(S_T1), s(S_W)))
    k('s_lshl_b32 %s, %s, 12' % (s(S_T1), s(S_T1)))
    ld(VF, S_T1, 2048, 'v'); ld(VF + 4, S_T1, 3072, 'v')
    k.wait_vm('gt')
    for dt in range(8):
        for T in range(2):
            k('v_mfma_f32_16x16x16_bf16 %s, %s, %s, 0' % (v(acc(dt, T), 4), a(wbf(dt), 2), v(OBF + 2 * T, 2)))
    tiles = [(0, 0), (0, 1), (1, 1)]
    sx = lambda kt, T: SX + 4 * tiles.index((kt, T))
    sm = lambda T: SX + 12 + 4 * T
    for w_ in range(4):
        k.wait_vm(('q', w_))
        for kt, T in tiles:
            k(mfma32(sx(kt, T), v(KF + 8 * w_ + 4 * kt, 4), v(QF + 8 * w_ + 4 * T, 4), w_ == 0))
    for dt in range(8):
        for T in range(2):
            for j in range(4):
                k('v_mul_f32 %s, %s, %s' % (v(acc(dt, T) + j), v(acc(dt, T) + j), v(GT + 2 + T)))
    scale = 128 ** -0.5
    k('s_mov_b32 %s, 0x%x' % (s(S_T4), f2u(scale)))
    def rnd2(regs):
        round_bf16(k, regs, TT)
        for r in regs: k('v_mul_f32 %s, %s, %s' % (v(r), s(S_T4), v(r)))
        round_bf16(k, regs, TT)
    rnd2([SX + i for i in range(12)])
    for T in range(2):
        for jj in range(4):
            k('v_cndmask_b32 %s, %s, %s, %s' % (v(sx(T, T) + jj), v(NEG), v(sx(T, T) + jj), s(S_M + 2 * jj, 2)))
    k('s_lshl_b32 %s, %s, 13' % (s(S_T0), s(S_OO)))
    k('s_add_u32 %s, %s, 0x%x' % (s(S_T0), s(S_T0), KVM))
    k('s_add_u32 %s, %s, 4096' % (s(S_T1), s(S_T0)))
    k('s_lshl_b32 %s, %s, 11' % (s(S_T3), s(S_W)))
    k('s_add_u32 %s, %s, %s' % (s(S_T3), s(S_T3), s(S_T0)))
    k('s_mov_b32 %s, %d' % (s(S_SPIN), SPIN_MAX))
    PL = 'L_pb_poll'
    k.label(PL)
    ld(VMF, S_T3, 1024, None)
    k('s_sub_u32 %s, %s, 1' % (s(S_SPIN), s(S_SPIN)))
    k('s_cbranch_scc1 %s' % FAIL)
    k('s_waitcnt vmcnt(0)')
    k('v_max3_u32 %s, %s, %s, %s' % (v(TT), v(VMF), v(VMF + 1), v(VMF + 2)))
    k('v_max_u32 %s, %s, %s' % (v(TT), v(TT), v(VMF + 3)))
    k('v_cmp_eq_u32 vcc, -1, %s' % v(TT))
    k('s_cbranch_vccz %s_b' % PL)
    k('s_sleep 4')
    k('s_branch %s' % PL)
    k.label(PL + '_b')
    for w_ in range(4): ld(KM + 4 * w_, S_T0 if w_ < 2 else S_T1, (w_ & 1) * 2048, None)
    k('s_sub_u32 %s, %s, 1' % (s(S_SPIN), s(S_SPIN)))
    k('s_cbranch_scc1 %s' % FAIL)
    k('s_waitcnt vmcnt(0)')
    k('v_max3_u32 %s, %s, %s, %s' % (v(TT), v(KM), v(KM + 1), v(KM + 2)))
    for i in range(3, 15, 2): k('v_max3_u32 %s, %s, %s, %s' % (v(TT), v(TT), v(KM + i), v(KM + i + 1)))
    k('v_max_u32 %s, %s, %s' % (v(TT), v(TT), v(KM + 15)))
    k('v_cmp_eq_u32 vcc, -1, %s' % v(TT))
    k('s_cbranch_vccnz %s_b' % PL)
    for w_ in range(4):
        for T in range(2):
            k(mfma32(sm(T), v(KM + 4 * w_, 4), v(QF + 8 * w_ + 4 * T, 4), w_ == 0))
    rnd2([sm(0) + i for i in range(8)])
    k('s_mov_b32 %s, 0x%x' % (s(S_T3), f2u(math.log2(math.e))))
    for T in range(2):
        xr = [sx(kt, T) + j for kt in range(2) if (kt, T) in tiles for j in range(4)]
        mr = [sm(T) + j for j in range(4)]
        regs = xr + mr
        k('v_max3_f32 %s, %s, %s, %s' % (v(MX), v(regs[0]), v(regs[1]), v(regs[2])))
        for i in range(3, len(regs) - 1, 2): k('v_max3_f32 %s, %s, %s, %s' % (v(MX), v(MX), v(regs[i]), v(regs[i + 1])))
        k('v_max_f32 %s, %s, %s' % (v(MX), v(MX), v(regs[-1])))
        xreduce(k, 'v_max_f32', MX, TT)
        k('v_mul_f32 %s, %s, %s' % (v(MX), s(S_T3), v(MX)))
        for r in regs: k('v_fma_f32 %s, %s, %s, -%s' % (v(r), v(r), s(S_T3), v(MX)))
        for r in regs: k('v_exp_f32 %s, %s' % (v(r), v(r)))
        k('v_add_f32 %s, %s, %s' % (v(LS), v(mr[0]), v(mr[1])))
        k('v_add_f32 %s, %s, %s' % (v(LS + 1), v(mr[2]), v(mr[3])))
        k('v_add_f32 %s, %s, %s' % (v(LS), v(LS), v(LS + 1)))
        k('v_mul_f32 %s, 0.5, %s' % (v(LS), v(LS)))
        for r in xr: k('v_add_f32 %s, %s, %s' % (v(LS), v(LS), v(r)))
        xreduce(k, 'v_add_f32', LS, TT)
        k('v_rcp_f32 %s, %s' % (v(LS), v(LS)))
        for r in regs: k('v_mul_f32 %s, %s, %s' % (v(r), v(r), v(LS)))
        for i in range(0, len(xr), 2): cvt(k, PX + 4 * T + i // 2, xr[i], xr[i + 1])
        if T == 0:
            k('v_mov_b32 %s, 0' % v(PX + 2)); k('v_mov_b32 %s, 0' % v(PX + 3))
        cvt(k, PM + 2 * T, mr[0], mr[1]); cvt(k, PM + 2 * T + 1, mr[2], mr[3])
        for t in range(2):
            k(mfma32(O + 8 * T + 4 * t, v(VF + 4 * t, 4), v(PX + 4 * T, 4), True))
        for t in range(2):
            o_ = O + 8 * T + 4 * t
            k('v_mfma_f32_16x16x16_bf16 %s, %s, %s, %s' % (v(o_, 4), v(VMF + 2 * t, 2), v(PM + 2 * T, 2), v(o_, 4)))
    for T in range(2):
        for j in range(8): k('v_mul_f32 %s, %s, %s' % (v(O + 8 * T + j), v(O + 8 * T + j), v(GT + T)))
        for i in range(4): cvt(k, PX + 4 * T + i, O + 8 * T + 2 * i, O + 8 * T + 2 * i + 1)
        k('ds_write_b128 %s, %s offset:%d' % (v(OXW), v(PX + 4 * T, 4), 1024 * T))
    k('s_waitcnt lgkmcnt(0)')
    k('s_barrier')
    OF = QF
    for kk in range(4):
        for T in range(2):
            k('ds_read_b128 %s, %s offset:%d' % (v(OF + 8 * kk + 4 * T, 4), v(L16), kk * 2048 + T * 1024), tag=('of', kk))
    k('s_mov_b32 %s, %s' % (s(S_T0), s(S_PBW)))
    pendst = []
    for dt in range(8):
        for kk in range(4):
            if dt == 0: k.wait_lg(('of', kk))
            for T in range(2):
                k(mfma32(acc(dt, T), a(wof(dt, kk), 4), v(OF + 8 * kk + 4 * T, 4), False))
            if kk in (1, 2) and pendst: pendst.pop(0)()
        def mk(dt, T):
            def f():
                k('buffer_store_dwordx4 %s, %s, %s, %s offen' % (v(acc(dt, T), 4), v(ST), s(S_WS, 4), s(S_T0)))
                k('s_add_u32 %s, %s, 0x8000' % (s(S_T0), s(S_T0)))
            return f
        pendst += [mk(dt, 0), mk(dt, 1)]
    while pendst: pendst.pop(0)()
    k('s_add_u32 %s, %s, 1' % (s(S_I), s(S_I)))
    k('s_waitcnt vmcnt(0)')
    k('s_barrier')
    LF = k.newlabel('L_pb_f')
    k('s_cmp_lg_u32 %s, 0' % s(S_W))
    k('s_cbranch_scc1 %s' % LF)
    set_flag(k, S_PFS, s(S_I), '')
    k.label(LF)
    poll_flags(k, S_PF, 32, s(S_I), 'pb')
    RR = QF
    k('s_mov_b32 %s, %s' % (s(S_T0), s(S_PBR)))
    k.vm = []
    for i in range(16):
        ld(RR + 4 * i, S_T0, (i & 3) * 1024, ('r', i))
        if i % 4 == 3: k('s_add_u32 %s, %s, 4096' % (s(S_T0), s(S_T0)))
    for i in range(1, 16):
        k.wait_vm(('r', i))
        d = RR + 4 * (i & 1)
        if i == 1: continue
        for j in range(4): k('v_add_f32 %s, %s, %s' % (v(d + j), v(d + j), v(RR + 4 * i + j)))
    for j in range(4): k('v_add_f32 %s, %s, %s' % (v(RR + j), v(RR + j), v(RR + 4 + j)))
    k('v_permlane32_swap_b32 %s, %s' % (v(RR), v(RR + 2)))
    k('v_permlane32_swap_b32 %s, %s' % (v(RR + 1), v(RR + 3)))
    k('v_add_f32 %s, %s, %s' % (v(RR), v(RR), v(RR + 2)))
    k('v_add_f32 %s, %s, %s' % (v(RR + 1), v(RR + 1), v(RR + 3)))
    cvt(k, RR, RR, RR + 1)
    k('s_lshl_b32 %s, %s, 15' % (s(S_T0), s(S_SEG)))
    k('buffer_store_dword %s, %s, %s, %s offen' % (v(RR), v(OA), s(S_OUT, 4), s(S_T0)))
    k('s_xor_b32 %s, %s, 0x200000' % (s(S_PBW), s(S_PBW)))
    k('s_xor_b32 %s, %s, 0x200000' % (s(S_PBR), s(S_PBR)))
    k('s_add_u32 %s, %s, 7' % (s(S_SEG), s(S_SEG)))
    k('s_cmp_lt_u32 %s, 64' % s(S_SEG))
    k('s_cbranch_scc1 %s' % LOOP)
```

```python
import sys, json
sys.path.insert(0, 'gen')
from fw import *
from layout import *
import chain as C
import worker as W
NAME = 'gated_mix__memory_aug_recurrent_mem_tr__sliding_block__prompt_kernel'
HEAD = open('gated_mix__memory_aug_recurrent_mem_tr__sliding_block__prompt.s.ref').read().split('; Override')[0]
D_READY = 64

def gen(opt={}):
    roles = opt.get('roles', ['chain', 'p1', 'p2', 'ba', 'pb'])
    full = len(roles) == 5
    k = K()
    k.raw(HEAD.rstrip())
    k.raw('; @launch grid=(256,1,1) block=(256,1,1) lds=163840')
    k.raw('.amdgcn_target "amdgcn-amd-amdhsa--gfx950"\n.text\n.globl %s\n.p2align 8\n.type %s,@function\n%s:' % (NAME, NAME, NAME))
    k('s_load_dwordx16 s[64:79], s[0:1], 0')
    k('s_load_dwordx8 s[80:87], s[0:1], 64')
    k('s_load_dwordx4 s[88:91], s[0:1], 96')
    if opt.get('prof'): k('s_memtime s[100:101]')
    k('s_getreg_b32 %s, hwreg(HW_REG_XCC_ID)' % s(W.S_GRP))
    k('s_and_b32 %s, %s, 7' % (s(W.S_GRP), s(W.S_GRP)))
    k('s_waitcnt lgkmcnt(0)')
    C.srd(k, C.S_WS, W.P_WS, WS_BYTES); C.srd(k, C.S_DBG, W.P_DBG, 256)
    k('''
  s_lshl_b32 s55, s50, 2
  v_mov_b32 v1, 0
  v_mov_b32 v2, 1
  v_cmp_eq_u32 vcc, 0, v0
  s_and_saveexec_b64 s[4:5], vcc
  s_cbranch_execz L_t1
  buffer_atomic_add v2, v1, s[32:35], s55 offen sc0 sc1
  s_waitcnt vmcnt(0)
  ds_write_b32 v1, v2
  s_waitcnt lgkmcnt(0)
L_t1:
  s_mov_b64 exec, s[4:5]
  s_barrier
  ds_read_b32 v2, v1
  v_lshrrev_b32 v3, 6, v0
  s_waitcnt lgkmcnt(0)
  v_readfirstlane_b32 s51, v2
  v_readfirstlane_b32 s41, v3
  v_and_b32 v0, 63, v0
  s_barrier
  s_cmp_ge_u32 s51, 32
  s_cbranch_scc1 L_end
''')
    TK, GRP = W.S_TK, W.S_GRP
    def ready_add():
        k('s_waitcnt vmcnt(0)')
        k('s_barrier')
        L = k.newlabel('L_ra')
        k('s_cmp_lg_u32 %s, 0' % s(C.S_W))
        k('s_cbranch_scc1 %s' % L)
        k('v_mov_b32 v6, %d' % D_READY)
        k('v_mov_b32 v7, 1')
        k('s_mov_b64 exec, 1')
        k('buffer_atomic_add v7, v6, s[32:35], 0 offen sc1')
        k('s_mov_b64 exec, -1')
        k.label(L)
    k('v_lshlrev_b32 v1, 4, v0')
    for i in range(4): k('v_mov_b32 v%d, -1' % (8 + i))
    k('s_cmp_lg_u32 %s, 0' % s(GRP))
    k('s_cbranch_scc1 L_worker')
    if 'chain' in roles:
        k('s_mov_b32 %s, %s' % (s(C.S_H), s(TK)))
        C.srd(k, C.S_WQ, W.P_WQ, 4 << 20); C.srd(k, C.S_WK, W.P_WK, 4 << 20); C.srd(k, C.S_WV, W.P_WV, 4 << 20); C.srd(k, C.S_WO, W.P_WO, 4 << 20)
        C.srd(k, C.S_M0, W.P_MEM0, 8192)
        k('s_lshl_b32 s55, s40, 13')
        k('s_lshl_b32 s56, s41, 11')
        k('s_add_u32 s55, s55, s56')
        k('s_add_u32 s55, s55, 0x%x' % INB)
        for sl in range(2):
            for i in range(2):
                k('buffer_store_dwordx4 v[8:11], v1, s[8:11], s55 offen offset:%d' % (1024 * i))
            k('s_add_u32 s55, s55, 0x40000')
        k('s_lshl_b32 s55, s40, 10')
        k('s_add_u32 s55, s55, 0x%x' % H2)
        k('buffer_store_dwordx4 v[8:11], v1, s[8:11], s55 offen')
        ready_add()
        nready = 256 if full else 32
        S_RDY = 63
        def wait_kv(first):
            L = k.newlabel('L_kv')
            k('s_add_u32 %s, %s, %d' % (s(C.S_T0), s(C.S_STEP), 0 if first else 1))
            k('s_cmp_lt_u32 %s, %s' % (s(C.S_T0), s(S_RDY)))
            k('s_cbranch_scc0 %s_slow' % L)
            k.label(L + '_ret')
            def slow():
                A, B = C.X3, C.OR_
                k.label(L + '_slow')
                k('s_lshl_b32 %s, %s, 2' % (s(C.S_T1), s(C.S_H)))
                k('s_add_u32 %s, %s, %s' % (s(C.S_T1), s(C.S_T1), s(C.S_W)))
                k('s_lshl_b32 %s, %s, 5' % (s(C.S_T1), s(C.S_T1)))
                k('s_add_u32 %s, %s, 0x%x' % (s(C.S_T1), s(C.S_T1), F_KV))
                k('s_mov_b32 %s, %d' % (s(C.S_SPIN), C.SPIN_MAX))
                k.label(L + '_p')
                k('v_lshrrev_b32 %s, 2, %s' % (v(A), v(C.L16)))
                k('buffer_load_dword %s, %s, %s, %s offen sc1' % (v(B), v(A), s(C.S_WS, 4), s(C.S_T1)))
                k('s_sub_u32 %s, %s, 1' % (s(C.S_SPIN), s(C.S_SPIN)))
                k('s_cbranch_scc1 L_fail')
                k('s_waitcnt vmcnt(0)')
                k('s_mov_b32 %s, 1000' % s(S_RDY))
                for r in range(7):
                    k('v_readlane_b32 %s, %s, %d' % (s(C.S_T2), v(B), r))
                    k('s_nop 0')
                    k('s_mul_i32 %s, %s, 7' % (s(C.S_T2), s(C.S_T2)))
                    k('s_add_u32 %s, %s, %d' % (s(C.S_T2), s(C.S_T2), r))
                    k('s_min_u32 %s, %s, %s' % (s(S_RDY), s(S_RDY), s(C.S_T2)))
                k('s_cmp_ge_u32 %s, 64' % s(S_RDY))
                k('s_cselect_b32 %s, 1000, %s' % (s(S_RDY), s(S_RDY)))
                k('s_cmp_lt_u32 %s, %s' % (s(C.S_T0), s(S_RDY)))
                k('s_cbranch_scc1 %s_ret' % L)
                k('s_sleep 2')
                k('s_branch %s_p' % L)
            k.deferred.append(slow)
        k.deferred = []
        def hook_start():
            L = k.newlabel('L_rdy')
            k('s_mov_b32 %s, %d' % (s(C.S_SPIN), C.SPIN_MAX))
            k.label(L)
            k('v_mov_b32 %s, %d' % (v(C.X3), D_READY))
            k('buffer_load_dword %s, %s, %s, 0 offen sc1' % (v(C.X3), v(C.X3), s(C.S_DBG, 4)))
            k('s_sub_u32 %s, %s, 1' % (s(C.S_SPIN), s(C.S_SPIN)))
            k('s_cbranch_scc1 L_fail')
            k('s_waitcnt vmcnt(0)')
            k('v_cmp_gt_u32 vcc, %d, %s' % (nready, v(C.X3)))
            k('s_cbranch_vccnz %s' % L)
            k('s_mov_b32 %s, %d' % (s(S_RDY), 0 if full else 1000))
            wait_kv(True)
        k.hook_start = hook_start
        k.hook_prefetch = lambda: wait_kv(False)
        k('v_mov_b32 v24, v0')
        C.chain(k, 24, prof=opt.get('prof'), dump=opt.get('dump'), opt=opt)
        if opt.get('prof'):
            T = C.S_TS
            k.raw('  s_memtime %s' % s(T + 26, 2))
            k.raw('  s_waitcnt lgkmcnt(0)')
            k('s_sub_u32 %s, %s, %s' % (s(T + 21), s(T + 26), s(T + 24)))
            k('s_sub_u32 %s, %s, s100' % (s(T + 22), s(T + 24)))
            for i in range(8): k('v_mov_b32 %s, %s' % (v(i), s(T + 16 + i)))
            k('s_lshl_b32 s55, s40, 2')
            k('s_add_u32 s55, s55, s41')
            k('s_lshl_b32 s55, s55, 5')
            k('s_add_u32 s55, s55, 0x%x' % (DBG + 0x100000))
            k('v_mov_b32 v8, 0')
            k('buffer_store_dwordx4 v[0:3], v8, s[8:11], s55 offen')
            k('buffer_store_dwordx4 v[4:7], v8, s[8:11], s55 offen offset:16')
        k('s_branch L_end')
        for f in k.deferred: f()
    else:
        k('s_branch L_end')
    k.label('L_worker')
    k.hist = []
    def stampw(i):
        if opt.get('prof'):
            k('s_memtime s[4:5]')
            k('s_waitcnt lgkmcnt(0)')
            k('s_sub_u32 s4, s4, s100')
            k('v_mov_b32 v7, s4')
            k('s_lshl_b32 s55, s50, 5')
            k('s_add_u32 s55, s55, s62')
            k('s_lshl_b32 s55, s55, 2')
            k('s_add_u32 s55, s55, s41')
            k('s_lshl_b32 s55, s55, 5')
            k('s_add_u32 s55, s55, 0x%x' % (DBG + 0x110000 + 4 * i))
            k('v_mov_b32 v6, 0')
            k('buffer_store_dword v7, v6, s[8:11], s55 offen')
    k('s_mov_b32 s62, %s' % s(TK))
    k('s_sub_u32 s55, %s, 1' % s(GRP))
    k('s_lshl_b32 s55, s55, 5')
    k('s_add_u32 s55, s55, %s' % s(TK))
    k('s_mul_i32 %s, s55, 9363' % s(C.S_H))
    k('s_lshr_b32 %s, %s, 16' % (s(C.S_H), s(C.S_H)))
    k('s_mul_i32 s56, %s, 7' % s(C.S_H))
    k('s_sub_u32 %s, s55, s56' % s(W.S_R))
    k('s_cmp_eq_u32 %s, 0' % s(W.S_R))
    k('s_cselect_b32 %s, 10, 9' % s(W.S_NSEG))
    W.setup_common(k)
    if full:
        k('s_lshl_b32 s55, s40, 2\ns_add_u32 s55, s55, s41\ns_lshl_b32 s55, s55, 3\ns_add_u32 s55, s55, s42\ns_lshl_b32 s55, s55, 2\ns_add_u32 s55, s55, 0x%x' % F_KV)
        W.set_flag(k, 55, '0')
        k('s_lshl_b32 s55, s40, 3\ns_add_u32 s55, s55, s42\ns_lshl_b32 s55, s55, 2\ns_add_u32 s56, s55, 0x%x\ns_add_u32 s55, s55, 0x%x' % (F_D3, F_D2))
        W.set_flag(k, 55, '0'); W.set_flag(k, 56, '0')
    if 'pb' in roles:
        k('s_lshl_b32 s55, s50, 5\ns_add_u32 s55, s55, s51\ns_lshl_b32 s55, s55, 2\ns_add_u32 s55, s55, 0x%x' % F_PB)
        W.set_flag(k, 55, '0', '')
    if full:
        k('s_sub_u32 s55, s50, 1\ns_lshl_b32 s55, s55, 5\ns_add_u32 s55, s55, s51\ns_lshl_b32 s55, s55, 2\ns_add_u32 s55, s55, s41\ns_lshl_b32 s55, s55, 11\ns_add_u32 s55, s55, 0x%x' % KVM)
        k.label('L_kvm_init')
        k('buffer_store_dwordx4 v[8:11], v1, s[8:11], s55 offen sc1')
        k('buffer_store_dwordx4 v[8:11], v1, s[8:11], s55 offen offset:1024 sc1')
        k('s_add_u32 s55, s55, 0x%x' % (7 * 32 * 8192))
        k('s_cmp_lt_u32 s55, 0x%x' % (KVM + 0x1000000))
        k('s_cbranch_scc1 L_kvm_init')
    ready_add()
    stampw(0)
    if 'p1' in roles: W.pass1(k)
    stampw(1)
    if 'p2' in roles:
        if 'p1' not in roles:
            C.srd(k, W.S_X, W.P_X, 2 << 20); W.qkv_addr(k); W.x_setup(k)
        W.pass2(k)
    stampw(2)
    if full or 'pb' in roles:
        k('s_mov_b32 s55, %d' % D_READY)
        W.poll_flags(k, 55, 1, '%d' % (256 if 'chain' in roles else 224) if False else 's56', 'rdy', srdn=C.S_DBG) if False else None
        k('s_mov_b32 s56, %d' % (256 if 'chain' in roles else 224))
        W.poll_flags(k, 55, 1, 's56', 'rdy', srdn=C.S_DBG)
    if 'ba' in roles: W.battn(k, waitflags=full)
    stampw(3)
    if 'pb' in roles:
        k('s_mov_b32 %s, %s' % (s(C.S_H), s(TK)))
        k('s_sub_u32 %s, %s, 1' % (s(W.S_R), s(GRP)))
        W.phaseB(k, waitflags=full)
    stampw(4)
    k('s_branch L_end')
    k.label('L_fail')
    k('s_mov_b64 exec, 1')
    k('v_mov_b32 v1, 128')
    k('v_mov_b32 v2, 1')
    k('buffer_atomic_add v2, v1, s[32:35], 0 offen sc1')
    k.label('L_end')
    k('s_endpgm')
    k.raw('''.section .rodata,"a"
.p2align 6
.amdhsa_kernel %s
  .amdhsa_next_free_vgpr 512
  .amdhsa_next_free_sgpr 102
  .amdhsa_accum_offset 256
  .amdhsa_group_segment_fixed_size 0
  .amdhsa_kernarg_size 112
  .amdhsa_user_sgpr_count 2
  .amdhsa_user_sgpr_kernarg_segment_ptr 1
  .amdhsa_system_sgpr_workgroup_id_x 1
.end_amdhsa_kernel''' % NAME)
    gen.points = getattr(k, 'points', [])
    return k.text()

if __name__ == '__main__':
    opt = json.loads(sys.argv[2]) if len(sys.argv) > 2 else {}
    open(sys.argv[1], 'w').write(gen(opt))
```

```python
from fw import *
from layout import *
import math, struct

S_WS, S_WQ, S_WK, S_WV, S_WO, S_M0, S_DBG = 8, 12, 16, 20, 24, 28, 32
S_H, S_W, S_STEP, S_TAG = 40, 41, 42, 43
S_KV, S_KVM, S_INW0, S_INW1, S_INR0, S_DEF, S_H2W, S_H2R, S_H2RST = 44, 45, 46, 47, 48, 49, 51, 52, 53
S_SPIN, S_T0, S_T1, S_T2 = 54, 55, 56, 57
S_C = 58
S_TS = 64

MEMF, ACCQK, ACCV, KVC, KVN, T1 = 0, 32, 48, 56, 72, 88
SELR, SELT = 96, 102
X0, X1 = 100, 101
IDX, L16, L16W, MEMR, SMW, SMR, OW, OR_, ST1, ST2, STRM, IDXR = 104, 105, 106, 107, 110, 111, 112, 113, 114, 115, 116, 117
X2, X3 = 118, 119
SBUF = 120
VSTAT = 144
L_MEM, L_SX, L_SM, L_OX, L_WS = 0, 8192, 8192 + 2 * 2048 + 1024, 8192 + 1024, 16384
WSTRIDE = 36864
OOR = 0x30000
SPIN_MAX = 1 << 20

def f2u(x):
    return struct.unpack('<I', struct.pack('<f', x))[0]

def srd(k, base, ptr_lo, nbytes):
    k('s_mov_b32 %s, %s' % (s(base), s(ptr_lo)))
    k('s_and_b32 %s, %s, 0xffff' % (s(base + 1), s(ptr_lo + 1)))
    k('s_mov_b32 %s, 0x%x' % (s(base + 2), nbytes))
    k('s_mov_b32 %s, 0x00020000' % s(base + 3))

ALLOPS = [(m, kap, t) for m in 'qkv' for kap in range(8) for t in range(2)] + [('o', a_, kap) for a_ in range(4) for kap in range(4)]
STREAM = [('q', 0, 0), ('k', 0, 0), ('q', 2, 1), ('q', 6, 0), ('k', 2, 1), ('k', 6, 0), ('q', 1, 1), ('q', 3, 1), ('q', 7, 0),
          ('k', 3, 1), ('k', 7, 0), ('v', 2, 0), ('v', 3, 0), ('v', 4, 0), ('o', 2, 0), ('o', 1, 2), ('o', 2, 1), ('o', 3, 3)]
NS = len(STREAM)

def op_locs():
    loc = {}
    na = nv = 0
    for o in ALLOPS:
        if o in STREAM:
            loc[o] = ('s', STREAM.index(o))
        elif na < 32:
            loc[o] = ('a', 8 * na); na += 1
        else:
            loc[o] = ('v', VSTAT + 8 * nv); nv += 1
    assert na == 32 and nv == 14 and NS == 18
    return loc

def dst(loc, r, n):
    return (a if loc[0] == 'a' else v)(loc[1] + r, n)

def consts(k, LANE):
    k.c('===== chain: constants =====')
    tA, tB, tC, tD = 8, 9, 10, 11
    u4, u5, u6, u7 = 12, 13, 14, 15
    k('s_lshl_b32 %s, %s, 11' % (s(S_T0), s(S_W)))
    k('v_add_u32 %s, %s, %s' % (v(L16W), s(S_T0), v(L16)))
    for p in (1, 2, 3):
        k('v_xor_b32 %s, 0x%x, %s' % (v(MEMR + p - 1), p << 11, v(L16W)))
    k('v_and_b32 %s, 15, %s' % (v(tA), v(LANE)))
    k('v_lshrrev_b32 %s, 4, %s' % (v(tB), v(LANE)))
    k('v_and_b32 %s, 7, %s' % (v(tC), v(LANE)))
    k('v_cmp_gt_u32 vcc, 8, %s' % v(tA))
    k('v_mov_b32 %s, 0xeeee' % v(IDX))
    k('v_mov_b32 %s, 0x4444' % v(tD))
    k('v_cndmask_b32 %s, %s, %s, vcc' % (v(IDX), v(IDX), v(tD)))
    k('v_mov_b32 %s, 0x%x' % (v(tD), OOR))
    k('v_lshl_add_u32 %s, %s, 3, %s' % (v(OR_), v(tB), v(tC)))
    k('v_lshlrev_b32 %s, 4, %s' % (v(OR_), v(OR_)))
    k('s_and_b32 %s, %s, 1' % (s(S_T0), s(S_W)))
    k('s_lshl_b32 %s, %s, 9' % (s(S_T0), s(S_T0)))
    k('s_lshr_b32 %s, %s, 1' % (s(S_T1), s(S_W)))
    k('s_lshl_b32 %s, %s, 11' % (s(S_T1), s(S_T1)))
    k('s_add_u32 %s, %s, %s' % (s(S_T0), s(S_T0), s(S_T1)))
    k('v_add_u32 %s, %s, %s' % (v(OW), s(S_T0), v(OR_)))
    for p in (1, 2, 3):
        k('v_xor_b32 %s, 0x%x, %s' % (v([X0, X1, X2][p - 1]), ((p & 1) << 9) | ((p >> 1) << 11), v(OW)))
    k('v_cndmask_b32 %s, %s, %s, vcc' % (v(OW), v(tD), v(OW)))
    k('v_and_b32 %s, 0xff, %s' % (v(SMR), v(OR_)))
    k('v_and_b32 %s, 8, %s' % (v(u4), v(tA)))
    k('v_add_u32 %s, %s, %s' % (v(SMR), v(u4), v(SMR)))
    k('v_add_u32 %s, %d, %s' % (v(SMR), L_SM, v(SMR)))
    k('s_lshl_b32 %s, %s, 8' % (s(S_T0), s(S_W)))
    k('v_add_u32 %s, %s, %s' % (v(SMW), s(S_T0), v(SMR)))
    k('v_cmp_gt_u32 vcc, 32, %s' % v(LANE))
    k('v_cndmask_b32 %s, %s, %s, vcc' % (v(SMW), v(tD), v(SMW)))
    k('v_lshrrev_b32 %s, 3, %s' % (v(u4), v(LANE)))
    k('v_lshlrev_b32 %s, 13, %s' % (v(ST1), v(u4)))
    k('v_bfe_u32 %s, %s, 2, 1' % (v(u4), v(LANE)))
    k('v_lshl_add_u32 %s, %s, 11, %s' % (v(ST1), v(u4), v(ST1)))
    k('v_and_b32 %s, 3, %s' % (v(u5), v(LANE)))
    k('v_lshl_add_u32 %s, %s, 4, %s' % (v(ST1), v(u5), v(ST1)))
    k('v_lshlrev_b32 %s, 2, %s' % (v(ST2), v(tA)))
    k('v_lshl_add_u32 %s, %s, 4, %s' % (v(ST2), v(tB), v(ST2)))
    k('s_lshr_b32 %s, %s, 3' % (s(S_T0), s(S_H)))
    k('s_lshl_b32 %s, %s, 11' % (s(S_T0), s(S_T0)))
    for (src, bit, sh) in ((S_W, 1, 10), (S_H, 2, 9), (S_H, 0, 8), (S_W, 0, 7), (S_H, 1, 6)):
        k('s_bfe_u32 %s, %s, 0x%x' % (s(S_T1), s(src), (1 << 16) | bit))
        k('s_lshl_b32 %s, %s, %d' % (s(S_T1), s(S_T1), sh))
        k('s_add_u32 %s, %s, %s' % (s(S_T0), s(S_T0), s(S_T1)))
    k('v_add_u32 %s, %s, %s' % (v(ST2), s(S_T0), v(ST2)))
    k('v_cmp_gt_u32 vcc, 4, %s' % v(tA))
    k('v_bfrev_b32 %s, 1' % v(u4))
    k('v_cndmask_b32 %s, %s, %s, vcc' % (v(ST2), v(u4), v(ST2)))
    k('v_and_b32 %s, 1, %s' % (v(tD), v(tB)))
    k('v_lshlrev_b32 %s, 2, %s' % (v(tD), v(tD)))
    k('v_sub_u32 %s, %s, %s' % (v(tD), v(tC), v(tD)))
    k('v_mov_b32 %s, 0x3f80' % v(u4))
    k('v_mov_b32 %s, 0x3f800000' % v(u5))
    for r in range(2):
        k('v_mov_b32 %s, 0' % v(SELT + r))
        k('v_cmp_eq_u32 vcc, %d, %s' % (2 * r, v(tD)))
        k('v_cndmask_b32 %s, %s, %s, vcc' % (v(SELT + r), v(SELT + r), v(u4)))
        k('v_cmp_eq_u32 vcc, %d, %s' % (2 * r + 1, v(tD)))
        k('v_cndmask_b32 %s, %s, %s, vcc' % (v(SELT + r), v(SELT + r), v(u5)))
    k('v_and_b32 %s, 2, %s' % (v(u6), v(tA)))
    k('v_cmp_eq_u32 vcc, 0, %s' % v(u6))
    k('v_mov_b32 %s, 0' % v(u7))
    k('v_cndmask_b32 %s, %s, %s, vcc' % (v(u6), v(u7), v(u4)))
    k('v_cmp_gt_u32 vcc, 8, %s' % v(tA))
    k('v_cndmask_b32 %s, %s, %s, vcc' % (v(SELR), v(u7), v(u6)))
    k('v_cndmask_b32 %s, %s, %s, vcc' % (v(SELR + 1), v(u6), v(u7)))
    k('v_mov_b32 %s, %s' % (v(SELR + 2), v(SELR)))
    k('v_mov_b32 %s, %s' % (v(SELR + 3), v(SELR + 1)))
    k('v_bfe_u32 %s, %s, 2, 1' % (v(u6), v(tA)))
    k('v_and_b32 %s, 1, %s' % (v(u7), v(tA)))
    k('v_lshl_add_u32 %s, %s, 1, %s' % (v(u6), v(u6), v(u7)))
    k('v_xor_b32 %s, 1, %s' % (v(u7), v(u6)))
    k('v_lshl_add_u32 %s, %s, 2, %s' % (v(u6), v(u7), v(u6)))
    k('v_mul_u32_u24 %s, 0x1111, %s' % (v(IDXR), v(u6)))

def loader(k, LANE, LOC, after_issue=None, hooks={}):
    k.c('===== chain: weight load =====')
    GQ, GO, TRQ, TRP, TRO, LW, u, u2 = 1, 2, 3, 4, 5, 6, 7, 8
    RAW = 8
    k('s_mul_i32 %s, %s, %d' % (s(S_T2), s(S_W), WSTRIDE))
    k('s_add_u32 %s, %s, %d' % (s(S_T2), s(S_T2), L_WS))
    k('v_lshrrev_b32 %s, 3, %s' % (v(u), v(LANE)))
    k('v_and_b32 %s, 7, %s' % (v(u2), v(LANE)))
    k('v_lshlrev_b32 %s, 4, %s' % (v(u2), v(u2)))
    k('v_lshl_add_u32 %s, %s, 13, %s' % (v(GQ), v(u), v(u2)))
    k('v_lshl_add_u32 %s, %s, 10, %s' % (v(GO), v(u), v(u2)))
    k('s_lshl_b32 %s, %s, 8' % (s(S_T0), s(S_H)))
    k('s_lshr_b32 %s, %s, 1' % (s(S_T1), s(S_W)))
    k('s_lshl_b32 %s, %s, 7' % (s(S_T1), s(S_T1)))
    k('s_add_u32 %s, %s, %s' % (s(S_T0), s(S_T0), s(S_T1)))
    k('v_add_u32 %s, %s, %s' % (v(GQ), s(S_T0), v(GQ)))
    k('s_lshl_b32 %s, %s, 17' % (s(S_T0), s(S_H)))
    k('s_lshl_b32 %s, %s, 8' % (s(S_T1), s(S_W)))
    k('s_add_u32 %s, %s, %s' % (s(S_T0), s(S_T0), s(S_T1)))
    k('v_add_u32 %s, %s, %s' % (v(GO), s(S_T0), v(GO)))
    its = [('o', 0, 0), ('o', 1, 0), ('o', 0, 1), ('o', 1, 1), ('v', 5), ('v', 1), ('v', 4), ('k', 5), ('q', 5), ('v', 0), ('k', 4), ('q', 4), ('k', 1), ('k', 0), ('q', 1), ('q', 0)]
    def issue(li):
        it = its[li]; slot = li % 4
        for i in range(8):
            if it[0] == 'o':
                srdn, ga = S_WO, GO
                if i % 4 == 0:
                    k('s_xor_b32 %s, %s, %d' % (s(S_T0), s(S_W), 2 * it[2] + (i >> 2)))
                    k('s_lshl_b32 %s, %s, 15' % (s(S_T0), s(S_T0)))
                    k('s_add_u32 %s, %s, %d' % (s(S_T0), s(S_T0), it[1] * 128))
                else:
                    k('s_add_u32 %s, %s, %d' % (s(S_T0), s(S_T0), 8 * 1024))
            else:
                srdn, ga = {'q': S_WQ, 'k': S_WK, 'v': S_WV}[it[0]], GQ
                if i == 0:
                    k('s_lshl_b32 %s, %s, 1' % (s(S_T0), s(S_W)))
                    k('s_xor_b32 %s, %s, %d' % (s(S_T0), s(S_T0), it[1]))
                    k('s_lshl_b32 %s, %s, 19' % (s(S_T0), s(S_T0)))
                else:
                    k('s_add_u32 %s, %s, %d' % (s(S_T0), s(S_T0), 8 * 8192))
            k('s_add_u32 m0, %s, %d' % (s(S_T2), slot * 8192 + i * 1024))
            k('buffer_load_dwordx4 %s, %s, %s offen lds' % (v(ga), s(srdn, 4), s(S_T0)), tag=('wl', li))
    for li in range(4): issue(li)
    k('v_bfe_u32 %s, %s, 5, 1' % (v(u), v(LANE)))
    k('v_lshlrev_b32 %s, 3, %s' % (v(TRQ), v(u)))
    k('v_lshlrev_b32 %s, 2, %s' % (v(TRO), v(u)))
    k('v_bfe_u32 %s, %s, 4, 1' % (v(u), v(LANE)))
    k('v_lshl_add_u32 %s, %s, 1, %s' % (v(TRQ), v(u), v(TRQ)))
    k('v_lshl_add_u32 %s, %s, 4, %s' % (v(TRO), v(u), v(TRO)))
    k('v_bfe_u32 %s, %s, 3, 1' % (v(u), v(LANE)))
    k('v_lshl_add_u32 %s, %s, 2, %s' % (v(TRQ), v(u), v(TRQ)))
    k('v_bfe_u32 %s, %s, 2, 1' % (v(u), v(LANE)))
    k('v_lshl_add_u32 %s, %s, 5, %s' % (v(TRQ), v(u), v(TRQ)))
    k('v_bfe_u32 %s, %s, 2, 2' % (v(u), v(LANE)))
    k('v_add_u32 %s, %s, %s' % (v(TRO), v(TRO), v(u)))
    k('v_and_b32 %s, 3, %s' % (v(u), v(LANE)))
    for R in (TRQ, TRO):
        k('v_lshlrev_b32 %s, 7, %s' % (v(R), v(R)))
        k('v_lshl_add_u32 %s, %s, 3, %s' % (v(R), v(u), v(R)))
    k('v_add_u32 %s, %s, %s' % (v(TRO), s(S_T2), v(TRO)))
    k('s_and_b32 %s, %s, 1' % (s(S_T0), s(S_W)))
    k('s_lshl_b32 %s, %s, 6' % (s(S_T0), s(S_T0)))
    k('v_add_u32 %s, %s, %s' % (v(TRQ), s(S_T0), v(TRQ)))
    k('s_xor_b32 %s, %s, 1' % (s(S_T0), s(S_W)))
    k('s_mul_i32 %s, %s, %d' % (s(S_T0), s(S_T0), WSTRIDE))
    k('s_add_u32 %s, %s, %d' % (s(S_T0), s(S_T0), L_WS))
    k('v_add_u32 %s, %s, %s' % (v(TRP), s(S_T0), v(TRQ)))
    k('v_add_u32 %s, %s, %s' % (v(TRQ), s(S_T2), v(TRQ)))
    k('v_lshlrev_b32 %s, 4, %s' % (v(LW), v(LANE)))
    k('v_add_u32 %s, %s, %s' % (v(LW), s(S_T2), v(LW)))
    if after_issue: after_issue()
    freepark = [24, 88, 96, 104, 112, 120, 128, 136, 72, 80]
    parked = []
    homes = {}
    freehome = [32768, 34816]
    def target(op):
        loc = LOC[op]
        if loc[0] != 's': return loc
        p = freepark.pop(0); parked.append((op, p))
        return ('v', p)
    def dump():
        any_ = False
        while parked and freehome:
            op, p = parked.pop(0); h_ = freehome.pop(0); homes[op] = h_
            k('ds_write_b128 %s, %s offset:%d' % (v(LW), v(p, 4), h_))
            k('ds_write_b128 %s, %s offset:%d' % (v(LW), v(p + 4, 4), h_ + 1024))
            freepark.append(p); any_ = True
        if any_: k('s_waitcnt lgkmcnt(0)')
    for li in range(16):
        it = its[li]; slot = li % 4
        k.wait_vm(('wl', li))
        if it[0] != 'o':
            k('s_barrier')
            for (kap, ar) in ((it[1], TRQ), (it[1] + 2, TRP)):
                for t in range(2):
                    loc = target((it[0], kap, t))
                    for H in range(2):
                        for Q in range(2):
                            k('ds_read_b64_tr_b16 %s, %s offset:%d' % (dst(loc, 4 * H + 2 * Q, 2), v(ar), slot * 8192 + (16 * H + Q) * 128 + 32 * t))
                k('s_waitcnt lgkmcnt(0)')
            k('s_barrier')
        else:
            for j in range(2):
                for aa in range(2):
                    for H in range(2):
                        for tau in range(2):
                            k('ds_read_b64_tr_b16 %s, %s offset:%d' % (v(RAW + 8 * aa + 4 * H + 2 * tau, 2), v(TRO), slot * 8192 + (32 * j + 8 * H) * 128 + 64 * aa + 32 * tau))
                k('s_waitcnt lgkmcnt(0)')
                for aa in range(2):
                    loc = target(('o', 2 * it[1] + aa, 2 * it[2] + j))
                    mv = 'v_accvgpr_write_b32' if loc[0] == 'a' else 'v_mov_b32'
                    for H in range(2):
                        for tau in range(2):
                            src = RAW + 8 * aa + 4 * H + 2 * tau
                            k('%s %s, %s' % (mv, dst(loc, 4 * H + tau, 1), v(src)))
                            k('%s %s, %s' % (mv, dst(loc, 4 * H + tau + 2, 1), v(src + 1)))
        if li + 4 < 16:
            issue(li + 4)
        else:
            freehome += [slot * 8192 + 2048 * i for i in range(4)]
        dump()
        if li in hooks: hooks[li]()
    assert not parked and len(homes) == NS
    return homes

def chain(k, nsteps=64, prof=False, dump=False, opt={}):
    LOC = op_locs()
    LANE = 0
    def early():
        if hasattr(k, 'hook_loading'): k.hook_loading()
        k('v_and_b32 %s, 7, %s' % (v(56), v(LANE)))
        k('v_lshlrev_b32 %s, 10, %s' % (v(57), v(56)))
        k('v_lshrrev_b32 %s, 4, %s' % (v(56), v(LANE)))
        k('v_lshl_add_u32 %s, %s, 4, %s' % (v(57), v(56), v(57)))
        k('v_bfe_u32 %s, %s, 3, 1' % (v(56), v(LANE)))
        k('v_lshl_add_u32 %s, %s, 3, %s' % (v(57), v(56), v(57)))
        k('s_lshl_b32 %s, %s, 8' % (s(S_T0), s(S_W)))
        for k2 in range(2):
            for q in range(4):
                k('buffer_load_ushort %s, %s, %s, %s offen offset:%d' % (v(32 + 4 * k2 + q), v(57), s(S_M0, 4), s(S_T0), k2 * 128 + q * 2))
                k('buffer_load_ushort %s, %s, %s, %s offen offset:%d' % (v(40 + 4 * k2 + q), v(57), s(S_M0, 4), s(S_T0), k2 * 128 + q * 2 + 64))
        k('s_lshl_b32 %s, %s, 14' % (s(S_KV), s(S_H)))
        k('s_lshl_b32 %s, %s, 12' % (s(S_T0), s(S_W)))
        k('s_add_u32 %s, %s, %s' % (s(S_KV), s(S_KV), s(S_T0)))
        k('s_mov_b32 %s, 0' % s(S_STEP))
    def kvload():
        k('v_lshlrev_b32 %s, 4, %s' % (v(7), v(LANE)))
        for i in range(4):
            k('buffer_load_dwordx4 %s, %s, %s, %s offen offset:%d sc1' % (v(KVC + 4 * i, 4), v(7), s(S_WS, 4), s(S_KV), 1024 * i))
    hooks = dict(getattr(k, 'load_hooks', {}))
    h13 = hooks.get(14)
    hooks[14] = lambda: ((h13() if h13 else None), kvload())
    homes = loader(k, LANE, LOC, early, hooks)
    if prof: k.raw('  s_memtime %s' % s(S_TS + 28, 2))
    if opt.get('loadonly'): k('s_branch L_chain_exit')
    k('v_mov_b32 %s, %s' % (v(STRM), v(6)))
    k('v_lshlrev_b32 %s, 4, %s' % (v(L16), v(LANE)))
    k('v_mov_b32 %s, %s' % (v(X3), v(55)))
    k.c('===== chain: initial state =====')
    consts(k, LANE)
    k('s_lshr_b32 %s, %s, 1' % (s(S_INR0), s(S_KV)))
    k('s_add_u32 %s, %s, 0x%x' % (s(S_INR0), s(S_INR0), INB))
    k('s_mov_b32 %s, 0x%x' % (s(S_DEF), SCRATCH))
    k('s_mov_b32 %s, 0x%x' % (s(S_KVM), MEMX + 8192))
    k('s_mov_b32 %s, 0' % s(S_TAG))
    for i in range(8):
        k('v_lshl_or_b32 %s, %s, 16, %s' % (v(MEMF + i), v(40 + i), v(32 + i)))
        k('v_min_u32 %s, -2, %s' % (v(MEMF + i), v(MEMF + i)))
    k('ds_write_b128 %s, %s offset:%d' % (v(L16W), v(MEMF, 4), L_MEM))
    k('ds_write_b128 %s, %s offset:%d' % (v(L16W), v(MEMF + 4, 4), L_MEM + 1024))
    k('s_waitcnt vmcnt(0)')
    k('s_cmp_eq_u32 %s, 0' % s(S_H))
    k('s_cselect_b32 %s, 0x%x, %s' % (s(S_T0), MEMX, s(S_DEF)))
    k('buffer_store_dwordx4 %s, %s, %s, %s offen sc1' % (v(MEMF, 4), v(L16W), s(S_WS, 4), s(S_T0)))
    k('buffer_store_dwordx4 %s, %s, %s, %s offen offset:1024 sc1' % (v(MEMF + 4, 4), v(L16W), s(S_WS, 4), s(S_T0)))
    k('s_add_u32 %s, %s, 0x80000' % (s(S_KV), s(S_KV)))
    k('s_lshl_b32 %s, %s, 16' % (s(S_INW0), s(S_W)))
    k('s_lshl_b32 %s, %s, 6' % (s(S_T0), s(S_H)))
    k('s_add_u32 %s, %s, %s' % (s(S_INW0), s(S_INW0), s(S_T0)))
    k('s_add_u32 %s, %s, 0x%x' % (s(S_INW0), s(S_INW0), INB))
    k('s_add_u32 %s, %s, 0x1000' % (s(S_INW1), s(S_INW0)))
    k('s_lshl_b32 %s, %s, 11' % (s(S_T0), s(S_W)))
    k('s_mov_b32 %s, 0x%x' % (s(S_H2W), H2))
    k('s_add_u32 m0, %s, %d' % (s(S_T0), L_MEM))
    k('s_add_u32 %s, %s, 0x%x' % (s(S_H2R), s(S_T0), H2 + 0x6000))
    k('s_mov_b32 %s, 0x%x' % (s(S_H2RST), H2 + 0x4000))
    cc = (128 ** -0.5) * math.log2(math.e)
    k('s_mov_b32 %s, 0x%x' % (s(S_C), f2u(cc)))
    k('s_mov_b32 %s, 0x%x' % (s(S_C + 1), f2u(cc)))
    pend = [(i, hf) for i in range(3) for hf in range(2)]
    def RF(n=1):
        for _ in range(n):
            if pend:
                i, hf = pend.pop(0)
                k('ds_read_b128 %s, %s offset:%d' % (v(SBUF + 8 * (i % 3) + 4 * hf, 4), v(STRM), homes[STREAM[i]] + 1024 * hf), tag=('st', i))
    RF(6)
    for i in range(0, 24, 2): k('v_mov_b64 %s, 0' % v(ACCQK + i, 2))
    if prof:
        for i in range(8): k('s_mov_b32 %s, 0' % s(S_TS + 16 + i))
        k.raw('  s_memtime %s' % s(S_TS + 24, 2))
    k('s_waitcnt lgkmcnt(0)')

    used = []
    def smf(op, acc, afrag):
        loc = LOC[op]
        if loc[0] == 's':
            assert loc[1] == len(used), (op, loc, used)
            used.append(loc[1])
            assert all(p[0] != loc[1] for p in pend), ('refill not issued', op)
            k.wait_lg(('st', loc[1]))
            opnd = v(SBUF + 8 * (loc[1] % 3), 8)
        else:
            opnd = dst(loc, 0, 8)
        k('v_smfmac_f32_16x16x64_bf16 %s, %s, %s, %s' % (v(acc, 4), v(afrag, 4), opnd, v(IDX)))
        if loc[0] == 's':
            pend.append(((loc[1] + 3) % NS, 0)); pend.append(((loc[1] + 3) % NS, 1))
    ACC = {'q': ACCQK, 'k': ACCQK + 8, 'v': ACCV}
    def S(m, kap, j):
        if kap >= 2: k.wait_lg(('mf', kap))
        smf((m, kap, j), ACC[m] + 4 * j, MEMF + 4 * kap)
    k.points = []
    def pt(name):
        k.points.append(name)
        if opt.get('pt') == name:
            k.raw('  s_memtime %s' % s(S_TS + 2, 2))
    def cvt(d, x, y): k('v_cvt_pk_bf16_f32 %s, %s, %s' % (v(d), v(x), v(y)))
    def mf16(d, A, B, C=None): k('v_mfma_f32_16x16x16_bf16 %s, %s, %s, %s' % (v(d, 4), v(A, 2), v(B, 2), '0' if C is None else v(C, 4)))
    def mf32(d, A, B, C=None): k('v_mfma_f32_16x16x32_bf16 %s, %s, %s, %s' % (v(d, 4), v(A, 4), v(B, 4), '0' if C is None else v(C, 4)))
    def pkadd(d, x, y): k('v_pk_add_f32 %s, %s, %s' % (v(d, 2), v(x, 2), v(y, 2)))
    def pkfma_c(d, x, m): k('v_pk_fma_f32 %s, %s, %s, %s op_sel_hi:[1,1,0] neg_lo:[0,0,1] neg_hi:[0,0,1]' % (v(d, 2), v(x, 2), s(S_C, 2), v(m, 2)))
    def pkmul_b(d, x, m): k('v_pk_mul_f32 %s, %s, %s op_sel_hi:[1,0]' % (v(d, 2), v(x, 2), v(m, 2)))
    def add(d, x, y): k('v_add_f32 %s, %s, %s' % (v(d), v(x), v(y)))
    def mov64(d, x): k('v_mov_b64 %s, %s' % (v(d, 2), x))
    def BAR(tag): k.wait_lg(tag); k('s_barrier')
    def nops(n):
        while n > 0:
            k('s_nop %d' % (min(n, 16) - 1)); n -= 16
    ROR8 = 'row_ror:8 row_mask:0xf bank_mask:0xf'
    FAIL = 'L_fail'; DONE = 'L_chain_done'; BODY = 'L_chain_body'; BODY0 = 'L_chain_body0'
    RETRY2 = 'L_retry2'; RETRY1 = 'L_retry1'; RETRY3 = 'L_retry3'; RET3 = 'L_ret3'
    D1 = opt.get('d1', 2); D2 = opt.get('d2', 2)
    HA, HB = T1 + 7, OR_
    ORR = [X0, X1, X2]
    H1R = MEMF + 8
    VM = KVC + 4; KA = T1 + 4
    def ldE(): k('buffer_load_dwordx4 %s, %s, %s offen sc1 lds' % (v(L16), s(S_WS, 4), s(S_H2R)), tag='pe')
    def ldO(): k('buffer_load_dwordx4 %s, %s, %s offen offset:1024 sc1 lds' % (v(L16), s(S_WS, 4), s(S_H2R)), tag='po')
    def own(k2): k('ds_read_b128 %s, %s offset:%d' % (v(MEMF + 4 * k2, 4), v(L16W), L_MEM + 1024 * k2), tag=('own', k2))
    def chk4(R):
        k('v_max3_u32 %s, %s, %s, %s' % (v(HA), v(R), v(R + 1), v(R + 2)))
        k('v_max_u32 %s, %s, %s' % (v(HA), v(HA), v(R + 3)))
        k('v_cmp_eq_u32 vcc, -1, %s' % v(HA))
    def R(kap):
        p = kap >> 1; k2 = kap & 1
        k('ds_read_b128 %s, %s offset:%d' % (v(MEMF + 4 * kap, 4), v(MEMR + p - 1), L_MEM + 1024 * k2), tag=('mf', kap))
    def pf(i): k('buffer_load_dwordx4 %s, %s, %s, %s offen offset:%d sc1' % (v(KVN + 4 * i, 4), v(L16), s(S_WS, 4), s(S_KV), 1024 * i))
    def stk(so): k('buffer_store_dwordx4 %s, %s, %s, %s offen sc1' % (v(KA, 4), v(L16), s(S_WS, 4), s(so)))
    def stv(so): k('buffer_store_dwordx4 %s, %s, %s, %s offen offset:1024 sc1' % (v(VM, 4), v(L16), s(S_WS, 4), s(so)))
    def sel(d, x): k('v_mov_b32_dpp %s, %s quad_perm:[0,1,2,3] row_mask:0xf bank_mask:0xc' % (v(d), v(x)))

    k('s_branch %s' % BODY0)
    k.raw('.p2align 6')
    k.label(RETRY2)
    k('s_mov_b64 exec, vcc')
    ldE()
    if prof: k('s_add_u32 %s, %s, 1' % (s(S_TS + 23), s(S_TS + 23)))
    k('s_sub_u32 %s, %s, 1' % (s(S_SPIN), s(S_SPIN)))
    k('s_cbranch_scc1 %s' % FAIL)
    k('s_waitcnt vmcnt(%d)' % (D2 - 1))
    own(0)
    k('s_waitcnt lgkmcnt(0)')
    chk4(MEMF)
    k('s_cbranch_vccnz %s' % RETRY2)
    k('s_mov_b64 exec, -1')
    k.label(BODY)
    ldO()
    k.label(BODY0)
    abl = opt.get('abl', [])
    if abl:
        k0 = k._one
        def filt(t, tag):
            if 'vmem' in abl and t.startswith('buffer_'): return
            if 'bar' in abl and t.startswith('s_barrier'): return
            if 'stream' in abl and t.startswith('ds_read_b128') and (', %s ' % v(STRM)) in t: return
            if 'dsw' in abl and t.startswith('ds_write'): return
            if 'dsr' in abl and t.startswith('ds_read'): return
            return k0(t, tag)
        k._one = filt
    k.lg = []; k.vm = []
    if opt.get('pt'): k.raw('  s_memtime %s' % s(S_TS, 2))
    k('s_barrier')
    pt('b1')
    R(2)
    S('q', 0, 0); R(4); S('q', 0, 1); R(6); S('k', 0, 0); RF(); S('k', 0, 1); RF(); S('v', 0, 0); RF(); S('v', 0, 1); RF()
    pt('own0')
    S('q', 2, 0); S('q', 2, 1); RF(); S('q', 4, 0); RF(); S('q', 4, 1)
    S('q', 6, 0); RF(); S('q', 6, 1); RF()
    pt('qe')
    S('k', 2, 0); S('k', 2, 1); RF(); S('k', 4, 0); RF()
    S('k', 4, 1)
    S('k', 6, 0); RF(); S('k', 6, 1); RF()
    for (kap, j) in [(4, 1), (6, 0)][:opt.get('oddv', 0)]: S('v', kap, j)
    k('s_waitcnt vmcnt(0)'); own(1)
    S('v', 2, 1); S('v', 6, 1)
    for (kap, j) in [(4, 1), (6, 0)][opt.get('oddv', 0):]: S('v', kap, j)
    k.wait_lg(('own', 1))
    chk4(MEMF + 4)
    if not opt.get('nohop'): k('s_cbranch_vccnz %s' % RETRY3)
    k.label(RET3)
    k.vm = []
    pt('odd')
    if opt.get('trace'):
        k.raw('  s_memtime %s' % s(S_TS + 4, 2))
        k.raw('  s_memrealtime %s' % s(S_TS + 6, 2))
        k.raw('  s_waitcnt lgkmcnt(0)')
        k('v_mov_b32 %s, %s' % (v(T1), s(S_TS + 4)))
        k('v_mov_b32 %s, %s' % (v(T1 + 1), s(S_TS + 6)))
        k('s_lshl_b32 %s, %s, 2' % (s(S_T0), s(S_H)))
        k('s_add_u32 %s, %s, %s' % (s(S_T0), s(S_T0), s(S_W)))
        k('s_lshl_b32 %s, %s, 6' % (s(S_T0), s(S_T0)))
        k('s_add_u32 %s, %s, %s' % (s(S_T0), s(S_T0), s(S_STEP)))
        k('s_lshl_b32 %s, %s, 3' % (s(S_T0), s(S_T0)))
        k('s_add_u32 %s, %s, 0x%x' % (s(S_T0), s(S_T0), DBG + 0x120000))
        k('v_mov_b32 %s, 0' % v(T1 + 2))
        k('s_mov_b64 exec, 1')
        k('buffer_store_dwordx2 %s, %s, %s, %s offen' % (v(T1, 2), v(T1 + 2), s(S_WS, 4), s(S_T0)))
        k('s_mov_b64 exec, -1')
    if dump:
        k('s_lshl_b32 %s, %s, 13' % (s(S_T0), s(S_STEP)))
        k('s_lshl_b32 %s, %s, 11' % (s(S_T1), s(S_W)))
        k('s_add_u32 %s, %s, %s' % (s(S_T0), s(S_T0), s(S_T1)))
        k('s_add_u32 %s, %s, 0x%x' % (s(S_T0), s(S_T0), DBG))
        k('buffer_store_dwordx4 %s, %s, %s, %s offen' % (v(MEMF, 4), v(L16), s(S_WS, 4), s(S_T0)))
        k('buffer_store_dwordx4 %s, %s, %s, %s offen offset:1024' % (v(MEMF + 4, 4), v(L16), s(S_WS, 4), s(S_T0)))
    k('s_barrier'); R(3)
    pt('b1b')
    S('q', 1, 0); R(5)
    k('buffer_store_dword %s, %s, %s, %s offen sc1' % (v(HB), v(ST2), s(S_WS, 4), s(S_DEF)))
    if hasattr(k, 'hook_prefetch'): k.hook_prefetch()
    S('q', 1, 1); R(7); pf(0)
    S('k', 1, 0); RF(); S('k', 1, 1); RF()
    S('q', 3, 0); S('q', 3, 1); RF(); pf(1); S('q', 5, 0); RF(); S('q', 5, 1)
    S('q', 7, 0); RF(); S('q', 7, 1); RF(); pf(2)
    pt('Q')
    MXX, TA, PM = MEMF + 0, MEMF + 1, MEMF + 2
    AK = ACCQK + 8
    S('k', 3, 0); S('k', 3, 1); RF(); cvt(T1, ACCQK, ACCQK + 1)
    S('k', 5, 0); RF(); cvt(T1 + 1, ACCQK + 2, ACCQK + 3)
    S('k', 5, 1); pf(3); cvt(T1 + 2, ACCQK + 4, ACCQK + 5)
    S('k', 7, 0); RF(); cvt(T1 + 3, ACCQK + 6, ACCQK + 7)
    S('k', 7, 1); RF()
    pt('K')
    vq = [(2, 0), (1, 0), (3, 0), (1, 1), (3, 1), (4, 0), (5, 0), (5, 1), (7, 0), (7, 1)]
    def V(n=1):
        for _ in range(n):
            kap, j = vq.pop(0)
            S('v', kap, j)
    mf16(ACCQK, T1, SELT)
    k('s_add_u32 %s, %s, 0x80000' % (s(S_KV), s(S_KV)))
    mf16(ACCQK + 4, T1 + 2, SELT)
    cvt(T1 + 4, AK, AK + 1); cvt(T1 + 5, AK + 2, AK + 3)
    V(1); RF()
    cvt(T1 + 6, AK + 4, AK + 5); cvt(T1 + 7, AK + 6, AK + 7)
    mf16(AK, T1 + 4, SELT); RF()
    cvt(T1, ACCQK, ACCQK + 1); cvt(T1 + 1, ACCQK + 2, ACCQK + 3)
    mf16(AK + 4, T1 + 6, SELT)
    cvt(T1 + 2, ACCQK + 4, ACCQK + 5); cvt(T1 + 3, ACCQK + 6, ACCQK + 7)
    V(1)
    mf32(ACCQK, KVC, T1)
    cvt(T1 + 4, AK, AK + 1); cvt(T1 + 5, AK + 2, AK + 3)
    mf32(ACCQK + 4, KVC + 4, T1)
    cvt(T1 + 6, AK + 4, AK + 5); cvt(T1 + 7, AK + 6, AK + 7)
    V(1); RF()
    mf32(AK, T1 + 4, T1); RF()
    pt('sm')
    for j in range(4): sel(ACCQK + j, ACCQK + 4 + j)
    V(1)
    k('ds_write_b128 %s, %s offset:%d' % (v(L16W), v(ACCQK, 4), L_SX), tag='xw')
    sel(AK, AK + 2); sel(AK + 1, AK + 3)
    V(1)
    k('ds_write_b64 %s, %s' % (v(SMW), v(AK, 2)), tag='sw')
    pt('swr')
    WACC = MEMF + 16; OF = MEMF + 4
    V(1); RF(); V(1); RF(); V(3)
    assert not vq
    BAR('sw')
    pt('b2')
    XSR = [KVC, KVC + 4, ACCQK + 4]
    def XR(p): k('ds_read_b128 %s, %s offset:%d' % (v(XSR[p], 4), v(MEMR + p), L_SX), tag=('xs', p))
    MS = AK; XS = KVC
    XR(0); XR(1); XR(2)
    k('ds_read2_b64 %s, %s offset0:0 offset1:32' % (v(MS, 4), v(SMR)), tag='ms0')
    k('ds_read2_b64 %s, %s offset0:64 offset1:96' % (v(MS + 4, 4), v(SMR)), tag='ms1')
    k.wait_lg(('xs', 0))
    pkadd(XS, XS, ACCQK); pkadd(XS + 2, XS + 2, ACCQK + 2)
    k.wait_lg(('xs', 2))
    pkadd(ACCQK + 4, ACCQK + 4, XS + 4); pkadd(ACCQK + 6, ACCQK + 6, XS + 6)
    pkadd(XS, XS, ACCQK + 4); pkadd(XS + 2, XS + 2, ACCQK + 6)
    k.wait_lg('ms1')
    pkadd(MS, MS, MS + 2); pkadd(MS + 4, MS + 4, MS + 6)
    k('v_max3_f32 %s, %s, %s, %s' % (v(MXX), v(XS), v(XS + 1), v(XS + 2)))
    pkadd(MS, MS, MS + 4)
    pt('sums')
    k('v_max_f32 %s, %s, %s' % (v(MXX), v(MXX), v(XS + 3)))
    k('v_max3_f32 %s, %s, %s, %s' % (v(MXX), v(MXX), v(MS), v(MS + 1)))
    cvt(VM, ACCV, ACCV + 1); cvt(VM + 1, ACCV + 2, ACCV + 3)
    k('v_max_f32_dpp %s, %s, %s %s' % (v(MXX), v(MXX), v(MXX), ROR8))
    k('v_mov_b32 %s, %s' % (v(TA), v(MXX)))
    cvt(VM + 2, ACCV + 4, ACCV + 5); cvt(VM + 3, ACCV + 6, ACCV + 7)
    k('v_permlane16_swap_b32 %s, %s' % (v(MXX), v(TA)))
    k('v_max_f32 %s, %s, %s' % (v(MXX), v(MXX), v(TA)))
    k('v_mov_b32 %s, %s' % (v(TA), v(MXX)))
    mov64(WACC, '0'); mov64(WACC + 2, '0')
    k('v_permlane32_swap_b32 %s, %s' % (v(MXX), v(TA)))
    k('v_max_f32 %s, %s, %s' % (v(MXX), v(MXX), v(TA)))
    k('v_mul_f32 %s, %s, %s' % (v(MXX), s(S_C), v(MXX)))
    pt('max')
    def ex(d): k('v_exp_f32 %s, %s' % (v(d), v(d)))
    pkfma_c(XS, XS, MXX); pkfma_c(XS + 2, XS + 2, MXX); pkfma_c(MS, MS, MXX)
    for j in range(4): ex(XS + j)
    PX = T1
    ex(MS)
    cvt(PX, XS, XS + 1); cvt(PX + 1, XS + 2, XS + 3)
    ex(MS + 1)
    for j in range(2): k('v_mov_b32_dpp %s, %s %s' % (v(PX + 2 + j), v(PX + j), ROR8))
    cvt(PM, MS, MS + 1)
    pkadd(XS, XS, XS + 2)
    O0, O1 = ACCQK, ACCQK + 4
    LS = MXX
    mf32(O0, KVC + 8, PX)
    k('v_mov_b32_dpp %s, %s %s' % (v(PM + 1), v(PM), ROR8))
    add(MS, MS, MS + 1)
    mf32(O1, KVC + 12, PX)
    add(XS, XS, XS + 1)
    k('v_fma_f32 %s, %s, 0.5, %s' % (v(LS), v(MS), v(XS)))
    mf16(O0, VM, PM, O0)
    k('v_add_f32_dpp %s, %s, %s %s' % (v(LS), v(LS), v(LS), ROR8))
    k('v_mov_b32 %s, %s' % (v(TA), v(LS)))
    mf16(O1, VM + 2, PM, O1)
    pt('pv')
    k('v_permlane16_swap_b32 %s, %s' % (v(LS), v(TA)))
    add(LS, LS, TA)
    k('v_mov_b32 %s, %s' % (v(TA), v(LS)))
    mov64(WACC + 4, '0'); mov64(WACC + 6, '0')
    k('v_permlane32_swap_b32 %s, %s' % (v(LS), v(TA)))
    add(LS, LS, TA)
    k('v_rcp_f32 %s, %s' % (v(LS), v(LS)))
    mov64(WACC + 8, '0')
    pkmul_b(O0, O0, LS); pkmul_b(O0 + 2, O0 + 2, LS); pkmul_b(O1, O1, LS); pkmul_b(O1 + 2, O1 + 2, LS)
    for i in range(4): cvt(T1 + i, O0 + 2 * i, O0 + 2 * i + 1)
    k('ds_write_b128 %s, %s offset:%d' % (v(OW), v(T1, 4), L_OX), tag='ow')
    pt('owr')
    for j in range(4): k('v_mov_b32_dpp %s, %s row_ror:8 row_mask:0xf bank_mask:0xc' % (v(T1 + j), v(T1 + j)))
    for i in range(10, 16, 2): mov64(WACC + i, '0')
    for i in range(0, 8, 2): mov64(ACCV + i, '0')
    def WO(a_, kap):
        if kap: k.wait_lg(('of', kap))
        smf(('o', a_, kap), WACC + 4 * a_, T1 if kap == 0 else OF + 4 * (kap - 1))
    def OFR(kap): k('ds_read_b128 %s, %s offset:%d' % (v(OF + 4 * (kap - 1), 4), v(ORR[kap - 1]), L_OX), tag=('of', kap))
    k('s_mov_b32 %s, %s' % (s(S_DEF), s(S_KVM)))
    k('s_add_u32 %s, %s, 0x2000' % (s(S_KVM), s(S_KVM)))
    WO(0, 0); BAR('ow'); OFR(1)
    pt('b3')
    WO(1, 0); OFR(2)
    WO(2, 0); OFR(3)
    WO(3, 0); RF()
    PK = ACCQK
    def tag(r): k('v_bfi_b32 %s, 1, %s, %s' % (v(r), s(S_TAG), v(r)))
    WO(0, 1); RF(); mov64(ACCQK + 8, '0'); WO(1, 1); mov64(ACCQK + 10, '0')
    WO(0, 2); mov64(ACCQK + 12, '0'); WO(1, 2); RF(); mov64(ACCQK + 14, '0')
    WO(0, 3); RF(); WO(1, 3)
    pt('wo1')
    WO(2, 1); RF()
    WO(3, 1); RF()
    cvt(PK, WACC, WACC + 4); cvt(PK + 1, WACC + 1, WACC + 5); cvt(PK + 2, WACC + 2, WACC + 6); cvt(PK + 3, WACC + 3, WACC + 7); tag(PK)
    WO(2, 2)
    k('buffer_store_dwordx4 %s, %s, %s, %s offen' % (v(PK, 4), v(ST1), s(S_WS, 4), s(S_INW0)))
    pt('st1')
    RA = MEMF + 16
    WO(3, 2); mov64(RA, '0')
    WO(2, 3); mov64(RA + 2, '0')
    WO(3, 3); RF(2)
    k('s_mov_b32 %s, %d' % (s(S_SPIN), SPIN_MAX))
    k('s_add_u32 %s, %s, 0x2000' % (s(S_H2R), s(S_H2R)))
    k('s_and_b32 %s, %s, 0x%x' % (s(S_H2R), s(S_H2R), 0xffff7fff))
    k('s_add_u32 %s, %s, 1' % (s(S_STEP), s(S_STEP)))
    mov64(PK, '0'); mov64(PK + 2, '0')
    for j in range(4): cvt(PK + 4 + j, WACC + 8 + j, WACC + 12 + j)
    tag(PK + 4)
    k('buffer_store_dwordx4 %s, %s, %s, %s offen' % (v(PK + 4, 4), v(ST1), s(S_WS, 4), s(S_INW1)))
    pt('st2')
    assert len(used) == NS and not pend
    k.c('--- H1')
    def round1():
        k('buffer_load_dwordx4 %s, %s, %s, %s offen sc1' % (v(H1R, 4), v(L16), s(S_WS, 4), s(S_INR0)))
        k('buffer_load_dwordx4 %s, %s, %s, %s offen offset:1024 sc1' % (v(H1R + 4, 4), v(L16), s(S_WS, 4), s(S_INR0)))
    def ptacc():
        if opt.get('pt'):
            k.raw('  s_waitcnt lgkmcnt(0)')
            k('s_sub_u32 %s, %s, %s' % (s(S_T0), s(S_TS + 2), s(S_TS)))
            k('s_add_u32 %s, %s, %s' % (s(S_TS + 16), s(S_TS + 16), s(S_T0)))
    if opt.get('nohop'):
        if abl: k._one = k0
        ptacc()
        mov64(PK + 4, '0'); mov64(PK + 6, '0')
        k('s_waitcnt vmcnt(0) lgkmcnt(0)')
        k('s_barrier')
        k('s_cmp_eq_u32 %s, %d' % (s(S_STEP), nsteps - 1))
        k('s_cbranch_scc1 %s' % DONE)
        k('s_branch %s' % BODY0)
    k('s_cmp_lt_u32 %s, 2' % s(S_W))
    k('s_cbranch_scc1 L_early')
    nops(opt.get('late1', 32))
    k.label('L_early')
    mov64(PK + 4, '0'); mov64(PK + 6, '0')
    nops(opt.get('pre1', 8))
    for i in range(D1 - 1):
        round1(); nops(opt.get('gap1', 20))
    k('s_mov_b64 vcc, -1')
    k.label(RETRY1)
    k('s_mov_b64 exec, vcc')
    round1()
    if prof: k('s_add_u32 %s, %s, 0x10000' % (s(S_TS + 23), s(S_TS + 23)))
    k('s_sub_u32 %s, %s, 1' % (s(S_SPIN), s(S_SPIN)))
    k('s_cbranch_scc1 %s' % FAIL)
    k('s_waitcnt vmcnt(%d)' % (2 * (D1 - 1)))
    k('v_bitop3_b32 %s, %s, %s, %s bitop3:0x7e' % (v(HA), v(H1R), v(H1R + 4), s(S_TAG)))
    k('v_and_b32 %s, 1, %s' % (v(HA), v(HA)))
    k('v_cmp_ne_u32 vcc, 0, %s' % v(HA))
    k('s_cbranch_vccnz %s' % RETRY1)
    k('s_mov_b64 exec, -1')
    k('v_smfmac_f32_16x16x64_bf16 %s, %s, %s, %s' % (v(RA, 4), v(SELR, 4), v(H1R, 8), v(IDXR)))
    k('s_cmp_eq_u32 %s, %d' % (s(S_STEP), nsteps - 1))
    for i in range(0, 14, 2): mov64(KVC + i, v(KVN + i, 2))
    k('v_mov_b32 %s, -1' % v(HA))
    for rr in ('row_ror:4', 'row_ror:8'):
        for j in range(2):
            k('v_add_f32_dpp %s, %s, %s %s row_mask:0xf bank_mask:0xf' % (v(RA + j), v(RA + j), v(RA + j), rr))
    cvt(HB, RA, RA + 1)
    k('v_min_u32 %s, -2, %s' % (v(HB), v(HB)))
    k('s_cbranch_scc1 %s' % DONE)
    k('buffer_store_dword %s, %s, %s, %s offen' % (v(HB), v(ST2), s(S_WS, 4), s(S_H2W)))
    k('buffer_store_dword %s, %s, %s, %s offen' % (v(HA), v(ST2), s(S_WS, 4), s(S_H2RST)))
    pt('p1ok')
    mov64(KVC + 14, v(KVN + 14, 2))
    ptacc()
    k('s_xor_b32 %s, %s, 1' % (s(S_TAG), s(S_TAG)))
    for r in (S_H2W, S_H2RST):
        k('s_add_u32 %s, %s, 0x2000' % (s(r), s(r)))
        k('s_and_b32 %s, %s, 0x%x' % (s(r), s(r), 0xffff7fff))
    k('s_mov_b32 %s, %d' % (s(S_SPIN), SPIN_MAX))
    k('s_waitcnt lgkmcnt(0)')
    k('s_cmp_ge_u32 %s, 2' % s(S_W))
    k('s_cbranch_scc1 L_late2')
    nops(opt.get('early2', 32))
    k.label('L_late2')
    nops(opt.get('pre2', 0))
    for i in range(D2 - 1):
        ldE(); nops(opt.get('gap2', 12))
    k('s_mov_b64 vcc, -1')
    k('s_branch %s' % RETRY2)
    k.label(RETRY3)
    k('s_mov_b64 exec, vcc')
    ldO()
    if prof: k('s_add_u32 %s, %s, 0x100' % (s(S_TS + 22), s(S_TS + 22)))
    k('s_sub_u32 %s, %s, 1' % (s(S_SPIN), s(S_SPIN)))
    k('s_cbranch_scc1 %s' % FAIL)
    k('s_waitcnt vmcnt(0)')
    own(1)
    k('s_waitcnt lgkmcnt(0)')
    chk4(MEMF + 4)
    k('s_cbranch_vccnz %s' % RETRY3)
    k('s_mov_b64 exec, -1')
    k('s_branch %s' % RET3)
    k.label(DONE)
    k('buffer_store_dword %s, %s, %s, %s offen sc1' % (v(HB), v(ST2), s(S_WS, 4), s(S_DEF)))
    k.label('L_chain_exit')
```

```python
from fw import *
from layout import *
from chain import srd, f2u, S_WS, S_WQ, S_WK, S_WV, S_WO, S_DBG, S_H, S_W, S_SPIN, S_T0, S_T1, S_T2, SPIN_MAX
import math

S_X, S_AUX, S_OUT = 28, 36, 12
S_R, S_NSEG, S_I, S_XS, S_OO, S_XB, S_FL, S_SEG, S_GRP, S_TK = 42, 43, 44, 45, 46, 47, 48, 49, 50, 51
S_T3, S_T4 = 52, 53
S_M = 92
P_X, P_MEM0, P_WQ, P_WK, P_WV, P_WO, P_SEG, P_BX, P_WB, P_WOB, P_GW, P_OUT, P_DBG, P_WS = [64 + 2 * i for i in range(14)]
FAIL = 'L_fail'

LANE, L16, GA, TR, XG, XR, VZ, VT = 0, 1, 2, 3, 4, 5, 6, 7
L_STG = 65536; STG_STRIDE = 24576

def cvt(k, d, x, y): k('v_cvt_pk_bf16_f32 %s, %s, %s' % (v(d), v(x), v(y)))
def R(loc, r, n): return (a if loc[0] == 'a' else v)(loc[1] + r, n)

def poll_flags(k, soff_reg, nlanes, minval, name, stride=4, srdn=S_WS, sleep=8):
    L = k.newlabel('L_poll_' + name)
    k('v_mul_u32_u24 %s, %d, %s' % (v(VZ), stride, v(LANE)))
    k('s_mov_b32 %s, %d' % (s(S_SPIN), SPIN_MAX))
    k('s_mov_b32 exec_lo, 0x%x' % ((1 << nlanes) - 1))
    k('s_mov_b32 exec_hi, 0')
    k.label(L)
    k('buffer_load_dword %s, %s, %s, %s offen sc1' % (v(VT), v(VZ), s(srdn, 4), s(soff_reg)))
    k('s_sub_u32 %s, %s, 1' % (s(S_SPIN), s(S_SPIN)))
    k('s_cbranch_scc1 %s' % FAIL)
    k('s_waitcnt vmcnt(0)')
    k('v_cmp_gt_u32 vcc, %s, %s' % (minval, v(VT)))
    k('s_cbranch_vccz %s_ok' % L)
    k('s_sleep %d' % sleep)
    k('s_branch %s' % L)
    k.label(L + '_ok')
    k('s_mov_b64 exec, -1')

def set_flag(k, soff_reg, val, flags='sc1'):
    k('v_mov_b32 %s, %s' % (v(VT), val))
    k('v_mov_b32 %s, 0' % v(VZ))
    k('s_mov_b64 exec, 1')
    k('buffer_store_dword %s, %s, %s, %s offen %s' % (v(VT), v(VZ), s(S_WS, 4), s(soff_reg), flags))
    k('s_mov_b64 exec, -1')

def load_blocks(k, blocks, nslot):
    n = len(blocks)
    for i in range(min(nslot, n)):
        blocks[i]['issue']((i % nslot) * 4096, ('wl', i))
    for i in range(n):
        k.wait_vm(('wl', i))
        blocks[i]['read']((i % nslot) * 4096)
        k('s_waitcnt lgkmcnt(0)')
        if i + nslot < n:
            blocks[i + nslot]['issue']((i % nslot) * 4096, ('wl', i + nslot))

def setup_common(k):
    k('v_lshlrev_b32 %s, 4, %s' % (v(L16), v(LANE)))
    k('s_mul_i32 %s, %s, %d' % (s(S_T2), s(S_W), STG_STRIDE))
    k('s_add_u32 %s, %s, %d' % (s(S_T2), s(S_T2), L_STG))

def qkv_addr(k):
    k('v_lshrrev_b32 %s, 2, %s' % (v(VZ), v(LANE)))
    k('v_and_b32 %s, 3, %s' % (v(VT), v(LANE)))
    k('v_lshlrev_b32 %s, 4, %s' % (v(GA), v(VT)))
    k('v_lshl_add_u32 %s, %s, 13, %s' % (v(GA), v(VZ), v(GA)))
    k('s_lshl_b32 %s, %s, 8' % (s(S_T0), s(S_H)))
    k('s_lshl_b32 %s, %s, 6' % (s(S_T1), s(S_W)))
    k('s_add_u32 %s, %s, %s' % (s(S_T0), s(S_T0), s(S_T1)))
    k('v_add_u32 %s, %s, %s' % (v(GA), s(S_T0), v(GA)))
    k('v_lshrrev_b32 %s, 4, %s' % (v(TR), v(LANE)))
    k('v_lshlrev_b32 %s, 3, %s' % (v(TR), v(TR)))
    k('v_and_b32 %s, 3, %s' % (v(VZ), v(VZ)))
    k('v_add_u32 %s, %s, %s' % (v(TR), v(TR), v(VZ)))
    k('v_lshlrev_b32 %s, 6, %s' % (v(TR), v(TR)))
    k('v_lshl_add_u32 %s, %s, 3, %s' % (v(TR), v(VT), v(TR)))
    k('v_add_u32 %s, %s, %s' % (v(TR), s(S_T2), v(TR)))

def qkv_block(k, srdn, b, dest):
    def issue(off, tag):
        for i in range(4):
            k('s_mov_b32 %s, %d' % (s(S_T0), (64 * b + 16 * i) * 8192))
            k('s_add_u32 m0, %s, %d' % (s(S_T2), off + i * 1024))
            k('buffer_load_dwordx4 %s, %s, %s offen lds' % (v(GA), s(srdn, 4), s(S_T0)), tag=tag)
    def read(off):
        for k2 in range(2):
            for t in range(2):
                for hh in range(2):
                    k('ds_read_b64_tr_b16 %s, %s offset:%d' % (R(dest(t, 2 * b + k2), 2 * hh, 2), v(TR), off + (32 * k2 + 4 * hh) * 64 + 32 * t))
    return dict(issue=issue, read=read)

XG1, XR1 = 12, 13
def x_setup(k):
    k('v_lshrrev_b32 %s, 3, %s' % (v(VZ), v(LANE)))
    k('v_lshlrev_b32 %s, 10, %s' % (v(XG), v(VZ)))
    k('v_lshrrev_b32 %s, 4, %s' % (v(VZ), v(LANE)))
    k('v_and_b32 %s, 7, %s' % (v(VT), v(LANE)))
    k('v_xor_b32 %s, %s, %s' % (v(VT), v(VT), v(VZ)))
    k('v_lshl_add_u32 %s, %s, 4, %s' % (v(XG), v(VT), v(XG)))
    k('s_lshl_b32 %s, %s, 8' % (s(S_T0), s(S_W)))
    k('v_add_u32 %s, %s, %s' % (v(XG), s(S_T0), v(XG)))
    k('v_xor_b32 %s, 0x2040, %s' % (v(XG1), v(XG)))
    k('v_bfe_u32 %s, %s, 1, 3' % (v(VT), v(LANE)))
    k('v_xor_b32 %s, %s, %s' % (v(VT), v(VT), v(VZ)))
    k('v_and_b32 %s, 15, %s' % (v(VZ), v(LANE)))
    k('v_lshlrev_b32 %s, 7, %s' % (v(XR), v(VZ)))
    k('v_lshl_add_u32 %s, %s, 4, %s' % (v(XR), v(VT), v(XR)))
    k('v_xor_b32 %s, 64, %s' % (v(XR1), v(XR)))

def x_dma(k, tag):
    k('s_lshl_b32 %s, %s, 12' % (s(S_T0), s(S_W)))
    k('s_add_u32 %s, %s, %s' % (s(S_T0), s(S_T0), s(S_XB)))
    def one(T, j):
        k('s_add_u32 m0, %s, %d' % (s(S_T0), T * 16384 + j * 1024))
        k('s_add_u32 %s, %s, %d' % (s(S_T1), s(S_XS), T * 16384 + (j >> 1) * 128))
        k('buffer_load_dwordx4 %s, %s, %s offen lds' % (v(XG1 if j & 1 else XG), s(S_X, 4), s(S_T1)), tag=tag)
    def fin():
        k('s_add_u32 %s, %s, %d' % (s(S_XS), s(S_XS), 2 * 32768))
        k('s_min_u32 %s, %s, %d' % (s(S_XS), s(S_XS), 63 * 32768))
        k('s_add_u32 %s, %s, 0x8000' % (s(S_XB), s(S_XB)))
        k('s_cmp_eq_u32 %s, 0x%x' % (s(S_XB), NXB * 0x8000))
        k('s_cselect_b32 %s, 0, %s' % (s(S_XB), s(S_XB)))
    return [(lambda T=T, j=j: one(T, j)) for T in range(2) for j in range(4)] + [fin]
NXB = 4

def mfma32(d, A, B, first):
    return 'v_mfma_f32_16x16x32_bf16 %s, %s, %s, %s' % (v(d, 4), A, B, '0' if first else v(d, 4))

def proj(k, after_issue=None):
    k.c('===== projections =====')
    S_O0, S_O1, S_OST, S_KIND, S_PAR = S_OO, S_T3, S_T4, S_NSEG, S_SEG
    srd(k, S_X, P_X, 2 << 20)
    LB = k.newlabel('L_pj_b'); LJ = k.newlabel('L_pj_j'); LG = k.newlabel('L_pj_g'); LJ2 = k.newlabel('L_pj_j2')
    x_setup(k)
    qkv_addr(k)
    k('s_lshl_b32 %s, %s, 2' % (s(S_T0), s(S_H)))
    k('s_add_u32 %s, %s, %s' % (s(S_T0), s(S_T0), s(S_W)))
    k('s_lshl_b32 %s, %s, 3' % (s(S_FL), s(S_T0)))
    k('s_add_u32 %s, %s, %s' % (s(S_FL), s(S_FL), s(S_R)))
    k('s_lshl_b32 %s, %s, 4' % (s(S_FL), s(S_FL)))
    k('s_add_u32 %s, %s, 0x%x' % (s(S_FL), s(S_FL), F_KV))
    k('s_cmp_eq_u32 %s, 6' % s(S_R))
    k('s_cbranch_scc1 %s' % LB)
    k('s_and_b32 %s, %s, 1' % (s(S_PAR), s(S_R)))
    k('s_lshr_b32 %s, %s, 1' % (s(S_T1), s(S_R)))
    k('s_cmp_eq_u32 %s, 0' % s(S_T1))
    k('s_cselect_b64 %s, %s, %s' % (s(4, 2), s(P_WK, 2), s(P_WV, 2)))
    k('s_cmp_eq_u32 %s, 2' % s(S_T1))
    k('s_cselect_b64 %s, %s, %s' % (s(4, 2), s(P_WQ, 2), s(4, 2)))
    srd(k, S_AUX, 4, 4 << 20)
    k('s_cselect_b32 %s, 0x40000, 0x80000' % s(S_OST)) if False else None
    k('s_mov_b32 %s, 0x80000' % s(S_OST))
    k('s_lshl_b32 %s, %s, 12' % (s(S_O0), s(S_T0)))
    k('s_and_b32 %s, %s, 1' % (s(S_KIND), s(S_T1)))
    k('s_lshl_b32 %s, %s, 11' % (s(S_O1), s(S_KIND)))
    k('s_add_u32 %s, %s, %s' % (s(S_O0), s(S_O0), s(S_O1)))
    k('s_cmp_lg_u32 %s, 2' % s(S_T1))
    k('s_cbranch_scc1 %s_q' % LB)
    k('s_lshl_b32 %s, %s, 11' % (s(S_O0), s(S_T0)))
    k('s_add_u32 %s, %s, 0x%x' % (s(S_O0), s(S_O0), QX))
    k('s_mov_b32 %s, 0x40000' % s(S_OST))
    k.label(LB + '_q')
    k('s_add_u32 %s, %s, 1024' % (s(S_O1), s(S_O0)))
    k('s_mov_b32 s5, 8192')
    k('s_branch %s' % LJ)
    k.label(LB)
    k('s_and_b32 %s, %s, 1' % (s(S_PAR), s(S_H)))
    srd(k, S_AUX, P_WB, 512 * 3072)
    k('s_and_b32 %s, %s, 30' % (s(S_T1), s(S_H)))
    k('s_lshl_b32 %s, %s, 12' % (s(S_O0), s(S_T1)))
    k('s_lshl_b32 %s, %s, 10' % (s(S_T0), s(S_W)))
    k('s_add_u32 %s, %s, %s' % (s(S_O0), s(S_O0), s(S_T0)))
    k('s_add_u32 %s, %s, 0x%x' % (s(S_O0), s(S_O0), BX))
    k('s_add_u32 %s, %s, 4096' % (s(S_O1), s(S_O0)))
    k('s_mov_b32 %s, 0x20000' % s(S_OST))
    k('s_cmp_eq_u32 %s, 2' % s(S_W))
    k('s_cselect_b32 %s, 1, 2' % s(S_KIND))
    k('s_cmp_eq_u32 %s, 3' % s(S_W))
    k('s_cselect_b32 %s, 3, %s' % (s(S_KIND), s(S_KIND)))
    k('v_lshrrev_b32 %s, 2, %s' % (v(VZ), v(LANE)))
    k('v_mul_u32_u24 %s, 3072, %s' % (v(GA), v(VZ)))
    k('v_and_b32 %s, 3, %s' % (v(VT), v(LANE)))
    k('v_lshl_add_u32 %s, %s, 4, %s' % (v(GA), v(VT), v(GA)))
    k('s_min_u32 %s, %s, 2048' % (s(S_T0), s(S_T0)))
    k('s_lshl_b32 %s, %s, 5' % (s(S_T1), s(S_T1)))
    k('s_add_u32 %s, %s, %s' % (s(S_T0), s(S_T0), s(S_T1)))
    k('v_add_u32 %s, %s, %s' % (v(GA), s(S_T0), v(GA)))
    k('s_mov_b32 s5, 3072')
    k.label(LJ)
    k('s_lshl_b32 s5, s5, 4')
    k('s_mul_i32 %s, %s, %s' % (s(S_T0), s(S_PAR), s(S_OST)))
    k('s_add_u32 %s, %s, %s' % (s(S_O0), s(S_O0), s(S_T0)))
    k('s_add_u32 %s, %s, %s' % (s(S_O1), s(S_O1), s(S_T0)))
    k('s_lshl_b32 %s, %s, 1' % (s(S_OST), s(S_OST)))
    dW = lambda t, ks: ('a', (t * 16 + ks) * 4)
    k('s_lshl_b32 s4, %s, 15' % s(S_W))
    k('v_subrev_u32 %s, %s, %s' % (v(TR), s(S_T2), v(TR)))
    k('v_add_u32 %s, s4, %s' % (v(TR), v(TR)))
    k('s_mov_b32 %s, 0' % s(S_T0))
    for i in range(32):
        k('s_add_u32 m0, s4, %d' % (i * 1024))
        k('buffer_load_dwordx4 %s, %s, %s offen lds' % (v(GA), s(S_AUX, 4), s(S_T0)), tag=('wl', i // 4))
        k('s_add_u32 %s, %s, s5' % (s(S_T0), s(S_T0)))
    k('s_lshl_b32 %s, %s, 15' % (s(S_XS), s(S_PAR)))
    if after_issue: after_issue()
    for b in range(8):
        k.wait_vm(('wl', b))
        for k2 in range(2):
            for t in range(2):
                for hh in range(2):
                    k('ds_read_b64_tr_b16 %s, %s offset:%d' % (R(dW(t, 2 * b + k2), 2 * hh, 2), v(TR), b * 4096 + (32 * k2 + 4 * hh) * 64 + 32 * t))
        if b % 2: k('s_waitcnt lgkmcnt(0)')
    k('s_cmp_lg_u32 %s, 3' % s(S_KIND))
    k('s_cbranch_scc1 %s' % LJ2)
    srd(k, S_WQ, P_GW, 1024)
    k('v_lshrrev_b32 %s, 4, %s' % (v(GA), v(LANE)))
    k('v_lshlrev_b32 %s, 4, %s' % (v(GA), v(GA)))
    for ks in range(16):
        k('buffer_load_dwordx4 %s, %s, %s, 0 offen offset:%d' % (R(dW(0, ks), 0, 4), v(GA), s(S_WQ, 4), ks * 64))
    k.label(LJ2)
    k('s_waitcnt vmcnt(0)')
    if hasattr(k, 'stampw'): k.stampw(7)
    k('s_barrier')
    if hasattr(k, 'after_wload'): k.after_wload()
    k('s_mov_b32 %s, 0' % s(S_XB))
    k('s_mov_b32 %s, 0' % s(S_I))
    for i in range(NXB - 1):
        for f in x_dma(k, 'x'): f()
    ACC, XF, PKR = 16, 48, 72
    k('s_waitcnt vmcnt(0)')
    k('s_cmp_eq_u32 %s, 1' % s(S_KIND))
    k('s_cbranch_scc1 L_pj_td')
    for name in ('dt', 'td'):
        L = 'L_pj_' + name
        k.label(L)
        k.vm = []; k.lg = []
        k('s_waitcnt vmcnt(22)')
        k('s_barrier')
        dq = x_dma(k, 'x')
        def rd(ks):
            for T in range(2):
                k('ds_read_b128 %s, %s offset:%d' % (v(XF + 8 * (ks % 3) + 4 * T, 4), v(XR1 if ks & 1 else XR), T * 16384 + (ks >> 1) * 2048), tag=('xf', ks))
        rd(0); rd(1)
        for ks in range(16):
            k.wait_lg(('xf', ks))
            xf = XF + 8 * (ks % 3)
            n = 0
            for T in range(2):
                for t in range(2):
                    if name == 'dt': k(mfma32(ACC + 4 * (2 * T + t), R(dW(t, ks), 0, 4), v(xf + 4 * T, 4), ks == 0))
                    else: k(mfma32(ACC + 4 * (2 * t + T), v(xf + 4 * T, 4), R(dW(t, ks), 0, 4), ks == 0))
                    if n == 0 and ks + 2 < 16: rd(ks + 2)
                    if n == 2 and dq: dq.pop(0)()
                    n += 1
            if ks == 12:
                k('s_sub_i32 %s, %s, 1' % (s(S_T1), s(S_I)))
                k('s_max_i32 %s, %s, 0' % (s(S_T1), s(S_T1)))
                k('s_lshl1_add_u32 %s, %s, %s' % (s(S_T1), s(S_T1), s(S_PAR)))
                k('s_waitcnt vmcnt(19)')
                set_flag(k, S_FL, s(S_T1))
        LS = k.newlabel('L_es')
        if name == 'dt':
            L2 = k.newlabel('L_e2'); L3 = k.newlabel('L_e3')
            k('s_cmp_eq_u32 %s, 2' % s(S_KIND))
            k('s_cbranch_scc1 %s' % L2)
            k('s_cmp_eq_u32 %s, 3' % s(S_KIND))
            k('s_cbranch_scc1 %s' % L3)
        for i in range(8): cvt(k, PKR + i, ACC + 2 * i, ACC + 2 * i + 1)
        k.label(LS)
        k('buffer_store_dwordx4 %s, %s, %s, %s offen sc1' % (v(PKR, 4), v(L16), s(S_WS, 4), s(S_O0)))
        k('buffer_store_dwordx4 %s, %s, %s, %s offen sc1' % (v(PKR + 4, 4), v(L16), s(S_WS, 4), s(S_O1)))
        k('s_add_u32 %s, %s, %s' % (s(S_O0), s(S_O0), s(S_OST)))
        k('s_add_u32 %s, %s, %s' % (s(S_O1), s(S_O1), s(S_OST)))
        k('v_add_u32 %s, 0x8000, %s' % (v(XR), v(XR)))
        k('v_and_b32 %s, 0x%x, %s' % (v(XR), NXB * 0x8000 - 1, v(XR)))
        k('v_xor_b32 %s, 64, %s' % (v(XR1), v(XR)))
        k('s_add_u32 %s, %s, 1' % (s(S_I), s(S_I)))
        k('s_cmp_lt_u32 %s, 32' % s(S_I))
        k('s_cbranch_scc1 %s' % L)
        k('s_branch L_pj_end')
        if name == 'dt':
            k.label(L2)
            k.flush(6)
            for t in range(2):
                for T in range(2):
                    for i in range(2):
                        cvt(k, PKR + 4 * t + 2 * T + i, ACC + 4 * (2 * T + t) + 2 * i, ACC + 4 * (2 * T + t) + 2 * i + 1)
            k('s_branch %s' % LS)
            k.label(L3)
            k.flush(6)
            P3 = PKR
            cvt(k, P3, ACC, ACC + 8)
            k('v_lshlrev_b32 %s, 16, %s' % (v(P3 + 2), v(P3)))
            k('v_and_b32 %s, 0xffff0000, %s' % (v(P3 + 3), v(P3)))
            for i in (2, 3): k('v_mul_f32 %s, 0x%x, %s' % (v(P3 + i), f2u(-math.log2(math.e)), v(P3 + i)))
            for i in (2, 3): k('v_exp_f32 %s, %s' % (v(P3 + i), v(P3 + i)))
            for i in (2, 3): k('v_add_f32 %s, 1.0, %s' % (v(P3 + i), v(P3 + i)))
            for i in (2, 3): k('v_rcp_f32 %s, %s' % (v(P3 + i), v(P3 + i)))
            cvt(k, P3 + 1, P3 + 2, P3 + 3)
            k('v_lshlrev_b32 %s, 16, %s' % (v(P3), v(P3 + 1)))
            k('v_and_b32 %s, 0xffff0000, %s' % (v(P3 + 1), v(P3 + 1)))
            k('v_sub_f32 %s, 1.0, %s' % (v(P3 + 2), v(P3)))
            k('v_sub_f32 %s, 1.0, %s' % (v(P3 + 3), v(P3 + 1)))
            cvt(k, P3 + 3, P3 + 2, P3 + 3)
            k('v_lshlrev_b32 %s, 16, %s' % (v(P3 + 2), v(P3 + 3)))
            k('v_and_b32 %s, 0xffff0000, %s' % (v(P3 + 3), v(P3 + 3)))
            for i in range(4): k('v_mov_b32 %s, %s' % (v(P3 + 4 + i), v(P3 + i)))
            k('s_branch %s' % LS)
    k.label('L_pj_end')
    k('s_waitcnt vmcnt(0)')
    set_flag(k, S_FL, '64')
    k('s_cmp_eq_u32 %s, 0' % s(S_R))
    k('s_cselect_b32 %s, 10, 9' % s(S_NSEG))

def diag_masks(k):
    k('v_lshrrev_b32 %s, 4, %s' % (v(VZ), v(LANE)))
    k('v_lshlrev_b32 %s, 2, %s' % (v(VZ), v(VZ)))
    k('v_and_b32 %s, 15, %s' % (v(VT), v(LANE)))
    k('v_sub_u32 %s, %s, %s' % (v(VT), v(VT), v(VZ)))
    for j in range(4):
        k('v_cmp_le_i32 %s, %d, %s' % (s(S_M + 2 * j, 2), j, v(VT)))

def xreduce(k, op, X, T):
    for sw in ('v_permlane16_swap_b32', 'v_permlane32_swap_b32'):
        k('v_mov_b32 %s, %s' % (v(T), v(X)))
        k('%s %s, %s' % (sw, v(X), v(T)))
        k('%s %s, %s, %s' % (op, v(X), v(X), v(T)))

def round_bf16(k, regs, T):
    for i in range(0, len(regs), 2):
        x, y = regs[i], regs[i + 1]
        cvt(k, y, x, y)
        k('v_lshlrev_b32 %s, 16, %s' % (v(x), v(y)))
        k('v_and_b32 %s, 0xffff0000, %s' % (v(y), v(y)))

def battn(k, waitflags=True):
    k.c('===== B-branch sliding window attention =====')
    if waitflags:
        k('s_and_b32 %s, %s, 30' % (s(S_T3), s(S_H)))
        k('s_lshl_b32 %s, %s, 9' % (s(S_T3), s(S_T3)))
        k('s_add_u32 %s, %s, 0x%x' % (s(S_T3), s(S_T3), F_KV + 96))
        poll_flags(k, S_T3, 8, '64', 'd2', stride=128)
    diag_masks(k)
    QB, KB, VB, SC, NEG, MX, TT, LSUM, OO = 8, 12, 48, 84, 228, 230, 232, 234, 236
    def sc(j, kt, T): return SC + 4 * ((j * 2 + kt) * 2 + T)
    k('v_mov_b32 %s, 0xff800000' % v(NEG))
    k('s_mov_b32 %s, %s' % (s(S_I), s(S_W)))
    LOOP = 'L_ba_loop'; END = 'L_ba_end'
    k.label(LOOP)
    k('s_cmp_ge_u32 %s, %s' % (s(S_I), s(S_NSEG)))
    k('s_cbranch_scc1 %s' % END)
    k('s_mul_i32 %s, %s, 7' % (s(S_SEG), s(S_I)))
    k('s_add_u32 %s, %s, %s' % (s(S_SEG), s(S_SEG), s(S_R)))
    k.vm = []
    k('s_lshl_b32 %s, %s, 12' % (s(S_T3), s(S_H)))
    k('s_add_u32 %s, %s, 0x%x' % (s(S_T3), s(S_T3), BX))
    k('s_lshl_b32 %s, %s, 17' % (s(S_T0), s(S_SEG)))
    k('s_add_u32 %s, %s, %s' % (s(S_T0), s(S_T0), s(S_T3)))
    k('buffer_load_dwordx4 %s, %s, %s, %s offen sc1' % (v(QB, 4), v(L16), s(S_WS, 4), s(S_T0)), tag='q')
    for j in range(9):
        k('s_sub_i32 %s, %s, %d' % (s(S_T0), s(S_SEG), 8 - j))
        k('s_max_i32 %s, %s, 0' % (s(S_T0), s(S_T0)))
        k('s_lshl_b32 %s, %s, 17' % (s(S_T0), s(S_T0)))
        k('s_add_u32 %s, %s, %s' % (s(S_T0), s(S_T0), s(S_T3)))
        k('buffer_load_dwordx4 %s, %s, %s, %s offen offset:1024 sc1' % (v(KB + 4 * j, 4), v(L16), s(S_WS, 4), s(S_T0)), tag=('k', j))
        k('buffer_load_dwordx4 %s, %s, %s, %s offen offset:2048 sc1' % (v(VB + 4 * j, 4), v(L16), s(S_WS, 4), s(S_T0)), tag=('v', j))
    dead = {(0, 0, 1), (8, 1, 0)}
    for j in range(9):
        k.wait_vm(('k', j))
        for kt in range(2):
            for T in range(2):
                if (j, kt, T) in dead: continue
                k('v_mfma_f32_16x16x16_bf16 %s, %s, %s, 0' % (v(sc(j, kt, T), 4), v(KB + 4 * j + 2 * kt, 2), v(QB + 2 * T, 2)))
    k.flush(9)
    for T in range(2):
        for jj in range(4):
            k('v_cndmask_b32 %s, %s, %s, %s' % (v(sc(8, T, T) + jj), v(NEG), v(sc(8, T, T) + jj), s(S_M + 2 * jj, 2)))
            k('v_cndmask_b32 %s, %s, %s, %s' % (v(sc(0, T, T) + jj), v(sc(0, T, T) + jj), v(NEG), s(S_M + 2 * jj, 2)))
    LV = k.newlabel('L_ba_valid')
    for j in range(8):
        k('s_cmp_ge_u32 %s, %d' % (s(S_SEG), 8 - j))
        k('s_cbranch_scc1 %s' % LV)
        for r in range(16):
            k('v_mov_b32 %s, %s' % (v(sc(j, 0, 0) + r), v(NEG)))
    k.label(LV)
    c = 0.25 * math.log2(math.e)
    k('s_mov_b32 %s, 0x%x' % (s(S_T4), f2u(c)))
    for T in range(2):
        regs = [sc(j, kt, T) + r for j in range(9) for kt in range(2) if (j, kt, T) not in dead for r in range(4)]
        round_bf16(k, regs, TT)
        k('v_max3_f32 %s, %s, %s, %s' % (v(MX), v(regs[0]), v(regs[1]), v(regs[2])))
        k('v_max3_f32 %s, %s, %s, %s' % (v(MX + 1), v(regs[3]), v(regs[4]), v(regs[5])))
        rest = regs[6:]
        for i in range(0, len(rest), 2):
            m = MX + ((i >> 1) & 1)
            k('v_max3_f32 %s, %s, %s, %s' % (v(m), v(m), v(rest[i]), v(rest[i + 1])))
        k('v_max_f32 %s, %s, %s' % (v(MX), v(MX), v(MX + 1)))
        xreduce(k, 'v_max_f32', MX, TT)
        k('v_mul_f32 %s, %s, %s' % (v(MX), s(S_T4), v(MX)))
        for r in regs: k('v_fma_f32 %s, %s, %s, -%s' % (v(r), v(r), s(S_T4), v(MX)))
        for r in regs: k('v_exp_f32 %s, %s' % (v(r), v(r)))
        k('v_add_f32 %s, %s, %s' % (v(LSUM), v(regs[0]), v(regs[1])))
        k('v_add_f32 %s, %s, %s' % (v(LSUM + 1), v(regs[2]), v(regs[3])))
        for i, r in enumerate(regs[4:]):
            m = LSUM + (i & 1)
            k('v_add_f32 %s, %s, %s' % (v(m), v(m), v(r)))
        k('v_add_f32 %s, %s, %s' % (v(LSUM), v(LSUM), v(LSUM + 1)))
        xreduce(k, 'v_add_f32', LSUM, TT)
        k('v_rcp_f32 %s, %s' % (v(LSUM), v(LSUM)))
        for r in regs: k('v_mul_f32 %s, %s, %s' % (v(r), v(r), v(LSUM)))
        for j in range(9):
            d = sc(j, 0, T)
            for kt in range(2):
                if (j, kt, T) in dead:
                    k('v_mov_b32 %s, 0' % v(d + 2 * kt)); k('v_mov_b32 %s, 0' % v(d + 2 * kt + 1))
                else:
                    b = sc(j, kt, T)
                    cvt(k, d + 2 * kt, b, b + 1); cvt(k, d + 2 * kt + 1, b + 2, b + 3)
        if T == 0: k('s_waitcnt vmcnt(0)')
        for j in range(9):
            k(mfma32(OO + 4 * T, v(VB + 4 * j, 4), v(sc(j, 0, T), 4), j == 0))
    for i in range(4): cvt(k, QB + i, OO + 2 * i, OO + 2 * i + 1)
    k('s_lshl_b32 %s, %s, 5' % (s(S_T0), s(S_SEG)))
    k('s_add_u32 %s, %s, %s' % (s(S_T0), s(S_T0), s(S_H)))
    k('s_lshl_b32 %s, %s, 10' % (s(S_T0), s(S_T0)))
    k('s_add_u32 %s, %s, 0x%x' % (s(S_T0), s(S_T0), OB))
    k('buffer_store_dwordx4 %s, %s, %s, %s offen sc1' % (v(QB, 4), v(L16), s(S_WS, 4), s(S_T0)))
    k('s_add_u32 %s, %s, 4' % (s(S_I), s(S_I)))
    k('s_waitcnt vmcnt(0)')
    k('s_branch %s' % LOOP)
    k.label(END)
    k('s_barrier')
    k('s_lshl_b32 %s, %s, 3' % (s(S_FL), s(S_H)))
    k('s_add_u32 %s, %s, %s' % (s(S_FL), s(S_FL), s(S_R)))
    k('s_lshl_b32 %s, %s, 2' % (s(S_FL), s(S_FL)))
    k('s_add_u32 %s, %s, 0x%x' % (s(S_FL), s(S_FL), F_D3))
    set_flag(k, S_FL, '1')

def phaseB(k, waitflags=True, opt={}):
    k.c('===== phase B =====')
    srd(k, S_WO, P_WO, 4 << 20); srd(k, S_AUX, P_WOB, 512 * 1024); srd(k, S_OUT, P_OUT, 2 << 20)
    srd(k, S_WK, P_WK, 4 << 20); srd(k, S_WV, P_WV, 4 << 20)
    k('s_barrier')
    GA2, ST, OA, LW2, LW1, TRQ, GQ, HOME = 8, 9, 10, 11, 12, 13, 14, 15
    WOV, WBF, ACC, MEMF, AKV, QF, KF, VF, SX, OBG, T8, SELT, IDX, NEG, MX, TT, LS = 16, 112, 128, 160, 192, 208, 212, 220, 228, 236, 240, 248, 250, 251, 252, 253, 254
    L_MEM, L_SXX, L_SMX, L_OX, L_HOME = 0, 8192, 16384, 20480, 32768
    qkv_addr(k)
    k('v_mov_b32 %s, %s' % (v(GQ), v(GA)))
    k('v_bfe_u32 %s, %s, 5, 1' % (v(VZ), v(LANE)))
    k('v_lshlrev_b32 %s, 4, %s' % (v(TRQ), v(VZ)))
    for (bit, sh) in ((4, 2), (3, 3), (2, 0)):
        k('v_bfe_u32 %s, %s, %d, 1' % (v(VZ), v(LANE), bit))
        k('v_lshl_add_u32 %s, %s, %d, %s' % (v(TRQ), v(VZ), sh, v(TRQ)))
    k('v_lshrrev_b32 %s, 2, %s' % (v(VZ), v(LANE)))
    k('v_and_b32 %s, 3, %s' % (v(VT), v(LANE)))
    k('v_lshlrev_b32 %s, 6, %s' % (v(TRQ), v(TRQ)))
    k('v_lshl_add_u32 %s, %s, 3, %s' % (v(TRQ), v(VT), v(TRQ)))
    k('v_add_u32 %s, %s, %s' % (v(TRQ), s(S_T2), v(TRQ)))
    k('v_lshlrev_b32 %s, 4, %s' % (v(GA), v(VT)))
    k('v_lshl_add_u32 %s, %s, 10, %s' % (v(GA), v(VZ), v(GA)))
    k('s_lshl_b32 %s, %s, 8' % (s(S_T1), s(S_W)))
    k('s_lshl_b32 %s, %s, 14' % (s(S_T0), s(S_H)))
    k('s_add_u32 %s, %s, %s' % (s(S_T0), s(S_T0), s(S_T1)))
    k('v_add_u32 %s, %s, %s' % (v(GA2), s(S_T0), v(GA)))
    k('s_lshl_b32 %s, %s, 17' % (s(S_T0), s(S_H)))
    k('s_add_u32 %s, %s, %s' % (s(S_T0), s(S_T0), s(S_T1)))
    k('v_add_u32 %s, %s, %s' % (v(GA), s(S_T0), v(GA)))
    k('v_lshlrev_b32 %s, 6, %s' % (v(TR), v(VZ)))
    k('v_lshl_add_u32 %s, %s, 3, %s' % (v(TR), v(VT), v(TR)))
    k('v_add_u32 %s, %s, %s' % (v(TR), s(S_T2), v(TR)))
    k('s_lshl_b32 %s, %s, 13' % (s(S_T0), s(S_W)))
    k('v_add_u32 %s, %s, %s' % (v(HOME), s(S_T0), v(L16)))
    k('s_lshl_b32 %s, %s, 11' % (s(S_T0), s(S_W)))
    k('v_add_u32 %s, %s, %s' % (v(LW2), s(S_T0), v(L16)))
    k('s_lshl_b32 %s, %s, 10' % (s(S_T0), s(S_W)))
    k('v_add_u32 %s, %s, %s' % (v(LW1), s(S_T0), v(L16)))
    wof = lambda dt, kk: (WOV + (dt * 4 + kk) * 4) if dt < 6 else (MEMF + ((dt - 6) * 4 + kk) * 4)
    wkv = lambda m, ks, t: ((m * 8 + ks) * 2 + t) * 8
    bl = []
    for be in range(2):
        for dp in range(4):
            def issue(off, tag, dp=dp, be=be):
                for i in range(4):
                    k('s_mov_b32 %s, %d' % (s(S_T0), (64 * be + 16 * i) * 1024 + dp * 64))
                    k('s_add_u32 m0, %s, %d' % (s(S_T2), off + i * 1024))
                    k('buffer_load_dwordx4 %s, %s, %s offen lds' % (v(GA), s(S_WO, 4), s(S_T0)), tag=tag)
            def read(off, dp=dp, be=be):
                for k2 in range(2):
                    for t in range(2):
                        for hh in range(2):
                            k('ds_read_b64_tr_b16 %s, %s offset:%d' % (v(wof(2 * dp + t, 2 * be + k2) + 2 * hh, 2), v(TR), off + (32 * k2 + 16 * hh) * 64 + 32 * t))
            bl.append(dict(issue=issue, read=read))
    def issueB(off, tag):
        for dp in range(4):
            k('s_mov_b32 %s, %d' % (s(S_T0), dp * 64))
            k('s_add_u32 m0, %s, %d' % (s(S_T2), off + dp * 1024))
            k('buffer_load_dwordx4 %s, %s, %s offen lds' % (v(GA2), s(S_AUX, 4), s(S_T0)), tag=tag)
    def readB(off):
        for dp in range(4):
            for t in range(2):
                k('ds_read_b64_tr_b16 %s, %s offset:%d' % (v(WBF + 2 * (2 * dp + t), 2), v(TR), off + dp * 1024 + 32 * t))
    bl.append(dict(issue=issueB, read=readB))
    for m in range(2):
        for ks in range(8):
            def issue(off, tag, m=m, ks=ks):
                for i in range(4):
                    k('s_mov_b32 %s, %d' % (s(S_T0), (64 * ks + 16 * i) * 8192))
                    k('s_add_u32 m0, %s, %d' % (s(S_T2), off + i * 1024))
                    k('buffer_load_dwordx4 %s, %s, %s offen lds' % (v(GQ), s((S_WK, S_WV)[m], 4), s(S_T0)), tag=tag)
            def read(off, m=m, ks=ks):
                for t in range(2):
                    for H in range(2):
                        for Q in range(2):
                            k('ds_read_b64_tr_b16 %s, %s offset:%d' % (a(wkv(m, ks, t) + 4 * H + 2 * Q, 2), v(TRQ), off + (32 * H + 2 * Q) * 64 + 32 * t))
            bl.append(dict(issue=issue, read=read))
    load_blocks(k, bl, 6)
    if hasattr(k, 'stampw'): k.stampw(2)
    for i in range(8):
        k('ds_write_b128 %s, %s offset:%d' % (v(HOME), v(MEMF + 4 * i, 4), L_HOME + 1024 * i))
    diag_masks(k)
    k('v_and_b32 %s, 15, %s' % (v(VT), v(LANE)))
    k('v_lshrrev_b32 %s, 4, %s' % (v(VZ), v(LANE)))
    k('v_cmp_gt_u32 vcc, 8, %s' % v(VT))
    k('v_mov_b32 %s, 0xeeee' % v(IDX))
    k('v_mov_b32 %s, 0x4444' % v(TT))
    k('v_cndmask_b32 %s, %s, %s, vcc' % (v(IDX), v(IDX), v(TT)))
    k('v_lshlrev_b32 %s, 4, %s' % (v(ST), v(VT)))
    k('v_lshl_add_u32 %s, %s, 13, %s' % (v(ST), v(VZ), v(ST)))
    k('v_lshlrev_b32 %s, 10, %s' % (v(OA), v(VT)))
    k('v_lshrrev_b32 %s, 5, %s' % (v(TT), v(LANE)))
    k('v_lshl_add_u32 %s, %s, 2, %s' % (v(OA), v(TT), v(OA)))
    k('s_lshl_b32 %s, %s, 5' % (s(S_T0), s(S_H)))
    k('s_lshl_b32 %s, %s, 3' % (s(S_T1), s(S_W)))
    k('s_add_u32 %s, %s, %s' % (s(S_T0), s(S_T0), s(S_T1)))
    k('v_add_u32 %s, %s, %s' % (v(OA), s(S_T0), v(OA)))
    k('v_and_b32 %s, 16, %s' % (v(TT), v(LANE)))
    k('v_cmp_eq_u32 vcc, 0, %s' % v(TT))
    k('v_bfrev_b32 %s, 1' % v(TT))
    k('v_cndmask_b32 %s, %s, %s, vcc' % (v(OA), v(TT), v(OA)))
    k('v_and_b32 %s, 1, %s' % (v(VZ), v(VZ)))
    k('v_lshlrev_b32 %s, 2, %s' % (v(VZ), v(VZ)))
    k('v_and_b32 %s, 7, %s' % (v(VT), v(LANE)))
    k('v_sub_u32 %s, %s, %s' % (v(VT), v(VT), v(VZ)))
    k('v_mov_b32 %s, 0x3f80' % v(MX))
    k('v_mov_b32 %s, 0x3f800000' % v(TT))
    for r in range(2):
        k('v_mov_b32 %s, 0' % v(SELT + r))
        k('v_cmp_eq_u32 vcc, %d, %s' % (2 * r, v(VT)))
        k('v_cndmask_b32 %s, %s, %s, vcc' % (v(SELT + r), v(SELT + r), v(MX)))
        k('v_cmp_eq_u32 vcc, %d, %s' % (2 * r + 1, v(VT)))
        k('v_cndmask_b32 %s, %s, %s, vcc' % (v(SELT + r), v(SELT + r), v(TT)))
    k('v_mov_b32 %s, 0xff800000' % v(NEG))
    if waitflags:
        k('s_lshl_b32 %s, %s, 5' % (s(S_T3), s(S_H)))
        k('s_add_u32 %s, %s, 0x%x' % (s(S_T3), s(S_T3), F_D3))
        poll_flags(k, S_T3, 7, '1', 'd3')
    S_PBW, S_PBR, S_PF, S_PFS, S_U, S_T = S_XS, S_XB, S_FL, S_TK, S_R, S_NSEG
    k('s_lshl_b32 %s, %s, 21' % (s(S_T0), s(S_GRP)))
    k('s_add_u32 %s, %s, 0x%x' % (s(S_T0), s(S_T0), PB))
    k('s_lshl_b32 %s, %s, 18' % (s(S_PBW), s(S_W)))
    k('s_add_u32 %s, %s, %s' % (s(S_PBW), s(S_PBW), s(S_T0)))
    k('s_lshl_b32 %s, %s, 8' % (s(S_T1), s(S_H)))
    k('s_add_u32 %s, %s, %s' % (s(S_PBW), s(S_PBW), s(S_T1)))
    k('s_lshl_b32 %s, %s, 15' % (s(S_PBR), s(S_H)))
    k('s_add_u32 %s, %s, %s' % (s(S_PBR), s(S_PBR), s(S_T0)))
    k('s_lshl_b32 %s, %s, 13' % (s(S_T1), s(S_W)))
    k('s_add_u32 %s, %s, %s' % (s(S_PBR), s(S_PBR), s(S_T1)))
    k('s_lshl_b32 %s, %s, 7' % (s(S_PF), s(S_GRP)))
    k('s_add_u32 %s, %s, 0x%x' % (s(S_PF), s(S_PF), F_PB))
    k('s_lshl_b32 %s, %s, 2' % (s(S_T1), s(S_H)))
    k('s_add_u32 %s, %s, %s' % (s(S_PFS), s(S_PF), s(S_T1)))
    k('s_mov_b32 %s, 0' % s(S_I))
    k('s_sub_u32 %s, %s, 1' % (s(S_U), s(S_GRP)))
    k('s_mov_b32 %s, 0x%x' % (s(S_T4), f2u(128 ** -0.5)))
    def mf16(d, A, B, C=None): k('v_mfma_f32_16x16x16_bf16 %s, %s, %s, %s' % (v(d, 4), v(A, 2), v(B, 2), '0' if C is None else v(C, 4)))
    def rnd2(regs):
        round_bf16(k, regs, TT)
        for r in regs: k('v_mul_f32 %s, %s, %s' % (v(r), s(S_T4), v(r)))
        round_bf16(k, regs, TT)
    def add(d, x, y): k('v_add_f32 %s, %s, %s' % (v(d), v(x), v(y)))
    ld = lambda d, so, off, tag: k('buffer_load_dwordx4 %s, %s, %s, %s offen offset:%d sc1' % (v(d, 4), v(L16), s(S_WS, 4), s(so), off), tag=tag)
    S_MB = 60
    PFA, MEMO, MEMA = GA2, GQ, TRQ
    k('v_add_u32 %s, %s, %s' % (v(PFA), s(S_T2), v(L16)))
    k('v_mov_b32 %s, %s' % (v(MEMO), v(LW2)))
    k('v_mov_b32 %s, %s' % (v(MEMA), v(L16)))
    dma = lambda so, off: k('buffer_load_dwordx4 %s, %s, %s offen offset:%d sc1 lds' % (v(L16), s(S_WS, 4), s(so), off))
    def prefetch(su, mb):
        k('s_lshr_b32 s4, %s, 1' % s(su))
        k('s_lshl_b32 s5, s4, 5')
        k('s_add_u32 s5, s5, %s' % s(S_H))
        k('s_lshl_b32 %s, s5, 2' % s(S_T1))
        k('s_add_u32 %s, %s, %s' % (s(S_T1), s(S_T1), s(S_W)))
        k('s_lshl_b32 %s, %s, 12' % (s(S_T0), s(S_T1)))
        k('s_mov_b32 m0, %s' % s(S_T2))
        for i in range(4): dma(S_T0, 1024 * i)
        k('s_and_b32 %s, %s, 1' % (s(S_T0), s(su)))
        k('s_lshl1_add_u32 %s, %s, %s' % (s(S_T0), s(S_T1), s(S_T0)))
        k('s_lshl_b32 %s, %s, 10' % (s(S_T0), s(S_T0)))
        k('s_add_u32 %s, %s, 0x%x' % (s(S_T0), s(S_T0), QX))
        k('s_add_u32 m0, %s, 4096' % s(S_T2))
        dma(S_T0, 0)
        k('s_lshl_b32 %s, s5, 10' % s(S_T0))
        k('s_add_u32 %s, %s, 0x%x' % (s(S_T0), s(S_T0), OB))
        k('s_add_u32 m0, %s, 5120' % s(S_T2))
        dma(S_T0, 0)
        k('s_lshl_b32 %s, s5, 12' % s(S_T0))
        k('s_add_u32 %s, %s, 0x%x' % (s(S_T0), s(S_T0), BX + 3072))
        k('s_add_u32 m0, %s, 6144' % s(S_T2))
        dma(S_T0, 0)
        k('s_lshl_b32 %s, s4, 13' % s(S_T0))
        k('s_lshl_b32 %s, %s, 11' % (s(S_T1), s(S_W)))
        k('s_add_u32 %s, %s, %s' % (s(S_T0), s(S_T0), s(S_T1)))
        k('s_add_u32 %s, %s, 0x%x' % (s(S_T0), s(S_T0), MEMX))
        k('s_add_u32 m0, %s, %s' % (s(S_T1), s(mb)))
        dma(S_T0, 0); dma(S_T0, 1024)
    k('s_mov_b32 %s, 0' % s(S_MB))
    prefetch(S_U, S_MB)
    k('s_waitcnt vmcnt(0) lgkmcnt(0)')
    LOOP = 'L_pb_loop'
    k.label(LOOP)
    k.vm = []; k.lg = []
    k('s_lshr_b32 %s, %s, 1' % (s(S_SEG), s(S_U)))
    k('s_and_b32 %s, %s, 1' % (s(S_T), s(S_U)))
    k('s_lshl_b32 %s, %s, 2' % (s(S_T0), s(S_T)))
    k('v_add_u32 %s, %s, %s' % (v(TT), s(S_T0), v(PFA)))
    k('v_add_u32 %s, %s, %s' % (v(MX), s(S_T0), v(TT)))
    k('ds_read_b64 %s, %s offset:5120' % (v(OBG, 2), v(MX)), tag='ob')
    k('ds_read_b128 %s, %s offset:4096' % (v(QF, 4), v(PFA)), tag='q')
    for i in range(2): k('ds_read_b128 %s, %s offset:%d' % (v(KF + 4 * i, 4), v(PFA), 1024 * i), tag='q')
    k('ds_read_b32 %s, %s offset:6144' % (v(OBG + 2), v(TT)))
    k('ds_read_b32 %s, %s offset:6152' % (v(OBG + 3), v(TT)))
    for i in range(2): k('ds_read_b128 %s, %s offset:%d' % (v(VF + 4 * i, 4), v(PFA), 2048 + 1024 * i))
    k('s_add_u32 %s, %s, 7' % (s(S_OO), s(S_U)))
    k('s_min_u32 %s, %s, 127' % (s(S_OO), s(S_OO)))
    k('s_xor_b32 %s, %s, 24576' % (s(S_T3), s(S_MB)))
    k('s_waitcnt lgkmcnt(0)')
    prefetch(S_OO, S_T3)
    for dt in range(8): mf16(ACC + 4 * dt, WBF + 2 * dt, OBG)
    for kt in range(2): k(mfma32(SX + 4 * kt, v(KF + 4 * kt, 4), v(QF, 4), True))
    for j in range(32): k('v_mul_f32 %s, %s, %s' % (v(ACC + j), v(ACC + j), v(OBG + 3)))
    for kt in range(2): k('ds_write_b128 %s, %s offset:%d' % (v(LW2), v(SX + 4 * kt, 4), L_SXX + 1024 * kt))
    for i in range(0, 16, 2): k('v_mov_b64 %s, 0' % v(AKV + i, 2))
    k('s_waitcnt lgkmcnt(0)')
    k('s_barrier')
    for i in range(8): k('ds_read_b128 %s, %s offset:%d' % (v(MEMF + 4 * i, 4), v(L16), L_SXX + 1024 * i))
    k('s_waitcnt lgkmcnt(0)')
    for j in range(8):
        add(MEMF + j, MEMF + j, MEMF + 8 + j); add(MEMF + 16 + j, MEMF + 16 + j, MEMF + 24 + j)
    for j in range(8): add(SX + j, MEMF + j, MEMF + 16 + j)
    rnd2([SX + i for i in range(8)])
    LT1 = k.newlabel('L_pb_t1'); LTJ = k.newlabel('L_pb_tj')
    k('s_cmp_eq_u32 %s, 1' % s(S_T))
    k('s_cbranch_scc1 %s' % LT1)
    for jj in range(4):
        k('v_cndmask_b32 %s, %s, %s, %s' % (v(SX + jj), v(NEG), v(SX + jj), s(S_M + 2 * jj, 2)))
        k('v_mov_b32 %s, %s' % (v(SX + 4 + jj), v(NEG)))
    k('s_branch %s' % LTJ)
    k.label(LT1)
    for jj in range(4):
        k('v_cndmask_b32 %s, %s, %s, %s' % (v(SX + 4 + jj), v(NEG), v(SX + 4 + jj), s(S_M + 2 * jj, 2)))
    k.label(LTJ)
    PL = 'L_pb_poll'
    def memchk():
        k('ds_read_b128 %s, %s' % (v(MEMF, 4), v(MEMO)))
        k('ds_read_b128 %s, %s offset:1024' % (v(MEMF + 4, 4), v(MEMO)))
        k('s_waitcnt lgkmcnt(0)')
        k('v_max3_u32 %s, %s, %s, %s' % (v(TT), v(MEMF), v(MEMF + 1), v(MEMF + 2)))
        k('v_max3_u32 %s, %s, %s, %s' % (v(MX), v(MEMF + 3), v(MEMF + 4), v(MEMF + 5)))
        k('v_max3_u32 %s, %s, %s, %s' % (v(TT), v(TT), v(MEMF + 6), v(MEMF + 7)))
        k('v_max_u32 %s, %s, %s' % (v(TT), v(TT), v(MX)))
        k('v_cmp_eq_u32 vcc, -1, %s' % v(TT))
    memchk()
    k('s_cbranch_vccz %s_ok' % PL)
    k('s_lshl_b32 %s, %s, 13' % (s(S_T0), s(S_SEG)))
    k('s_lshl_b32 %s, %s, 11' % (s(S_T1), s(S_W)))
    k('s_add_u32 m0, %s, %s' % (s(S_T1), s(S_MB)))
    k('s_add_u32 %s, %s, %s' % (s(S_T0), s(S_T0), s(S_T1)))
    k('s_add_u32 %s, %s, 0x%x' % (s(S_T0), s(S_T0), MEMX))
    k('s_mov_b32 %s, %d' % (s(S_SPIN), SPIN_MAX))
    k('s_sub_u32 %s, %s, 8192' % (s(S_T1), s(S_T0)))
    k('s_cmp_eq_u32 %s, 0' % s(S_SEG))
    k('s_cselect_b32 %s, %s, %s' % (s(S_T1), s(S_T0), s(S_T1)))
    k('s_mov_b32 %s, 0' % s(S_T3))
    k('s_mov_b64 exec, 1')
    k.label(PL)
    k('buffer_load_dword %s, %s, %s, %s offen sc1' % (v(TT), v(L16), s(S_WS, 4), s(S_T1)))
    k('s_sub_u32 %s, %s, 1' % (s(S_SPIN), s(S_SPIN)))
    k('s_cbranch_scc1 %s' % FAIL)
    k('s_waitcnt vmcnt(0)')
    k('v_cmp_eq_u32 vcc, -1, %s' % v(TT))
    k('s_cbranch_vccz %s_a' % PL)
    k('s_mov_b32 %s, 1' % s(S_T3))
    k('s_sleep %d' % opt.get('pbsleep', 6))
    k('s_branch %s' % PL)
    k.label(PL + '_a')
    k('s_mov_b64 exec, -1')
    k('s_cmp_eq_u32 %s, 0' % s(S_T3))
    k('s_cbranch_scc1 %s_b' % PL)
    k('s_sleep %d' % opt.get('pbsleep2', 12))
    k.label(PL + '_b')
    dma(S_T0, 0); dma(S_T0, 1024)
    k('s_sub_u32 %s, %s, 1' % (s(S_SPIN), s(S_SPIN)))
    k('s_cbranch_scc1 %s' % FAIL)
    k('s_waitcnt vmcnt(0)')
    memchk()
    k('s_cbranch_vccnz %s_b' % PL)
    k.label(PL + '_ok')
    k('s_barrier')
    k.lg = []
    def MR(ks): k('ds_read_b128 %s, %s offset:%d' % (v(MEMF + 4 * ks, 4), v(MEMA), 1024 * ks), tag=('mf', ks))
    def SMF(m, ks, t): k('v_smfmac_f32_16x16x64_bf16 %s, %s, %s, %s' % (v(AKV + 8 * m + 4 * t, 4), v(MEMF + 4 * ks, 4), a(wkv(m, ks, t), 8), v(IDX)))
    MR(0); MR(1); MR(2)
    for ks in range(8):
        k.wait_lg(('mf', ks))
        SMF(0, ks, 0)
        if ks + 3 < 8: MR(ks + 3)
        SMF(0, ks, 1)
    vq = [(ks, t) for ks in range(8) for t in range(2)]
    hq = list(range(8))
    def V(n=1):
        for _ in range(n):
            ks, t = vq.pop(0); SMF(1, ks, t)
            if t == 1:
                k('ds_read_b128 %s, %s offset:%d' % (v(MEMF + 4 * ks, 4), v(HOME), L_HOME + 1024 * ks), tag=('wh', ks))
    V(2)
    for i in range(4): cvt(k, T8 + 4 + i, AKV + 2 * i, AKV + 2 * i + 1)
    V(1)
    mf16(AKV, T8 + 4, SELT); mf16(AKV + 4, T8 + 6, SELT)
    V(2)
    for i in range(4): cvt(k, T8 + 4 + i, AKV + 2 * i, AKV + 2 * i + 1)
    V(1)
    k(mfma32(AKV, v(T8 + 4, 4), v(QF, 4), True))
    V(3)
    k('ds_write_b128 %s, %s offset:%d' % (v(LW1), v(AKV, 4), L_SMX), tag='sw')
    V(7)
    k.wait_lg('sw')
    k('s_barrier')
    VM = KF
    SR = [AKV, AKV + 4, KF + 4, T8]
    for w_ in range(4): k('ds_read_b128 %s, %s offset:%d' % (v(SR[w_], 4), v(L16), L_SMX + 1024 * w_), tag=('sr', w_))
    for i in range(4): cvt(k, VM + i, AKV + 8 + 2 * i, AKV + 8 + 2 * i + 1)
    k.wait_lg(('sr', 1))
    for j in range(4): add(AKV + j, AKV + j, AKV + 4 + j)
    k.wait_lg(('sr', 3))
    for j in range(4): add(T8 + j, T8 + j, KF + 4 + j)
    for j in range(4): add(AKV + j, AKV + j, T8 + j)
    mr = [AKV + j for j in range(4)]; xr = [SX + j for j in range(8)]
    rnd2(mr)
    k('s_mov_b32 %s, 0x%x' % (s(S_T3), f2u(math.log2(math.e))))
    regs = xr + mr
    k('v_max3_f32 %s, %s, %s, %s' % (v(MX), v(regs[0]), v(regs[1]), v(regs[2])))
    for i in range(3, len(regs) - 1, 2): k('v_max3_f32 %s, %s, %s, %s' % (v(MX), v(MX), v(regs[i]), v(regs[i + 1])))
    k('v_max_f32 %s, %s, %s' % (v(MX), v(MX), v(regs[-1])))
    xreduce(k, 'v_max_f32', MX, TT)
    k('v_mul_f32 %s, %s, %s' % (v(MX), s(S_T3), v(MX)))
    for r in regs: k('v_fma_f32 %s, %s, %s, -%s' % (v(r), v(r), s(S_T3), v(MX)))
    for r in regs: k('v_exp_f32 %s, %s' % (v(r), v(r)))
    add(LS, mr[0], mr[1]); add(LS + 1, mr[2], mr[3]); add(LS, LS, LS + 1)
    add(LS + 1, xr[0], xr[1])
    k('v_fma_f32 %s, %s, 0.5, %s' % (v(LS), v(LS), v(xr[2])))
    for i, r in enumerate(xr[3:]): add(LS + (i & 1), LS + (i & 1), r)
    add(LS, LS, LS + 1)
    xreduce(k, 'v_add_f32', LS, TT)
    k('v_rcp_f32 %s, %s' % (v(LS), v(LS)))
    for r in regs: k('v_mul_f32 %s, %s, %s' % (v(r), v(r), v(LS)))
    PX, PM, O = T8, T8 + 4, AKV + 8
    for i in range(4): cvt(k, PX + i, xr[2 * i], xr[2 * i + 1])
    cvt(k, PM, mr[0], mr[1]); cvt(k, PM + 1, mr[2], mr[3])
    for t in range(2): k(mfma32(O + 4 * t, v(VF + 4 * t, 4), v(PX, 4), True))
    for t in range(2): mf16(O + 4 * t, VM + 2 * t, PM, O + 4 * t)
    for j in range(8): k('v_mul_f32 %s, %s, %s' % (v(O + j), v(O + j), v(OBG + 2)))
    for i in range(4): cvt(k, T8 + i, O + 2 * i, O + 2 * i + 1)
    k('ds_write_b128 %s, %s offset:%d' % (v(LW1), v(T8, 4), L_OX))
    k('s_waitcnt lgkmcnt(0)')
    k('s_barrier')
    OF = AKV
    for kk in range(4): k('ds_read_b128 %s, %s offset:%d' % (v(OF + 4 * kk, 4), v(L16), L_OX + 1024 * kk), tag=('of', kk))
    k('s_mov_b32 %s, %s' % (s(S_T0), s(S_PBW)))
    def st(dt):
        k('buffer_store_dwordx4 %s, %s, %s, %s offen' % (v(ACC + 4 * dt, 4), v(ST), s(S_WS, 4), s(S_T0)))
        k('s_add_u32 %s, %s, 0x8000' % (s(S_T0), s(S_T0)))
    for dt in range(8):
        for kk in range(4):
            if dt == 0: k.wait_lg(('of', kk))
            k(mfma32(ACC + 4 * dt, v(wof(dt, kk), 4), v(OF + 4 * kk, 4), False))
            if kk == 2 and dt > 0: st(dt - 1)
    st(7)
    k('s_add_u32 %s, %s, 1' % (s(S_I), s(S_I)))
    k('s_waitcnt vmcnt(0)')
    k('s_barrier')
    LF = k.newlabel('L_pb_f')
    k('s_cmp_lg_u32 %s, 0' % s(S_W))
    k('s_cbranch_scc1 %s' % LF)
    set_flag(k, S_PFS, s(S_I), '')
    k.label(LF)
    poll_flags(k, S_PF, 32, s(S_I), 'pb', sleep=1)
    RR = MEMF
    k('s_add_u32 %s, %s, 4096' % (s(S_T0), s(S_PBR)))
    k.vm = []
    for i in range(8): ld(RR + 4 * i, S_PBR if i < 4 else S_T0, (i & 3) * 1024, ('r', i))
    for i in range(2, 8):
        k.wait_vm(('r', i))
        d = RR + 4 * (i & 1)
        for j in range(4): add(d + j, d + j, RR + 4 * i + j)
    for j in range(4): add(RR + j, RR + j, RR + 4 + j)
    k('v_permlane32_swap_b32 %s, %s' % (v(RR), v(RR + 2)))
    k('v_permlane32_swap_b32 %s, %s' % (v(RR + 1), v(RR + 3)))
    add(RR, RR, RR + 2); add(RR + 1, RR + 1, RR + 3)
    k('v_mov_b32 %s, %s' % (v(RR + 2), v(RR)))
    k('v_mov_b32 %s, %s' % (v(RR + 3), v(RR + 1)))
    k('v_permlane16_swap_b32 %s, %s' % (v(RR), v(RR + 2)))
    k('v_permlane16_swap_b32 %s, %s' % (v(RR + 1), v(RR + 3)))
    add(RR, RR, RR + 2); add(RR + 1, RR + 1, RR + 3)
    cvt(k, RR, RR, RR + 1)
    k('s_lshl_b32 %s, %s, 14' % (s(S_T0), s(S_U)))
    k('buffer_store_dword %s, %s, %s, %s offen' % (v(RR), v(OA), s(S_OUT, 4), s(S_T0)))
    k('s_xor_b32 %s, %s, 24576' % (s(S_MB), s(S_MB)))
    k('v_xor_b32 %s, 24576, %s' % (v(MEMO), v(MEMO)))
    k('v_xor_b32 %s, 24576, %s' % (v(MEMA), v(MEMA)))
    k('s_xor_b32 %s, %s, 0x100000' % (s(S_PBW), s(S_PBW)))
    k('s_xor_b32 %s, %s, 0x100000' % (s(S_PBR), s(S_PBR)))
    k('s_add_u32 %s, %s, 7' % (s(S_U), s(S_U)))
    k('s_cmp_lt_u32 %s, 128' % s(S_U))
    k('s_cbranch_scc1 %s' % LOOP)
```

```python
import sys, json
sys.path.insert(0, 'gen')
from fw import *
from layout import *
import chain as C
import worker as W
NAME = 'gated_mix__memory_aug_recurrent_mem_tr__sliding_block__prompt_kernel'
HEAD = open('gated_mix__memory_aug_recurrent_mem_tr__sliding_block__prompt.s.ref').read().split('; Override')[0]
D_READY = 64

def gen(opt={}):
    roles = opt.get('roles', ['chain', 'pj', 'ba', 'pb'])
    full = len(roles) == 4
    k = K()
    k.raw(HEAD.rstrip())
    k.raw('; @launch grid=(256,1,1) block=(256,1,1) lds=163840')
    k.raw('.amdgcn_target "amdgcn-amd-amdhsa--gfx950"\n.text\n.globl %s\n.p2align 8\n.type %s,@function\n%s:' % (NAME, NAME, NAME))
    k('s_load_dwordx16 s[64:79], s[0:1], 0')
    k('s_load_dwordx8 s[80:87], s[0:1], 64')
    k('s_load_dwordx4 s[88:91], s[0:1], 96')
    if opt.get('prof'):
        k('s_memtime s[100:101]')
        k('s_memrealtime s[6:7]')
    k('s_getreg_b32 %s, hwreg(HW_REG_XCC_ID)' % s(W.S_GRP))
    k('s_and_b32 %s, %s, 7' % (s(W.S_GRP), s(W.S_GRP)))
    k('s_waitcnt lgkmcnt(0)')
    C.srd(k, C.S_WS, W.P_WS, WS_BYTES); C.srd(k, C.S_DBG, W.P_DBG, 256)
    k('''
  s_lshl_b32 s55, s50, 2
  v_mov_b32 v1, 0
  v_mov_b32 v2, 1
  v_cmp_eq_u32 vcc, 0, v0
  s_and_saveexec_b64 s[4:5], vcc
  s_cbranch_execz L_t1
  buffer_atomic_add v2, v1, s[32:35], s55 offen sc0 sc1
  s_waitcnt vmcnt(0)
  ds_write_b32 v1, v2
  s_waitcnt lgkmcnt(0)
L_t1:
  s_mov_b64 exec, s[4:5]
  s_barrier
  ds_read_b32 v2, v1
  v_lshrrev_b32 v3, 6, v0
  s_waitcnt lgkmcnt(0)
  v_readfirstlane_b32 s51, v2
  v_readfirstlane_b32 s41, v3
  v_and_b32 v0, 63, v0
  s_barrier
  s_cmp_ge_u32 s51, 32
  s_cbranch_scc1 L_end
''')
    TK, GRP = W.S_TK, W.S_GRP
    if opt.get('prof'):
        k('s_memtime s[98:99]')
        k('s_waitcnt lgkmcnt(0)')
    def ready_add(ra=6, rb=7, sync=True):
        if sync:
            k('s_waitcnt vmcnt(0)')
            k('s_barrier')
        L = k.newlabel('L_ra')
        k('s_cmp_lg_u32 %s, 0' % s(C.S_W))
        k('s_cbranch_scc1 %s' % L)
        k('v_mov_b32 v%d, %d' % (ra, D_READY))
        k('v_mov_b32 v%d, 1' % rb)
        k('s_mov_b64 exec, 1')
        k('buffer_atomic_add v%d, v%d, s[32:35], 0 offen sc1' % (rb, ra))
        k('s_mov_b64 exec, -1')
        k.label(L)
    k('v_lshlrev_b32 v1, 4, v0')
    for i in range(4): k('v_mov_b32 v%d, -1' % (8 + i))
    k('s_cmp_lg_u32 %s, 0' % s(GRP))
    k('s_cbranch_scc1 L_worker')
    if 'chain' in roles:
        k('s_mov_b32 %s, %s' % (s(C.S_H), s(TK)))
        C.srd(k, C.S_WQ, W.P_WQ, 4 << 20); C.srd(k, C.S_WK, W.P_WK, 4 << 20); C.srd(k, C.S_WV, W.P_WV, 4 << 20); C.srd(k, C.S_WO, W.P_WO, 4 << 20)
        C.srd(k, C.S_M0, W.P_MEM0, 8192)
        def hook_loading():
            k('v_lshlrev_b32 v24, 4, v0')
            for i in range(4): k('v_mov_b32 v%d, -1' % (28 + i))
            k('s_lshl_b32 s55, s40, 13')
            k('s_lshl_b32 s56, s41, 11')
            k('s_add_u32 s55, s55, s56')
            k('s_add_u32 s55, s55, 0x%x' % INB)
            for i in range(2):
                k('buffer_store_dwordx4 v[28:31], v24, s[8:11], s55 offen offset:%d' % (1024 * i), tag='init')
            k('s_lshl_b32 s55, s40, 10')
            k('s_add_u32 s55, s55, 0x%x' % H2)
            k('buffer_store_dwordx4 v[28:31], v24, s[8:11], s55 offen', tag='init')
            k('s_nop 1')
        hook_loading()
        def hook_loading2():
            k('s_waitcnt vmcnt(32)')
            k('s_barrier')
            n = len(k.vm)
            ready_add(58, 59, sync=False)
            k.vm = k.vm[:n]
        k.hook_loading = hook_loading2
        nready = 256
        S_RDY = 63
        S_FKV = 62
        def fl_load(B, A, tag=None):
            k('s_mov_b64 exec, 15')
            k('buffer_load_dword %s, %s, %s, %s offen sc1' % (v(B), v(A), s(C.S_WS, 4), s(S_FKV)), tag=tag)
            k('s_mov_b64 exec, -1')
        def wait_kv(first, B=C.X3, A=C.L16):
            if not full: return
            L = k.newlabel('L_kv')
            def chk():
                k('v_cmp_ge_u32 vcc, %s, %s' % (s(C.S_T0), v(B)))
                k('s_and_b32 %s, vcc_lo, 15' % s(C.S_T1))
            k('s_add_u32 %s, %s, %d' % (s(C.S_T0), s(C.S_STEP), 0 if first else 1))
            chk()
            k('s_cbranch_scc1 %s_slow' % L)
            k.label(L + '_ret')
            if not first: fl_load(B, A)
            def slow():
                k.label(L + '_slow')
                k('s_mov_b32 %s, %d' % (s(C.S_SPIN), C.SPIN_MAX))
                k.label(L + '_p')
                fl_load(B, A)
                k('s_sub_u32 %s, %s, 1' % (s(C.S_SPIN), s(C.S_SPIN)))
                k('s_cbranch_scc1 L_fail')
                k('s_waitcnt vmcnt(0)')
                chk()
                k('s_cbranch_scc0 %s_ret' % L)
                k('s_sleep 2')
                k('s_branch %s_p' % L)
            k.deferred.append(slow)
        k.deferred = []
        def h4():
            n = len(k.vm)
            ready_add(58, 59, sync=False)
            k.vm = k.vm[:n]
        def h7():
            k('v_mov_b32 v58, %d' % D_READY)
            k('buffer_load_dword v58, v58, %s, 0 offen sc1' % s(C.S_DBG, 4), tag='rdy')
        def h12():
            L = k.newlabel('L_rdy')
            k.wait_vm('rdy')
            k('v_cmp_gt_u32 vcc, %d, v58' % nready)
            k('s_cbranch_vccnz %s' % L)
            k.label(L + '_ret')
            def slow():
                k.label(L)
                k('s_mov_b32 %s, %d' % (s(C.S_SPIN), C.SPIN_MAX))
                k.label(L + '_p')
                k('v_mov_b32 v58, %d' % D_READY)
                k('buffer_load_dword v58, v58, %s, 0 offen sc1' % s(C.S_DBG, 4))
                k('s_sub_u32 %s, %s, 1' % (s(C.S_SPIN), s(C.S_SPIN)))
                k('s_cbranch_scc1 L_fail')
                k('s_waitcnt vmcnt(0)')
                k('v_cmp_gt_u32 vcc, %d, v58' % nready)
                k('s_cbranch_vccnz %s_p' % L)
                k('s_branch %s_ret' % L)
            k.deferred.append(slow)
            k('s_lshl_b32 %s, %s, 2' % (s(S_FKV), s(C.S_H)))
            k('s_add_u32 %s, %s, %s' % (s(S_FKV), s(S_FKV), s(C.S_W)))
            k('s_lshl_b32 %s, %s, 7' % (s(S_FKV), s(S_FKV)))
            k('s_add_u32 %s, %s, 0x%x' % (s(S_FKV), s(S_FKV), F_KV))
            k('v_lshlrev_b32 v54, 4, v0')
            fl_load(55, 54, 'fkv')
        def h13():
            k.wait_vm('fkv')
            wait_kv(True, 55, 54)
        k.load_hooks = {4: h7, 9: h12, 14: h13}
        k.hook_prefetch = lambda: wait_kv(False)
        C.chain(k, prof=opt.get('prof'), dump=opt.get('dump'), opt=opt)
        if opt.get('prof'):
            T = C.S_TS
            k.raw('  s_memtime %s' % s(T + 26, 2))
            k.raw('  s_waitcnt lgkmcnt(0)')
            k('s_sub_u32 %s, %s, %s' % (s(T + 21), s(T + 26), s(T + 24)))
            k('s_mov_b32 %s, %s' % (s(T + 20), s(T + 22)))
            k('s_sub_u32 %s, %s, s100' % (s(T + 19), s(T + 28)))
            k('s_sub_u32 %s, s98, s100' % s(T + 18))
            k('s_sub_u32 %s, %s, s100' % (s(T + 22), s(T + 24)))
            for i in range(8): k('v_mov_b32 %s, %s' % (v(i), s(T + 16 + i)))
            k('s_lshl_b32 s55, s40, 2')
            k('s_add_u32 s55, s55, s41')
            k('s_lshl_b32 s55, s55, 5')
            k('s_add_u32 s55, s55, 0x%x' % (DBG + 0x100000))
            k('v_mov_b32 v8, 0')
            k('buffer_store_dwordx4 v[0:3], v8, s[8:11], s55 offen')
            k('buffer_store_dwordx4 v[4:7], v8, s[8:11], s55 offen offset:16')
        k('s_branch L_end')
        for f in k.deferred: f()
    else:
        k('s_branch L_end')
    k.label('L_worker')
    k.hist = []
    def stampw(i):
        if opt.get('prof'):
            k('s_memtime s[4:5]')
            k('s_waitcnt lgkmcnt(0)')
            k('s_sub_u32 s4, s4, s100')
            k('v_mov_b32 v7, s4')
            k('s_lshl_b32 s55, s50, 5')
            k('s_add_u32 s55, s55, s62')
            k('s_lshl_b32 s55, s55, 2')
            k('s_add_u32 s55, s55, s41')
            k('s_lshl_b32 s55, s55, 5')
            k('s_add_u32 s55, s55, 0x%x' % (DBG + 0x110000 + 4 * i))
            k('v_mov_b32 v6, 0')
            k('buffer_store_dword v7, v6, s[8:11], s55 offen')
    k('s_mov_b32 s62, %s' % s(TK))
    k('s_sub_u32 s55, %s, 1' % s(GRP))
    k('s_lshl_b32 s55, s55, 5')
    k('s_add_u32 s55, s55, %s' % s(TK))
    k('s_mul_i32 %s, s55, 9363' % s(C.S_H))
    k('s_lshr_b32 %s, %s, 16' % (s(C.S_H), s(C.S_H)))
    k('s_mul_i32 s56, %s, 7' % s(C.S_H))
    k('s_sub_u32 %s, s55, s56' % s(W.S_R))
    k('s_cmp_eq_u32 %s, 0' % s(W.S_R))
    k('s_cselect_b32 %s, 10, 9' % s(W.S_NSEG))
    W.setup_common(k)
    def winit():
        if full:
            k('s_lshl_b32 s55, s40, 2\ns_add_u32 s55, s55, s41\ns_lshl_b32 s55, s55, 3\ns_add_u32 s55, s55, s42\ns_lshl_b32 s55, s55, 4\ns_add_u32 s55, s55, 0x%x' % F_KV)
            W.set_flag(k, 55, '0')
            k('s_lshl_b32 s55, s40, 3\ns_add_u32 s55, s55, s42\ns_lshl_b32 s55, s55, 2\ns_add_u32 s55, s55, 0x%x' % F_D3)
            W.set_flag(k, 55, '0')
        if 'pb' in roles:
            k('s_lshl_b32 s55, s50, 5\ns_add_u32 s55, s55, s51\ns_lshl_b32 s55, s55, 2\ns_add_u32 s55, s55, 0x%x' % F_PB)
            W.set_flag(k, 55, '0', '')
        if full:
            k('s_sub_u32 s55, s50, 1\ns_lshl_b32 s55, s55, 5\ns_add_u32 s55, s55, s51\ns_lshl_b32 s55, s55, 2\ns_add_u32 s55, s55, s41\ns_and_b32 s55, s55, 511\ns_lshl_b32 s55, s55, 10\ns_add_u32 s55, s55, 0x%x' % MEMX)
            k('buffer_store_dwordx4 v[8:11], v1, s[8:11], s55 offen sc1')
    stampw(0)
    k.stampw = stampw
    if 'pj' in roles:
        winit()
        def after_issue():
            k('s_waitcnt vmcnt(32)')
            k('s_barrier')
            n = len(k.vm)
            ready_add(sync=False)
            k.vm = k.vm[:n]
        W.proj(k, after_issue)
    else:
        winit(); ready_add()
    stampw(1)
    if full or 'pb' in roles:
        k('s_mov_b32 s55, %d' % D_READY)
        W.poll_flags(k, 55, 1, '%d' % (256 if 'chain' in roles else 224) if False else 's56', 'rdy', srdn=C.S_DBG) if False else None
        k('s_mov_b32 s56, %d' % (256 if 'chain' in roles else 224))
        W.poll_flags(k, 55, 1, 's56', 'rdy', srdn=C.S_DBG)
    if 'ba' in roles: W.battn(k, waitflags=full)
    stampw(3)
    if 'pb' in roles:
        k('s_mov_b32 %s, %s' % (s(C.S_H), s(TK)))
        W.phaseB(k, waitflags=full, opt=opt)
    stampw(4)
    if opt.get('prof'):
        k('s_memrealtime s[4:5]')
        k('s_waitcnt lgkmcnt(0)')
        k('v_mov_b32 v7, s4')
        k('buffer_store_dword v7, v6, s[8:11], s55 offen offset:4')
        k('v_mov_b32 v7, s6')
        k('buffer_store_dword v7, v6, s[8:11], s55 offen offset:8')
    k('s_branch L_end')
    k.label('L_fail')
    k('s_mov_b64 exec, 1')
    k('v_mov_b32 v1, 128')
    k('v_mov_b32 v2, 1')
    k('buffer_atomic_add v2, v1, s[32:35], 0 offen sc1')
    k.label('L_end')
    k('s_endpgm')
    k.raw('''.section .rodata,"a"
.p2align 6
.amdhsa_kernel %s
  .amdhsa_next_free_vgpr 512
  .amdhsa_next_free_sgpr 102
  .amdhsa_accum_offset 256
  .amdhsa_group_segment_fixed_size 0
  .amdhsa_kernarg_size 112
  .amdhsa_user_sgpr_count 2
  .amdhsa_user_sgpr_kernarg_segment_ptr 1
  .amdhsa_system_sgpr_workgroup_id_x 1
.end_amdhsa_kernel''' % NAME)
    gen.points = getattr(k, 'points', [])
    txt = k.text()
    for a_, b_ in opt.get('sub', []):
        import re
        txt = re.sub(a_, b_, txt)
    return txt

if __name__ == '__main__':
    opt = json.loads(sys.argv[2]) if len(sys.argv) > 2 else {}
    open(sys.argv[1], 'w').write(gen(opt))
```

```python
from fw import *
from layout import *
import math, struct

S_WS, S_WQ, S_WK, S_WV, S_WO, S_M0, S_DBG = 8, 12, 16, 20, 24, 28, 32
S_H, S_W, S_STEP, S_TAG = 40, 41, 42, 43
S_KV, S_KVM, S_INW0, S_INW1, S_INR0, S_DEF, S_H2W, S_H2R, S_H2RST = 44, 45, 46, 47, 48, 49, 51, 52, 53
S_SPIN, S_T0, S_T1, S_T2 = 54, 55, 56, 57
S_C = 58
S_TS = 64

MEMF, ACCQK, ACCV, KVC, KVN, T1 = 0, 32, 48, 56, 72, 88
SELR, SELT = 96, 102
X0, X1 = 100, 101
IDX, L16, L16W, MEMR, SMW, SMR, OW, OR_, ST1, ST2, STRM, IDXR = 104, 105, 106, 107, 110, 111, 112, 113, 114, 115, 116, 117
X2, X3 = 118, 119
SBUF = 120
VSTAT = 144
L_MEM, L_SX, L_SM, L_OX, L_WS = 0, 8192, 8192 + 2 * 2048 + 1024, 8192 + 1024, 16384
WSTRIDE = 36864
OOR = 0x30000
SPIN_MAX = 1 << 20

def f2u(x):
    return struct.unpack('<I', struct.pack('<f', x))[0]

def srd(k, base, ptr_lo, nbytes):
    k('s_mov_b32 %s, %s' % (s(base), s(ptr_lo)))
    k('s_and_b32 %s, %s, 0xffff' % (s(base + 1), s(ptr_lo + 1)))
    k('s_mov_b32 %s, 0x%x' % (s(base + 2), nbytes))
    k('s_mov_b32 %s, 0x00020000' % s(base + 3))

ALLOPS = [(m, kap, t) for m in 'qkv' for kap in range(8) for t in range(2)] + [('o', a_, kap) for a_ in range(4) for kap in range(4)]
STREAM = [('q', 0, 0), ('k', 0, 0), ('q', 2, 1), ('q', 6, 0), ('k', 2, 1), ('k', 6, 0), ('q', 1, 1), ('q', 3, 1), ('q', 7, 0),
          ('k', 3, 1), ('k', 7, 0), ('v', 2, 0), ('v', 3, 0), ('v', 4, 0), ('o', 2, 0), ('o', 1, 2), ('o', 2, 1), ('o', 3, 3)]
NS = len(STREAM)

def op_locs():
    loc = {}
    na = nv = 0
    for o in ALLOPS:
        if o in STREAM:
            loc[o] = ('s', STREAM.index(o))
        elif na < 32:
            loc[o] = ('a', 8 * na); na += 1
        else:
            loc[o] = ('v', VSTAT + 8 * nv); nv += 1
    assert na == 32 and nv == 14 and NS == 18
    return loc

def dst(loc, r, n):
    return (a if loc[0] == 'a' else v)(loc[1] + r, n)

def consts(k, LANE):
    k.c('===== chain: constants =====')
    tA, tB, tC, tD = 8, 9, 10, 11
    u4, u5, u6, u7 = 12, 13, 14, 15
    k('s_lshl_b32 %s, %s, 11' % (s(S_T0), s(S_W)))
    k('v_add_u32 %s, %s, %s' % (v(L16W), s(S_T0), v(L16)))
    for p in (1, 2, 3):
        k('v_xor_b32 %s, 0x%x, %s' % (v(MEMR + p - 1), p << 11, v(L16W)))
    k('v_and_b32 %s, 15, %s' % (v(tA), v(LANE)))
    k('v_lshrrev_b32 %s, 4, %s' % (v(tB), v(LANE)))
    k('v_and_b32 %s, 7, %s' % (v(tC), v(LANE)))
    k('v_cmp_gt_u32 vcc, 8, %s' % v(tA))
    k('v_mov_b32 %s, 0xeeee' % v(IDX))
    k('v_mov_b32 %s, 0x4444' % v(tD))
    k('v_cndmask_b32 %s, %s, %s, vcc' % (v(IDX), v(IDX), v(tD)))
    k('v_mov_b32 %s, 0x%x' % (v(tD), OOR))
    k('v_lshl_add_u32 %s, %s, 3, %s' % (v(OR_), v(tB), v(tC)))
    k('v_lshlrev_b32 %s, 4, %s' % (v(OR_), v(OR_)))
    k('s_and_b32 %s, %s, 1' % (s(S_T0), s(S_W)))
    k('s_lshl_b32 %s, %s, 9' % (s(S_T0), s(S_T0)))
    k('s_lshr_b32 %s, %s, 1' % (s(S_T1), s(S_W)))
    k('s_lshl_b32 %s, %s, 11' % (s(S_T1), s(S_T1)))
    k('s_add_u32 %s, %s, %s' % (s(S_T0), s(S_T0), s(S_T1)))
    k('v_add_u32 %s, %s, %s' % (v(OW), s(S_T0), v(OR_)))
    for p in (1, 2, 3):
        k('v_xor_b32 %s, 0x%x, %s' % (v([X0, X1, X2][p - 1]), ((p & 1) << 9) | ((p >> 1) << 11), v(OW)))
    k('v_cndmask_b32 %s, %s, %s, vcc' % (v(OW), v(tD), v(OW)))
    k('v_and_b32 %s, 0xff, %s' % (v(SMR), v(OR_)))
    k('v_and_b32 %s, 8, %s' % (v(u4), v(tA)))
    k('v_add_u32 %s, %s, %s' % (v(SMR), v(u4), v(SMR)))
    k('v_add_u32 %s, %d, %s' % (v(SMR), L_SM, v(SMR)))
    k('s_lshl_b32 %s, %s, 8' % (s(S_T0), s(S_W)))
    k('v_add_u32 %s, %s, %s' % (v(SMW), s(S_T0), v(SMR)))
    k('v_cmp_gt_u32 vcc, 32, %s' % v(LANE))
    k('v_cndmask_b32 %s, %s, %s, vcc' % (v(SMW), v(tD), v(SMW)))
    k('v_lshrrev_b32 %s, 3, %s' % (v(u4), v(LANE)))
    k('v_lshlrev_b32 %s, 13, %s' % (v(ST1), v(u4)))
    k('v_lshl_add_u32 %s, %s, 3, %s' % (v(ST1), v(tC), v(ST1)))
    k('v_lshlrev_b32 %s, 2, %s' % (v(ST2), v(tA)))
    k('v_lshl_add_u32 %s, %s, 4, %s' % (v(ST2), v(tB), v(ST2)))
    k('s_lshr_b32 %s, %s, 3' % (s(S_T0), s(S_H)))
    k('s_lshl_b32 %s, %s, 11' % (s(S_T0), s(S_T0)))
    for (src, bit, sh) in ((S_W, 1, 10), (S_W, 0, 9), (S_H, 2, 8), (S_H, 0, 7), (S_H, 1, 6)):
        k('s_bfe_u32 %s, %s, 0x%x' % (s(S_T1), s(src), (1 << 16) | bit))
        k('s_lshl_b32 %s, %s, %d' % (s(S_T1), s(S_T1), sh))
        k('s_add_u32 %s, %s, %s' % (s(S_T0), s(S_T0), s(S_T1)))
    k('v_add_u32 %s, %s, %s' % (v(ST2), s(S_T0), v(ST2)))
    k('v_cmp_gt_u32 vcc, 4, %s' % v(tA))
    k('v_bfrev_b32 %s, 1' % v(u4))
    k('v_cndmask_b32 %s, %s, %s, vcc' % (v(ST2), v(u4), v(ST2)))
    k('v_and_b32 %s, 1, %s' % (v(tD), v(tB)))
    k('v_lshlrev_b32 %s, 2, %s' % (v(tD), v(tD)))
    k('v_sub_u32 %s, %s, %s' % (v(tD), v(tC), v(tD)))
    k('v_mov_b32 %s, 0x3f80' % v(u4))
    k('v_mov_b32 %s, 0x3f800000' % v(u5))
    for r in range(2):
        k('v_mov_b32 %s, 0' % v(SELT + r))
        k('v_cmp_eq_u32 vcc, %d, %s' % (2 * r, v(tD)))
        k('v_cndmask_b32 %s, %s, %s, vcc' % (v(SELT + r), v(SELT + r), v(u4)))
        k('v_cmp_eq_u32 vcc, %d, %s' % (2 * r + 1, v(tD)))
        k('v_cndmask_b32 %s, %s, %s, vcc' % (v(SELT + r), v(SELT + r), v(u5)))
    k('v_and_b32 %s, 2, %s' % (v(u6), v(tA)))
    k('v_cmp_eq_u32 vcc, 0, %s' % v(u6))
    k('v_mov_b32 %s, 0' % v(u7))
    k('v_cndmask_b32 %s, %s, %s, vcc' % (v(u6), v(u7), v(u4)))
    k('v_and_b32 %s, 1, %s' % (v(u5), v(tA)))
    k('v_cmp_eq_u32 vcc, 0, %s' % v(u5))
    k('v_cndmask_b32 %s, %s, %s, vcc' % (v(SELR), v(u7), v(u6)))
    k('v_cndmask_b32 %s, %s, %s, vcc' % (v(SELR + 1), v(u6), v(u7)))
    k('v_mov_b32 %s, %s' % (v(SELR + 2), v(SELR)))
    k('v_mov_b32 %s, %s' % (v(SELR + 3), v(SELR + 1)))
    k('v_lshrrev_b32 %s, 2, %s' % (v(u6), v(tA)))
    k('v_xor_b32 %s, 1, %s' % (v(u7), v(u6)))
    k('v_lshl_add_u32 %s, %s, 2, %s' % (v(u6), v(u7), v(u6)))
    k('v_mul_u32_u24 %s, 0x1111, %s' % (v(IDXR), v(u6)))

def loader(k, LANE, LOC, after_issue=None, hooks={}):
    k.c('===== chain: weight load =====')
    GQ, GO, TRQ, TRP, TRO, LW, u, u2 = 1, 2, 3, 4, 5, 6, 7, 8
    RAW = 8
    k('s_mul_i32 %s, %s, %d' % (s(S_T2), s(S_W), WSTRIDE))
    k('s_add_u32 %s, %s, %d' % (s(S_T2), s(S_T2), L_WS))
    k('v_lshrrev_b32 %s, 3, %s' % (v(u), v(LANE)))
    k('v_and_b32 %s, 7, %s' % (v(u2), v(LANE)))
    k('v_lshlrev_b32 %s, 4, %s' % (v(u2), v(u2)))
    k('v_lshl_add_u32 %s, %s, 13, %s' % (v(GQ), v(u), v(u2)))
    k('v_lshl_add_u32 %s, %s, 10, %s' % (v(GO), v(u), v(u2)))
    k('s_lshl_b32 %s, %s, 8' % (s(S_T0), s(S_H)))
    k('s_lshr_b32 %s, %s, 1' % (s(S_T1), s(S_W)))
    k('s_lshl_b32 %s, %s, 7' % (s(S_T1), s(S_T1)))
    k('s_add_u32 %s, %s, %s' % (s(S_T0), s(S_T0), s(S_T1)))
    k('v_add_u32 %s, %s, %s' % (v(GQ), s(S_T0), v(GQ)))
    k('s_lshl_b32 %s, %s, 17' % (s(S_T0), s(S_H)))
    k('s_lshl_b32 %s, %s, 8' % (s(S_T1), s(S_W)))
    k('s_add_u32 %s, %s, %s' % (s(S_T0), s(S_T0), s(S_T1)))
    k('v_add_u32 %s, %s, %s' % (v(GO), s(S_T0), v(GO)))
    its = [('o', 0, 0), ('o', 1, 0), ('o', 0, 1), ('o', 1, 1), ('v', 5), ('v', 1), ('v', 4), ('k', 5), ('q', 5), ('v', 0), ('k', 4), ('q', 4), ('k', 1), ('k', 0), ('q', 1), ('q', 0)]
    def issue(li):
        it = its[li]; slot = li % 4
        for i in range(8):
            if it[0] == 'o':
                srdn, ga = S_WO, GO
                if i % 4 == 0:
                    k('s_xor_b32 %s, %s, %d' % (s(S_T0), s(S_W), 2 * it[2] + (i >> 2)))
                    k('s_lshl_b32 %s, %s, 15' % (s(S_T0), s(S_T0)))
                    k('s_add_u32 %s, %s, %d' % (s(S_T0), s(S_T0), it[1] * 128))
                else:
                    k('s_add_u32 %s, %s, %d' % (s(S_T0), s(S_T0), 8 * 1024))
            else:
                srdn, ga = {'q': S_WQ, 'k': S_WK, 'v': S_WV}[it[0]], GQ
                if i == 0:
                    k('s_lshl_b32 %s, %s, 1' % (s(S_T0), s(S_W)))
                    k('s_xor_b32 %s, %s, %d' % (s(S_T0), s(S_T0), it[1]))
                    k('s_lshl_b32 %s, %s, 19' % (s(S_T0), s(S_T0)))
                else:
                    k('s_add_u32 %s, %s, %d' % (s(S_T0), s(S_T0), 8 * 8192))
            k('s_add_u32 m0, %s, %d' % (s(S_T2), slot * 8192 + i * 1024))
            k('buffer_load_dwordx4 %s, %s, %s offen lds' % (v(ga), s(srdn, 4), s(S_T0)), tag=('wl', li))
    for li in range(4): issue(li)
    k('v_bfe_u32 %s, %s, 5, 1' % (v(u), v(LANE)))
    k('v_lshlrev_b32 %s, 4, %s' % (v(TRQ), v(u)))
    k('v_lshlrev_b32 %s, 2, %s' % (v(TRO), v(u)))
    k('v_bfe_u32 %s, %s, 4, 1' % (v(u), v(LANE)))
    k('v_lshl_add_u32 %s, %s, 2, %s' % (v(TRQ), v(u), v(TRQ)))
    k('v_lshl_add_u32 %s, %s, 4, %s' % (v(TRO), v(u), v(TRO)))
    k('v_bfe_u32 %s, %s, 3, 1' % (v(u), v(LANE)))
    k('v_lshl_add_u32 %s, %s, 3, %s' % (v(TRQ), v(u), v(TRQ)))
    k('v_bfe_u32 %s, %s, 2, 1' % (v(u), v(LANE)))
    k('v_add_u32 %s, %s, %s' % (v(TRQ), v(u), v(TRQ)))
    k('v_bfe_u32 %s, %s, 2, 2' % (v(u), v(LANE)))
    k('v_add_u32 %s, %s, %s' % (v(TRO), v(TRO), v(u)))
    k('v_and_b32 %s, 3, %s' % (v(u), v(LANE)))
    for R in (TRQ, TRO):
        k('v_lshlrev_b32 %s, 7, %s' % (v(R), v(R)))
        k('v_lshl_add_u32 %s, %s, 3, %s' % (v(R), v(u), v(R)))
    k('v_add_u32 %s, %s, %s' % (v(TRO), s(S_T2), v(TRO)))
    k('s_and_b32 %s, %s, 1' % (s(S_T0), s(S_W)))
    k('s_lshl_b32 %s, %s, 6' % (s(S_T0), s(S_T0)))
    k('v_add_u32 %s, %s, %s' % (v(TRQ), s(S_T0), v(TRQ)))
    k('s_xor_b32 %s, %s, 1' % (s(S_T0), s(S_W)))
    k('s_mul_i32 %s, %s, %d' % (s(S_T0), s(S_T0), WSTRIDE))
    k('s_add_u32 %s, %s, %d' % (s(S_T0), s(S_T0), L_WS))
    k('v_add_u32 %s, %s, %s' % (v(TRP), s(S_T0), v(TRQ)))
    k('v_add_u32 %s, %s, %s' % (v(TRQ), s(S_T2), v(TRQ)))
    k('v_lshlrev_b32 %s, 4, %s' % (v(LW), v(LANE)))
    k('v_add_u32 %s, %s, %s' % (v(LW), s(S_T2), v(LW)))
    if after_issue: after_issue()
    freepark = [24, 88, 96, 104, 112, 120, 128, 136, 72, 80]
    parked = []
    homes = {}
    freehome = [32768, 34816]
    def target(op):
        loc = LOC[op]
        if loc[0] != 's': return loc
        p = freepark.pop(0); parked.append((op, p))
        return ('v', p)
    def dump():
        any_ = False
        while parked and freehome:
            op, p = parked.pop(0); h_ = freehome.pop(0); homes[op] = h_
            k('ds_write_b128 %s, %s offset:%d' % (v(LW), v(p, 4), h_))
            k('ds_write_b128 %s, %s offset:%d' % (v(LW), v(p + 4, 4), h_ + 1024))
            freepark.append(p); any_ = True
        if any_: k('s_waitcnt lgkmcnt(0)')
    for li in range(16):
        it = its[li]; slot = li % 4
        k.wait_vm(('wl', li))
        if it[0] != 'o':
            k('s_barrier')
            for (kap, ar) in ((it[1], TRQ), (it[1] + 2, TRP)):
                for t in range(2):
                    loc = target((it[0], kap, t))
                    for H in range(2):
                        for Q in range(2):
                            k('ds_read_b64_tr_b16 %s, %s offset:%d' % (dst(loc, 4 * H + 2 * Q, 2), v(ar), slot * 8192 + (32 * H + 2 * Q) * 128 + 32 * t))
                k('s_waitcnt lgkmcnt(0)')
            k('s_barrier')
        else:
            for j in range(2):
                for aa in range(2):
                    for H in range(2):
                        for tau in range(2):
                            k('ds_read_b64_tr_b16 %s, %s offset:%d' % (v(RAW + 8 * aa + 4 * H + 2 * tau, 2), v(TRO), slot * 8192 + (32 * j + 8 * H) * 128 + 64 * aa + 32 * tau))
                k('s_waitcnt lgkmcnt(0)')
                for aa in range(2):
                    loc = target(('o', 2 * it[1] + aa, 2 * it[2] + j))
                    mv = 'v_accvgpr_write_b32' if loc[0] == 'a' else 'v_mov_b32'
                    for H in range(2):
                        for tau in range(2):
                            src = RAW + 8 * aa + 4 * H + 2 * tau
                            k('%s %s, %s' % (mv, dst(loc, 4 * H + tau, 1), v(src)))
                            k('%s %s, %s' % (mv, dst(loc, 4 * H + tau + 2, 1), v(src + 1)))
        if li + 4 < 16:
            issue(li + 4)
        else:
            freehome += [slot * 8192 + 2048 * i for i in range(4)]
        dump()
        if li in hooks: hooks[li]()
    assert not parked and len(homes) == NS
    return homes

def chain(k, nsteps=64, prof=False, dump=False, opt={}):
    LOC = op_locs()
    LANE = 0
    def early():
        if hasattr(k, 'hook_loading'): k.hook_loading()
        k('v_and_b32 %s, 7, %s' % (v(56), v(LANE)))
        k('v_lshlrev_b32 %s, 10, %s' % (v(57), v(56)))
        k('v_lshrrev_b32 %s, 4, %s' % (v(56), v(LANE)))
        k('v_lshl_add_u32 %s, %s, 5, %s' % (v(57), v(56), v(57)))
        k('v_bfe_u32 %s, %s, 3, 1' % (v(56), v(LANE)))
        k('v_lshl_add_u32 %s, %s, 4, %s' % (v(57), v(56), v(57)))
        k('s_lshl_b32 %s, %s, 8' % (s(S_T0), s(S_W)))
        for k2 in range(2):
            k('buffer_load_dwordx4 %s, %s, %s, %s offen offset:%d' % (v(32 + 4 * k2, 4), v(57), s(S_M0, 4), s(S_T0), k2 * 128))
        k('s_lshl_b32 %s, %s, 14' % (s(S_KV), s(S_H)))
        k('s_lshl_b32 %s, %s, 12' % (s(S_T0), s(S_W)))
        k('s_add_u32 %s, %s, %s' % (s(S_KV), s(S_KV), s(S_T0)))
        k('s_mov_b32 %s, 0' % s(S_STEP))
    def kvload():
        k('v_lshlrev_b32 %s, 4, %s' % (v(7), v(LANE)))
        for i in range(4):
            k('buffer_load_dwordx4 %s, %s, %s, %s offen offset:%d sc1' % (v(KVC + 4 * i, 4), v(7), s(S_WS, 4), s(S_KV), 1024 * i))
    hooks = dict(getattr(k, 'load_hooks', {}))
    h13 = hooks.get(14)
    hooks[14] = lambda: ((h13() if h13 else None), kvload())
    homes = loader(k, LANE, LOC, early, hooks)
    if prof: k.raw('  s_memtime %s' % s(S_TS + 28, 2))
    if opt.get('loadonly'): k('s_branch L_chain_exit')
    k('v_mov_b32 %s, %s' % (v(STRM), v(6)))
    k('v_lshlrev_b32 %s, 4, %s' % (v(L16), v(LANE)))
    k('v_mov_b32 %s, %s' % (v(X3), v(55)))
    k.c('===== chain: initial state =====')
    consts(k, LANE)
    k('s_lshr_b32 %s, %s, 1' % (s(S_INR0), s(S_KV)))
    k('s_add_u32 %s, %s, 0x%x' % (s(S_INR0), s(S_INR0), INB))
    k('s_mov_b32 %s, 0x%x' % (s(S_DEF), SCRATCH))
    k('s_mov_b32 %s, 0x%x' % (s(S_KVM), MEMX + 8192))
    k('s_mov_b32 %s, 0' % s(S_TAG))
    for i in range(8):
        k('v_min_u32 %s, -2, %s' % (v(MEMF + i), v(32 + i)))
    k('ds_write_b128 %s, %s offset:%d' % (v(L16W), v(MEMF, 4), L_MEM))
    k('ds_write_b128 %s, %s offset:%d' % (v(L16W), v(MEMF + 4, 4), L_MEM + 1024))
    k('s_mov_b32 %s, 0x%x' % (s(S_T0), H2 + 0x6000))
    k('buffer_store_dwordx4 %s, %s, %s, %s offen offset:1024' % (v(MEMF + 4, 4), v(L16W), s(S_WS, 4), s(S_T0)))
    k('s_waitcnt vmcnt(0)')
    k('s_cmp_eq_u32 %s, 0' % s(S_H))
    k('s_cselect_b32 %s, 0x%x, %s' % (s(S_T0), MEMX, s(S_DEF)))
    k('buffer_store_dwordx4 %s, %s, %s, %s offen sc1' % (v(MEMF, 4), v(L16W), s(S_WS, 4), s(S_T0)))
    k('buffer_store_dwordx4 %s, %s, %s, %s offen offset:1024 sc1' % (v(MEMF + 4, 4), v(L16W), s(S_WS, 4), s(S_T0)))
    k('s_add_u32 %s, %s, 0x80000' % (s(S_KV), s(S_KV)))
    k('s_lshl_b32 %s, %s, 16' % (s(S_INW0), s(S_W)))
    k('s_lshl_b32 %s, %s, 6' % (s(S_T0), s(S_H)))
    k('s_add_u32 %s, %s, %s' % (s(S_INW0), s(S_INW0), s(S_T0)))
    k('s_add_u32 %s, %s, 0x%x' % (s(S_INW0), s(S_INW0), INB))
    k('s_add_u32 %s, %s, 0x1000' % (s(S_INW1), s(S_INW0)))
    k('s_lshl_b32 %s, %s, 11' % (s(S_T0), s(S_W)))
    k('s_mov_b32 %s, 0x%x' % (s(S_H2W), H2))
    k('s_add_u32 m0, %s, %d' % (s(S_T0), L_MEM))
    k('s_add_u32 %s, %s, 0x%x' % (s(S_H2R), s(S_T0), H2 + 0x6000))
    k('s_mov_b32 %s, 0x%x' % (s(S_H2RST), H2 + 0x4000))
    cc = (128 ** -0.5) * math.log2(math.e)
    k('s_mov_b32 %s, 0x%x' % (s(S_C), f2u(cc)))
    k('s_mov_b32 %s, 0x%x' % (s(S_C + 1), f2u(cc)))
    pend = [(i, hf) for i in range(3) for hf in range(2)]
    def RF(n=1):
        for _ in range(n):
            if pend:
                i, hf = pend.pop(0)
                k('ds_read_b128 %s, %s offset:%d' % (v(SBUF + 8 * (i % 3) + 4 * hf, 4), v(STRM), homes[STREAM[i]] + 1024 * hf), tag=('st', i))
    RF(6)
    for i in range(0, 24, 2): k('v_mov_b64 %s, 0' % v(ACCQK + i, 2))
    if prof:
        for i in range(8): k('s_mov_b32 %s, 0' % s(S_TS + 16 + i))
        k.raw('  s_memtime %s' % s(S_TS + 24, 2))
    k('s_waitcnt lgkmcnt(0)')

    used = []
    def smf(op, acc, afrag):
        loc = LOC[op]
        if loc[0] == 's':
            assert loc[1] == len(used), (op, loc, used)
            used.append(loc[1])
            assert all(p[0] != loc[1] for p in pend), ('refill not issued', op)
            k.wait_lg(('st', loc[1]))
            opnd = v(SBUF + 8 * (loc[1] % 3), 8)
        else:
            opnd = dst(loc, 0, 8)
        k('v_smfmac_f32_16x16x64_bf16 %s, %s, %s, %s' % (v(acc, 4), v(afrag, 4), opnd, v(IDX)))
        if loc[0] == 's':
            pend.append(((loc[1] + 3) % NS, 0)); pend.append(((loc[1] + 3) % NS, 1))
    ACC = {'q': ACCQK, 'k': ACCQK + 8, 'v': ACCV}
    def S(m, kap, j):
        if kap >= 2: k.wait_lg(('mf', kap))
        smf((m, kap, j), ACC[m] + 4 * j, MEMF + 4 * kap)
    k.points = []
    def pt(name):
        k.points.append(name)
        if opt.get('pt') == name:
            k.raw('  s_memtime %s' % s(S_TS + 2, 2))
    def cvt(d, x, y): k('v_cvt_pk_bf16_f32 %s, %s, %s' % (v(d), v(x), v(y)))
    def mf16(d, A, B, C=None): k('v_mfma_f32_16x16x16_bf16 %s, %s, %s, %s' % (v(d, 4), v(A, 2), v(B, 2), '0' if C is None else v(C, 4)))
    def mf32(d, A, B, C=None): k('v_mfma_f32_16x16x32_bf16 %s, %s, %s, %s' % (v(d, 4), v(A, 4), v(B, 4), '0' if C is None else v(C, 4)))
    def pkadd(d, x, y): k('v_pk_add_f32 %s, %s, %s' % (v(d, 2), v(x, 2), v(y, 2)))
    def pkfma_c(d, x, m): k('v_pk_fma_f32 %s, %s, %s, %s op_sel_hi:[1,1,0] neg_lo:[0,0,1] neg_hi:[0,0,1]' % (v(d, 2), v(x, 2), s(S_C, 2), v(m, 2)))
    def pkmul_b(d, x, m): k('v_pk_mul_f32 %s, %s, %s op_sel_hi:[1,0]' % (v(d, 2), v(x, 2), v(m, 2)))
    def add(d, x, y): k('v_add_f32 %s, %s, %s' % (v(d), v(x), v(y)))
    def mov64(d, x): k('v_mov_b64 %s, %s' % (v(d, 2), x))
    def BAR(tag): k.wait_lg(tag); k('s_barrier')
    def nops(n):
        while n > 0:
            k('s_nop %d' % (min(n, 16) - 1)); n -= 16
    ROR8 = 'row_ror:8 row_mask:0xf bank_mask:0xf'
    FAIL = 'L_fail'; DONE = 'L_chain_done'; BODY = 'L_chain_body'; BODY0 = 'L_chain_body0'
    RETRY2 = 'L_retry2'; RETRY1 = 'L_retry1'; RETRY3 = 'L_retry3'; RET3 = 'L_ret3'
    D1 = opt.get('d1', 2); D2 = opt.get('d2', 2)
    HA, HB = T1 + 7, OR_
    ORR = [X0, X1, X2]
    H1R = MEMF + 8
    VM = KVC + 4; KA = T1 + 4
    def ldE(): k('buffer_load_dwordx4 %s, %s, %s offen sc1 lds' % (v(L16), s(S_WS, 4), s(S_H2R)), tag='pe')
    def ldO(): k('buffer_load_dwordx4 %s, %s, %s offen offset:1024 sc1 lds' % (v(L16), s(S_WS, 4), s(S_H2R)), tag='po')
    def own(k2): k('ds_read_b128 %s, %s offset:%d' % (v(MEMF + 4 * k2, 4), v(L16W), L_MEM + 1024 * k2), tag=('own', k2))
    def chk4(R):
        k('v_max3_u32 %s, %s, %s, %s' % (v(HA), v(R), v(R + 1), v(R + 2)))
        k('v_max_u32 %s, %s, %s' % (v(HA), v(HA), v(R + 3)))
        k('v_cmp_eq_u32 vcc, -1, %s' % v(HA))
    def R(kap):
        p = kap >> 1; k2 = kap & 1
        k('ds_read_b128 %s, %s offset:%d' % (v(MEMF + 4 * kap, 4), v(MEMR + p - 1), L_MEM + 1024 * k2), tag=('mf', kap))
    def pf(i): k('buffer_load_dwordx4 %s, %s, %s, %s offen offset:%d sc1' % (v(KVN + 4 * i, 4), v(L16), s(S_WS, 4), s(S_KV), 1024 * i))
    def stk(so): k('buffer_store_dwordx4 %s, %s, %s, %s offen sc1' % (v(KA, 4), v(L16), s(S_WS, 4), s(so)))
    def stv(so): k('buffer_store_dwordx4 %s, %s, %s, %s offen offset:1024 sc1' % (v(VM, 4), v(L16), s(S_WS, 4), s(so)))
    def sel(d, x): k('v_mov_b32_dpp %s, %s quad_perm:[0,1,2,3] row_mask:0xf bank_mask:0xc' % (v(d), v(x)))

    k('s_branch %s' % BODY0)
    k.raw('.p2align 6')
    k.label(RETRY2)
    k('s_mov_b64 exec, vcc')
    ldE()
    if prof: k('s_add_u32 %s, %s, 1' % (s(S_TS + 23), s(S_TS + 23)))
    k('s_sub_u32 %s, %s, 1' % (s(S_SPIN), s(S_SPIN)))
    k('s_cbranch_scc1 %s' % FAIL)
    own(0)
    k.label('L_ew')
    k('s_waitcnt lgkmcnt(1)')
    chk4(MEMF)
    k('s_cbranch_vccnz %s' % RETRY2)
    k('s_mov_b64 exec, -1')
    k.label(BODY)
    if opt.get('trace') == 2: k.raw('  s_memtime %s' % s(S_TS + 8, 2))
    k.label(BODY0)
    if opt.get('o2', 1) and not opt.get('nohop'): ldO()
    abl = opt.get('abl', [])
    if abl:
        k0 = k._one
        def filt(t, tag):
            if 'vmem' in abl and t.startswith('buffer_'): return
            if 'bar' in abl and t.startswith('s_barrier'): return
            if 'stream' in abl and t.startswith('ds_read_b128') and (', %s ' % v(STRM)) in t: return
            if 'dsw' in abl and t.startswith('ds_write'): return
            if 'dsr' in abl and t.startswith('ds_read'): return
            return k0(t, tag)
        k._one = filt
    k.lg = ['x']; k.vm = []
    if opt.get('pt'): k.raw('  s_memtime %s' % s(S_TS, 2))
    k('s_barrier')
    pt('b1')
    if opt.get('trace') == 2: k.raw('  s_memtime %s' % s(S_TS + 14, 2))
    R(2)
    S('q', 0, 0); R(4); S('q', 0, 1); R(6); S('k', 0, 0); RF(); S('k', 0, 1); RF()
    pt('own0')
    S('q', 2, 0); RF(); S('q', 2, 1); RF(); S('q', 4, 0); RF(); S('q', 4, 1); RF()
    ev = [('q', 6, 0), ('q', 6, 1), ('k', 2, 0), ('k', 2, 1), ('k', 4, 0), ('k', 4, 1), ('k', 6, 0), ('k', 6, 1)]
    no = opt.get('oddat', 2)
    for o_ in ev[:no]: S(*o_); RF()
    k('s_waitcnt vmcnt(%d)' % opt.get('o2', 1)); own(1)
    for o_ in ev[no:no + 4]: S(*o_); RF()
    k.wait_lg(('own', 1))
    chk4(MEMF + 4)
    rest = ev[no + 4:]
    if not opt.get('nohop'): k('s_cbranch_vccnz %s' % RETRY3)
    k.label(RET3)
    k.vm = []
    pt('odd')
    if opt.get('trace'):
        k.raw('  s_memtime %s' % s(S_TS + 4, 2))
        k.raw('  s_memrealtime %s' % s(S_TS + 6, 2))
        k.raw('  s_waitcnt lgkmcnt(0)')
        k('v_mov_b32 %s, %s' % (v(T1), s(S_TS + 4)))
        k('v_mov_b32 %s, %s' % (v(T1 + 1), s(S_TS + 6)))
        k('s_lshl_b32 %s, %s, 2' % (s(S_T0), s(S_H)))
        k('s_add_u32 %s, %s, %s' % (s(S_T0), s(S_T0), s(S_W)))
        k('s_lshl_b32 %s, %s, 6' % (s(S_T0), s(S_T0)))
        k('s_add_u32 %s, %s, %s' % (s(S_T0), s(S_T0), s(S_STEP)))
        k('s_lshl_b32 %s, %s, 3' % (s(S_T0), s(S_T0)))
        k('s_add_u32 %s, %s, 0x%x' % (s(S_T0), s(S_T0), DBG + 0x120000))
        k('v_mov_b32 %s, 0' % v(T1 + 2))
        k('s_mov_b64 exec, 1')
        k('buffer_store_dwordx2 %s, %s, %s, %s offen' % (v(T1, 2), v(T1 + 2), s(S_WS, 4), s(S_T0)))
        if opt.get('trace') == 2:
            for i in range(4): k('v_mov_b32 %s, %s' % (v(T1 + 4 + i), s(S_TS + 8 + 2 * i)))
            k('s_sub_u32 %s, %s, 0x%x' % (s(S_T0), s(S_T0), DBG + 0x120000))
            k('s_lshl_b32 %s, %s, 1' % (s(S_T0), s(S_T0)))
            k('s_add_u32 %s, %s, 0x%x' % (s(S_T0), s(S_T0), DBG + 0x140000))
            k('buffer_store_dwordx4 %s, %s, %s, %s offen' % (v(T1 + 4, 4), v(T1 + 2), s(S_WS, 4), s(S_T0)))
        k('s_mov_b64 exec, -1')
    if dump:
        k('s_lshl_b32 %s, %s, 13' % (s(S_T0), s(S_STEP)))
        k('s_lshl_b32 %s, %s, 11' % (s(S_T1), s(S_W)))
        k('s_add_u32 %s, %s, %s' % (s(S_T0), s(S_T0), s(S_T1)))
        k('s_add_u32 %s, %s, 0x%x' % (s(S_T0), s(S_T0), DBG))
        k('buffer_store_dwordx4 %s, %s, %s, %s offen' % (v(MEMF, 4), v(L16), s(S_WS, 4), s(S_T0)))
        k('buffer_store_dwordx4 %s, %s, %s, %s offen offset:1024' % (v(MEMF + 4, 4), v(L16), s(S_WS, 4), s(S_T0)))
    k('s_barrier'); R(3)
    pt('b1b')
    rq = [5, 7]
    for o_ in rest:
        S(*o_)
        if rq: R(rq.pop(0))
        else: RF()
    S('q', 1, 0)
    if rq: R(rq.pop(0))
    else: RF()
    k('buffer_store_dword %s, %s, %s, %s offen sc1' % (v(HB), v(ST2), s(S_WS, 4), s(S_DEF)))
    if hasattr(k, 'hook_prefetch'): k.hook_prefetch()
    S('q', 1, 1)
    if rq: R(rq.pop(0))
    else: RF()
    pf(0)
    S('k', 1, 0); RF(); S('k', 1, 1); RF()
    S('q', 3, 0); RF(); S('q', 3, 1); RF(); pf(1); S('q', 5, 0); RF(); S('q', 5, 1); RF()
    S('q', 7, 0); RF(); S('q', 7, 1); RF(); pf(2)
    pt('Q')
    MXX, TA, PM = MEMF + 0, MEMF + 1, MEMF + 2
    AK = ACCQK + 8
    S('k', 3, 0); S('k', 3, 1); RF(); cvt(T1, ACCQK, ACCQK + 1)
    S('k', 5, 0); RF(); cvt(T1 + 1, ACCQK + 2, ACCQK + 3)
    S('k', 5, 1); pf(3); cvt(T1 + 2, ACCQK + 4, ACCQK + 5)
    S('k', 7, 0); RF(); cvt(T1 + 3, ACCQK + 6, ACCQK + 7)
    S('k', 7, 1); RF()
    pt('K')
    vq = [(2, 0), (0, 0), (3, 0), (0, 1), (3, 1), (4, 0), (5, 0), (5, 1), (7, 0), (7, 1), (1, 0), (1, 1), (2, 1), (4, 1), (6, 0), (6, 1)]
    def V(n=1):
        for _ in range(n):
            kap, j = vq.pop(0)
            S('v', kap, j)
    mf16(ACCQK, T1, SELT)
    k('s_add_u32 %s, %s, 0x80000' % (s(S_KV), s(S_KV)))
    mf16(ACCQK + 4, T1 + 2, SELT)
    cvt(T1 + 4, AK, AK + 1); cvt(T1 + 5, AK + 2, AK + 3)
    V(1); RF()
    cvt(T1 + 6, AK + 4, AK + 5); cvt(T1 + 7, AK + 6, AK + 7)
    mf16(AK, T1 + 4, SELT); RF()
    cvt(T1, ACCQK, ACCQK + 1); cvt(T1 + 1, ACCQK + 2, ACCQK + 3)
    mf16(AK + 4, T1 + 6, SELT)
    cvt(T1 + 2, ACCQK + 4, ACCQK + 5); cvt(T1 + 3, ACCQK + 6, ACCQK + 7)
    V(1)
    mf32(ACCQK, KVC, T1)
    cvt(T1 + 4, AK, AK + 1); cvt(T1 + 5, AK + 2, AK + 3)
    mf32(ACCQK + 4, KVC + 4, T1)
    cvt(T1 + 6, AK + 4, AK + 5); cvt(T1 + 7, AK + 6, AK + 7)
    V(1); RF()
    mf32(AK, T1 + 4, T1); RF()
    pt('sm')
    for j in range(4): sel(ACCQK + j, ACCQK + 4 + j)
    V(1)
    k('ds_write_b128 %s, %s offset:%d' % (v(L16W), v(ACCQK, 4), L_SX), tag='xw')
    sel(AK, AK + 2); sel(AK + 1, AK + 3)
    V(1)
    k('ds_write_b64 %s, %s' % (v(SMW), v(AK, 2)), tag='sw')
    pt('swr')
    WACC = MEMF + 16; OF = MEMF + 4
    V(1); RF(); V(1); RF(); V(opt.get('vb2', 3))
    BAR('sw')
    pt('b2')
    XSR = [KVC, KVC + 4, ACCQK + 4]
    def XR(p): k('ds_read_b128 %s, %s offset:%d' % (v(XSR[p], 4), v(MEMR + p), L_SX), tag=('xs', p))
    MS = AK; XS = KVC
    XR(0); V(1); XR(1); V(1); XR(2); V(1)
    k('ds_read2_b64 %s, %s offset0:0 offset1:32' % (v(MS, 4), v(SMR)), tag='ms0')
    V(1)
    k('ds_read2_b64 %s, %s offset0:64 offset1:96' % (v(MS + 4, 4), v(SMR)), tag='ms1')
    V(len(vq))
    k.wait_lg(('xs', 0))
    pkadd(XS, XS, ACCQK); pkadd(XS + 2, XS + 2, ACCQK + 2)
    k.wait_lg(('xs', 2))
    pkadd(ACCQK + 4, ACCQK + 4, XS + 4); pkadd(ACCQK + 6, ACCQK + 6, XS + 6)
    pkadd(XS, XS, ACCQK + 4); pkadd(XS + 2, XS + 2, ACCQK + 6)
    k.wait_lg('ms1')
    pkadd(MS, MS, MS + 2); pkadd(MS + 4, MS + 4, MS + 6)
    k('v_max3_f32 %s, %s, %s, %s' % (v(MXX), v(XS), v(XS + 1), v(XS + 2)))
    pkadd(MS, MS, MS + 4)
    pt('sums')
    k('v_max_f32 %s, %s, %s' % (v(MXX), v(MXX), v(XS + 3)))
    k('v_max3_f32 %s, %s, %s, %s' % (v(MXX), v(MXX), v(MS), v(MS + 1)))
    cvt(VM, ACCV, ACCV + 1); cvt(VM + 1, ACCV + 2, ACCV + 3)
    k('v_max_f32_dpp %s, %s, %s %s' % (v(MXX), v(MXX), v(MXX), ROR8))
    k('v_mov_b32 %s, %s' % (v(TA), v(MXX)))
    cvt(VM + 2, ACCV + 4, ACCV + 5); cvt(VM + 3, ACCV + 6, ACCV + 7)
    k('v_permlane16_swap_b32 %s, %s' % (v(MXX), v(TA)))
    k('v_max_f32 %s, %s, %s' % (v(MXX), v(MXX), v(TA)))
    k('v_mov_b32 %s, %s' % (v(TA), v(MXX)))
    mov64(WACC, '0'); mov64(WACC + 2, '0')
    k('v_permlane32_swap_b32 %s, %s' % (v(MXX), v(TA)))
    k('v_max_f32 %s, %s, %s' % (v(MXX), v(MXX), v(TA)))
    k('v_mul_f32 %s, %s, %s' % (v(MXX), s(S_C), v(MXX)))
    pt('max')
    def ex(d): k('v_exp_f32 %s, %s' % (v(d), v(d)))
    pkfma_c(XS, XS, MXX); pkfma_c(XS + 2, XS + 2, MXX); pkfma_c(MS, MS, MXX)
    for j in range(4): ex(XS + j)
    PX = T1
    ex(MS)
    cvt(PX, XS, XS + 1); cvt(PX + 1, XS + 2, XS + 3)
    ex(MS + 1)
    for j in range(2): k('v_mov_b32_dpp %s, %s %s' % (v(PX + 2 + j), v(PX + j), ROR8))
    cvt(PM, MS, MS + 1)
    pkadd(XS, XS, XS + 2)
    O0, O1 = ACCQK, ACCQK + 4
    LS = MXX
    mf32(O0, KVC + 8, PX)
    k('v_mov_b32_dpp %s, %s %s' % (v(PM + 1), v(PM), ROR8))
    add(MS, MS, MS + 1)
    mf32(O1, KVC + 12, PX)
    add(XS, XS, XS + 1)
    k('v_fma_f32 %s, %s, 0.5, %s' % (v(LS), v(MS), v(XS)))
    mf16(O0, VM, PM, O0)
    k('v_add_f32_dpp %s, %s, %s %s' % (v(LS), v(LS), v(LS), ROR8))
    k('v_mov_b32 %s, %s' % (v(TA), v(LS)))
    mf16(O1, VM + 2, PM, O1)
    pt('pv')
    k('v_permlane16_swap_b32 %s, %s' % (v(LS), v(TA)))
    add(LS, LS, TA)
    k('v_mov_b32 %s, %s' % (v(TA), v(LS)))
    mov64(WACC + 4, '0'); mov64(WACC + 6, '0')
    k('v_permlane32_swap_b32 %s, %s' % (v(LS), v(TA)))
    add(LS, LS, TA)
    k('v_rcp_f32 %s, %s' % (v(LS), v(LS)))
    mov64(WACC + 8, '0')
    pkmul_b(O0, O0, LS); pkmul_b(O0 + 2, O0 + 2, LS); pkmul_b(O1, O1, LS); pkmul_b(O1 + 2, O1 + 2, LS)
    for i in range(4): cvt(T1 + i, O0 + 2 * i, O0 + 2 * i + 1)
    k('ds_write_b128 %s, %s offset:%d' % (v(OW), v(T1, 4), L_OX), tag='ow')
    pt('owr')
    for j in range(4): k('v_mov_b32_dpp %s, %s row_ror:8 row_mask:0xf bank_mask:0xc' % (v(T1 + j), v(T1 + j)))
    for i in range(10, 16, 2): mov64(WACC + i, '0')
    for i in range(0, 8, 2): mov64(ACCV + i, '0')
    def WO(a_, kap):
        if kap: k.wait_lg(('of', kap))
        smf(('o', a_, kap), WACC + 4 * a_, T1 if kap == 0 else OF + 4 * (kap - 1))
    def OFR(kap): k('ds_read_b128 %s, %s offset:%d' % (v(OF + 4 * (kap - 1), 4), v(ORR[kap - 1]), L_OX), tag=('of', kap))
    k('s_mov_b32 %s, %s' % (s(S_DEF), s(S_KVM)))
    k('s_add_u32 %s, %s, 0x2000' % (s(S_KVM), s(S_KVM)))
    WO(0, 0); BAR('ow'); OFR(1)
    pt('b3')
    WO(1, 0); OFR(2)
    WO(2, 0); OFR(3)
    WO(3, 0); RF()
    PK = ACCQK
    def tag(r): k('v_bfi_b32 %s, 1, %s, %s' % (v(r), s(S_TAG), v(r)))
    def pack(a_):
        cvt(PK + 2 * a_, WACC + 4 * a_, WACC + 4 * a_ + 1); cvt(PK + 2 * a_ + 1, WACC + 4 * a_ + 2, WACC + 4 * a_ + 3); tag(PK + 2 * a_)
    def sto(a_):
        k('buffer_store_dwordx2 %s, %s, %s, %s offen offset:%d' % (v(PK + 2 * a_, 2), v(ST1), s(S_WS, 4), s(S_INW0 if a_ < 2 else S_INW1), 2048 * (a_ & 1)))
    RA = MEMF + 16
    WO(0, 1); RF(); mov64(ACCQK + 8, '0'); WO(0, 2); mov64(ACCQK + 10, '0'); WO(0, 3); mov64(ACCQK + 12, '0')
    WO(1, 1); mov64(ACCQK + 14, '0'); WO(1, 2); RF(); pack(0); WO(1, 3); sto(0)
    pt('st0')
    WO(2, 1); RF(); mov64(RA, '0'); WO(2, 2); RF(); pack(1); WO(2, 3); sto(1)
    pt('st1')
    WO(3, 1); RF(); mov64(RA + 2, '0'); WO(3, 2); pack(2); WO(3, 3); sto(2)
    RF(2)
    k('s_mov_b32 %s, %d' % (s(S_SPIN), SPIN_MAX))
    k('s_add_u32 %s, %s, 0x2000' % (s(S_H2R), s(S_H2R)))
    k('s_and_b32 %s, %s, 0x%x' % (s(S_H2R), s(S_H2R), 0xffff7fff))
    k('s_add_u32 %s, %s, 1' % (s(S_STEP), s(S_STEP)))
    mov64(PK, '0'); mov64(PK + 2, '0')
    pack(3); sto(3)
    pt('st2')
    if opt.get('trace') == 2: k.raw('  s_memtime %s' % s(S_TS + 10, 2))
    assert len(used) == NS and not pend
    k.c('--- H1')
    HSET = [MEMF + 8, MEMF + 20, MEMF + 0]
    def round1(i):
        k('buffer_load_dwordx4 %s, %s, %s, %s offen sc1' % (v(HSET[i], 4), v(L16), s(S_WS, 4), s(S_INR0)))
        k('buffer_load_dwordx4 %s, %s, %s, %s offen offset:1024 sc1' % (v(HSET[i] + 4, 4), v(L16), s(S_WS, 4), s(S_INR0)))
    def h1chk(i):
        Rg = HSET[i]
        k('s_waitcnt vmcnt(%d)' % (2 * (D1 - 1)))
        k('v_smfmac_f32_16x16x64_bf16 %s, %s, %s, %s' % (v(RA, 4), v(SELR, 4), v(Rg, 8), v(IDXR)))
        k('v_bitop3_b32 %s, %s, %s, %s bitop3:0x7e' % (v(HA), v(Rg), v(Rg + 2), s(S_TAG)))
        k('v_bitop3_b32 %s, %s, %s, %s bitop3:0x7e' % (v(HA - 1), v(Rg + 4), v(Rg + 6), s(S_TAG)))
        k('v_bitop3_b32 %s, %s, %s, 1 bitop3:0xa8' % (v(HA), v(HA), v(HA - 1)))
        k('v_cmp_ne_u32 vcc, 0, %s' % v(HA))
        k('v_mov_b32 %s, -1' % v(HA))
    def ptacc():
        if opt.get('pt'):
            k.raw('  s_waitcnt lgkmcnt(0)')
            k('s_sub_u32 %s, %s, %s' % (s(S_T0), s(S_TS + 2), s(S_TS)))
            k('s_add_u32 %s, %s, %s' % (s(S_TS + 16), s(S_TS + 16), s(S_T0)))
    if opt.get('nohop'):
        if abl: k._one = k0
        ptacc()
        mov64(PK + 4, '0'); mov64(PK + 6, '0')
        k('s_waitcnt vmcnt(0) lgkmcnt(0)')
        k('s_barrier')
        k('s_cmp_eq_u32 %s, %d' % (s(S_STEP), nsteps - 1))
        k('s_cbranch_scc1 %s' % DONE)
        k('s_branch %s' % BODY0)
    k('s_cmp_lt_u32 %s, 2' % s(S_W))
    k('s_cbranch_scc1 L_early')
    nops(opt.get('late1', 32))
    k.label('L_early')
    mov64(PK + 4, '0'); mov64(PK + 6, '0')
    nops(opt.get('pre1', 32))
    for i in range(D1):
        round1(i)
        if i < D1 - 1: nops(opt.get('gap1', 20))
    k('s_cmp_eq_u32 %s, %d' % (s(S_STEP), nsteps - 1))
    k.label('L_h1w')
    h1chk(0)
    k('s_cbranch_vccnz L_h1r0')
    k.label('L_h1ok')
    mov64(KVC, v(KVN, 2))
    for rr in ('row_ror:4', 'row_ror:8'):
        for j in range(2):
            k('v_add_f32_dpp %s, %s, %s %s row_mask:0xf bank_mask:0xf' % (v(RA + j), v(RA + j), v(RA + j), rr))
    cvt(HB, RA, RA + 1)
    k('v_min_u32 %s, -2, %s' % (v(HB), v(HB)))
    k('s_cbranch_scc1 %s' % DONE)
    k('buffer_store_dword %s, %s, %s, %s offen' % (v(HB), v(ST2), s(S_WS, 4), s(S_H2W)))
    k('buffer_store_dword %s, %s, %s, %s offen' % (v(HA), v(ST2), s(S_WS, 4), s(S_H2RST)))
    pt('p1ok')
    if opt.get('trace') == 2: k.raw('  s_memtime %s' % s(S_TS + 12, 2))
    for i in range(2, 16, 2): mov64(KVC + i, v(KVN + i, 2))
    ptacc()
    k('s_xor_b32 %s, %s, 1' % (s(S_TAG), s(S_TAG)))
    for r in (S_H2W, S_H2RST):
        k('s_add_u32 %s, %s, 0x2000' % (s(r), s(r)))
        k('s_and_b32 %s, %s, 0x%x' % (s(r), s(r), 0xffff7fff))
    k('s_mov_b32 %s, %d' % (s(S_SPIN), SPIN_MAX))
    k('s_waitcnt lgkmcnt(0)')
    k('s_cmp_ge_u32 %s, 2' % s(S_W))
    k('s_cbranch_scc1 L_late2')
    nops(opt.get('early2', 32))
    k.label('L_late2')
    nops(opt.get('pre2', 0))
    NE = opt.get('ne', 2)
    for i in range(NE):
        ldE(); nops(opt.get('gapa', 20) if i < NE - 1 else opt.get('gap2', 24))
    ldO()
    k('s_waitcnt vmcnt(%d)' % NE)
    own(0)
    nops(opt.get('rd2', 4))
    own(0)
    k('s_branch L_ew')
    for i in range(D1):
        k.label('L_h1r%d' % i)
        k('s_mov_b64 exec, vcc')
        round1(i)
        k('s_mov_b64 exec, -1')
        if prof: k('s_add_u32 %s, %s, 0x10000' % (s(S_TS + 23), s(S_TS + 23)))
        k('s_sub_u32 %s, %s, 1' % (s(S_SPIN), s(S_SPIN)))
        k('s_cbranch_scc1 %s' % FAIL)
        k('s_cmp_eq_u32 %s, %d' % (s(S_STEP), nsteps - 1))
        mov64(RA, '0'); mov64(RA + 2, '0')
        if i == D1 - 1:
            k('s_branch L_h1w')
        else:
            h1chk(i + 1)
            k('s_cbranch_vccz L_h1ok')
    k.label(RETRY3)
    k('s_mov_b64 exec, vcc')
    ldO()
    if prof: k('s_add_u32 %s, %s, 0x100' % (s(S_TS + 22), s(S_TS + 22)))
    k('s_sub_u32 %s, %s, 1' % (s(S_SPIN), s(S_SPIN)))
    k('s_cbranch_scc1 %s' % FAIL)
    k('s_waitcnt vmcnt(1)')
    own(1)
    k('s_waitcnt lgkmcnt(0)')
    chk4(MEMF + 4)
    k('s_cbranch_vccnz %s' % RETRY3)
    k('s_mov_b64 exec, -1')
    k('s_branch %s' % RET3)
    k.label(DONE)
    k('buffer_store_dword %s, %s, %s, %s offen sc1' % (v(HB), v(ST2), s(S_WS, 4), s(S_DEF)))
    k.label('L_chain_exit')
```

```python
from fw import *
from layout import *
import math, struct

S_WS, S_WQ, S_WK, S_WV, S_WO, S_M0, S_DBG = 8, 12, 16, 20, 24, 28, 32
S_H, S_W, S_STEP, S_TAG = 40, 41, 42, 43
S_KV, S_KVM, S_INW0, S_INW1, S_INR0, S_DEF, S_H2W, S_H2R, S_H2RST = 44, 45, 46, 47, 48, 49, 51, 52, 53
S_SPIN, S_T0, S_T1, S_T2 = 54, 55, 56, 57
S_C = 58
S_TS = 64

MEMF, ACCQK, ACCV, KVC, KVN, T1 = 0, 32, 48, 56, 72, 88
SELR, SELT = 96, 102
X0, X1 = 100, 101
IDX, L16, L16W, MEMR, SMW, SMR, OW, OR_, ST1, ST2, STRM, IDXR = 104, 105, 106, 107, 110, 111, 112, 113, 114, 115, 116, 117
X2, X3 = 118, 119
SBUF = 120
VSTAT = 144
L_MEM, L_SX, L_SM, L_OX, L_WS = 0, 8192, 8192 + 2 * 2048 + 1024, 8192 + 1024, 16384
WSTRIDE = 36864
OOR = 0x30000
SPIN_MAX = 1 << 20

def f2u(x):
    return struct.unpack('<I', struct.pack('<f', x))[0]

def srd(k, base, ptr_lo, nbytes):
    k('s_mov_b32 %s, %s' % (s(base), s(ptr_lo)))
    k('s_and_b32 %s, %s, 0xffff' % (s(base + 1), s(ptr_lo + 1)))
    k('s_mov_b32 %s, 0x%x' % (s(base + 2), nbytes))
    k('s_mov_b32 %s, 0x00020000' % s(base + 3))

ALLOPS = [(m, kap, t) for m in 'qkv' for kap in range(8) for t in range(2)] + [('o', a_, kap) for a_ in range(4) for kap in range(4)]
STREAM = [('q', 0, 0), ('k', 0, 0), ('q', 2, 1), ('q', 6, 0), ('k', 2, 1), ('k', 6, 0), ('q', 1, 1), ('q', 3, 1), ('q', 7, 0),
          ('k', 3, 1), ('k', 7, 0), ('v', 2, 0), ('v', 3, 0), ('v', 4, 0), ('o', 2, 0), ('o', 1, 2), ('o', 2, 1), ('o', 3, 3)]
NS = len(STREAM)

def op_locs():
    loc = {}
    na = nv = 0
    for o in ALLOPS:
        if o in STREAM:
            loc[o] = ('s', STREAM.index(o))
        elif na < 32:
            loc[o] = ('a', 8 * na); na += 1
        else:
            loc[o] = ('v', VSTAT + 8 * nv); nv += 1
    assert na == 32 and nv == 14 and NS == 18
    return loc

def dst(loc, r, n):
    return (a if loc[0] == 'a' else v)(loc[1] + r, n)

def consts(k, LANE):
    k.c('===== chain: constants =====')
    tA, tB, tC, tD = 8, 9, 10, 11
    u4, u5, u6, u7 = 12, 13, 14, 15
    k('s_lshl_b32 %s, %s, 11' % (s(S_T0), s(S_W)))
    k('v_add_u32 %s, %s, %s' % (v(L16W), s(S_T0), v(L16)))
    for p in (1, 2, 3):
        k('v_xor_b32 %s, 0x%x, %s' % (v(MEMR + p - 1), p << 11, v(L16W)))
    k('v_and_b32 %s, 15, %s' % (v(tA), v(LANE)))
    k('v_lshrrev_b32 %s, 4, %s' % (v(tB), v(LANE)))
    k('v_and_b32 %s, 7, %s' % (v(tC), v(LANE)))
    k('v_cmp_gt_u32 vcc, 8, %s' % v(tA))
    k('v_mov_b32 %s, 0xeeee' % v(IDX))
    k('v_mov_b32 %s, 0x4444' % v(tD))
    k('v_cndmask_b32 %s, %s, %s, vcc' % (v(IDX), v(IDX), v(tD)))
    k('v_mov_b32 %s, 0x%x' % (v(tD), OOR))
    k('v_lshl_add_u32 %s, %s, 3, %s' % (v(OR_), v(tB), v(tC)))
    k('v_lshlrev_b32 %s, 4, %s' % (v(OR_), v(OR_)))
    k('s_and_b32 %s, %s, 1' % (s(S_T0), s(S_W)))
    k('s_lshl_b32 %s, %s, 9' % (s(S_T0), s(S_T0)))
    k('s_lshr_b32 %s, %s, 1' % (s(S_T1), s(S_W)))
    k('s_lshl_b32 %s, %s, 11' % (s(S_T1), s(S_T1)))
    k('s_add_u32 %s, %s, %s' % (s(S_T0), s(S_T0), s(S_T1)))
    k('v_add_u32 %s, %s, %s' % (v(OW), s(S_T0), v(OR_)))
    for p in (1, 2, 3):
        k('v_xor_b32 %s, 0x%x, %s' % (v([X0, X1, X2][p - 1]), ((p & 1) << 9) | ((p >> 1) << 11), v(OW)))
    k('v_cndmask_b32 %s, %s, %s, vcc' % (v(OW), v(tD), v(OW)))
    k('v_and_b32 %s, 0xff, %s' % (v(SMR), v(OR_)))
    k('v_and_b32 %s, 8, %s' % (v(u4), v(tA)))
    k('v_add_u32 %s, %s, %s' % (v(SMR), v(u4), v(SMR)))
    k('v_add_u32 %s, %d, %s' % (v(SMR), L_SM, v(SMR)))
    k('s_lshl_b32 %s, %s, 8' % (s(S_T0), s(S_W)))
    k('v_add_u32 %s, %s, %s' % (v(SMW), s(S_T0), v(SMR)))
    k('v_cmp_gt_u32 vcc, 32, %s' % v(LANE))
    k('v_cndmask_b32 %s, %s, %s, vcc' % (v(SMW), v(tD), v(SMW)))
    k('v_lshrrev_b32 %s, 3, %s' % (v(u4), v(LANE)))
    k('v_lshlrev_b32 %s, 13, %s' % (v(ST1), v(u4)))
    k('v_lshl_add_u32 %s, %s, 3, %s' % (v(ST1), v(tC), v(ST1)))
    k('v_lshlrev_b32 %s, 2, %s' % (v(ST2), v(tA)))
    k('v_lshl_add_u32 %s, %s, 4, %s' % (v(ST2), v(tB), v(ST2)))
    k('s_lshr_b32 %s, %s, 3' % (s(S_T0), s(S_H)))
    k('s_lshl_b32 %s, %s, 11' % (s(S_T0), s(S_T0)))
    for (src, bit, sh) in ((S_W, 1, 10), (S_W, 0, 9), (S_H, 2, 8), (S_H, 0, 7), (S_H, 1, 6)):
        k('s_bfe_u32 %s, %s, 0x%x' % (s(S_T1), s(src), (1 << 16) | bit))
        k('s_lshl_b32 %s, %s, %d' % (s(S_T1), s(S_T1), sh))
        k('s_add_u32 %s, %s, %s' % (s(S_T0), s(S_T0), s(S_T1)))
    k('v_add_u32 %s, %s, %s' % (v(ST2), s(S_T0), v(ST2)))
    k('v_cmp_gt_u32 vcc, 4, %s' % v(tA))
    k('v_bfrev_b32 %s, 1' % v(u4))
    k('v_cndmask_b32 %s, %s, %s, vcc' % (v(ST2), v(u4), v(ST2)))
    k('v_and_b32 %s, 1, %s' % (v(tD), v(tB)))
    k('v_lshlrev_b32 %s, 2, %s' % (v(tD), v(tD)))
    k('v_sub_u32 %s, %s, %s' % (v(tD), v(tC), v(tD)))
    k('v_mov_b32 %s, 0x3f80' % v(u4))
    k('v_mov_b32 %s, 0x3f800000' % v(u5))
    for r in range(2):
        k('v_mov_b32 %s, 0' % v(SELT + r))
        k('v_cmp_eq_u32 vcc, %d, %s' % (2 * r, v(tD)))
        k('v_cndmask_b32 %s, %s, %s, vcc' % (v(SELT + r), v(SELT + r), v(u4)))
        k('v_cmp_eq_u32 vcc, %d, %s' % (2 * r + 1, v(tD)))
        k('v_cndmask_b32 %s, %s, %s, vcc' % (v(SELT + r), v(SELT + r), v(u5)))
    k('v_and_b32 %s, 2, %s' % (v(u6), v(tA)))
    k('v_cmp_eq_u32 vcc, 0, %s' % v(u6))
    k('v_mov_b32 %s, 0' % v(u7))
    k('v_cndmask_b32 %s, %s, %s, vcc' % (v(u6), v(u7), v(u4)))
    k('v_and_b32 %s, 1, %s' % (v(u5), v(tA)))
    k('v_cmp_eq_u32 vcc, 0, %s' % v(u5))
    k('v_cndmask_b32 %s, %s, %s, vcc' % (v(SELR), v(u7), v(u6)))
    k('v_cndmask_b32 %s, %s, %s, vcc' % (v(SELR + 1), v(u6), v(u7)))
    k('v_mov_b32 %s, %s' % (v(SELR + 2), v(SELR)))
    k('v_mov_b32 %s, %s' % (v(SELR + 3), v(SELR + 1)))
    k('v_lshrrev_b32 %s, 2, %s' % (v(u6), v(tA)))
    k('v_xor_b32 %s, 1, %s' % (v(u7), v(u6)))
    k('v_lshl_add_u32 %s, %s, 2, %s' % (v(u6), v(u7), v(u6)))
    k('v_mul_u32_u24 %s, 0x1111, %s' % (v(IDXR), v(u6)))

def loader(k, LANE, LOC, after_issue=None, hooks={}):
    k.c('===== chain: weight load =====')
    GQ, GO, TRQ, TRP, TRO, LW, u, u2 = 1, 2, 3, 4, 5, 6, 7, 8
    RAW = 8
    k('s_mul_i32 %s, %s, %d' % (s(S_T2), s(S_W), WSTRIDE))
    k('s_add_u32 %s, %s, %d' % (s(S_T2), s(S_T2), L_WS))
    k('v_lshrrev_b32 %s, 3, %s' % (v(u), v(LANE)))
    k('v_and_b32 %s, 7, %s' % (v(u2), v(LANE)))
    k('v_lshlrev_b32 %s, 4, %s' % (v(u2), v(u2)))
    k('v_lshl_add_u32 %s, %s, 13, %s' % (v(GQ), v(u), v(u2)))
    k('v_lshl_add_u32 %s, %s, 10, %s' % (v(GO), v(u), v(u2)))
    k('s_lshl_b32 %s, %s, 8' % (s(S_T0), s(S_H)))
    k('s_lshr_b32 %s, %s, 1' % (s(S_T1), s(S_W)))
    k('s_lshl_b32 %s, %s, 7' % (s(S_T1), s(S_T1)))
    k('s_add_u32 %s, %s, %s' % (s(S_T0), s(S_T0), s(S_T1)))
    k('v_add_u32 %s, %s, %s' % (v(GQ), s(S_T0), v(GQ)))
    k('s_lshl_b32 %s, %s, 17' % (s(S_T0), s(S_H)))
    k('s_lshl_b32 %s, %s, 8' % (s(S_T1), s(S_W)))
    k('s_add_u32 %s, %s, %s' % (s(S_T0), s(S_T0), s(S_T1)))
    k('v_add_u32 %s, %s, %s' % (v(GO), s(S_T0), v(GO)))
    its = [('o', 0, 0), ('o', 1, 0), ('o', 0, 1), ('o', 1, 1), ('v', 5), ('v', 1), ('v', 4), ('k', 5), ('q', 5), ('v', 0), ('k', 4), ('q', 4), ('k', 1), ('k', 0), ('q', 1), ('q', 0)]
    its = [(it, hf) for it in its for hf in range(2)]
    NI, NSL = len(its), 9
    def issue(li):
        it, hf = its[li]; slot = li % NSL
        for i in range(4):
            if it[0] == 'o':
                srdn, ga = S_WO, GO
                if i == 0:
                    k('s_xor_b32 %s, %s, %d' % (s(S_T0), s(S_W), 2 * it[2] + hf))
                    k('s_lshl_b32 %s, %s, 15' % (s(S_T0), s(S_T0)))
                    k('s_add_u32 %s, %s, %d' % (s(S_T0), s(S_T0), it[1] * 128))
                else:
                    k('s_add_u32 %s, %s, %d' % (s(S_T0), s(S_T0), 8 * 1024))
            else:
                srdn, ga = {'q': S_WQ, 'k': S_WK, 'v': S_WV}[it[0]], GQ
                if i == 0:
                    k('s_lshl_b32 %s, %s, 2' % (s(S_T0), s(S_W)))
                    k('s_xor_b32 %s, %s, %d' % (s(S_T0), s(S_T0), 2 * it[1] + hf))
                    k('s_lshl_b32 %s, %s, 18' % (s(S_T0), s(S_T0)))
                else:
                    k('s_add_u32 %s, %s, %d' % (s(S_T0), s(S_T0), 8 * 8192))
            k('s_add_u32 m0, %s, %d' % (s(S_T2), slot * 4096 + i * 1024))
            k('buffer_load_dwordx4 %s, %s, %s offen lds' % (v(ga), s(srdn, 4), s(S_T0)), tag=('wl', li))
    for li in range(NSL): issue(li)
    k('v_bfe_u32 %s, %s, 5, 1' % (v(u), v(LANE)))
    k('v_lshlrev_b32 %s, 4, %s' % (v(TRQ), v(u)))
    k('v_lshlrev_b32 %s, 2, %s' % (v(TRO), v(u)))
    k('v_bfe_u32 %s, %s, 4, 1' % (v(u), v(LANE)))
    k('v_lshl_add_u32 %s, %s, 2, %s' % (v(TRQ), v(u), v(TRQ)))
    k('v_lshl_add_u32 %s, %s, 4, %s' % (v(TRO), v(u), v(TRO)))
    k('v_bfe_u32 %s, %s, 3, 1' % (v(u), v(LANE)))
    k('v_lshl_add_u32 %s, %s, 3, %s' % (v(TRQ), v(u), v(TRQ)))
    k('v_bfe_u32 %s, %s, 2, 1' % (v(u), v(LANE)))
    k('v_add_u32 %s, %s, %s' % (v(TRQ), v(u), v(TRQ)))
    k('v_bfe_u32 %s, %s, 2, 2' % (v(u), v(LANE)))
    k('v_add_u32 %s, %s, %s' % (v(TRO), v(TRO), v(u)))
    k('v_and_b32 %s, 3, %s' % (v(u), v(LANE)))
    for R in (TRQ, TRO):
        k('v_lshlrev_b32 %s, 7, %s' % (v(R), v(R)))
        k('v_lshl_add_u32 %s, %s, 3, %s' % (v(R), v(u), v(R)))
    k('v_add_u32 %s, %s, %s' % (v(TRO), s(S_T2), v(TRO)))
    k('s_and_b32 %s, %s, 1' % (s(S_T0), s(S_W)))
    k('s_lshl_b32 %s, %s, 6' % (s(S_T0), s(S_T0)))
    k('v_add_u32 %s, %s, %s' % (v(TRQ), s(S_T0), v(TRQ)))
    k('s_xor_b32 %s, %s, 1' % (s(S_T0), s(S_W)))
    k('s_mul_i32 %s, %s, %d' % (s(S_T0), s(S_T0), WSTRIDE))
    k('s_add_u32 %s, %s, %d' % (s(S_T0), s(S_T0), L_WS))
    k('v_add_u32 %s, %s, %s' % (v(TRP), s(S_T0), v(TRQ)))
    k('v_add_u32 %s, %s, %s' % (v(TRQ), s(S_T2), v(TRQ)))
    k('v_lshlrev_b32 %s, 4, %s' % (v(LW), v(LANE)))
    k('v_add_u32 %s, %s, %s' % (v(LW), s(S_T2), v(LW)))
    if after_issue: after_issue()
    freepark = [24, 40, 88, 96, 104, 112, 120, 128, 136, 72, 80, 8, 16]
    parked = []; building = {}
    homes = {}
    freehome = []
    def target(op):
        loc = LOC[op]
        if loc[0] != 's': return loc
        if op not in building: building[op] = freepark.pop(0)
        return ('v', building[op])
    def done(op):
        if op in building: parked.append((op, building.pop(op)))
    def dump():
        any_ = False
        while parked and freehome:
            op, p = parked.pop(0); h_ = freehome.pop(0); homes[op] = h_
            k('ds_write_b128 %s, %s offset:%d' % (v(LW), v(p, 4), h_))
            k('ds_write_b128 %s, %s offset:%d' % (v(LW), v(p + 4, 4), h_ + 1024))
            freepark.append(p); any_ = True
        if any_: k('s_waitcnt lgkmcnt(0)')
    def release(li):
        if li + NSL < NI: issue(li + NSL)
        else: freehome.extend([(li % NSL) * 4096, (li % NSL) * 4096 + 2048])
    for li in range(NI):
        it, hf = its[li]; slot = li % NSL
        k.wait_vm(('wl', li))
        if it[0] != 'o':
            k('s_barrier')
            if its[li - 1][0][0] != 'o': release(li - 1)
            dump()
            for (kap, ar) in ((it[1], TRQ), (it[1] + 2, TRP)):
                for t in range(2):
                    loc = target((it[0], kap, t))
                    for Q in range(2):
                        k('ds_read_b64_tr_b16 %s, %s offset:%d' % (dst(loc, 4 * hf + 2 * Q, 2), v(ar), slot * 4096 + 2 * Q * 128 + 32 * t))
                    if hf: done((it[0], kap, t))
            k('s_waitcnt lgkmcnt(0)')
        else:
            for aa in range(2):
                for H in range(2):
                    for tau in range(2):
                        k('ds_read_b64_tr_b16 %s, %s offset:%d' % (v(RAW + 8 * aa + 4 * H + 2 * tau, 2), v(TRO), slot * 4096 + 8 * H * 128 + 64 * aa + 32 * tau))
            k('s_waitcnt lgkmcnt(0)')
            release(li)
            for aa in range(2):
                op = ('o', 2 * it[1] + aa, 2 * it[2] + hf)
                loc = target(op)
                mv = 'v_accvgpr_write_b32' if loc[0] == 'a' else 'v_mov_b32'
                for H in range(2):
                    for tau in range(2):
                        src = RAW + 8 * aa + 4 * H + 2 * tau
                        k('%s %s, %s' % (mv, dst(loc, 4 * H + tau, 1), v(src)))
                        k('%s %s, %s' % (mv, dst(loc, 4 * H + tau + 2, 1), v(src + 1)))
                done(op)
        if li in hooks: hooks[li]()
    k('s_barrier')
    release(NI - 1)
    dump()
    assert not parked and len(homes) == NS
    return homes

def chain(k, nsteps=64, prof=False, dump=False, opt={}):
    LOC = op_locs()
    LANE = 0
    def early():
        if hasattr(k, 'hook_loading'): k.hook_loading()
        k('v_and_b32 %s, 7, %s' % (v(56), v(LANE)))
        k('v_lshlrev_b32 %s, 10, %s' % (v(57), v(56)))
        k('v_lshrrev_b32 %s, 4, %s' % (v(56), v(LANE)))
        k('v_lshl_add_u32 %s, %s, 5, %s' % (v(57), v(56), v(57)))
        k('v_bfe_u32 %s, %s, 3, 1' % (v(56), v(LANE)))
        k('v_lshl_add_u32 %s, %s, 4, %s' % (v(57), v(56), v(57)))
        k('s_lshl_b32 %s, %s, 8' % (s(S_T0), s(S_W)))
        for k2 in range(2):
            k('buffer_load_dwordx4 %s, %s, %s, %s offen offset:%d' % (v(32 + 4 * k2, 4), v(57), s(S_M0, 4), s(S_T0), k2 * 128))
        k('s_lshl_b32 %s, %s, 14' % (s(S_KV), s(S_H)))
        k('s_lshl_b32 %s, %s, 12' % (s(S_T0), s(S_W)))
        k('s_add_u32 %s, %s, %s' % (s(S_KV), s(S_KV), s(S_T0)))
        k('s_mov_b32 %s, 0' % s(S_STEP))
    def kvload():
        k('v_lshlrev_b32 %s, 4, %s' % (v(7), v(LANE)))
        for i in range(4):
            k('buffer_load_dwordx4 %s, %s, %s, %s offen offset:%d sc1' % (v(KVC + 4 * i, 4), v(7), s(S_WS, 4), s(S_KV), 1024 * i))
    hooks = dict(getattr(k, 'load_hooks', {}))
    h13 = hooks.get(28)
    hooks[28] = lambda: ((h13() if h13 else None), kvload())
    homes = loader(k, LANE, LOC, early, hooks)
    if prof: k.raw('  s_memtime %s' % s(S_TS + 28, 2))
    if opt.get('loadonly'): k('s_branch L_chain_exit')
    k('v_mov_b32 %s, %s' % (v(STRM), v(6)))
    k('v_lshlrev_b32 %s, 4, %s' % (v(L16), v(LANE)))
    k('v_mov_b32 %s, %s' % (v(X3), v(55)))
    k.c('===== chain: initial state =====')
    consts(k, LANE)
    k('s_lshr_b32 %s, %s, 1' % (s(S_INR0), s(S_KV)))
    k('s_add_u32 %s, %s, 0x%x' % (s(S_INR0), s(S_INR0), INB))
    k('s_mov_b32 %s, 0x%x' % (s(S_DEF), SCRATCH))
    k('s_mov_b32 %s, 0x%x' % (s(S_KVM), MEMX + 8192))
    k('s_mov_b32 %s, 0' % s(S_TAG))
    for i in range(8):
        k('v_min_u32 %s, -2, %s' % (v(MEMF + i), v(32 + i)))
    k('ds_write_b128 %s, %s offset:%d' % (v(L16W), v(MEMF, 4), L_MEM))
    k('ds_write_b128 %s, %s offset:%d' % (v(L16W), v(MEMF + 4, 4), L_MEM + 1024))
    k('s_mov_b32 %s, 0x%x' % (s(S_T0), H2 + 0x6000))
    k('buffer_store_dwordx4 %s, %s, %s, %s offen offset:1024' % (v(MEMF + 4, 4), v(L16W), s(S_WS, 4), s(S_T0)))
    k('s_waitcnt vmcnt(0)')
    k('s_cmp_eq_u32 %s, 0' % s(S_H))
    k('s_cselect_b32 %s, 0x%x, %s' % (s(S_T0), MEMX, s(S_DEF)))
    k('buffer_store_dwordx4 %s, %s, %s, %s offen sc1' % (v(MEMF, 4), v(L16W), s(S_WS, 4), s(S_T0)))
    k('buffer_store_dwordx4 %s, %s, %s, %s offen offset:1024 sc1' % (v(MEMF + 4, 4), v(L16W), s(S_WS, 4), s(S_T0)))
    k('s_add_u32 %s, %s, 0x80000' % (s(S_KV), s(S_KV)))
    k('s_lshl_b32 %s, %s, 16' % (s(S_INW0), s(S_W)))
    k('s_lshl_b32 %s, %s, 6' % (s(S_T0), s(S_H)))
    k('s_add_u32 %s, %s, %s' % (s(S_INW0), s(S_INW0), s(S_T0)))
    k('s_add_u32 %s, %s, 0x%x' % (s(S_INW0), s(S_INW0), INB))
    k('s_add_u32 %s, %s, 0x1000' % (s(S_INW1), s(S_INW0)))
    k('s_lshl_b32 %s, %s, 11' % (s(S_T0), s(S_W)))
    k('s_mov_b32 %s, 0x%x' % (s(S_H2W), H2))
    k('s_add_u32 m0, %s, %d' % (s(S_T0), L_MEM))
    k('s_add_u32 %s, %s, 0x%x' % (s(S_H2R), s(S_T0), H2 + 0x6000))
    k('s_mov_b32 %s, 0x%x' % (s(S_H2RST), H2 + 0x4000))
    cc = (128 ** -0.5) * math.log2(math.e)
    k('s_mov_b32 %s, 0x%x' % (s(S_C), f2u(cc)))
    k('s_mov_b32 %s, 0x%x' % (s(S_C + 1), f2u(cc)))
    pend = [(i, hf) for i in range(3) for hf in range(2)]
    def RF(n=1):
        for _ in range(n):
            if pend:
                i, hf = pend.pop(0)
                k('ds_read_b128 %s, %s offset:%d' % (v(SBUF + 8 * (i % 3) + 4 * hf, 4), v(STRM), homes[STREAM[i]] + 1024 * hf), tag=('st', i))
    RF(6)
    for i in range(0, 24, 2): k('v_mov_b64 %s, 0' % v(ACCQK + i, 2))
    if prof:
        for i in range(8): k('s_mov_b32 %s, 0' % s(S_TS + 16 + i))
        k.raw('  s_memtime %s' % s(S_TS + 24, 2))
    k('s_waitcnt lgkmcnt(0)')

    used = []
    def smf(op, acc, afrag):
        loc = LOC[op]
        if loc[0] == 's':
            assert loc[1] == len(used), (op, loc, used)
            used.append(loc[1])
            assert all(p[0] != loc[1] for p in pend), ('refill not issued', op)
            k.wait_lg(('st', loc[1]))
            opnd = v(SBUF + 8 * (loc[1] % 3), 8)
        else:
            opnd = dst(loc, 0, 8)
        k('v_smfmac_f32_16x16x64_bf16 %s, %s, %s, %s' % (v(acc, 4), v(afrag, 4), opnd, v(IDX)))
        if loc[0] == 's':
            pend.append(((loc[1] + 3) % NS, 0)); pend.append(((loc[1] + 3) % NS, 1))
    ACC = {'q': ACCQK, 'k': ACCQK + 8, 'v': ACCV}
    def S(m, kap, j):
        if kap >= 2: k.wait_lg(('mf', kap))
        smf((m, kap, j), ACC[m] + 4 * j, MEMF + 4 * kap)
    k.points = []
    def pt(name):
        k.points.append(name)
        if opt.get('pt') == name:
            k.raw('  s_memtime %s' % s(S_TS + 2, 2))
    def cvt(d, x, y): k('v_cvt_pk_bf16_f32 %s, %s, %s' % (v(d), v(x), v(y)))
    def mf16(d, A, B, C=None): k('v_mfma_f32_16x16x16_bf16 %s, %s, %s, %s' % (v(d, 4), v(A, 2), v(B, 2), '0' if C is None else v(C, 4)))
    def mf32(d, A, B, C=None): k('v_mfma_f32_16x16x32_bf16 %s, %s, %s, %s' % (v(d, 4), v(A, 4), v(B, 4), '0' if C is None else v(C, 4)))
    def pkadd(d, x, y): k('v_pk_add_f32 %s, %s, %s' % (v(d, 2), v(x, 2), v(y, 2)))
    def pkfma_c(d, x, m): k('v_pk_fma_f32 %s, %s, %s, %s op_sel_hi:[1,1,0] neg_lo:[0,0,1] neg_hi:[0,0,1]' % (v(d, 2), v(x, 2), s(S_C, 2), v(m, 2)))
    def pkmul_b(d, x, m): k('v_pk_mul_f32 %s, %s, %s op_sel_hi:[1,0]' % (v(d, 2), v(x, 2), v(m, 2)))
    def add(d, x, y): k('v_add_f32 %s, %s, %s' % (v(d), v(x), v(y)))
    def mov64(d, x): k('v_mov_b64 %s, %s' % (v(d, 2), x))
    def BAR(tag): k.wait_lg(tag); k('s_barrier')
    def nops(n):
        while n > 0:
            k('s_nop %d' % (min(n, 16) - 1)); n -= 16
    ROR8 = 'row_ror:8 row_mask:0xf bank_mask:0xf'
    FAIL = 'L_fail'; DONE = 'L_chain_done'; BODY = 'L_chain_body'; BODY0 = 'L_chain_body0'
    RETRY2 = 'L_retry2'; RETRY1 = 'L_retry1'; RETRY3 = 'L_retry3'; RET3 = 'L_ret3'
    OFIRST = opt.get('o1', 0)
    D1 = opt.get('d1', 2); D2 = opt.get('d2', 2)
    HA, HB = T1 + 7, OR_
    ORR = [X0, X1, X2]
    H1R = MEMF + 8
    VM = KVC + 4; KA = T1 + 4
    def ldE(): k('buffer_load_dwordx4 %s, %s, %s offen sc1 lds' % (v(L16), s(S_WS, 4), s(S_H2R)), tag='pe')
    def ldO(): k('buffer_load_dwordx4 %s, %s, %s offen offset:1024 sc1 lds' % (v(L16), s(S_WS, 4), s(S_H2R)), tag='po')
    def own(k2): k('ds_read_b128 %s, %s offset:%d' % (v(MEMF + 4 * k2, 4), v(L16W), L_MEM + 1024 * k2), tag=('own', k2))
    def chk4(R):
        k('v_max3_u32 %s, %s, %s, %s' % (v(HA), v(R), v(R + 1), v(R + 2)))
        k('v_max_u32 %s, %s, %s' % (v(HA), v(HA), v(R + 3)))
        k('v_cmp_eq_u32 vcc, -1, %s' % v(HA))
    def R(kap):
        p = kap >> 1; k2 = kap & 1
        k('ds_read_b128 %s, %s offset:%d' % (v(MEMF + 4 * kap, 4), v(MEMR + p - 1), L_MEM + 1024 * k2), tag=('mf', kap))
    def pf(i): k('buffer_load_dwordx4 %s, %s, %s, %s offen offset:%d sc1' % (v(KVN + 4 * i, 4), v(L16), s(S_WS, 4), s(S_KV), 1024 * i))
    def stk(so): k('buffer_store_dwordx4 %s, %s, %s, %s offen sc1' % (v(KA, 4), v(L16), s(S_WS, 4), s(so)))
    def stv(so): k('buffer_store_dwordx4 %s, %s, %s, %s offen offset:1024 sc1' % (v(VM, 4), v(L16), s(S_WS, 4), s(so)))
    def sel(d, x): k('v_mov_b32_dpp %s, %s quad_perm:[0,1,2,3] row_mask:0xf bank_mask:0xc' % (v(d), v(x)))

    k('s_branch %s' % BODY0)
    k.raw('.p2align 6')
    k.label(RETRY2)
    k('s_mov_b64 exec, vcc')
    ldE()
    if prof: k('s_add_u32 %s, %s, 1' % (s(S_TS + 23), s(S_TS + 23)))
    k('s_sub_u32 %s, %s, 1' % (s(S_SPIN), s(S_SPIN)))
    k('s_cbranch_scc1 %s' % FAIL)
    own(0)
    k.label('L_ew')
    k('s_waitcnt lgkmcnt(1)')
    chk4(MEMF)
    k('s_cbranch_vccnz %s' % RETRY2)
    k('s_mov_b64 exec, -1')
    k.label(BODY)
    if opt.get('trace') == 2: k.raw('  s_memtime %s' % s(S_TS + 8, 2))
    k.label(BODY0)
    if opt.get('o2', 1) and not opt.get('nohop'): ldO()
    abl = opt.get('abl', [])
    if abl:
        k0 = k._one
        def filt(t, tag):
            if 'vmem' in abl and t.startswith('buffer_'): return
            if 'bar' in abl and t.startswith('s_barrier'): return
            if 'stream' in abl and t.startswith('ds_read_b128') and (', %s ' % v(STRM)) in t: return
            if 'dsw' in abl and t.startswith('ds_write'): return
            if 'dsr' in abl and t.startswith('ds_read'): return
            return k0(t, tag)
        k._one = filt
    k.lg = ['x']; k.vm = []
    if opt.get('pt'): k.raw('  s_memtime %s' % s(S_TS, 2))
    k('s_barrier')
    pt('b1')
    if opt.get('trace') == 2: k.raw('  s_memtime %s' % s(S_TS + 14, 2))
    R(2)
    S('q', 0, 0); R(4); S('q', 0, 1); R(6); S('k', 0, 0); RF(); S('k', 0, 1); RF()
    pt('own0')
    S('q', 2, 0); RF(); S('q', 2, 1); RF(); S('q', 4, 0); RF(); S('q', 4, 1); RF()
    ev = [('q', 6, 0), ('q', 6, 1), ('k', 2, 0), ('k', 2, 1), ('k', 4, 0), ('k', 4, 1), ('k', 6, 0), ('k', 6, 1)]
    no = opt.get('oddat', 4)
    for o_ in ev[:no]: S(*o_); RF()
    k('s_waitcnt vmcnt(%d)' % (opt.get('o2', 1) if OFIRST else 0)); own(1)
    for o_ in ev[no:no + 4]: S(*o_); RF()
    k.wait_lg(('own', 1))
    chk4(MEMF + 4)
    rest = ev[no + 4:]
    if not opt.get('nohop'): k('s_cbranch_vccnz %s' % RETRY3)
    k.label(RET3)
    k.vm = []
    pt('odd')
    if opt.get('trace'):
        k.raw('  s_memtime %s' % s(S_TS + 4, 2))
        k.raw('  s_memrealtime %s' % s(S_TS + 6, 2))
        k.raw('  s_waitcnt lgkmcnt(0)')
        k('v_mov_b32 %s, %s' % (v(T1), s(S_TS + 4)))
        k('v_mov_b32 %s, %s' % (v(T1 + 1), s(S_TS + 6)))
        k('s_lshl_b32 %s, %s, 2' % (s(S_T0), s(S_H)))
        k('s_add_u32 %s, %s, %s' % (s(S_T0), s(S_T0), s(S_W)))
        k('s_lshl_b32 %s, %s, 6' % (s(S_T0), s(S_T0)))
        k('s_add_u32 %s, %s, %s' % (s(S_T0), s(S_T0), s(S_STEP)))
        k('s_lshl_b32 %s, %s, 3' % (s(S_T0), s(S_T0)))
        k('s_add_u32 %s, %s, 0x%x' % (s(S_T0), s(S_T0), DBG + 0x120000))
        k('v_mov_b32 %s, 0' % v(T1 + 2))
        k('s_mov_b64 exec, 1')
        k('buffer_store_dwordx2 %s, %s, %s, %s offen' % (v(T1, 2), v(T1 + 2), s(S_WS, 4), s(S_T0)))
        if opt.get('trace') == 2:
            for i in range(4): k('v_mov_b32 %s, %s' % (v(T1 + 4 + i), s(S_TS + 8 + 2 * i)))
            k('s_sub_u32 %s, %s, 0x%x' % (s(S_T0), s(S_T0), DBG + 0x120000))
            k('s_lshl_b32 %s, %s, 1' % (s(S_T0), s(S_T0)))
            k('s_add_u32 %s, %s, 0x%x' % (s(S_T0), s(S_T0), DBG + 0x140000))
            k('buffer_store_dwordx4 %s, %s, %s, %s offen' % (v(T1 + 4, 4), v(T1 + 2), s(S_WS, 4), s(S_T0)))
        k('s_mov_b64 exec, -1')
    if dump:
        k('s_lshl_b32 %s, %s, 13' % (s(S_T0), s(S_STEP)))
        k('s_lshl_b32 %s, %s, 11' % (s(S_T1), s(S_W)))
        k('s_add_u32 %s, %s, %s' % (s(S_T0), s(S_T0), s(S_T1)))
        k('s_add_u32 %s, %s, 0x%x' % (s(S_T0), s(S_T0), DBG))
        k('buffer_store_dwordx4 %s, %s, %s, %s offen' % (v(MEMF, 4), v(L16), s(S_WS, 4), s(S_T0)))
        k('buffer_store_dwordx4 %s, %s, %s, %s offen offset:1024' % (v(MEMF + 4, 4), v(L16), s(S_WS, 4), s(S_T0)))
    k('s_barrier'); R(3)
    pt('b1b')
    rq = [5, 7]
    for o_ in rest:
        S(*o_)
        if rq: R(rq.pop(0))
        else: RF()
    S('q', 1, 0)
    if rq: R(rq.pop(0))
    else: RF()
    k('buffer_store_dword %s, %s, %s, %s offen sc1' % (v(HB), v(ST2), s(S_WS, 4), s(S_DEF)))
    if hasattr(k, 'hook_prefetch'): k.hook_prefetch()
    S('q', 1, 1)
    if rq: R(rq.pop(0))
    else: RF()
    pf(0)
    S('k', 1, 0); RF(); S('k', 1, 1); RF()
    S('q', 3, 0); RF(); S('q', 3, 1); RF(); pf(1); S('q', 5, 0); RF(); S('q', 5, 1); RF()
    S('q', 7, 0); RF(); S('q', 7, 1); RF(); pf(2)
    pt('Q')
    MXX, TA, PM = MEMF + 0, MEMF + 1, MEMF + 2
    AK = ACCQK + 8
    S('k', 3, 0); S('k', 3, 1); RF(); cvt(T1, ACCQK, ACCQK + 1)
    S('k', 5, 0); RF(); cvt(T1 + 1, ACCQK + 2, ACCQK + 3)
    S('k', 5, 1); pf(3); cvt(T1 + 2, ACCQK + 4, ACCQK + 5)
    S('k', 7, 0); RF(); cvt(T1 + 3, ACCQK + 6, ACCQK + 7)
    S('k', 7, 1); RF()
    pt('K')
    vq = [(2, 0), (0, 0), (3, 0), (0, 1), (3, 1), (4, 0), (5, 0), (5, 1), (7, 0), (7, 1), (1, 0), (1, 1), (2, 1), (4, 1), (6, 0), (6, 1)]
    def V(n=1):
        for _ in range(n):
            kap, j = vq.pop(0)
            S('v', kap, j)
    mf16(ACCQK, T1, SELT)
    k('s_add_u32 %s, %s, 0x80000' % (s(S_KV), s(S_KV)))
    mf16(ACCQK + 4, T1 + 2, SELT)
    cvt(T1 + 4, AK, AK + 1); cvt(T1 + 5, AK + 2, AK + 3)
    V(1); RF()
    cvt(T1 + 6, AK + 4, AK + 5); cvt(T1 + 7, AK + 6, AK + 7)
    mf16(AK, T1 + 4, SELT); RF()
    cvt(T1, ACCQK, ACCQK + 1); cvt(T1 + 1, ACCQK + 2, ACCQK + 3)
    mf16(AK + 4, T1 + 6, SELT)
    cvt(T1 + 2, ACCQK + 4, ACCQK + 5); cvt(T1 + 3, ACCQK + 6, ACCQK + 7)
    V(1)
    mf32(ACCQK, KVC, T1)
    cvt(T1 + 4, AK, AK + 1); cvt(T1 + 5, AK + 2, AK + 3)
    mf32(ACCQK + 4, KVC + 4, T1)
    cvt(T1 + 6, AK + 4, AK + 5); cvt(T1 + 7, AK + 6, AK + 7)
    V(1); RF()
    mf32(AK, T1 + 4, T1); RF()
    pt('sm')
    for j in range(4): sel(ACCQK + j, ACCQK + 4 + j)
    V(1)
    k('ds_write_b128 %s, %s offset:%d' % (v(L16W), v(ACCQK, 4), L_SX), tag='xw')
    sel(AK, AK + 2); sel(AK + 1, AK + 3)
    V(1)
    k('ds_write_b64 %s, %s' % (v(SMW), v(AK, 2)), tag='sw')
    pt('swr')
    WACC = MEMF + 16; OF = MEMF + 4
    V(1); RF(); V(1); RF(); V(opt.get('vb2', 3))
    BAR('sw')
    pt('b2')
    XSR = [KVC, KVC + 4, ACCQK + 4]
    def XR(p): k('ds_read_b128 %s, %s offset:%d' % (v(XSR[p], 4), v(MEMR + p), L_SX), tag=('xs', p))
    MS = AK; XS = KVC
    XR(0); V(1); XR(1); V(1); XR(2); V(1)
    k('ds_read2_b64 %s, %s offset0:0 offset1:32' % (v(MS, 4), v(SMR)), tag='ms0')
    V(1)
    k('ds_read2_b64 %s, %s offset0:64 offset1:96' % (v(MS + 4, 4), v(SMR)), tag='ms1')
    V(len(vq))
    k.wait_lg(('xs', 0))
    pkadd(XS, XS, ACCQK); pkadd(XS + 2, XS + 2, ACCQK + 2)
    k.wait_lg(('xs', 2))
    pkadd(ACCQK + 4, ACCQK + 4, XS + 4); pkadd(ACCQK + 6, ACCQK + 6, XS + 6)
    pkadd(XS, XS, ACCQK + 4); pkadd(XS + 2, XS + 2, ACCQK + 6)
    k.wait_lg('ms1')
    pkadd(MS, MS, MS + 2); pkadd(MS + 4, MS + 4, MS + 6)
    k('v_max3_f32 %s, %s, %s, %s' % (v(MXX), v(XS), v(XS + 1), v(XS + 2)))
    pkadd(MS, MS, MS + 4)
    pt('sums')
    k('v_max_f32 %s, %s, %s' % (v(MXX), v(MXX), v(XS + 3)))
    k('v_max3_f32 %s, %s, %s, %s' % (v(MXX), v(MXX), v(MS), v(MS + 1)))
    cvt(VM, ACCV, ACCV + 1); cvt(VM + 1, ACCV + 2, ACCV + 3)
    k('v_max_f32_dpp %s, %s, %s %s' % (v(MXX), v(MXX), v(MXX), ROR8))
    k('v_mov_b32 %s, %s' % (v(TA), v(MXX)))
    cvt(VM + 2, ACCV + 4, ACCV + 5); cvt(VM + 3, ACCV + 6, ACCV + 7)
    k('v_permlane16_swap_b32 %s, %s' % (v(MXX), v(TA)))
    k('v_max_f32 %s, %s, %s' % (v(MXX), v(MXX), v(TA)))
    k('v_mov_b32 %s, %s' % (v(TA), v(MXX)))
    mov64(WACC, '0'); mov64(WACC + 2, '0')
    k('v_permlane32_swap_b32 %s, %s' % (v(MXX), v(TA)))
    k('v_max_f32 %s, %s, %s' % (v(MXX), v(MXX), v(TA)))
    k('v_mul_f32 %s, %s, %s' % (v(MXX), s(S_C), v(MXX)))
    pt('max')
    def ex(d): k('v_exp_f32 %s, %s' % (v(d), v(d)))
    pkfma_c(XS, XS, MXX); pkfma_c(XS + 2, XS + 2, MXX); pkfma_c(MS, MS, MXX)
    for j in range(4): ex(XS + j)
    PX = T1
    ex(MS)
    cvt(PX, XS, XS + 1); cvt(PX + 1, XS + 2, XS + 3)
    ex(MS + 1)
    for j in range(2): k('v_mov_b32_dpp %s, %s %s' % (v(PX + 2 + j), v(PX + j), ROR8))
    cvt(PM, MS, MS + 1)
    pkadd(XS, XS, XS + 2)
    O0, O1 = ACCQK, ACCQK + 4
    LS = MXX
    mf32(O0, KVC + 8, PX)
    k('v_mov_b32_dpp %s, %s %s' % (v(PM + 1), v(PM), ROR8))
    add(MS, MS, MS + 1)
    mf32(O1, KVC + 12, PX)
    add(XS, XS, XS + 1)
    k('v_fma_f32 %s, %s, 0.5, %s' % (v(LS), v(MS), v(XS)))
    mf16(O0, VM, PM, O0)
    k('v_add_f32_dpp %s, %s, %s %s' % (v(LS), v(LS), v(LS), ROR8))
    k('v_mov_b32 %s, %s' % (v(TA), v(LS)))
    mf16(O1, VM + 2, PM, O1)
    pt('pv')
    k('v_permlane16_swap_b32 %s, %s' % (v(LS), v(TA)))
    add(LS, LS, TA)
    k('v_mov_b32 %s, %s' % (v(TA), v(LS)))
    mov64(WACC + 4, '0'); mov64(WACC + 6, '0')
    k('v_permlane32_swap_b32 %s, %s' % (v(LS), v(TA)))
    add(LS, LS, TA)
    k('v_rcp_f32 %s, %s' % (v(LS), v(LS)))
    mov64(WACC + 8, '0')
    pkmul_b(O0, O0, LS); pkmul_b(O0 + 2, O0 + 2, LS); pkmul_b(O1, O1, LS); pkmul_b(O1 + 2, O1 + 2, LS)
    for i in range(4): cvt(T1 + i, O0 + 2 * i, O0 + 2 * i + 1)
    k('ds_write_b128 %s, %s offset:%d' % (v(OW), v(T1, 4), L_OX), tag='ow')
    pt('owr')
    for j in range(4): k('v_mov_b32_dpp %s, %s row_ror:8 row_mask:0xf bank_mask:0xc' % (v(T1 + j), v(T1 + j)))
    for i in range(10, 16, 2): mov64(WACC + i, '0')
    for i in range(0, 8, 2): mov64(ACCV + i, '0')
    def WO(a_, kap):
        if kap: k.wait_lg(('of', kap))
        smf(('o', a_, kap), WACC + 4 * a_, T1 if kap == 0 else OF + 4 * (kap - 1))
    def OFR(kap): k('ds_read_b128 %s, %s offset:%d' % (v(OF + 4 * (kap - 1), 4), v(ORR[kap - 1]), L_OX), tag=('of', kap))
    k('s_mov_b32 %s, %s' % (s(S_DEF), s(S_KVM)))
    k('s_add_u32 %s, %s, 0x2000' % (s(S_KVM), s(S_KVM)))
    WO(0, 0); BAR('ow'); OFR(1)
    pt('b3')
    WO(1, 0); OFR(2)
    WO(2, 0); OFR(3)
    WO(3, 0); RF()
    PK = ACCQK
    def tag(r): k('v_bfi_b32 %s, 1, %s, %s' % (v(r), s(S_TAG), v(r)))
    def pack(a_):
        cvt(PK + 2 * a_, WACC + 4 * a_, WACC + 4 * a_ + 1); cvt(PK + 2 * a_ + 1, WACC + 4 * a_ + 2, WACC + 4 * a_ + 3); tag(PK + 2 * a_)
    def sto(a_):
        k('buffer_store_dwordx2 %s, %s, %s, %s offen offset:%d' % (v(PK + 2 * a_, 2), v(ST1), s(S_WS, 4), s(S_INW0 if a_ < 2 else S_INW1), 2048 * (a_ & 1)))
    RA = MEMF + 16
    WO(0, 1); RF(); mov64(ACCQK + 8, '0'); WO(0, 2); mov64(ACCQK + 10, '0'); WO(0, 3); mov64(ACCQK + 12, '0')
    WO(1, 1); mov64(ACCQK + 14, '0'); WO(1, 2); RF(); pack(0); WO(1, 3); sto(0)
    pt('st0')
    WO(2, 1); RF(); mov64(RA, '0'); WO(2, 2); RF(); pack(1); WO(2, 3); sto(1)
    pt('st1')
    WO(3, 1); RF(); mov64(RA + 2, '0'); WO(3, 2); pack(2); WO(3, 3); sto(2)
    RF(2)
    k('s_mov_b32 %s, %d' % (s(S_SPIN), SPIN_MAX))
    k('s_add_u32 %s, %s, 0x2000' % (s(S_H2R), s(S_H2R)))
    k('s_and_b32 %s, %s, 0x%x' % (s(S_H2R), s(S_H2R), 0xffff7fff))
    k('s_add_u32 %s, %s, 1' % (s(S_STEP), s(S_STEP)))
    mov64(PK, '0'); mov64(PK + 2, '0')
    pack(3); sto(3)
    pt('st2')
    if opt.get('trace') == 2: k.raw('  s_memtime %s' % s(S_TS + 10, 2))
    assert len(used) == NS and not pend
    k.c('--- H1')
    HSET = [MEMF + 8, MEMF + 20, MEMF + 0]
    def round1(i):
        k('buffer_load_dwordx4 %s, %s, %s, %s offen sc1' % (v(HSET[i], 4), v(L16), s(S_WS, 4), s(S_INR0)))
        k('buffer_load_dwordx4 %s, %s, %s, %s offen offset:1024 sc1' % (v(HSET[i] + 4, 4), v(L16), s(S_WS, 4), s(S_INR0)))
    def h1chk(i):
        Rg = HSET[i]
        k('s_waitcnt vmcnt(%d)' % (2 * (D1 - 1)))
        k('v_smfmac_f32_16x16x64_bf16 %s, %s, %s, %s' % (v(RA, 4), v(SELR, 4), v(Rg, 8), v(IDXR)))
        k('v_bitop3_b32 %s, %s, %s, %s bitop3:0x7e' % (v(HA), v(Rg), v(Rg + 2), s(S_TAG)))
        k('v_bitop3_b32 %s, %s, %s, %s bitop3:0x7e' % (v(HA - 1), v(Rg + 4), v(Rg + 6), s(S_TAG)))
        k('v_bitop3_b32 %s, %s, %s, 1 bitop3:0xa8' % (v(HA), v(HA), v(HA - 1)))
        k('v_cmp_ne_u32 vcc, 0, %s' % v(HA))
        k('v_mov_b32 %s, -1' % v(HA))
    def ptacc():
        if opt.get('pt'):
            k.raw('  s_waitcnt lgkmcnt(0)')
            k('s_sub_u32 %s, %s, %s' % (s(S_T0), s(S_TS + 2), s(S_TS)))
            k('s_add_u32 %s, %s, %s' % (s(S_TS + 16), s(S_TS + 16), s(S_T0)))
    if opt.get('nohop'):
        if abl: k._one = k0
        ptacc()
        mov64(PK + 4, '0'); mov64(PK + 6, '0')
        k('s_waitcnt vmcnt(0) lgkmcnt(0)')
        k('s_barrier')
        k('s_cmp_eq_u32 %s, %d' % (s(S_STEP), nsteps - 1))
        k('s_cbranch_scc1 %s' % DONE)
        k('s_branch %s' % BODY0)
    k('s_cmp_lt_u32 %s, 2' % s(S_W))
    k('s_cbranch_scc1 L_early')
    nops(opt.get('late1', 40))
    k.label('L_early')
    mov64(PK + 4, '0'); mov64(PK + 6, '0')
    nops(opt.get('pre1', 32))
    for i in range(D1):
        round1(i)
        if i < D1 - 1: nops(opt.get('gap1', 20))
    k('s_cmp_eq_u32 %s, %d' % (s(S_STEP), nsteps - 1))
    k.label('L_h1w')
    h1chk(0)
    k('s_cbranch_vccnz L_h1r0')
    k.label('L_h1ok')
    mov64(KVC, v(KVN, 2))
    for rr in ('row_ror:4', 'row_ror:8'):
        for j in range(2):
            k('v_add_f32_dpp %s, %s, %s %s row_mask:0xf bank_mask:0xf' % (v(RA + j), v(RA + j), v(RA + j), rr))
    cvt(HB, RA, RA + 1)
    k('v_min_u32 %s, -2, %s' % (v(HB), v(HB)))
    k('s_cbranch_scc1 %s' % DONE)
    k('buffer_store_dword %s, %s, %s, %s offen' % (v(HB), v(ST2), s(S_WS, 4), s(S_H2W)))
    k('buffer_store_dword %s, %s, %s, %s offen' % (v(HA), v(ST2), s(S_WS, 4), s(S_H2RST)))
    pt('p1ok')
    if opt.get('trace') == 2: k.raw('  s_memtime %s' % s(S_TS + 12, 2))
    for i in range(2, 16, 2): mov64(KVC + i, v(KVN + i, 2))
    ptacc()
    k('s_xor_b32 %s, %s, 1' % (s(S_TAG), s(S_TAG)))
    for r in (S_H2W, S_H2RST):
        k('s_add_u32 %s, %s, 0x2000' % (s(r), s(r)))
        k('s_and_b32 %s, %s, 0x%x' % (s(r), s(r), 0xffff7fff))
    k('s_mov_b32 %s, %d' % (s(S_SPIN), SPIN_MAX))
    k('s_waitcnt lgkmcnt(0)')
    k('s_cmp_ge_u32 %s, 2' % s(S_W))
    k('s_cbranch_scc1 L_late2')
    nops(opt.get('early2', 40))
    k.label('L_late2')
    nops(opt.get('pre2', 0))
    NE = opt.get('ne', 2)
    for i in range(NE):
        ldE()
        if i < NE - 1: nops(opt.get('gapa', 24))
        elif OFIRST: nops(opt.get('gap2', 24))
    if OFIRST: ldO()
    k('s_waitcnt vmcnt(%d)' % (NE - 1 + OFIRST))
    own(0)
    nops(opt.get('rd2', 4))
    own(0)
    k('s_branch L_ew')
    for i in range(D1):
        k.label('L_h1r%d' % i)
        k('s_mov_b64 exec, vcc')
        round1(i)
        k('s_mov_b64 exec, -1')
        if prof: k('s_add_u32 %s, %s, 0x10000' % (s(S_TS + 23), s(S_TS + 23)))
        k('s_sub_u32 %s, %s, 1' % (s(S_SPIN), s(S_SPIN)))
        k('s_cbranch_scc1 %s' % FAIL)
        k('s_cmp_eq_u32 %s, %d' % (s(S_STEP), nsteps - 1))
        mov64(RA, '0'); mov64(RA + 2, '0')
        if i == D1 - 1:
            k('s_branch L_h1w')
        else:
            h1chk(i + 1)
            k('s_cbranch_vccz L_h1ok')
    k.label(RETRY3)
    k('s_mov_b64 exec, vcc')
    ldO()
    if prof: k('s_add_u32 %s, %s, 0x100' % (s(S_TS + 22), s(S_TS + 22)))
    k('s_sub_u32 %s, %s, 1' % (s(S_SPIN), s(S_SPIN)))
    k('s_cbranch_scc1 %s' % FAIL)
    k('s_waitcnt vmcnt(1)')
    own(1)
    k('s_waitcnt lgkmcnt(0)')
    chk4(MEMF + 4)
    k('s_cbranch_vccnz %s' % RETRY3)
    k('s_mov_b64 exec, -1')
    k('s_branch %s' % RET3)
    k.label(DONE)
    k('buffer_store_dword %s, %s, %s, %s offen sc1' % (v(HB), v(ST2), s(S_WS, 4), s(S_DEF)))
    k.label('L_chain_exit')
```

```python
from fw import *
from layout import *
from chain import srd, f2u, S_WS, S_WQ, S_WK, S_WV, S_WO, S_DBG, S_H, S_W, S_SPIN, S_T0, S_T1, S_T2, SPIN_MAX
import math

S_X, S_AUX, S_OUT = 28, 36, 12
S_R, S_NSEG, S_I, S_XS, S_OO, S_XB, S_FL, S_SEG, S_GRP, S_TK = 42, 43, 44, 45, 46, 47, 48, 49, 50, 51
S_T3, S_T4 = 52, 53
S_M = 92
P_X, P_MEM0, P_WQ, P_WK, P_WV, P_WO, P_SEG, P_BX, P_WB, P_WOB, P_GW, P_OUT, P_DBG, P_WS = [64 + 2 * i for i in range(14)]
FAIL = 'L_fail'

LANE, L16, GA, TR, XG, XR, VZ, VT = 0, 1, 2, 3, 4, 5, 6, 7
L_STG = 65536; STG_STRIDE = 24576

def cvt(k, d, x, y): k('v_cvt_pk_bf16_f32 %s, %s, %s' % (v(d), v(x), v(y)))
def R(loc, r, n): return (a if loc[0] == 'a' else v)(loc[1] + r, n)

def poll_flags(k, soff_reg, nlanes, minval, name, stride=4, srdn=S_WS, sleep=8, skip7=False):
    L = k.newlabel('L_poll_' + name)
    k('v_mul_u32_u24 %s, %d, %s' % (v(VZ), stride, v(LANE)))
    k('s_mov_b32 %s, %d' % (s(S_SPIN), SPIN_MAX))
    if skip7:
        k('s_mov_b32 exec_lo, 0x7f7f7f7f')
        k('s_mov_b32 exec_hi, 0x7f7f7f7f')
    else:
        k('s_mov_b32 exec_lo, 0x%x' % ((1 << nlanes) - 1))
        k('s_mov_b32 exec_hi, 0')
    k.label(L)
    k('buffer_load_dword %s, %s, %s, %s offen sc1' % (v(VT), v(VZ), s(srdn, 4), s(soff_reg)))
    k('s_sub_u32 %s, %s, 1' % (s(S_SPIN), s(S_SPIN)))
    k('s_cbranch_scc1 %s' % FAIL)
    k('s_waitcnt vmcnt(0)')
    k('v_cmp_gt_u32 vcc, %s, %s' % (minval, v(VT)))
    k('s_cbranch_vccz %s_ok' % L)
    k('s_sleep %d' % sleep)
    k('s_branch %s' % L)
    k.label(L + '_ok')
    k('s_mov_b64 exec, -1')

def set_flag(k, soff_reg, val, flags='sc1'):
    k('v_mov_b32 %s, %s' % (v(VT), val))
    k('v_mov_b32 %s, 0' % v(VZ))
    k('s_mov_b64 exec, 1')
    k('buffer_store_dword %s, %s, %s, %s offen %s' % (v(VT), v(VZ), s(S_WS, 4), s(soff_reg), flags))
    k('s_mov_b64 exec, -1')

def load_blocks(k, blocks, nslot):
    n = len(blocks)
    for i in range(min(nslot, n)):
        blocks[i]['issue']((i % nslot) * 4096, ('wl', i))
    for i in range(n):
        k.wait_vm(('wl', i))
        blocks[i]['read']((i % nslot) * 4096)
        k('s_waitcnt lgkmcnt(0)')
        if i + nslot < n:
            blocks[i + nslot]['issue']((i % nslot) * 4096, ('wl', i + nslot))

def setup_common(k):
    k('v_lshlrev_b32 %s, 4, %s' % (v(L16), v(LANE)))
    k('s_mul_i32 %s, %s, %d' % (s(S_T2), s(S_W), STG_STRIDE))
    k('s_add_u32 %s, %s, %d' % (s(S_T2), s(S_T2), L_STG))

def qkv_addr(k):
    k('v_lshrrev_b32 %s, 2, %s' % (v(VZ), v(LANE)))
    k('v_and_b32 %s, 3, %s' % (v(VT), v(LANE)))
    k('v_lshlrev_b32 %s, 4, %s' % (v(GA), v(VT)))
    k('v_lshl_add_u32 %s, %s, 13, %s' % (v(GA), v(VZ), v(GA)))
    k('s_lshl_b32 %s, %s, 8' % (s(S_T0), s(S_H)))
    k('s_lshl_b32 %s, %s, 6' % (s(S_T1), s(S_W)))
    k('s_add_u32 %s, %s, %s' % (s(S_T0), s(S_T0), s(S_T1)))
    k('v_add_u32 %s, %s, %s' % (v(GA), s(S_T0), v(GA)))
    k('v_lshrrev_b32 %s, 4, %s' % (v(TR), v(LANE)))
    k('v_lshlrev_b32 %s, 3, %s' % (v(TR), v(TR)))
    k('v_and_b32 %s, 3, %s' % (v(VZ), v(VZ)))
    k('v_add_u32 %s, %s, %s' % (v(TR), v(TR), v(VZ)))
    k('v_lshlrev_b32 %s, 6, %s' % (v(TR), v(TR)))
    k('v_lshl_add_u32 %s, %s, 3, %s' % (v(TR), v(VT), v(TR)))
    k('v_add_u32 %s, %s, %s' % (v(TR), s(S_T2), v(TR)))

def qkv_block(k, srdn, b, dest):
    def issue(off, tag):
        for i in range(4):
            k('s_mov_b32 %s, %d' % (s(S_T0), (64 * b + 16 * i) * 8192))
            k('s_add_u32 m0, %s, %d' % (s(S_T2), off + i * 1024))
            k('buffer_load_dwordx4 %s, %s, %s offen lds' % (v(GA), s(srdn, 4), s(S_T0)), tag=tag)
    def read(off):
        for k2 in range(2):
            for t in range(2):
                for hh in range(2):
                    k('ds_read_b64_tr_b16 %s, %s offset:%d' % (R(dest(t, 2 * b + k2), 2 * hh, 2), v(TR), off + (32 * k2 + 4 * hh) * 64 + 32 * t))
    return dict(issue=issue, read=read)

XG1, XR1 = 12, 13
def x_setup(k):
    k('v_lshrrev_b32 %s, 3, %s' % (v(VZ), v(LANE)))
    k('v_lshlrev_b32 %s, 10, %s' % (v(XG), v(VZ)))
    k('v_lshrrev_b32 %s, 4, %s' % (v(VZ), v(LANE)))
    k('v_and_b32 %s, 7, %s' % (v(VT), v(LANE)))
    k('v_xor_b32 %s, %s, %s' % (v(VT), v(VT), v(VZ)))
    k('v_lshl_add_u32 %s, %s, 4, %s' % (v(XG), v(VT), v(XG)))
    k('s_lshl_b32 %s, %s, 8' % (s(S_T0), s(S_W)))
    k('v_add_u32 %s, %s, %s' % (v(XG), s(S_T0), v(XG)))
    k('v_xor_b32 %s, 0x2040, %s' % (v(XG1), v(XG)))
    k('v_bfe_u32 %s, %s, 1, 3' % (v(VT), v(LANE)))
    k('v_xor_b32 %s, %s, %s' % (v(VT), v(VT), v(VZ)))
    k('v_and_b32 %s, 15, %s' % (v(VZ), v(LANE)))
    k('v_lshlrev_b32 %s, 7, %s' % (v(XR), v(VZ)))
    k('v_lshl_add_u32 %s, %s, 4, %s' % (v(XR), v(VT), v(XR)))
    k('v_xor_b32 %s, 64, %s' % (v(XR1), v(XR)))

def x_dma(k, tag):
    k('s_lshl_b32 %s, %s, 12' % (s(S_T0), s(S_W)))
    k('s_add_u32 %s, %s, %s' % (s(S_T0), s(S_T0), s(S_XB)))
    def one(T, j):
        k('s_add_u32 m0, %s, %d' % (s(S_T0), T * 16384 + j * 1024))
        k('s_add_u32 %s, %s, %d' % (s(S_T1), s(S_XS), T * 16384 + (j >> 1) * 128))
        k('buffer_load_dwordx4 %s, %s, %s offen lds' % (v(XG1 if j & 1 else XG), s(S_X, 4), s(S_T1)), tag=tag)
    def fin():
        k('s_add_u32 %s, %s, %d' % (s(S_XS), s(S_XS), 2 * 32768))
        k('s_min_u32 %s, %s, %d' % (s(S_XS), s(S_XS), 63 * 32768))
        k('s_add_u32 %s, %s, 0x8000' % (s(S_XB), s(S_XB)))
        k('s_cmp_eq_u32 %s, 0x%x' % (s(S_XB), NXB * 0x8000))
        k('s_cselect_b32 %s, 0, %s' % (s(S_XB), s(S_XB)))
    return [(lambda T=T, j=j: one(T, j)) for T in range(2) for j in range(4)] + [fin]
NXB = 4

def mfma32(d, A, B, first):
    return 'v_mfma_f32_16x16x32_bf16 %s, %s, %s, %s' % (v(d, 4), A, B, '0' if first else v(d, 4))

def proj(k, after_issue=None):
    k.c('===== projections =====')
    S_O0, S_O1, S_OST, S_KIND, S_PAR = S_OO, S_T3, S_T4, S_NSEG, S_SEG
    srd(k, S_X, P_X, 2 << 20)
    LB = k.newlabel('L_pj_b'); LJ = k.newlabel('L_pj_j'); LG = k.newlabel('L_pj_g'); LJ2 = k.newlabel('L_pj_j2')
    x_setup(k)
    qkv_addr(k)
    k('s_lshl_b32 %s, %s, 2' % (s(S_T0), s(S_H)))
    k('s_add_u32 %s, %s, %s' % (s(S_T0), s(S_T0), s(S_W)))
    k('s_lshl_b32 %s, %s, 3' % (s(S_FL), s(S_T0)))
    k('s_add_u32 %s, %s, %s' % (s(S_FL), s(S_FL), s(S_R)))
    k('s_lshl_b32 %s, %s, 4' % (s(S_FL), s(S_FL)))
    k('s_add_u32 %s, %s, 0x%x' % (s(S_FL), s(S_FL), F_KV))
    k('s_cmp_eq_u32 %s, 6' % s(S_R))
    k('s_cbranch_scc1 %s' % LB)
    k('s_and_b32 %s, %s, 1' % (s(S_PAR), s(S_R)))
    k('s_lshr_b32 %s, %s, 1' % (s(S_T1), s(S_R)))
    k('s_cmp_eq_u32 %s, 0' % s(S_T1))
    k('s_cselect_b64 %s, %s, %s' % (s(4, 2), s(P_WK, 2), s(P_WV, 2)))
    k('s_cmp_eq_u32 %s, 2' % s(S_T1))
    k('s_cselect_b64 %s, %s, %s' % (s(4, 2), s(P_WQ, 2), s(4, 2)))
    srd(k, S_AUX, 4, 4 << 20)
    k('s_cselect_b32 %s, 0x40000, 0x80000' % s(S_OST)) if False else None
    k('s_mov_b32 %s, 0x80000' % s(S_OST))
    k('s_lshl_b32 %s, %s, 12' % (s(S_O0), s(S_T0)))
    k('s_and_b32 %s, %s, 1' % (s(S_KIND), s(S_T1)))
    k('s_lshl_b32 %s, %s, 11' % (s(S_O1), s(S_KIND)))
    k('s_add_u32 %s, %s, %s' % (s(S_O0), s(S_O0), s(S_O1)))
    k('s_cmp_lg_u32 %s, 2' % s(S_T1))
    k('s_cbranch_scc1 %s_q' % LB)
    k('s_lshl_b32 %s, %s, 11' % (s(S_O0), s(S_T0)))
    k('s_add_u32 %s, %s, 0x%x' % (s(S_O0), s(S_O0), QX))
    k('s_mov_b32 %s, 0x40000' % s(S_OST))
    k.label(LB + '_q')
    k('s_add_u32 %s, %s, 1024' % (s(S_O1), s(S_O0)))
    k('s_mov_b32 s5, 8192')
    k('s_branch %s' % LJ)
    k.label(LB)
    k('s_and_b32 %s, %s, 1' % (s(S_PAR), s(S_H)))
    srd(k, S_AUX, P_WB, 512 * 3072)
    k('s_and_b32 %s, %s, 30' % (s(S_T1), s(S_H)))
    k('s_lshl_b32 %s, %s, 12' % (s(S_O0), s(S_T1)))
    k('s_lshl_b32 %s, %s, 10' % (s(S_T0), s(S_W)))
    k('s_add_u32 %s, %s, %s' % (s(S_O0), s(S_O0), s(S_T0)))
    k('s_add_u32 %s, %s, 0x%x' % (s(S_O0), s(S_O0), BX))
    k('s_add_u32 %s, %s, 4096' % (s(S_O1), s(S_O0)))
    k('s_mov_b32 %s, 0x20000' % s(S_OST))
    k('s_cmp_eq_u32 %s, 2' % s(S_W))
    k('s_cselect_b32 %s, 1, 2' % s(S_KIND))
    k('s_cmp_eq_u32 %s, 3' % s(S_W))
    k('s_cselect_b32 %s, 3, %s' % (s(S_KIND), s(S_KIND)))
    k('v_lshrrev_b32 %s, 2, %s' % (v(VZ), v(LANE)))
    k('v_mul_u32_u24 %s, 3072, %s' % (v(GA), v(VZ)))
    k('v_and_b32 %s, 3, %s' % (v(VT), v(LANE)))
    k('v_lshl_add_u32 %s, %s, 4, %s' % (v(GA), v(VT), v(GA)))
    k('s_min_u32 %s, %s, 2048' % (s(S_T0), s(S_T0)))
    k('s_lshl_b32 %s, %s, 5' % (s(S_T1), s(S_T1)))
    k('s_add_u32 %s, %s, %s' % (s(S_T0), s(S_T0), s(S_T1)))
    k('v_add_u32 %s, %s, %s' % (v(GA), s(S_T0), v(GA)))
    k('s_mov_b32 s5, 3072')
    k.label(LJ)
    k('s_lshl_b32 s5, s5, 4')
    k('s_mul_i32 %s, %s, %s' % (s(S_T0), s(S_PAR), s(S_OST)))
    k('s_add_u32 %s, %s, %s' % (s(S_O0), s(S_O0), s(S_T0)))
    k('s_add_u32 %s, %s, %s' % (s(S_O1), s(S_O1), s(S_T0)))
    k('s_lshl_b32 %s, %s, 1' % (s(S_OST), s(S_OST)))
    dW = lambda t, ks: ('a', (t * 16 + ks) * 4)
    k('s_lshl_b32 s4, %s, 15' % s(S_W))
    k('v_subrev_u32 %s, %s, %s' % (v(TR), s(S_T2), v(TR)))
    k('v_add_u32 %s, s4, %s' % (v(TR), v(TR)))
    k('s_mov_b32 %s, 0' % s(S_T0))
    for i in range(32):
        k('s_add_u32 m0, s4, %d' % (i * 1024))
        k('buffer_load_dwordx4 %s, %s, %s offen lds' % (v(GA), s(S_AUX, 4), s(S_T0)), tag=('wl', i // 4))
        k('s_add_u32 %s, %s, s5' % (s(S_T0), s(S_T0)))
    k('s_lshl_b32 %s, %s, 15' % (s(S_XS), s(S_PAR)))
    if after_issue: after_issue()
    for b in range(8):
        k.wait_vm(('wl', b))
        for k2 in range(2):
            for t in range(2):
                for hh in range(2):
                    k('ds_read_b64_tr_b16 %s, %s offset:%d' % (R(dW(t, 2 * b + k2), 2 * hh, 2), v(TR), b * 4096 + (32 * k2 + 4 * hh) * 64 + 32 * t))
        if b % 2: k('s_waitcnt lgkmcnt(0)')
    k('s_cmp_lg_u32 %s, 3' % s(S_KIND))
    k('s_cbranch_scc1 %s' % LJ2)
    srd(k, S_WQ, P_GW, 1024)
    k('v_lshrrev_b32 %s, 4, %s' % (v(GA), v(LANE)))
    k('v_lshlrev_b32 %s, 4, %s' % (v(GA), v(GA)))
    for ks in range(16):
        k('buffer_load_dwordx4 %s, %s, %s, 0 offen offset:%d' % (R(dW(0, ks), 0, 4), v(GA), s(S_WQ, 4), ks * 64))
    k.label(LJ2)
    k('s_waitcnt vmcnt(0)')
    if hasattr(k, 'stampw'): k.stampw(7)
    k('s_barrier')
    if hasattr(k, 'after_wload'): k.after_wload()
    k('s_mov_b32 %s, 0' % s(S_XB))
    k('s_mov_b32 %s, 0' % s(S_I))
    for i in range(NXB - 1):
        for f in x_dma(k, 'x'): f()
    ACC, XF, PKR = 16, 48, 72
    k('s_waitcnt vmcnt(0)')
    k('s_cmp_eq_u32 %s, 1' % s(S_KIND))
    k('s_cbranch_scc1 L_pj_td')
    for name in ('dt', 'td'):
        L = 'L_pj_' + name
        k.label(L)
        k.vm = []; k.lg = []
        k('s_waitcnt vmcnt(22)')
        k('s_barrier')
        dq = x_dma(k, 'x')
        def rd(ks):
            for T in range(2):
                k('ds_read_b128 %s, %s offset:%d' % (v(XF + 8 * (ks % 3) + 4 * T, 4), v(XR1 if ks & 1 else XR), T * 16384 + (ks >> 1) * 2048), tag=('xf', ks))
        rd(0); rd(1)
        for ks in range(16):
            k.wait_lg(('xf', ks))
            xf = XF + 8 * (ks % 3)
            n = 0
            for T in range(2):
                for t in range(2):
                    if name == 'dt': k(mfma32(ACC + 4 * (2 * T + t), R(dW(t, ks), 0, 4), v(xf + 4 * T, 4), ks == 0))
                    else: k(mfma32(ACC + 4 * (2 * t + T), v(xf + 4 * T, 4), R(dW(t, ks), 0, 4), ks == 0))
                    if n == 0 and ks + 2 < 16: rd(ks + 2)
                    if n == 2 and dq: dq.pop(0)()
                    n += 1
            if ks == 12:
                k('s_sub_i32 %s, %s, 1' % (s(S_T1), s(S_I)))
                k('s_max_i32 %s, %s, 0' % (s(S_T1), s(S_T1)))
                k('s_lshl1_add_u32 %s, %s, %s' % (s(S_T1), s(S_T1), s(S_PAR)))
                k('s_waitcnt vmcnt(19)')
                set_flag(k, S_FL, s(S_T1))
        LS = k.newlabel('L_es')
        if name == 'dt':
            L2 = k.newlabel('L_e2'); L3 = k.newlabel('L_e3')
            k('s_cmp_eq_u32 %s, 2' % s(S_KIND))
            k('s_cbranch_scc1 %s' % L2)
            k('s_cmp_eq_u32 %s, 3' % s(S_KIND))
            k('s_cbranch_scc1 %s' % L3)
        for i in range(8): cvt(k, PKR + i, ACC + 2 * i, ACC + 2 * i + 1)
        k.label(LS)
        k('buffer_store_dwordx4 %s, %s, %s, %s offen sc1' % (v(PKR, 4), v(L16), s(S_WS, 4), s(S_O0)))
        k('buffer_store_dwordx4 %s, %s, %s, %s offen sc1' % (v(PKR + 4, 4), v(L16), s(S_WS, 4), s(S_O1)))
        k('s_add_u32 %s, %s, %s' % (s(S_O0), s(S_O0), s(S_OST)))
        k('s_add_u32 %s, %s, %s' % (s(S_O1), s(S_O1), s(S_OST)))
        k('v_add_u32 %s, 0x8000, %s' % (v(XR), v(XR)))
        k('v_and_b32 %s, 0x%x, %s' % (v(XR), NXB * 0x8000 - 1, v(XR)))
        k('v_xor_b32 %s, 64, %s' % (v(XR1), v(XR)))
        k('s_add_u32 %s, %s, 1' % (s(S_I), s(S_I)))
        k('s_cmp_lt_u32 %s, 32' % s(S_I))
        k('s_cbranch_scc1 %s' % L)
        k('s_branch L_pj_end')
        if name == 'dt':
            k.label(L2)
            k.flush(6)
            for t in range(2):
                for T in range(2):
                    for i in range(2):
                        cvt(k, PKR + 4 * t + 2 * T + i, ACC + 4 * (2 * T + t) + 2 * i, ACC + 4 * (2 * T + t) + 2 * i + 1)
            k('s_branch %s' % LS)
            k.label(L3)
            k.flush(6)
            P3 = PKR
            cvt(k, P3, ACC, ACC + 8)
            k('v_lshlrev_b32 %s, 16, %s' % (v(P3 + 2), v(P3)))
            k('v_and_b32 %s, 0xffff0000, %s' % (v(P3 + 3), v(P3)))
            for i in (2, 3): k('v_mul_f32 %s, 0x%x, %s' % (v(P3 + i), f2u(-math.log2(math.e)), v(P3 + i)))
            for i in (2, 3): k('v_exp_f32 %s, %s' % (v(P3 + i), v(P3 + i)))
            for i in (2, 3): k('v_add_f32 %s, 1.0, %s' % (v(P3 + i), v(P3 + i)))
            for i in (2, 3): k('v_rcp_f32 %s, %s' % (v(P3 + i), v(P3 + i)))
            cvt(k, P3 + 1, P3 + 2, P3 + 3)
            k('v_lshlrev_b32 %s, 16, %s' % (v(P3), v(P3 + 1)))
            k('v_and_b32 %s, 0xffff0000, %s' % (v(P3 + 1), v(P3 + 1)))
            k('v_sub_f32 %s, 1.0, %s' % (v(P3 + 2), v(P3)))
            k('v_sub_f32 %s, 1.0, %s' % (v(P3 + 3), v(P3 + 1)))
            cvt(k, P3 + 3, P3 + 2, P3 + 3)
            k('v_lshlrev_b32 %s, 16, %s' % (v(P3 + 2), v(P3 + 3)))
            k('v_and_b32 %s, 0xffff0000, %s' % (v(P3 + 3), v(P3 + 3)))
            for i in range(4): k('v_mov_b32 %s, %s' % (v(P3 + 4 + i), v(P3 + i)))
            k('s_branch %s' % LS)
    k.label('L_pj_end')
    k('s_waitcnt vmcnt(0)')
    set_flag(k, S_FL, '64')
    k('s_cmp_eq_u32 %s, 0' % s(S_R))
    k('s_cselect_b32 %s, 10, 9' % s(S_NSEG))

def diag_masks(k):
    k('v_lshrrev_b32 %s, 4, %s' % (v(VZ), v(LANE)))
    k('v_lshlrev_b32 %s, 2, %s' % (v(VZ), v(VZ)))
    k('v_and_b32 %s, 15, %s' % (v(VT), v(LANE)))
    k('v_sub_u32 %s, %s, %s' % (v(VT), v(VT), v(VZ)))
    for j in range(4):
        k('v_cmp_le_i32 %s, %d, %s' % (s(S_M + 2 * j, 2), j, v(VT)))

def xreduce(k, op, X, T):
    for sw in ('v_permlane16_swap_b32', 'v_permlane32_swap_b32'):
        k('v_mov_b32 %s, %s' % (v(T), v(X)))
        k('%s %s, %s' % (sw, v(X), v(T)))
        k('%s %s, %s, %s' % (op, v(X), v(X), v(T)))

def round_bf16(k, regs, T):
    for i in range(0, len(regs), 2):
        x, y = regs[i], regs[i + 1]
        cvt(k, y, x, y)
        k('v_lshlrev_b32 %s, 16, %s' % (v(x), v(y)))
        k('v_and_b32 %s, 0xffff0000, %s' % (v(y), v(y)))

def battn(k, waitflags=True, pre=None, post=None):
    k.c('===== B-branch sliding window attention =====')
    if waitflags:
        k('s_and_b32 %s, %s, 30' % (s(S_T3), s(S_H)))
        k('s_lshl_b32 %s, %s, 9' % (s(S_T3), s(S_T3)))
        k('s_add_u32 %s, %s, 0x%x' % (s(S_T3), s(S_T3), F_KV + 96))
        poll_flags(k, S_T3, 8, '64', 'd2', stride=128)
    diag_masks(k)
    QB, KB, VB, SC, NEG, MX, TT, LSUM, OO = 8, 12, 48, 84, 228, 230, 232, 234, 236
    def sc(j, kt, T): return SC + 4 * ((j * 2 + kt) * 2 + T)
    k('v_mov_b32 %s, 0xff800000' % v(NEG))
    k('s_mov_b32 %s, %s' % (s(S_I), s(S_W)))
    LOOP = 'L_ba_loop'; END = 'L_ba_end'
    S_RND = 61
    k('s_mov_b32 %s, 0' % s(S_RND))
    def dispatch(fns, name):
        if not fns: return
        J = 'L_ba_%s_j' % name
        for r, f in enumerate(fns):
            if r < len(fns) - 1:
                k('s_cmp_lg_u32 %s, %d' % (s(S_RND), r))
                k('s_cbranch_scc1 L_ba_%s_%d' % (name, r + 1))
            f()
            if r < len(fns) - 1:
                k('s_branch %s' % J)
                k.label('L_ba_%s_%d' % (name, r + 1))
        k.label(J)
    k.label(LOOP)
    k('s_cmp_ge_u32 %s, %s' % (s(S_I), s(S_NSEG)))
    k('s_cbranch_scc1 L_ba_nl')
    k('s_mul_i32 %s, %s, 7' % (s(S_SEG), s(S_I)))
    k('s_add_u32 %s, %s, %s' % (s(S_SEG), s(S_SEG), s(S_R)))
    k.vm = []
    k('s_lshl_b32 %s, %s, 12' % (s(S_T3), s(S_H)))
    k('s_add_u32 %s, %s, 0x%x' % (s(S_T3), s(S_T3), BX))
    k('s_lshl_b32 %s, %s, 17' % (s(S_T0), s(S_SEG)))
    k('s_add_u32 %s, %s, %s' % (s(S_T0), s(S_T0), s(S_T3)))
    k('buffer_load_dwordx4 %s, %s, %s, %s offen sc1' % (v(QB, 4), v(L16), s(S_WS, 4), s(S_T0)), tag='q')
    for j in range(9):
        k('s_sub_i32 %s, %s, %d' % (s(S_T0), s(S_SEG), 8 - j))
        k('s_max_i32 %s, %s, 0' % (s(S_T0), s(S_T0)))
        k('s_lshl_b32 %s, %s, 17' % (s(S_T0), s(S_T0)))
        k('s_add_u32 %s, %s, %s' % (s(S_T0), s(S_T0), s(S_T3)))
        k('buffer_load_dwordx4 %s, %s, %s, %s offen offset:1024 sc1' % (v(KB + 4 * j, 4), v(L16), s(S_WS, 4), s(S_T0)), tag=('k', j))
        k('buffer_load_dwordx4 %s, %s, %s, %s offen offset:2048 sc1' % (v(VB + 4 * j, 4), v(L16), s(S_WS, 4), s(S_T0)), tag=('v', j))
    k.label('L_ba_nl')
    keep = list(k.vm)
    dispatch(pre, 'pre')
    k.vm = keep + (['dma'] * 32 if pre else [])
    k('s_cmp_ge_u32 %s, %s' % (s(S_I), s(S_NSEG)))
    k('s_cbranch_scc1 L_ba_skip')
    dead = {(0, 0, 1), (8, 1, 0)}
    for j in range(9):
        k.wait_vm(('k', j))
        for kt in range(2):
            for T in range(2):
                if (j, kt, T) in dead: continue
                k('v_mfma_f32_16x16x16_bf16 %s, %s, %s, 0' % (v(sc(j, kt, T), 4), v(KB + 4 * j + 2 * kt, 2), v(QB + 2 * T, 2)))
    k.flush(9)
    for T in range(2):
        for jj in range(4):
            k('v_cndmask_b32 %s, %s, %s, %s' % (v(sc(8, T, T) + jj), v(NEG), v(sc(8, T, T) + jj), s(S_M + 2 * jj, 2)))
            k('v_cndmask_b32 %s, %s, %s, %s' % (v(sc(0, T, T) + jj), v(sc(0, T, T) + jj), v(NEG), s(S_M + 2 * jj, 2)))
    LV = k.newlabel('L_ba_valid')
    for j in range(8):
        k('s_cmp_ge_u32 %s, %d' % (s(S_SEG), 8 - j))
        k('s_cbranch_scc1 %s' % LV)
        for r in range(16):
            k('v_mov_b32 %s, %s' % (v(sc(j, 0, 0) + r), v(NEG)))
    k.label(LV)
    c = 0.25 * math.log2(math.e)
    k('s_mov_b32 %s, 0x%x' % (s(S_T4), f2u(c)))
    for T in range(2):
        regs = [sc(j, kt, T) + r for j in range(9) for kt in range(2) if (j, kt, T) not in dead for r in range(4)]
        round_bf16(k, regs, TT)
        k('v_max3_f32 %s, %s, %s, %s' % (v(MX), v(regs[0]), v(regs[1]), v(regs[2])))
        k('v_max3_f32 %s, %s, %s, %s' % (v(MX + 1), v(regs[3]), v(regs[4]), v(regs[5])))
        rest = regs[6:]
        for i in range(0, len(rest), 2):
            m = MX + ((i >> 1) & 1)
            k('v_max3_f32 %s, %s, %s, %s' % (v(m), v(m), v(rest[i]), v(rest[i + 1])))
        k('v_max_f32 %s, %s, %s' % (v(MX), v(MX), v(MX + 1)))
        xreduce(k, 'v_max_f32', MX, TT)
        k('v_mul_f32 %s, %s, %s' % (v(MX), s(S_T4), v(MX)))
        for r in regs: k('v_fma_f32 %s, %s, %s, -%s' % (v(r), v(r), s(S_T4), v(MX)))
        for r in regs: k('v_exp_f32 %s, %s' % (v(r), v(r)))
        k('v_add_f32 %s, %s, %s' % (v(LSUM), v(regs[0]), v(regs[1])))
        k('v_add_f32 %s, %s, %s' % (v(LSUM + 1), v(regs[2]), v(regs[3])))
        for i, r in enumerate(regs[4:]):
            m = LSUM + (i & 1)
            k('v_add_f32 %s, %s, %s' % (v(m), v(m), v(r)))
        k('v_add_f32 %s, %s, %s' % (v(LSUM), v(LSUM), v(LSUM + 1)))
        xreduce(k, 'v_add_f32', LSUM, TT)
        k('v_rcp_f32 %s, %s' % (v(LSUM), v(LSUM)))
        for r in regs: k('v_mul_f32 %s, %s, %s' % (v(r), v(r), v(LSUM)))
        for j in range(9):
            d = sc(j, 0, T)
            for kt in range(2):
                if (j, kt, T) in dead:
                    k('v_mov_b32 %s, 0' % v(d + 2 * kt)); k('v_mov_b32 %s, 0' % v(d + 2 * kt + 1))
                else:
                    b = sc(j, kt, T)
                    cvt(k, d + 2 * kt, b, b + 1); cvt(k, d + 2 * kt + 1, b + 2, b + 3)
        if T == 0: k.wait_vm(('v', 8))
        for j in range(9):
            k(mfma32(OO + 4 * T, v(VB + 4 * j, 4), v(sc(j, 0, T), 4), j == 0))
    for i in range(4): cvt(k, QB + i, OO + 2 * i, OO + 2 * i + 1)
    k('s_lshl_b32 %s, %s, 15' % (s(S_T0), s(S_SEG)))
    k('s_lshr_b32 %s, %s, 1' % (s(S_T1), s(S_H)))
    k('s_lshl_b32 %s, %s, 10' % (s(S_T1), s(S_T1)))
    k('s_add_u32 %s, %s, %s' % (s(S_T0), s(S_T0), s(S_T1)))
    k('s_and_b32 %s, %s, 1' % (s(S_T1), s(S_H)))
    k('s_lshl_b32 %s, %s, 3' % (s(S_T1), s(S_T1)))
    k('s_add_u32 %s, %s, %s' % (s(S_T0), s(S_T0), s(S_T1)))
    k('s_add_u32 %s, %s, 0x%x' % (s(S_T0), s(S_T0), OB))
    k('s_add_u32 %s, %s, 16384' % (s(S_T1), s(S_T0)))
    k('buffer_store_dwordx2 %s, %s, %s, %s offen sc1' % (v(QB, 2), v(L16), s(S_WS, 4), s(S_T0)))
    k('buffer_store_dwordx2 %s, %s, %s, %s offen sc1' % (v(QB + 2, 2), v(L16), s(S_WS, 4), s(S_T1)))
    k.label('L_ba_skip')
    k('s_add_u32 %s, %s, 4' % (s(S_I), s(S_I)))
    k('s_waitcnt vmcnt(0)')
    dispatch(post, 'post')
    k('s_add_u32 %s, %s, 1' % (s(S_RND), s(S_RND)))
    k('s_cmp_lt_u32 %s, 3' % s(S_RND))
    k('s_cbranch_scc1 %s' % LOOP)
    k.label(END)
    k('s_barrier')
    k('s_lshl_b32 %s, %s, 3' % (s(S_FL), s(S_H)))
    k('s_add_u32 %s, %s, %s' % (s(S_FL), s(S_FL), s(S_R)))
    k('s_lshl_b32 %s, %s, 2' % (s(S_FL), s(S_FL)))
    k('s_add_u32 %s, %s, 0x%x' % (s(S_FL), s(S_FL), F_D3))
    set_flag(k, S_FL, '1')


PB_GO, PB_TR, PB_GQ, PB_TRQ, PB_GB = 2, 3, 4, 5, 244
WOV, WBF, ACC, MEMF, AKV, QF, KF, VF, SX, BV, T8, SELT, IDX, NEG, MX, TT, LS = 16, 112, 128, 160, 192, 208, 212, 220, 228, 236, 240, 248, 250, 251, 252, 253, 254
S_STG = 63
wof = lambda dt, kk: (WOV + (dt * 4 + kk) * 4) if dt < 6 else (MEMF + ((dt - 6) * 4 + kk) * 4)
wkv = lambda m, ks, t: ((m * 8 + ks) * 2 + t) * 8

def pb_loader(k):
    srd(k, S_WO, P_WO, 4 << 20); srd(k, S_AUX, P_WOB, 512 * 1024)
    srd(k, S_WK, P_WK, 4 << 20); srd(k, S_WV, P_WV, 4 << 20)
    k('s_barrier')
    k('s_mul_i32 %s, %s, 40960' % (s(S_STG), s(S_W)))
    k('v_lshrrev_b32 %s, 2, %s' % (v(VZ), v(LANE)))
    k('v_and_b32 %s, 3, %s' % (v(VT), v(LANE)))
    k('v_lshlrev_b32 %s, 4, %s' % (v(PB_GO), v(VT)))
    k('v_lshl_add_u32 %s, %s, 13, %s' % (v(PB_GQ), v(VZ), v(PB_GO)))
    k('v_lshl_add_u32 %s, %s, 10, %s' % (v(PB_GO), v(VZ), v(PB_GO)))
    k('s_lshl_b32 %s, %s, 8' % (s(S_T0), s(S_TK)))
    k('s_lshl_b32 %s, %s, 6' % (s(S_T1), s(S_W)))
    k('s_add_u32 %s, %s, %s' % (s(S_T0), s(S_T0), s(S_T1)))
    k('v_add_u32 %s, %s, %s' % (v(PB_GQ), s(S_T0), v(PB_GQ)))
    k('s_lshl_b32 %s, %s, 17' % (s(S_T0), s(S_TK)))
    k('s_lshl_b32 %s, %s, 8' % (s(S_T1), s(S_W)))
    k('s_add_u32 %s, %s, %s' % (s(S_T0), s(S_T0), s(S_T1)))
    k('v_add_u32 %s, %s, %s' % (v(PB_GO), s(S_T0), v(PB_GO)))
    k('v_lshlrev_b32 %s, 6, %s' % (v(PB_TR), v(VZ)))
    k('v_lshl_add_u32 %s, %s, 3, %s' % (v(PB_TR), v(VT), v(PB_TR)))
    k('v_add_u32 %s, %s, %s' % (v(PB_TR), s(S_STG), v(PB_TR)))
    k('v_bfe_u32 %s, %s, 5, 1' % (v(VZ), v(LANE)))
    k('v_lshlrev_b32 %s, 4, %s' % (v(PB_TRQ), v(VZ)))
    for (bit, sh) in ((4, 2), (3, 3), (2, 0)):
        k('v_bfe_u32 %s, %s, %d, 1' % (v(VZ), v(LANE), bit))
        k('v_lshl_add_u32 %s, %s, %d, %s' % (v(PB_TRQ), v(VZ), sh, v(PB_TRQ)))
    k('v_lshlrev_b32 %s, 6, %s' % (v(PB_TRQ), v(PB_TRQ)))
    k('v_lshl_add_u32 %s, %s, 3, %s' % (v(PB_TRQ), v(VT), v(PB_TRQ)))
    k('v_add_u32 %s, %s, %s' % (v(PB_TRQ), s(S_STG), v(PB_TRQ)))
    k('v_lshrrev_b32 %s, 1, %s' % (v(VZ), v(LANE)))
    k('v_lshlrev_b32 %s, 10, %s' % (v(PB_GB), v(VZ)))
    k('v_and_b32 %s, 1, %s' % (v(VT), v(LANE)))
    k('v_lshl_add_u32 %s, %s, 4, %s' % (v(PB_GB), v(VT), v(PB_GB)))
    k('s_lshl_b32 %s, %s, 17' % (s(S_T0), s(S_W)))
    k('s_lshl_b32 %s, %s, 5' % (s(S_T1), s(S_TK)))
    k('s_add_u32 %s, %s, %s' % (s(S_T0), s(S_T0), s(S_T1)))
    k('v_add_u32 %s, %s, %s' % (v(PB_GB), s(S_T0), v(PB_GB)))
    def dma(ga, srdn, so, lo):
        k('s_mov_b32 %s, %d' % (s(S_T0), so))
        k('s_add_u32 m0, %s, %d' % (s(S_STG), lo))
        k('buffer_load_dwordx4 %s, %s, %s offen lds' % (v(ga), s(srdn, 4), s(S_T0)))
    def pre_kv(m):
        def f():
            for i in range(32): dma(PB_GQ, (S_WK, S_WV)[m], 16 * i * 8192, i * 1024)
        return f
    def post_kv(m):
        def f():
            for ks in range(8):
                for t in range(2):
                    for H in range(2):
                        for Q in range(2):
                            k('ds_read_b64_tr_b16 %s, %s offset:%d' % (a(wkv(m, ks, t) + 4 * H + 2 * Q, 2), v(PB_TRQ), ks * 4096 + (32 * H + 2 * Q) * 64 + 32 * t))
                k('s_waitcnt lgkmcnt(0)')
        return f
    def pre_o():
        for be in range(2):
            for i in range(4):
                for dp in range(4): dma(PB_GO, S_WO, (64 * be + 16 * i) * 1024 + dp * 64, (be * 4 + dp) * 4096 + i * 1024)
        for i in range(4): dma(PB_GB, S_AUX, 32 * i * 1024, 32768 + i * 1024)
    def final():
        for be in range(2):
            for dp in range(4):
                for k2 in range(2):
                    for t in range(2):
                        for hh in range(2):
                            k('ds_read_b64_tr_b16 %s, %s offset:%d' % (v(wof(2 * dp + t, 2 * be + k2) + 2 * hh, 2), v(PB_TR), (be * 4 + dp) * 4096 + (32 * k2 + 16 * hh) * 64 + 32 * t))
                k('s_waitcnt lgkmcnt(0)')
        k('v_lshlrev_b32 %s, 3, %s' % (v(VZ), v(LANE)))
        k('v_add_u32 %s, %s, %s' % (v(VZ), s(S_STG), v(VZ)))
        for hb in range(8):
            k('ds_read_b64_tr_b16 %s, %s offset:%d' % (v(WBF + 2 * hb, 2), v(VZ), 32768 + hb * 512))
        k('s_waitcnt lgkmcnt(0)')
    return [pre_kv(0), pre_kv(1), pre_o], [post_kv(0), post_kv(1), lambda: None], final

def phaseB(k, waitflags=True, opt={}):
    k.c('===== phase B =====')
    srd(k, S_OUT, P_OUT, 2 << 20)
    k('s_barrier')
    PFA, ST, OA, LW2, LW1, MEMA, MEMO, HOME = 8, 9, 10, 11, 12, 13, 14, 15
    BRA, GRA, L8, IDXR = 2, 3, 4, 5
    SELR = 244
    L_SXX, L_SMX, L_OX, L_HOME, L_BX = 8192, 16384, 20480, 32768, 65536 + 4 * 12288
    S_PF = S_T2
    k('s_mul_i32 %s, %s, 12288' % (s(S_PF), s(S_W)))
    k('s_add_u32 %s, %s, 65536' % (s(S_PF), s(S_PF)))
    k('s_lshl_b32 %s, %s, 13' % (s(S_T0), s(S_W)))
    k('v_add_u32 %s, %s, %s' % (v(HOME), s(S_T0), v(L16)))
    k('s_lshl_b32 %s, %s, 11' % (s(S_T0), s(S_W)))
    k('v_add_u32 %s, %s, %s' % (v(LW2), s(S_T0), v(L16)))
    k('s_lshl_b32 %s, %s, 10' % (s(S_T0), s(S_W)))
    k('v_add_u32 %s, %s, %s' % (v(LW1), s(S_T0), v(L16)))
    for i in range(8):
        k('ds_write_b128 %s, %s offset:%d' % (v(HOME), v(MEMF + 4 * i, 4), L_HOME + 1024 * i))
    diag_masks(k)
    k('v_and_b32 %s, 15, %s' % (v(VT), v(LANE)))
    k('v_lshrrev_b32 %s, 4, %s' % (v(VZ), v(LANE)))
    k('v_cmp_gt_u32 vcc, 8, %s' % v(VT))
    k('v_mov_b32 %s, 0xeeee' % v(IDX))
    k('v_mov_b32 %s, 0x4444' % v(TT))
    k('v_cndmask_b32 %s, %s, %s, vcc' % (v(IDX), v(IDX), v(TT)))
    k('v_lshlrev_b32 %s, 3, %s' % (v(ST), v(VT)))
    k('v_lshl_add_u32 %s, %s, 12, %s' % (v(ST), v(VZ), v(ST)))
    k('v_and_b32 %s, 7, %s' % (v(MX), v(LANE)))
    k('v_lshrrev_b32 %s, 5, %s' % (v(TT), v(LANE)))
    k('v_lshl_add_u32 %s, %s, 1, %s' % (v(MX), v(MX), v(TT)))
    k('v_and_b32 %s, 1, %s' % (v(TT), v(VZ)))
    k('v_lshlrev_b32 %s, 10, %s' % (v(OA), v(MX)))
    k('v_lshl_add_u32 %s, %s, 2, %s' % (v(OA), v(TT), v(OA)))
    k('s_lshl_b32 %s, %s, 5' % (s(S_T0), s(S_H)))
    k('s_lshl_b32 %s, %s, 3' % (s(S_T1), s(S_W)))
    k('s_add_u32 %s, %s, %s' % (s(S_T0), s(S_T0), s(S_T1)))
    k('v_add_u32 %s, %s, %s' % (v(OA), s(S_T0), v(OA)))
    k('v_bfrev_b32 %s, 1' % v(LS))
    k('v_cndmask_b32 %s, %s, %s, vcc' % (v(OA), v(LS), v(OA)))
    k('v_lshlrev_b32 %s, 4, %s' % (v(GRA), v(MX)))
    k('v_lshl_add_u32 %s, %s, 3, %s' % (v(BRA), v(TT), v(GRA)))
    k('v_add_u32 %s, %s, %s' % (v(GRA), s(S_PF), v(GRA)))
    k('s_lshl_b32 %s, %s, 8' % (s(S_T0), s(S_W)))
    k('s_add_u32 %s, %s, %d' % (s(S_T0), s(S_T0), L_BX))
    k('v_add_u32 %s, %s, %s' % (v(BRA), s(S_T0), v(BRA)))
    k('v_add_u32 %s, %d, %s' % (v(L8), L_BX, v(LW1)))
    k('v_mov_b32 %s, 0x3f80' % v(MX))
    k('v_and_b32 %s, 2, %s' % (v(TT), v(VT)))
    k('v_cmp_eq_u32 s[4:5], 0, %s' % v(TT))
    k('v_mov_b32 %s, 0' % v(LS))
    k('v_cndmask_b32 %s, %s, %s, s[4:5]' % (v(TT), v(LS), v(MX)))
    k('v_cndmask_b32 %s, %s, %s, vcc' % (v(SELR), v(LS), v(TT)))
    k('v_cndmask_b32 %s, %s, %s, vcc' % (v(SELR + 1), v(TT), v(LS)))
    k('v_mov_b32 %s, %s' % (v(SELR + 2), v(SELR)))
    k('v_mov_b32 %s, %s' % (v(SELR + 3), v(SELR + 1)))
    k('v_bfe_u32 %s, %s, 2, 1' % (v(TT), v(VT)))
    k('v_and_b32 %s, 1, %s' % (v(LS), v(VT)))
    k('v_lshl_add_u32 %s, %s, 1, %s' % (v(TT), v(TT), v(LS)))
    k('v_xor_b32 %s, 1, %s' % (v(LS), v(TT)))
    k('v_lshl_add_u32 %s, %s, 2, %s' % (v(TT), v(LS), v(TT)))
    k('v_mul_u32_u24 %s, 0x1111, %s' % (v(IDXR), v(TT)))
    k('v_and_b32 %s, 1, %s' % (v(VZ), v(VZ)))
    k('v_lshlrev_b32 %s, 2, %s' % (v(VZ), v(VZ)))
    k('v_and_b32 %s, 7, %s' % (v(VT), v(LANE)))
    k('v_sub_u32 %s, %s, %s' % (v(VT), v(VT), v(VZ)))
    k('v_mov_b32 %s, 0x3f800000' % v(TT))
    for r in range(2):
        k('v_mov_b32 %s, 0' % v(SELT + r))
        k('v_cmp_eq_u32 vcc, %d, %s' % (2 * r, v(VT)))
        k('v_cndmask_b32 %s, %s, %s, vcc' % (v(SELT + r), v(SELT + r), v(MX)))
        k('v_cmp_eq_u32 vcc, %d, %s' % (2 * r + 1, v(VT)))
        k('v_cndmask_b32 %s, %s, %s, vcc' % (v(SELT + r), v(SELT + r), v(TT)))
    k('v_mov_b32 %s, 0xff800000' % v(NEG))
    if waitflags:
        for r in range(4):
            k('s_mov_b32 %s, 0x%x' % (s(S_T3), F_D3 + 256 * r))
            poll_flags(k, S_T3, 64, '1', 'd3', skip7=True)
    S_PBW, S_PBR, S_U, S_T, S_TG = S_XS, S_XB, S_R, S_NSEG, S_FL
    k('s_lshl_b32 %s, %s, 20' % (s(S_T0), s(S_GRP)))
    k('s_add_u32 %s, %s, 0x%x' % (s(S_T0), s(S_T0), PB))
    k('s_lshl_b32 %s, %s, 17' % (s(S_PBW), s(S_W)))
    k('s_add_u32 %s, %s, %s' % (s(S_PBW), s(S_PBW), s(S_T0)))
    k('s_lshl_b32 %s, %s, 7' % (s(S_T1), s(S_H)))
    k('s_add_u32 %s, %s, %s' % (s(S_PBW), s(S_PBW), s(S_T1)))
    k('s_lshl_b32 %s, %s, 14' % (s(S_PBR), s(S_H)))
    k('s_add_u32 %s, %s, %s' % (s(S_PBR), s(S_PBR), s(S_T0)))
    k('s_lshl_b32 %s, %s, 12' % (s(S_T1), s(S_W)))
    k('s_add_u32 %s, %s, %s' % (s(S_PBR), s(S_PBR), s(S_T1)))
    k('s_mov_b32 %s, 0' % s(S_I))
    k('s_sub_u32 %s, %s, 1' % (s(S_U), s(S_GRP)))
    k('s_mov_b32 %s, 0x%x' % (s(S_T4), f2u(128 ** -0.5)))
    def mf16(d, A, B, C=None): k('v_mfma_f32_16x16x16_bf16 %s, %s, %s, %s' % (v(d, 4), v(A, 2), v(B, 2), '0' if C is None else v(C, 4)))
    def rnd2(regs):
        round_bf16(k, regs, TT)
        for r in regs: k('v_mul_f32 %s, %s, %s' % (v(r), s(S_T4), v(r)))
        round_bf16(k, regs, TT)
    def add(d, x, y): k('v_add_f32 %s, %s, %s' % (v(d), v(x), v(y)))
    ld = lambda d, so, off, tag: k('buffer_load_dwordx4 %s, %s, %s, %s offen offset:%d sc1' % (v(d, 4), v(L16), s(S_WS, 4), s(so), off), tag=tag)
    S_MB = 60
    k('v_add_u32 %s, %s, %s' % (v(PFA), s(S_PF), v(L16)))
    k('v_mov_b32 %s, %s' % (v(MEMO), v(LW2)))
    k('v_mov_b32 %s, %s' % (v(MEMA), v(L16)))
    dma = lambda so, off, fl='sc1': k('buffer_load_dwordx4 %s, %s, %s offen offset:%d %s lds' % (v(L16), s(S_WS, 4), s(so), off, fl))
    def prefetch(su, mb):
        k('s_lshr_b32 s4, %s, 1' % s(su))
        k('s_lshl_b32 s5, s4, 5')
        k('s_add_u32 s5, s5, %s' % s(S_H))
        k('s_lshl_b32 %s, s5, 2' % s(S_T1))
        k('s_add_u32 %s, %s, %s' % (s(S_T1), s(S_T1), s(S_W)))
        k('s_lshl_b32 %s, %s, 12' % (s(S_T0), s(S_T1)))
        k('s_mov_b32 m0, %s' % s(S_PF))
        for i in range(4): dma(S_T0, 1024 * i)
        k('s_and_b32 %s, %s, 1' % (s(S_T0), s(su)))
        k('s_lshl1_add_u32 %s, %s, %s' % (s(S_T0), s(S_T1), s(S_T0)))
        k('s_lshl_b32 %s, %s, 10' % (s(S_T0), s(S_T0)))
        k('s_add_u32 %s, %s, 0x%x' % (s(S_T0), s(S_T0), QX))
        k('s_add_u32 m0, %s, 4096' % s(S_PF))
        dma(S_T0, 0)
        k('s_lshl_b32 %s, s5, 12' % s(S_T0))
        k('s_add_u32 %s, %s, 0x%x' % (s(S_T0), s(S_T0), BX + 3072))
        k('s_add_u32 m0, %s, 5120' % s(S_PF))
        dma(S_T0, 0)
        k('s_lshl_b32 %s, %s, 2' % (s(S_T0), s(su)))
        k('s_add_u32 %s, %s, %s' % (s(S_T0), s(S_T0), s(S_W)))
        k('s_lshl_b32 %s, %s, 12' % (s(S_T0), s(S_T0)))
        k('s_add_u32 %s, %s, 0x%x' % (s(S_T0), s(S_T0), OB))
        k('s_add_u32 m0, %s, 6144' % s(S_PF))
        for i in range(4): dma(S_T0, 1024 * i, opt.get('obfl', 'sc1'))
        k('s_lshl_b32 %s, s4, 13' % s(S_T0))
        k('s_lshl_b32 %s, %s, 11' % (s(S_T1), s(S_W)))
        k('s_add_u32 %s, %s, %s' % (s(S_T0), s(S_T0), s(S_T1)))
        k('s_add_u32 %s, %s, 0x%x' % (s(S_T0), s(S_T0), MEMX))
        k('s_add_u32 m0, %s, %s' % (s(S_T1), s(mb)))
        dma(S_T0, 0); dma(S_T0, 1024)
    k('s_mov_b32 %s, 0' % s(S_MB))
    prefetch(S_U, S_MB)
    k('s_waitcnt vmcnt(0) lgkmcnt(0)')
    LOOP = 'L_pb_loop'
    k.label(LOOP)
    k.vm = []; k.lg = []
    k('s_lshr_b32 %s, %s, 1' % (s(S_SEG), s(S_U)))
    k('s_and_b32 %s, %s, 1' % (s(S_T), s(S_U)))
    k('s_bfe_u32 %s, %s, 0x10001' % (s(S_TG), s(S_I)))
    k('s_lshl_b32 %s, %s, 2' % (s(S_T0), s(S_T)))
    k('v_add_u32 %s, %s, %s' % (v(TT), s(S_T0), v(GRA)))
    OBF = ACC
    for i in range(4): k('ds_read_b128 %s, %s offset:%d' % (v(OBF + 4 * i, 4), v(PFA), 6144 + 1024 * i))
    k('ds_read_b128 %s, %s offset:4096' % (v(QF, 4), v(PFA)))
    for i in range(2): k('ds_read_b128 %s, %s offset:%d' % (v(KF + 4 * i, 4), v(PFA), 1024 * i))
    k('ds_read_b32 %s, %s offset:5120' % (v(BV + 2), v(TT)))
    k('ds_read_b32 %s, %s offset:5128' % (v(BV + 3), v(TT)))
    for i in range(2): k('ds_read_b128 %s, %s offset:%d' % (v(VF + 4 * i, 4), v(PFA), 2048 + 1024 * i))
    k('s_add_u32 %s, %s, 7' % (s(S_OO), s(S_U)))
    k('s_min_u32 %s, %s, 127' % (s(S_OO), s(S_OO)))
    k('s_xor_b32 %s, %s, 24576' % (s(S_T3), s(S_MB)))
    k('s_waitcnt lgkmcnt(0)')
    for kt in range(2): k(mfma32(SX + 4 * kt, v(KF + 4 * kt, 4), v(QF, 4), True))
    for i in range(4): k(mfma32(T8, v(WBF + 4 * i, 4), v(OBF + 4 * i, 4), i == 0))
    prefetch(S_OO, S_T3)
    for kt in range(2): k('ds_write_b128 %s, %s offset:%d' % (v(LW2), v(SX + 4 * kt, 4), L_SXX + 1024 * kt))
    k('ds_write_b128 %s, %s' % (v(L8), v(T8, 4)))
    for i in range(0, 16, 2): k('v_mov_b64 %s, 0' % v(AKV + i, 2))
    k('s_waitcnt lgkmcnt(0)')
    k('s_barrier')
    for i in range(8): k('ds_read_b128 %s, %s offset:%d' % (v(MEMF + 4 * i, 4), v(L16), L_SXX + 1024 * i))
    for i in range(4): k('ds_read_b64 %s, %s offset:%d' % (v(ACC + 2 * i, 2), v(BRA), 1024 * i))
    k('s_waitcnt lgkmcnt(0)')
    for j in range(8):
        add(MEMF + j, MEMF + j, MEMF + 8 + j); add(MEMF + 16 + j, MEMF + 16 + j, MEMF + 24 + j)
    for j in range(8): add(SX + j, MEMF + j, MEMF + 16 + j)
    for j in range(2):
        add(ACC + j, ACC + j, ACC + 2 + j); add(ACC + 4 + j, ACC + 4 + j, ACC + 6 + j)
    for j in range(2): add(BV + j, ACC + j, ACC + 4 + j)
    round_bf16(k, [BV, BV + 1], TT)
    for j in range(2): k('v_mul_f32 %s, %s, %s' % (v(BV + j), v(BV + j), v(BV + 3)))
    round_bf16(k, [BV, BV + 1], TT)
    rnd2([SX + i for i in range(8)])
    LT1 = k.newlabel('L_pb_t1'); LTJ = k.newlabel('L_pb_tj')
    k('s_cmp_eq_u32 %s, 1' % s(S_T))
    k('s_cbranch_scc1 %s' % LT1)
    for jj in range(4):
        k('v_cndmask_b32 %s, %s, %s, %s' % (v(SX + jj), v(NEG), v(SX + jj), s(S_M + 2 * jj, 2)))
        k('v_mov_b32 %s, %s' % (v(SX + 4 + jj), v(NEG)))
    k('s_branch %s' % LTJ)
    k.label(LT1)
    for jj in range(4):
        k('v_cndmask_b32 %s, %s, %s, %s' % (v(SX + 4 + jj), v(NEG), v(SX + 4 + jj), s(S_M + 2 * jj, 2)))
    k.label(LTJ)
    PL = 'L_pb_poll'
    def memchk():
        k('ds_read_b128 %s, %s' % (v(MEMF, 4), v(MEMO)))
        k('ds_read_b128 %s, %s offset:1024' % (v(MEMF + 4, 4), v(MEMO)))
        k('s_waitcnt lgkmcnt(0)')
        k('v_max3_u32 %s, %s, %s, %s' % (v(TT), v(MEMF), v(MEMF + 1), v(MEMF + 2)))
        k('v_max3_u32 %s, %s, %s, %s' % (v(MX), v(MEMF + 3), v(MEMF + 4), v(MEMF + 5)))
        k('v_max3_u32 %s, %s, %s, %s' % (v(TT), v(TT), v(MEMF + 6), v(MEMF + 7)))
        k('v_max_u32 %s, %s, %s' % (v(TT), v(TT), v(MX)))
        k('v_cmp_eq_u32 vcc, -1, %s' % v(TT))
    memchk()
    k('s_cbranch_vccz %s_ok' % PL)
    k('s_lshl_b32 %s, %s, 13' % (s(S_T0), s(S_SEG)))
    k('s_lshl_b32 %s, %s, 11' % (s(S_T1), s(S_W)))
    k('s_add_u32 m0, %s, %s' % (s(S_T1), s(S_MB)))
    k('s_add_u32 %s, %s, %s' % (s(S_T0), s(S_T0), s(S_T1)))
    k('s_add_u32 %s, %s, 0x%x' % (s(S_T0), s(S_T0), MEMX))
    k('s_mov_b32 %s, %d' % (s(S_SPIN), SPIN_MAX))
    k('s_sub_u32 %s, %s, 8192' % (s(S_T1), s(S_T0)))
    k('s_cmp_eq_u32 %s, 0' % s(S_SEG))
    k('s_cselect_b32 %s, %s, %s' % (s(S_T1), s(S_T0), s(S_T1)))
    k('s_mov_b32 %s, 0' % s(S_T3))
    k('s_mov_b64 exec, 1')
    k.label(PL)
    k('buffer_load_dword %s, %s, %s, %s offen sc1' % (v(TT), v(L16), s(S_WS, 4), s(S_T1)))
    k('s_sub_u32 %s, %s, 1' % (s(S_SPIN), s(S_SPIN)))
    k('s_cbranch_scc1 %s' % FAIL)
    k('s_waitcnt vmcnt(0)')
    k('v_cmp_eq_u32 vcc, -1, %s' % v(TT))
    k('s_cbranch_vccz %s_a' % PL)
    k('s_mov_b32 %s, 1' % s(S_T3))
    k('s_sleep %d' % opt.get('pbsleep', 6))
    k('s_branch %s' % PL)
    k.label(PL + '_a')
    k('s_mov_b64 exec, -1')
    k('s_cmp_eq_u32 %s, 0' % s(S_T3))
    k('s_cbranch_scc1 %s_b' % PL)
    k('s_sleep %d' % opt.get('pbsleep2', 12))
    k.label(PL + '_b')
    dma(S_T0, 0); dma(S_T0, 1024)
    k('s_sub_u32 %s, %s, 1' % (s(S_SPIN), s(S_SPIN)))
    k('s_cbranch_scc1 %s' % FAIL)
    k('s_waitcnt vmcnt(0)')
    memchk()
    k('s_cbranch_vccnz %s_b' % PL)
    k.label(PL + '_ok')
    k('s_barrier')
    k.lg = []
    def MR(ks): k('ds_read_b128 %s, %s offset:%d' % (v(MEMF + 4 * ks, 4), v(MEMA), 1024 * ks), tag=('mf', ks))
    def SMF(m, ks, t): k('v_smfmac_f32_16x16x64_bf16 %s, %s, %s, %s' % (v(AKV + 8 * m + 4 * t, 4), v(MEMF + 4 * ks, 4), a(wkv(m, ks, t), 8), v(IDX)))
    MR(0); MR(1); MR(2)
    for ks in range(8):
        k.wait_lg(('mf', ks))
        SMF(0, ks, 0)
        if ks + 3 < 8: MR(ks + 3)
        SMF(0, ks, 1)
    vq = [(ks, t) for ks in range(8) for t in range(2)]
    hq = list(range(8))
    def V(n=1):
        for _ in range(n):
            ks, t = vq.pop(0); SMF(1, ks, t)
            if t == 1:
                k('ds_read_b128 %s, %s offset:%d' % (v(MEMF + 4 * ks, 4), v(HOME), L_HOME + 1024 * ks), tag=('wh', ks))
    V(2)
    for i in range(4): cvt(k, ACC + 16 + i, AKV + 2 * i, AKV + 2 * i + 1)
    V(1)
    mf16(AKV, ACC + 16, SELT); mf16(AKV + 4, ACC + 18, SELT)
    V(2)
    for i in range(4): cvt(k, ACC + 16 + i, AKV + 2 * i, AKV + 2 * i + 1)
    V(1)
    k(mfma32(AKV, v(ACC + 16, 4), v(QF, 4), True))
    V(3)
    k('ds_write_b128 %s, %s offset:%d' % (v(LW1), v(AKV, 4), L_SMX), tag='sw')
    V(7)
    k.wait_lg('sw')
    k('s_barrier')
    VM = KF
    SR = [AKV, AKV + 4, KF + 4, T8]
    for w_ in range(4): k('ds_read_b128 %s, %s offset:%d' % (v(SR[w_], 4), v(L16), L_SMX + 1024 * w_), tag=('sr', w_))
    for i in range(4): cvt(k, VM + i, AKV + 8 + 2 * i, AKV + 8 + 2 * i + 1)
    k.wait_lg(('sr', 1))
    for j in range(4): add(AKV + j, AKV + j, AKV + 4 + j)
    k.wait_lg(('sr', 3))
    for j in range(4): add(T8 + j, T8 + j, KF + 4 + j)
    for j in range(4): add(AKV + j, AKV + j, T8 + j)
    mr = [AKV + j for j in range(4)]; xr = [SX + j for j in range(8)]
    rnd2(mr)
    k('s_mov_b32 %s, 0x%x' % (s(S_T3), f2u(math.log2(math.e))))
    regs = xr + mr
    k('v_max3_f32 %s, %s, %s, %s' % (v(MX), v(regs[0]), v(regs[1]), v(regs[2])))
    for i in range(3, len(regs) - 1, 2): k('v_max3_f32 %s, %s, %s, %s' % (v(MX), v(MX), v(regs[i]), v(regs[i + 1])))
    k('v_max_f32 %s, %s, %s' % (v(MX), v(MX), v(regs[-1])))
    xreduce(k, 'v_max_f32', MX, TT)
    k('v_mul_f32 %s, %s, %s' % (v(MX), s(S_T3), v(MX)))
    for r in regs: k('v_fma_f32 %s, %s, %s, -%s' % (v(r), v(r), s(S_T3), v(MX)))
    for r in regs: k('v_exp_f32 %s, %s' % (v(r), v(r)))
    add(LS, mr[0], mr[1]); add(LS + 1, mr[2], mr[3]); add(LS, LS, LS + 1)
    add(LS + 1, xr[0], xr[1])
    k('v_fma_f32 %s, %s, 0.5, %s' % (v(LS), v(LS), v(xr[2])))
    for i, r in enumerate(xr[3:]): add(LS + (i & 1), LS + (i & 1), r)
    add(LS, LS, LS + 1)
    xreduce(k, 'v_add_f32', LS, TT)
    k('v_rcp_f32 %s, %s' % (v(LS), v(LS)))
    for r in regs: k('v_mul_f32 %s, %s, %s' % (v(r), v(r), v(LS)))
    PX, PM, O = T8, ACC + 16, AKV + 8
    for i in range(4): cvt(k, PX + i, xr[2 * i], xr[2 * i + 1])
    cvt(k, PM, mr[0], mr[1]); cvt(k, PM + 1, mr[2], mr[3])
    for t in range(2): k(mfma32(O + 4 * t, v(VF + 4 * t, 4), v(PX, 4), True))
    for t in range(2): mf16(O + 4 * t, VM + 2 * t, PM, O + 4 * t)
    for i in range(4): cvt(k, T8 + i, O + 2 * i, O + 2 * i + 1)
    k('ds_write_b128 %s, %s offset:%d' % (v(LW1), v(T8, 4), L_OX))
    k('s_waitcnt lgkmcnt(0)')
    k('s_barrier')
    OF = AKV
    for kk in range(4): k('ds_read_b128 %s, %s offset:%d' % (v(OF + 4 * kk, 4), v(L16), L_OX + 1024 * kk), tag=('of', kk))
    k('s_mov_b32 %s, %s' % (s(S_T0), s(S_PBW)))
    def pack(dt):
        r = ACC + 4 * dt
        cvt(k, r, r, r + 1); cvt(k, r + 1, r + 2, r + 3)
        k('v_bfi_b32 %s, 1, %s, %s' % (v(r), s(S_TG), v(r)))
    def st(dt):
        k('buffer_store_dwordx2 %s, %s, %s, %s offen' % (v(ACC + 4 * dt, 2), v(ST), s(S_WS, 4), s(S_T0)))
        k('s_add_u32 %s, %s, 0x4000' % (s(S_T0), s(S_T0)))
    for dt in range(8):
        for kk in range(4):
            if dt == 0: k.wait_lg(('of', kk))
            k(mfma32(ACC + 4 * dt, v(wof(dt, kk), 4), v(OF + 4 * kk, 4), kk == 0))
            if kk == 2 and dt > 0: pack(dt - 1)
            if kk == 3 and dt > 0: st(dt - 1)
    RA = SX; RR = AKV
    k('v_mov_b64 %s, 0' % v(RA, 2)); k('v_mov_b64 %s, 0' % v(RA + 2, 2))
    k('s_mov_b32 %s, %d' % (s(S_SPIN), SPIN_MAX))
    pack(7); st(7)
    for i in range(opt.get('pbw', 3)): k('s_nop 15')
    k('s_mov_b64 vcc, -1')
    k.label('L_pb_r')
    k('s_mov_b64 exec, vcc')
    for i in range(4): ld(RR + 4 * i, S_PBR, i * 1024, None)
    k('s_sub_u32 %s, %s, 1' % (s(S_SPIN), s(S_SPIN)))
    k('s_cbranch_scc1 %s' % FAIL)
    k('s_waitcnt vmcnt(0)')
    for i in range(4): k('v_bitop3_b32 %s, %s, %s, %s bitop3:0x7e' % (v(T8 + i), v(RR + 4 * i), v(RR + 4 * i + 2), s(S_TG)))
    k('v_or3_b32 %s, %s, %s, %s' % (v(T8), v(T8), v(T8 + 1), v(T8 + 2)))
    k('v_bitop3_b32 %s, %s, %s, 1 bitop3:0xa8' % (v(T8), v(T8), v(T8 + 3)))
    k('v_cmp_ne_u32 vcc, 0, %s' % v(T8))
    k('s_cbranch_vccnz L_pb_r')
    k('s_mov_b64 exec, -1')
    for i in range(2): k('v_smfmac_f32_16x16x64_bf16 %s, %s, %s, %s' % (v(RA, 4), v(SELR, 4), v(RR + 8 * i, 8), v(IDXR)))
    k('s_lshl_b32 %s, %s, 14' % (s(S_T0), s(S_U)))
    k('s_add_u32 %s, %s, 1' % (s(S_I), s(S_I)))
    k('s_xor_b32 %s, %s, 24576' % (s(S_MB), s(S_MB)))
    k('v_xor_b32 %s, 24576, %s' % (v(MEMO), v(MEMO)))
    k('v_xor_b32 %s, 24576, %s' % (v(MEMA), v(MEMA)))
    k('s_xor_b32 %s, %s, 0x80000' % (s(S_PBW), s(S_PBW)))
    k('s_xor_b32 %s, %s, 0x80000' % (s(S_PBR), s(S_PBR)))
    k('s_add_u32 %s, %s, 7' % (s(S_U), s(S_U)))
    for j in range(2): k('v_add_f32_dpp %s, %s, %s row_ror:8 row_mask:0xf bank_mask:0xf' % (v(RA + j), v(RA + j), v(RA + j)))
    round_bf16(k, [RA, RA + 1], TT)
    for j in range(2): k('v_mul_f32 %s, %s, %s' % (v(RA + j), v(RA + j), v(BV + 2)))
    round_bf16(k, [RA, RA + 1], TT)
    for j in range(2): add(RA + j, RA + j, BV + j)
    cvt(k, RA, RA, RA + 1)
    k('buffer_store_dword %s, %s, %s, %s offen %s' % (v(RA), v(OA), s(S_OUT, 4), s(S_T0), opt.get('outfl', '')))
    if opt.get('wb'):
        k('s_cmp_lt_u32 %s, %d' % (s(S_U), opt['wb']))
        k('s_cbranch_scc1 %s' % LOOP)
        k('s_add_u32 %s, %s, %s' % (s(S_T0), s(S_H), s(S_W)))
        k('s_cmp_lg_u32 %s, 0' % s(S_T0))
        k('s_cbranch_scc1 L_pb_nwb')
        k('s_sleep 8')
        k('buffer_wbl2 sc1')
        k.label('L_pb_nwb')
    k('s_cmp_lt_u32 %s, 128' % s(S_U))
    k('s_cbranch_scc1 %s' % LOOP)
```

```python
import sys, json
sys.path.insert(0, 'gen')
from fw import *
from layout import *
import chain as C
import worker as W
NAME = 'gated_mix__memory_aug_recurrent_mem_tr__sliding_block__prompt_kernel'
HEAD = open('gated_mix__memory_aug_recurrent_mem_tr__sliding_block__prompt.s.ref').read().split('; Override')[0]
D_READY = 64

def gen(opt={}):
    roles = opt.get('roles', ['chain', 'pj', 'ba', 'pb'])
    full = len(roles) == 4
    k = K()
    k.raw(HEAD.rstrip())
    k.raw('; @launch grid=(256,1,1) block=(256,1,1) lds=163840')
    k.raw('.amdgcn_target "amdgcn-amd-amdhsa--gfx950"\n.text\n.globl %s\n.p2align 8\n.type %s,@function\n%s:' % (NAME, NAME, NAME))
    k('s_load_dwordx16 s[64:79], s[0:1], 0')
    k('s_load_dwordx8 s[80:87], s[0:1], 64')
    k('s_load_dwordx4 s[88:91], s[0:1], 96')
    if opt.get('prof'):
        k('s_memtime s[100:101]')
        k('s_memrealtime s[6:7]')
    k('s_getreg_b32 %s, hwreg(HW_REG_XCC_ID)' % s(W.S_GRP))
    k('s_and_b32 %s, %s, 7' % (s(W.S_GRP), s(W.S_GRP)))
    k('s_waitcnt lgkmcnt(0)')
    C.srd(k, C.S_WS, W.P_WS, WS_BYTES); C.srd(k, C.S_DBG, W.P_DBG, 256)
    k('''
  s_lshl_b32 s55, s50, 2
  v_mov_b32 v1, 0
  v_mov_b32 v2, 1
  v_cmp_eq_u32 vcc, 0, v0
  s_and_saveexec_b64 s[4:5], vcc
  s_cbranch_execz L_t1
  buffer_atomic_add v2, v1, s[32:35], s55 offen sc0 sc1
  s_waitcnt vmcnt(0)
  ds_write_b32 v1, v2
  s_waitcnt lgkmcnt(0)
L_t1:
  s_mov_b64 exec, s[4:5]
  s_barrier
  ds_read_b32 v2, v1
  v_lshrrev_b32 v3, 6, v0
  s_waitcnt lgkmcnt(0)
  v_readfirstlane_b32 s51, v2
  v_readfirstlane_b32 s41, v3
  v_and_b32 v0, 63, v0
  s_barrier
  s_cmp_ge_u32 s51, 32
  s_cbranch_scc1 L_end
''')
    TK, GRP = W.S_TK, W.S_GRP
    if opt.get('prof'):
        k('s_memtime s[98:99]')
        k('s_waitcnt lgkmcnt(0)')
    def ready_add(ra=6, rb=7, sync=True):
        if sync:
            k('s_waitcnt vmcnt(0)')
            k('s_barrier')
        L = k.newlabel('L_ra')
        k('s_cmp_lg_u32 %s, 0' % s(C.S_W))
        k('s_cbranch_scc1 %s' % L)
        k('v_mov_b32 v%d, %d' % (ra, D_READY))
        k('v_mov_b32 v%d, 1' % rb)
        k('s_mov_b64 exec, 1')
        k('buffer_atomic_add v%d, v%d, s[32:35], 0 offen sc1' % (rb, ra))
        k('s_mov_b64 exec, -1')
        k.label(L)
    k('v_lshlrev_b32 v1, 4, v0')
    for i in range(4): k('v_mov_b32 v%d, -1' % (8 + i))
    k('s_cmp_lg_u32 %s, 0' % s(GRP))
    k('s_cbranch_scc1 L_worker')
    if 'chain' in roles:
        k('s_mov_b32 %s, %s' % (s(C.S_H), s(TK)))
        C.srd(k, C.S_WQ, W.P_WQ, 4 << 20); C.srd(k, C.S_WK, W.P_WK, 4 << 20); C.srd(k, C.S_WV, W.P_WV, 4 << 20); C.srd(k, C.S_WO, W.P_WO, 4 << 20)
        C.srd(k, C.S_M0, W.P_MEM0, 8192)
        def hook_loading():
            k('v_lshlrev_b32 v24, 4, v0')
            for i in range(4): k('v_mov_b32 v%d, -1' % (28 + i))
            k('s_lshl_b32 s55, s40, 13')
            k('s_lshl_b32 s56, s41, 11')
            k('s_add_u32 s55, s55, s56')
            k('s_add_u32 s55, s55, 0x%x' % INB)
            for i in range(2):
                k('buffer_store_dwordx4 v[28:31], v24, s[8:11], s55 offen offset:%d' % (1024 * i), tag='init')
            k('s_lshl_b32 s55, s40, 10')
            k('s_add_u32 s55, s55, 0x%x' % H2)
            k('buffer_store_dwordx4 v[28:31], v24, s[8:11], s55 offen', tag='init')
            k('s_nop 1')
        hook_loading()
        def hook_loading2():
            k('s_waitcnt vmcnt(36)')
            k('s_barrier')
            n = len(k.vm)
            ready_add(58, 59, sync=False)
            k.vm = k.vm[:n]
        k.hook_loading = hook_loading2
        nready = 256
        S_RDY = 63
        S_FKV = 62
        def fl_load(B, A, tag=None):
            k('s_mov_b64 exec, 15')
            k('buffer_load_dword %s, %s, %s, %s offen sc1' % (v(B), v(A), s(C.S_WS, 4), s(S_FKV)), tag=tag)
            k('s_mov_b64 exec, -1')
        def wait_kv(first, B=C.X3, A=C.L16):
            if not full: return
            L = k.newlabel('L_kv')
            def chk():
                k('v_cmp_ge_u32 vcc, %s, %s' % (s(C.S_T0), v(B)))
                k('s_and_b32 %s, vcc_lo, 15' % s(C.S_T1))
            k('s_add_u32 %s, %s, %d' % (s(C.S_T0), s(C.S_STEP), 0 if first else 1))
            chk()
            k('s_cbranch_scc1 %s_slow' % L)
            k.label(L + '_ret')
            if not first: fl_load(B, A)
            def slow():
                k.label(L + '_slow')
                k('s_mov_b32 %s, %d' % (s(C.S_SPIN), C.SPIN_MAX))
                k.label(L + '_p')
                fl_load(B, A)
                k('s_sub_u32 %s, %s, 1' % (s(C.S_SPIN), s(C.S_SPIN)))
                k('s_cbranch_scc1 L_fail')
                k('s_waitcnt vmcnt(0)')
                chk()
                k('s_cbranch_scc0 %s_ret' % L)
                k('s_sleep 2')
                k('s_branch %s_p' % L)
            k.deferred.append(slow)
        k.deferred = []
        def h4():
            n = len(k.vm)
            ready_add(58, 59, sync=False)
            k.vm = k.vm[:n]
        def h7():
            k('v_mov_b32 v58, %d' % D_READY)
            k('buffer_load_dword v58, v58, %s, 0 offen sc1' % s(C.S_DBG, 4), tag='rdy')
        def h12():
            L = k.newlabel('L_rdy')
            k.wait_vm('rdy')
            k('v_cmp_gt_u32 vcc, %d, v58' % nready)
            k('s_cbranch_vccnz %s' % L)
            k.label(L + '_ret')
            def slow():
                k.label(L)
                k('s_mov_b32 %s, %d' % (s(C.S_SPIN), C.SPIN_MAX))
                k.label(L + '_p')
                k('v_mov_b32 v58, %d' % D_READY)
                k('buffer_load_dword v58, v58, %s, 0 offen sc1' % s(C.S_DBG, 4))
                k('s_sub_u32 %s, %s, 1' % (s(C.S_SPIN), s(C.S_SPIN)))
                k('s_cbranch_scc1 L_fail')
                k('s_waitcnt vmcnt(0)')
                k('v_cmp_gt_u32 vcc, %d, v58' % nready)
                k('s_cbranch_vccnz %s_p' % L)
                k('s_branch %s_ret' % L)
            k.deferred.append(slow)
            k('s_lshl_b32 %s, %s, 2' % (s(S_FKV), s(C.S_H)))
            k('s_add_u32 %s, %s, %s' % (s(S_FKV), s(S_FKV), s(C.S_W)))
            k('s_lshl_b32 %s, %s, 7' % (s(S_FKV), s(S_FKV)))
            k('s_add_u32 %s, %s, 0x%x' % (s(S_FKV), s(S_FKV), F_KV))
            k('v_lshlrev_b32 v54, 4, v0')
            fl_load(55, 54, 'fkv')
        def h13():
            k.wait_vm('fkv')
            wait_kv(True, 55, 54)
        k.load_hooks = {8: h7, 18: h12, 28: h13}
        k.hook_prefetch = lambda: wait_kv(False)
        C.chain(k, prof=opt.get('prof'), dump=opt.get('dump'), opt=opt)
        if opt.get('prof'):
            T = C.S_TS
            k.raw('  s_memtime %s' % s(T + 26, 2))
            k.raw('  s_waitcnt lgkmcnt(0)')
            k('s_sub_u32 %s, %s, %s' % (s(T + 21), s(T + 26), s(T + 24)))
            k('s_mov_b32 %s, %s' % (s(T + 20), s(T + 22)))
            k('s_sub_u32 %s, %s, s100' % (s(T + 19), s(T + 28)))
            k('s_sub_u32 %s, s98, s100' % s(T + 18))
            k('s_sub_u32 %s, %s, s100' % (s(T + 22), s(T + 24)))
            for i in range(8): k('v_mov_b32 %s, %s' % (v(i), s(T + 16 + i)))
            k('s_lshl_b32 s55, s40, 2')
            k('s_add_u32 s55, s55, s41')
            k('s_lshl_b32 s55, s55, 5')
            k('s_add_u32 s55, s55, 0x%x' % (DBG + 0x100000))
            k('v_mov_b32 v8, 0')
            k('buffer_store_dwordx4 v[0:3], v8, s[8:11], s55 offen')
            k('buffer_store_dwordx4 v[4:7], v8, s[8:11], s55 offen offset:16')
        k('s_branch L_end')
        for f in k.deferred: f()
    else:
        k('s_branch L_end')
    k.label('L_worker')
    k.hist = []
    def stampw(i):
        if opt.get('prof'):
            k('s_memtime s[4:5]')
            k('s_waitcnt lgkmcnt(0)')
            k('s_sub_u32 s4, s4, s100')
            k('v_mov_b32 v7, s4')
            k('s_lshl_b32 s55, s50, 5')
            k('s_add_u32 s55, s55, s62')
            k('s_lshl_b32 s55, s55, 2')
            k('s_add_u32 s55, s55, s41')
            k('s_lshl_b32 s55, s55, 5')
            k('s_add_u32 s55, s55, 0x%x' % (DBG + 0x110000 + 4 * i))
            k('v_mov_b32 v6, 0')
            k('buffer_store_dword v7, v6, s[8:11], s55 offen')
    k('s_mov_b32 s62, %s' % s(TK))
    k('s_sub_u32 s55, %s, 1' % s(GRP))
    k('s_lshl_b32 s55, s55, 5')
    k('s_add_u32 s55, s55, %s' % s(TK))
    k('s_mul_i32 %s, s55, 9363' % s(C.S_H))
    k('s_lshr_b32 %s, %s, 16' % (s(C.S_H), s(C.S_H)))
    k('s_mul_i32 s56, %s, 7' % s(C.S_H))
    k('s_sub_u32 %s, s55, s56' % s(W.S_R))
    k('s_cmp_eq_u32 %s, 0' % s(W.S_R))
    k('s_cselect_b32 %s, 10, 9' % s(W.S_NSEG))
    W.setup_common(k)
    def winit():
        if full:
            k('s_lshl_b32 s55, s40, 2\ns_add_u32 s55, s55, s41\ns_lshl_b32 s55, s55, 3\ns_add_u32 s55, s55, s42\ns_lshl_b32 s55, s55, 4\ns_add_u32 s55, s55, 0x%x' % F_KV)
            W.set_flag(k, 55, '0')
            k('s_lshl_b32 s55, s40, 3\ns_add_u32 s55, s55, s42\ns_lshl_b32 s55, s55, 2\ns_add_u32 s55, s55, 0x%x' % F_D3)
            W.set_flag(k, 55, '0')
        if 'pb' in roles:
            k('s_lshl_b32 s55, s50, 20\ns_lshl_b32 s56, s51, 14\ns_add_u32 s55, s55, s56\ns_lshl_b32 s56, s41, 12\ns_add_u32 s55, s55, s56\ns_add_u32 s55, s55, 0x%x' % PB)
            for sl in range(2):
                for i in range(4): k('buffer_store_dwordx4 v[8:11], v1, s[8:11], s55 offen offset:%d' % (1024 * i))
                k('s_add_u32 s55, s55, 0x80000')
        if full:
            k('s_sub_u32 s55, s50, 1\ns_lshl_b32 s55, s55, 5\ns_add_u32 s55, s55, s51\ns_lshl_b32 s55, s55, 2\ns_add_u32 s55, s55, s41\ns_and_b32 s55, s55, 511\ns_lshl_b32 s55, s55, 10\ns_add_u32 s55, s55, 0x%x' % MEMX)
            k('buffer_store_dwordx4 v[8:11], v1, s[8:11], s55 offen sc1')
    stampw(0)
    k.stampw = stampw
    if 'pj' in roles:
        winit()
        def after_issue():
            k('s_waitcnt vmcnt(32)')
            k('s_barrier')
            n = len(k.vm)
            ready_add(sync=False)
            k.vm = k.vm[:n]
        W.proj(k, after_issue)
    else:
        winit(); ready_add()
    stampw(1)
    if full or 'pb' in roles:
        k('s_mov_b32 s55, %d' % D_READY)
        W.poll_flags(k, 55, 1, '%d' % (256 if 'chain' in roles else 224) if False else 's56', 'rdy', srdn=C.S_DBG) if False else None
        k('s_mov_b32 s56, %d' % (256 if 'chain' in roles else 224))
        W.poll_flags(k, 55, 1, 's56', 'rdy', srdn=C.S_DBG)
    pre = post = None
    if 'pb' in roles: pre, post, final = W.pb_loader(k)
    if 'ba' in roles: W.battn(k, waitflags=full, pre=pre, post=post)
    elif 'pb' in roles:
        for a_, b_ in zip(pre, post):
            a_(); k('s_waitcnt vmcnt(0)'); b_()
    stampw(3)
    if 'pb' in roles:
        final()
        stampw(2)
        k('s_mov_b32 %s, %s' % (s(C.S_H), s(TK)))
        W.phaseB(k, waitflags=full, opt=opt)
    stampw(4)
    if opt.get('prof'):
        k('s_memrealtime s[4:5]')
        k('s_waitcnt lgkmcnt(0)')
        k('v_mov_b32 v7, s4')
        k('buffer_store_dword v7, v6, s[8:11], s55 offen offset:4')
        k('v_mov_b32 v7, s6')
        k('buffer_store_dword v7, v6, s[8:11], s55 offen offset:8')
    k('s_branch L_end')
    k.label('L_fail')
    k('s_mov_b64 exec, 1')
    k('v_mov_b32 v1, 128')
    k('v_mov_b32 v2, 1')
    k('buffer_atomic_add v2, v1, s[32:35], 0 offen sc1')
    k.label('L_end')
    k('s_endpgm')
    k.raw('''.section .rodata,"a"
.p2align 6
.amdhsa_kernel %s
  .amdhsa_next_free_vgpr 512
  .amdhsa_next_free_sgpr 102
  .amdhsa_accum_offset 256
  .amdhsa_group_segment_fixed_size 0
  .amdhsa_kernarg_size 112
  .amdhsa_user_sgpr_count 2
  .amdhsa_user_sgpr_kernarg_segment_ptr 1
  .amdhsa_system_sgpr_workgroup_id_x 1
.end_amdhsa_kernel''' % NAME)
    gen.points = getattr(k, 'points', [])
    txt = k.text()
    for a_, b_ in opt.get('sub', []):
        import re
        txt = re.sub(a_, b_, txt)
    return txt

if __name__ == '__main__':
    opt = json.loads(sys.argv[2]) if len(sys.argv) > 2 else {}
    open(sys.argv[1], 'w').write(gen(opt))
```

```python
import sys, json
sys.path.insert(0, 'gen')
from fw import *
from layout import *
import chain as C
import worker as W
NAME = 'gated_mix__memory_aug_recurrent_mem_tr__sliding_block__prompt_kernel'
HEAD = open('gated_mix__memory_aug_recurrent_mem_tr__sliding_block__prompt.s.ref').read().split('; Override')[0]
D_READY = 64

def gen(opt={}):
    roles = opt.get('roles', ['chain', 'pj', 'ba', 'pb'])
    full = len(roles) == 4
    k = K()
    k.raw(HEAD.rstrip())
    k.raw('; @launch grid=(256,1,1) block=(256,1,1) lds=163840')
    k.raw('.amdgcn_target "amdgcn-amd-amdhsa--gfx950"\n.text\n.globl %s\n.p2align 8\n.type %s,@function\n%s:' % (NAME, NAME, NAME))
    k('s_load_dwordx16 s[64:79], s[0:1], 0')
    k('s_load_dwordx8 s[80:87], s[0:1], 64')
    k('s_load_dwordx4 s[88:91], s[0:1], 96')
    if opt.get('prof'):
        k('s_memtime s[100:101]')
        k('s_memrealtime s[6:7]')
    k('s_getreg_b32 %s, hwreg(HW_REG_XCC_ID)' % s(W.S_GRP))
    k('s_and_b32 %s, %s, 7' % (s(W.S_GRP), s(W.S_GRP)))
    k('s_waitcnt lgkmcnt(0)')
    C.srd(k, C.S_WS, W.P_WS, WS_BYTES); C.srd(k, C.S_DBG, W.P_DBG, 256)
    k('''
  s_lshl_b32 s55, s50, 2
  v_mov_b32 v1, 0
  v_mov_b32 v2, 1
  v_cmp_eq_u32 vcc, 0, v0
  s_and_saveexec_b64 s[4:5], vcc
  s_cbranch_execz L_t1
  buffer_atomic_add v2, v1, s[32:35], s55 offen sc0 sc1
  s_waitcnt vmcnt(0)
  ds_write_b32 v1, v2
  s_waitcnt lgkmcnt(0)
L_t1:
  s_mov_b64 exec, s[4:5]
  s_barrier
  ds_read_b32 v2, v1
  v_lshrrev_b32 v3, 6, v0
  s_waitcnt lgkmcnt(0)
  v_readfirstlane_b32 s51, v2
  v_readfirstlane_b32 s41, v3
  v_and_b32 v0, 63, v0
  s_barrier
  s_cmp_ge_u32 s51, 32
  s_cbranch_scc1 L_end
''')
    TK, GRP = W.S_TK, W.S_GRP
    if opt.get('prof'):
        k('s_memtime s[98:99]')
        k('s_waitcnt lgkmcnt(0)')
    def ready_add(ra=6, rb=7, sync=True):
        if sync:
            k('s_waitcnt vmcnt(0)')
            k('s_barrier')
        L = k.newlabel('L_ra')
        k('s_cmp_lg_u32 %s, 0' % s(C.S_W))
        k('s_cbranch_scc1 %s' % L)
        k('v_mov_b32 v%d, %d' % (ra, D_READY))
        k('v_mov_b32 v%d, 1' % rb)
        k('s_mov_b64 exec, 1')
        k('buffer_atomic_add v%d, v%d, s[32:35], 0 offen sc1' % (rb, ra))
        k('s_mov_b64 exec, -1')
        k.label(L)
    k('v_lshlrev_b32 v1, 4, v0')
    for i in range(4): k('v_mov_b32 v%d, -1' % (8 + i))
    k('s_cmp_lg_u32 %s, 0' % s(GRP))
    k('s_cbranch_scc1 L_worker')
    if 'chain' in roles:
        k('s_mov_b32 %s, %s' % (s(C.S_H), s(TK)))
        C.srd(k, C.S_WQ, W.P_WQ, 4 << 20); C.srd(k, C.S_WK, W.P_WK, 4 << 20); C.srd(k, C.S_WV, W.P_WV, 4 << 20); C.srd(k, C.S_WO, W.P_WO, 4 << 20)
        C.srd(k, C.S_M0, W.P_MEM0, 8192)
        def hook_loading():
            k('v_lshlrev_b32 v24, 4, v0')
            for i in range(4): k('v_mov_b32 v%d, -1' % (28 + i))
            k('s_lshl_b32 s55, s40, 13')
            k('s_lshl_b32 s56, s41, 11')
            k('s_add_u32 s55, s55, s56')
            k('s_add_u32 s55, s55, 0x%x' % INB)
            for i in range(2):
                k('buffer_store_dwordx4 v[28:31], v24, s[8:11], s55 offen offset:%d' % (1024 * i), tag='init')
            k('s_lshl_b32 s55, s40, 10')
            k('s_add_u32 s55, s55, 0x%x' % H2)
            k('buffer_store_dwordx4 v[28:31], v24, s[8:11], s55 offen', tag='init')
            k('s_nop 1')
        hook_loading()
        def hook_loading2():
            k('s_waitcnt vmcnt(36)')
            k('s_barrier')
            n = len(k.vm)
            ready_add(58, 59, sync=False)
            k.vm = k.vm[:n]
        k.hook_loading = hook_loading2
        nready = 256
        S_RDY = 63
        S_FKV = 62
        def fl_load(B, A, tag=None):
            k('s_mov_b64 exec, 15')
            k('buffer_load_dword %s, %s, %s, %s offen sc1' % (v(B), v(A), s(C.S_WS, 4), s(S_FKV)), tag=tag)
            k('s_mov_b64 exec, -1')
        def wait_kv(first, B=C.X3, A=C.L16):
            if not full: return
            L = k.newlabel('L_kv')
            def chk():
                k('v_cmp_ge_u32 vcc, %s, %s' % (s(C.S_T0), v(B)))
                k('s_and_b32 %s, vcc_lo, 15' % s(C.S_T1))
            k('s_add_u32 %s, %s, %d' % (s(C.S_T0), s(C.S_STEP), 0 if first else 1))
            chk()
            k('s_cbranch_scc1 %s_slow' % L)
            k.label(L + '_ret')
            if not first: fl_load(B, A)
            def slow():
                k.label(L + '_slow')
                k('s_mov_b32 %s, %d' % (s(C.S_SPIN), C.SPIN_MAX))
                k.label(L + '_p')
                fl_load(B, A)
                k('s_sub_u32 %s, %s, 1' % (s(C.S_SPIN), s(C.S_SPIN)))
                k('s_cbranch_scc1 L_fail')
                k('s_waitcnt vmcnt(0)')
                chk()
                k('s_cbranch_scc0 %s_ret' % L)
                k('s_sleep 2')
                k('s_branch %s_p' % L)
            k.deferred.append(slow)
        k.deferred = []
        def h4():
            n = len(k.vm)
            ready_add(58, 59, sync=False)
            k.vm = k.vm[:n]
        def h7():
            k('v_mov_b32 v58, %d' % D_READY)
            k('buffer_load_dword v58, v58, %s, 0 offen sc1' % s(C.S_DBG, 4), tag='rdy')
        def h12():
            L = k.newlabel('L_rdy')
            k.wait_vm('rdy')
            k('v_cmp_gt_u32 vcc, %d, v58' % nready)
            k('s_cbranch_vccnz %s' % L)
            k.label(L + '_ret')
            def slow():
                k.label(L)
                k('s_mov_b32 %s, %d' % (s(C.S_SPIN), C.SPIN_MAX))
                k.label(L + '_p')
                k('v_mov_b32 v58, %d' % D_READY)
                k('buffer_load_dword v58, v58, %s, 0 offen sc1' % s(C.S_DBG, 4))
                k('s_sub_u32 %s, %s, 1' % (s(C.S_SPIN), s(C.S_SPIN)))
                k('s_cbranch_scc1 L_fail')
                k('s_waitcnt vmcnt(0)')
                k('v_cmp_gt_u32 vcc, %d, v58' % nready)
                k('s_cbranch_vccnz %s_p' % L)
                k('s_branch %s_ret' % L)
            k.deferred.append(slow)
            k('s_lshl_b32 %s, %s, 2' % (s(S_FKV), s(C.S_H)))
            k('s_add_u32 %s, %s, %s' % (s(S_FKV), s(S_FKV), s(C.S_W)))
            k('s_lshl_b32 %s, %s, 7' % (s(S_FKV), s(S_FKV)))
            k('s_add_u32 %s, %s, 0x%x' % (s(S_FKV), s(S_FKV), F_KV))
            k('v_lshlrev_b32 v54, 4, v0')
            fl_load(55, 54, 'fkv')
        def h13():
            k.wait_vm('fkv')
            wait_kv(True, 55, 54)
        k.load_hooks = {8: h7, 18: h12, 28: h13}
        k.hook_prefetch = lambda: wait_kv(False)
        C.chain(k, prof=opt.get('prof'), dump=opt.get('dump'), opt=opt)
        if opt.get('prof'):
            T = C.S_TS
            k.raw('  s_memtime %s' % s(T + 26, 2))
            k.raw('  s_waitcnt lgkmcnt(0)')
            k('s_sub_u32 %s, %s, %s' % (s(T + 21), s(T + 26), s(T + 24)))
            k('s_mov_b32 %s, %s' % (s(T + 20), s(T + 22)))
            k('s_sub_u32 %s, %s, s100' % (s(T + 19), s(T + 28)))
            k('s_sub_u32 %s, s98, s100' % s(T + 18))
            k('s_sub_u32 %s, %s, s100' % (s(T + 22), s(T + 24)))
            for i in range(8): k('v_mov_b32 %s, %s' % (v(i), s(T + 16 + i)))
            k('s_lshl_b32 s55, s40, 2')
            k('s_add_u32 s55, s55, s41')
            k('s_lshl_b32 s55, s55, 5')
            k('s_add_u32 s55, s55, 0x%x' % (DBG + 0x100000))
            k('v_mov_b32 v8, 0')
            k('buffer_store_dwordx4 v[0:3], v8, s[8:11], s55 offen')
            k('buffer_store_dwordx4 v[4:7], v8, s[8:11], s55 offen offset:16')
            if opt.get('ddbg'):
                k('s_mov_b64 exec, 1')
                for i, r in enumerate((2, 3, 6, 5)):
                    k('buffer_atomic_umax v%d, v8, s[32:35], 0 offen offset:%d sc1' % (r, 32 + 4 * i))
                k('s_memrealtime s[4:5]')
                k('s_waitcnt lgkmcnt(0)')
                k('s_sub_u32 s4, s4, s6')
                k('v_mov_b32 v9, s4')
                k('buffer_atomic_umax v9, v8, s[32:35], 0 offen offset:48 sc1')
                k('s_mov_b64 exec, -1')
        k('s_branch L_end')
        for f in k.deferred: f()
    else:
        k('s_branch L_end')
    k.label('L_worker')
    k.hist = []
    def stampw(i):
        if opt.get('prof'):
            k('s_memtime s[4:5]')
            k('s_waitcnt lgkmcnt(0)')
            k('s_sub_u32 s4, s4, s100')
            k('v_mov_b32 v7, s4')
            k('s_lshl_b32 s55, s50, 5')
            k('s_add_u32 s55, s55, s62')
            k('s_lshl_b32 s55, s55, 2')
            k('s_add_u32 s55, s55, s41')
            k('s_lshl_b32 s55, s55, 5')
            k('s_add_u32 s55, s55, 0x%x' % (DBG + 0x110000 + 4 * i))
            k('v_mov_b32 v6, 0')
            k('buffer_store_dword v7, v6, s[8:11], s55 offen')
    k('s_mov_b32 s62, %s' % s(TK))
    k('s_sub_u32 s55, %s, 1' % s(GRP))
    k('s_lshl_b32 s55, s55, 5')
    k('s_add_u32 s55, s55, %s' % s(TK))
    k('s_mul_i32 %s, s55, 9363' % s(C.S_H))
    k('s_lshr_b32 %s, %s, 16' % (s(C.S_H), s(C.S_H)))
    k('s_mul_i32 s56, %s, 7' % s(C.S_H))
    k('s_sub_u32 %s, s55, s56' % s(W.S_R))
    k('s_cmp_eq_u32 %s, 0' % s(W.S_R))
    k('s_cselect_b32 %s, 10, 9' % s(W.S_NSEG))
    W.setup_common(k)
    def winit():
        if full:
            k('s_lshl_b32 s55, s40, 2\ns_add_u32 s55, s55, s41\ns_lshl_b32 s55, s55, 3\ns_add_u32 s55, s55, s42\ns_lshl_b32 s55, s55, 4\ns_add_u32 s55, s55, 0x%x' % F_KV)
            W.set_flag(k, 55, '0')
            k('s_lshl_b32 s55, s40, 3\ns_add_u32 s55, s55, s42\ns_lshl_b32 s55, s55, 2\ns_add_u32 s55, s55, 0x%x' % F_D3)
            W.set_flag(k, 55, '0')
        if 'pb' in roles:
            k('s_lshl_b32 s55, s50, 20\ns_lshl_b32 s56, s51, 14\ns_add_u32 s55, s55, s56\ns_lshl_b32 s56, s41, 12\ns_add_u32 s55, s55, s56\ns_add_u32 s55, s55, 0x%x' % PB)
            for sl in range(2):
                for i in range(4): k('buffer_store_dwordx4 v[8:11], v1, s[8:11], s55 offen offset:%d' % (1024 * i))
                k('s_add_u32 s55, s55, 0x80000')
        if full:
            k('s_sub_u32 s55, s50, 1\ns_lshl_b32 s55, s55, 5\ns_add_u32 s55, s55, s51\ns_lshl_b32 s55, s55, 2\ns_add_u32 s55, s55, s41\ns_and_b32 s55, s55, 511\ns_lshl_b32 s55, s55, 10\ns_add_u32 s55, s55, 0x%x' % MEMX)
            k('buffer_store_dwordx4 v[8:11], v1, s[8:11], s55 offen sc1')
    stampw(0)
    k.stampw = stampw
    if 'pj' in roles:
        winit()
        def after_issue():
            k('s_waitcnt vmcnt(32)')
            k('s_barrier')
            n = len(k.vm)
            ready_add(sync=False)
            k.vm = k.vm[:n]
        W.proj(k, after_issue)
    else:
        winit(); ready_add()
    stampw(1)
    if full or 'pb' in roles:
        k('s_mov_b32 s55, %d' % D_READY)
        W.poll_flags(k, 55, 1, '%d' % (256 if 'chain' in roles else 224) if False else 's56', 'rdy', srdn=C.S_DBG) if False else None
        k('s_mov_b32 s56, %d' % (256 if 'chain' in roles else 224))
        W.poll_flags(k, 55, 1, 's56', 'rdy', srdn=C.S_DBG)
    pre = post = None
    if 'pb' in roles: pre, post, final = W.pb_loader(k)
    if 'ba' in roles: W.battn(k, waitflags=full, pre=pre, post=post)
    elif 'pb' in roles:
        for a_, b_ in zip(pre, post):
            a_(); k('s_waitcnt vmcnt(0)'); b_()
    stampw(3)
    if 'pb' in roles:
        final()
        stampw(2)
        k('s_mov_b32 %s, %s' % (s(C.S_H), s(TK)))
        W.phaseB(k, waitflags=full, opt=opt)
    stampw(4)
    if opt.get('prof'):
        k('s_memrealtime s[4:5]')
        k('s_waitcnt lgkmcnt(0)')
        k('v_mov_b32 v7, s4')
        k('buffer_store_dword v7, v6, s[8:11], s55 offen offset:4')
        k('v_mov_b32 v7, s6')
        k('buffer_store_dword v7, v6, s[8:11], s55 offen offset:8')
        if opt.get('ddbg'):
            k('s_mov_b64 exec, 1')
            k('v_mov_b32 v9, s4')
            k('buffer_atomic_umax v9, v6, s[32:35], 0 offen offset:52 sc1')
            k('s_not_b32 s6, s6')
            k('v_mov_b32 v9, s6')
            k('buffer_atomic_umax v9, v6, s[32:35], 0 offen offset:56 sc1')
            k('s_mov_b64 exec, -1')
    k('s_branch L_end')
    k.label('L_fail')
    k('s_mov_b64 exec, 1')
    k('v_mov_b32 v1, 128')
    k('v_mov_b32 v2, 1')
    k('buffer_atomic_add v2, v1, s[32:35], 0 offen sc1')
    k.label('L_end')
    k('s_endpgm')
    k.raw('''.section .rodata,"a"
.p2align 6
.amdhsa_kernel %s
  .amdhsa_next_free_vgpr 512
  .amdhsa_next_free_sgpr 102
  .amdhsa_accum_offset 256
  .amdhsa_group_segment_fixed_size 0
  .amdhsa_kernarg_size 112
  .amdhsa_user_sgpr_count 2
  .amdhsa_user_sgpr_kernarg_segment_ptr 1
  .amdhsa_system_sgpr_workgroup_id_x 1
.end_amdhsa_kernel''' % NAME)
    gen.points = getattr(k, 'points', [])
    txt = k.text()
    for a_, b_ in opt.get('sub', []):
        import re
        txt = re.sub(a_, b_, txt)
    return txt

if __name__ == '__main__':
    opt = json.loads(sys.argv[2]) if len(sys.argv) > 2 else {}
    open(sys.argv[1], 'w').write(gen(opt))
```

```python
from fw import *
from layout import *
import math, struct

S_WS, S_WQ, S_WK, S_WV, S_WO, S_M0, S_DBG = 8, 12, 16, 20, 24, 28, 32
S_H, S_W, S_STEP, S_TAG = 40, 41, 42, 43
S_KV, S_KVM, S_INW0, S_INW1, S_INR0, S_DEF, S_H2W, S_H2R, S_H2RST = 44, 45, 46, 47, 48, 49, 51, 52, 53
S_SPIN, S_T0, S_T1, S_T2 = 54, 55, 56, 57
S_C = 58
S_TS = 64

MEMF, ACCQK, ACCV, KVC, KVN, T1 = 0, 32, 48, 56, 72, 88
SELR, SELT = 96, 102
X0, X1 = 100, 101
IDX, L16, L16W, MEMR, SMW, SMR, OW, OR_, ST1, ST2, STRM, IDXR = 104, 105, 106, 107, 110, 111, 112, 113, 114, 115, 116, 117
X2, X3 = 118, 119
SBUF = 120
VSTAT = 144
L_MEM, L_SX, L_SM, L_OX, L_WS = 0, 8192, 8192 + 2 * 2048 + 1024, 8192 + 1024, 16384
WSTRIDE = 36864
OOR = 0x30000
SPIN_MAX = 1 << 20

def f2u(x):
    return struct.unpack('<I', struct.pack('<f', x))[0]

def srd(k, base, ptr_lo, nbytes):
    k('s_mov_b32 %s, %s' % (s(base), s(ptr_lo)))
    k('s_and_b32 %s, %s, 0xffff' % (s(base + 1), s(ptr_lo + 1)))
    k('s_mov_b32 %s, 0x%x' % (s(base + 2), nbytes))
    k('s_mov_b32 %s, 0x00020000' % s(base + 3))

ALLOPS = [(m, kap, t) for m in 'qkv' for kap in range(8) for t in range(2)] + [('o', a_, kap) for a_ in range(4) for kap in range(4)]
STREAM = [('q', 0, 0), ('k', 0, 0), ('q', 2, 1), ('q', 6, 0), ('k', 2, 1), ('k', 6, 0), ('q', 1, 1), ('q', 3, 1), ('q', 7, 0),
          ('k', 3, 1), ('k', 7, 0), ('v', 2, 0), ('v', 3, 0), ('v', 4, 0), ('o', 2, 0), ('o', 1, 2), ('o', 2, 1), ('o', 3, 3)]
NS = len(STREAM)

def op_locs():
    loc = {}
    na = nv = 0
    for o in ALLOPS:
        if o in STREAM:
            loc[o] = ('s', STREAM.index(o))
        elif na < 32:
            loc[o] = ('a', 8 * na); na += 1
        else:
            loc[o] = ('v', VSTAT + 8 * nv); nv += 1
    assert na == 32 and nv == 14 and NS == 18
    return loc

def dst(loc, r, n):
    return (a if loc[0] == 'a' else v)(loc[1] + r, n)

JS = 10240
def consts(k, LANE, H2L=0):
    k.c('===== chain: constants =====')
    tA, tB, tC, tD = 8, 9, 10, 11
    u4, u5, u6, u7 = 12, 13, 14, 15
    k('s_lshl_b32 %s, %s, 11' % (s(S_T0), s(S_W)))
    k('v_add_u32 %s, %s, %s' % (v(L16W), s(S_T0), v(L16)))
    for p in (1, 2, 3):
        k('v_xor_b32 %s, 0x%x, %s' % (v(MEMR + p - 1), p << 11, v(L16W)))
    k('v_and_b32 %s, 15, %s' % (v(tA), v(LANE)))
    k('v_lshrrev_b32 %s, 4, %s' % (v(tB), v(LANE)))
    k('v_and_b32 %s, 7, %s' % (v(tC), v(LANE)))
    k('v_cmp_gt_u32 vcc, 8, %s' % v(tA))
    k('v_mov_b32 %s, 0xeeee' % v(IDX))
    k('v_mov_b32 %s, 0x4444' % v(tD))
    k('v_cndmask_b32 %s, %s, %s, vcc' % (v(IDX), v(IDX), v(tD)))
    k('v_mov_b32 %s, 0x%x' % (v(tD), OOR))
    k('v_lshl_add_u32 %s, %s, 3, %s' % (v(OR_), v(tB), v(tC)))
    k('v_lshlrev_b32 %s, 4, %s' % (v(OR_), v(OR_)))
    k('s_and_b32 %s, %s, 1' % (s(S_T0), s(S_W)))
    k('s_lshl_b32 %s, %s, 9' % (s(S_T0), s(S_T0)))
    k('s_lshr_b32 %s, %s, 1' % (s(S_T1), s(S_W)))
    k('s_lshl_b32 %s, %s, 11' % (s(S_T1), s(S_T1)))
    k('s_add_u32 %s, %s, %s' % (s(S_T0), s(S_T0), s(S_T1)))
    k('v_add_u32 %s, %s, %s' % (v(OW), s(S_T0), v(OR_)))
    for p in (1, 2, 3):
        k('v_xor_b32 %s, 0x%x, %s' % (v([X0, X1, X2][p - 1]), ((p & 1) << 9) | ((p >> 1) << 11), v(OW)))
    k('v_cndmask_b32 %s, %s, %s, vcc' % (v(OW), v(tD), v(OW)))
    k('v_and_b32 %s, 0xff, %s' % (v(SMR), v(OR_)))
    k('v_and_b32 %s, 8, %s' % (v(u4), v(tA)))
    k('v_add_u32 %s, %s, %s' % (v(SMR), v(u4), v(SMR)))
    k('v_add_u32 %s, %d, %s' % (v(SMR), L_SM, v(SMR)))
    k('s_lshl_b32 %s, %s, 8' % (s(S_T0), s(S_W)))
    k('v_add_u32 %s, %s, %s' % (v(SMW), s(S_T0), v(SMR)))
    k('v_cmp_gt_u32 vcc, 32, %s' % v(LANE))
    k('v_cndmask_b32 %s, %s, %s, vcc' % (v(SMW), v(tD), v(SMW)))
    k('v_lshrrev_b32 %s, 3, %s' % (v(u4), v(LANE)))
    k('v_mul_u32_u24 %s, %d, %s' % (v(ST1), JS, v(u4)))
    k('v_lshl_add_u32 %s, %s, 3, %s' % (v(ST1), v(tC), v(ST1)))
    k('v_lshlrev_b32 %s, 2, %s' % (v(ST2), v(tA)))
    k('v_lshl_add_u32 %s, %s, 4, %s' % (v(ST2), v(tB), v(ST2)))
    k('s_lshr_b32 %s, %s, 3' % (s(S_T0), s(S_H)))
    k('s_lshl_b32 %s, %s, 11' % (s(S_T0), s(S_T0)))
    for (src, bit, sh) in ((S_W, 1, 10), (S_W, 0, 9), (S_H, 2, 8), (S_H, 0, 7), (S_H, 1, 6)):
        k('s_bfe_u32 %s, %s, 0x%x' % (s(S_T1), s(src), (1 << 16) | bit))
        k('s_lshl_b32 %s, %s, %d' % (s(S_T1), s(S_T1), sh))
        k('s_add_u32 %s, %s, %s' % (s(S_T0), s(S_T0), s(S_T1)))
    k('v_add_u32 %s, %s, %s' % (v(ST2), s(S_T0), v(ST2)))
    k('v_cmp_gt_u32 vcc, 4, %s' % v(tA))
    k('v_bfrev_b32 %s, 1' % v(u4))
    k('v_cndmask_b32 %s, %s, %s, vcc' % (v(ST2), v(u4), v(ST2)))
    k('v_and_b32 %s, 1, %s' % (v(tD), v(tB)))
    k('v_lshlrev_b32 %s, 2, %s' % (v(tD), v(tD)))
    k('v_sub_u32 %s, %s, %s' % (v(tD), v(tC), v(tD)))
    k('v_mov_b32 %s, 0x3f80' % v(u4))
    k('v_mov_b32 %s, 0x3f800000' % v(u5))
    for r in range(2):
        k('v_mov_b32 %s, 0' % v(SELT + r))
        k('v_cmp_eq_u32 vcc, %d, %s' % (2 * r, v(tD)))
        k('v_cndmask_b32 %s, %s, %s, vcc' % (v(SELT + r), v(SELT + r), v(u4)))
        k('v_cmp_eq_u32 vcc, %d, %s' % (2 * r + 1, v(tD)))
        k('v_cndmask_b32 %s, %s, %s, vcc' % (v(SELT + r), v(SELT + r), v(u5)))
    k('v_and_b32 %s, 2, %s' % (v(u6), v(tA)))
    k('v_cmp_eq_u32 vcc, 0, %s' % v(u6))
    k('v_mov_b32 %s, 0' % v(u7))
    k('v_cndmask_b32 %s, %s, %s, vcc' % (v(u6), v(u7), v(u4)))
    k('v_and_b32 %s, 1, %s' % (v(u5), v(tA)))
    k('v_cmp_eq_u32 vcc, 0, %s' % v(u5))
    k('v_cndmask_b32 %s, %s, %s, vcc' % (v(SELR), v(u7), v(u6)))
    k('v_cndmask_b32 %s, %s, %s, vcc' % (v(SELR + 1), v(u6), v(u7)))
    k('v_mov_b32 %s, %s' % (v(SELR + 2), v(SELR)))
    k('v_mov_b32 %s, %s' % (v(SELR + 3), v(SELR + 1)))
    k('v_lshrrev_b32 %s, 2, %s' % (v(u6), v(tA)))
    k('v_xor_b32 %s, 1, %s' % (v(u7), v(u6)))
    k('v_lshl_add_u32 %s, %s, 2, %s' % (v(u6), v(u7), v(u6)))
    k('v_mul_u32_u24 %s, 0x1111, %s' % (v(IDXR), v(u6)))

def loader(k, LANE, LOC, after_issue=None, hooks={}):
    k.c('===== chain: weight load =====')
    GQ, GO, TRQ, TRP, TRO, LW, u, u2 = 1, 2, 3, 4, 5, 6, 7, 8
    RAW = 8
    k('s_mul_i32 %s, %s, %d' % (s(S_T2), s(S_W), WSTRIDE))
    k('s_add_u32 %s, %s, %d' % (s(S_T2), s(S_T2), L_WS))
    k('v_lshrrev_b32 %s, 3, %s' % (v(u), v(LANE)))
    k('v_and_b32 %s, 7, %s' % (v(u2), v(LANE)))
    k('v_lshlrev_b32 %s, 4, %s' % (v(u2), v(u2)))
    k('v_lshl_add_u32 %s, %s, 13, %s' % (v(GQ), v(u), v(u2)))
    k('v_lshl_add_u32 %s, %s, 10, %s' % (v(GO), v(u), v(u2)))
    k('s_lshl_b32 %s, %s, 8' % (s(S_T0), s(S_H)))
    k('s_lshr_b32 %s, %s, 1' % (s(S_T1), s(S_W)))
    k('s_lshl_b32 %s, %s, 7' % (s(S_T1), s(S_T1)))
    k('s_add_u32 %s, %s, %s' % (s(S_T0), s(S_T0), s(S_T1)))
    k('v_add_u32 %s, %s, %s' % (v(GQ), s(S_T0), v(GQ)))
    k('s_lshl_b32 %s, %s, 17' % (s(S_T0), s(S_H)))
    k('s_lshl_b32 %s, %s, 8' % (s(S_T1), s(S_W)))
    k('s_add_u32 %s, %s, %s' % (s(S_T0), s(S_T0), s(S_T1)))
    k('v_add_u32 %s, %s, %s' % (v(GO), s(S_T0), v(GO)))
    its = [('o', 0, 0), ('o', 1, 0), ('o', 0, 1), ('o', 1, 1), ('v', 5), ('v', 1), ('v', 4), ('k', 5), ('q', 5), ('v', 0), ('k', 4), ('q', 4), ('k', 1), ('k', 0), ('q', 1), ('q', 0)]
    its = [(it, hf) for it in its for hf in range(2)]
    NI, NSL = len(its), 9
    def issue(li):
        it, hf = its[li]; slot = li % NSL
        for i in range(4):
            if it[0] == 'o':
                srdn, ga = S_WO, GO
                if i == 0:
                    k('s_xor_b32 %s, %s, %d' % (s(S_T0), s(S_W), 2 * it[2] + hf))
                    k('s_lshl_b32 %s, %s, 15' % (s(S_T0), s(S_T0)))
                    k('s_add_u32 %s, %s, %d' % (s(S_T0), s(S_T0), it[1] * 128))
                else:
                    k('s_add_u32 %s, %s, %d' % (s(S_T0), s(S_T0), 8 * 1024))
            else:
                srdn, ga = {'q': S_WQ, 'k': S_WK, 'v': S_WV}[it[0]], GQ
                if i == 0:
                    k('s_lshl_b32 %s, %s, 2' % (s(S_T0), s(S_W)))
                    k('s_xor_b32 %s, %s, %d' % (s(S_T0), s(S_T0), 2 * it[1] + hf))
                    k('s_lshl_b32 %s, %s, 18' % (s(S_T0), s(S_T0)))
                else:
                    k('s_add_u32 %s, %s, %d' % (s(S_T0), s(S_T0), 8 * 8192))
            k('s_add_u32 m0, %s, %d' % (s(S_T2), slot * 4096 + i * 1024))
            k('buffer_load_dwordx4 %s, %s, %s offen lds' % (v(ga), s(srdn, 4), s(S_T0)), tag=('wl', li))
    for li in range(NSL): issue(li)
    k('v_bfe_u32 %s, %s, 5, 1' % (v(u), v(LANE)))
    k('v_lshlrev_b32 %s, 4, %s' % (v(TRQ), v(u)))
    k('v_lshlrev_b32 %s, 2, %s' % (v(TRO), v(u)))
    k('v_bfe_u32 %s, %s, 4, 1' % (v(u), v(LANE)))
    k('v_lshl_add_u32 %s, %s, 2, %s' % (v(TRQ), v(u), v(TRQ)))
    k('v_lshl_add_u32 %s, %s, 4, %s' % (v(TRO), v(u), v(TRO)))
    k('v_bfe_u32 %s, %s, 3, 1' % (v(u), v(LANE)))
    k('v_lshl_add_u32 %s, %s, 3, %s' % (v(TRQ), v(u), v(TRQ)))
    k('v_bfe_u32 %s, %s, 2, 1' % (v(u), v(LANE)))
    k('v_add_u32 %s, %s, %s' % (v(TRQ), v(u), v(TRQ)))
    k('v_bfe_u32 %s, %s, 2, 2' % (v(u), v(LANE)))
    k('v_add_u32 %s, %s, %s' % (v(TRO), v(TRO), v(u)))
    k('v_and_b32 %s, 3, %s' % (v(u), v(LANE)))
    for R in (TRQ, TRO):
        k('v_lshlrev_b32 %s, 7, %s' % (v(R), v(R)))
        k('v_lshl_add_u32 %s, %s, 3, %s' % (v(R), v(u), v(R)))
    k('v_add_u32 %s, %s, %s' % (v(TRO), s(S_T2), v(TRO)))
    k('s_and_b32 %s, %s, 1' % (s(S_T0), s(S_W)))
    k('s_lshl_b32 %s, %s, 6' % (s(S_T0), s(S_T0)))
    k('v_add_u32 %s, %s, %s' % (v(TRQ), s(S_T0), v(TRQ)))
    k('s_xor_b32 %s, %s, 1' % (s(S_T0), s(S_W)))
    k('s_mul_i32 %s, %s, %d' % (s(S_T0), s(S_T0), WSTRIDE))
    k('s_add_u32 %s, %s, %d' % (s(S_T0), s(S_T0), L_WS))
    k('v_add_u32 %s, %s, %s' % (v(TRP), s(S_T0), v(TRQ)))
    k('v_add_u32 %s, %s, %s' % (v(TRQ), s(S_T2), v(TRQ)))
    k('v_lshlrev_b32 %s, 4, %s' % (v(LW), v(LANE)))
    k('v_add_u32 %s, %s, %s' % (v(LW), s(S_T2), v(LW)))
    if after_issue: after_issue()
    freepark = [24, 40, 88, 96, 104, 112, 120, 128, 136, 72, 80, 8, 16]
    parked = []; building = {}
    homes = {}
    freehome = []
    def target(op):
        loc = LOC[op]
        if loc[0] != 's': return loc
        if op not in building: building[op] = freepark.pop(0)
        return ('v', building[op])
    def done(op):
        if op in building: parked.append((op, building.pop(op)))
    def dump():
        any_ = False
        while parked and freehome:
            op, p = parked.pop(0); h_ = freehome.pop(0); homes[op] = h_
            k('ds_write_b128 %s, %s offset:%d' % (v(LW), v(p, 4), h_))
            k('ds_write_b128 %s, %s offset:%d' % (v(LW), v(p + 4, 4), h_ + 1024))
            freepark.append(p); any_ = True
        if any_: k('s_waitcnt lgkmcnt(0)')
    def release(li):
        if li + NSL < NI: issue(li + NSL)
        else: freehome.extend([(li % NSL) * 4096, (li % NSL) * 4096 + 2048])
    for li in range(NI):
        it, hf = its[li]; slot = li % NSL
        k.wait_vm(('wl', li))
        if it[0] != 'o':
            k('s_barrier')
            if its[li - 1][0][0] != 'o': release(li - 1)
            dump()
            for (kap, ar) in ((it[1], TRQ), (it[1] + 2, TRP)):
                for t in range(2):
                    loc = target((it[0], kap, t))
                    for Q in range(2):
                        k('ds_read_b64_tr_b16 %s, %s offset:%d' % (dst(loc, 4 * hf + 2 * Q, 2), v(ar), slot * 4096 + 2 * Q * 128 + 32 * t))
                    if hf: done((it[0], kap, t))
            k('s_waitcnt lgkmcnt(0)')
        else:
            for aa in range(2):
                for H in range(2):
                    for tau in range(2):
                        k('ds_read_b64_tr_b16 %s, %s offset:%d' % (v(RAW + 8 * aa + 4 * H + 2 * tau, 2), v(TRO), slot * 4096 + 8 * H * 128 + 64 * aa + 32 * tau))
            k('s_waitcnt lgkmcnt(0)')
            release(li)
            for aa in range(2):
                op = ('o', 2 * it[1] + aa, 2 * it[2] + hf)
                loc = target(op)
                mv = 'v_accvgpr_write_b32' if loc[0] == 'a' else 'v_mov_b32'
                for H in range(2):
                    for tau in range(2):
                        src = RAW + 8 * aa + 4 * H + 2 * tau
                        k('%s %s, %s' % (mv, dst(loc, 4 * H + tau, 1), v(src)))
                        k('%s %s, %s' % (mv, dst(loc, 4 * H + tau + 2, 1), v(src + 1)))
                done(op)
        if li in hooks: hooks[li]()
    k('s_barrier')
    release(NI - 1)
    dump()
    assert not parked and len(homes) == NS
    return homes

def chain(k, nsteps=64, prof=False, dump=False, opt={}):
    LOC = op_locs()
    LANE = 0
    def early():
        if hasattr(k, 'hook_loading'): k.hook_loading()
        k('v_and_b32 %s, 7, %s' % (v(56), v(LANE)))
        k('v_lshlrev_b32 %s, 10, %s' % (v(57), v(56)))
        k('v_lshrrev_b32 %s, 4, %s' % (v(56), v(LANE)))
        k('v_lshl_add_u32 %s, %s, 5, %s' % (v(57), v(56), v(57)))
        k('v_bfe_u32 %s, %s, 3, 1' % (v(56), v(LANE)))
        k('v_lshl_add_u32 %s, %s, 4, %s' % (v(57), v(56), v(57)))
        k('s_lshl_b32 %s, %s, 8' % (s(S_T0), s(S_W)))
        for k2 in range(2):
            k('buffer_load_dwordx4 %s, %s, %s, %s offen offset:%d' % (v(32 + 4 * k2, 4), v(57), s(S_M0, 4), s(S_T0), k2 * 128))
        k('s_lshl_b32 %s, %s, 14' % (s(S_KV), s(S_H)))
        k('s_lshl_b32 %s, %s, 12' % (s(S_T0), s(S_W)))
        k('s_add_u32 %s, %s, %s' % (s(S_KV), s(S_KV), s(S_T0)))
        k('s_mov_b32 %s, 0' % s(S_STEP))
    def kvload():
        k('v_lshlrev_b32 %s, 4, %s' % (v(7), v(LANE)))
        for i in range(4):
            k('buffer_load_dwordx4 %s, %s, %s, %s offen offset:%d sc1' % (v(KVC + 4 * i, 4), v(7), s(S_WS, 4), s(S_KV), 1024 * i))
    hooks = dict(getattr(k, 'load_hooks', {}))
    h13 = hooks.get(28)
    hooks[28] = lambda: ((h13() if h13 else None), kvload())
    homes = loader(k, LANE, LOC, early, hooks)
    if prof: k.raw('  s_memtime %s' % s(S_TS + 28, 2))
    if opt.get('loadonly'): k('s_branch L_chain_exit')
    k('v_mov_b32 %s, %s' % (v(STRM), v(6)))
    k('v_lshlrev_b32 %s, 4, %s' % (v(L16), v(LANE)))
    k('v_mov_b32 %s, %s' % (v(X3), v(55)))
    k.c('===== chain: initial state =====')
    consts(k, LANE)
    k('s_mul_i32 %s, %s, %d' % (s(S_INR0), s(S_H), JS))
    k('s_lshl_b32 %s, %s, 11' % (s(S_T0), s(S_W)))
    k('s_add_u32 %s, %s, %s' % (s(S_INR0), s(S_INR0), s(S_T0)))
    k('s_add_u32 %s, %s, 0x%x' % (s(S_INR0), s(S_INR0), INB))
    k('s_mov_b32 %s, 0x%x' % (s(S_DEF), SCRATCH))
    k('s_mov_b32 %s, 0x%x' % (s(S_KVM), MEMX + 8192))
    k('s_mov_b32 %s, 0' % s(S_TAG))
    for i in range(8):
        k('v_min_u32 %s, -2, %s' % (v(MEMF + i), v(32 + i)))
    k('ds_write_b128 %s, %s offset:%d' % (v(L16W), v(MEMF, 4), L_MEM))
    k('ds_write_b128 %s, %s offset:%d' % (v(L16W), v(MEMF + 4, 4), L_MEM + 1024))
    k('s_mov_b32 %s, 0x%x' % (s(S_T0), H2 + 0x6000))
    k('buffer_store_dwordx4 %s, %s, %s, %s offen offset:1024' % (v(MEMF + 4, 4), v(L16W), s(S_WS, 4), s(S_T0)))
    k('s_waitcnt vmcnt(0)')
    k('s_cmp_eq_u32 %s, 0' % s(S_H))
    k('s_cselect_b32 %s, 0x%x, %s' % (s(S_T0), MEMX, s(S_DEF)))
    k('buffer_store_dwordx4 %s, %s, %s, %s offen sc1' % (v(MEMF, 4), v(L16W), s(S_WS, 4), s(S_T0)))
    k('buffer_store_dwordx4 %s, %s, %s, %s offen offset:1024 sc1' % (v(MEMF + 4, 4), v(L16W), s(S_WS, 4), s(S_T0)))
    k('s_add_u32 %s, %s, 0x80000' % (s(S_KV), s(S_KV)))
    k('s_mul_i32 %s, %s, %d' % (s(S_INW0), s(S_W), 8 * JS))
    k('s_lshl_b32 %s, %s, 6' % (s(S_T0), s(S_H)))
    k('s_add_u32 %s, %s, %s' % (s(S_INW0), s(S_INW0), s(S_T0)))
    k('s_add_u32 %s, %s, 0x%x' % (s(S_INW0), s(S_INW0), INB))
    k('s_add_u32 %s, %s, 0x1000' % (s(S_INW1), s(S_INW0)))
    k('s_lshl_b32 %s, %s, 11' % (s(S_T0), s(S_W)))
    k('s_mov_b32 %s, 0x%x' % (s(S_H2W), H2))
    k('s_add_u32 m0, %s, %d' % (s(S_T0), L_MEM))
    k('s_add_u32 %s, %s, 0x%x' % (s(S_H2R), s(S_T0), H2 + 0x6000))
    k('s_mov_b32 %s, 0x%x' % (s(S_H2RST), H2 + 0x4000))
    cc = (128 ** -0.5) * math.log2(math.e)
    k('s_mov_b32 %s, 0x%x' % (s(S_C), f2u(cc)))
    k('s_mov_b32 %s, 0x%x' % (s(S_C + 1), f2u(cc)))
    pend = [(i, hf) for i in range(3) for hf in range(2)]
    def RF(n=1):
        for _ in range(n):
            if pend:
                i, hf = pend.pop(0)
                k('ds_read_b128 %s, %s offset:%d' % (v(SBUF + 8 * (i % 3) + 4 * hf, 4), v(STRM), homes[STREAM[i]] + 1024 * hf), tag=('st', i))
    RF(6)
    for i in range(0, 24, 2): k('v_mov_b64 %s, 0' % v(ACCQK + i, 2))
    if prof:
        for i in range(8): k('s_mov_b32 %s, 0' % s(S_TS + 16 + i))
        k.raw('  s_memtime %s' % s(S_TS + 24, 2))
    k('s_waitcnt lgkmcnt(0)')

    used = []
    def smf(op, acc, afrag):
        loc = LOC[op]
        if loc[0] == 's':
            assert loc[1] == len(used), (op, loc, used)
            used.append(loc[1])
            assert all(p[0] != loc[1] for p in pend), ('refill not issued', op)
            k.wait_lg(('st', loc[1]))
            opnd = v(SBUF + 8 * (loc[1] % 3), 8)
        else:
            opnd = dst(loc, 0, 8)
        k('v_smfmac_f32_16x16x64_bf16 %s, %s, %s, %s' % (v(acc, 4), v(afrag, 4), opnd, v(IDX)))
        if loc[0] == 's':
            pend.append(((loc[1] + 3) % NS, 0)); pend.append(((loc[1] + 3) % NS, 1))
    ACC = {'q': ACCQK, 'k': ACCQK + 8, 'v': ACCV}
    def S(m, kap, j):
        if kap >= 2: k.wait_lg(('mf', kap))
        smf((m, kap, j), ACC[m] + 4 * j, MEMF + 4 * kap)
    k.points = []
    def pt(name):
        k.points.append(name)
        if opt.get('pt') == name:
            k.raw('  s_memtime %s' % s(S_TS + 2, 2))
    def cvt(d, x, y): k('v_cvt_pk_bf16_f32 %s, %s, %s' % (v(d), v(x), v(y)))
    def mf16(d, A, B, C=None): k('v_mfma_f32_16x16x16_bf16 %s, %s, %s, %s' % (v(d, 4), v(A, 2), v(B, 2), '0' if C is None else v(C, 4)))
    def mf32(d, A, B, C=None): k('v_mfma_f32_16x16x32_bf16 %s, %s, %s, %s' % (v(d, 4), v(A, 4), v(B, 4), '0' if C is None else v(C, 4)))
    def pkadd(d, x, y): k('v_pk_add_f32 %s, %s, %s' % (v(d, 2), v(x, 2), v(y, 2)))
    def pkfma_c(d, x, m): k('v_pk_fma_f32 %s, %s, %s, %s op_sel_hi:[1,1,0] neg_lo:[0,0,1] neg_hi:[0,0,1]' % (v(d, 2), v(x, 2), s(S_C, 2), v(m, 2)))
    def pkmul_b(d, x, m): k('v_pk_mul_f32 %s, %s, %s op_sel_hi:[1,0]' % (v(d, 2), v(x, 2), v(m, 2)))
    def add(d, x, y): k('v_add_f32 %s, %s, %s' % (v(d), v(x), v(y)))
    def mov64(d, x): k('v_mov_b64 %s, %s' % (v(d, 2), x))
    def BAR(tag): k.wait_lg(tag); k('s_barrier')
    def nops(n):
        while n > 0:
            k('s_nop %d' % (min(n, 16) - 1)); n -= 16
    ROR8 = 'row_ror:8 row_mask:0xf bank_mask:0xf'
    FAIL = 'L_fail'; DONE = 'L_chain_done'; BODY = 'L_chain_body'; BODY0 = 'L_chain_body0'
    RETRY2 = 'L_retry2'; RETRY1 = 'L_retry1'; RETRY3 = 'L_retry3'; RET3 = 'L_ret3'
    OFIRST = opt.get('o1', 0)
    D1 = opt.get('d1', 2); D2 = opt.get('d2', 2)
    HA, HB = T1 + 7, OR_
    ORR = [X0, X1, X2]
    H1R = MEMF + 8
    VM = KVC + 4; KA = T1 + 4
    def ldE(): k('buffer_load_dwordx4 %s, %s, %s offen sc1 lds' % (v(L16), s(S_WS, 4), s(S_H2R)), tag='pe')
    def ldO(): k('buffer_load_dwordx4 %s, %s, %s offen offset:1024 sc1 lds' % (v(L16), s(S_WS, 4), s(S_H2R)), tag='po')
    def own(k2): k('ds_read_b128 %s, %s offset:%d' % (v(MEMF + 4 * k2, 4), v(L16W), L_MEM + 1024 * k2), tag=('own', k2))
    def chk4(R):
        k('v_max3_u32 %s, %s, %s, %s' % (v(HA), v(R), v(R + 1), v(R + 2)))
        k('v_max_u32 %s, %s, %s' % (v(HA), v(HA), v(R + 3)))
        k('v_cmp_eq_u32 vcc, -1, %s' % v(HA))
    def R(kap):
        p = kap >> 1; k2 = kap & 1
        k('ds_read_b128 %s, %s offset:%d' % (v(MEMF + 4 * kap, 4), v(MEMR + p - 1), L_MEM + 1024 * k2), tag=('mf', kap))
    def pf(i): k('buffer_load_dwordx4 %s, %s, %s, %s offen offset:%d sc1' % (v(KVN + 4 * i, 4), v(L16), s(S_WS, 4), s(S_KV), 1024 * i))
    def stk(so): k('buffer_store_dwordx4 %s, %s, %s, %s offen sc1' % (v(KA, 4), v(L16), s(S_WS, 4), s(so)))
    def stv(so): k('buffer_store_dwordx4 %s, %s, %s, %s offen offset:1024 sc1' % (v(VM, 4), v(L16), s(S_WS, 4), s(so)))
    def sel(d, x): k('v_mov_b32_dpp %s, %s quad_perm:[0,1,2,3] row_mask:0xf bank_mask:0xc' % (v(d), v(x)))

    k('s_branch %s' % BODY0)
    k.raw('.p2align 6')
    for i in range(opt.get('shift', 0)): k.raw('  s_nop 0')
    k.label(RETRY2)
    k('s_mov_b64 exec, vcc')
    ldE()
    if prof: k('s_add_u32 %s, %s, 1' % (s(S_TS + 23), s(S_TS + 23)))
    k('s_sub_u32 %s, %s, 1' % (s(S_SPIN), s(S_SPIN)))
    k('s_cbranch_scc1 %s' % FAIL)
    own(0)
    k.label('L_ew')
    k('s_waitcnt lgkmcnt(1)')
    chk4(MEMF)
    k('s_cbranch_vccnz %s' % RETRY2)
    k('s_mov_b64 exec, -1')
    k.label(BODY)
    if opt.get('trace') == 2: k.raw('  s_memtime %s' % s(S_TS + 8, 2))
    k.label(BODY0)
    if opt.get('o2', 1) and not opt.get('nohop'): ldO()
    abl = opt.get('abl', [])
    if abl:
        k0 = k._one
        def filt(t, tag):
            if 'vmem' in abl and t.startswith('buffer_'): return
            if 'bar' in abl and t.startswith('s_barrier'): return
            if 'stream' in abl and t.startswith('ds_read_b128') and (', %s ' % v(STRM)) in t: return
            if 'dsw' in abl and t.startswith('ds_write'): return
            if 'dsr' in abl and t.startswith('ds_read'): return
            return k0(t, tag)
        k._one = filt
    k.lg = ['x']; k.vm = []
    if opt.get('pt'): k.raw('  s_memtime %s' % s(S_TS, 2))
    k('s_barrier')
    pt('b1')
    if opt.get('trace') == 2: k.raw('  s_memtime %s' % s(S_TS + 14, 2))
    R(2)
    S('q', 0, 0); R(4); S('q', 0, 1); R(6); S('k', 0, 0); RF(); S('k', 0, 1); RF()
    pt('own0')
    S('q', 2, 0); RF(); S('q', 2, 1); RF(); S('q', 4, 0); RF(); S('q', 4, 1); RF()
    ev = [('q', 6, 0), ('q', 6, 1), ('k', 2, 0), ('k', 2, 1), ('k', 4, 0), ('k', 4, 1), ('k', 6, 0), ('k', 6, 1)]
    no = opt.get('oddat', 4)
    for o_ in ev[:no]: S(*o_); RF()
    k('s_waitcnt vmcnt(%d)' % (opt.get('o2', 1) if OFIRST else 0)); own(1)
    for o_ in ev[no:no + 4]: S(*o_); RF()
    rest = ev[no + 4:]
    assert not rest
    k.wait_lg(('own', 1))
    k('v_max3_u32 %s, %s, %s, %s' % (v(HA), v(MEMF + 4), v(MEMF + 5), v(MEMF + 6)))
    S('v', 0, 0)
    k('v_max_u32 %s, %s, %s' % (v(HA), v(HA), v(MEMF + 7)))
    k('v_cmp_eq_u32 vcc, -1, %s' % v(HA))
    S('v', 0, 1)
    if not opt.get('nohop'): k('s_cbranch_vccnz %s' % RETRY3)
    k.label(RET3)
    k.vm = []
    pt('odd')
    if opt.get('trace'):
        k.raw('  s_memtime %s' % s(S_TS + 4, 2))
        k.raw('  s_memrealtime %s' % s(S_TS + 6, 2))
        k.raw('  s_waitcnt lgkmcnt(0)')
        k('v_mov_b32 %s, %s' % (v(T1), s(S_TS + 4)))
        k('v_mov_b32 %s, %s' % (v(T1 + 1), s(S_TS + 6)))
        k('s_lshl_b32 %s, %s, 2' % (s(S_T0), s(S_H)))
        k('s_add_u32 %s, %s, %s' % (s(S_T0), s(S_T0), s(S_W)))
        k('s_lshl_b32 %s, %s, 6' % (s(S_T0), s(S_T0)))
        k('s_add_u32 %s, %s, %s' % (s(S_T0), s(S_T0), s(S_STEP)))
        k('s_lshl_b32 %s, %s, 3' % (s(S_T0), s(S_T0)))
        k('s_add_u32 %s, %s, 0x%x' % (s(S_T0), s(S_T0), DBG + 0x120000))
        k('v_mov_b32 %s, 0' % v(T1 + 2))
        k('s_mov_b64 exec, 1')
        k('buffer_store_dwordx2 %s, %s, %s, %s offen' % (v(T1, 2), v(T1 + 2), s(S_WS, 4), s(S_T0)))
        if opt.get('trace') == 2:
            for i in range(4): k('v_mov_b32 %s, %s' % (v(T1 + 4 + i), s(S_TS + 8 + 2 * i)))
            k('s_sub_u32 %s, %s, 0x%x' % (s(S_T0), s(S_T0), DBG + 0x120000))
            k('s_lshl_b32 %s, %s, 1' % (s(S_T0), s(S_T0)))
            k('s_add_u32 %s, %s, 0x%x' % (s(S_T0), s(S_T0), DBG + 0x140000))
            k('buffer_store_dwordx4 %s, %s, %s, %s offen' % (v(T1 + 4, 4), v(T1 + 2), s(S_WS, 4), s(S_T0)))
        k('s_mov_b64 exec, -1')
    if dump:
        k('s_lshl_b32 %s, %s, 13' % (s(S_T0), s(S_STEP)))
        k('s_lshl_b32 %s, %s, 11' % (s(S_T1), s(S_W)))
        k('s_add_u32 %s, %s, %s' % (s(S_T0), s(S_T0), s(S_T1)))
        k('s_add_u32 %s, %s, 0x%x' % (s(S_T0), s(S_T0), DBG))
        k('buffer_store_dwordx4 %s, %s, %s, %s offen' % (v(MEMF, 4), v(L16), s(S_WS, 4), s(S_T0)))
        k('buffer_store_dwordx4 %s, %s, %s, %s offen offset:1024' % (v(MEMF + 4, 4), v(L16), s(S_WS, 4), s(S_T0)))
    k('s_barrier'); R(3)
    pt('b1b')
    S('q', 1, 0); R(5)
    if hasattr(k, 'hook_prefetch'): k.hook_prefetch(0)
    S('q', 1, 1); R(7)
    if hasattr(k, 'hook_prefetch'): k.hook_prefetch(1)
    S('k', 1, 0); pf(0)
    S('k', 1, 1); RF()
    S('q', 3, 0); RF()
    S('q', 3, 1); RF()
    S('q', 5, 0); pf(1)
    S('q', 5, 1); RF()
    S('q', 7, 0); RF()
    S('q', 7, 1); RF()
    pt('Q')
    MXX, TA, PM = MEMF + 0, MEMF + 1, MEMF + 2
    AK = ACCQK + 8
    S('k', 3, 0); pf(2)
    S('k', 3, 1); RF(); cvt(T1, ACCQK, ACCQK + 1)
    S('k', 5, 0); RF(); cvt(T1 + 1, ACCQK + 2, ACCQK + 3)
    S('k', 5, 1); cvt(T1 + 2, ACCQK + 4, ACCQK + 5)
    S('k', 7, 0); pf(3); cvt(T1 + 3, ACCQK + 6, ACCQK + 7)
    S('k', 7, 1); RF()
    pt('K')
    vq = [(2, 0), (1, 0), (3, 0), (1, 1), (3, 1), (4, 0), (5, 0), (5, 1), (7, 0), (7, 1), (2, 1), (4, 1), (6, 0), (6, 1)]
    def V(n=1):
        for _ in range(n):
            kap, j = vq.pop(0)
            S('v', kap, j)
    mf16(ACCQK, T1, SELT); RF()
    k('s_add_u32 %s, %s, 0x80000' % (s(S_KV), s(S_KV)))
    mf16(ACCQK + 4, T1 + 2, SELT)
    k('buffer_store_dword %s, %s, %s, %s offen sc1' % (v(HB), v(ST2), s(S_WS, 4), s(S_DEF)))
    cvt(T1 + 4, AK, AK + 1); cvt(T1 + 5, AK + 2, AK + 3)
    V(1); RF()
    cvt(T1 + 6, AK + 4, AK + 5); cvt(T1 + 7, AK + 6, AK + 7)
    mf16(AK, T1 + 4, SELT); RF()
    cvt(T1, ACCQK, ACCQK + 1); cvt(T1 + 1, ACCQK + 2, ACCQK + 3)
    mf16(AK + 4, T1 + 6, SELT)
    if hasattr(k, 'hook_prefetch'): k.hook_prefetch(2)
    cvt(T1 + 2, ACCQK + 4, ACCQK + 5); cvt(T1 + 3, ACCQK + 6, ACCQK + 7)
    V(1)
    mf32(ACCQK, KVC, T1)
    cvt(T1 + 4, AK, AK + 1); cvt(T1 + 5, AK + 2, AK + 3)
    mf32(ACCQK + 4, KVC + 4, T1)
    cvt(T1 + 6, AK + 4, AK + 5); cvt(T1 + 7, AK + 6, AK + 7)
    V(1); RF()
    mf32(AK, T1 + 4, T1); RF()
    pt('sm')
    for j in range(4): sel(ACCQK + j, ACCQK + 4 + j)
    V(1)
    k('ds_write_b128 %s, %s offset:%d' % (v(L16W), v(ACCQK, 4), L_SX), tag='xw')
    sel(AK, AK + 2); sel(AK + 1, AK + 3)
    V(1)
    k('ds_write_b64 %s, %s' % (v(SMW), v(AK, 2)), tag='sw')
    pt('swr')
    WACC = MEMF + 16; OF = MEMF + 4
    V(1); RF(); V(1); RF(); V(opt.get('vb2', 2))
    BAR('sw')
    pt('b2')
    XSR = [KVC, KVC + 4, ACCQK + 4]
    def XR(p): k('ds_read_b128 %s, %s offset:%d' % (v(XSR[p], 4), v(MEMR + p), L_SX), tag=('xs', p))
    MS = AK; XS = KVC
    XR(0); V(1); XR(1); V(1); XR(2); V(1)
    k('ds_read2_b64 %s, %s offset0:0 offset1:32' % (v(MS, 4), v(SMR)), tag='ms0')
    V(1)
    k('ds_read2_b64 %s, %s offset0:64 offset1:96' % (v(MS + 4, 4), v(SMR)), tag='ms1')
    V(len(vq))
    k.wait_lg(('xs', 0))
    pkadd(XS, XS, ACCQK); pkadd(XS + 2, XS + 2, ACCQK + 2)
    k.wait_lg(('xs', 2))
    pkadd(ACCQK + 4, ACCQK + 4, XS + 4); pkadd(ACCQK + 6, ACCQK + 6, XS + 6)
    pkadd(XS, XS, ACCQK + 4); pkadd(XS + 2, XS + 2, ACCQK + 6)
    k.wait_lg('ms1')
    pkadd(MS, MS, MS + 2); pkadd(MS + 4, MS + 4, MS + 6)
    k('v_max3_f32 %s, %s, %s, %s' % (v(MXX), v(XS), v(XS + 1), v(XS + 2)))
    pkadd(MS, MS, MS + 4)
    pt('sums')
    k('v_max_f32 %s, %s, %s' % (v(MXX), v(MXX), v(XS + 3)))
    k('v_max3_f32 %s, %s, %s, %s' % (v(MXX), v(MXX), v(MS), v(MS + 1)))
    cvt(VM, ACCV, ACCV + 1); cvt(VM + 1, ACCV + 2, ACCV + 3)
    k('v_max_f32_dpp %s, %s, %s %s' % (v(MXX), v(MXX), v(MXX), ROR8))
    k('v_mov_b32 %s, %s' % (v(TA), v(MXX)))
    cvt(VM + 2, ACCV + 4, ACCV + 5); cvt(VM + 3, ACCV + 6, ACCV + 7)
    k('v_permlane16_swap_b32 %s, %s' % (v(MXX), v(TA)))
    k('v_max_f32 %s, %s, %s' % (v(MXX), v(MXX), v(TA)))
    k('v_mov_b32 %s, %s' % (v(TA), v(MXX)))
    mov64(WACC, '0'); mov64(WACC + 2, '0')
    k('v_permlane32_swap_b32 %s, %s' % (v(MXX), v(TA)))
    k('v_max_f32 %s, %s, %s' % (v(MXX), v(MXX), v(TA)))
    k('v_mul_f32 %s, %s, %s' % (v(MXX), s(S_C), v(MXX)))
    pt('max')
    def ex(d): k('v_exp_f32 %s, %s' % (v(d), v(d)))
    pkfma_c(XS, XS, MXX); pkfma_c(XS + 2, XS + 2, MXX); pkfma_c(MS, MS, MXX)
    for j in range(4): ex(XS + j)
    PX = T1
    ex(MS)
    cvt(PX, XS, XS + 1); cvt(PX + 1, XS + 2, XS + 3)
    ex(MS + 1)
    for j in range(2): k('v_mov_b32_dpp %s, %s %s' % (v(PX + 2 + j), v(PX + j), ROR8))
    cvt(PM, MS, MS + 1)
    pkadd(XS, XS, XS + 2)
    O0, O1 = ACCQK, ACCQK + 4
    LS = MXX
    mf32(O0, KVC + 8, PX)
    k('v_mov_b32_dpp %s, %s %s' % (v(PM + 1), v(PM), ROR8))
    add(MS, MS, MS + 1)
    mf32(O1, KVC + 12, PX)
    add(XS, XS, XS + 1)
    k('v_fma_f32 %s, %s, 0.5, %s' % (v(LS), v(MS), v(XS)))
    mf16(O0, VM, PM, O0)
    k('v_add_f32_dpp %s, %s, %s %s' % (v(LS), v(LS), v(LS), ROR8))
    k('v_mov_b32 %s, %s' % (v(TA), v(LS)))
    mf16(O1, VM + 2, PM, O1)
    pt('pv')
    k('v_permlane16_swap_b32 %s, %s' % (v(LS), v(TA)))
    add(LS, LS, TA)
    k('v_mov_b32 %s, %s' % (v(TA), v(LS)))
    mov64(WACC + 4, '0'); mov64(WACC + 6, '0')
    k('v_permlane32_swap_b32 %s, %s' % (v(LS), v(TA)))
    add(LS, LS, TA)
    k('v_rcp_f32 %s, %s' % (v(LS), v(LS)))
    mov64(WACC + 8, '0')
    pkmul_b(O0, O0, LS); pkmul_b(O0 + 2, O0 + 2, LS); pkmul_b(O1, O1, LS); pkmul_b(O1 + 2, O1 + 2, LS)
    for i in range(4): cvt(T1 + i, O0 + 2 * i, O0 + 2 * i + 1)
    k('ds_write_b128 %s, %s offset:%d' % (v(OW), v(T1, 4), L_OX), tag='ow')
    pt('owr')
    for j in range(4): k('v_mov_b32_dpp %s, %s row_ror:8 row_mask:0xf bank_mask:0xc' % (v(T1 + j), v(T1 + j)))
    for i in range(10, 16, 2): mov64(WACC + i, '0')
    for i in range(0, 8, 2): mov64(ACCV + i, '0')
    def WO(a_, kap):
        if kap: k.wait_lg(('of', kap))
        smf(('o', a_, kap), WACC + 4 * a_, T1 if kap == 0 else OF + 4 * (kap - 1))
    def OFR(kap): k('ds_read_b128 %s, %s offset:%d' % (v(OF + 4 * (kap - 1), 4), v(ORR[kap - 1]), L_OX), tag=('of', kap))
    k('s_mov_b32 %s, %s' % (s(S_DEF), s(S_KVM)))
    k('s_add_u32 %s, %s, 0x2000' % (s(S_KVM), s(S_KVM)))
    WO(0, 0); BAR('ow'); OFR(1)
    pt('b3')
    WO(1, 0); OFR(2)
    WO(2, 0); OFR(3)
    WO(3, 0); RF()
    PK = ACCQK
    def tag(r): k('v_bfi_b32 %s, 1, %s, %s' % (v(r), s(S_TAG), v(r)))
    def pack(a_):
        cvt(PK + 2 * a_, WACC + 4 * a_, WACC + 4 * a_ + 1); cvt(PK + 2 * a_ + 1, WACC + 4 * a_ + 2, WACC + 4 * a_ + 3); tag(PK + 2 * a_)
    def sto(a_):
        k('buffer_store_dwordx2 %s, %s, %s, %s offen offset:%d' % (v(PK + 2 * a_, 2), v(ST1), s(S_WS, 4), s(S_INW0 if a_ < 2 else S_INW1), 2048 * (a_ & 1)))
    RA = MEMF + 16
    WO(0, 1); RF(); mov64(ACCQK + 8, '0'); WO(0, 2); mov64(ACCQK + 10, '0'); WO(0, 3); mov64(ACCQK + 12, '0')
    WO(1, 1); mov64(ACCQK + 14, '0'); WO(1, 2); RF(); pack(0); WO(1, 3); sto(0)
    pt('st0')
    WO(2, 1); RF(); mov64(RA, '0'); WO(2, 2); RF(); pack(1); WO(2, 3); sto(1)
    pt('st1')
    WO(3, 1); RF(); mov64(RA + 2, '0'); WO(3, 2); pack(2); WO(3, 3); sto(2)
    RF(2)
    k('s_mov_b32 %s, %d' % (s(S_SPIN), SPIN_MAX))
    k('s_add_u32 %s, %s, 0x2000' % (s(S_H2R), s(S_H2R)))
    k('s_and_b32 %s, %s, 0x%x' % (s(S_H2R), s(S_H2R), 0xffff7fff))
    k('s_add_u32 %s, %s, 1' % (s(S_STEP), s(S_STEP)))
    mov64(PK, '0'); mov64(PK + 2, '0')
    pack(3); sto(3)
    pt('st2')
    if opt.get('trace') == 2: k.raw('  s_memtime %s' % s(S_TS + 10, 2))
    assert len(used) == NS and not pend
    k.c('--- H1')
    HSET = [MEMF + 8, MEMF + 20, MEMF + 0]
    def round1(i):
        k('buffer_load_dwordx4 %s, %s, %s, %s offen sc1' % (v(HSET[i], 4), v(L16), s(S_WS, 4), s(S_INR0)))
        k('buffer_load_dwordx4 %s, %s, %s, %s offen offset:1024 sc1' % (v(HSET[i] + 4, 4), v(L16), s(S_WS, 4), s(S_INR0)))
    def h1chk(i):
        Rg = HSET[i]
        k('s_waitcnt vmcnt(%d)' % (2 * (D1 - 1)))
        k('v_smfmac_f32_16x16x64_bf16 %s, %s, %s, %s' % (v(RA, 4), v(SELR, 4), v(Rg, 8), v(IDXR)))
        k('v_bitop3_b32 %s, %s, %s, %s bitop3:0x7e' % (v(HA), v(Rg), v(Rg + 2), s(S_TAG)))
        k('v_bitop3_b32 %s, %s, %s, %s bitop3:0x7e' % (v(HA - 1), v(Rg + 4), v(Rg + 6), s(S_TAG)))
        k('v_bitop3_b32 %s, %s, %s, 1 bitop3:0xa8' % (v(HA), v(HA), v(HA - 1)))
        k('v_cmp_ne_u32 vcc, 0, %s' % v(HA))
        k('v_mov_b32 %s, -1' % v(HA))
    def ptacc():
        if opt.get('pt'):
            k.raw('  s_waitcnt lgkmcnt(0)')
            k('s_sub_u32 %s, %s, %s' % (s(S_T0), s(S_TS + 2), s(S_TS)))
            k('s_add_u32 %s, %s, %s' % (s(S_TS + 16), s(S_TS + 16), s(S_T0)))
    if opt.get('nohop'):
        if abl: k._one = k0
        ptacc()
        mov64(PK + 4, '0'); mov64(PK + 6, '0')
        k('s_waitcnt vmcnt(0) lgkmcnt(0)')
        k('s_barrier')
        k('s_cmp_eq_u32 %s, %d' % (s(S_STEP), nsteps - 1))
        k('s_cbranch_scc1 %s' % DONE)
        k('s_branch %s' % BODY0)
    k('s_cmp_lt_u32 %s, 2' % s(S_W))
    k('s_cbranch_scc1 L_early')
    nops(opt.get('late1', 40))
    k.label('L_early')
    mov64(PK + 4, '0'); mov64(PK + 6, '0')
    nops(opt.get('pre1', 32))
    for i in range(D1):
        round1(i)
        if i < D1 - 1: nops(opt.get('gap1', 20))
    k('s_cmp_eq_u32 %s, %d' % (s(S_STEP), nsteps - 1))
    k.label('L_h1w')
    h1chk(0)
    k('s_cbranch_vccnz L_h1r0')
    k.label('L_h1ok')
    mov64(KVC, v(KVN, 2))
    for rr in ('row_ror:4', 'row_ror:8'):
        for j in range(2):
            k('v_add_f32_dpp %s, %s, %s %s row_mask:0xf bank_mask:0xf' % (v(RA + j), v(RA + j), v(RA + j), rr))
    cvt(HB, RA, RA + 1)
    k('v_min_u32 %s, -2, %s' % (v(HB), v(HB)))
    k('s_cbranch_scc1 %s' % DONE)
    k('buffer_store_dword %s, %s, %s, %s offen' % (v(HB), v(ST2), s(S_WS, 4), s(S_H2W)))
    k('buffer_store_dword %s, %s, %s, %s offen' % (v(HA), v(ST2), s(S_WS, 4), s(S_H2RST)))
    pt('p1ok')
    if opt.get('trace') == 2: k.raw('  s_memtime %s' % s(S_TS + 12, 2))
    for i in range(2, 16, 2): mov64(KVC + i, v(KVN + i, 2))
    ptacc()
    k('s_xor_b32 %s, %s, 1' % (s(S_TAG), s(S_TAG)))
    for r in (S_H2W, S_H2RST):
        k('s_add_u32 %s, %s, 0x2000' % (s(r), s(r)))
        k('s_and_b32 %s, %s, 0x%x' % (s(r), s(r), 0xffff7fff))
    k('s_mov_b32 %s, %d' % (s(S_SPIN), SPIN_MAX))
    k('s_waitcnt lgkmcnt(0)')
    k('s_cmp_ge_u32 %s, 2' % s(S_W))
    k('s_cbranch_scc1 L_late2')
    nops(opt.get('early2', 40))
    k.label('L_late2')
    nops(opt.get('pre2', 0))
    NE = opt.get('ne', 2)
    for i in range(NE):
        ldE()
        if i < NE - 1: nops(opt.get('gapa', 24))
        elif OFIRST: nops(opt.get('gap2', 24))
    if OFIRST: ldO()
    k('s_waitcnt vmcnt(%d)' % (NE - 1 + OFIRST))
    own(0)
    nops(opt.get('rd2', 4))
    own(0)
    k('s_branch L_ew')
    for i in range(D1):
        k.label('L_h1r%d' % i)
        k('s_mov_b64 exec, vcc')
        round1(i)
        k('s_mov_b64 exec, -1')
        if prof: k('s_add_u32 %s, %s, 0x10000' % (s(S_TS + 23), s(S_TS + 23)))
        k('s_sub_u32 %s, %s, 1' % (s(S_SPIN), s(S_SPIN)))
        k('s_cbranch_scc1 %s' % FAIL)
        k('s_cmp_eq_u32 %s, %d' % (s(S_STEP), nsteps - 1))
        mov64(RA, '0'); mov64(RA + 2, '0')
        if i == D1 - 1:
            k('s_branch L_h1w')
        else:
            h1chk(i + 1)
            k('s_cbranch_vccz L_h1ok')
    k.label(RETRY3)
    k('s_mov_b64 exec, vcc')
    ldO()
    if prof: k('s_add_u32 %s, %s, 0x100' % (s(S_TS + 22), s(S_TS + 22)))
    k('s_sub_u32 %s, %s, 1' % (s(S_SPIN), s(S_SPIN)))
    k('s_cbranch_scc1 %s' % FAIL)
    k('s_waitcnt vmcnt(1)')
    own(1)
    k('s_waitcnt lgkmcnt(0)')
    chk4(MEMF + 4)
    k('s_cbranch_vccnz %s' % RETRY3)
    k('s_mov_b64 exec, -1')
    k('s_branch %s' % RET3)
    k.label(DONE)
    k('buffer_store_dword %s, %s, %s, %s offen sc1' % (v(HB), v(ST2), s(S_WS, 4), s(S_DEF)))
    k.label('L_chain_exit')
```

```python
from fw import *
from layout import *
from chain import srd, f2u, S_WS, S_WQ, S_WK, S_WV, S_WO, S_DBG, S_H, S_W, S_SPIN, S_T0, S_T1, S_T2, SPIN_MAX
import math

S_X, S_AUX, S_OUT = 28, 36, 12
S_R, S_NSEG, S_I, S_XS, S_OO, S_XB, S_FL, S_SEG, S_GRP, S_TK = 42, 43, 44, 45, 46, 47, 48, 49, 50, 51
S_T3, S_T4 = 52, 53
S_M = 92
P_X, P_MEM0, P_WQ, P_WK, P_WV, P_WO, P_SEG, P_BX, P_WB, P_WOB, P_GW, P_OUT, P_DBG, P_WS = [64 + 2 * i for i in range(14)]
FAIL = 'L_fail'

LANE, L16, GA, TR, XG, XR, VZ, VT = 0, 1, 2, 3, 4, 5, 6, 7
L_STG = 65536; STG_STRIDE = 24576

def cvt(k, d, x, y): k('v_cvt_pk_bf16_f32 %s, %s, %s' % (v(d), v(x), v(y)))
def R(loc, r, n): return (a if loc[0] == 'a' else v)(loc[1] + r, n)

def poll_flags(k, soff_reg, nlanes, minval, name, stride=4, srdn=S_WS, sleep=8, skip7=False):
    L = k.newlabel('L_poll_' + name)
    k('v_mul_u32_u24 %s, %d, %s' % (v(VZ), stride, v(LANE)))
    k('s_mov_b32 %s, %d' % (s(S_SPIN), SPIN_MAX))
    if skip7:
        k('s_mov_b32 exec_lo, 0x7f7f7f7f')
        k('s_mov_b32 exec_hi, 0x7f7f7f7f')
    else:
        k('s_mov_b32 exec_lo, 0x%x' % ((1 << nlanes) - 1))
        k('s_mov_b32 exec_hi, 0')
    k.label(L)
    k('buffer_load_dword %s, %s, %s, %s offen sc1' % (v(VT), v(VZ), s(srdn, 4), s(soff_reg)))
    k('s_sub_u32 %s, %s, 1' % (s(S_SPIN), s(S_SPIN)))
    k('s_cbranch_scc1 %s' % FAIL)
    k('s_waitcnt vmcnt(0)')
    k('v_cmp_gt_u32 vcc, %s, %s' % (minval, v(VT)))
    k('s_cbranch_vccz %s_ok' % L)
    k('s_sleep %d' % sleep)
    k('s_branch %s' % L)
    k.label(L + '_ok')
    k('s_mov_b64 exec, -1')

def set_flag(k, soff_reg, val, flags='sc1'):
    k('v_mov_b32 %s, %s' % (v(VT), val))
    k('v_mov_b32 %s, 0' % v(VZ))
    k('s_mov_b64 exec, 1')
    k('buffer_store_dword %s, %s, %s, %s offen %s' % (v(VT), v(VZ), s(S_WS, 4), s(soff_reg), flags))
    k('s_mov_b64 exec, -1')

def load_blocks(k, blocks, nslot):
    n = len(blocks)
    for i in range(min(nslot, n)):
        blocks[i]['issue']((i % nslot) * 4096, ('wl', i))
    for i in range(n):
        k.wait_vm(('wl', i))
        blocks[i]['read']((i % nslot) * 4096)
        k('s_waitcnt lgkmcnt(0)')
        if i + nslot < n:
            blocks[i + nslot]['issue']((i % nslot) * 4096, ('wl', i + nslot))

def setup_common(k):
    k('v_lshlrev_b32 %s, 4, %s' % (v(L16), v(LANE)))
    k('s_mul_i32 %s, %s, %d' % (s(S_T2), s(S_W), STG_STRIDE))
    k('s_add_u32 %s, %s, %d' % (s(S_T2), s(S_T2), L_STG))

def qkv_addr(k):
    k('v_lshrrev_b32 %s, 2, %s' % (v(VZ), v(LANE)))
    k('v_and_b32 %s, 3, %s' % (v(VT), v(LANE)))
    k('v_lshlrev_b32 %s, 4, %s' % (v(GA), v(VT)))
    k('v_lshl_add_u32 %s, %s, 13, %s' % (v(GA), v(VZ), v(GA)))
    k('s_lshl_b32 %s, %s, 8' % (s(S_T0), s(S_H)))
    k('s_lshl_b32 %s, %s, 6' % (s(S_T1), s(S_W)))
    k('s_add_u32 %s, %s, %s' % (s(S_T0), s(S_T0), s(S_T1)))
    k('v_add_u32 %s, %s, %s' % (v(GA), s(S_T0), v(GA)))
    k('v_lshrrev_b32 %s, 4, %s' % (v(TR), v(LANE)))
    k('v_lshlrev_b32 %s, 3, %s' % (v(TR), v(TR)))
    k('v_and_b32 %s, 3, %s' % (v(VZ), v(VZ)))
    k('v_add_u32 %s, %s, %s' % (v(TR), v(TR), v(VZ)))
    k('v_lshlrev_b32 %s, 6, %s' % (v(TR), v(TR)))
    k('v_lshl_add_u32 %s, %s, 3, %s' % (v(TR), v(VT), v(TR)))
    k('v_add_u32 %s, %s, %s' % (v(TR), s(S_T2), v(TR)))

def qkv_block(k, srdn, b, dest):
    def issue(off, tag):
        for i in range(4):
            k('s_mov_b32 %s, %d' % (s(S_T0), (64 * b + 16 * i) * 8192))
            k('s_add_u32 m0, %s, %d' % (s(S_T2), off + i * 1024))
            k('buffer_load_dwordx4 %s, %s, %s offen lds' % (v(GA), s(srdn, 4), s(S_T0)), tag=tag)
    def read(off):
        for k2 in range(2):
            for t in range(2):
                for hh in range(2):
                    k('ds_read_b64_tr_b16 %s, %s offset:%d' % (R(dest(t, 2 * b + k2), 2 * hh, 2), v(TR), off + (32 * k2 + 4 * hh) * 64 + 32 * t))
    return dict(issue=issue, read=read)

XG1, XR1 = 12, 13
def x_setup(k):
    k('v_lshrrev_b32 %s, 3, %s' % (v(VZ), v(LANE)))
    k('v_lshlrev_b32 %s, 10, %s' % (v(XG), v(VZ)))
    k('v_lshrrev_b32 %s, 4, %s' % (v(VZ), v(LANE)))
    k('v_and_b32 %s, 7, %s' % (v(VT), v(LANE)))
    k('v_xor_b32 %s, %s, %s' % (v(VT), v(VT), v(VZ)))
    k('v_lshl_add_u32 %s, %s, 4, %s' % (v(XG), v(VT), v(XG)))
    k('s_lshl_b32 %s, %s, 8' % (s(S_T0), s(S_W)))
    k('v_add_u32 %s, %s, %s' % (v(XG), s(S_T0), v(XG)))
    k('v_xor_b32 %s, 0x2040, %s' % (v(XG1), v(XG)))
    k('v_bfe_u32 %s, %s, 1, 3' % (v(VT), v(LANE)))
    k('v_xor_b32 %s, %s, %s' % (v(VT), v(VT), v(VZ)))
    k('v_and_b32 %s, 15, %s' % (v(VZ), v(LANE)))
    k('v_lshlrev_b32 %s, 7, %s' % (v(XR), v(VZ)))
    k('v_lshl_add_u32 %s, %s, 4, %s' % (v(XR), v(VT), v(XR)))
    k('v_xor_b32 %s, 64, %s' % (v(XR1), v(XR)))

def x_dma(k, tag):
    k('s_lshl_b32 %s, %s, 12' % (s(S_T0), s(S_W)))
    k('s_add_u32 %s, %s, %s' % (s(S_T0), s(S_T0), s(S_XB)))
    def one(T, j):
        k('s_add_u32 m0, %s, %d' % (s(S_T0), T * 16384 + j * 1024))
        k('s_add_u32 %s, %s, %d' % (s(S_T1), s(S_XS), T * 16384 + (j >> 1) * 128))
        k('buffer_load_dwordx4 %s, %s, %s offen lds' % (v(XG1 if j & 1 else XG), s(S_X, 4), s(S_T1)), tag=tag)
    def fin():
        k('s_add_u32 %s, %s, %d' % (s(S_XS), s(S_XS), 2 * 32768))
        k('s_min_u32 %s, %s, %d' % (s(S_XS), s(S_XS), 63 * 32768))
        k('s_add_u32 %s, %s, 0x8000' % (s(S_XB), s(S_XB)))
        k('s_cmp_eq_u32 %s, 0x%x' % (s(S_XB), NXB * 0x8000))
        k('s_cselect_b32 %s, 0, %s' % (s(S_XB), s(S_XB)))
    return [(lambda T=T, j=j: one(T, j)) for T in range(2) for j in range(4)] + [fin]
NXB = 5

def mfma32(d, A, B, first):
    return 'v_mfma_f32_16x16x32_bf16 %s, %s, %s, %s' % (v(d, 4), A, B, '0' if first else v(d, 4))

def proj(k, after_issue=None):
    k.c('===== projections =====')
    S_O0, S_O1, S_OST, S_KIND, S_PAR = S_OO, S_T3, S_T4, S_NSEG, S_SEG
    srd(k, S_X, P_X, 2 << 20)
    LB = k.newlabel('L_pj_b'); LJ = k.newlabel('L_pj_j'); LG = k.newlabel('L_pj_g'); LJ2 = k.newlabel('L_pj_j2')
    x_setup(k)
    qkv_addr(k)
    k('s_lshl_b32 %s, %s, 2' % (s(S_T0), s(S_H)))
    k('s_add_u32 %s, %s, %s' % (s(S_T0), s(S_T0), s(S_W)))
    k('s_lshl_b32 %s, %s, 3' % (s(S_FL), s(S_T0)))
    k('s_add_u32 %s, %s, %s' % (s(S_FL), s(S_FL), s(S_R)))
    k('s_lshl_b32 %s, %s, 4' % (s(S_FL), s(S_FL)))
    k('s_add_u32 %s, %s, 0x%x' % (s(S_FL), s(S_FL), F_KV))
    k('s_cmp_eq_u32 %s, 6' % s(S_R))
    k('s_cbranch_scc1 %s' % LB)
    k('s_and_b32 %s, %s, 1' % (s(S_PAR), s(S_R)))
    k('s_lshr_b32 %s, %s, 1' % (s(S_T1), s(S_R)))
    k('s_cmp_eq_u32 %s, 0' % s(S_T1))
    k('s_cselect_b64 %s, %s, %s' % (s(4, 2), s(P_WK, 2), s(P_WV, 2)))
    k('s_cmp_eq_u32 %s, 2' % s(S_T1))
    k('s_cselect_b64 %s, %s, %s' % (s(4, 2), s(P_WQ, 2), s(4, 2)))
    srd(k, S_AUX, 4, 4 << 20)
    k('s_cselect_b32 %s, 0x40000, 0x80000' % s(S_OST)) if False else None
    k('s_mov_b32 %s, 0x80000' % s(S_OST))
    k('s_lshl_b32 %s, %s, 12' % (s(S_O0), s(S_T0)))
    k('s_and_b32 %s, %s, 1' % (s(S_KIND), s(S_T1)))
    k('s_lshl_b32 %s, %s, 11' % (s(S_O1), s(S_KIND)))
    k('s_add_u32 %s, %s, %s' % (s(S_O0), s(S_O0), s(S_O1)))
    k('s_cmp_lg_u32 %s, 2' % s(S_T1))
    k('s_cbranch_scc1 %s_q' % LB)
    k('s_lshl_b32 %s, %s, 11' % (s(S_O0), s(S_T0)))
    k('s_add_u32 %s, %s, 0x%x' % (s(S_O0), s(S_O0), QX))
    k('s_mov_b32 %s, 0x40000' % s(S_OST))
    k.label(LB + '_q')
    k('s_add_u32 %s, %s, 1024' % (s(S_O1), s(S_O0)))
    k('s_mov_b32 s5, 8192')
    k('s_branch %s' % LJ)
    k.label(LB)
    k('s_and_b32 %s, %s, 1' % (s(S_PAR), s(S_H)))
    srd(k, S_AUX, P_WB, 512 * 3072)
    k('s_and_b32 %s, %s, 30' % (s(S_T1), s(S_H)))
    k('s_lshl_b32 %s, %s, 12' % (s(S_O0), s(S_T1)))
    k('s_lshl_b32 %s, %s, 10' % (s(S_T0), s(S_W)))
    k('s_add_u32 %s, %s, %s' % (s(S_O0), s(S_O0), s(S_T0)))
    k('s_add_u32 %s, %s, 0x%x' % (s(S_O0), s(S_O0), BX))
    k('s_add_u32 %s, %s, 4096' % (s(S_O1), s(S_O0)))
    k('s_mov_b32 %s, 0x20000' % s(S_OST))
    k('s_cmp_eq_u32 %s, 2' % s(S_W))
    k('s_cselect_b32 %s, 1, 2' % s(S_KIND))
    k('s_cmp_eq_u32 %s, 3' % s(S_W))
    k('s_cselect_b32 %s, 3, %s' % (s(S_KIND), s(S_KIND)))
    k('v_lshrrev_b32 %s, 2, %s' % (v(VZ), v(LANE)))
    k('v_mul_u32_u24 %s, 3072, %s' % (v(GA), v(VZ)))
    k('v_and_b32 %s, 3, %s' % (v(VT), v(LANE)))
    k('v_lshl_add_u32 %s, %s, 4, %s' % (v(GA), v(VT), v(GA)))
    k('s_min_u32 %s, %s, 2048' % (s(S_T0), s(S_T0)))
    k('s_lshl_b32 %s, %s, 5' % (s(S_T1), s(S_T1)))
    k('s_add_u32 %s, %s, %s' % (s(S_T0), s(S_T0), s(S_T1)))
    k('v_add_u32 %s, %s, %s' % (v(GA), s(S_T0), v(GA)))
    k('s_mov_b32 s5, 3072')
    k.label(LJ)
    k('s_lshl_b32 s5, s5, 4')
    k('s_mul_i32 %s, %s, %s' % (s(S_T0), s(S_PAR), s(S_OST)))
    k('s_add_u32 %s, %s, %s' % (s(S_O0), s(S_O0), s(S_T0)))
    k('s_add_u32 %s, %s, %s' % (s(S_O1), s(S_O1), s(S_T0)))
    k('s_lshl_b32 %s, %s, 1' % (s(S_OST), s(S_OST)))
    dW = lambda t, ks: ('a', (t * 16 + ks) * 4)
    k('s_lshl_b32 %s, %s, 15' % (s(S_XS), s(S_PAR)))
    k('s_mov_b32 %s, 0x20000' % s(S_XB))
    for f in x_dma(k, 'x'): f()
    k('s_lshl_b32 s4, %s, 15' % s(S_W))
    k('v_subrev_u32 %s, %s, %s' % (v(TR), s(S_T2), v(TR)))
    k('v_add_u32 %s, s4, %s' % (v(TR), v(TR)))
    k('s_mov_b32 %s, 0' % s(S_T0))
    for i in range(32):
        k('s_add_u32 m0, s4, %d' % (i * 1024))
        k('buffer_load_dwordx4 %s, %s, %s offen lds' % (v(GA), s(S_AUX, 4), s(S_T0)), tag=('wl', i // 4))
        k('s_add_u32 %s, %s, s5' % (s(S_T0), s(S_T0)))
    if after_issue: after_issue()
    for b in range(8):
        k.wait_vm(('wl', b))
        for k2 in range(2):
            for t in range(2):
                for hh in range(2):
                    k('ds_read_b64_tr_b16 %s, %s offset:%d' % (R(dW(t, 2 * b + k2), 2 * hh, 2), v(TR), b * 4096 + (32 * k2 + 4 * hh) * 64 + 32 * t))
        if b % 2: k('s_waitcnt lgkmcnt(0)')
    k('s_cmp_lg_u32 %s, 3' % s(S_KIND))
    k('s_cbranch_scc1 %s' % LJ2)
    srd(k, S_WQ, P_GW, 1024)
    k('v_lshrrev_b32 %s, 4, %s' % (v(GA), v(LANE)))
    k('v_lshlrev_b32 %s, 4, %s' % (v(GA), v(GA)))
    for ks in range(16):
        k('buffer_load_dwordx4 %s, %s, %s, 0 offen offset:%d' % (R(dW(0, ks), 0, 4), v(GA), s(S_WQ, 4), ks * 64))
    k.label(LJ2)
    k('s_waitcnt vmcnt(0)')
    if hasattr(k, 'stampw'): k.stampw(7)
    k('s_barrier')
    if hasattr(k, 'after_wload'): k.after_wload()
    k('s_mov_b32 %s, 0' % s(S_I))
    XR0 = 14; S_XRB = 60
    k('v_mov_b32 %s, %s' % (v(XR0), v(XR)))
    k('s_mov_b32 %s, 0x20000' % s(S_XRB))
    k('v_add_u32 %s, %s, %s' % (v(XR), s(S_XRB), v(XR0)))
    k('v_xor_b32 %s, 64, %s' % (v(XR1), v(XR)))
    for i in range(2):
        for f in x_dma(k, 'x'): f()
    ACC, XF, PKR = 16, 48, 72
    k('s_cmp_eq_u32 %s, 1' % s(S_KIND))
    k('s_cbranch_scc1 L_pj_td')
    for name in ('dt', 'td'):
        L = 'L_pj_' + name
        k.label(L)
        k.vm = []; k.lg = []
        k('s_waitcnt vmcnt(19)')
        k('s_barrier')
        dq = x_dma(k, 'x')
        def rd(ks):
            for T in range(2):
                k('ds_read_b128 %s, %s offset:%d' % (v(XF + 8 * (ks % 3) + 4 * T, 4), v(XR1 if ks & 1 else XR), T * 16384 + (ks >> 1) * 2048), tag=('xf', ks))
        rd(0); rd(1)
        for ks in range(16):
            k.wait_lg(('xf', ks))
            xf = XF + 8 * (ks % 3)
            n = 0
            for T in range(2):
                for t in range(2):
                    if name == 'dt': k(mfma32(ACC + 4 * (2 * T + t), R(dW(t, ks), 0, 4), v(xf + 4 * T, 4), ks == 0))
                    else: k(mfma32(ACC + 4 * (2 * t + T), v(xf + 4 * T, 4), R(dW(t, ks), 0, 4), ks == 0))
                    if n == 0 and ks + 2 < 16: rd(ks + 2)
                    if n == 2 and dq: dq.pop(0)()
                    n += 1
            if ks == 12:
                LF = k.newlabel('L_pjf')
                k('s_sub_i32 %s, %s, 1' % (s(S_T1), s(S_I)))
                k('s_cmp_gt_u32 %s, 1' % s(S_I))
                k('s_cbranch_scc1 %s' % LF)
                k('s_mov_b32 %s, %s' % (s(S_T1), s(S_I)))
                k('s_waitcnt vmcnt(8)')
                k.label(LF)
                k('s_lshl1_add_u32 %s, %s, %s' % (s(S_T1), s(S_T1), s(S_PAR)))
                k('s_waitcnt vmcnt(19)')
                set_flag(k, S_FL, s(S_T1))
        LS = k.newlabel('L_es')
        if name == 'dt':
            L2 = k.newlabel('L_e2'); L3 = k.newlabel('L_e3')
            k('s_cmp_eq_u32 %s, 2' % s(S_KIND))
            k('s_cbranch_scc1 %s' % L2)
            k('s_cmp_eq_u32 %s, 3' % s(S_KIND))
            k('s_cbranch_scc1 %s' % L3)
        for i in range(8): cvt(k, PKR + i, ACC + 2 * i, ACC + 2 * i + 1)
        k.label(LS)
        k('buffer_store_dwordx4 %s, %s, %s, %s offen sc1' % (v(PKR, 4), v(L16), s(S_WS, 4), s(S_O0)))
        k('buffer_store_dwordx4 %s, %s, %s, %s offen sc1' % (v(PKR + 4, 4), v(L16), s(S_WS, 4), s(S_O1)))
        k('s_add_u32 %s, %s, %s' % (s(S_O0), s(S_O0), s(S_OST)))
        k('s_add_u32 %s, %s, %s' % (s(S_O1), s(S_O1), s(S_OST)))
        k('s_add_u32 %s, %s, 0x8000' % (s(S_XRB), s(S_XRB)))
        k('s_cmp_eq_u32 %s, 0x%x' % (s(S_XRB), NXB * 0x8000))
        k('s_cselect_b32 %s, 0, %s' % (s(S_XRB), s(S_XRB)))
        k('v_add_u32 %s, %s, %s' % (v(XR), s(S_XRB), v(XR0)))
        k('v_xor_b32 %s, 64, %s' % (v(XR1), v(XR)))
        k('s_add_u32 %s, %s, 1' % (s(S_I), s(S_I)))
        k('s_cmp_lt_u32 %s, 32' % s(S_I))
        k('s_cbranch_scc1 %s' % L)
        k('s_branch L_pj_end')
        if name == 'dt':
            k.label(L2)
            k.flush(6)
            for t in range(2):
                for T in range(2):
                    for i in range(2):
                        cvt(k, PKR + 4 * t + 2 * T + i, ACC + 4 * (2 * T + t) + 2 * i, ACC + 4 * (2 * T + t) + 2 * i + 1)
            k('s_branch %s' % LS)
            k.label(L3)
            k.flush(6)
            P3 = PKR
            cvt(k, P3, ACC, ACC + 8)
            k('v_lshlrev_b32 %s, 16, %s' % (v(P3 + 2), v(P3)))
            k('v_and_b32 %s, 0xffff0000, %s' % (v(P3 + 3), v(P3)))
            for i in (2, 3): k('v_mul_f32 %s, 0x%x, %s' % (v(P3 + i), f2u(-math.log2(math.e)), v(P3 + i)))
            for i in (2, 3): k('v_exp_f32 %s, %s' % (v(P3 + i), v(P3 + i)))
            for i in (2, 3): k('v_add_f32 %s, 1.0, %s' % (v(P3 + i), v(P3 + i)))
            for i in (2, 3): k('v_rcp_f32 %s, %s' % (v(P3 + i), v(P3 + i)))
            cvt(k, P3 + 1, P3 + 2, P3 + 3)
            k('v_lshlrev_b32 %s, 16, %s' % (v(P3), v(P3 + 1)))
            k('v_and_b32 %s, 0xffff0000, %s' % (v(P3 + 1), v(P3 + 1)))
            k('v_sub_f32 %s, 1.0, %s' % (v(P3 + 2), v(P3)))
            k('v_sub_f32 %s, 1.0, %s' % (v(P3 + 3), v(P3 + 1)))
            cvt(k, P3 + 3, P3 + 2, P3 + 3)
            k('v_lshlrev_b32 %s, 16, %s' % (v(P3 + 2), v(P3 + 3)))
            k('v_and_b32 %s, 0xffff0000, %s' % (v(P3 + 3), v(P3 + 3)))
            for i in range(4): k('v_mov_b32 %s, %s' % (v(P3 + 4 + i), v(P3 + i)))
            k('s_branch %s' % LS)
    k.label('L_pj_end')
    k('s_waitcnt vmcnt(0)')
    set_flag(k, S_FL, '64')
    k('s_cmp_eq_u32 %s, 0' % s(S_R))
    k('s_cselect_b32 %s, 10, 9' % s(S_NSEG))

def diag_masks(k):
    k('v_lshrrev_b32 %s, 4, %s' % (v(VZ), v(LANE)))
    k('v_lshlrev_b32 %s, 2, %s' % (v(VZ), v(VZ)))
    k('v_and_b32 %s, 15, %s' % (v(VT), v(LANE)))
    k('v_sub_u32 %s, %s, %s' % (v(VT), v(VT), v(VZ)))
    for j in range(4):
        k('v_cmp_le_i32 %s, %d, %s' % (s(S_M + 2 * j, 2), j, v(VT)))

def xreduce(k, op, X, T):
    for sw in ('v_permlane16_swap_b32', 'v_permlane32_swap_b32'):
        k('v_mov_b32 %s, %s' % (v(T), v(X)))
        k('%s %s, %s' % (sw, v(X), v(T)))
        k('%s %s, %s, %s' % (op, v(X), v(X), v(T)))

def round_bf16(k, regs, T):
    for i in range(0, len(regs), 2):
        x, y = regs[i], regs[i + 1]
        cvt(k, y, x, y)
        k('v_lshlrev_b32 %s, 16, %s' % (v(x), v(y)))
        k('v_and_b32 %s, 0xffff0000, %s' % (v(y), v(y)))

def battn(k, waitflags=True, pre=None, post=None):
    k.c('===== B-branch sliding window attention =====')
    if waitflags:
        k('s_and_b32 %s, %s, 30' % (s(S_T3), s(S_H)))
        k('s_lshl_b32 %s, %s, 9' % (s(S_T3), s(S_T3)))
        k('s_add_u32 %s, %s, 0x%x' % (s(S_T3), s(S_T3), F_KV + 96))
        poll_flags(k, S_T3, 8, '64', 'd2', stride=128)
    diag_masks(k)
    QB, KB, VB, SC, NEG, MX, TT, LSUM, OO = 8, 12, 48, 84, 228, 230, 232, 234, 236
    def sc(j, kt, T): return SC + 4 * ((j * 2 + kt) * 2 + T)
    k('v_mov_b32 %s, 0xff800000' % v(NEG))
    k('s_mov_b32 %s, %s' % (s(S_I), s(S_W)))
    LOOP = 'L_ba_loop'; END = 'L_ba_end'
    S_RND = 61
    k('s_mov_b32 %s, 0' % s(S_RND))
    def dispatch(fns, name):
        if not fns: return
        J = 'L_ba_%s_j' % name
        for r, f in enumerate(fns):
            if r < len(fns) - 1:
                k('s_cmp_lg_u32 %s, %d' % (s(S_RND), r))
                k('s_cbranch_scc1 L_ba_%s_%d' % (name, r + 1))
            f()
            if r < len(fns) - 1:
                k('s_branch %s' % J)
                k.label('L_ba_%s_%d' % (name, r + 1))
        k.label(J)
    k.label(LOOP)
    k('s_cmp_ge_u32 %s, %s' % (s(S_I), s(S_NSEG)))
    k('s_cbranch_scc1 L_ba_nl')
    k('s_mul_i32 %s, %s, 7' % (s(S_SEG), s(S_I)))
    k('s_add_u32 %s, %s, %s' % (s(S_SEG), s(S_SEG), s(S_R)))
    k.vm = []
    k('s_lshl_b32 %s, %s, 12' % (s(S_T3), s(S_H)))
    k('s_add_u32 %s, %s, 0x%x' % (s(S_T3), s(S_T3), BX))
    k('s_lshl_b32 %s, %s, 17' % (s(S_T0), s(S_SEG)))
    k('s_add_u32 %s, %s, %s' % (s(S_T0), s(S_T0), s(S_T3)))
    k('buffer_load_dwordx4 %s, %s, %s, %s offen sc1' % (v(QB, 4), v(L16), s(S_WS, 4), s(S_T0)), tag='q')
    for j in range(9):
        k('s_sub_i32 %s, %s, %d' % (s(S_T0), s(S_SEG), 8 - j))
        k('s_max_i32 %s, %s, 0' % (s(S_T0), s(S_T0)))
        k('s_lshl_b32 %s, %s, 17' % (s(S_T0), s(S_T0)))
        k('s_add_u32 %s, %s, %s' % (s(S_T0), s(S_T0), s(S_T3)))
        k('buffer_load_dwordx4 %s, %s, %s, %s offen offset:1024 sc1' % (v(KB + 4 * j, 4), v(L16), s(S_WS, 4), s(S_T0)), tag=('k', j))
        k('buffer_load_dwordx4 %s, %s, %s, %s offen offset:2048 sc1' % (v(VB + 4 * j, 4), v(L16), s(S_WS, 4), s(S_T0)), tag=('v', j))
    k.label('L_ba_nl')
    keep = list(k.vm)
    dispatch(pre, 'pre')
    k.vm = keep + (['dma'] * 32 if pre else [])
    k('s_cmp_ge_u32 %s, %s' % (s(S_I), s(S_NSEG)))
    k('s_cbranch_scc1 L_ba_skip')
    dead = {(0, 0, 1), (8, 1, 0)}
    for j in range(9):
        k.wait_vm(('k', j))
        for kt in range(2):
            for T in range(2):
                if (j, kt, T) in dead: continue
                k('v_mfma_f32_16x16x16_bf16 %s, %s, %s, 0' % (v(sc(j, kt, T), 4), v(KB + 4 * j + 2 * kt, 2), v(QB + 2 * T, 2)))
    k.flush(9)
    for T in range(2):
        for jj in range(4):
            k('v_cndmask_b32 %s, %s, %s, %s' % (v(sc(8, T, T) + jj), v(NEG), v(sc(8, T, T) + jj), s(S_M + 2 * jj, 2)))
            k('v_cndmask_b32 %s, %s, %s, %s' % (v(sc(0, T, T) + jj), v(sc(0, T, T) + jj), v(NEG), s(S_M + 2 * jj, 2)))
    LV = k.newlabel('L_ba_valid')
    for j in range(8):
        k('s_cmp_ge_u32 %s, %d' % (s(S_SEG), 8 - j))
        k('s_cbranch_scc1 %s' % LV)
        for r in range(16):
            k('v_mov_b32 %s, %s' % (v(sc(j, 0, 0) + r), v(NEG)))
    k.label(LV)
    c = 0.25 * math.log2(math.e)
    k('s_mov_b32 %s, 0x%x' % (s(S_T4), f2u(c)))
    for T in range(2):
        regs = [sc(j, kt, T) + r for j in range(9) for kt in range(2) if (j, kt, T) not in dead for r in range(4)]
        round_bf16(k, regs, TT)
        k('v_max3_f32 %s, %s, %s, %s' % (v(MX), v(regs[0]), v(regs[1]), v(regs[2])))
        k('v_max3_f32 %s, %s, %s, %s' % (v(MX + 1), v(regs[3]), v(regs[4]), v(regs[5])))
        rest = regs[6:]
        for i in range(0, len(rest), 2):
            m = MX + ((i >> 1) & 1)
            k('v_max3_f32 %s, %s, %s, %s' % (v(m), v(m), v(rest[i]), v(rest[i + 1])))
        k('v_max_f32 %s, %s, %s' % (v(MX), v(MX), v(MX + 1)))
        xreduce(k, 'v_max_f32', MX, TT)
        k('v_mul_f32 %s, %s, %s' % (v(MX), s(S_T4), v(MX)))
        for r in regs: k('v_fma_f32 %s, %s, %s, -%s' % (v(r), v(r), s(S_T4), v(MX)))
        for r in regs: k('v_exp_f32 %s, %s' % (v(r), v(r)))
        k('v_add_f32 %s, %s, %s' % (v(LSUM), v(regs[0]), v(regs[1])))
        k('v_add_f32 %s, %s, %s' % (v(LSUM + 1), v(regs[2]), v(regs[3])))
        for i, r in enumerate(regs[4:]):
            m = LSUM + (i & 1)
            k('v_add_f32 %s, %s, %s' % (v(m), v(m), v(r)))
        k('v_add_f32 %s, %s, %s' % (v(LSUM), v(LSUM), v(LSUM + 1)))
        xreduce(k, 'v_add_f32', LSUM, TT)
        k('v_rcp_f32 %s, %s' % (v(LSUM), v(LSUM)))
        for r in regs: k('v_mul_f32 %s, %s, %s' % (v(r), v(r), v(LSUM)))
        for j in range(9):
            d = sc(j, 0, T)
            for kt in range(2):
                if (j, kt, T) in dead:
                    k('v_mov_b32 %s, 0' % v(d + 2 * kt)); k('v_mov_b32 %s, 0' % v(d + 2 * kt + 1))
                else:
                    b = sc(j, kt, T)
                    cvt(k, d + 2 * kt, b, b + 1); cvt(k, d + 2 * kt + 1, b + 2, b + 3)
        if T == 0: k.wait_vm(('v', 8))
        for j in range(9):
            k(mfma32(OO + 4 * T, v(VB + 4 * j, 4), v(sc(j, 0, T), 4), j == 0))
    for i in range(4): cvt(k, QB + i, OO + 2 * i, OO + 2 * i + 1)
    k('s_lshl_b32 %s, %s, 15' % (s(S_T0), s(S_SEG)))
    k('s_lshr_b32 %s, %s, 1' % (s(S_T1), s(S_H)))
    k('s_lshl_b32 %s, %s, 10' % (s(S_T1), s(S_T1)))
    k('s_add_u32 %s, %s, %s' % (s(S_T0), s(S_T0), s(S_T1)))
    k('s_and_b32 %s, %s, 1' % (s(S_T1), s(S_H)))
    k('s_lshl_b32 %s, %s, 3' % (s(S_T1), s(S_T1)))
    k('s_add_u32 %s, %s, %s' % (s(S_T0), s(S_T0), s(S_T1)))
    k('s_add_u32 %s, %s, 0x%x' % (s(S_T0), s(S_T0), OB))
    k('s_add_u32 %s, %s, 16384' % (s(S_T1), s(S_T0)))
    k('buffer_store_dwordx2 %s, %s, %s, %s offen sc1' % (v(QB, 2), v(L16), s(S_WS, 4), s(S_T0)))
    k('buffer_store_dwordx2 %s, %s, %s, %s offen sc1' % (v(QB + 2, 2), v(L16), s(S_WS, 4), s(S_T1)))
    k.label('L_ba_skip')
    k('s_add_u32 %s, %s, 4' % (s(S_I), s(S_I)))
    k('s_waitcnt vmcnt(0)')
    dispatch(post, 'post')
    k('s_add_u32 %s, %s, 1' % (s(S_RND), s(S_RND)))
    k('s_cmp_lt_u32 %s, 3' % s(S_RND))
    k('s_cbranch_scc1 %s' % LOOP)
    k.label(END)
    k('s_barrier')
    k('s_lshl_b32 %s, %s, 3' % (s(S_FL), s(S_H)))
    k('s_add_u32 %s, %s, %s' % (s(S_FL), s(S_FL), s(S_R)))
    k('s_lshl_b32 %s, %s, 2' % (s(S_FL), s(S_FL)))
    k('s_add_u32 %s, %s, 0x%x' % (s(S_FL), s(S_FL), F_D3))
    set_flag(k, S_FL, '1')


PB_GO, PB_TR, PB_GQ, PB_TRQ, PB_GB = 2, 3, 4, 5, 244
WOV, WBF, ACC, MEMF, AKV, QF, KF, VF, SX, BV, T8, SELT, IDX, NEG, MX, TT, LS = 16, 112, 128, 160, 192, 208, 212, 220, 228, 236, 240, 248, 250, 251, 252, 253, 254
S_STG = 63
wof = lambda dt, kk: (WOV + (dt * 4 + kk) * 4) if dt < 6 else (MEMF + ((dt - 6) * 4 + kk) * 4)
wkv = lambda m, ks, t: ((m * 8 + ks) * 2 + t) * 8

def pb_loader(k):
    srd(k, S_WO, P_WO, 4 << 20); srd(k, S_AUX, P_WOB, 512 * 1024)
    srd(k, S_WK, P_WK, 4 << 20); srd(k, S_WV, P_WV, 4 << 20)
    k('s_barrier')
    k('s_mul_i32 %s, %s, 40960' % (s(S_STG), s(S_W)))
    k('v_lshrrev_b32 %s, 2, %s' % (v(VZ), v(LANE)))
    k('v_and_b32 %s, 3, %s' % (v(VT), v(LANE)))
    k('v_lshlrev_b32 %s, 4, %s' % (v(PB_GO), v(VT)))
    k('v_lshl_add_u32 %s, %s, 13, %s' % (v(PB_GQ), v(VZ), v(PB_GO)))
    k('v_lshl_add_u32 %s, %s, 10, %s' % (v(PB_GO), v(VZ), v(PB_GO)))
    k('s_lshl_b32 %s, %s, 8' % (s(S_T0), s(S_TK)))
    k('s_lshl_b32 %s, %s, 6' % (s(S_T1), s(S_W)))
    k('s_add_u32 %s, %s, %s' % (s(S_T0), s(S_T0), s(S_T1)))
    k('v_add_u32 %s, %s, %s' % (v(PB_GQ), s(S_T0), v(PB_GQ)))
    k('s_lshl_b32 %s, %s, 17' % (s(S_T0), s(S_TK)))
    k('s_lshl_b32 %s, %s, 8' % (s(S_T1), s(S_W)))
    k('s_add_u32 %s, %s, %s' % (s(S_T0), s(S_T0), s(S_T1)))
    k('v_add_u32 %s, %s, %s' % (v(PB_GO), s(S_T0), v(PB_GO)))
    k('v_lshlrev_b32 %s, 6, %s' % (v(PB_TR), v(VZ)))
    k('v_lshl_add_u32 %s, %s, 3, %s' % (v(PB_TR), v(VT), v(PB_TR)))
    k('v_add_u32 %s, %s, %s' % (v(PB_TR), s(S_STG), v(PB_TR)))
    k('v_bfe_u32 %s, %s, 5, 1' % (v(VZ), v(LANE)))
    k('v_lshlrev_b32 %s, 4, %s' % (v(PB_TRQ), v(VZ)))
    for (bit, sh) in ((4, 2), (3, 3), (2, 0)):
        k('v_bfe_u32 %s, %s, %d, 1' % (v(VZ), v(LANE), bit))
        k('v_lshl_add_u32 %s, %s, %d, %s' % (v(PB_TRQ), v(VZ), sh, v(PB_TRQ)))
    k('v_lshlrev_b32 %s, 6, %s' % (v(PB_TRQ), v(PB_TRQ)))
    k('v_lshl_add_u32 %s, %s, 3, %s' % (v(PB_TRQ), v(VT), v(PB_TRQ)))
    k('v_add_u32 %s, %s, %s' % (v(PB_TRQ), s(S_STG), v(PB_TRQ)))
    k('v_lshrrev_b32 %s, 1, %s' % (v(VZ), v(LANE)))
    k('v_lshlrev_b32 %s, 10, %s' % (v(PB_GB), v(VZ)))
    k('v_and_b32 %s, 1, %s' % (v(VT), v(LANE)))
    k('v_lshl_add_u32 %s, %s, 4, %s' % (v(PB_GB), v(VT), v(PB_GB)))
    k('s_lshl_b32 %s, %s, 17' % (s(S_T0), s(S_W)))
    k('s_lshl_b32 %s, %s, 5' % (s(S_T1), s(S_TK)))
    k('s_add_u32 %s, %s, %s' % (s(S_T0), s(S_T0), s(S_T1)))
    k('v_add_u32 %s, %s, %s' % (v(PB_GB), s(S_T0), v(PB_GB)))
    def dma(ga, srdn, so, lo):
        k('s_mov_b32 %s, %d' % (s(S_T0), so))
        k('s_add_u32 m0, %s, %d' % (s(S_STG), lo))
        k('buffer_load_dwordx4 %s, %s, %s offen lds' % (v(ga), s(srdn, 4), s(S_T0)))
    def pre_kv(m):
        def f():
            for i in range(32): dma(PB_GQ, (S_WK, S_WV)[m], 16 * i * 8192, i * 1024)
        return f
    def post_kv(m):
        def f():
            for ks in range(8):
                for t in range(2):
                    for H in range(2):
                        for Q in range(2):
                            k('ds_read_b64_tr_b16 %s, %s offset:%d' % (a(wkv(m, ks, t) + 4 * H + 2 * Q, 2), v(PB_TRQ), ks * 4096 + (32 * H + 2 * Q) * 64 + 32 * t))
                k('s_waitcnt lgkmcnt(0)')
        return f
    def pre_o():
        for be in range(2):
            for i in range(4):
                for dp in range(4): dma(PB_GO, S_WO, (64 * be + 16 * i) * 1024 + dp * 64, (be * 4 + dp) * 4096 + i * 1024)
        for i in range(4): dma(PB_GB, S_AUX, 32 * i * 1024, 32768 + i * 1024)
    def final():
        for be in range(2):
            for dp in range(4):
                for k2 in range(2):
                    for t in range(2):
                        for hh in range(2):
                            k('ds_read_b64_tr_b16 %s, %s offset:%d' % (v(wof(2 * dp + t, 2 * be + k2) + 2 * hh, 2), v(PB_TR), (be * 4 + dp) * 4096 + (32 * k2 + 16 * hh) * 64 + 32 * t))
                k('s_waitcnt lgkmcnt(0)')
        k('v_lshlrev_b32 %s, 3, %s' % (v(VZ), v(LANE)))
        k('v_add_u32 %s, %s, %s' % (v(VZ), s(S_STG), v(VZ)))
        for hb in range(8):
            k('ds_read_b64_tr_b16 %s, %s offset:%d' % (v(WBF + 2 * hb, 2), v(VZ), 32768 + hb * 512))
        k('s_waitcnt lgkmcnt(0)')
    return [pre_kv(0), pre_kv(1), pre_o], [post_kv(0), post_kv(1), lambda: None], final

def phaseB(k, waitflags=True, opt={}):
    k.c('===== phase B =====')
    srd(k, S_OUT, P_OUT, 2 << 20)
    k('s_barrier')
    PFA, ST, OA, LW2, LW1, MEMA, MEMO, HOME = 8, 9, 10, 11, 12, 13, 14, 15
    BRA, GRA, L8, IDXR = 2, 3, 4, 5
    SELR = 244
    L_SMX, L_OX, L_HOME, L_BX = 16384, 20480, 32768, 8192
    S_PF = S_T2
    k('s_mul_i32 %s, %s, 12288' % (s(S_PF), s(S_W)))
    k('s_add_u32 %s, %s, 65536' % (s(S_PF), s(S_PF)))
    k('s_lshl_b32 %s, %s, 13' % (s(S_T0), s(S_W)))
    k('v_add_u32 %s, %s, %s' % (v(HOME), s(S_T0), v(L16)))
    k('s_lshl_b32 %s, %s, 11' % (s(S_T0), s(S_W)))
    k('v_add_u32 %s, %s, %s' % (v(LW2), s(S_T0), v(L16)))
    k('s_lshl_b32 %s, %s, 10' % (s(S_T0), s(S_W)))
    k('v_add_u32 %s, %s, %s' % (v(LW1), s(S_T0), v(L16)))
    for i in range(8):
        k('ds_write_b128 %s, %s offset:%d' % (v(HOME), v(MEMF + 4 * i, 4), L_HOME + 1024 * i))
    diag_masks(k)
    k('v_and_b32 %s, 15, %s' % (v(VT), v(LANE)))
    k('v_lshrrev_b32 %s, 4, %s' % (v(VZ), v(LANE)))
    k('v_cmp_gt_u32 vcc, 8, %s' % v(VT))
    k('v_mov_b32 %s, 0xeeee' % v(IDX))
    k('v_mov_b32 %s, 0x4444' % v(TT))
    k('v_cndmask_b32 %s, %s, %s, vcc' % (v(IDX), v(IDX), v(TT)))
    k('v_lshlrev_b32 %s, 3, %s' % (v(ST), v(VT)))
    k('v_lshl_add_u32 %s, %s, 12, %s' % (v(ST), v(VZ), v(ST)))
    k('v_and_b32 %s, 7, %s' % (v(MX), v(LANE)))
    k('v_lshrrev_b32 %s, 5, %s' % (v(TT), v(LANE)))
    k('v_lshl_add_u32 %s, %s, 1, %s' % (v(MX), v(MX), v(TT)))
    k('v_and_b32 %s, 1, %s' % (v(TT), v(VZ)))
    k('v_lshlrev_b32 %s, 10, %s' % (v(OA), v(MX)))
    k('v_lshl_add_u32 %s, %s, 2, %s' % (v(OA), v(TT), v(OA)))
    k('s_lshl_b32 %s, %s, 5' % (s(S_T0), s(S_H)))
    k('s_lshl_b32 %s, %s, 3' % (s(S_T1), s(S_W)))
    k('s_add_u32 %s, %s, %s' % (s(S_T0), s(S_T0), s(S_T1)))
    k('v_add_u32 %s, %s, %s' % (v(OA), s(S_T0), v(OA)))
    k('v_bfrev_b32 %s, 1' % v(LS))
    k('v_cndmask_b32 %s, %s, %s, vcc' % (v(OA), v(LS), v(OA)))
    k('v_lshlrev_b32 %s, 4, %s' % (v(GRA), v(MX)))
    k('v_lshl_add_u32 %s, %s, 3, %s' % (v(BRA), v(TT), v(GRA)))
    k('v_add_u32 %s, %s, %s' % (v(GRA), s(S_PF), v(GRA)))
    k('s_lshl_b32 %s, %s, 8' % (s(S_T0), s(S_W)))
    k('s_add_u32 %s, %s, %d' % (s(S_T0), s(S_T0), L_BX))
    k('v_add_u32 %s, %s, %s' % (v(BRA), s(S_T0), v(BRA)))
    k('v_add_u32 %s, %d, %s' % (v(L8), L_BX, v(LW1)))
    k('v_mov_b32 %s, 0x3f80' % v(MX))
    k('v_and_b32 %s, 2, %s' % (v(TT), v(VT)))
    k('v_cmp_eq_u32 s[4:5], 0, %s' % v(TT))
    k('v_mov_b32 %s, 0' % v(LS))
    k('v_cndmask_b32 %s, %s, %s, s[4:5]' % (v(TT), v(LS), v(MX)))
    k('v_cndmask_b32 %s, %s, %s, vcc' % (v(SELR), v(LS), v(TT)))
    k('v_cndmask_b32 %s, %s, %s, vcc' % (v(SELR + 1), v(TT), v(LS)))
    k('v_mov_b32 %s, %s' % (v(SELR + 2), v(SELR)))
    k('v_mov_b32 %s, %s' % (v(SELR + 3), v(SELR + 1)))
    k('v_bfe_u32 %s, %s, 2, 1' % (v(TT), v(VT)))
    k('v_and_b32 %s, 1, %s' % (v(LS), v(VT)))
    k('v_lshl_add_u32 %s, %s, 1, %s' % (v(TT), v(TT), v(LS)))
    k('v_xor_b32 %s, 1, %s' % (v(LS), v(TT)))
    k('v_lshl_add_u32 %s, %s, 2, %s' % (v(TT), v(LS), v(TT)))
    k('v_mul_u32_u24 %s, 0x1111, %s' % (v(IDXR), v(TT)))
    k('v_and_b32 %s, 1, %s' % (v(VZ), v(VZ)))
    k('v_lshlrev_b32 %s, 2, %s' % (v(VZ), v(VZ)))
    k('v_and_b32 %s, 7, %s' % (v(VT), v(LANE)))
    k('v_sub_u32 %s, %s, %s' % (v(VT), v(VT), v(VZ)))
    k('v_mov_b32 %s, 0x3f800000' % v(TT))
    for r in range(2):
        k('v_mov_b32 %s, 0' % v(SELT + r))
        k('v_cmp_eq_u32 vcc, %d, %s' % (2 * r, v(VT)))
        k('v_cndmask_b32 %s, %s, %s, vcc' % (v(SELT + r), v(SELT + r), v(MX)))
        k('v_cmp_eq_u32 vcc, %d, %s' % (2 * r + 1, v(VT)))
        k('v_cndmask_b32 %s, %s, %s, vcc' % (v(SELT + r), v(SELT + r), v(TT)))
    k('v_mov_b32 %s, 0xff800000' % v(NEG))
    if waitflags:
        for r in range(4):
            k('s_mov_b32 %s, 0x%x' % (s(S_T3), F_D3 + 256 * r))
            poll_flags(k, S_T3, 64, '1', 'd3', skip7=True)
    S_PBW, S_PBR, S_U, S_T, S_TG = S_XS, S_XB, S_R, S_NSEG, S_FL
    k('s_lshl_b32 %s, %s, 20' % (s(S_T0), s(S_GRP)))
    k('s_add_u32 %s, %s, 0x%x' % (s(S_T0), s(S_T0), PB))
    k('s_lshl_b32 %s, %s, 17' % (s(S_PBW), s(S_W)))
    k('s_add_u32 %s, %s, %s' % (s(S_PBW), s(S_PBW), s(S_T0)))
    k('s_lshl_b32 %s, %s, 7' % (s(S_T1), s(S_H)))
    k('s_add_u32 %s, %s, %s' % (s(S_PBW), s(S_PBW), s(S_T1)))
    k('s_lshl_b32 %s, %s, 14' % (s(S_PBR), s(S_H)))
    k('s_add_u32 %s, %s, %s' % (s(S_PBR), s(S_PBR), s(S_T0)))
    k('s_lshl_b32 %s, %s, 12' % (s(S_T1), s(S_W)))
    k('s_add_u32 %s, %s, %s' % (s(S_PBR), s(S_PBR), s(S_T1)))
    k('s_mov_b32 %s, 0' % s(S_I))
    k('s_sub_u32 %s, %s, 1' % (s(S_U), s(S_GRP)))
    k('s_mov_b32 %s, 0x%x' % (s(S_T4), f2u(128 ** -0.5)))
    def mf16(d, A, B, C=None): k('v_mfma_f32_16x16x16_bf16 %s, %s, %s, %s' % (v(d, 4), v(A, 2), v(B, 2), '0' if C is None else v(C, 4)))
    def rnd2(regs):
        round_bf16(k, regs, TT)
        for r in regs: k('v_mul_f32 %s, %s, %s' % (v(r), s(S_T4), v(r)))
        round_bf16(k, regs, TT)
    def add(d, x, y): k('v_add_f32 %s, %s, %s' % (v(d), v(x), v(y)))
    ld = lambda d, so, off, tag: k('buffer_load_dwordx4 %s, %s, %s, %s offen offset:%d sc1' % (v(d, 4), v(L16), s(S_WS, 4), s(so), off), tag=tag)
    S_MB = 60
    k('v_add_u32 %s, %s, %s' % (v(PFA), s(S_PF), v(L16)))
    k('v_mov_b32 %s, %s' % (v(MEMO), v(LW2)))
    k('v_mov_b32 %s, %s' % (v(MEMA), v(L16)))
    dma = lambda so, off, fl='sc1': k('buffer_load_dwordx4 %s, %s, %s offen offset:%d %s lds' % (v(L16), s(S_WS, 4), s(so), off, fl))
    def prefetch(su, mb):
        T = []
        def grp(pre, n, fl='sc1'):
            for i in range(n):
                def f(i=i):
                    if i == 0: k(pre)
                    k('buffer_load_dwordx4 %s, %s, s6 offen offset:%d %s lds' % (v(L16), s(S_WS, 4), 1024 * i, fl))
                T.append(f)
        d = dict(su=s(su), h=s(S_H), w=s(S_W), pf=s(S_PF), mb=s(mb), QX=QX, BX=BX + 3072, OB=OB, MX=MEMX)
        grp('s_lshr_b32 s4, %(su)s, 1\ns_lshl_b32 s5, s4, 5\ns_add_u32 s5, s5, %(h)s\ns_lshl_b32 s7, s5, 2\ns_add_u32 s7, s7, %(w)s\ns_lshl_b32 s6, s7, 12\ns_mov_b32 m0, %(pf)s' % d, 4)
        grp('s_and_b32 s6, %(su)s, 1\ns_lshl1_add_u32 s6, s7, s6\ns_lshl_b32 s6, s6, 10\ns_add_u32 s6, s6, 0x%(QX)x\ns_add_u32 m0, %(pf)s, 4096' % d, 1)
        grp('s_lshl_b32 s6, s5, 12\ns_add_u32 s6, s6, 0x%(BX)x\ns_add_u32 m0, %(pf)s, 5120' % d, 1)
        grp('s_lshl_b32 s6, %(su)s, 2\ns_add_u32 s6, s6, %(w)s\ns_lshl_b32 s6, s6, 12\ns_add_u32 s6, s6, 0x%(OB)x\ns_add_u32 m0, %(pf)s, 6144' % d, 4)
        grp('s_lshl_b32 s6, s4, 13\ns_lshl_b32 s7, %(w)s, 11\ns_add_u32 s6, s6, s7\ns_add_u32 s6, s6, 0x%(MX)x\ns_add_u32 m0, s7, %(mb)s' % d, 2)
        return T
    PFG = LW2
    k('v_add_u32 %s, 0x10000, %s' % (v(PFG), v(L16)))
    S_PD = 62
    k('s_mov_b32 %s, 49152' % s(S_PD))
    k('s_mov_b32 %s, 0' % s(S_MB))
    for f in prefetch(S_U, S_MB): f()
    RA = ACC + 16; RR = AKV; S_RT, S_RO, S_RR = 58, 59, 61
    def reduce(name):
        k('v_mov_b64 %s, 0' % v(RA, 2)); k('v_mov_b64 %s, 0' % v(RA + 2, 2))
        k('s_mov_b32 %s, %d' % (s(S_SPIN), SPIN_MAX))
        k('s_mov_b64 vcc, -1')
        k.label('L_pb_r' + name)
        k('s_mov_b64 exec, vcc')
        for i in range(4): ld(RR + 4 * i, S_RR, i * 1024, None)
        k('s_sub_u32 %s, %s, 1' % (s(S_SPIN), s(S_SPIN)))
        k('s_cbranch_scc1 %s' % FAIL)
        k('s_waitcnt vmcnt(0)')
        for i in range(4): k('v_bitop3_b32 %s, %s, %s, %s bitop3:0x7e' % (v(RA + 4 + i), v(RR + 4 * i), v(RR + 4 * i + 2), s(S_RT)))
        k('v_or3_b32 %s, %s, %s, %s' % (v(RA + 4), v(RA + 4), v(RA + 5), v(RA + 6)))
        k('v_bitop3_b32 %s, %s, %s, 1 bitop3:0xa8' % (v(RA + 4), v(RA + 4), v(RA + 7)))
        k('v_cmp_ne_u32 vcc, 0, %s' % v(RA + 4))
        k('s_cbranch_vccnz L_pb_r' + name)
        k('s_mov_b64 exec, -1')
        for i in range(2): k('v_smfmac_f32_16x16x64_bf16 %s, %s, %s, %s' % (v(RA, 4), v(SELR, 4), v(RR + 8 * i, 8), v(IDXR)))
        for j in range(2): k('v_add_f32_dpp %s, %s, %s row_ror:8 row_mask:0xf bank_mask:0xf' % (v(RA + j), v(RA + j), v(RA + j)))
        round_bf16(k, [RA, RA + 1], TT)
        for j in range(2): k('v_mul_f32 %s, %s, %s' % (v(RA + j), v(RA + j), v(BV + 2)))
        round_bf16(k, [RA, RA + 1], TT)
        for j in range(2): add(RA + j, RA + j, BV + j)
        cvt(k, RA, RA, RA + 1)
        k('buffer_store_dword %s, %s, %s, %s offen' % (v(RA), v(OA), s(S_OUT, 4), s(S_RO)))
    npt = [0]
    def PT():
        if opt.get('pbprof'):
            i = npt[0]; npt[0] += 1
            k.raw('  s_memtime s[64:65]\n  s_waitcnt lgkmcnt(0)\n  s_sub_u32 s67, s64, s66\n  s_add_u32 s%d, s%d, s67\n  s_mov_b32 s66, s64' % (70 + i, 70 + i))
    if opt.get('pbprof'):
        for i in range(12): k('s_mov_b32 s%d, 0' % (70 + i))
        k.raw('  s_memtime s[64:65]\n  s_waitcnt lgkmcnt(0)\n  s_mov_b32 s66, s64')
    k('s_waitcnt vmcnt(0) lgkmcnt(0)')
    LOOP = 'L_pb_loop'
    k.label(LOOP)
    k('s_waitcnt vmcnt(8)')
    k('s_barrier')
    k.vm = []; k.lg = []
    OBF = ACC
    QA = MEMF
    for w_ in range(4): k('ds_read_b128 %s, %s offset:%d' % (v(QA + 4 * w_, 4), v(PFG), w_ * 12288 + 4096), tag=('qa', w_))
    def KR(w_):
        for kt in range(2): k('ds_read_b128 %s, %s offset:%d' % (v(MEMF + 16 + 8 * (w_ & 1) + 4 * kt, 4), v(PFG), w_ * 12288 + 1024 * kt), tag=('ka', w_))
    KR(0); KR(1)
    k('s_lshr_b32 %s, %s, 1' % (s(S_SEG), s(S_U)))
    k('s_and_b32 %s, %s, 1' % (s(S_T), s(S_U)))
    k('s_bfe_u32 %s, %s, 0x10001' % (s(S_TG), s(S_I)))
    for w_ in range(4):
        k.wait_lg(('ka', w_))
        for kt in range(2): k(mfma32(SX + 4 * kt, v(MEMF + 16 + 8 * (w_ & 1) + 4 * kt, 4), v(QA + 4 * w_, 4), w_ == 0))
        if w_ < 2: KR(w_ + 2)
        else:
            for i in range(2): k('ds_read_b128 %s, %s offset:%d' % (v(OBF + 8 * (w_ - 2) + 4 * i, 4), v(PFA), 6144 + 2048 * (w_ - 2) + 1024 * i), tag=('ob', w_ - 2))
    k('ds_read_b128 %s, %s offset:4096' % (v(QF, 4), v(PFA)))
    for i in range(2): k('ds_read_b128 %s, %s offset:%d' % (v(VF + 4 * i, 4), v(PFA), 2048 + 1024 * i))
    for i in range(4):
        k.wait_lg(('ob', i >> 1))
        k(mfma32(T8, v(WBF + 4 * i, 4), v(OBF + 4 * i, 4), i == 0))
    rnd2([SX + i for i in range(8)])
    k('ds_write_b128 %s, %s' % (v(L8), v(T8, 4)))
    LT1 = k.newlabel('L_pb_t1'); LTJ = k.newlabel('L_pb_tj')
    k('s_cmp_eq_u32 %s, 1' % s(S_T))
    k('s_cbranch_scc1 %s' % LT1)
    for jj in range(4):
        k('v_cndmask_b32 %s, %s, %s, %s' % (v(SX + jj), v(NEG), v(SX + jj), s(S_M + 2 * jj, 2)))
        k('v_mov_b32 %s, %s' % (v(SX + 4 + jj), v(NEG)))
    k('s_branch %s' % LTJ)
    k.label(LT1)
    for jj in range(4):
        k('v_cndmask_b32 %s, %s, %s, %s' % (v(SX + 4 + jj), v(NEG), v(SX + 4 + jj), s(S_M + 2 * jj, 2)))
    k.label(LTJ)
    PL = 'L_pb_poll'
    def memchk():
        k('ds_read_b128 %s, %s' % (v(MEMF, 4), v(MEMO)))
        k('ds_read_b128 %s, %s offset:1024' % (v(MEMF + 4, 4), v(MEMO)))
        k('s_waitcnt lgkmcnt(0)')
        k('v_max3_u32 %s, %s, %s, %s' % (v(TT), v(MEMF), v(MEMF + 1), v(MEMF + 2)))
        k('v_max3_u32 %s, %s, %s, %s' % (v(MX), v(MEMF + 3), v(MEMF + 4), v(MEMF + 5)))
        k('v_max3_u32 %s, %s, %s, %s' % (v(TT), v(TT), v(MEMF + 6), v(MEMF + 7)))
        k('v_max_u32 %s, %s, %s' % (v(TT), v(TT), v(MX)))
        k('v_cmp_eq_u32 vcc, -1, %s' % v(TT))
    PT()
    k('s_cmp_eq_u32 %s, 0' % s(S_I))
    k('s_cbranch_scc1 L_pb_nored')
    reduce('a')
    k.label('L_pb_nored')
    k('s_lshl_b32 %s, %s, 2' % (s(S_T0), s(S_T)))
    k('v_add_u32 %s, %s, %s' % (v(TT), s(S_T0), v(GRA)))
    k('ds_read_b32 %s, %s offset:5120' % (v(BV + 2), v(TT)))
    k('ds_read_b32 %s, %s offset:5128' % (v(BV + 3), v(TT)))
    for i in range(0, 16, 2): k('v_mov_b64 %s, 0' % v(AKV + i, 2))
    k('s_add_u32 %s, %s, 7' % (s(S_OO), s(S_U)))
    k('s_min_u32 %s, %s, 127' % (s(S_OO), s(S_OO)))
    k('s_xor_b32 %s, %s, 24576' % (s(S_RT), s(S_MB)))
    k('s_add_u32 %s, %s, %s' % (s(S_PF), s(S_PF), s(S_PD)))
    k('s_cmp_ge_u32 %s, 121' % s(S_U))
    k('s_cbranch_scc1 L_pb_nopf')
    for f in prefetch(S_OO, S_RT): f()
    k.label('L_pb_nopf')
    for r in (PFA, PFG, GRA): k('v_add_u32 %s, %s, %s' % (v(r), s(S_PD), v(r)))
    k('s_sub_u32 %s, 0, %s' % (s(S_PD), s(S_PD)))
    PT()
    memchk()
    k('s_cbranch_vccz %s_ok' % PL)
    k('s_lshl_b32 %s, %s, 13' % (s(S_T0), s(S_SEG)))
    k('s_lshl_b32 %s, %s, 11' % (s(S_T1), s(S_W)))
    k('s_add_u32 m0, %s, %s' % (s(S_T1), s(S_MB)))
    k('s_add_u32 %s, %s, %s' % (s(S_T0), s(S_T0), s(S_T1)))
    k('s_add_u32 %s, %s, 0x%x' % (s(S_T0), s(S_T0), MEMX))
    k('s_mov_b32 %s, %d' % (s(S_SPIN), SPIN_MAX))
    k('s_sub_u32 %s, %s, 8192' % (s(S_T1), s(S_T0)))
    k('s_cmp_eq_u32 %s, 0' % s(S_SEG))
    k('s_cselect_b32 %s, %s, %s' % (s(S_T1), s(S_T0), s(S_T1)))
    k('s_mov_b32 %s, 0' % s(S_T3))
    k('s_mov_b64 exec, 1')
    k.label(PL)
    k('buffer_load_dword %s, %s, %s, %s offen sc1' % (v(TT), v(L16), s(S_WS, 4), s(S_T1)))
    k('s_sub_u32 %s, %s, 1' % (s(S_SPIN), s(S_SPIN)))
    k('s_cbranch_scc1 %s' % FAIL)
    k('s_waitcnt vmcnt(0)')
    k('v_cmp_eq_u32 vcc, -1, %s' % v(TT))
    k('s_cbranch_vccz %s_a' % PL)
    k('s_mov_b32 %s, 1' % s(S_T3))
    k('s_sleep %d' % opt.get('pbsleep', 6))
    k('s_branch %s' % PL)
    k.label(PL + '_a')
    k('s_mov_b64 exec, -1')
    k('s_cmp_eq_u32 %s, 0' % s(S_T3))
    k('s_cbranch_scc1 %s_b' % PL)
    k('s_sleep %d' % opt.get('pbsleep2', 12))
    k.label(PL + '_b')
    dma(S_T0, 0); dma(S_T0, 1024)
    k('s_sub_u32 %s, %s, 1' % (s(S_SPIN), s(S_SPIN)))
    k('s_cbranch_scc1 %s' % FAIL)
    k('s_waitcnt vmcnt(0)')
    memchk()
    k('s_cbranch_vccnz %s_b' % PL)
    k.label(PL + '_ok')
    k('s_barrier')
    PT()
    k.lg = []
    def MR(ks): k('ds_read_b128 %s, %s offset:%d' % (v(MEMF + 4 * ks, 4), v(MEMA), 1024 * ks), tag=('mf', ks))
    def SMF(m, ks, t): k('v_smfmac_f32_16x16x64_bf16 %s, %s, %s, %s' % (v(AKV + 8 * m + 4 * t, 4), v(MEMF + 4 * ks, 4), a(wkv(m, ks, t), 8), v(IDX)))
    pq = []
    MR(0); MR(1); MR(2)
    for ks in range(8):
        k.wait_lg(('mf', ks))
        SMF(0, ks, 0)
        if ks + 3 < 8: MR(ks + 3)
        elif ks < 7:
            for i in range(2): k('ds_read_b64 %s, %s offset:%d' % (v(ACC + 4 * (ks - 5) + 2 * i, 2), v(BRA), 1024 * (2 * (ks - 5) + i)), tag='br')
        SMF(0, ks, 1)
    vq = [(ks, t) for ks in range(8) for t in range(2)]
    hq = list(range(8))
    def V(n=1):
        for _ in range(n):
            ks, t = vq.pop(0); SMF(1, ks, t)
            if t == 1:
                k('ds_read_b128 %s, %s offset:%d' % (v(MEMF + 4 * ks, 4), v(HOME), L_HOME + 1024 * ks), tag=('wh', ks))
            elif pq: pq.pop(0)()
    V(2)
    for i in range(4): cvt(k, ACC + 16 + i, AKV + 2 * i, AKV + 2 * i + 1)
    V(1)
    mf16(AKV, ACC + 16, SELT); mf16(AKV + 4, ACC + 18, SELT)
    V(2)
    for i in range(4): cvt(k, ACC + 16 + i, AKV + 2 * i, AKV + 2 * i + 1)
    V(1)
    k(mfma32(AKV, v(ACC + 16, 4), v(QF, 4), True))
    V(3)
    k('ds_write_b128 %s, %s offset:%d' % (v(LW1), v(AKV, 4), L_SMX), tag='sw')
    k.wait_lg('br')
    bq = [lambda j=j: add(ACC + j, ACC + j, ACC + 2 + j) for j in range(2)] + [lambda j=j: add(ACC + 4 + j, ACC + 4 + j, ACC + 6 + j) for j in range(2)] + [lambda j=j: add(BV + j, ACC + j, ACC + 4 + j) for j in range(2)]
    for i in range(7):
        V(1)
        if bq: bq.pop(0)()
    assert not pq
    round_bf16(k, [BV, BV + 1], TT)
    for j in range(2): k('v_mul_f32 %s, %s, %s' % (v(BV + j), v(BV + j), v(BV + 3)))
    round_bf16(k, [BV, BV + 1], TT)
    k.wait_lg('sw')
    k('s_barrier')
    PT()
    VM = KF
    SR = [AKV, AKV + 4, KF + 4, T8]
    for w_ in range(4): k('ds_read_b128 %s, %s offset:%d' % (v(SR[w_], 4), v(L16), L_SMX + 1024 * w_), tag=('sr', w_))
    for i in range(4): cvt(k, VM + i, AKV + 8 + 2 * i, AKV + 8 + 2 * i + 1)
    k.wait_lg(('sr', 1))
    for j in range(4): add(AKV + j, AKV + j, AKV + 4 + j)
    k.wait_lg(('sr', 3))
    for j in range(4): add(T8 + j, T8 + j, KF + 4 + j)
    for j in range(4): add(AKV + j, AKV + j, T8 + j)
    mr = [AKV + j for j in range(4)]; xr = [SX + j for j in range(8)]
    rnd2(mr)
    k('s_mov_b32 %s, 0x%x' % (s(S_T3), f2u(math.log2(math.e))))
    regs = xr + mr
    k('v_max3_f32 %s, %s, %s, %s' % (v(MX), v(regs[0]), v(regs[1]), v(regs[2])))
    for i in range(3, len(regs) - 1, 2): k('v_max3_f32 %s, %s, %s, %s' % (v(MX), v(MX), v(regs[i]), v(regs[i + 1])))
    k('v_max_f32 %s, %s, %s' % (v(MX), v(MX), v(regs[-1])))
    xreduce(k, 'v_max_f32', MX, TT)
    k('v_mul_f32 %s, %s, %s' % (v(MX), s(S_T3), v(MX)))
    for r in regs: k('v_fma_f32 %s, %s, %s, -%s' % (v(r), v(r), s(S_T3), v(MX)))
    for r in regs: k('v_exp_f32 %s, %s' % (v(r), v(r)))
    add(LS, mr[0], mr[1]); add(LS + 1, mr[2], mr[3]); add(LS, LS, LS + 1)
    add(LS + 1, xr[0], xr[1])
    k('v_fma_f32 %s, %s, 0.5, %s' % (v(LS), v(LS), v(xr[2])))
    for i, r in enumerate(xr[3:]): add(LS + (i & 1), LS + (i & 1), r)
    add(LS, LS, LS + 1)
    xreduce(k, 'v_add_f32', LS, TT)
    k('v_rcp_f32 %s, %s' % (v(LS), v(LS)))
    for r in regs: k('v_mul_f32 %s, %s, %s' % (v(r), v(r), v(LS)))
    PX, PM, O = T8, ACC + 16, AKV + 8
    for i in range(4): cvt(k, PX + i, xr[2 * i], xr[2 * i + 1])
    cvt(k, PM, mr[0], mr[1]); cvt(k, PM + 1, mr[2], mr[3])
    for t in range(2): k(mfma32(O + 4 * t, v(VF + 4 * t, 4), v(PX, 4), True))
    for t in range(2): mf16(O + 4 * t, VM + 2 * t, PM, O + 4 * t)
    for i in range(4): cvt(k, T8 + i, O + 2 * i, O + 2 * i + 1)
    k('ds_write_b128 %s, %s offset:%d' % (v(LW1), v(T8, 4), L_OX))
    k('s_waitcnt lgkmcnt(0)')
    k('s_barrier')
    PT()
    OF = AKV
    for kk in range(4): k('ds_read_b128 %s, %s offset:%d' % (v(OF + 4 * kk, 4), v(L16), L_OX + 1024 * kk), tag=('of', kk))
    k('s_mov_b32 %s, %s' % (s(S_T0), s(S_PBW)))
    def pack(dt):
        r = ACC + 4 * dt
        cvt(k, r, r, r + 1); cvt(k, r + 1, r + 2, r + 3)
        k('v_bfi_b32 %s, 1, %s, %s' % (v(r), s(S_TG), v(r)))
    def st(dt):
        k('buffer_store_dwordx2 %s, %s, %s, %s offen' % (v(ACC + 4 * dt, 2), v(ST), s(S_WS, 4), s(S_T0)))
        k('s_add_u32 %s, %s, 0x4000' % (s(S_T0), s(S_T0)))
    for dt in range(8):
        for kk in range(4):
            if dt == 0: k.wait_lg(('of', kk))
            k(mfma32(ACC + 4 * dt, v(wof(dt, kk), 4), v(OF + 4 * kk, 4), kk == 0))
            if kk == 2 and dt > 0: pack(dt - 1)
            if kk == 3 and dt > 0: st(dt - 1)
    k('s_mov_b32 %s, %s' % (s(S_RT), s(S_TG)))
    k('s_mov_b32 %s, %s' % (s(S_RR), s(S_PBR)))
    k('s_lshl_b32 %s, %s, 14' % (s(S_RO), s(S_U)))
    k('s_add_u32 %s, %s, 1' % (s(S_I), s(S_I)))
    k('s_xor_b32 %s, %s, 24576' % (s(S_MB), s(S_MB)))
    k('v_xor_b32 %s, 24576, %s' % (v(MEMO), v(MEMO)))
    k('v_xor_b32 %s, 24576, %s' % (v(MEMA), v(MEMA)))
    pack(7); st(7)
    k('s_xor_b32 %s, %s, 0x80000' % (s(S_PBW), s(S_PBW)))
    k('s_xor_b32 %s, %s, 0x80000' % (s(S_PBR), s(S_PBR)))
    k('s_add_u32 %s, %s, 7' % (s(S_U), s(S_U)))
    PT()
    k('s_cmp_lt_u32 %s, 128' % s(S_U))
    k('s_cbranch_scc1 %s' % LOOP)
    for i in range(opt.get('pbw', 3)): k('s_nop 15')
    reduce('b')
    if opt.get('pbprof'):
        for i in range(8): k('v_mov_b32 v%d, s%d' % (16 + i, 70 + i))
        k('s_lshl_b32 s55, s50, 5\ns_add_u32 s55, s55, s40\ns_lshl_b32 s55, s55, 2\ns_add_u32 s55, s55, s41\ns_lshl_b32 s55, s55, 5\ns_add_u32 s55, s55, 0x%x' % (DBG + 0x180000))
        k('v_mov_b32 v6, 0')
        k('buffer_store_dwordx4 v[16:19], v6, s[8:11], s55 offen')
        k('buffer_store_dwordx4 v[20:23], v6, s[8:11], s55 offen offset:16')
```

```python
import sys, json
sys.path.insert(0, 'gen')
from fw import *
from layout import *
import chain as C
import worker as W
NAME = 'gated_mix__memory_aug_recurrent_mem_tr__sliding_block__prompt_kernel'
HEAD = open('gated_mix__memory_aug_recurrent_mem_tr__sliding_block__prompt.s.ref').read().split('; Override')[0]
D_READY = 64

def gen(opt={}):
    C.JS = opt.get('js', 10240)
    roles = opt.get('roles', ['chain', 'pj', 'ba', 'pb'])
    full = len(roles) == 4
    k = K()
    k.raw(HEAD.rstrip())
    k.raw('; @launch grid=(256,1,1) block=(256,1,1) lds=163840')
    k.raw('.amdgcn_target "amdgcn-amd-amdhsa--gfx950"\n.text\n.globl %s\n.p2align 8\n.type %s,@function\n%s:' % (NAME, NAME, NAME))
    k('s_load_dwordx16 s[64:79], s[0:1], 0')
    k('s_load_dwordx8 s[80:87], s[0:1], 64')
    k('s_load_dwordx4 s[88:91], s[0:1], 96')
    if opt.get('prof'):
        k('s_memtime s[100:101]')
        k('s_memrealtime s[2:3]')
    k('s_getreg_b32 %s, hwreg(HW_REG_XCC_ID)' % s(W.S_GRP))
    k('s_and_b32 %s, %s, 7' % (s(W.S_GRP), s(W.S_GRP)))
    k('s_waitcnt lgkmcnt(0)')
    C.srd(k, C.S_WS, W.P_WS, WS_BYTES); C.srd(k, C.S_DBG, W.P_DBG, 256)
    k('''
  s_lshl_b32 s55, s50, 2
  v_mov_b32 v1, 0
  v_mov_b32 v2, 1
  v_cmp_eq_u32 vcc, 0, v0
  s_and_saveexec_b64 s[4:5], vcc
  s_cbranch_execz L_t1
  buffer_atomic_add v2, v1, s[32:35], s55 offen sc0 sc1
  s_waitcnt vmcnt(0)
  ds_write_b32 v1, v2
  s_waitcnt lgkmcnt(0)
L_t1:
  s_mov_b64 exec, s[4:5]
  s_barrier
  ds_read_b32 v2, v1
  v_lshrrev_b32 v3, 6, v0
  s_waitcnt lgkmcnt(0)
  v_readfirstlane_b32 s51, v2
  v_readfirstlane_b32 s41, v3
  v_and_b32 v0, 63, v0
  s_barrier
  s_cmp_ge_u32 s51, 32
  s_cbranch_scc1 L_end
''')
    TK, GRP = W.S_TK, W.S_GRP
    if opt.get('prof'):
        k('s_memtime s[98:99]')
        k('s_waitcnt lgkmcnt(0)')
    def ready_add(ra=6, rb=7, sync=True):
        if sync:
            k('s_waitcnt vmcnt(0)')
            k('s_barrier')
        L = k.newlabel('L_ra')
        k('s_cmp_lg_u32 %s, 0' % s(C.S_W))
        k('s_cbranch_scc1 %s' % L)
        k('v_mov_b32 v%d, %d' % (ra, D_READY))
        k('v_mov_b32 v%d, 1' % rb)
        k('s_mov_b64 exec, 1')
        k('buffer_atomic_add v%d, v%d, s[32:35], 0 offen sc1' % (rb, ra))
        k('s_mov_b64 exec, -1')
        k.label(L)
    k('v_lshlrev_b32 v1, 4, v0')
    for i in range(4): k('v_mov_b32 v%d, -1' % (8 + i))
    if opt.get('spread'):
        k('s_cmp_ge_u32 s2, 32')
        k('s_cbranch_scc1 L_spw')
        k('s_mov_b32 %s, s2' % s(TK))
    else:
        k('s_cmp_lg_u32 %s, 0' % s(GRP))
        k('s_cbranch_scc1 L_worker')
    if 'chain' in roles:
        k('s_mov_b32 %s, %s' % (s(C.S_H), s(TK)))
        C.srd(k, C.S_WQ, W.P_WQ, 4 << 20); C.srd(k, C.S_WK, W.P_WK, 4 << 20); C.srd(k, C.S_WV, W.P_WV, 4 << 20); C.srd(k, C.S_WO, W.P_WO, 4 << 20)
        C.srd(k, C.S_M0, W.P_MEM0, 8192)
        def hook_loading():
            k('v_lshlrev_b32 v24, 4, v0')
            for i in range(4): k('v_mov_b32 v%d, -1' % (28 + i))
            k('s_mul_i32 s55, s40, %d' % C.JS)
            k('s_lshl_b32 s56, s41, 11')
            k('s_add_u32 s55, s55, s56')
            k('s_add_u32 s55, s55, 0x%x' % INB)
            for i in range(2):
                k('buffer_store_dwordx4 v[28:31], v24, s[8:11], s55 offen offset:%d' % (1024 * i), tag='init')
            k('s_lshl_b32 s55, s40, 10')
            k('s_add_u32 s55, s55, 0x%x' % H2)
            k('buffer_store_dwordx4 v[28:31], v24, s[8:11], s55 offen', tag='init')
            k('s_nop 1')
        hook_loading()
        def hook_loading2():
            k('s_waitcnt vmcnt(36)')
            k('s_barrier')
            n = len(k.vm)
            ready_add(58, 59, sync=False)
            k.vm = k.vm[:n]
        k.hook_loading = hook_loading2
        nready = 256
        S_RDY = 63
        S_FKV = 62
        def fl_load(B, A, tag=None):
            k('s_mov_b64 exec, 15')
            k('buffer_load_dword %s, %s, %s, %s offen sc1' % (v(B), v(A), s(C.S_WS, 4), s(S_FKV)), tag=tag)
            k('s_mov_b64 exec, -1')
        def wait_kv(first, B=C.X3, A=C.L16, part=None):
            if not full: return
            L = k.newlabel('L_kv')
            def chk():
                k('v_cmp_ge_u32 vcc, %s, %s' % (s(C.S_T0), v(B)))
                k('s_and_b32 %s, vcc_lo, 15' % s(C.S_T1))
            if part in (None, 0):
                k('s_add_u32 %s, %s, %d' % (s(C.S_T0), s(C.S_STEP), 0 if first else 1))
                k('v_cmp_ge_u32 vcc, %s, %s' % (s(C.S_T0), v(B)))
                if part == 0: return
            if part == 2:
                fl_load(B, A); return
            k('s_and_b32 %s, vcc_lo, 15' % s(C.S_T1))
            k('s_cbranch_scc1 %s_slow' % L)
            k.label(L + '_ret')
            def slow():
                k.label(L + '_slow')
                k('s_mov_b32 %s, %d' % (s(C.S_SPIN), C.SPIN_MAX))
                k.label(L + '_p')
                fl_load(B, A)
                k('s_sub_u32 %s, %s, 1' % (s(C.S_SPIN), s(C.S_SPIN)))
                k('s_cbranch_scc1 L_fail')
                k('s_waitcnt vmcnt(0)')
                chk()
                k('s_cbranch_scc0 %s_ret' % L)
                k('s_sleep 2')
                k('s_branch %s_p' % L)
            k.deferred.append(slow)
        k.deferred = []
        def h4():
            n = len(k.vm)
            ready_add(58, 59, sync=False)
            k.vm = k.vm[:n]
        def h7():
            k('v_mov_b32 v58, %d' % D_READY)
            k('buffer_load_dword v58, v58, %s, 0 offen sc1' % s(C.S_DBG, 4), tag='rdy')
        def h12():
            L = k.newlabel('L_rdy')
            k.wait_vm('rdy')
            k('v_cmp_gt_u32 vcc, %d, v58' % nready)
            k('s_cbranch_vccnz %s' % L)
            k.label(L + '_ret')
            def slow():
                k.label(L)
                k('s_mov_b32 %s, %d' % (s(C.S_SPIN), C.SPIN_MAX))
                k.label(L + '_p')
                k('v_mov_b32 v58, %d' % D_READY)
                k('buffer_load_dword v58, v58, %s, 0 offen sc1' % s(C.S_DBG, 4))
                k('s_sub_u32 %s, %s, 1' % (s(C.S_SPIN), s(C.S_SPIN)))
                k('s_cbranch_scc1 L_fail')
                k('s_waitcnt vmcnt(0)')
                k('v_cmp_gt_u32 vcc, %d, v58' % nready)
                k('s_cbranch_vccnz %s_p' % L)
                k('s_branch %s_ret' % L)
            k.deferred.append(slow)
            k('s_lshl_b32 %s, %s, 2' % (s(S_FKV), s(C.S_H)))
            k('s_add_u32 %s, %s, %s' % (s(S_FKV), s(S_FKV), s(C.S_W)))
            k('s_lshl_b32 %s, %s, 7' % (s(S_FKV), s(S_FKV)))
            k('s_add_u32 %s, %s, 0x%x' % (s(S_FKV), s(S_FKV), F_KV))
            k('v_lshlrev_b32 v54, 4, v0')
            fl_load(55, 54, 'fkv')
        def h13():
            k.wait_vm('fkv')
            wait_kv(True, 55, 54)
        k.load_hooks = {8: h7, opt.get('hk', 20): h12, 28: h13}
        k.hook_prefetch = lambda part: wait_kv(False, part=part)
        C.chain(k, prof=opt.get('prof'), dump=opt.get('dump'), opt=opt)
        if opt.get('prof'):
            T = C.S_TS
            k.raw('  s_memtime %s' % s(T + 26, 2))
            k.raw('  s_memrealtime s[4:5]')
            k.raw('  s_waitcnt lgkmcnt(0)')
            k('s_mov_b32 %s, s4' % s(T + 17))
            k('s_sub_u32 %s, %s, %s' % (s(T + 21), s(T + 26), s(T + 24)))
            k('s_mov_b32 %s, %s' % (s(T + 20), s(T + 22)))
            k('s_sub_u32 %s, %s, s100' % (s(T + 19), s(T + 28)))
            k('s_sub_u32 %s, s98, s100' % s(T + 18))
            k('s_sub_u32 %s, %s, s100' % (s(T + 22), s(T + 24)))
            for i in range(8): k('v_mov_b32 %s, %s' % (v(i), s(T + 16 + i)))
            k('s_lshl_b32 s55, s40, 2')
            k('s_add_u32 s55, s55, s41')
            k('s_lshl_b32 s55, s55, 5')
            k('s_add_u32 s55, s55, 0x%x' % (DBG + 0x100000))
            k('v_mov_b32 v8, 0')
            k('buffer_store_dwordx4 v[0:3], v8, s[8:11], s55 offen')
            k('buffer_store_dwordx4 v[4:7], v8, s[8:11], s55 offen offset:16')
            if opt.get('ddbg'):
                k('s_mov_b64 exec, 1')
                for i, r in enumerate((2, 3, 6, 5)):
                    k('buffer_atomic_umax v%d, v8, s[32:35], 0 offen offset:%d sc1' % (r, 32 + 4 * i))
                k('s_memrealtime s[4:5]')
                k('s_waitcnt lgkmcnt(0)')
                k('s_sub_u32 s4, s4, s2')
                k('v_mov_b32 v9, s4')
                k('buffer_atomic_umax v9, v8, s[32:35], 0 offen offset:48 sc1')
                k('s_mov_b64 exec, -1')
        k('s_branch L_end')
        for f in k.deferred: f()
    else:
        k('s_branch L_end')
    k.label('L_spw')
    k('s_max_u32 %s, %s, 1' % (s(GRP), s(GRP)))
    k.label('L_worker')
    k.hist = []
    def stampw(i):
        if opt.get('prof'):
            k('s_memtime s[4:5]')
            k('s_waitcnt lgkmcnt(0)')
            k('s_sub_u32 s4, s4, s100')
            k('v_mov_b32 v7, s4')
            k('s_lshl_b32 s55, s50, 5')
            k('s_add_u32 s55, s55, s51')
            k('s_lshl_b32 s55, s55, 2')
            k('s_add_u32 s55, s55, s41')
            k('s_lshl_b32 s55, s55, 5')
            k('s_add_u32 s55, s55, 0x%x' % (DBG + 0x110000 + 4 * i))
            k('v_mov_b32 v6, 0')
            k('buffer_store_dword v7, v6, s[8:11], s55 offen')
    k('s_sub_u32 s55, %s, 1' % s(GRP))
    k('s_lshl_b32 s55, s55, 5')
    k('s_add_u32 s55, s55, %s' % s(TK))
    k('s_mul_i32 %s, s55, 9363' % s(C.S_H))
    k('s_lshr_b32 %s, %s, 16' % (s(C.S_H), s(C.S_H)))
    k('s_mul_i32 s56, %s, 7' % s(C.S_H))
    k('s_sub_u32 %s, s55, s56' % s(W.S_R))
    k('s_cmp_eq_u32 %s, 0' % s(W.S_R))
    k('s_cselect_b32 %s, 10, 9' % s(W.S_NSEG))
    W.setup_common(k)
    def winit():
        if full:
            k('s_lshl_b32 s55, s40, 2\ns_add_u32 s55, s55, s41\ns_lshl_b32 s55, s55, 3\ns_add_u32 s55, s55, s42\ns_lshl_b32 s55, s55, 4\ns_add_u32 s55, s55, 0x%x' % F_KV)
            W.set_flag(k, 55, '0')
            k('s_lshl_b32 s55, s40, 3\ns_add_u32 s55, s55, s42\ns_lshl_b32 s55, s55, 2\ns_add_u32 s55, s55, 0x%x' % F_D3)
            W.set_flag(k, 55, '0')
        if 'pb' in roles:
            k('s_lshl_b32 s55, s50, 20\ns_lshl_b32 s56, s51, 14\ns_add_u32 s55, s55, s56\ns_lshl_b32 s56, s41, 12\ns_add_u32 s55, s55, s56\ns_add_u32 s55, s55, 0x%x' % PB)
            for sl in range(2):
                for i in range(4): k('buffer_store_dwordx4 v[8:11], v1, s[8:11], s55 offen offset:%d' % (1024 * i))
                k('s_add_u32 s55, s55, 0x80000')
        if full:
            k('s_sub_u32 s55, s50, 1\ns_lshl_b32 s55, s55, 5\ns_add_u32 s55, s55, s51\ns_lshl_b32 s55, s55, 2\ns_add_u32 s55, s55, s41\ns_and_b32 s55, s55, 511\ns_lshl_b32 s55, s55, 10\ns_add_u32 s55, s55, 0x%x' % MEMX)
            k('buffer_store_dwordx4 v[8:11], v1, s[8:11], s55 offen sc1')
    if opt.get('warm', 0) and 'pj' in roles:
        k('s_sub_u32 s55, s50, 1\ns_lshl_b32 s55, s55, 5\ns_add_u32 s55, s55, s51\ns_lshl_b32 s55, s55, 2\ns_add_u32 s55, s55, s41\ns_lshl_b32 s55, s55, 10')
        k('v_add_u32 v16, s55, v1')
        for t in range(1, 5): k('v_add_u32 v%d, 0x%x, v16' % (16 + t, 896 * 1024 * t))
        for j, P in enumerate(opt.get('worder', [W.P_WO, W.P_WV, W.P_WK, W.P_WQ])):
            C.srd(k, C.S_WQ + 4 * j, P, 4 << 20)
            for t in range(5):
                k('buffer_load_dwordx4 v[%d:%d], v%d, %s, 0 offen %s' % (24 + 4 * t, 27 + 4 * t, 16 + t, s(C.S_WQ + 4 * j, 4), opt.get('wfl', '')))
    stampw(0)
    k.stampw = stampw
    if 'pj' in roles:
        winit()
        def after_issue():
            k('s_waitcnt vmcnt(40)')
            k('s_barrier')
            n = len(k.vm)
            ready_add(sync=False)
            k.vm = k.vm[:n]
        def after_wload():
            if opt.get('hold'):
                k('s_cmp_lt_u32 %s, %d' % (s(W.S_R), opt.get('holdc', 4)))
                k('s_cbranch_scc1 L_nohold')
                for i in range(opt['hold']): k('s_sleep 127')
                k.label('L_nohold')
        k.after_wload = after_wload
        W.proj(k, after_issue)
    else:
        winit(); ready_add()
    stampw(1)
    if full or 'pb' in roles:
        k('s_mov_b32 s55, %d' % D_READY)
        W.poll_flags(k, 55, 1, '%d' % (256 if 'chain' in roles else 224) if False else 's56', 'rdy', srdn=C.S_DBG) if False else None
        k('s_mov_b32 s56, %d' % (256 if 'chain' in roles else 224))
        W.poll_flags(k, 55, 1, 's56', 'rdy', srdn=C.S_DBG)
    pre = post = None
    if 'pb' in roles: pre, post, final = W.pb_loader(k)
    if 'ba' in roles: W.battn(k, waitflags=full, pre=pre, post=post)
    elif 'pb' in roles:
        for a_, b_ in zip(pre, post):
            a_(); k('s_waitcnt vmcnt(0)'); b_()
    stampw(3)
    if 'pb' in roles:
        final()
        stampw(2)
        k('s_mov_b32 %s, %s' % (s(C.S_H), s(TK)))
        W.phaseB(k, waitflags=full, opt=opt)
    stampw(4)
    if opt.get('prof'):
        k('s_memrealtime s[4:5]')
        k('s_waitcnt lgkmcnt(0)')
        k('v_mov_b32 v7, s4')
        k('buffer_store_dword v7, v6, s[8:11], s55 offen offset:4')
        k('v_mov_b32 v7, s2')
        k('buffer_store_dword v7, v6, s[8:11], s55 offen offset:8')
        if opt.get('ddbg'):
            k('s_mov_b64 exec, 1')
            k('v_mov_b32 v9, s4')
            k('buffer_atomic_umax v9, v6, s[32:35], 0 offen offset:52 sc1')
            k('s_not_b32 s2, s2')
            k('v_mov_b32 v9, s2')
            k('buffer_atomic_umax v9, v6, s[32:35], 0 offen offset:56 sc1')
            k('s_mov_b64 exec, -1')
    k('s_branch L_end')
    k.label('L_fail')
    k('s_mov_b64 exec, 1')
    k('v_mov_b32 v1, 128')
    k('v_mov_b32 v2, 1')
    k('buffer_atomic_add v2, v1, s[32:35], 0 offen sc1')
    k.label('L_end')
    k('s_endpgm')
    k.raw('''.section .rodata,"a"
.p2align 6
.amdhsa_kernel %s
  .amdhsa_next_free_vgpr 512
  .amdhsa_next_free_sgpr 102
  .amdhsa_accum_offset 256
  .amdhsa_group_segment_fixed_size 0
  .amdhsa_kernarg_size 112
  .amdhsa_user_sgpr_count 2
  .amdhsa_user_sgpr_kernarg_segment_ptr 1
  .amdhsa_system_sgpr_workgroup_id_x 1
.end_amdhsa_kernel''' % NAME)
    gen.points = getattr(k, 'points', [])
    txt = k.text()
    for a_, b_ in opt.get('sub', []):
        import re
        txt = re.sub(a_, b_, txt)
    return txt

if __name__ == '__main__':
    opt = json.loads(sys.argv[2]) if len(sys.argv) > 2 else {}
    open(sys.argv[1], 'w').write(gen(opt))
```

```python
from fw import *
from layout import *
import math, struct

S_WS, S_WQ, S_WK, S_WV, S_WO, S_M0, S_DBG = 8, 12, 16, 20, 24, 28, 32
S_H, S_W, S_STEP, S_TAG = 40, 41, 42, 43
S_KV, S_KVM, S_INW0, S_INW1, S_INR0, S_DEF, S_H2W, S_H2R, S_H2RST = 44, 45, 46, 47, 48, 49, 51, 52, 53
S_SPIN, S_T0, S_T1, S_T2 = 54, 55, 56, 57
S_C = 58
S_TS = 64

MEMF, ACCQK, ACCV, KVC, KVN, T1 = 0, 32, 48, 56, 72, 88
SELR, SELT = 96, 102
X0, X1 = 100, 101
IDX, L16, L16W, MEMR, SMW, SMR, OW, OR_, ST1, ST2, STRM, IDXR = 104, 105, 106, 107, 110, 111, 112, 113, 114, 115, 116, 117
X2, X3 = 118, 119
SBUF = 120
VSTAT = 144
L_MEM, L_SX, L_SM, L_OX, L_WS = 0, 8192, 8192 + 2 * 2048 + 1024, 8192 + 1024, 16384
WSTRIDE = 36864
OOR = 0x30000
SPIN_MAX = 1 << 20

def f2u(x):
    return struct.unpack('<I', struct.pack('<f', x))[0]

def srd(k, base, ptr_lo, nbytes):
    k('s_mov_b32 %s, %s' % (s(base), s(ptr_lo)))
    k('s_and_b32 %s, %s, 0xffff' % (s(base + 1), s(ptr_lo + 1)))
    k('s_mov_b32 %s, 0x%x' % (s(base + 2), nbytes))
    k('s_mov_b32 %s, 0x00020000' % s(base + 3))

ALLOPS = [(m, kap, t) for m in 'qkv' for kap in range(8) for t in range(2)] + [('o', a_, kap) for a_ in range(4) for kap in range(4)]
STREAM = [('q', 0, 0), ('k', 0, 0), ('q', 2, 1), ('q', 6, 0), ('k', 2, 1), ('k', 6, 0), ('q', 1, 1), ('q', 3, 1), ('q', 7, 0),
          ('k', 3, 1), ('k', 7, 0), ('v', 2, 0), ('v', 3, 0), ('v', 4, 0), ('o', 2, 0), ('o', 1, 2), ('o', 2, 1), ('o', 3, 3)]
NS = len(STREAM)

def op_locs():
    loc = {}
    na = nv = 0
    for o in ALLOPS:
        if o in STREAM:
            loc[o] = ('s', STREAM.index(o))
        elif na < 32:
            loc[o] = ('a', 8 * na); na += 1
        else:
            loc[o] = ('v', VSTAT + 8 * nv); nv += 1
    assert na == 32 and nv == 14 and NS == 18
    return loc

def dst(loc, r, n):
    return (a if loc[0] == 'a' else v)(loc[1] + r, n)

JS = 10240
def consts(k, LANE, H2L=0):
    k.c('===== chain: constants =====')
    tA, tB, tC, tD = 8, 9, 10, 11
    u4, u5, u6, u7 = 12, 13, 14, 15
    k('s_lshl_b32 %s, %s, 11' % (s(S_T0), s(S_W)))
    k('v_add_u32 %s, %s, %s' % (v(L16W), s(S_T0), v(L16)))
    for p in (1, 2, 3):
        k('v_xor_b32 %s, 0x%x, %s' % (v(MEMR + p - 1), p << 11, v(L16W)))
    k('v_and_b32 %s, 15, %s' % (v(tA), v(LANE)))
    k('v_lshrrev_b32 %s, 4, %s' % (v(tB), v(LANE)))
    k('v_and_b32 %s, 7, %s' % (v(tC), v(LANE)))
    k('v_cmp_gt_u32 vcc, 8, %s' % v(tA))
    k('v_mov_b32 %s, 0xeeee' % v(IDX))
    k('v_mov_b32 %s, 0x4444' % v(tD))
    k('v_cndmask_b32 %s, %s, %s, vcc' % (v(IDX), v(IDX), v(tD)))
    k('v_mov_b32 %s, 0x%x' % (v(tD), OOR))
    k('v_lshl_add_u32 %s, %s, 3, %s' % (v(OR_), v(tB), v(tC)))
    k('v_lshlrev_b32 %s, 4, %s' % (v(OR_), v(OR_)))
    k('s_and_b32 %s, %s, 1' % (s(S_T0), s(S_W)))
    k('s_lshl_b32 %s, %s, 9' % (s(S_T0), s(S_T0)))
    k('s_lshr_b32 %s, %s, 1' % (s(S_T1), s(S_W)))
    k('s_lshl_b32 %s, %s, 11' % (s(S_T1), s(S_T1)))
    k('s_add_u32 %s, %s, %s' % (s(S_T0), s(S_T0), s(S_T1)))
    k('v_add_u32 %s, %s, %s' % (v(OW), s(S_T0), v(OR_)))
    for p in (1, 2, 3):
        k('v_xor_b32 %s, 0x%x, %s' % (v([X0, X1, X2][p - 1]), ((p & 1) << 9) | ((p >> 1) << 11), v(OW)))
    k('v_cndmask_b32 %s, %s, %s, vcc' % (v(OW), v(tD), v(OW)))
    k('v_and_b32 %s, 0xff, %s' % (v(SMR), v(OR_)))
    k('v_and_b32 %s, 8, %s' % (v(u4), v(tA)))
    k('v_add_u32 %s, %s, %s' % (v(SMR), v(u4), v(SMR)))
    k('v_add_u32 %s, %d, %s' % (v(SMR), L_SM, v(SMR)))
    k('s_lshl_b32 %s, %s, 8' % (s(S_T0), s(S_W)))
    k('v_add_u32 %s, %s, %s' % (v(SMW), s(S_T0), v(SMR)))
    k('v_cmp_gt_u32 vcc, 32, %s' % v(LANE))
    k('v_cndmask_b32 %s, %s, %s, vcc' % (v(SMW), v(tD), v(SMW)))
    k('v_lshrrev_b32 %s, 3, %s' % (v(u4), v(LANE)))
    k('v_mul_u32_u24 %s, %d, %s' % (v(ST1), JS, v(u4)))
    k('v_lshl_add_u32 %s, %s, 3, %s' % (v(ST1), v(tC), v(ST1)))
    k('v_lshlrev_b32 %s, 2, %s' % (v(ST2), v(tA)))
    k('v_lshl_add_u32 %s, %s, 4, %s' % (v(ST2), v(tB), v(ST2)))
    k('s_lshr_b32 %s, %s, 3' % (s(S_T0), s(S_H)))
    k('s_lshl_b32 %s, %s, 11' % (s(S_T0), s(S_T0)))
    for (src, bit, sh) in ((S_W, 1, 10), (S_W, 0, 9), (S_H, 2, 8), (S_H, 0, 7), (S_H, 1, 6)):
        k('s_bfe_u32 %s, %s, 0x%x' % (s(S_T1), s(src), (1 << 16) | bit))
        k('s_lshl_b32 %s, %s, %d' % (s(S_T1), s(S_T1), sh))
        k('s_add_u32 %s, %s, %s' % (s(S_T0), s(S_T0), s(S_T1)))
    k('v_add_u32 %s, %s, %s' % (v(ST2), s(S_T0), v(ST2)))
    k('v_cmp_gt_u32 vcc, 4, %s' % v(tA))
    k('v_bfrev_b32 %s, 1' % v(u4))
    k('v_cndmask_b32 %s, %s, %s, vcc' % (v(ST2), v(u4), v(ST2)))
    k('v_and_b32 %s, 1, %s' % (v(tD), v(tB)))
    k('v_lshlrev_b32 %s, 2, %s' % (v(tD), v(tD)))
    k('v_sub_u32 %s, %s, %s' % (v(tD), v(tC), v(tD)))
    k('v_mov_b32 %s, 0x3f80' % v(u4))
    k('v_mov_b32 %s, 0x3f800000' % v(u5))
    for r in range(2):
        k('v_mov_b32 %s, 0' % v(SELT + r))
        k('v_cmp_eq_u32 vcc, %d, %s' % (2 * r, v(tD)))
        k('v_cndmask_b32 %s, %s, %s, vcc' % (v(SELT + r), v(SELT + r), v(u4)))
        k('v_cmp_eq_u32 vcc, %d, %s' % (2 * r + 1, v(tD)))
        k('v_cndmask_b32 %s, %s, %s, vcc' % (v(SELT + r), v(SELT + r), v(u5)))
    k('v_and_b32 %s, 2, %s' % (v(u6), v(tA)))
    k('v_cmp_eq_u32 vcc, 0, %s' % v(u6))
    k('v_mov_b32 %s, 0' % v(u7))
    k('v_cndmask_b32 %s, %s, %s, vcc' % (v(u6), v(u7), v(u4)))
    k('v_and_b32 %s, 1, %s' % (v(u5), v(tA)))
    k('v_cmp_eq_u32 vcc, 0, %s' % v(u5))
    k('v_cndmask_b32 %s, %s, %s, vcc' % (v(SELR), v(u7), v(u6)))
    k('v_cndmask_b32 %s, %s, %s, vcc' % (v(SELR + 1), v(u6), v(u7)))
    k('v_mov_b32 %s, %s' % (v(SELR + 2), v(SELR)))
    k('v_mov_b32 %s, %s' % (v(SELR + 3), v(SELR + 1)))
    k('v_lshrrev_b32 %s, 2, %s' % (v(u6), v(tA)))
    k('v_xor_b32 %s, 1, %s' % (v(u7), v(u6)))
    k('v_lshl_add_u32 %s, %s, 2, %s' % (v(u6), v(u7), v(u6)))
    k('v_mul_u32_u24 %s, 0x1111, %s' % (v(IDXR), v(u6)))

def loader(k, LANE, LOC, after_issue=None, hooks={}):
    k.c('===== chain: weight load =====')
    GQ, GO, TRQ, TRP, TRO, LW, u, u2 = 1, 2, 3, 4, 5, 6, 7, 8
    RAW = 8
    k('s_mul_i32 %s, %s, %d' % (s(S_T2), s(S_W), WSTRIDE))
    k('s_add_u32 %s, %s, %d' % (s(S_T2), s(S_T2), L_WS))
    k('v_lshrrev_b32 %s, 3, %s' % (v(u), v(LANE)))
    k('v_and_b32 %s, 7, %s' % (v(u2), v(LANE)))
    k('v_lshlrev_b32 %s, 4, %s' % (v(u2), v(u2)))
    k('v_lshl_add_u32 %s, %s, 13, %s' % (v(GQ), v(u), v(u2)))
    k('v_lshl_add_u32 %s, %s, 10, %s' % (v(GO), v(u), v(u2)))
    k('s_lshl_b32 %s, %s, 8' % (s(S_T0), s(S_H)))
    k('s_lshr_b32 %s, %s, 1' % (s(S_T1), s(S_W)))
    k('s_lshl_b32 %s, %s, 7' % (s(S_T1), s(S_T1)))
    k('s_add_u32 %s, %s, %s' % (s(S_T0), s(S_T0), s(S_T1)))
    k('v_add_u32 %s, %s, %s' % (v(GQ), s(S_T0), v(GQ)))
    k('s_lshl_b32 %s, %s, 17' % (s(S_T0), s(S_H)))
    k('s_lshl_b32 %s, %s, 8' % (s(S_T1), s(S_W)))
    k('s_add_u32 %s, %s, %s' % (s(S_T0), s(S_T0), s(S_T1)))
    k('v_add_u32 %s, %s, %s' % (v(GO), s(S_T0), v(GO)))
    its = [('o', 0, 0), ('o', 1, 0), ('o', 0, 1), ('o', 1, 1), ('v', 5), ('v', 1), ('v', 4), ('k', 5), ('q', 5), ('v', 0), ('k', 4), ('q', 4), ('k', 1), ('k', 0), ('q', 1), ('q', 0)]
    if k.wolast:
        its = [('v', 5), ('v', 1), ('v', 4), ('k', 5), ('q', 5), ('v', 0), ('k', 4), ('q', 4), ('k', 1), ('k', 0), ('q', 1), ('q', 0), ('o', 0, 0), ('o', 0, 1), ('o', 1, 0), ('o', 1, 1)]
    GP, PD = 50, 51
    GQ1, TRQ1, TRP1 = 47 + 1, 49, 52
    k('v_bfe_u32 %s, %s, 5, 1' % (v(PD), v(LANE)))
    k('v_lshlrev_b32 %s, 5, %s' % (v(PD), v(PD)))
    k('v_xor_b32 %s, %s, %s' % (v(GQ), v(PD), v(GQ)))
    k('v_xor_b32 %s, 64, %s' % (v(GQ1), v(GQ)))
    k('v_lshlrev_b32 %s, 13, %s' % (v(GP), v(u)))
    k('v_bfe_u32 %s, %s, 1, 2' % (v(PD), v(LANE)))
    k('v_lshl_add_u32 %s, %s, 8, %s' % (v(GP), v(PD), v(GP)))
    k('v_and_b32 %s, 1, %s' % (v(PD), v(LANE)))
    k('v_lshl_add_u32 %s, %s, 6, %s' % (v(GP), v(PD), v(GP)))
    k('s_and_b32 %s, %s, 3' % (s(S_T0), s(S_H)))
    k('s_lshl_b32 %s, %s, 16' % (s(S_T0), s(S_T0)))
    k('s_lshr_b32 %s, %s, 2' % (s(S_T1), s(S_H)))
    k('s_lshl_b32 %s, %s, 10' % (s(S_T1), s(S_T1)))
    k('s_add_u32 %s, %s, %s' % (s(S_T0), s(S_T0), s(S_T1)))
    k('s_lshr_b32 %s, %s, 1' % (s(S_T1), s(S_W)))
    k('s_lshl_b32 %s, %s, 7' % (s(S_T1), s(S_T1)))
    k('s_add_u32 %s, %s, %s' % (s(S_T0), s(S_T0), s(S_T1)))
    k('v_add_u32 %s, %s, %s' % (v(GP), s(S_T0), v(GP)))
    its = [(it, hf) for it in its for hf in range(2)]
    def touch(li):
        if li >= len(its) or not k.pdist: return
        it, hf = its[li]
        if it[0] == 'o': return
        k('s_lshl_b32 %s, %s, 2' % (s(S_T0), s(S_W)))
        k('s_xor_b32 %s, %s, %d' % (s(S_T0), s(S_T0), 2 * it[1] + hf))
        k('s_lshl_b32 %s, %s, 18' % (s(S_T0), s(S_T0)))
        k('buffer_load_dword %s, %s, %s, %s offen' % (v(PD), v(GP), s({'q': S_WQ, 'k': S_WK, 'v': S_WV}[it[0]], 4), s(S_T0)))
    NI, NSL = len(its), 9
    def issue(li):
        it, hf = its[li]; slot = li % NSL
        for i in range(4):
            if it[0] == 'o':
                srdn, ga = S_WO, GO
                if i == 0:
                    k('s_xor_b32 %s, %s, %d' % (s(S_T0), s(S_W), 2 * it[2] + hf))
                    k('s_lshl_b32 %s, %s, 15' % (s(S_T0), s(S_T0)))
                    k('s_add_u32 %s, %s, %d' % (s(S_T0), s(S_T0), it[1] * 128))
                else:
                    k('s_add_u32 %s, %s, %d' % (s(S_T0), s(S_T0), 8 * 1024))
            else:
                srdn, ga = {'q': S_WQ, 'k': S_WK, 'v': S_WV}[it[0]], (GQ1 if i & 1 else GQ)
                if i == 0:
                    k('s_lshl_b32 %s, %s, 2' % (s(S_T0), s(S_W)))
                    k('s_xor_b32 %s, %s, %d' % (s(S_T0), s(S_T0), 2 * it[1] + hf))
                    k('s_lshl_b32 %s, %s, 18' % (s(S_T0), s(S_T0)))
                else:
                    k('s_add_u32 %s, %s, %d' % (s(S_T0), s(S_T0), 8 * 8192))
            k('s_add_u32 m0, %s, %d' % (s(S_T2), slot * 4096 + i * 1024))
            k('buffer_load_dwordx4 %s, %s, %s offen lds' % (v(ga), s(srdn, 4), s(S_T0)), tag=('wl', li))
    LA = k.lookahead
    for li in range(LA): issue(li)
    k('v_bfe_u32 %s, %s, 5, 1' % (v(u), v(LANE)))
    k('v_lshlrev_b32 %s, 4, %s' % (v(TRQ), v(u)))
    k('v_lshlrev_b32 %s, 2, %s' % (v(TRO), v(u)))
    k('v_bfe_u32 %s, %s, 4, 1' % (v(u), v(LANE)))
    k('v_lshl_add_u32 %s, %s, 2, %s' % (v(TRQ), v(u), v(TRQ)))
    k('v_lshl_add_u32 %s, %s, 4, %s' % (v(TRO), v(u), v(TRO)))
    k('v_bfe_u32 %s, %s, 3, 1' % (v(u), v(LANE)))
    k('v_lshl_add_u32 %s, %s, 3, %s' % (v(TRQ), v(u), v(TRQ)))
    k('v_bfe_u32 %s, %s, 2, 1' % (v(u), v(LANE)))
    k('v_add_u32 %s, %s, %s' % (v(TRQ), v(u), v(TRQ)))
    k('v_bfe_u32 %s, %s, 2, 2' % (v(u), v(LANE)))
    k('v_add_u32 %s, %s, %s' % (v(TRO), v(TRO), v(u)))
    k('v_and_b32 %s, 3, %s' % (v(u), v(LANE)))
    for R in (TRQ, TRO):
        k('v_lshlrev_b32 %s, 7, %s' % (v(R), v(R)))
        k('v_lshl_add_u32 %s, %s, 3, %s' % (v(R), v(u), v(R)))
    k('v_add_u32 %s, %s, %s' % (v(TRO), s(S_T2), v(TRO)))
    k('s_and_b32 %s, %s, 1' % (s(S_T0), s(S_W)))
    k('s_lshl_b32 %s, %s, 6' % (s(S_T0), s(S_T0)))
    k('v_add_u32 %s, %s, %s' % (v(TRQ), s(S_T0), v(TRQ)))
    k('v_bfe_u32 %s, %s, 4, 1' % (v(u), v(LANE)))
    k('v_lshlrev_b32 %s, 5, %s' % (v(u), v(u)))
    k('v_xor_b32 %s, %s, %s' % (v(TRQ), v(u), v(TRQ)))
    k('v_bfe_u32 %s, %s, 3, 1' % (v(u), v(LANE)))
    k('v_lshlrev_b32 %s, 6, %s' % (v(u), v(u)))
    k('v_xor_b32 %s, %s, %s' % (v(TRQ), v(u), v(TRQ)))
    k('s_xor_b32 %s, %s, 1' % (s(S_T0), s(S_W)))
    k('s_mul_i32 %s, %s, %d' % (s(S_T0), s(S_T0), WSTRIDE))
    k('s_add_u32 %s, %s, %d' % (s(S_T0), s(S_T0), L_WS))
    k('v_add_u32 %s, %s, %s' % (v(TRP), s(S_T0), v(TRQ)))
    k('v_add_u32 %s, %s, %s' % (v(TRQ), s(S_T2), v(TRQ)))
    k('v_xor_b32 %s, 32, %s' % (v(TRQ1), v(TRQ)))
    k('v_xor_b32 %s, 32, %s' % (v(TRP1), v(TRP)))
    k('v_lshlrev_b32 %s, 4, %s' % (v(LW), v(LANE)))
    k('v_add_u32 %s, %s, %s' % (v(LW), s(S_T2), v(LW)))
    if after_issue: after_issue()
    freepark = [24, 40, 88, 96, 104, 112, 120, 128, 136, 72, 80, 8, 16]
    reserved = []
    if k.wolast:
        reserved = [LOC[('o', 3, 0)][1], LOC[('o', 3, 1)][1], LOC[('o', 3, 2)][1], LOC[('o', 2, 2)][1], LOC[('o', 2, 3)][1]]
        freepark = reserved + [24, 40, 88, 96, 104, 112, 120, 128, 136, 72, 80]
    parked = []; building = {}
    homes = {}
    freehome = []
    def target(op):
        loc = LOC[op]
        if loc[0] != 's':
            assert loc[0] == 'a' or all(p != loc[1] for _, p in parked), ('parked in', op)
            return loc
        if op not in building: building[op] = freepark.pop(0)
        return ('v', building[op])
    def done(op):
        if op in building: parked.append((op, building.pop(op)))
    def dump():
        any_ = False
        while parked and freehome:
            op, p = parked.pop(0); h_ = freehome.pop(0); homes[op] = h_
            k('ds_write_b128 %s, %s offset:%d' % (v(LW), v(p, 4), h_))
            k('ds_write_b128 %s, %s offset:%d' % (v(LW), v(p + 4, 4), h_ + 1024))
            if p not in reserved: freepark.append(p)
    def release(li):
        if li + NSL >= NI: freehome.extend([(li % NSL) * 4096, (li % NSL) * 4096 + 2048])
    def ahead(li):
        if li + LA < NI: issue(li + LA)
        touch(li + k.pdist)
    for li in range(NI):
        it, hf = its[li]; slot = li % NSL
        k.wait_vm(('wl', li))
        if it[0] != 'o':
            k('s_barrier')
            if li and its[li - 1][0][0] != 'o': release(li - 1)
            fin = []
            for (kap, ar) in ((it[1], (TRQ, TRQ1)), (it[1] + 2, (TRP, TRP1))):
                for t in range(2):
                    loc = target((it[0], kap, t))
                    for Q in range(2):
                        k('ds_read_b64_tr_b16 %s, %s offset:%d' % (dst(loc, 4 * hf + 2 * Q, 2), v(ar[t]), slot * 4096 + 2 * Q * 128))
                    if hf: fin.append((it[0], kap, t))
            ahead(li)
            dump()
            k('s_waitcnt lgkmcnt(0)')
            for o_ in fin: done(o_)
        else:
            if li and its[li - 1][0][0] != 'o':
                k('s_barrier'); release(li - 1)
            for aa in range(2):
                for H in range(2):
                    for tau in range(2):
                        k('ds_read_b64_tr_b16 %s, %s offset:%d' % (v(RAW + 8 * aa + 4 * H + 2 * tau, 2), v(TRO), slot * 4096 + 8 * H * 128 + 64 * aa + 32 * tau))
            ahead(li)
            dump()
            k('s_waitcnt lgkmcnt(0)')
            release(li)
            for aa in range(2):
                op = ('o', 2 * it[1] + aa, 2 * it[2] + hf)
                loc = target(op)
                mv = 'v_accvgpr_write_b32' if loc[0] == 'a' else 'v_mov_b32'
                for H in range(2):
                    for tau in range(2):
                        src = RAW + 8 * aa + 4 * H + 2 * tau
                        k('%s %s, %s' % (mv, dst(loc, 4 * H + tau, 1), v(src)))
                        k('%s %s, %s' % (mv, dst(loc, 4 * H + tau + 2, 1), v(src + 1)))
                done(op)
        if li in hooks: hooks[li]()
        if getattr(k, 'ltrace', 0):
            k.raw('  s_memtime s[4:5]\n  s_waitcnt lgkmcnt(0)\n  s_sub_u32 s4, s4, s100\n  v_writelane_b32 v53, s4, %d' % li)
    if its[NI - 1][0][0] != 'o':
        k('s_barrier')
        release(NI - 1)
    dump()
    k('s_waitcnt lgkmcnt(0)')
    assert not parked and len(homes) == NS
    return homes

def chain(k, nsteps=64, prof=False, dump=False, opt={}):
    LOC = op_locs()
    LANE = 0
    def early():
        if hasattr(k, 'hook_loading'): k.hook_loading()
        k('v_and_b32 %s, 7, %s' % (v(56), v(LANE)))
        k('v_lshlrev_b32 %s, 10, %s' % (v(57), v(56)))
        k('v_lshrrev_b32 %s, 4, %s' % (v(56), v(LANE)))
        k('v_lshl_add_u32 %s, %s, 5, %s' % (v(57), v(56), v(57)))
        k('v_bfe_u32 %s, %s, 3, 1' % (v(56), v(LANE)))
        k('v_lshl_add_u32 %s, %s, 4, %s' % (v(57), v(56), v(57)))
        k('s_lshl_b32 %s, %s, 8' % (s(S_T0), s(S_W)))
        for k2 in range(2):
            k('buffer_load_dwordx4 %s, %s, %s, %s offen offset:%d' % (v(32 + 4 * k2, 4), v(57), s(S_M0, 4), s(S_T0), k2 * 128))
        k('s_lshl_b32 %s, %s, 14' % (s(S_KV), s(S_H)))
        k('s_lshl_b32 %s, %s, 12' % (s(S_T0), s(S_W)))
        k('s_add_u32 %s, %s, %s' % (s(S_KV), s(S_KV), s(S_T0)))
        k('s_mov_b32 %s, 0' % s(S_STEP))
    def kvload():
        k('v_lshlrev_b32 %s, 4, %s' % (v(7), v(LANE)))
        for i in range(4):
            k('buffer_load_dwordx4 %s, %s, %s, %s offen offset:%d sc1' % (v(KVC + 4 * i, 4), v(7), s(S_WS, 4), s(S_KV), 1024 * i))
    hooks = dict(getattr(k, 'load_hooks', {}))
    h13 = hooks.get(28)
    hooks[28] = lambda: ((h13() if h13 else None), kvload())
    k.ltrace = opt.get('ltrace', 0); k.lookahead = opt.get('la', 4); k.pdist = opt.get('pd', 0); k.wolast = opt.get('wolast', 0)
    assert k.lookahead <= 7
    homes = loader(k, LANE, LOC, early, hooks)
    if prof: k.raw('  s_memtime %s' % s(S_TS + 28, 2))
    if opt.get('ltrace'):
        k('s_lshl_b32 s55, s40, 2\ns_add_u32 s55, s55, s41\ns_lshl_b32 s55, s55, 8\ns_add_u32 s55, s55, 0x%x' % (DBG + 0x1a0000))
        k('v_lshlrev_b32 v52, 2, v0')
        k('buffer_store_dword v53, v52, s[8:11], s55 offen')
    if opt.get('loadonly'): k('s_branch L_chain_exit')
    k('v_mov_b32 %s, %s' % (v(STRM), v(6)))
    k('v_lshlrev_b32 %s, 4, %s' % (v(L16), v(LANE)))
    k('v_mov_b32 %s, %s' % (v(X3), v(55)))
    k.c('===== chain: initial state =====')
    consts(k, LANE)
    k('s_mul_i32 %s, %s, %d' % (s(S_INR0), s(S_H), JS))
    k('s_lshl_b32 %s, %s, 11' % (s(S_T0), s(S_W)))
    k('s_add_u32 %s, %s, %s' % (s(S_INR0), s(S_INR0), s(S_T0)))
    k('s_add_u32 %s, %s, 0x%x' % (s(S_INR0), s(S_INR0), INB))
    k('s_mov_b32 %s, 0x%x' % (s(S_DEF), SCRATCH))
    k('s_mov_b32 %s, 0x%x' % (s(S_KVM), MEMX + 8192))
    k('s_mov_b32 %s, 0' % s(S_TAG))
    for i in range(8):
        k('v_min_u32 %s, -2, %s' % (v(MEMF + i), v(32 + i)))
    k('ds_write_b128 %s, %s offset:%d' % (v(L16W), v(MEMF, 4), L_MEM))
    k('ds_write_b128 %s, %s offset:%d' % (v(L16W), v(MEMF + 4, 4), L_MEM + 1024))
    k('s_mov_b32 %s, 0x%x' % (s(S_T0), H2 + 0x6000))
    k('buffer_store_dwordx4 %s, %s, %s, %s offen offset:1024' % (v(MEMF + 4, 4), v(L16W), s(S_WS, 4), s(S_T0)))
    k('s_waitcnt vmcnt(0)')
    k('s_cmp_eq_u32 %s, 0' % s(S_H))
    k('s_cselect_b32 %s, 0x%x, %s' % (s(S_T0), MEMX, s(S_DEF)))
    k('buffer_store_dwordx4 %s, %s, %s, %s offen sc1' % (v(MEMF, 4), v(L16W), s(S_WS, 4), s(S_T0)))
    k('buffer_store_dwordx4 %s, %s, %s, %s offen offset:1024 sc1' % (v(MEMF + 4, 4), v(L16W), s(S_WS, 4), s(S_T0)))
    k('s_add_u32 %s, %s, 0x80000' % (s(S_KV), s(S_KV)))
    k('s_mul_i32 %s, %s, %d' % (s(S_INW0), s(S_W), 8 * JS))
    k('s_lshl_b32 %s, %s, 6' % (s(S_T0), s(S_H)))
    k('s_add_u32 %s, %s, %s' % (s(S_INW0), s(S_INW0), s(S_T0)))
    k('s_add_u32 %s, %s, 0x%x' % (s(S_INW0), s(S_INW0), INB))
    k('s_add_u32 %s, %s, 0x1000' % (s(S_INW1), s(S_INW0)))
    k('s_lshl_b32 %s, %s, 11' % (s(S_T0), s(S_W)))
    k('s_mov_b32 %s, 0x%x' % (s(S_H2W), H2))
    k('s_add_u32 m0, %s, %d' % (s(S_T0), L_MEM))
    k('s_add_u32 %s, %s, 0x%x' % (s(S_H2R), s(S_T0), H2 + 0x6000))
    k('s_mov_b32 %s, 0x%x' % (s(S_H2RST), H2 + 0x4000))
    cc = (128 ** -0.5) * math.log2(math.e)
    k('s_mov_b32 %s, 0x%x' % (s(S_C), f2u(cc)))
    k('s_mov_b32 %s, 0x%x' % (s(S_C + 1), f2u(cc)))
    pend = [(i, hf) for i in range(3) for hf in range(2)]
    def RF(n=1):
        for _ in range(n):
            if pend:
                i, hf = pend.pop(0)
                k('ds_read_b128 %s, %s offset:%d' % (v(SBUF + 8 * (i % 3) + 4 * hf, 4), v(STRM), homes[STREAM[i]] + 1024 * hf), tag=('st', i))
    RF(6)
    for i in range(0, 24, 2): k('v_mov_b64 %s, 0' % v(ACCQK + i, 2))
    if prof:
        for i in range(8): k('s_mov_b32 %s, 0' % s(S_TS + 16 + i))
        k.raw('  s_memtime %s' % s(S_TS + 24, 2))
    k('s_waitcnt lgkmcnt(0)')

    used = []
    def smf(op, acc, afrag):
        loc = LOC[op]
        if loc[0] == 's':
            assert loc[1] == len(used), (op, loc, used)
            used.append(loc[1])
            assert all(p[0] != loc[1] for p in pend), ('refill not issued', op)
            k.wait_lg(('st', loc[1]))
            opnd = v(SBUF + 8 * (loc[1] % 3), 8)
        else:
            opnd = dst(loc, 0, 8)
        k('v_smfmac_f32_16x16x64_bf16 %s, %s, %s, %s' % (v(acc, 4), v(afrag, 4), opnd, v(IDX)))
        if loc[0] == 's':
            pend.append(((loc[1] + 3) % NS, 0)); pend.append(((loc[1] + 3) % NS, 1))
    ACC = {'q': ACCQK, 'k': ACCQK + 8, 'v': ACCV}
    def S(m, kap, j):
        if kap >= 2: k.wait_lg(('mf', kap))
        smf((m, kap, j), ACC[m] + 4 * j, MEMF + 4 * kap)
    k.points = []
    def pt(name):
        k.points.append(name)
        if opt.get('pt') == name:
            k.raw('  s_memtime %s' % s(S_TS + 2, 2))
    def cvt(d, x, y): k('v_cvt_pk_bf16_f32 %s, %s, %s' % (v(d), v(x), v(y)))
    def mf16(d, A, B, C=None): k('v_mfma_f32_16x16x16_bf16 %s, %s, %s, %s' % (v(d, 4), v(A, 2), v(B, 2), '0' if C is None else v(C, 4)))
    def mf32(d, A, B, C=None): k('v_mfma_f32_16x16x32_bf16 %s, %s, %s, %s' % (v(d, 4), v(A, 4), v(B, 4), '0' if C is None else v(C, 4)))
    def pkadd(d, x, y): k('v_pk_add_f32 %s, %s, %s' % (v(d, 2), v(x, 2), v(y, 2)))
    def pkfma_c(d, x, m): k('v_pk_fma_f32 %s, %s, %s, %s op_sel_hi:[1,1,0] neg_lo:[0,0,1] neg_hi:[0,0,1]' % (v(d, 2), v(x, 2), s(S_C, 2), v(m, 2)))
    def pkmul_b(d, x, m): k('v_pk_mul_f32 %s, %s, %s op_sel_hi:[1,0]' % (v(d, 2), v(x, 2), v(m, 2)))
    def add(d, x, y): k('v_add_f32 %s, %s, %s' % (v(d), v(x), v(y)))
    def mov64(d, x): k('v_mov_b64 %s, %s' % (v(d, 2), x))
    def BAR(tag): k.wait_lg(tag); k('s_barrier')
    def nops(n):
        while n > 0:
            k('s_nop %d' % (min(n, 16) - 1)); n -= 16
    ROR8 = 'row_ror:8 row_mask:0xf bank_mask:0xf'
    FAIL = 'L_fail'; DONE = 'L_chain_done'; BODY = 'L_chain_body'; BODY0 = 'L_chain_body0'
    RETRY2 = 'L_retry2'; RETRY1 = 'L_retry1'; RETRY3 = 'L_retry3'; RET3 = 'L_ret3'
    OFIRST = opt.get('o1', 0)
    D1 = opt.get('d1', 2); D2 = opt.get('d2', 2)
    HA, HB = T1 + 7, OR_
    ORR = [X0, X1, X2]
    H1R = MEMF + 8
    VM = KVC + 4; KA = T1 + 4
    def ldE(): k('buffer_load_dwordx4 %s, %s, %s offen sc1 lds' % (v(L16), s(S_WS, 4), s(S_H2R)), tag='pe')
    def ldO(): k('buffer_load_dwordx4 %s, %s, %s offen offset:1024 sc1 lds' % (v(L16), s(S_WS, 4), s(S_H2R)), tag='po')
    def own(k2): k('ds_read_b128 %s, %s offset:%d' % (v(MEMF + 4 * k2, 4), v(L16W), L_MEM + 1024 * k2), tag=('own', k2))
    def chk4(R):
        k('v_max3_u32 %s, %s, %s, %s' % (v(HA), v(R), v(R + 1), v(R + 2)))
        k('v_max_u32 %s, %s, %s' % (v(HA), v(HA), v(R + 3)))
        k('v_cmp_eq_u32 vcc, -1, %s' % v(HA))
    def R(kap):
        p = kap >> 1; k2 = kap & 1
        k('ds_read_b128 %s, %s offset:%d' % (v(MEMF + 4 * kap, 4), v(MEMR + p - 1), L_MEM + 1024 * k2), tag=('mf', kap))
    def pf(i): k('buffer_load_dwordx4 %s, %s, %s, %s offen offset:%d sc1' % (v(KVN + 4 * i, 4), v(L16), s(S_WS, 4), s(S_KV), 1024 * i))
    def stk(so): k('buffer_store_dwordx4 %s, %s, %s, %s offen sc1' % (v(KA, 4), v(L16), s(S_WS, 4), s(so)))
    def stv(so): k('buffer_store_dwordx4 %s, %s, %s, %s offen offset:1024 sc1' % (v(VM, 4), v(L16), s(S_WS, 4), s(so)))
    def sel(d, x): k('v_mov_b32_dpp %s, %s quad_perm:[0,1,2,3] row_mask:0xf bank_mask:0xc' % (v(d), v(x)))

    k('s_branch %s' % BODY0)
    k.raw('.p2align 6')
    for i in range(opt.get('shift', 0)): k.raw('  s_nop 0')
    k.label(RETRY2)
    k('s_mov_b64 exec, vcc')
    ldE()
    if prof: k('s_add_u32 %s, %s, 1' % (s(S_TS + 23), s(S_TS + 23)))
    k('s_sub_u32 %s, %s, 1' % (s(S_SPIN), s(S_SPIN)))
    k('s_cbranch_scc1 %s' % FAIL)
    own(0)
    k.label('L_ew')
    k('s_waitcnt lgkmcnt(1)')
    chk4(MEMF)
    k('s_cbranch_vccnz %s' % RETRY2)
    k('s_mov_b64 exec, -1')
    k.label(BODY)
    if opt.get('trace') == 2: k.raw('  s_memtime %s' % s(S_TS + 8, 2))
    k.label(BODY0)
    if opt.get('o2', 1) and not opt.get('nohop'): ldO()
    abl = opt.get('abl', [])
    if abl:
        k0 = k._one
        def filt(t, tag):
            if 'vmem' in abl and t.startswith('buffer_'): return
            if 'bar' in abl and t.startswith('s_barrier'): return
            if 'stream' in abl and t.startswith('ds_read_b128') and (', %s ' % v(STRM)) in t: return
            if 'dsw' in abl and t.startswith('ds_write'): return
            if 'dsr' in abl and t.startswith('ds_read'): return
            return k0(t, tag)
        k._one = filt
    k.lg = ['x']; k.vm = []
    if opt.get('pt'): k.raw('  s_memtime %s' % s(S_TS, 2))
    k('s_barrier')
    pt('b1')
    if opt.get('trace') == 2: k.raw('  s_memtime %s' % s(S_TS + 14, 2))
    R(2)
    S('q', 0, 0); R(4); S('q', 0, 1); R(6); S('k', 0, 0); RF(); S('k', 0, 1); RF()
    pt('own0')
    S('q', 2, 0); RF(); S('q', 2, 1); RF(); S('q', 4, 0); RF(); S('q', 4, 1); RF()
    ev = [('q', 6, 0), ('q', 6, 1), ('k', 2, 0), ('k', 2, 1), ('k', 4, 0), ('k', 4, 1), ('k', 6, 0), ('k', 6, 1)]
    no = opt.get('oddat', 4)
    for o_ in ev[:no]: S(*o_); RF()
    k('s_waitcnt vmcnt(%d)' % (opt.get('o2', 1) if OFIRST else 0)); own(1)
    for o_ in ev[no:no + 4]: S(*o_); RF()
    rest = ev[no + 4:]
    assert not rest
    k.wait_lg(('own', 1))
    k('v_max3_u32 %s, %s, %s, %s' % (v(HA), v(MEMF + 4), v(MEMF + 5), v(MEMF + 6)))
    S('v', 0, 0)
    k('v_max_u32 %s, %s, %s' % (v(HA), v(HA), v(MEMF + 7)))
    k('v_cmp_eq_u32 vcc, -1, %s' % v(HA))
    S('v', 0, 1)
    if not opt.get('nohop'): k('s_cbranch_vccnz %s' % RETRY3)
    k.label(RET3)
    k.vm = []
    pt('odd')
    if opt.get('trace'):
        k.raw('  s_memtime %s' % s(S_TS + 4, 2))
        k.raw('  s_memrealtime %s' % s(S_TS + 6, 2))
        k.raw('  s_waitcnt lgkmcnt(0)')
        k('v_mov_b32 %s, %s' % (v(T1), s(S_TS + 4)))
        k('v_mov_b32 %s, %s' % (v(T1 + 1), s(S_TS + 6)))
        k('s_lshl_b32 %s, %s, 2' % (s(S_T0), s(S_H)))
        k('s_add_u32 %s, %s, %s' % (s(S_T0), s(S_T0), s(S_W)))
        k('s_lshl_b32 %s, %s, 6' % (s(S_T0), s(S_T0)))
        k('s_add_u32 %s, %s, %s' % (s(S_T0), s(S_T0), s(S_STEP)))
        k('s_lshl_b32 %s, %s, 3' % (s(S_T0), s(S_T0)))
        k('s_add_u32 %s, %s, 0x%x' % (s(S_T0), s(S_T0), DBG + 0x120000))
        k('v_mov_b32 %s, 0' % v(T1 + 2))
        k('s_mov_b64 exec, 1')
        k('buffer_store_dwordx2 %s, %s, %s, %s offen' % (v(T1, 2), v(T1 + 2), s(S_WS, 4), s(S_T0)))
        if opt.get('trace') == 2:
            for i in range(4): k('v_mov_b32 %s, %s' % (v(T1 + 4 + i), s(S_TS + 8 + 2 * i)))
            k('s_sub_u32 %s, %s, 0x%x' % (s(S_T0), s(S_T0), DBG + 0x120000))
            k('s_lshl_b32 %s, %s, 1' % (s(S_T0), s(S_T0)))
            k('s_add_u32 %s, %s, 0x%x' % (s(S_T0), s(S_T0), DBG + 0x140000))
            k('buffer_store_dwordx4 %s, %s, %s, %s offen' % (v(T1 + 4, 4), v(T1 + 2), s(S_WS, 4), s(S_T0)))
        k('s_mov_b64 exec, -1')
    if dump:
        k('s_lshl_b32 %s, %s, 13' % (s(S_T0), s(S_STEP)))
        k('s_lshl_b32 %s, %s, 11' % (s(S_T1), s(S_W)))
        k('s_add_u32 %s, %s, %s' % (s(S_T0), s(S_T0), s(S_T1)))
        k('s_add_u32 %s, %s, 0x%x' % (s(S_T0), s(S_T0), DBG))
        k('buffer_store_dwordx4 %s, %s, %s, %s offen' % (v(MEMF, 4), v(L16), s(S_WS, 4), s(S_T0)))
        k('buffer_store_dwordx4 %s, %s, %s, %s offen offset:1024' % (v(MEMF + 4, 4), v(L16), s(S_WS, 4), s(S_T0)))
    k('s_barrier'); R(3)
    pt('b1b')
    S('q', 1, 0); R(5)
    if hasattr(k, 'hook_prefetch'): k.hook_prefetch(0)
    S('q', 1, 1); R(7)
    if hasattr(k, 'hook_prefetch'): k.hook_prefetch(1)
    S('k', 1, 0); pf(0)
    S('k', 1, 1); RF()
    S('q', 3, 0); RF()
    S('q', 3, 1); RF()
    S('q', 5, 0); pf(1)
    S('q', 5, 1); RF()
    S('q', 7, 0); RF()
    S('q', 7, 1); RF()
    pt('Q')
    MXX, TA, PM = MEMF + 0, MEMF + 1, MEMF + 2
    AK = ACCQK + 8
    S('k', 3, 0); pf(2)
    S('k', 3, 1); RF(); cvt(T1, ACCQK, ACCQK + 1)
    S('k', 5, 0); RF(); cvt(T1 + 1, ACCQK + 2, ACCQK + 3)
    S('k', 5, 1); cvt(T1 + 2, ACCQK + 4, ACCQK + 5)
    S('k', 7, 0); pf(3); cvt(T1 + 3, ACCQK + 6, ACCQK + 7)
    S('k', 7, 1); RF()
    pt('K')
    vq = [(2, 0), (1, 0), (3, 0), (1, 1), (3, 1), (4, 0), (5, 0), (5, 1), (7, 0), (7, 1), (2, 1), (4, 1), (6, 0), (6, 1)]
    def V(n=1):
        for _ in range(n):
            kap, j = vq.pop(0)
            S('v', kap, j)
    mf16(ACCQK, T1, SELT); RF()
    k('s_add_u32 %s, %s, 0x80000' % (s(S_KV), s(S_KV)))
    mf16(ACCQK + 4, T1 + 2, SELT)
    k('buffer_store_dword %s, %s, %s, %s offen sc1' % (v(HB), v(ST2), s(S_WS, 4), s(S_DEF)))
    cvt(T1 + 4, AK, AK + 1); cvt(T1 + 5, AK + 2, AK + 3)
    V(1); RF()
    cvt(T1 + 6, AK + 4, AK + 5); cvt(T1 + 7, AK + 6, AK + 7)
    mf16(AK, T1 + 4, SELT); RF()
    cvt(T1, ACCQK, ACCQK + 1); cvt(T1 + 1, ACCQK + 2, ACCQK + 3)
    mf16(AK + 4, T1 + 6, SELT)
    if hasattr(k, 'hook_prefetch'): k.hook_prefetch(2)
    cvt(T1 + 2, ACCQK + 4, ACCQK + 5); cvt(T1 + 3, ACCQK + 6, ACCQK + 7)
    V(1)
    mf32(ACCQK, KVC, T1)
    cvt(T1 + 4, AK, AK + 1); cvt(T1 + 5, AK + 2, AK + 3)
    mf32(ACCQK + 4, KVC + 4, T1)
    cvt(T1 + 6, AK + 4, AK + 5); cvt(T1 + 7, AK + 6, AK + 7)
    V(1); RF()
    mf32(AK, T1 + 4, T1); RF()
    pt('sm')
    for j in range(4): sel(ACCQK + j, ACCQK + 4 + j)
    V(1)
    k('ds_write_b128 %s, %s offset:%d' % (v(L16W), v(ACCQK, 4), L_SX), tag='xw')
    sel(AK, AK + 2); sel(AK + 1, AK + 3)
    V(1)
    k('ds_write_b64 %s, %s' % (v(SMW), v(AK, 2)), tag='sw')
    pt('swr')
    WACC = MEMF + 16; OF = MEMF + 4
    V(1); RF(); V(1); RF(); V(opt.get('vb2', 2))
    BAR('sw')
    pt('b2')
    XSR = [KVC, KVC + 4, ACCQK + 4]
    def XR(p): k('ds_read_b128 %s, %s offset:%d' % (v(XSR[p], 4), v(MEMR + p), L_SX), tag=('xs', p))
    MS = AK; XS = KVC
    XR(0); V(1); XR(1); V(1); XR(2); V(1)
    k('ds_read2_b64 %s, %s offset0:0 offset1:32' % (v(MS, 4), v(SMR)), tag='ms0')
    V(1)
    k('ds_read2_b64 %s, %s offset0:64 offset1:96' % (v(MS + 4, 4), v(SMR)), tag='ms1')
    V(len(vq))
    k.wait_lg(('xs', 0))
    pkadd(XS, XS, ACCQK); pkadd(XS + 2, XS + 2, ACCQK + 2)
    k.wait_lg(('xs', 2))
    pkadd(ACCQK + 4, ACCQK + 4, XS + 4); pkadd(ACCQK + 6, ACCQK + 6, XS + 6)
    pkadd(XS, XS, ACCQK + 4); pkadd(XS + 2, XS + 2, ACCQK + 6)
    k.wait_lg('ms1')
    pkadd(MS, MS, MS + 2); pkadd(MS + 4, MS + 4, MS + 6)
    k('v_max3_f32 %s, %s, %s, %s' % (v(MXX), v(XS), v(XS + 1), v(XS + 2)))
    pkadd(MS, MS, MS + 4)
    pt('sums')
    k('v_max_f32 %s, %s, %s' % (v(MXX), v(MXX), v(XS + 3)))
    k('v_max3_f32 %s, %s, %s, %s' % (v(MXX), v(MXX), v(MS), v(MS + 1)))
    cvt(VM, ACCV, ACCV + 1); cvt(VM + 1, ACCV + 2, ACCV + 3)
    k('v_max_f32_dpp %s, %s, %s %s' % (v(MXX), v(MXX), v(MXX), ROR8))
    k('v_mov_b32 %s, %s' % (v(TA), v(MXX)))
    cvt(VM + 2, ACCV + 4, ACCV + 5); cvt(VM + 3, ACCV + 6, ACCV + 7)
    k('v_permlane16_swap_b32 %s, %s' % (v(MXX), v(TA)))
    k('v_max_f32 %s, %s, %s' % (v(MXX), v(MXX), v(TA)))
    k('v_mov_b32 %s, %s' % (v(TA), v(MXX)))
    mov64(WACC, '0'); mov64(WACC + 2, '0')
    k('v_permlane32_swap_b32 %s, %s' % (v(MXX), v(TA)))
    k('v_max_f32 %s, %s, %s' % (v(MXX), v(MXX), v(TA)))
    k('v_mul_f32 %s, %s, %s' % (v(MXX), s(S_C), v(MXX)))
    pt('max')
    def ex(d): k('v_exp_f32 %s, %s' % (v(d), v(d)))
    pkfma_c(XS, XS, MXX); pkfma_c(XS + 2, XS + 2, MXX); pkfma_c(MS, MS, MXX)
    for j in range(4): ex(XS + j)
    PX = T1
    ex(MS)
    cvt(PX, XS, XS + 1); cvt(PX + 1, XS + 2, XS + 3)
    ex(MS + 1)
    for j in range(2): k('v_mov_b32_dpp %s, %s %s' % (v(PX + 2 + j), v(PX + j), ROR8))
    cvt(PM, MS, MS + 1)
    pkadd(XS, XS, XS + 2)
    O0, O1 = ACCQK, ACCQK + 4
    LS = MXX
    mf32(O0, KVC + 8, PX)
    k('v_mov_b32_dpp %s, %s %s' % (v(PM + 1), v(PM), ROR8))
    add(MS, MS, MS + 1)
    mf32(O1, KVC + 12, PX)
    add(XS, XS, XS + 1)
    k('v_fma_f32 %s, %s, 0.5, %s' % (v(LS), v(MS), v(XS)))
    mf16(O0, VM, PM, O0)
    k('v_add_f32_dpp %s, %s, %s %s' % (v(LS), v(LS), v(LS), ROR8))
    k('v_mov_b32 %s, %s' % (v(TA), v(LS)))
    mf16(O1, VM + 2, PM, O1)
    pt('pv')
    k('v_permlane16_swap_b32 %s, %s' % (v(LS), v(TA)))
    add(LS, LS, TA)
    k('v_mov_b32 %s, %s' % (v(TA), v(LS)))
    mov64(WACC + 4, '0'); mov64(WACC + 6, '0')
    k('v_permlane32_swap_b32 %s, %s' % (v(LS), v(TA)))
    add(LS, LS, TA)
    k('v_rcp_f32 %s, %s' % (v(LS), v(LS)))
    mov64(WACC + 8, '0')
    pkmul_b(O0, O0, LS); pkmul_b(O0 + 2, O0 + 2, LS); pkmul_b(O1, O1, LS); pkmul_b(O1 + 2, O1 + 2, LS)
    for i in range(4): cvt(T1 + i, O0 + 2 * i, O0 + 2 * i + 1)
    k('ds_write_b128 %s, %s offset:%d' % (v(OW), v(T1, 4), L_OX), tag='ow')
    pt('owr')
    for j in range(4): k('v_mov_b32_dpp %s, %s row_ror:8 row_mask:0xf bank_mask:0xc' % (v(T1 + j), v(T1 + j)))
    for i in range(10, 16, 2): mov64(WACC + i, '0')
    for i in range(0, 8, 2): mov64(ACCV + i, '0')
    def WO(a_, kap):
        if kap: k.wait_lg(('of', kap))
        smf(('o', a_, kap), WACC + 4 * a_, T1 if kap == 0 else OF + 4 * (kap - 1))
    def OFR(kap): k('ds_read_b128 %s, %s offset:%d' % (v(OF + 4 * (kap - 1), 4), v(ORR[kap - 1]), L_OX), tag=('of', kap))
    k('s_mov_b32 %s, %s' % (s(S_DEF), s(S_KVM)))
    k('s_add_u32 %s, %s, 0x2000' % (s(S_KVM), s(S_KVM)))
    WO(0, 0); BAR('ow'); OFR(1)
    pt('b3')
    WO(1, 0); OFR(2)
    WO(2, 0); OFR(3)
    WO(3, 0); RF()
    PK = ACCQK
    def tag(r): k('v_bfi_b32 %s, 1, %s, %s' % (v(r), s(S_TAG), v(r)))
    def pack(a_):
        cvt(PK + 2 * a_, WACC + 4 * a_, WACC + 4 * a_ + 1); cvt(PK + 2 * a_ + 1, WACC + 4 * a_ + 2, WACC + 4 * a_ + 3); tag(PK + 2 * a_)
    def sto(a_):
        k('buffer_store_dwordx2 %s, %s, %s, %s offen offset:%d' % (v(PK + 2 * a_, 2), v(ST1), s(S_WS, 4), s(S_INW0 if a_ < 2 else S_INW1), 2048 * (a_ & 1)))
    RA = MEMF + 16
    WO(0, 1); RF(); mov64(ACCQK + 8, '0'); WO(0, 2); mov64(ACCQK + 10, '0'); WO(0, 3); mov64(ACCQK + 12, '0')
    WO(1, 1); mov64(ACCQK + 14, '0'); WO(1, 2); RF(); pack(0); WO(1, 3); sto(0)
    pt('st0')
    WO(2, 1); RF(); mov64(RA, '0'); WO(2, 2); RF(); pack(1); WO(2, 3); sto(1)
    pt('st1')
    WO(3, 1); RF(); mov64(RA + 2, '0'); WO(3, 2); pack(2); WO(3, 3); sto(2)
    RF(2)
    k('s_mov_b32 %s, %d' % (s(S_SPIN), SPIN_MAX))
    k('s_add_u32 %s, %s, 0x2000' % (s(S_H2R), s(S_H2R)))
    k('s_and_b32 %s, %s, 0x%x' % (s(S_H2R), s(S_H2R), 0xffff7fff))
    k('s_add_u32 %s, %s, 1' % (s(S_STEP), s(S_STEP)))
    mov64(PK, '0'); mov64(PK + 2, '0')
    pack(3); sto(3)
    pt('st2')
    if opt.get('trace') == 2: k.raw('  s_memtime %s' % s(S_TS + 10, 2))
    assert len(used) == NS and not pend
    k.c('--- H1')
    HSET = [MEMF + 8, MEMF + 20, MEMF + 0]
    def round1(i):
        k('buffer_load_dwordx4 %s, %s, %s, %s offen sc1' % (v(HSET[i], 4), v(L16), s(S_WS, 4), s(S_INR0)))
        k('buffer_load_dwordx4 %s, %s, %s, %s offen offset:1024 sc1' % (v(HSET[i] + 4, 4), v(L16), s(S_WS, 4), s(S_INR0)))
    def h1chk(i):
        Rg = HSET[i]
        k('s_waitcnt vmcnt(%d)' % (2 * (D1 - 1)))
        k('v_smfmac_f32_16x16x64_bf16 %s, %s, %s, %s' % (v(RA, 4), v(SELR, 4), v(Rg, 8), v(IDXR)))
        k('v_bitop3_b32 %s, %s, %s, %s bitop3:0x7e' % (v(HA), v(Rg), v(Rg + 2), s(S_TAG)))
        k('v_bitop3_b32 %s, %s, %s, %s bitop3:0x7e' % (v(HA - 1), v(Rg + 4), v(Rg + 6), s(S_TAG)))
        k('v_bitop3_b32 %s, %s, %s, 1 bitop3:0xa8' % (v(HA), v(HA), v(HA - 1)))
        k('v_cmp_ne_u32 vcc, 0, %s' % v(HA))
        k('v_mov_b32 %s, -1' % v(HA))
    def ptacc():
        if opt.get('pt'):
            k.raw('  s_waitcnt lgkmcnt(0)')
            k('s_sub_u32 %s, %s, %s' % (s(S_T0), s(S_TS + 2), s(S_TS)))
            k('s_add_u32 %s, %s, %s' % (s(S_TS + 16), s(S_TS + 16), s(S_T0)))
    if opt.get('nohop'):
        if abl: k._one = k0
        ptacc()
        mov64(PK + 4, '0'); mov64(PK + 6, '0')
        k('s_waitcnt vmcnt(0) lgkmcnt(0)')
        k('s_barrier')
        k('s_cmp_eq_u32 %s, %d' % (s(S_STEP), nsteps - 1))
        k('s_cbranch_scc1 %s' % DONE)
        k('s_branch %s' % BODY0)
    k('s_cmp_lt_u32 %s, 2' % s(S_W))
    k('s_cbranch_scc1 L_early')
    nops(opt.get('late1', 40))
    k.label('L_early')
    mov64(PK + 4, '0'); mov64(PK + 6, '0')
    nops(opt.get('pre1', 32))
    for i in range(D1):
        round1(i)
        if i < D1 - 1: nops(opt.get('gap1', 20))
    k('s_cmp_eq_u32 %s, %d' % (s(S_STEP), nsteps - 1))
    k.label('L_h1w')
    h1chk(0)
    k('s_cbranch_vccnz L_h1r0')
    k.label('L_h1ok')
    mov64(KVC, v(KVN, 2))
    for rr in ('row_ror:4', 'row_ror:8'):
        for j in range(2):
            k('v_add_f32_dpp %s, %s, %s %s row_mask:0xf bank_mask:0xf' % (v(RA + j), v(RA + j), v(RA + j), rr))
    cvt(HB, RA, RA + 1)
    k('v_min_u32 %s, -2, %s' % (v(HB), v(HB)))
    k('s_cbranch_scc1 %s' % DONE)
    k('buffer_store_dword %s, %s, %s, %s offen' % (v(HB), v(ST2), s(S_WS, 4), s(S_H2W)))
    k('buffer_store_dword %s, %s, %s, %s offen' % (v(HA), v(ST2), s(S_WS, 4), s(S_H2RST)))
    pt('p1ok')
    if opt.get('trace') == 2: k.raw('  s_memtime %s' % s(S_TS + 12, 2))
    def hk():
        for i in range(2, 16, 2): mov64(KVC + i, v(KVN + i, 2))
        ptacc()
        k('s_xor_b32 %s, %s, 1' % (s(S_TAG), s(S_TAG)))
        for r in (S_H2W, S_H2RST):
            k('s_add_u32 %s, %s, 0x2000' % (s(r), s(r)))
            k('s_and_b32 %s, %s, 0x%x' % (s(r), s(r), 0xffff7fff))
        k('s_mov_b32 %s, %d' % (s(S_SPIN), SPIN_MAX))
        k('s_waitcnt lgkmcnt(0)')
    k('s_cmp_lt_u32 %s, 2' % s(S_W))
    k('s_cbranch_scc1 L_early2')
    k.label('L_late2')
    nops(opt.get('pre2', 0))
    NE = 2
    ldE(); hk(); nops(opt.get('gapa', 14))
    ldE()
    if OFIRST: nops(opt.get('gap2', 24))
    if OFIRST: ldO()
    k('s_waitcnt vmcnt(%d)' % (NE - 1 + OFIRST))
    own(0)
    nops(opt.get('rd2', 4))
    own(0)
    k('s_branch L_ew')
    for i in range(D1):
        k.label('L_h1r%d' % i)
        k('s_mov_b64 exec, vcc')
        round1(i)
        k('s_mov_b64 exec, -1')
        if prof: k('s_add_u32 %s, %s, 0x10000' % (s(S_TS + 23), s(S_TS + 23)))
        k('s_sub_u32 %s, %s, 1' % (s(S_SPIN), s(S_SPIN)))
        k('s_cbranch_scc1 %s' % FAIL)
        k('s_cmp_eq_u32 %s, %d' % (s(S_STEP), nsteps - 1))
        mov64(RA, '0'); mov64(RA + 2, '0')
        if i == D1 - 1:
            k('s_branch L_h1w')
        else:
            h1chk(i + 1)
            k('s_cbranch_vccz L_h1ok')
    k.label('L_early2')
    nops(opt.get('early2', 28))
    k('s_branch L_late2')
    k.label(RETRY3)
    k('s_mov_b64 exec, vcc')
    ldO()
    if prof: k('s_add_u32 %s, %s, 0x100' % (s(S_TS + 22), s(S_TS + 22)))
    k('s_sub_u32 %s, %s, 1' % (s(S_SPIN), s(S_SPIN)))
    k('s_cbranch_scc1 %s' % FAIL)
    k('s_waitcnt vmcnt(1)')
    own(1)
    k('s_waitcnt lgkmcnt(0)')
    chk4(MEMF + 4)
    k('s_cbranch_vccnz %s' % RETRY3)
    k('s_mov_b64 exec, -1')
    k('s_branch %s' % RET3)
    k.label(DONE)
    k('buffer_store_dword %s, %s, %s, %s offen sc1' % (v(HB), v(ST2), s(S_WS, 4), s(S_DEF)))
    k.label('L_chain_exit')
```

```python
import re

_REG = re.compile(r'^(-|\|)?(v|a|s)(\d+)\|?$')
_RNG = re.compile(r'^(v|a|s)\[(\d+):(\d+)\]$')
TRANS = ('v_exp_f32', 'v_log_f32', 'v_rcp_f32', 'v_rsq_f32', 'v_sqrt_f32', 'v_sin_f32', 'v_cos_f32', 'v_rcp_iflag_f32')

def regs_of(op):
    op = op.strip()
    if op.startswith('abs(') and op.endswith(')'):
        op = op[4:-1]
    if op.startswith('-abs(') and op.endswith(')'):
        op = op[5:-1]
    m = _REG.match(op)
    if m:
        return [(m.group(2), int(m.group(3)))]
    m = _RNG.match(op)
    if m:
        return [(m.group(1), i) for i in range(int(m.group(2)), int(m.group(3)) + 1)]
    if op in ('vcc', 'vcc_lo', 'vcc_hi'):
        return [('s', 'vcc')]
    if op in ('exec', 'exec_lo', 'exec_hi'):
        return [('s', 'exec')]
    if op == 'm0':
        return [('s', 'm0')]
    return []

def mfma_passes(opc):
    if '32x32' in opc:
        return 8
    return 4

class Ins:
    __slots__ = ('text', 'opc', 'w', 'r', 'kind', 'ws', 'srcc', 'ab', 'dpp', 'passes', 'wide', 't', 'tc')

def parse(text):
    t = text.split(';')[0].strip()
    parts = t.split(None, 1)
    opc = parts[0]
    rest = parts[1] if len(parts) > 1 else ''
    ops = [o.strip() for o in rest.split(',')] if rest else []
    mods = ''
    mm = re.search(r'\b(quad_perm|op_sel|op_sel_hi|neg_lo|neg_hi):\[', rest)
    if mm:
        i = mm.start()
        mods = rest[i:]
        ops = [o.strip() for o in rest[:i].split(',')]
    if ops:
        last = ops[-1].split(None, 1)
        ops[-1] = last[0] if last else ''
        if len(last) > 1:
            mods = last[1] + ' ' + mods
    I = Ins(); I.text = text; I.opc = opc; I.w = []; I.r = []; I.ws = 1; I.srcc = []; I.ab = []; I.dpp = False; I.passes = 0; I.wide = False
    R = [regs_of(o) for o in ops]
    if opc == 's_nop':
        I.kind = 'nop'; I.ws = int(ops[0], 0) + 1
    elif opc.startswith('v_mfma') or opc.startswith('v_smfmac'):
        I.kind = 'mfma'; I.passes = mfma_passes(opc)
        I.w = R[0]
        if opc.startswith('v_smfmac'):
            I.srcc = R[0]; I.ab = R[1] + R[2] + R[3]
        else:
            I.srcc = R[3]; I.ab = R[1] + R[2]
        I.r = I.srcc + I.ab
    elif opc.startswith('v_'):
        I.kind = 'valu'
        if opc.startswith('v_permlane') and 'swap' in opc:
            I.w = R[0] + R[1]; I.r = R[0] + R[1]
        elif opc.startswith('v_cmpx'):
            I.w = R[0] + [('s', 'exec')]; I.r = sum(R[1:], [])
        elif opc in ('v_add_co_u32', 'v_sub_co_u32', 'v_addc_co_u32', 'v_subb_co_u32'):
            I.w = R[0] + R[1]; I.r = sum(R[2:], [])
        else:
            I.w = R[0]; I.r = sum(R[1:], [])
            if opc.startswith('v_fmac') or opc.startswith('v_mac') or '_dpp' in opc or opc.startswith('v_writelane') or opc.startswith('v_dot2c'):
                I.r = I.r + R[0]
        I.dpp = '_dpp' in opc
    elif opc.startswith('ds_'):
        I.kind = 'ds'
        if opc.startswith('ds_read') or opc.startswith('ds_bpermute') or opc.startswith('ds_permute') or opc.startswith('ds_swizzle') or '_rtn' in opc:
            I.w = R[0]; I.r = sum(R[1:], [])
        else:
            I.r = sum(R, [])
    elif opc.startswith('buffer_') or opc.startswith('global_'):
        I.kind = 'vmem'
        islds = ' lds' in (' ' + mods) or 'load_lds' in opc
        if opc in ('buffer_inv', 'buffer_wbl2'):
            pass
        elif 'load' in opc and not islds:
            I.w = R[0]; I.r = sum(R[1:], [])
            if 'd16' in opc:
                I.r = I.r + R[0]
        elif 'atomic' in opc and 'sc0' in mods:
            I.r = sum(R, []); I.w = R[0]
        else:
            I.r = sum(R, [])
        if islds:
            I.r = I.r + [('s', 'm0')]; I.kind = 'vmem_lds'
        if 'store' in opc and ('x4' in opc or 'x3' in opc):
            I.wide = True
            I.srcc = R[0] if opc.startswith('buffer') else R[1]
    elif opc.startswith('s_'):
        I.kind = 'salu'
        if opc.startswith('s_cmp') or opc.startswith('s_cbranch') or opc in ('s_branch', 's_barrier', 's_waitcnt', 's_endpgm', 's_sleep', 's_setprio'):
            I.r = sum(R, [])
        else:
            I.w = R[0] if R else []; I.r = sum(R[1:], [])
            if 'saveexec' in opc:
                I.w = I.w + [('s', 'exec')]
        if opc.startswith('s_load') or opc.startswith('s_memtime') or opc.startswith('s_memrealtime'):
            I.kind = 'smem'
    else:
        raise ValueError('unknown instr ' + text)
    return I

def need(p, c):
    n = 0
    pw = set(p.w)
    isv = lambda x: x[0] in ('v', 'a')
    if p.kind == 'valu':
        pv = set(x for x in pw if isv(x)); ps = set(x for x in pw if not isv(x))
        if c.kind == 'mfma' and pv & set(c.r): n = max(n, 2)
        if c.kind == 'mfma' and ('s', 'exec') in ps: n = max(n, 4)
        if c.kind == 'valu':
            if c.dpp and pv & set(c.r): n = max(n, 2)
            if c.dpp and ('s', 'exec') in ps: n = max(n, 5)
            if c.opc.startswith('v_permlane'):
                if pv & set(c.r): n = max(n, 2)
                if ('s', 'exec') in ps: n = max(n, 4)
            if (c.opc.startswith('v_readlane') or c.opc.startswith('v_readfirstlane')):
                if pv & set(c.r): n = max(n, 1)
                if ('s', 'exec') in ps: n = max(n, 4)
            if ps & set(c.r):
                n = max(n, 4 if (c.opc.startswith('v_readlane') or c.opc.startswith('v_writelane')) else 2)
            if p.opc.split('_e')[0] in TRANS or any(p.opc.startswith(t) for t in TRANS):
                if pv & set(c.r) and not any(c.opc.startswith(t) for t in TRANS): n = max(n, 1)
        if c.kind in ('vmem', 'vmem_lds') and ps & set(c.r): n = max(n, 5)
        if c.kind in ('salu', 'smem') and ps & set(c.r): n = max(n, 1)
    elif p.kind == 'mfma':
        P = p.passes
        full = {4: 8, 8: 12}[P]; part = {4: 6, 8: 10}[P]; war = {4: 3, 8: 7}[P]
        if c.kind == 'mfma':
            if pw & set(c.ab): n = max(n, full)
            if pw & set(c.srcc):
                if c.srcc == p.w and c.opc == p.opc: pass
                else: n = max(n, part)
            elif pw & set(c.w): n = max(n, full)
        else:
            if pw & (set(c.r) | set(c.w)): n = max(n, full)
            if c.kind == 'valu' and set(p.srcc) & set(c.w): n = max(n, war)
    elif p.kind == 'salu':
        if ('s', 'm0') in pw and c.kind == 'vmem_lds': n = max(n, 1)
    elif p.kind == 'vmem' and p.wide:
        if set(p.srcc) & set(c.w): n = max(n, 2 if c.kind in ('valu', 'mfma') else 1)
    return n

class K:
    def __init__(self):
        self.lines = []
        self.hist = []
        self.vm = []
        self.lg = []
        self.nlabel = 0
        self.nnop = 0
        self.count = 0
    def raw(self, s):
        self.lines.append(s)
    def c(self, s):
        self.lines.append('  ; ' + s)
    def label(self, name):
        self.lines.append(name + ':')
    def newlabel(self, p='L'):
        self.nlabel += 1
        return '%s_%d' % (p, self.nlabel)
    def I(self, text, tag=None):
        for t in text.strip().split('\n'):
            t = t.strip()
            if not t or t.startswith(';'):
                continue
            if t.endswith(':'):
                self.label(t[:-1]); continue
            self._one(t, tag)
            sp = getattr(self, 'sprinkle', None)
            if sp:
                sp[2] += 1
                if sp[2] >= sp[0] and sp[3] > 0:
                    sp[2] = 0; sp[3] -= 1
                    self.sprinkle = None
                    sp[1]()
                    self.sprinkle = sp
    __call__ = I
    def _one(self, t, tag):
        ins = parse(t)
        def place():
            if not self.hist:
                return 0, 0
            p = self.hist[-1]
            tt = p.t + p.ws; tc = p.tc + p.ws
            if ins.kind == 'mfma':
                for q in reversed(self.hist):
                    if q.kind == 'mfma':
                        tt = max(tt, q.t + q.passes); break
            return tt, tc
        tt, tc = place()
        req = 0
        for p in reversed(self.hist):
            n = need(p, ins)
            if n:
                have_c = tc - p.tc - p.ws
                have_t = tt - p.t - p.ws - 1
                have = max(have_c, have_t)
                if n - have > req: req = n - have
        if req > 0:
            while True:
                k = min(req, 16)
                nop = parse('s_nop %d' % (k - 1))
                p = self.hist[-1]
                nop.t = p.t + p.ws; nop.tc = p.tc + p.ws
                self.lines.append('  s_nop %d' % (k - 1)); self.hist.append(nop); self.nnop += k
                tt, tc = place()
                req = 0
                for p in reversed(self.hist):
                    n = need(p, ins)
                    if n:
                        have = max(tc - p.tc - p.ws, tt - p.t - p.ws - 1)
                        if n - have > req: req = n - have
                if req <= 0: break
        ins.t = tt; ins.tc = tc
        self.lines.append('  ' + t)
        self.count += 1
        self.hist.append(ins)
        if len(self.hist) > 40: self.hist = self.hist[-30:]
        if ins.kind in ('vmem', 'vmem_lds') and ins.opc not in ('buffer_inv', 'buffer_wbl2'):
            self.vm.append(tag)
        elif ins.kind == 'ds':
            self.lg.append(tag)
        elif ins.kind == 'smem':
            self.lg.append('SMEM')
        elif ins.opc == 's_waitcnt':
            m = re.search(r'vmcnt\((\d+)\)', t)
            if m:
                n = int(m.group(1)); self.vm = self.vm[len(self.vm) - n:] if n and n < len(self.vm) else ([] if n == 0 else self.vm)
            m = re.search(r'lgkmcnt\((\d+)\)', t)
            if m:
                n = int(m.group(1)); self.lg = self.lg[len(self.lg) - n:] if n and n < len(self.lg) else ([] if n == 0 else self.lg)
    def wait_lg(self, tag):
        if tag not in self.lg: return
        assert 'SMEM' not in self.lg
        idx = len(self.lg) - 1 - self.lg[::-1].index(tag)
        n = len(self.lg) - 1 - idx
        self.I('s_waitcnt lgkmcnt(%d)' % min(n, 15))
    def wait_vm(self, tag):
        if tag not in self.vm: return
        idx = len(self.vm) - 1 - self.vm[::-1].index(tag)
        n = len(self.vm) - 1 - idx
        self.I('s_waitcnt vmcnt(%d)' % min(n, 63))
    def flush(self, n=12):
        self.I('s_nop %d' % (n - 1))
    def text(self):
        return '\n'.join(self.lines) + '\n'

def v(a, n=1):
    return 'v%d' % a if n == 1 else 'v[%d:%d]' % (a, a + n - 1)
def a(x, n=1):
    return 'a%d' % x if n == 1 else 'a[%d:%d]' % (x, x + n - 1)
def s(x, n=1):
    return 's%d' % x if n == 1 else 's[%d:%d]' % (x, x + n - 1)
```

```python
from fw import *
from layout import *
from chain import srd, f2u, S_WS, S_WQ, S_WK, S_WV, S_WO, S_DBG, S_H, S_W, S_SPIN, S_T0, S_T1, S_T2, SPIN_MAX
import math

S_X, S_AUX, S_OUT = 28, 36, 12
S_R, S_NSEG, S_I, S_XS, S_OO, S_XB, S_FL, S_SEG, S_GRP, S_TK = 42, 43, 44, 45, 46, 47, 48, 49, 50, 51
S_T3, S_T4 = 52, 53
S_M = 92
P_X, P_MEM0, P_WQ, P_WK, P_WV, P_WO, P_SEG, P_BX, P_WB, P_WOB, P_GW, P_OUT, P_DBG, P_WS = [64 + 2 * i for i in range(14)]
FAIL = 'L_fail'

LANE, L16, GA, TR, XG, XR, VZ, VT = 0, 1, 2, 3, 4, 5, 6, 7
L_STG = 65536; STG_STRIDE = 24576

def cvt(k, d, x, y): k('v_cvt_pk_bf16_f32 %s, %s, %s' % (v(d), v(x), v(y)))
def R(loc, r, n): return (a if loc[0] == 'a' else v)(loc[1] + r, n)

def poll_flags(k, soff_reg, nlanes, minval, name, stride=4, srdn=S_WS, sleep=8, skip7=False):
    L = k.newlabel('L_poll_' + name)
    k('v_mul_u32_u24 %s, %d, %s' % (v(VZ), stride, v(LANE)))
    k('s_mov_b32 %s, %d' % (s(S_SPIN), SPIN_MAX))
    if skip7:
        k('s_mov_b32 exec_lo, 0x7f7f7f7f')
        k('s_mov_b32 exec_hi, 0x7f7f7f7f')
    else:
        k('s_mov_b32 exec_lo, 0x%x' % ((1 << nlanes) - 1))
        k('s_mov_b32 exec_hi, 0')
    k.label(L)
    k('buffer_load_dword %s, %s, %s, %s offen sc1' % (v(VT), v(VZ), s(srdn, 4), s(soff_reg)))
    k('s_sub_u32 %s, %s, 1' % (s(S_SPIN), s(S_SPIN)))
    k('s_cbranch_scc1 %s' % FAIL)
    k('s_waitcnt vmcnt(0)')
    k('v_cmp_gt_u32 vcc, %s, %s' % (minval, v(VT)))
    k('s_cbranch_vccz %s_ok' % L)
    k('s_sleep %d' % sleep)
    k('s_branch %s' % L)
    k.label(L + '_ok')
    k('s_mov_b64 exec, -1')

def set_flag(k, soff_reg, val, flags='sc1'):
    k('v_mov_b32 %s, %s' % (v(VT), val))
    k('v_mov_b32 %s, 0' % v(VZ))
    k('s_mov_b64 exec, 1')
    k('buffer_store_dword %s, %s, %s, %s offen %s' % (v(VT), v(VZ), s(S_WS, 4), s(soff_reg), flags))
    k('s_mov_b64 exec, -1')

def load_blocks(k, blocks, nslot):
    n = len(blocks)
    for i in range(min(nslot, n)):
        blocks[i]['issue']((i % nslot) * 4096, ('wl', i))
    for i in range(n):
        k.wait_vm(('wl', i))
        blocks[i]['read']((i % nslot) * 4096)
        k('s_waitcnt lgkmcnt(0)')
        if i + nslot < n:
            blocks[i + nslot]['issue']((i % nslot) * 4096, ('wl', i + nslot))

def setup_common(k):
    k('v_lshlrev_b32 %s, 4, %s' % (v(L16), v(LANE)))
    k('s_mul_i32 %s, %s, %d' % (s(S_T2), s(S_W), STG_STRIDE))
    k('s_add_u32 %s, %s, %d' % (s(S_T2), s(S_T2), L_STG))

def qkv_addr(k):
    k('v_lshrrev_b32 %s, 2, %s' % (v(VZ), v(LANE)))
    k('v_and_b32 %s, 3, %s' % (v(VT), v(LANE)))
    k('v_lshlrev_b32 %s, 4, %s' % (v(GA), v(VT)))
    k('v_lshl_add_u32 %s, %s, 13, %s' % (v(GA), v(VZ), v(GA)))
    k('s_lshl_b32 %s, %s, 8' % (s(S_T0), s(S_H)))
    k('s_lshl_b32 %s, %s, 6' % (s(S_T1), s(S_W)))
    k('s_add_u32 %s, %s, %s' % (s(S_T0), s(S_T0), s(S_T1)))
    k('v_add_u32 %s, %s, %s' % (v(GA), s(S_T0), v(GA)))
    k('v_lshrrev_b32 %s, 4, %s' % (v(TR), v(LANE)))
    k('v_lshlrev_b32 %s, 3, %s' % (v(TR), v(TR)))
    k('v_and_b32 %s, 3, %s' % (v(VZ), v(VZ)))
    k('v_add_u32 %s, %s, %s' % (v(TR), v(TR), v(VZ)))
    k('v_lshlrev_b32 %s, 6, %s' % (v(TR), v(TR)))
    k('v_lshl_add_u32 %s, %s, 3, %s' % (v(TR), v(VT), v(TR)))
    k('v_add_u32 %s, %s, %s' % (v(TR), s(S_T2), v(TR)))

def qkv_block(k, srdn, b, dest):
    def issue(off, tag):
        for i in range(4):
            k('s_mov_b32 %s, %d' % (s(S_T0), (64 * b + 16 * i) * 8192))
            k('s_add_u32 m0, %s, %d' % (s(S_T2), off + i * 1024))
            k('buffer_load_dwordx4 %s, %s, %s offen lds' % (v(GA), s(srdn, 4), s(S_T0)), tag=tag)
    def read(off):
        for k2 in range(2):
            for t in range(2):
                for hh in range(2):
                    k('ds_read_b64_tr_b16 %s, %s offset:%d' % (R(dest(t, 2 * b + k2), 2 * hh, 2), v(TR), off + (32 * k2 + 4 * hh) * 64 + 32 * t))
    return dict(issue=issue, read=read)

XG1, XR1 = 12, 13
def x_setup(k):
    k('v_lshrrev_b32 %s, 3, %s' % (v(VZ), v(LANE)))
    k('v_lshlrev_b32 %s, 10, %s' % (v(XG), v(VZ)))
    k('v_lshrrev_b32 %s, 4, %s' % (v(VZ), v(LANE)))
    k('v_and_b32 %s, 7, %s' % (v(VT), v(LANE)))
    k('v_xor_b32 %s, %s, %s' % (v(VT), v(VT), v(VZ)))
    k('v_lshl_add_u32 %s, %s, 4, %s' % (v(XG), v(VT), v(XG)))
    k('s_lshl_b32 %s, %s, 8' % (s(S_T0), s(S_W)))
    k('v_add_u32 %s, %s, %s' % (v(XG), s(S_T0), v(XG)))
    k('v_xor_b32 %s, 0x2040, %s' % (v(XG1), v(XG)))
    k('v_bfe_u32 %s, %s, 1, 3' % (v(VT), v(LANE)))
    k('v_xor_b32 %s, %s, %s' % (v(VT), v(VT), v(VZ)))
    k('v_and_b32 %s, 15, %s' % (v(VZ), v(LANE)))
    k('v_lshlrev_b32 %s, 7, %s' % (v(XR), v(VZ)))
    k('v_lshl_add_u32 %s, %s, 4, %s' % (v(XR), v(VT), v(XR)))
    k('v_xor_b32 %s, 64, %s' % (v(XR1), v(XR)))

def x_dma(k, tag):
    k('s_lshl_b32 %s, %s, 12' % (s(S_T0), s(S_W)))
    k('s_add_u32 %s, %s, %s' % (s(S_T0), s(S_T0), s(S_XB)))
    def one(T, j):
        k('s_add_u32 m0, %s, %d' % (s(S_T0), T * 16384 + j * 1024))
        k('s_add_u32 %s, %s, %d' % (s(S_T1), s(S_XS), T * 16384 + (j >> 1) * 128))
        k('buffer_load_dwordx4 %s, %s, %s offen lds' % (v(XG1 if j & 1 else XG), s(S_X, 4), s(S_T1)), tag=tag)
    def fin():
        k('s_add_u32 %s, %s, %d' % (s(S_XS), s(S_XS), 2 * 32768))
        k('s_min_u32 %s, %s, %d' % (s(S_XS), s(S_XS), 63 * 32768))
        k('s_add_u32 %s, %s, 0x8000' % (s(S_XB), s(S_XB)))
        k('s_cmp_eq_u32 %s, 0x%x' % (s(S_XB), NXB * 0x8000))
        k('s_cselect_b32 %s, 0, %s' % (s(S_XB), s(S_XB)))
    return [(lambda T=T, j=j: one(T, j)) for T in range(2) for j in range(4)] + [fin]
NXB = 5

def mfma32(d, A, B, first):
    return 'v_mfma_f32_16x16x32_bf16 %s, %s, %s, %s' % (v(d, 4), A, B, '0' if first else v(d, 4))

def proj(k, after_issue=None):
    k.c('===== projections =====')
    S_O0, S_O1, S_OST, S_KIND, S_PAR = S_OO, S_T3, S_T4, S_NSEG, S_SEG
    srd(k, S_X, P_X, 2 << 20)
    LB = k.newlabel('L_pj_b'); LJ = k.newlabel('L_pj_j'); LG = k.newlabel('L_pj_g'); LJ2 = k.newlabel('L_pj_j2')
    x_setup(k)
    qkv_addr(k)
    k('s_lshl_b32 %s, %s, 2' % (s(S_T0), s(S_H)))
    k('s_add_u32 %s, %s, %s' % (s(S_T0), s(S_T0), s(S_W)))
    k('s_lshl_b32 %s, %s, 3' % (s(S_FL), s(S_T0)))
    k('s_add_u32 %s, %s, %s' % (s(S_FL), s(S_FL), s(S_R)))
    k('s_lshl_b32 %s, %s, 4' % (s(S_FL), s(S_FL)))
    k('s_add_u32 %s, %s, 0x%x' % (s(S_FL), s(S_FL), F_KV))
    k('s_cmp_eq_u32 %s, 6' % s(S_R))
    k('s_cbranch_scc1 %s' % LB)
    k('s_and_b32 %s, %s, 1' % (s(S_PAR), s(S_R)))
    k('s_lshr_b32 %s, %s, 1' % (s(S_T1), s(S_R)))
    k('s_cmp_eq_u32 %s, 0' % s(S_T1))
    k('s_cselect_b64 %s, %s, %s' % (s(4, 2), s(P_WK, 2), s(P_WV, 2)))
    k('s_cmp_eq_u32 %s, 2' % s(S_T1))
    k('s_cselect_b64 %s, %s, %s' % (s(4, 2), s(P_WQ, 2), s(4, 2)))
    srd(k, S_AUX, 4, 4 << 20)
    k('s_cselect_b32 %s, 0x40000, 0x80000' % s(S_OST)) if False else None
    k('s_mov_b32 %s, 0x80000' % s(S_OST))
    k('s_lshl_b32 %s, %s, 12' % (s(S_O0), s(S_T0)))
    k('s_and_b32 %s, %s, 1' % (s(S_KIND), s(S_T1)))
    k('s_lshl_b32 %s, %s, 11' % (s(S_O1), s(S_KIND)))
    k('s_add_u32 %s, %s, %s' % (s(S_O0), s(S_O0), s(S_O1)))
    k('s_cmp_lg_u32 %s, 2' % s(S_T1))
    k('s_cbranch_scc1 %s_q' % LB)
    k('s_lshl_b32 %s, %s, 11' % (s(S_O0), s(S_T0)))
    k('s_add_u32 %s, %s, 0x%x' % (s(S_O0), s(S_O0), QX))
    k('s_mov_b32 %s, 0x40000' % s(S_OST))
    k.label(LB + '_q')
    k('s_add_u32 %s, %s, 1024' % (s(S_O1), s(S_O0)))
    k('s_mov_b32 s5, 8192')
    k('s_branch %s' % LJ)
    k.label(LB)
    k('s_and_b32 %s, %s, 1' % (s(S_PAR), s(S_H)))
    srd(k, S_AUX, P_WB, 512 * 3072)
    k('s_and_b32 %s, %s, 30' % (s(S_T1), s(S_H)))
    k('s_lshl_b32 %s, %s, 12' % (s(S_O0), s(S_T1)))
    k('s_lshl_b32 %s, %s, 10' % (s(S_T0), s(S_W)))
    k('s_add_u32 %s, %s, %s' % (s(S_O0), s(S_O0), s(S_T0)))
    k('s_add_u32 %s, %s, 0x%x' % (s(S_O0), s(S_O0), BX))
    k('s_add_u32 %s, %s, 4096' % (s(S_O1), s(S_O0)))
    k('s_mov_b32 %s, 0x20000' % s(S_OST))
    k('s_cmp_eq_u32 %s, 2' % s(S_W))
    k('s_cselect_b32 %s, 1, 2' % s(S_KIND))
    k('s_cmp_eq_u32 %s, 3' % s(S_W))
    k('s_cselect_b32 %s, 3, %s' % (s(S_KIND), s(S_KIND)))
    k('v_lshrrev_b32 %s, 2, %s' % (v(VZ), v(LANE)))
    k('v_mul_u32_u24 %s, 3072, %s' % (v(GA), v(VZ)))
    k('v_and_b32 %s, 3, %s' % (v(VT), v(LANE)))
    k('v_lshl_add_u32 %s, %s, 4, %s' % (v(GA), v(VT), v(GA)))
    k('s_min_u32 %s, %s, 2048' % (s(S_T0), s(S_T0)))
    k('s_lshl_b32 %s, %s, 5' % (s(S_T1), s(S_T1)))
    k('s_add_u32 %s, %s, %s' % (s(S_T0), s(S_T0), s(S_T1)))
    k('v_add_u32 %s, %s, %s' % (v(GA), s(S_T0), v(GA)))
    k('s_mov_b32 s5, 3072')
    k.label(LJ)
    k('s_lshl_b32 s5, s5, 4')
    k('s_mul_i32 %s, %s, %s' % (s(S_T0), s(S_PAR), s(S_OST)))
    k('s_add_u32 %s, %s, %s' % (s(S_O0), s(S_O0), s(S_T0)))
    k('s_add_u32 %s, %s, %s' % (s(S_O1), s(S_O1), s(S_T0)))
    k('s_lshl_b32 %s, %s, 1' % (s(S_OST), s(S_OST)))
    dW = lambda t, ks: ('a', (t * 16 + ks) * 4)
    k('s_lshl_b32 %s, %s, 15' % (s(S_XS), s(S_PAR)))
    k('s_mov_b32 %s, 0x20000' % s(S_XB))
    for f in x_dma(k, 'x'): f()
    if hasattr(k, 'after_x0'): k.after_x0()
    k('s_lshl_b32 s4, %s, 15' % s(S_W))
    k('v_subrev_u32 %s, %s, %s' % (v(TR), s(S_T2), v(TR)))
    k('v_add_u32 %s, s4, %s' % (v(TR), v(TR)))
    k('s_mov_b32 %s, 0' % s(S_T0))
    for i in range(32):
        k('s_add_u32 m0, s4, %d' % (i * 1024))
        k('buffer_load_dwordx4 %s, %s, %s offen lds' % (v(GA), s(S_AUX, 4), s(S_T0)), tag=('wl', i // 4))
        k('s_add_u32 %s, %s, s5' % (s(S_T0), s(S_T0)))
    if after_issue: after_issue()
    for b in range(8):
        k.wait_vm(('wl', b))
        for k2 in range(2):
            for t in range(2):
                for hh in range(2):
                    k('ds_read_b64_tr_b16 %s, %s offset:%d' % (R(dW(t, 2 * b + k2), 2 * hh, 2), v(TR), b * 4096 + (32 * k2 + 4 * hh) * 64 + 32 * t))
        if b % 2: k('s_waitcnt lgkmcnt(0)')
    k('s_cmp_lg_u32 %s, 3' % s(S_KIND))
    k('s_cbranch_scc1 %s' % LJ2)
    srd(k, S_WQ, P_GW, 1024)
    k('v_lshrrev_b32 %s, 4, %s' % (v(GA), v(LANE)))
    k('v_lshlrev_b32 %s, 4, %s' % (v(GA), v(GA)))
    for ks in range(16):
        k('buffer_load_dwordx4 %s, %s, %s, 0 offen offset:%d' % (R(dW(0, ks), 0, 4), v(GA), s(S_WQ, 4), ks * 64))
    k.label(LJ2)
    k('s_waitcnt vmcnt(0)')
    if hasattr(k, 'stampw'): k.stampw(7)
    k('s_barrier')
    if hasattr(k, 'after_wload'): k.after_wload()
    k('s_mov_b32 %s, 0' % s(S_I))
    XR0 = 14; S_XRB = 60
    k('v_mov_b32 %s, %s' % (v(XR0), v(XR)))
    k('s_mov_b32 %s, 0x20000' % s(S_XRB))
    k('v_add_u32 %s, %s, %s' % (v(XR), s(S_XRB), v(XR0)))
    k('v_xor_b32 %s, 64, %s' % (v(XR1), v(XR)))
    for i in range(2):
        for f in x_dma(k, 'x'): f()
    ACC, XF, PKR = 16, 48, 72
    k('s_cmp_eq_u32 %s, 1' % s(S_KIND))
    k('s_cbranch_scc1 L_pj_td')
    for name in ('dt', 'td'):
        L = 'L_pj_' + name
        k.label(L)
        k.vm = []; k.lg = []
        k('s_waitcnt vmcnt(19)')
        k('s_barrier')
        dq = x_dma(k, 'x')
        def rd(ks):
            for T in range(2):
                k('ds_read_b128 %s, %s offset:%d' % (v(XF + 8 * (ks % 3) + 4 * T, 4), v(XR1 if ks & 1 else XR), T * 16384 + (ks >> 1) * 2048), tag=('xf', ks))
        rd(0); rd(1)
        for ks in range(16):
            k.wait_lg(('xf', ks))
            xf = XF + 8 * (ks % 3)
            n = 0
            for T in range(2):
                for t in range(2):
                    if name == 'dt': k(mfma32(ACC + 4 * (2 * T + t), R(dW(t, ks), 0, 4), v(xf + 4 * T, 4), ks == 0))
                    else: k(mfma32(ACC + 4 * (2 * t + T), v(xf + 4 * T, 4), R(dW(t, ks), 0, 4), ks == 0))
                    if n == 0 and ks + 2 < 16: rd(ks + 2)
                    if n == 2 and dq: dq.pop(0)()
                    n += 1
            if ks == 12:
                LF = k.newlabel('L_pjf')
                k('s_sub_i32 %s, %s, 1' % (s(S_T1), s(S_I)))
                k('s_cmp_gt_u32 %s, 1' % s(S_I))
                k('s_cbranch_scc1 %s' % LF)
                k('s_mov_b32 %s, %s' % (s(S_T1), s(S_I)))
                k('s_waitcnt vmcnt(8)')
                k.label(LF)
                k('s_lshl1_add_u32 %s, %s, %s' % (s(S_T1), s(S_T1), s(S_PAR)))
                k('s_waitcnt vmcnt(19)')
                set_flag(k, S_FL, s(S_T1))
        LS = k.newlabel('L_es')
        if name == 'dt':
            L2 = k.newlabel('L_e2'); L3 = k.newlabel('L_e3')
            k('s_cmp_eq_u32 %s, 2' % s(S_KIND))
            k('s_cbranch_scc1 %s' % L2)
            k('s_cmp_eq_u32 %s, 3' % s(S_KIND))
            k('s_cbranch_scc1 %s' % L3)
        for i in range(8): cvt(k, PKR + i, ACC + 2 * i, ACC + 2 * i + 1)
        k.label(LS)
        k('buffer_store_dwordx4 %s, %s, %s, %s offen sc1' % (v(PKR, 4), v(L16), s(S_WS, 4), s(S_O0)))
        k('buffer_store_dwordx4 %s, %s, %s, %s offen sc1' % (v(PKR + 4, 4), v(L16), s(S_WS, 4), s(S_O1)))
        k('s_add_u32 %s, %s, %s' % (s(S_O0), s(S_O0), s(S_OST)))
        k('s_add_u32 %s, %s, %s' % (s(S_O1), s(S_O1), s(S_OST)))
        k('s_add_u32 %s, %s, 0x8000' % (s(S_XRB), s(S_XRB)))
        k('s_cmp_eq_u32 %s, 0x%x' % (s(S_XRB), NXB * 0x8000))
        k('s_cselect_b32 %s, 0, %s' % (s(S_XRB), s(S_XRB)))
        k('v_add_u32 %s, %s, %s' % (v(XR), s(S_XRB), v(XR0)))
        k('v_xor_b32 %s, 64, %s' % (v(XR1), v(XR)))
        k('s_add_u32 %s, %s, 1' % (s(S_I), s(S_I)))
        k('s_cmp_lt_u32 %s, 32' % s(S_I))
        k('s_cbranch_scc1 %s' % L)
        k('s_branch L_pj_end')
        if name == 'dt':
            k.label(L2)
            k.flush(6)
            for t in range(2):
                for T in range(2):
                    for i in range(2):
                        cvt(k, PKR + 4 * t + 2 * T + i, ACC + 4 * (2 * T + t) + 2 * i, ACC + 4 * (2 * T + t) + 2 * i + 1)
            k('s_branch %s' % LS)
            k.label(L3)
            k.flush(6)
            P3 = PKR
            cvt(k, P3, ACC, ACC + 8)
            k('v_lshlrev_b32 %s, 16, %s' % (v(P3 + 2), v(P3)))
            k('v_and_b32 %s, 0xffff0000, %s' % (v(P3 + 3), v(P3)))
            for i in (2, 3): k('v_mul_f32 %s, 0x%x, %s' % (v(P3 + i), f2u(-math.log2(math.e)), v(P3 + i)))
            for i in (2, 3): k('v_exp_f32 %s, %s' % (v(P3 + i), v(P3 + i)))
            for i in (2, 3): k('v_add_f32 %s, 1.0, %s' % (v(P3 + i), v(P3 + i)))
            for i in (2, 3): k('v_rcp_f32 %s, %s' % (v(P3 + i), v(P3 + i)))
            cvt(k, P3 + 1, P3 + 2, P3 + 3)
            k('v_lshlrev_b32 %s, 16, %s' % (v(P3), v(P3 + 1)))
            k('v_and_b32 %s, 0xffff0000, %s' % (v(P3 + 1), v(P3 + 1)))
            k('v_sub_f32 %s, 1.0, %s' % (v(P3 + 2), v(P3)))
            k('v_sub_f32 %s, 1.0, %s' % (v(P3 + 3), v(P3 + 1)))
            cvt(k, P3 + 3, P3 + 2, P3 + 3)
            k('v_lshlrev_b32 %s, 16, %s' % (v(P3 + 2), v(P3 + 3)))
            k('v_and_b32 %s, 0xffff0000, %s' % (v(P3 + 3), v(P3 + 3)))
            for i in range(4): k('v_mov_b32 %s, %s' % (v(P3 + 4 + i), v(P3 + i)))
            k('s_branch %s' % LS)
    k.label('L_pj_end')
    k('s_waitcnt vmcnt(0)')
    set_flag(k, S_FL, '64')
    k('s_cmp_eq_u32 %s, 0' % s(S_R))
    k('s_cselect_b32 %s, 10, 9' % s(S_NSEG))

def diag_masks(k):
    k('v_lshrrev_b32 %s, 4, %s' % (v(VZ), v(LANE)))
    k('v_lshlrev_b32 %s, 2, %s' % (v(VZ), v(VZ)))
    k('v_and_b32 %s, 15, %s' % (v(VT), v(LANE)))
    k('v_sub_u32 %s, %s, %s' % (v(VT), v(VT), v(VZ)))
    for j in range(4):
        k('v_cmp_le_i32 %s, %d, %s' % (s(S_M + 2 * j, 2), j, v(VT)))

def xreduce(k, op, X, T):
    for sw in ('v_permlane16_swap_b32', 'v_permlane32_swap_b32'):
        k('v_mov_b32 %s, %s' % (v(T), v(X)))
        k('%s %s, %s' % (sw, v(X), v(T)))
        k('%s %s, %s, %s' % (op, v(X), v(X), v(T)))

def round_bf16(k, regs, T):
    for i in range(0, len(regs), 2):
        x, y = regs[i], regs[i + 1]
        cvt(k, y, x, y)
        k('v_lshlrev_b32 %s, 16, %s' % (v(x), v(y)))
        k('v_and_b32 %s, 0xffff0000, %s' % (v(y), v(y)))

def battn(k, waitflags=True, pre=None, post=None):
    k.c('===== B-branch sliding window attention =====')
    if waitflags:
        k('s_and_b32 %s, %s, 30' % (s(S_T3), s(S_H)))
        k('s_lshl_b32 %s, %s, 9' % (s(S_T3), s(S_T3)))
        k('s_add_u32 %s, %s, 0x%x' % (s(S_T3), s(S_T3), F_KV + 96))
        poll_flags(k, S_T3, 8, '64', 'd2', stride=128)
    diag_masks(k)
    QB, KB, VB, SC, NEG, MX, TT, LSUM, OO = 8, 12, 48, 84, 228, 230, 232, 234, 236
    def sc(j, kt, T): return SC + 4 * ((j * 2 + kt) * 2 + T)
    k('v_mov_b32 %s, 0xff800000' % v(NEG))
    k('s_mov_b32 %s, %s' % (s(S_I), s(S_W)))
    LOOP = 'L_ba_loop'; END = 'L_ba_end'
    S_RND = 61
    k('s_mov_b32 %s, 0' % s(S_RND))
    def dispatch(fns, name):
        if not fns: return
        J = 'L_ba_%s_j' % name
        for r, f in enumerate(fns):
            if r < len(fns) - 1:
                k('s_cmp_lg_u32 %s, %d' % (s(S_RND), r))
                k('s_cbranch_scc1 L_ba_%s_%d' % (name, r + 1))
            f()
            if r < len(fns) - 1:
                k('s_branch %s' % J)
                k.label('L_ba_%s_%d' % (name, r + 1))
        k.label(J)
    k.label(LOOP)
    k('s_cmp_ge_u32 %s, %s' % (s(S_I), s(S_NSEG)))
    k('s_cbranch_scc1 L_ba_nl')
    k('s_mul_i32 %s, %s, 7' % (s(S_SEG), s(S_I)))
    k('s_add_u32 %s, %s, %s' % (s(S_SEG), s(S_SEG), s(S_R)))
    k.vm = []
    k('s_lshl_b32 %s, %s, 12' % (s(S_T3), s(S_H)))
    k('s_add_u32 %s, %s, 0x%x' % (s(S_T3), s(S_T3), BX))
    k('s_lshl_b32 %s, %s, 17' % (s(S_T0), s(S_SEG)))
    k('s_add_u32 %s, %s, %s' % (s(S_T0), s(S_T0), s(S_T3)))
    k('buffer_load_dwordx4 %s, %s, %s, %s offen sc1' % (v(QB, 4), v(L16), s(S_WS, 4), s(S_T0)), tag='q')
    for j in range(9):
        k('s_sub_i32 %s, %s, %d' % (s(S_T0), s(S_SEG), 8 - j))
        k('s_max_i32 %s, %s, 0' % (s(S_T0), s(S_T0)))
        k('s_lshl_b32 %s, %s, 17' % (s(S_T0), s(S_T0)))
        k('s_add_u32 %s, %s, %s' % (s(S_T0), s(S_T0), s(S_T3)))
        k('buffer_load_dwordx4 %s, %s, %s, %s offen offset:1024 sc1' % (v(KB + 4 * j, 4), v(L16), s(S_WS, 4), s(S_T0)), tag=('k', j))
        k('buffer_load_dwordx4 %s, %s, %s, %s offen offset:2048 sc1' % (v(VB + 4 * j, 4), v(L16), s(S_WS, 4), s(S_T0)), tag=('v', j))
    k.label('L_ba_nl')
    dispatch(pre, 'pre')
    k('s_cmp_ge_u32 %s, %s' % (s(S_I), s(S_NSEG)))
    k('s_cbranch_scc1 L_ba_only')
    dead = {(0, 0, 1), (8, 1, 0)}
    for j in range(9):
        k.wait_vm(('k', j))
        for kt in range(2):
            for T in range(2):
                if (j, kt, T) in dead: continue
                k('v_mfma_f32_16x16x16_bf16 %s, %s, %s, 0' % (v(sc(j, kt, T), 4), v(KB + 4 * j + 2 * kt, 2), v(QB + 2 * T, 2)))
    k.flush(9)
    for T in range(2):
        for jj in range(4):
            k('v_cndmask_b32 %s, %s, %s, %s' % (v(sc(8, T, T) + jj), v(NEG), v(sc(8, T, T) + jj), s(S_M + 2 * jj, 2)))
            k('v_cndmask_b32 %s, %s, %s, %s' % (v(sc(0, T, T) + jj), v(sc(0, T, T) + jj), v(NEG), s(S_M + 2 * jj, 2)))
    LV = k.newlabel('L_ba_valid')
    for j in range(8):
        k('s_cmp_ge_u32 %s, %d' % (s(S_SEG), 8 - j))
        k('s_cbranch_scc1 %s' % LV)
        for r in range(16):
            k('v_mov_b32 %s, %s' % (v(sc(j, 0, 0) + r), v(NEG)))
    k.label(LV)
    c = 0.25 * math.log2(math.e)
    k('s_mov_b32 %s, 0x%x' % (s(S_T4), f2u(c)))
    if pre: k.sprinkle = [28, k.pb_dma, 28, 32]
    for T in range(2):
        regs = [sc(j, kt, T) + r for j in range(9) for kt in range(2) if (j, kt, T) not in dead for r in range(4)]
        round_bf16(k, regs, TT)
        k('v_max3_f32 %s, %s, %s, %s' % (v(MX), v(regs[0]), v(regs[1]), v(regs[2])))
        k('v_max3_f32 %s, %s, %s, %s' % (v(MX + 1), v(regs[3]), v(regs[4]), v(regs[5])))
        rest = regs[6:]
        for i in range(0, len(rest), 2):
            m = MX + ((i >> 1) & 1)
            k('v_max3_f32 %s, %s, %s, %s' % (v(m), v(m), v(rest[i]), v(rest[i + 1])))
        k('v_max_f32 %s, %s, %s' % (v(MX), v(MX), v(MX + 1)))
        xreduce(k, 'v_max_f32', MX, TT)
        k('v_mul_f32 %s, %s, %s' % (v(MX), s(S_T4), v(MX)))
        for r in regs: k('v_fma_f32 %s, %s, %s, -%s' % (v(r), v(r), s(S_T4), v(MX)))
        for r in regs: k('v_exp_f32 %s, %s' % (v(r), v(r)))
        k('v_add_f32 %s, %s, %s' % (v(LSUM), v(regs[0]), v(regs[1])))
        k('v_add_f32 %s, %s, %s' % (v(LSUM + 1), v(regs[2]), v(regs[3])))
        for i, r in enumerate(regs[4:]):
            m = LSUM + (i & 1)
            k('v_add_f32 %s, %s, %s' % (v(m), v(m), v(r)))
        k('v_add_f32 %s, %s, %s' % (v(LSUM), v(LSUM), v(LSUM + 1)))
        xreduce(k, 'v_add_f32', LSUM, TT)
        k('v_rcp_f32 %s, %s' % (v(LSUM), v(LSUM)))
        for r in regs: k('v_mul_f32 %s, %s, %s' % (v(r), v(r), v(LSUM)))
        for j in range(9):
            d = sc(j, 0, T)
            for kt in range(2):
                if (j, kt, T) in dead:
                    k('v_mov_b32 %s, 0' % v(d + 2 * kt)); k('v_mov_b32 %s, 0' % v(d + 2 * kt + 1))
                else:
                    b = sc(j, kt, T)
                    cvt(k, d + 2 * kt, b, b + 1); cvt(k, d + 2 * kt + 1, b + 2, b + 3)
        if T == 0: k.wait_vm(('v', 8))
        for j in range(9):
            k(mfma32(OO + 4 * T, v(VB + 4 * j, 4), v(sc(j, 0, T), 4), j == 0))
    if pre:
        assert k.sprinkle[3] == 0, k.sprinkle
        k.sprinkle = None
    for i in range(4): cvt(k, QB + i, OO + 2 * i, OO + 2 * i + 1)
    k('s_lshl_b32 %s, %s, 15' % (s(S_T0), s(S_SEG)))
    k('s_lshr_b32 %s, %s, 1' % (s(S_T1), s(S_H)))
    k('s_lshl_b32 %s, %s, 10' % (s(S_T1), s(S_T1)))
    k('s_add_u32 %s, %s, %s' % (s(S_T0), s(S_T0), s(S_T1)))
    k('s_and_b32 %s, %s, 1' % (s(S_T1), s(S_H)))
    k('s_lshl_b32 %s, %s, 3' % (s(S_T1), s(S_T1)))
    k('s_add_u32 %s, %s, %s' % (s(S_T0), s(S_T0), s(S_T1)))
    k('s_add_u32 %s, %s, 0x%x' % (s(S_T0), s(S_T0), OB))
    k('s_add_u32 %s, %s, 16384' % (s(S_T1), s(S_T0)))
    k('buffer_store_dwordx2 %s, %s, %s, %s offen sc1' % (v(QB, 2), v(L16), s(S_WS, 4), s(S_T0)))
    k('buffer_store_dwordx2 %s, %s, %s, %s offen sc1' % (v(QB + 2, 2), v(L16), s(S_WS, 4), s(S_T1)))
    k('s_branch L_ba_skip')
    k.label('L_ba_only')
    if pre:
        k('s_mov_b32 %s, 32' % s(S_T1))
        k.label('L_ba_dl')
        k.pb_dma()
        k('s_sub_u32 %s, %s, 1' % (s(S_T1), s(S_T1)))
        k('s_cmp_lg_u32 %s, 0' % s(S_T1))
        k('s_cbranch_scc1 L_ba_dl')
    k.label('L_ba_skip')
    k('s_add_u32 %s, %s, 4' % (s(S_I), s(S_I)))
    k('s_waitcnt vmcnt(0)')
    dispatch(post, 'post')
    k('s_add_u32 %s, %s, 1' % (s(S_RND), s(S_RND)))
    k('s_cmp_lt_u32 %s, 3' % s(S_RND))
    k('s_cbranch_scc1 %s' % LOOP)
    k.label(END)
    k('s_barrier')
    k('s_lshl_b32 %s, %s, 3' % (s(S_FL), s(S_H)))
    k('s_add_u32 %s, %s, %s' % (s(S_FL), s(S_FL), s(S_R)))
    k('s_lshl_b32 %s, %s, 2' % (s(S_FL), s(S_FL)))
    k('s_add_u32 %s, %s, 0x%x' % (s(S_FL), s(S_FL), F_D3))
    set_flag(k, S_FL, '1')


PB_GO, PB_TR, PB_GQ, PB_TRQ, PB_GB = 2, 3, 4, 5, 244
WOV, WBF, ACC, MEMF, AKV, QF, KF, VF, SX, BV, T8, SELT, IDX, NEG, MX, TT, LS = 16, 112, 128, 160, 192, 208, 212, 220, 228, 236, 240, 248, 250, 251, 252, 253, 254
S_STG = 63
wof = lambda dt, kk: (WOV + (dt * 4 + kk) * 4) if dt < 6 else (MEMF + ((dt - 6) * 4 + kk) * 4)
wkv = lambda m, ks, t: ((m * 8 + ks) * 2 + t) * 8

def pb_loader(k):
    S_LS, S_LST, S_LR = 58, 59, S_WK
    PB_GA = 245
    srd(k, S_AUX, P_WOB, 512 * 1024)
    k('s_barrier')
    k('s_mul_i32 %s, %s, 40960' % (s(S_STG), s(S_W)))
    k('v_lshrrev_b32 %s, 2, %s' % (v(VZ), v(LANE)))
    k('v_and_b32 %s, 3, %s' % (v(VT), v(LANE)))
    k('v_lshlrev_b32 %s, 4, %s' % (v(PB_GQ), v(VT)))
    k('v_lshl_add_u32 %s, %s, 13, %s' % (v(PB_GQ), v(VZ), v(PB_GQ)))
    k('s_lshl_b32 %s, %s, 8' % (s(S_T0), s(S_TK)))
    k('s_lshl_b32 %s, %s, 6' % (s(S_T1), s(S_W)))
    k('s_add_u32 %s, %s, %s' % (s(S_T0), s(S_T0), s(S_T1)))
    k('v_add_u32 %s, %s, %s' % (v(PB_GQ), s(S_T0), v(PB_GQ)))
    k('v_lshlrev_b32 %s, 8, %s' % (v(PB_TR), v(VZ)))
    k('v_lshl_add_u32 %s, %s, 3, %s' % (v(PB_TR), v(VT), v(PB_TR)))
    k('v_and_b32 %s, 3, %s' % (v(VZ), v(VZ)))
    k('v_lshl_add_u32 %s, %s, 5, %s' % (v(PB_TR), v(VZ), v(PB_TR)))
    k('v_add_u32 %s, %s, %s' % (v(PB_TR), s(S_STG), v(PB_TR)))
    k('v_lshrrev_b32 %s, 4, %s' % (v(VZ), v(LANE)))
    k('v_lshlrev_b32 %s, 10, %s' % (v(PB_GO), v(VZ)))
    k('v_lshlrev_b32 %s, 1, %s' % (v(VZ), v(VZ)))
    k('v_and_b32 %s, 15, %s' % (v(PB_GB), v(LANE)))
    k('v_xor_b32 %s, %s, %s' % (v(VZ), v(VZ), v(PB_GB)))
    k('v_lshl_add_u32 %s, %s, 4, %s' % (v(PB_GO), v(VZ), v(PB_GO)))
    k('s_lshl_b32 %s, %s, 17' % (s(S_T0), s(S_TK)))
    k('s_lshl_b32 %s, %s, 8' % (s(S_T1), s(S_W)))
    k('s_add_u32 %s, %s, %s' % (s(S_T0), s(S_T0), s(S_T1)))
    k('v_add_u32 %s, %s, %s' % (v(PB_GO), s(S_T0), v(PB_GO)))
    k('v_bfe_u32 %s, %s, 5, 1' % (v(VZ), v(LANE)))
    k('v_lshlrev_b32 %s, 4, %s' % (v(PB_TRQ), v(VZ)))
    for (bit, sh) in ((4, 2), (3, 3), (2, 0)):
        k('v_bfe_u32 %s, %s, %d, 1' % (v(VZ), v(LANE), bit))
        k('v_lshl_add_u32 %s, %s, %d, %s' % (v(PB_TRQ), v(VZ), sh, v(PB_TRQ)))
    k('v_lshlrev_b32 %s, 6, %s' % (v(PB_TRQ), v(PB_TRQ)))
    k('v_lshl_add_u32 %s, %s, 3, %s' % (v(PB_TRQ), v(VT), v(PB_TRQ)))
    k('v_add_u32 %s, %s, %s' % (v(PB_TRQ), s(S_STG), v(PB_TRQ)))
    k('v_lshrrev_b32 %s, 1, %s' % (v(VZ), v(LANE)))
    k('v_lshlrev_b32 %s, 10, %s' % (v(PB_GB), v(VZ)))
    k('v_and_b32 %s, 1, %s' % (v(VT), v(LANE)))
    k('v_lshl_add_u32 %s, %s, 4, %s' % (v(PB_GB), v(VT), v(PB_GB)))
    k('s_lshl_b32 %s, %s, 17' % (s(S_T0), s(S_W)))
    k('s_lshl_b32 %s, %s, 5' % (s(S_T1), s(S_TK)))
    k('s_add_u32 %s, %s, %s' % (s(S_T0), s(S_T0), s(S_T1)))
    k('v_add_u32 %s, %s, %s' % (v(PB_GB), s(S_T0), v(PB_GB)))
    for i in range(4):
        k('s_mov_b32 %s, %d' % (s(S_T0), 32 * i * 1024))
        k('s_add_u32 m0, %s, %d' % (s(S_STG), 32768 + i * 1024))
        k('buffer_load_dwordx4 %s, %s, %s offen lds' % (v(PB_GB), s(S_AUX, 4), s(S_T0)))
    def pb_dma():
        k('buffer_load_dwordx4 %s, %s, %s offen lds' % (v(PB_GA), s(S_LR, 4), s(S_LS)))
        k('s_add_u32 m0, m0, 1024')
        k('s_add_u32 %s, %s, %s' % (s(S_LS), s(S_LS), s(S_LST)))
    k.pb_dma = pb_dma
    def pre(P, ga, step):
        def f():
            srd(k, S_LR, P, 4 << 20)
            k('v_mov_b32 %s, %s' % (v(PB_GA), v(ga)))
            k('s_mov_b32 %s, 0' % s(S_LS))
            k('s_mov_b32 %s, %d' % (s(S_LST), step))
            k('s_mov_b32 m0, %s' % s(S_STG))
        return f
    def post_kv(m):
        def f():
            for ks in range(8):
                for t in range(2):
                    for H in range(2):
                        for Q in range(2):
                            k('ds_read_b64_tr_b16 %s, %s offset:%d' % (a(wkv(m, ks, t) + 4 * H + 2 * Q, 2), v(PB_TRQ), ks * 4096 + (32 * H + 2 * Q) * 64 + 32 * t))
                k('s_waitcnt lgkmcnt(0)')
        return f
    def final():
        A4 = [PB_TR, PB_GO, PB_GQ, PB_TRQ]
        for d in range(1, 4): k('v_xor_b32 %s, %d, %s' % (v(A4[d]), d << 5, v(PB_TR)))
        for dt in range(8):
            for kk in range(4):
                for hh in range(2):
                    k('ds_read_b64_tr_b16 %s, %s offset:%d' % (v(wof(dt, kk) + 2 * hh, 2), v(A4[dt & 3]), (32 * kk + 16 * hh) * 256 + (dt >> 2) * 128))
            k('s_waitcnt lgkmcnt(0)')
        k('v_lshlrev_b32 %s, 3, %s' % (v(VZ), v(LANE)))
        k('v_add_u32 %s, %s, %s' % (v(VZ), s(S_STG), v(VZ)))
        for hb in range(8):
            k('ds_read_b64_tr_b16 %s, %s offset:%d' % (v(WBF + 2 * hb, 2), v(VZ), 32768 + hb * 512))
        k('s_waitcnt lgkmcnt(0)')
    return [pre(P_WK, PB_GQ, 16 * 8192), pre(P_WV, PB_GQ, 16 * 8192), pre(P_WO, PB_GO, 4096)], [post_kv(0), post_kv(1), lambda: None], final

def phaseB(k, waitflags=True, opt={}):
    k.c('===== phase B =====')
    srd(k, S_OUT, P_OUT, 2 << 20)
    k('s_barrier')
    PFA, ST, OA, LW2, LW1, MEMA, MEMO, HOME = 8, 9, 10, 11, 12, 13, 14, 15
    BRA, GRA, L8, IDXR = 2, 3, 4, 5
    SELR = 244
    L_SMX, L_OX, L_HOME, L_BX = 16384, 20480, 32768, 8192
    S_PF = S_T2
    k('s_mul_i32 %s, %s, 12288' % (s(S_PF), s(S_W)))
    k('s_add_u32 %s, %s, 65536' % (s(S_PF), s(S_PF)))
    k('s_lshl_b32 %s, %s, 13' % (s(S_T0), s(S_W)))
    k('v_add_u32 %s, %s, %s' % (v(HOME), s(S_T0), v(L16)))
    k('s_lshl_b32 %s, %s, 11' % (s(S_T0), s(S_W)))
    k('v_add_u32 %s, %s, %s' % (v(LW2), s(S_T0), v(L16)))
    k('s_lshl_b32 %s, %s, 10' % (s(S_T0), s(S_W)))
    k('v_add_u32 %s, %s, %s' % (v(LW1), s(S_T0), v(L16)))
    for i in range(8):
        k('ds_write_b128 %s, %s offset:%d' % (v(HOME), v(MEMF + 4 * i, 4), L_HOME + 1024 * i))
    diag_masks(k)
    k('v_and_b32 %s, 15, %s' % (v(VT), v(LANE)))
    k('v_lshrrev_b32 %s, 4, %s' % (v(VZ), v(LANE)))
    k('v_cmp_gt_u32 vcc, 8, %s' % v(VT))
    k('v_mov_b32 %s, 0xeeee' % v(IDX))
    k('v_mov_b32 %s, 0x4444' % v(TT))
    k('v_cndmask_b32 %s, %s, %s, vcc' % (v(IDX), v(IDX), v(TT)))
    k('v_lshlrev_b32 %s, 3, %s' % (v(ST), v(VT)))
    k('v_lshl_add_u32 %s, %s, 12, %s' % (v(ST), v(VZ), v(ST)))
    k('v_and_b32 %s, 7, %s' % (v(MX), v(LANE)))
    k('v_lshrrev_b32 %s, 5, %s' % (v(TT), v(LANE)))
    k('v_lshl_add_u32 %s, %s, 1, %s' % (v(MX), v(MX), v(TT)))
    k('v_and_b32 %s, 1, %s' % (v(TT), v(VZ)))
    k('v_lshlrev_b32 %s, 10, %s' % (v(OA), v(MX)))
    k('v_lshl_add_u32 %s, %s, 2, %s' % (v(OA), v(TT), v(OA)))
    k('s_lshl_b32 %s, %s, 5' % (s(S_T0), s(S_H)))
    k('s_lshl_b32 %s, %s, 3' % (s(S_T1), s(S_W)))
    k('s_add_u32 %s, %s, %s' % (s(S_T0), s(S_T0), s(S_T1)))
    k('v_add_u32 %s, %s, %s' % (v(OA), s(S_T0), v(OA)))
    k('v_bfrev_b32 %s, 1' % v(LS))
    k('v_cndmask_b32 %s, %s, %s, vcc' % (v(OA), v(LS), v(OA)))
    k('v_lshlrev_b32 %s, 4, %s' % (v(GRA), v(MX)))
    k('v_lshl_add_u32 %s, %s, 3, %s' % (v(BRA), v(TT), v(GRA)))
    k('v_add_u32 %s, %s, %s' % (v(GRA), s(S_PF), v(GRA)))
    k('s_lshl_b32 %s, %s, 8' % (s(S_T0), s(S_W)))
    k('s_add_u32 %s, %s, %d' % (s(S_T0), s(S_T0), L_BX))
    k('v_add_u32 %s, %s, %s' % (v(BRA), s(S_T0), v(BRA)))
    k('v_add_u32 %s, %d, %s' % (v(L8), L_BX, v(LW1)))
    k('v_mov_b32 %s, 0x3f80' % v(MX))
    k('v_and_b32 %s, 2, %s' % (v(TT), v(VT)))
    k('v_cmp_eq_u32 s[4:5], 0, %s' % v(TT))
    k('v_mov_b32 %s, 0' % v(LS))
    k('v_cndmask_b32 %s, %s, %s, s[4:5]' % (v(TT), v(LS), v(MX)))
    k('v_cndmask_b32 %s, %s, %s, vcc' % (v(SELR), v(LS), v(TT)))
    k('v_cndmask_b32 %s, %s, %s, vcc' % (v(SELR + 1), v(TT), v(LS)))
    k('v_mov_b32 %s, %s' % (v(SELR + 2), v(SELR)))
    k('v_mov_b32 %s, %s' % (v(SELR + 3), v(SELR + 1)))
    k('v_bfe_u32 %s, %s, 2, 1' % (v(TT), v(VT)))
    k('v_and_b32 %s, 1, %s' % (v(LS), v(VT)))
    k('v_lshl_add_u32 %s, %s, 1, %s' % (v(TT), v(TT), v(LS)))
    k('v_xor_b32 %s, 1, %s' % (v(LS), v(TT)))
    k('v_lshl_add_u32 %s, %s, 2, %s' % (v(TT), v(LS), v(TT)))
    k('v_mul_u32_u24 %s, 0x1111, %s' % (v(IDXR), v(TT)))
    k('v_and_b32 %s, 1, %s' % (v(VZ), v(VZ)))
    k('v_lshlrev_b32 %s, 2, %s' % (v(VZ), v(VZ)))
    k('v_and_b32 %s, 7, %s' % (v(VT), v(LANE)))
    k('v_sub_u32 %s, %s, %s' % (v(VT), v(VT), v(VZ)))
    k('v_mov_b32 %s, 0x3f800000' % v(TT))
    for r in range(2):
        k('v_mov_b32 %s, 0' % v(SELT + r))
        k('v_cmp_eq_u32 vcc, %d, %s' % (2 * r, v(VT)))
        k('v_cndmask_b32 %s, %s, %s, vcc' % (v(SELT + r), v(SELT + r), v(MX)))
        k('v_cmp_eq_u32 vcc, %d, %s' % (2 * r + 1, v(VT)))
        k('v_cndmask_b32 %s, %s, %s, vcc' % (v(SELT + r), v(SELT + r), v(TT)))
    k('v_mov_b32 %s, 0xff800000' % v(NEG))
    if waitflags:
        for r in range(4):
            k('s_mov_b32 %s, 0x%x' % (s(S_T3), F_D3 + 256 * r))
            poll_flags(k, S_T3, 64, '1', 'd3', skip7=True)
    S_PBW, S_PBR, S_U, S_T, S_TG = S_XS, S_XB, S_R, S_NSEG, S_FL
    k('s_lshl_b32 %s, %s, 20' % (s(S_T0), s(S_GRP)))
    k('s_add_u32 %s, %s, 0x%x' % (s(S_T0), s(S_T0), PB))
    k('s_lshl_b32 %s, %s, 17' % (s(S_PBW), s(S_W)))
    k('s_add_u32 %s, %s, %s' % (s(S_PBW), s(S_PBW), s(S_T0)))
    k('s_lshl_b32 %s, %s, 7' % (s(S_T1), s(S_H)))
    k('s_add_u32 %s, %s, %s' % (s(S_PBW), s(S_PBW), s(S_T1)))
    k('s_lshl_b32 %s, %s, 14' % (s(S_PBR), s(S_H)))
    k('s_add_u32 %s, %s, %s' % (s(S_PBR), s(S_PBR), s(S_T0)))
    k('s_lshl_b32 %s, %s, 12' % (s(S_T1), s(S_W)))
    k('s_add_u32 %s, %s, %s' % (s(S_PBR), s(S_PBR), s(S_T1)))
    k('s_mov_b32 %s, 0' % s(S_I))
    k('s_sub_u32 %s, %s, 1' % (s(S_U), s(S_GRP)))
    k('s_mov_b32 %s, 0x%x' % (s(S_T4), f2u(128 ** -0.5)))
    def mf16(d, A, B, C=None): k('v_mfma_f32_16x16x16_bf16 %s, %s, %s, %s' % (v(d, 4), v(A, 2), v(B, 2), '0' if C is None else v(C, 4)))
    def rnd2(regs):
        round_bf16(k, regs, TT)
        for r in regs: k('v_mul_f32 %s, %s, %s' % (v(r), s(S_T4), v(r)))
        round_bf16(k, regs, TT)
    def add(d, x, y): k('v_add_f32 %s, %s, %s' % (v(d), v(x), v(y)))
    ld = lambda d, so, off, tag: k('buffer_load_dwordx4 %s, %s, %s, %s offen offset:%d sc1' % (v(d, 4), v(L16), s(S_WS, 4), s(so), off), tag=tag)
    S_MB = 60
    k('v_add_u32 %s, %s, %s' % (v(PFA), s(S_PF), v(L16)))
    k('v_mov_b32 %s, %s' % (v(MEMO), v(LW2)))
    k('v_mov_b32 %s, %s' % (v(MEMA), v(L16)))
    dma = lambda so, off, fl='sc1': k('buffer_load_dwordx4 %s, %s, %s offen offset:%d %s lds' % (v(L16), s(S_WS, 4), s(so), off, fl))
    def prefetch(su, mb):
        T = []
        def grp(pre, n, fl='sc1'):
            for i in range(n):
                def f(i=i):
                    if i == 0: k(pre)
                    k('buffer_load_dwordx4 %s, %s, s6 offen offset:%d %s lds' % (v(L16), s(S_WS, 4), 1024 * i, fl))
                T.append(f)
        d = dict(su=s(su), h=s(S_H), w=s(S_W), pf=s(S_PF), mb=s(mb), QX=QX, BX=BX + 3072, OB=OB, MX=MEMX)
        grp('s_lshr_b32 s4, %(su)s, 1\ns_lshl_b32 s5, s4, 5\ns_add_u32 s5, s5, %(h)s\ns_lshl_b32 s7, s5, 2\ns_add_u32 s7, s7, %(w)s\ns_lshl_b32 s6, s7, 12\ns_mov_b32 m0, %(pf)s' % d, 4)
        grp('s_and_b32 s6, %(su)s, 1\ns_lshl1_add_u32 s6, s7, s6\ns_lshl_b32 s6, s6, 10\ns_add_u32 s6, s6, 0x%(QX)x\ns_add_u32 m0, %(pf)s, 4096' % d, 1)
        grp('s_lshl_b32 s6, s5, 12\ns_add_u32 s6, s6, 0x%(BX)x\ns_add_u32 m0, %(pf)s, 5120' % d, 1)
        grp('s_lshl_b32 s6, %(su)s, 2\ns_add_u32 s6, s6, %(w)s\ns_lshl_b32 s6, s6, 12\ns_add_u32 s6, s6, 0x%(OB)x\ns_add_u32 m0, %(pf)s, 6144' % d, 4)
        grp('s_lshl_b32 s6, s4, 13\ns_lshl_b32 s7, %(w)s, 11\ns_add_u32 s6, s6, s7\ns_add_u32 s6, s6, 0x%(MX)x\ns_add_u32 m0, s7, %(mb)s' % d, 2)
        return T
    PFG = LW2
    k('v_add_u32 %s, 0x10000, %s' % (v(PFG), v(L16)))
    S_PD = 62
    k('s_mov_b32 %s, 49152' % s(S_PD))
    k('s_mov_b32 %s, 0' % s(S_MB))
    for f in prefetch(S_U, S_MB): f()
    RA = ACC + 16; RR = AKV; S_RT, S_RO, S_RR = 58, 59, 61
    def reduce(name):
        k('v_mov_b64 %s, 0' % v(RA, 2)); k('v_mov_b64 %s, 0' % v(RA + 2, 2))
        k('s_mov_b32 %s, %d' % (s(S_SPIN), SPIN_MAX))
        k('s_mov_b64 vcc, -1')
        k.label('L_pb_r' + name)
        k('s_mov_b64 exec, vcc')
        for i in range(4): ld(RR + 4 * i, S_RR, i * 1024, None)
        k('s_sub_u32 %s, %s, 1' % (s(S_SPIN), s(S_SPIN)))
        k('s_cbranch_scc1 %s' % FAIL)
        k('s_waitcnt vmcnt(0)')
        for i in range(4): k('v_bitop3_b32 %s, %s, %s, %s bitop3:0x7e' % (v(RA + 4 + i), v(RR + 4 * i), v(RR + 4 * i + 2), s(S_RT)))
        k('v_or3_b32 %s, %s, %s, %s' % (v(RA + 4), v(RA + 4), v(RA + 5), v(RA + 6)))
        k('v_bitop3_b32 %s, %s, %s, 1 bitop3:0xa8' % (v(RA + 4), v(RA + 4), v(RA + 7)))
        k('v_cmp_ne_u32 vcc, 0, %s' % v(RA + 4))
        k('s_cbranch_vccnz L_pb_r' + name)
        k('s_mov_b64 exec, -1')
        for i in range(2): k('v_smfmac_f32_16x16x64_bf16 %s, %s, %s, %s' % (v(RA, 4), v(SELR, 4), v(RR + 8 * i, 8), v(IDXR)))
        for j in range(2): k('v_add_f32_dpp %s, %s, %s row_ror:8 row_mask:0xf bank_mask:0xf' % (v(RA + j), v(RA + j), v(RA + j)))
        round_bf16(k, [RA, RA + 1], TT)
        for j in range(2): k('v_mul_f32 %s, %s, %s' % (v(RA + j), v(RA + j), v(BV + 2)))
        round_bf16(k, [RA, RA + 1], TT)
        for j in range(2): add(RA + j, RA + j, BV + j)
        cvt(k, RA, RA, RA + 1)
        k('buffer_store_dword %s, %s, %s, %s offen' % (v(RA), v(OA), s(S_OUT, 4), s(S_RO)))
    npt = [0]
    def PT():
        if opt.get('pbprof'):
            i = npt[0]; npt[0] += 1
            k.raw('  s_memtime s[64:65]\n  s_waitcnt lgkmcnt(0)\n  s_sub_u32 s67, s64, s66\n  s_add_u32 s%d, s%d, s67\n  s_mov_b32 s66, s64' % (70 + i, 70 + i))
    if opt.get('pbprof'):
        for i in range(12): k('s_mov_b32 s%d, 0' % (70 + i))
        k.raw('  s_memtime s[64:65]\n  s_waitcnt lgkmcnt(0)\n  s_mov_b32 s66, s64')
    k('s_waitcnt vmcnt(0) lgkmcnt(0)')
    LOOP = 'L_pb_loop'
    k.label(LOOP)
    k('s_waitcnt vmcnt(8)')
    k('s_barrier')
    k.vm = []; k.lg = []
    OBF = ACC
    QA = MEMF
    for w_ in range(4): k('ds_read_b128 %s, %s offset:%d' % (v(QA + 4 * w_, 4), v(PFG), w_ * 12288 + 4096), tag=('qa', w_))
    def KR(w_):
        for kt in range(2): k('ds_read_b128 %s, %s offset:%d' % (v(MEMF + 16 + 8 * (w_ & 1) + 4 * kt, 4), v(PFG), w_ * 12288 + 1024 * kt), tag=('ka', w_))
    KR(0); KR(1)
    k('s_lshr_b32 %s, %s, 1' % (s(S_SEG), s(S_U)))
    k('s_and_b32 %s, %s, 1' % (s(S_T), s(S_U)))
    k('s_bfe_u32 %s, %s, 0x10001' % (s(S_TG), s(S_I)))
    for w_ in range(4):
        k.wait_lg(('ka', w_))
        for kt in range(2): k(mfma32(SX + 4 * kt, v(MEMF + 16 + 8 * (w_ & 1) + 4 * kt, 4), v(QA + 4 * w_, 4), w_ == 0))
        if w_ < 2: KR(w_ + 2)
        else:
            for i in range(2): k('ds_read_b128 %s, %s offset:%d' % (v(OBF + 8 * (w_ - 2) + 4 * i, 4), v(PFA), 6144 + 2048 * (w_ - 2) + 1024 * i), tag=('ob', w_ - 2))
    k('ds_read_b128 %s, %s offset:4096' % (v(QF, 4), v(PFA)))
    for i in range(2): k('ds_read_b128 %s, %s offset:%d' % (v(VF + 4 * i, 4), v(PFA), 2048 + 1024 * i))
    for i in range(4):
        k.wait_lg(('ob', i >> 1))
        k(mfma32(T8, v(WBF + 4 * i, 4), v(OBF + 4 * i, 4), i == 0))
    rnd2([SX + i for i in range(8)])
    k('ds_write_b128 %s, %s' % (v(L8), v(T8, 4)))
    LT1 = k.newlabel('L_pb_t1'); LTJ = k.newlabel('L_pb_tj')
    k('s_cmp_eq_u32 %s, 1' % s(S_T))
    k('s_cbranch_scc1 %s' % LT1)
    for jj in range(4):
        k('v_cndmask_b32 %s, %s, %s, %s' % (v(SX + jj), v(NEG), v(SX + jj), s(S_M + 2 * jj, 2)))
        k('v_mov_b32 %s, %s' % (v(SX + 4 + jj), v(NEG)))
    k('s_branch %s' % LTJ)
    k.label(LT1)
    for jj in range(4):
        k('v_cndmask_b32 %s, %s, %s, %s' % (v(SX + 4 + jj), v(NEG), v(SX + 4 + jj), s(S_M + 2 * jj, 2)))
    k.label(LTJ)
    PL = 'L_pb_poll'
    def memchk():
        k('ds_read_b128 %s, %s' % (v(MEMF, 4), v(MEMO)))
        k('ds_read_b128 %s, %s offset:1024' % (v(MEMF + 4, 4), v(MEMO)))
        k('s_waitcnt lgkmcnt(0)')
        k('v_max3_u32 %s, %s, %s, %s' % (v(TT), v(MEMF), v(MEMF + 1), v(MEMF + 2)))
        k('v_max3_u32 %s, %s, %s, %s' % (v(MX), v(MEMF + 3), v(MEMF + 4), v(MEMF + 5)))
        k('v_max3_u32 %s, %s, %s, %s' % (v(TT), v(TT), v(MEMF + 6), v(MEMF + 7)))
        k('v_max_u32 %s, %s, %s' % (v(TT), v(TT), v(MX)))
        k('v_cmp_eq_u32 vcc, -1, %s' % v(TT))
    PT()
    k('s_cmp_eq_u32 %s, 0' % s(S_I))
    k('s_cbranch_scc1 L_pb_nored')
    reduce('a')
    k.label('L_pb_nored')
    k('s_lshl_b32 %s, %s, 2' % (s(S_T0), s(S_T)))
    k('v_add_u32 %s, %s, %s' % (v(TT), s(S_T0), v(GRA)))
    k('ds_read_b32 %s, %s offset:5120' % (v(BV + 2), v(TT)))
    k('ds_read_b32 %s, %s offset:5128' % (v(BV + 3), v(TT)))
    for i in range(0, 16, 2): k('v_mov_b64 %s, 0' % v(AKV + i, 2))
    k('s_add_u32 %s, %s, 7' % (s(S_OO), s(S_U)))
    k('s_min_u32 %s, %s, 127' % (s(S_OO), s(S_OO)))
    k('s_xor_b32 %s, %s, 24576' % (s(S_RT), s(S_MB)))
    k('s_add_u32 %s, %s, %s' % (s(S_PF), s(S_PF), s(S_PD)))
    k('s_cmp_ge_u32 %s, 121' % s(S_U))
    k('s_cbranch_scc1 L_pb_nopf')
    for f in prefetch(S_OO, S_RT): f()
    k.label('L_pb_nopf')
    for r in (PFA, PFG, GRA): k('v_add_u32 %s, %s, %s' % (v(r), s(S_PD), v(r)))
    k('s_sub_u32 %s, 0, %s' % (s(S_PD), s(S_PD)))
    PT()
    memchk()
    k('s_cbranch_vccz %s_ok' % PL)
    k('s_lshl_b32 %s, %s, 13' % (s(S_T0), s(S_SEG)))
    k('s_lshl_b32 %s, %s, 11' % (s(S_T1), s(S_W)))
    k('s_add_u32 m0, %s, %s' % (s(S_T1), s(S_MB)))
    k('s_add_u32 %s, %s, %s' % (s(S_T0), s(S_T0), s(S_T1)))
    k('s_add_u32 %s, %s, 0x%x' % (s(S_T0), s(S_T0), MEMX))
    k('s_mov_b32 %s, %d' % (s(S_SPIN), SPIN_MAX))
    k('s_sub_u32 %s, %s, 8192' % (s(S_T1), s(S_T0)))
    k('s_cmp_eq_u32 %s, 0' % s(S_SEG))
    k('s_cselect_b32 %s, %s, %s' % (s(S_T1), s(S_T0), s(S_T1)))
    k('s_mov_b32 %s, 0' % s(S_T3))
    k('s_mov_b64 exec, 1')
    k.label(PL)
    k('buffer_load_dword %s, %s, %s, %s offen sc1' % (v(TT), v(L16), s(S_WS, 4), s(S_T1)))
    k('s_sub_u32 %s, %s, 1' % (s(S_SPIN), s(S_SPIN)))
    k('s_cbranch_scc1 %s' % FAIL)
    k('s_waitcnt vmcnt(0)')
    k('v_cmp_eq_u32 vcc, -1, %s' % v(TT))
    k('s_cbranch_vccz %s_a' % PL)
    k('s_mov_b32 %s, 1' % s(S_T3))
    k('s_sleep %d' % opt.get('pbsleep', 6))
    k('s_branch %s' % PL)
    k.label(PL + '_a')
    k('s_mov_b64 exec, -1')
    k('s_cmp_eq_u32 %s, 0' % s(S_T3))
    k('s_cbranch_scc1 %s_b' % PL)
    k('s_sleep %d' % opt.get('pbsleep2', 12))
    k.label(PL + '_b')
    dma(S_T0, 0); dma(S_T0, 1024)
    k('s_sub_u32 %s, %s, 1' % (s(S_SPIN), s(S_SPIN)))
    k('s_cbranch_scc1 %s' % FAIL)
    k('s_waitcnt vmcnt(0)')
    memchk()
    k('s_cbranch_vccnz %s_b' % PL)
    k.label(PL + '_ok')
    k('s_barrier')
    PT()
    k.lg = []
    def MR(ks): k('ds_read_b128 %s, %s offset:%d' % (v(MEMF + 4 * ks, 4), v(MEMA), 1024 * ks), tag=('mf', ks))
    def SMF(m, ks, t): k('v_smfmac_f32_16x16x64_bf16 %s, %s, %s, %s' % (v(AKV + 8 * m + 4 * t, 4), v(MEMF + 4 * ks, 4), a(wkv(m, ks, t), 8), v(IDX)))
    pq = []
    MR(0); MR(1); MR(2)
    for ks in range(8):
        k.wait_lg(('mf', ks))
        SMF(0, ks, 0)
        if ks + 3 < 8: MR(ks + 3)
        elif ks < 7:
            for i in range(2): k('ds_read_b64 %s, %s offset:%d' % (v(ACC + 4 * (ks - 5) + 2 * i, 2), v(BRA), 1024 * (2 * (ks - 5) + i)), tag='br')
        SMF(0, ks, 1)
    vq = [(ks, t) for ks in range(8) for t in range(2)]
    hq = list(range(8))
    def V(n=1):
        for _ in range(n):
            ks, t = vq.pop(0); SMF(1, ks, t)
            if t == 1:
                k('ds_read_b128 %s, %s offset:%d' % (v(MEMF + 4 * ks, 4), v(HOME), L_HOME + 1024 * ks), tag=('wh', ks))
            elif pq: pq.pop(0)()
    V(2)
    for i in range(4): cvt(k, ACC + 16 + i, AKV + 2 * i, AKV + 2 * i + 1)
    V(1)
    mf16(AKV, ACC + 16, SELT); mf16(AKV + 4, ACC + 18, SELT)
    V(2)
    for i in range(4): cvt(k, ACC + 16 + i, AKV + 2 * i, AKV + 2 * i + 1)
    V(1)
    k(mfma32(AKV, v(ACC + 16, 4), v(QF, 4), True))
    V(3)
    k('ds_write_b128 %s, %s offset:%d' % (v(LW1), v(AKV, 4), L_SMX), tag='sw')
    k.wait_lg('br')
    bq = [lambda j=j: add(ACC + j, ACC + j, ACC + 2 + j) for j in range(2)] + [lambda j=j: add(ACC + 4 + j, ACC + 4 + j, ACC + 6 + j) for j in range(2)] + [lambda j=j: add(BV + j, ACC + j, ACC + 4 + j) for j in range(2)]
    for i in range(7):
        V(1)
        if bq: bq.pop(0)()
    assert not pq
    round_bf16(k, [BV, BV + 1], TT)
    for j in range(2): k('v_mul_f32 %s, %s, %s' % (v(BV + j), v(BV + j), v(BV + 3)))
    round_bf16(k, [BV, BV + 1], TT)
    k.wait_lg('sw')
    k('s_barrier')
    PT()
    VM = KF
    SR = [AKV, AKV + 4, KF + 4, T8]
    for w_ in range(4): k('ds_read_b128 %s, %s offset:%d' % (v(SR[w_], 4), v(L16), L_SMX + 1024 * w_), tag=('sr', w_))
    for i in range(4): cvt(k, VM + i, AKV + 8 + 2 * i, AKV + 8 + 2 * i + 1)
    k.wait_lg(('sr', 1))
    for j in range(4): add(AKV + j, AKV + j, AKV + 4 + j)
    k.wait_lg(('sr', 3))
    for j in range(4): add(T8 + j, T8 + j, KF + 4 + j)
    for j in range(4): add(AKV + j, AKV + j, T8 + j)
    mr = [AKV + j for j in range(4)]; xr = [SX + j for j in range(8)]
    rnd2(mr)
    k('s_mov_b32 %s, 0x%x' % (s(S_T3), f2u(math.log2(math.e))))
    regs = xr + mr
    k('v_max3_f32 %s, %s, %s, %s' % (v(MX), v(regs[0]), v(regs[1]), v(regs[2])))
    for i in range(3, len(regs) - 1, 2): k('v_max3_f32 %s, %s, %s, %s' % (v(MX), v(MX), v(regs[i]), v(regs[i + 1])))
    k('v_max_f32 %s, %s, %s' % (v(MX), v(MX), v(regs[-1])))
    xreduce(k, 'v_max_f32', MX, TT)
    k('v_mul_f32 %s, %s, %s' % (v(MX), s(S_T3), v(MX)))
    for r in regs: k('v_fma_f32 %s, %s, %s, -%s' % (v(r), v(r), s(S_T3), v(MX)))
    for r in regs: k('v_exp_f32 %s, %s' % (v(r), v(r)))
    add(LS, mr[0], mr[1]); add(LS + 1, mr[2], mr[3]); add(LS, LS, LS + 1)
    add(LS + 1, xr[0], xr[1])
    k('v_fma_f32 %s, %s, 0.5, %s' % (v(LS), v(LS), v(xr[2])))
    for i, r in enumerate(xr[3:]): add(LS + (i & 1), LS + (i & 1), r)
    add(LS, LS, LS + 1)
    xreduce(k, 'v_add_f32', LS, TT)
    k('v_rcp_f32 %s, %s' % (v(LS), v(LS)))
    for r in regs: k('v_mul_f32 %s, %s, %s' % (v(r), v(r), v(LS)))
    PX, PM, O = T8, ACC + 16, AKV + 8
    for i in range(4): cvt(k, PX + i, xr[2 * i], xr[2 * i + 1])
    cvt(k, PM, mr[0], mr[1]); cvt(k, PM + 1, mr[2], mr[3])
    for t in range(2): k(mfma32(O + 4 * t, v(VF + 4 * t, 4), v(PX, 4), True))
    for t in range(2): mf16(O + 4 * t, VM + 2 * t, PM, O + 4 * t)
    for i in range(4): cvt(k, T8 + i, O + 2 * i, O + 2 * i + 1)
    k('ds_write_b128 %s, %s offset:%d' % (v(LW1), v(T8, 4), L_OX))
    k('s_waitcnt lgkmcnt(0)')
    k('s_barrier')
    PT()
    OF = AKV
    for kk in range(4): k('ds_read_b128 %s, %s offset:%d' % (v(OF + 4 * kk, 4), v(L16), L_OX + 1024 * kk), tag=('of', kk))
    k('s_mov_b32 %s, %s' % (s(S_T0), s(S_PBW)))
    def pack(dt):
        r = ACC + 4 * dt
        cvt(k, r, r, r + 1); cvt(k, r + 1, r + 2, r + 3)
        k('v_bfi_b32 %s, 1, %s, %s' % (v(r), s(S_TG), v(r)))
    def st(dt):
        k('buffer_store_dwordx2 %s, %s, %s, %s offen' % (v(ACC + 4 * dt, 2), v(ST), s(S_WS, 4), s(S_T0)))
        k('s_add_u32 %s, %s, 0x4000' % (s(S_T0), s(S_T0)))
    for dt in range(8):
        for kk in range(4):
            if dt == 0: k.wait_lg(('of', kk))
            k(mfma32(ACC + 4 * dt, v(wof(dt, kk), 4), v(OF + 4 * kk, 4), kk == 0))
            if kk == 2 and dt > 0: pack(dt - 1)
            if kk == 3 and dt > 0: st(dt - 1)
    k('s_mov_b32 %s, %s' % (s(S_RT), s(S_TG)))
    k('s_mov_b32 %s, %s' % (s(S_RR), s(S_PBR)))
    k('s_lshl_b32 %s, %s, 14' % (s(S_RO), s(S_U)))
    k('s_add_u32 %s, %s, 1' % (s(S_I), s(S_I)))
    k('s_xor_b32 %s, %s, 24576' % (s(S_MB), s(S_MB)))
    k('v_xor_b32 %s, 24576, %s' % (v(MEMO), v(MEMO)))
    k('v_xor_b32 %s, 24576, %s' % (v(MEMA), v(MEMA)))
    pack(7); st(7)
    k('s_xor_b32 %s, %s, 0x80000' % (s(S_PBW), s(S_PBW)))
    k('s_xor_b32 %s, %s, 0x80000' % (s(S_PBR), s(S_PBR)))
    k('s_add_u32 %s, %s, 7' % (s(S_U), s(S_U)))
    PT()
    k('s_cmp_lt_u32 %s, 128' % s(S_U))
    k('s_cbranch_scc1 %s' % LOOP)
    for i in range(opt.get('pbw', 3)): k('s_nop 15')
    reduce('b')
    if opt.get('pbprof'):
        for i in range(8): k('v_mov_b32 v%d, s%d' % (16 + i, 70 + i))
        k('s_lshl_b32 s55, s50, 5\ns_add_u32 s55, s55, s40\ns_lshl_b32 s55, s55, 2\ns_add_u32 s55, s55, s41\ns_lshl_b32 s55, s55, 5\ns_add_u32 s55, s55, 0x%x' % (DBG + 0x180000))
        k('v_mov_b32 v6, 0')
        k('buffer_store_dwordx4 v[16:19], v6, s[8:11], s55 offen')
        k('buffer_store_dwordx4 v[20:23], v6, s[8:11], s55 offen offset:16')
```

```python
import sys, json
sys.path.insert(0, 'gen')
from fw import *
from layout import *
import chain as C
import worker as W
NAME = 'gated_mix__memory_aug_recurrent_mem_tr__sliding_block__prompt_kernel'
HEAD = open('gated_mix__memory_aug_recurrent_mem_tr__sliding_block__prompt.s.ref').read().split('; Override')[0]
D_READY = 64

def gen(opt={}):
    C.JS = opt.get('js', 10240)
    roles = opt.get('roles', ['chain', 'pj', 'ba', 'pb'])
    full = len(roles) == 4
    k = K()
    k.raw(HEAD.rstrip())
    k.raw('; @launch grid=(256,1,1) block=(256,1,1) lds=163840')
    k.raw('.amdgcn_target "amdgcn-amd-amdhsa--gfx950"\n.text\n.globl %s\n.p2align 8\n.type %s,@function\n%s:' % (NAME, NAME, NAME))
    k('s_load_dwordx16 s[64:79], s[0:1], 0')
    k('s_load_dwordx8 s[80:87], s[0:1], 64')
    k('s_load_dwordx4 s[88:91], s[0:1], 96')
    if opt.get('prof'):
        k('s_memtime s[100:101]')
        k('s_memrealtime s[2:3]')
    k('s_getreg_b32 %s, hwreg(HW_REG_XCC_ID)' % s(W.S_GRP))
    k('s_and_b32 %s, %s, 7' % (s(W.S_GRP), s(W.S_GRP)))
    k('s_waitcnt lgkmcnt(0)')
    C.srd(k, C.S_WS, W.P_WS, WS_BYTES); C.srd(k, C.S_DBG, W.P_DBG, 256)
    k('''
  s_lshl_b32 s55, s50, 2
  v_mov_b32 v1, 0
  v_mov_b32 v2, 1
  v_cmp_eq_u32 vcc, 0, v0
  s_and_saveexec_b64 s[4:5], vcc
  s_cbranch_execz L_t1
  buffer_atomic_add v2, v1, s[32:35], s55 offen sc0 sc1
  s_waitcnt vmcnt(0)
  ds_write_b32 v1, v2
  s_waitcnt lgkmcnt(0)
L_t1:
  s_mov_b64 exec, s[4:5]
  s_barrier
  ds_read_b32 v2, v1
  v_lshrrev_b32 v3, 6, v0
  s_waitcnt lgkmcnt(0)
  v_readfirstlane_b32 s51, v2
  v_readfirstlane_b32 s41, v3
  v_and_b32 v0, 63, v0
  s_barrier
  s_cmp_ge_u32 s51, 32
  s_cbranch_scc1 L_end
''')
    TK, GRP = W.S_TK, W.S_GRP
    if opt.get('prof'):
        k('s_memtime s[98:99]')
        k('s_waitcnt lgkmcnt(0)')
    def ready_add(ra=6, rb=7, sync=True):
        if sync:
            k('s_waitcnt vmcnt(0)')
            k('s_barrier')
        L = k.newlabel('L_ra')
        k('s_cmp_lg_u32 %s, 0' % s(C.S_W))
        k('s_cbranch_scc1 %s' % L)
        k('v_mov_b32 v%d, %d' % (ra, D_READY))
        k('v_mov_b32 v%d, 1' % rb)
        k('s_mov_b64 exec, 1')
        k('buffer_atomic_add v%d, v%d, s[32:35], 0 offen sc1' % (rb, ra))
        k('s_mov_b64 exec, -1')
        k.label(L)
    k('v_lshlrev_b32 v1, 4, v0')
    for i in range(4): k('v_mov_b32 v%d, -1' % (8 + i))
    if opt.get('spread'):
        k('s_cmp_ge_u32 s2, 32')
        k('s_cbranch_scc1 L_spw')
        k('s_mov_b32 %s, s2' % s(TK))
    else:
        k('s_cmp_lg_u32 %s, 0' % s(GRP))
        k('s_cbranch_scc1 L_worker')
    if 'chain' in roles:
        k('s_mov_b32 %s, %s' % (s(C.S_H), s(TK)))
        C.srd(k, C.S_WQ, W.P_WQ, 4 << 20); C.srd(k, C.S_WK, W.P_WK, 4 << 20); C.srd(k, C.S_WV, W.P_WV, 4 << 20); C.srd(k, C.S_WO, W.P_WO, 4 << 20)
        C.srd(k, C.S_M0, W.P_MEM0, 8192)
        def hook_loading():
            k('v_lshlrev_b32 v24, 4, v0')
            for i in range(4): k('v_mov_b32 v%d, -1' % (28 + i))
            k('s_mul_i32 s55, s40, %d' % C.JS)
            k('s_lshl_b32 s56, s41, 11')
            k('s_add_u32 s55, s55, s56')
            k('s_add_u32 s55, s55, 0x%x' % INB)
            for i in range(2):
                k('buffer_store_dwordx4 v[28:31], v24, s[8:11], s55 offen offset:%d' % (1024 * i), tag='init')
            k('s_lshl_b32 s55, s40, 10')
            k('s_add_u32 s55, s55, 0x%x' % H2)
            k('buffer_store_dwordx4 v[28:31], v24, s[8:11], s55 offen', tag='init')
            k('s_nop 1')
        if opt.get('tlb', 0):
            k('v_lshlrev_b32 v24, 16, v0')
            for j, sr in enumerate((C.S_WV, C.S_WK, C.S_WQ)):
                k('buffer_load_dword v%d, v24, %s, 0 offen' % (25 + j, s(sr, 4)))
            if opt.get('tlb', 0) > 1:
                k('v_lshlrev_b32 v24, 19, v0')
                k('buffer_load_dword v25, v24, %s, 0 offen sc1' % s(C.S_WS, 4))
        hook_loading()
        def hook_loading2():
            k.wait_vm('init')
            k('s_barrier')
            n = len(k.vm)
            ready_add(58, 59, sync=False)
            k.vm = k.vm[:n]
        k.hook_loading = hook_loading2
        nready = 256
        S_RDY = 63
        S_FKV = 62
        def fl_load(B, A, tag=None):
            k('s_mov_b64 exec, 15')
            k('buffer_load_dword %s, %s, %s, %s offen sc1' % (v(B), v(A), s(C.S_WS, 4), s(S_FKV)), tag=tag)
            k('s_mov_b64 exec, -1')
        def wait_kv(first, B=C.X3, A=C.L16, part=None):
            if not full: return
            L = k.newlabel('L_kv')
            def chk():
                k('v_cmp_ge_u32 vcc, %s, %s' % (s(C.S_T0), v(B)))
                k('s_and_b32 %s, vcc_lo, 15' % s(C.S_T1))
            if part in (None, 0):
                k('s_add_u32 %s, %s, %d' % (s(C.S_T0), s(C.S_STEP), 0 if first else 1))
                k('v_cmp_ge_u32 vcc, %s, %s' % (s(C.S_T0), v(B)))
                if part == 0: return
            if part == 2:
                fl_load(B, A); return
            k('s_and_b32 %s, vcc_lo, 15' % s(C.S_T1))
            k('s_cbranch_scc1 %s_slow' % L)
            k.label(L + '_ret')
            def slow():
                k.label(L + '_slow')
                k('s_mov_b32 %s, %d' % (s(C.S_SPIN), C.SPIN_MAX))
                k.label(L + '_p')
                fl_load(B, A)
                k('s_sub_u32 %s, %s, 1' % (s(C.S_SPIN), s(C.S_SPIN)))
                k('s_cbranch_scc1 L_fail')
                k('s_waitcnt vmcnt(0)')
                chk()
                k('s_cbranch_scc0 %s_ret' % L)
                k('s_sleep 2')
                k('s_branch %s_p' % L)
            k.deferred.append(slow)
        k.deferred = []
        def h4():
            n = len(k.vm)
            ready_add(58, 59, sync=False)
            k.vm = k.vm[:n]
        def h7():
            k('v_mov_b32 v58, %d' % D_READY)
            k('buffer_load_dword v58, v58, %s, 0 offen sc1' % s(C.S_DBG, 4), tag='rdy')
        def h12():
            L = k.newlabel('L_rdy')
            k.wait_vm('rdy')
            k('v_cmp_gt_u32 vcc, %d, v58' % nready)
            k('s_cbranch_vccnz %s' % L)
            k.label(L + '_ret')
            def slow():
                k.label(L)
                k('s_mov_b32 %s, %d' % (s(C.S_SPIN), C.SPIN_MAX))
                k.label(L + '_p')
                k('v_mov_b32 v58, %d' % D_READY)
                k('buffer_load_dword v58, v58, %s, 0 offen sc1' % s(C.S_DBG, 4))
                k('s_sub_u32 %s, %s, 1' % (s(C.S_SPIN), s(C.S_SPIN)))
                k('s_cbranch_scc1 L_fail')
                k('s_waitcnt vmcnt(0)')
                k('v_cmp_gt_u32 vcc, %d, v58' % nready)
                k('s_cbranch_vccnz %s_p' % L)
                k('s_branch %s_ret' % L)
            k.deferred.append(slow)
            k('s_lshl_b32 %s, %s, 2' % (s(S_FKV), s(C.S_H)))
            k('s_add_u32 %s, %s, %s' % (s(S_FKV), s(S_FKV), s(C.S_W)))
            k('s_lshl_b32 %s, %s, 7' % (s(S_FKV), s(S_FKV)))
            k('s_add_u32 %s, %s, 0x%x' % (s(S_FKV), s(S_FKV), F_KV))
            k('v_lshlrev_b32 v54, 4, v0')
            fl_load(55, 54, 'fkv')
        def h13():
            k.wait_vm('fkv')
            wait_kv(True, 55, 54)
        k.load_hooks = {opt.get('hk0', 14): h7, opt.get('hk', 22): h12, 28: h13}
        k.hook_prefetch = lambda part: wait_kv(False, part=part)
        C.chain(k, prof=opt.get('prof'), dump=opt.get('dump'), opt=opt)
        if opt.get('prof'):
            T = C.S_TS
            k.raw('  s_memtime %s' % s(T + 26, 2))
            k.raw('  s_memrealtime s[4:5]')
            k.raw('  s_waitcnt lgkmcnt(0)')
            k('s_mov_b32 %s, s4' % s(T + 17))
            k('s_sub_u32 %s, %s, %s' % (s(T + 21), s(T + 26), s(T + 24)))
            k('s_mov_b32 %s, %s' % (s(T + 20), s(T + 22)))
            k('s_sub_u32 %s, %s, s100' % (s(T + 19), s(T + 28)))
            k('s_sub_u32 %s, s98, s100' % s(T + 18))
            k('s_sub_u32 %s, %s, s100' % (s(T + 22), s(T + 24)))
            for i in range(8): k('v_mov_b32 %s, %s' % (v(i), s(T + 16 + i)))
            k('s_lshl_b32 s55, s40, 2')
            k('s_add_u32 s55, s55, s41')
            k('s_lshl_b32 s55, s55, 5')
            k('s_add_u32 s55, s55, 0x%x' % (DBG + 0x100000))
            k('v_mov_b32 v8, 0')
            k('buffer_store_dwordx4 v[0:3], v8, s[8:11], s55 offen')
            k('buffer_store_dwordx4 v[4:7], v8, s[8:11], s55 offen offset:16')
            if opt.get('ddbg'):
                k('s_mov_b64 exec, 1')
                for i, r in enumerate((2, 3, 6, 5)):
                    k('buffer_atomic_umax v%d, v8, s[32:35], 0 offen offset:%d sc1' % (r, 32 + 4 * i))
                k('s_memrealtime s[4:5]')
                k('s_waitcnt lgkmcnt(0)')
                k('s_sub_u32 s4, s4, s2')
                k('v_mov_b32 v9, s4')
                k('buffer_atomic_umax v9, v8, s[32:35], 0 offen offset:48 sc1')
                k('s_mov_b64 exec, -1')
        k('s_branch L_end')
        for f in k.deferred: f()
    else:
        k('s_branch L_end')
    k.label('L_spw')
    k('s_max_u32 %s, %s, 1' % (s(GRP), s(GRP)))
    k.label('L_worker')
    k.hist = []
    def stampw(i):
        if opt.get('prof'):
            k('s_memtime s[4:5]')
            k('s_waitcnt lgkmcnt(0)')
            k('s_sub_u32 s4, s4, s100')
            k('v_mov_b32 v7, s4')
            k('s_lshl_b32 s55, s50, 5')
            k('s_add_u32 s55, s55, s51')
            k('s_lshl_b32 s55, s55, 2')
            k('s_add_u32 s55, s55, s41')
            k('s_lshl_b32 s55, s55, 5')
            k('s_add_u32 s55, s55, 0x%x' % (DBG + 0x110000 + 4 * i))
            k('v_mov_b32 v6, 0')
            k('buffer_store_dword v7, v6, s[8:11], s55 offen')
    k('s_sub_u32 s55, %s, 1' % s(GRP))
    k('s_lshl_b32 s55, s55, 5')
    k('s_add_u32 s55, s55, %s' % s(TK))
    k('s_mul_i32 %s, s55, 9363' % s(C.S_H))
    k('s_lshr_b32 %s, %s, 16' % (s(C.S_H), s(C.S_H)))
    k('s_mul_i32 s56, %s, 7' % s(C.S_H))
    k('s_sub_u32 %s, s55, s56' % s(W.S_R))
    k('s_cmp_eq_u32 %s, 0' % s(W.S_R))
    k('s_cselect_b32 %s, 10, 9' % s(W.S_NSEG))
    W.setup_common(k)
    def winit():
        if full:
            k('s_lshl_b32 s55, s40, 2\ns_add_u32 s55, s55, s41\ns_lshl_b32 s55, s55, 3\ns_add_u32 s55, s55, s42\ns_lshl_b32 s55, s55, 4\ns_add_u32 s55, s55, 0x%x' % F_KV)
            W.set_flag(k, 55, '0')
            k('s_lshl_b32 s55, s40, 3\ns_add_u32 s55, s55, s42\ns_lshl_b32 s55, s55, 2\ns_add_u32 s55, s55, 0x%x' % F_D3)
            W.set_flag(k, 55, '0')
        if 'pb' in roles:
            k('s_lshl_b32 s55, s50, 20\ns_lshl_b32 s56, s51, 14\ns_add_u32 s55, s55, s56\ns_lshl_b32 s56, s41, 12\ns_add_u32 s55, s55, s56\ns_add_u32 s55, s55, 0x%x' % PB)
            for sl in range(2):
                for i in range(4): k('buffer_store_dwordx4 v[8:11], v1, s[8:11], s55 offen offset:%d' % (1024 * i))
                k('s_add_u32 s55, s55, 0x80000')
        if full:
            k('s_sub_u32 s55, s50, 1\ns_lshl_b32 s55, s55, 5\ns_add_u32 s55, s55, s51\ns_lshl_b32 s55, s55, 2\ns_add_u32 s55, s55, s41\ns_and_b32 s55, s55, 511\ns_lshl_b32 s55, s55, 10\ns_add_u32 s55, s55, 0x%x' % MEMX)
            k('buffer_store_dwordx4 v[8:11], v1, s[8:11], s55 offen sc1')
    if opt.get('warm', 1) and 'pj' in roles:
        k('s_sub_u32 s55, s50, 1\ns_lshl_b32 s55, s55, 5\ns_add_u32 s55, s55, s51\ns_lshl_b32 s55, s55, 2\ns_add_u32 s55, s55, s41\ns_lshl_b32 s55, s55, 10')
        k('v_add_u32 v16, s55, v1')
        for t in range(1, 5): k('v_add_u32 v%d, 0x%x, v16' % (16 + t, 896 * 1024 * t))
        for j, P in enumerate(opt.get('worder', [W.P_WO])):
            C.srd(k, C.S_WQ + 4 * j, P, 4 << 20)
            for t in range(5):
                k('buffer_load_dwordx4 v[%d:%d], v%d, %s, 0 offen %s' % (24 + 4 * t, 27 + 4 * t, 16 + t, s(C.S_WQ + 4 * j, 4), opt.get('wfl', '')))
    stampw(0)
    k.stampw = stampw
    if 'pj' in roles:
        winit()
        def k_early():
            k('s_waitcnt vmcnt(8)')
            k('s_barrier')
            n = len(k.vm)
            ready_add(sync=False)
            k.vm = k.vm[:n]
        k.after_x0 = k_early
        after_issue = None
        def after_wload():
            if opt.get('hold'):
                k('s_cmp_lt_u32 %s, %d' % (s(W.S_R), opt.get('holdc', 4)))
                k('s_cbranch_scc1 L_nohold')
                for i in range(opt['hold']): k('s_sleep 127')
                k.label('L_nohold')
        k.after_wload = after_wload
        W.proj(k, after_issue)
    else:
        winit(); ready_add()
    stampw(1)
    if full or 'pb' in roles:
        k('s_mov_b32 s55, %d' % D_READY)
        W.poll_flags(k, 55, 1, '%d' % (256 if 'chain' in roles else 224) if False else 's56', 'rdy', srdn=C.S_DBG) if False else None
        k('s_mov_b32 s56, %d' % (256 if 'chain' in roles else 224))
        W.poll_flags(k, 55, 1, 's56', 'rdy', srdn=C.S_DBG)
    pre = post = None
    if 'pb' in roles: pre, post, final = W.pb_loader(k)
    if 'ba' in roles: W.battn(k, waitflags=full, pre=pre, post=post)
    elif 'pb' in roles:
        for a_, b_ in zip(pre, post):
            a_()
            for i in range(32): k.pb_dma()
            k('s_waitcnt vmcnt(0)'); b_()
    stampw(3)
    if 'pb' in roles:
        final()
        stampw(2)
        k('s_mov_b32 %s, %s' % (s(C.S_H), s(TK)))
        W.phaseB(k, waitflags=full, opt=opt)
    stampw(4)
    if opt.get('prof'):
        k('s_memrealtime s[4:5]')
        k('s_waitcnt lgkmcnt(0)')
        k('v_mov_b32 v7, s4')
        k('buffer_store_dword v7, v6, s[8:11], s55 offen offset:4')
        k('v_mov_b32 v7, s2')
        k('buffer_store_dword v7, v6, s[8:11], s55 offen offset:8')
        if opt.get('ddbg'):
            k('s_mov_b64 exec, 1')
            k('v_mov_b32 v9, s4')
            k('buffer_atomic_umax v9, v6, s[32:35], 0 offen offset:52 sc1')
            k('s_not_b32 s2, s2')
            k('v_mov_b32 v9, s2')
            k('buffer_atomic_umax v9, v6, s[32:35], 0 offen offset:56 sc1')
            k('s_mov_b64 exec, -1')
    k('s_branch L_end')
    k.label('L_fail')
    k('s_mov_b64 exec, 1')
    k('v_mov_b32 v1, 128')
    k('v_mov_b32 v2, 1')
    k('buffer_atomic_add v2, v1, s[32:35], 0 offen sc1')
    k.label('L_end')
    k('s_endpgm')
    k.raw('''.section .rodata,"a"
.p2align 6
.amdhsa_kernel %s
  .amdhsa_next_free_vgpr 512
  .amdhsa_next_free_sgpr 102
  .amdhsa_accum_offset 256
  .amdhsa_group_segment_fixed_size 0
  .amdhsa_kernarg_size 112
  .amdhsa_user_sgpr_count 2
  .amdhsa_user_sgpr_kernarg_segment_ptr 1
  .amdhsa_system_sgpr_workgroup_id_x 1
.end_amdhsa_kernel''' % NAME)
    gen.points = getattr(k, 'points', [])
    txt = k.text()
    for a_, b_ in opt.get('sub', []):
        import re
        txt = re.sub(a_, b_, txt)
    return txt

if __name__ == '__main__':
    opt = json.loads(sys.argv[2]) if len(sys.argv) > 2 else {}
    open(sys.argv[1], 'w').write(gen(opt))
```

```python
import sys, json
sys.path.insert(0, 'gen')
from fw import *
from layout import *
import chain as C
import worker as W
NAME = 'gated_mix__memory_aug_recurrent_mem_tr__sliding_block__prompt_kernel'
HEAD = open('gated_mix__memory_aug_recurrent_mem_tr__sliding_block__prompt.s.ref').read().split('; Override')[0]
D_READY = 64

def gen(opt={}):
    C.JS = opt.get('js', 10240)
    roles = opt.get('roles', ['chain', 'pj', 'ba', 'pb'])
    full = len(roles) == 4
    k = K()
    k.raw(HEAD.rstrip())
    k.raw('; @launch grid=(256,1,1) block=(256,1,1) lds=163840')
    k.raw('.amdgcn_target "amdgcn-amd-amdhsa--gfx950"\n.text\n.globl %s\n.p2align 8\n.type %s,@function\n%s:' % (NAME, NAME, NAME))
    k('s_load_dwordx16 s[64:79], s[0:1], 0')
    k('s_load_dwordx8 s[80:87], s[0:1], 64')
    k('s_load_dwordx4 s[88:91], s[0:1], 96')
    if opt.get('prof'):
        k('s_memtime s[100:101]')
        k('s_memrealtime s[2:3]')
    if opt.get('cpf', 0):
        k('s_getpc_b64 s[4:5]')
        k.label('L_pc')
        k('v_lshlrev_b32 v10, 6, v0')
        k('v_mov_b32 v13, s5')
        for j in range(3):
            k('v_add_u32 v11, 0x%x, v10' % (j * 16384))
            k('v_min_u32 v11, L_end-L_pc, v11')
            k('v_add_co_u32 v12, vcc, s4, v11')
            k('v_addc_co_u32 v15, vcc, 0, v13, vcc')
            k('v_mov_b32 v14, v12')
            k('global_load_dword v%d, v[14:15], off' % (20 + j))
    k('s_getreg_b32 %s, hwreg(HW_REG_XCC_ID)' % s(W.S_GRP))
    k('s_and_b32 %s, %s, 7' % (s(W.S_GRP), s(W.S_GRP)))
    k('s_waitcnt lgkmcnt(0)')
    C.srd(k, C.S_WS, W.P_WS, WS_BYTES); C.srd(k, C.S_DBG, W.P_DBG, 256)
    k('''
  s_lshl_b32 s55, s50, 2
  v_mov_b32 v1, 0
  v_mov_b32 v2, 1
  v_cmp_eq_u32 vcc, 0, v0
  s_and_saveexec_b64 s[4:5], vcc
  s_cbranch_execz L_t1
  buffer_atomic_add v2, v1, s[32:35], s55 offen sc0 sc1
  s_waitcnt vmcnt(0)
  ds_write_b32 v1, v2
  s_waitcnt lgkmcnt(0)
L_t1:
  s_mov_b64 exec, s[4:5]
  s_barrier
  ds_read_b32 v2, v1
  v_lshrrev_b32 v3, 6, v0
  s_waitcnt lgkmcnt(0)
  v_readfirstlane_b32 s51, v2
  v_readfirstlane_b32 s41, v3
  v_and_b32 v0, 63, v0
  s_barrier
  s_cmp_ge_u32 s51, 32
  s_cbranch_scc1 L_end
''')
    TK, GRP = W.S_TK, W.S_GRP
    if opt.get('prof'):
        k('s_memtime s[98:99]')
        k('s_waitcnt lgkmcnt(0)')
    def ready_add(ra=6, rb=7, sync=True):
        if sync:
            k('s_waitcnt vmcnt(0)')
            k('s_barrier')
        L = k.newlabel('L_ra')
        k('s_cmp_lg_u32 %s, 0' % s(C.S_W))
        k('s_cbranch_scc1 %s' % L)
        k('v_mov_b32 v%d, %d' % (ra, D_READY))
        k('v_mov_b32 v%d, 1' % rb)
        k('s_mov_b64 exec, 1')
        k('buffer_atomic_add v%d, v%d, s[32:35], 0 offen sc1' % (rb, ra))
        k('s_mov_b64 exec, -1')
        k.label(L)
    k('v_lshlrev_b32 v1, 4, v0')
    for i in range(4): k('v_mov_b32 v%d, -1' % (8 + i))
    if opt.get('spread'):
        k('s_cmp_ge_u32 s2, 32')
        k('s_cbranch_scc1 L_spw')
        k('s_mov_b32 %s, s2' % s(TK))
    else:
        k('s_cmp_lg_u32 %s, 0' % s(GRP))
        k('s_cbranch_scc1 L_worker')
    if 'chain' in roles:
        k('s_mov_b32 %s, %s' % (s(C.S_H), s(TK)))
        C.srd(k, C.S_WQ, W.P_WQ, 4 << 20); C.srd(k, C.S_WK, W.P_WK, 4 << 20); C.srd(k, C.S_WV, W.P_WV, 4 << 20); C.srd(k, C.S_WO, W.P_WO, 4 << 20)
        C.srd(k, C.S_M0, W.P_MEM0, 8192)
        def hook_loading():
            k('v_lshlrev_b32 v24, 4, v0')
            for i in range(4): k('v_mov_b32 v%d, -1' % (28 + i))
            k('s_mul_i32 s55, s40, %d' % C.JS)
            k('s_lshl_b32 s56, s41, 11')
            k('s_add_u32 s55, s55, s56')
            k('s_add_u32 s55, s55, 0x%x' % INB)
            for i in range(2):
                k('buffer_store_dwordx4 v[28:31], v24, s[8:11], s55 offen offset:%d' % (1024 * i), tag='init')
            k('s_lshl_b32 s55, s40, 10')
            k('s_add_u32 s55, s55, 0x%x' % H2)
            k('buffer_store_dwordx4 v[28:31], v24, s[8:11], s55 offen', tag='init')
            k('s_nop 1')
        if opt.get('tlb', 0):
            k('v_lshlrev_b32 v24, 16, v0')
            for j, sr in enumerate((C.S_WV, C.S_WK, C.S_WQ)):
                k('buffer_load_dword v%d, v24, %s, 0 offen' % (25 + j, s(sr, 4)))
            if opt.get('tlb', 0) > 1:
                k('v_lshlrev_b32 v24, 19, v0')
                k('buffer_load_dword v25, v24, %s, 0 offen sc1' % s(C.S_WS, 4))
        hook_loading()
        def hook_loading2():
            k.wait_vm('init')
            k('s_barrier')
            n = len(k.vm)
            ready_add(58, 59, sync=False)
            k.vm = k.vm[:n]
        k.hook_loading = hook_loading2
        nready = 256
        S_RDY = 63
        S_FKV = 62
        def fl_load(B, A, tag=None):
            k('s_mov_b64 exec, 15')
            k('buffer_load_dword %s, %s, %s, %s offen sc1' % (v(B), v(A), s(C.S_WS, 4), s(S_FKV)), tag=tag)
            k('s_mov_b64 exec, -1')
        def wait_kv(first, B=C.X3, A=C.L16, part=None):
            if not full: return
            L = k.newlabel('L_kv')
            def chk():
                k('v_cmp_ge_u32 vcc, %s, %s' % (s(C.S_T0), v(B)))
                k('s_and_b32 %s, vcc_lo, 15' % s(C.S_T1))
            if part in (None, 0):
                k('s_add_u32 %s, %s, %d' % (s(C.S_T0), s(C.S_STEP), 0 if first else 1))
                k('v_cmp_ge_u32 vcc, %s, %s' % (s(C.S_T0), v(B)))
                if part == 0: return
            if part == 2:
                fl_load(B, A); return
            k('s_and_b32 %s, vcc_lo, 15' % s(C.S_T1))
            k('s_cbranch_scc1 %s_slow' % L)
            k.label(L + '_ret')
            def slow():
                k.label(L + '_slow')
                k('s_mov_b32 %s, %d' % (s(C.S_SPIN), C.SPIN_MAX))
                k.label(L + '_p')
                fl_load(B, A)
                k('s_sub_u32 %s, %s, 1' % (s(C.S_SPIN), s(C.S_SPIN)))
                k('s_cbranch_scc1 L_fail')
                k('s_waitcnt vmcnt(0)')
                chk()
                k('s_cbranch_scc0 %s_ret' % L)
                k('s_sleep 2')
                k('s_branch %s_p' % L)
            k.deferred.append(slow)
        k.deferred = []
        def h4():
            n = len(k.vm)
            ready_add(58, 59, sync=False)
            k.vm = k.vm[:n]
        def h7():
            k('v_mov_b32 v58, %d' % D_READY)
            k('buffer_load_dword v58, v58, %s, 0 offen sc1' % s(C.S_DBG, 4), tag='rdy')
        def h12():
            L = k.newlabel('L_rdy')
            k.wait_vm('rdy')
            k('v_cmp_gt_u32 vcc, %d, v58' % nready)
            k('s_cbranch_vccnz %s' % L)
            k.label(L + '_ret')
            def slow():
                k.label(L)
                k('s_mov_b32 %s, %d' % (s(C.S_SPIN), C.SPIN_MAX))
                k.label(L + '_p')
                k('v_mov_b32 v58, %d' % D_READY)
                k('buffer_load_dword v58, v58, %s, 0 offen sc1' % s(C.S_DBG, 4))
                k('s_sub_u32 %s, %s, 1' % (s(C.S_SPIN), s(C.S_SPIN)))
                k('s_cbranch_scc1 L_fail')
                k('s_waitcnt vmcnt(0)')
                k('v_cmp_gt_u32 vcc, %d, v58' % nready)
                k('s_cbranch_vccnz %s_p' % L)
                k('s_branch %s_ret' % L)
            k.deferred.append(slow)
            k('s_lshl_b32 %s, %s, 2' % (s(S_FKV), s(C.S_H)))
            k('s_add_u32 %s, %s, %s' % (s(S_FKV), s(S_FKV), s(C.S_W)))
            k('s_lshl_b32 %s, %s, 7' % (s(S_FKV), s(S_FKV)))
            k('s_add_u32 %s, %s, 0x%x' % (s(S_FKV), s(S_FKV), F_KV))
            k('v_lshlrev_b32 v54, 4, v0')
            fl_load(55, 54, 'fkv')
        def h13():
            k.wait_vm('fkv')
            wait_kv(True, 55, 54)
        k.load_hooks = {opt.get('hk0', 14): h7, opt.get('hk', 22): h12, 28: h13}
        k.hook_prefetch = lambda part: wait_kv(False, part=part)
        C.chain(k, prof=opt.get('prof'), dump=opt.get('dump'), opt=opt)
        if opt.get('prof'):
            T = C.S_TS
            k.raw('  s_memtime %s' % s(T + 26, 2))
            k.raw('  s_memrealtime s[4:5]')
            k.raw('  s_waitcnt lgkmcnt(0)')
            k('s_mov_b32 %s, s4' % s(T + 17))
            k('s_sub_u32 %s, %s, %s' % (s(T + 21), s(T + 26), s(T + 24)))
            k('s_mov_b32 %s, %s' % (s(T + 20), s(T + 22)))
            k('s_sub_u32 %s, %s, s100' % (s(T + 19), s(T + 28)))
            k('s_sub_u32 %s, s98, s100' % s(T + 18))
            k('s_sub_u32 %s, %s, s100' % (s(T + 22), s(T + 24)))
            for i in range(8): k('v_mov_b32 %s, %s' % (v(i), s(T + 16 + i)))
            k('s_lshl_b32 s55, s40, 2')
            k('s_add_u32 s55, s55, s41')
            k('s_lshl_b32 s55, s55, 5')
            k('s_add_u32 s55, s55, 0x%x' % (DBG + 0x100000))
            k('v_mov_b32 v8, 0')
            k('buffer_store_dwordx4 v[0:3], v8, s[8:11], s55 offen')
            k('buffer_store_dwordx4 v[4:7], v8, s[8:11], s55 offen offset:16')
            if opt.get('ddbg'):
                k('s_mov_b64 exec, 1')
                for i, r in enumerate((2, 3, 6, 5)):
                    k('buffer_atomic_umax v%d, v8, s[32:35], 0 offen offset:%d sc1' % (r, 32 + 4 * i))
                k('s_memrealtime s[4:5]')
                k('s_waitcnt lgkmcnt(0)')
                k('s_sub_u32 s4, s4, s2')
                k('v_mov_b32 v9, s4')
                k('buffer_atomic_umax v9, v8, s[32:35], 0 offen offset:48 sc1')
                k('s_mov_b64 exec, -1')
        k('s_branch L_end')
        for f in k.deferred: f()
    else:
        k('s_branch L_end')
    k.label('L_spw')
    k('s_max_u32 %s, %s, 1' % (s(GRP), s(GRP)))
    k.label('L_worker')
    k.hist = []
    def stampw(i):
        if opt.get('prof'):
            k('s_memtime s[4:5]')
            k('s_waitcnt lgkmcnt(0)')
            k('s_sub_u32 s4, s4, s100')
            k('v_mov_b32 v7, s4')
            k('s_lshl_b32 s55, s50, 5')
            k('s_add_u32 s55, s55, s51')
            k('s_lshl_b32 s55, s55, 2')
            k('s_add_u32 s55, s55, s41')
            k('s_lshl_b32 s55, s55, 5')
            k('s_add_u32 s55, s55, 0x%x' % (DBG + 0x110000 + 4 * i))
            k('v_mov_b32 v6, 0')
            k('buffer_store_dword v7, v6, s[8:11], s55 offen')
    k('s_sub_u32 s55, %s, 1' % s(GRP))
    k('s_lshl_b32 s55, s55, 5')
    k('s_add_u32 s55, s55, %s' % s(TK))
    k('s_mul_i32 %s, s55, 9363' % s(C.S_H))
    k('s_lshr_b32 %s, %s, 16' % (s(C.S_H), s(C.S_H)))
    k('s_mul_i32 s56, %s, 7' % s(C.S_H))
    k('s_sub_u32 %s, s55, s56' % s(W.S_R))
    k('s_cmp_eq_u32 %s, 0' % s(W.S_R))
    k('s_cselect_b32 %s, 10, 9' % s(W.S_NSEG))
    W.setup_common(k)
    def winit():
        if full:
            k('s_lshl_b32 s55, s40, 2\ns_add_u32 s55, s55, s41\ns_lshl_b32 s55, s55, 3\ns_add_u32 s55, s55, s42\ns_lshl_b32 s55, s55, 4\ns_add_u32 s55, s55, 0x%x' % F_KV)
            W.set_flag(k, 55, '0')
            k('s_lshl_b32 s55, s40, 3\ns_add_u32 s55, s55, s42\ns_lshl_b32 s55, s55, 2\ns_add_u32 s55, s55, 0x%x' % F_D3)
            W.set_flag(k, 55, '0')
        if 'pb' in roles:
            k('s_lshl_b32 s55, s50, 20\ns_lshl_b32 s56, s51, 14\ns_add_u32 s55, s55, s56\ns_lshl_b32 s56, s41, 12\ns_add_u32 s55, s55, s56\ns_add_u32 s55, s55, 0x%x' % PB)
            for sl in range(2):
                for i in range(4): k('buffer_store_dwordx4 v[8:11], v1, s[8:11], s55 offen offset:%d' % (1024 * i))
                k('s_add_u32 s55, s55, 0x80000')
        if full:
            k('s_sub_u32 s55, s50, 1\ns_lshl_b32 s55, s55, 5\ns_add_u32 s55, s55, s51\ns_lshl_b32 s55, s55, 2\ns_add_u32 s55, s55, s41\ns_and_b32 s55, s55, 511\ns_lshl_b32 s55, s55, 10\ns_add_u32 s55, s55, 0x%x' % MEMX)
            k('buffer_store_dwordx4 v[8:11], v1, s[8:11], s55 offen sc1')
    if opt.get('warm', 0) and 'pj' in roles:
        k('s_sub_u32 s55, s50, 1\ns_lshl_b32 s55, s55, 5\ns_add_u32 s55, s55, s51\ns_lshl_b32 s55, s55, 2\ns_add_u32 s55, s55, s41\ns_lshl_b32 s55, s55, 10')
        k('v_add_u32 v16, s55, v1')
        for t in range(1, 5): k('v_add_u32 v%d, 0x%x, v16' % (16 + t, 896 * 1024 * t))
        for j, P in enumerate(opt.get('worder', [W.P_WO])):
            C.srd(k, C.S_WQ + 4 * j, P, 4 << 20)
            for t in range(5):
                k('buffer_load_dwordx4 v[%d:%d], v%d, %s, 0 offen %s' % (24 + 4 * t, 27 + 4 * t, 16 + t, s(C.S_WQ + 4 * j, 4), opt.get('wfl', '')))
    stampw(0)
    k.stampw = stampw
    if 'pj' in roles:
        winit()
        def k_early():
            k('s_waitcnt vmcnt(8)')
            k('s_barrier')
            n = len(k.vm)
            ready_add(sync=False)
            k.vm = k.vm[:n]
        k.after_x0 = k_early
        after_issue = None
        def after_wload():
            if opt.get('hold'):
                k('s_cmp_lt_u32 %s, %d' % (s(W.S_R), opt.get('holdc', 4)))
                k('s_cbranch_scc1 L_nohold')
                for i in range(opt['hold']): k('s_sleep 127')
                k.label('L_nohold')
        k.after_wload = after_wload
        W.proj(k, after_issue)
    else:
        winit(); ready_add()
    stampw(1)
    if full or 'pb' in roles:
        k('s_mov_b32 s55, %d' % D_READY)
        W.poll_flags(k, 55, 1, '%d' % (256 if 'chain' in roles else 224) if False else 's56', 'rdy', srdn=C.S_DBG) if False else None
        k('s_mov_b32 s56, %d' % (256 if 'chain' in roles else 224))
        W.poll_flags(k, 55, 1, 's56', 'rdy', srdn=C.S_DBG)
    pre = post = None
    if 'pb' in roles: pre, post, final = W.pb_loader(k)
    if 'ba' in roles: W.battn(k, waitflags=full, pre=pre, post=post)
    elif 'pb' in roles:
        for a_, b_ in zip(pre, post):
            a_()
            for i in range(32): k.pb_dma()
            k('s_waitcnt vmcnt(0)'); b_()
    stampw(3)
    if 'pb' in roles:
        final()
        stampw(2)
        k('s_mov_b32 %s, %s' % (s(C.S_H), s(TK)))
        W.phaseB(k, waitflags=full, opt=opt)
    stampw(4)
    if opt.get('prof'):
        k('s_memrealtime s[4:5]')
        k('s_waitcnt lgkmcnt(0)')
        k('v_mov_b32 v7, s4')
        k('buffer_store_dword v7, v6, s[8:11], s55 offen offset:4')
        k('v_mov_b32 v7, s2')
        k('buffer_store_dword v7, v6, s[8:11], s55 offen offset:8')
        if opt.get('ddbg'):
            k('s_mov_b64 exec, 1')
            k('v_mov_b32 v9, s4')
            k('buffer_atomic_umax v9, v6, s[32:35], 0 offen offset:52 sc1')
            k('s_not_b32 s2, s2')
            k('v_mov_b32 v9, s2')
            k('buffer_atomic_umax v9, v6, s[32:35], 0 offen offset:56 sc1')
            k('s_mov_b64 exec, -1')
    k('s_branch L_end')
    k.label('L_fail')
    k('s_mov_b64 exec, 1')
    k('v_mov_b32 v1, 128')
    k('v_mov_b32 v2, 1')
    k('buffer_atomic_add v2, v1, s[32:35], 0 offen sc1')
    k.label('L_end')
    k('s_endpgm')
    k.raw('''.section .rodata,"a"
.p2align 6
.amdhsa_kernel %s
  .amdhsa_next_free_vgpr 512
  .amdhsa_next_free_sgpr 102
  .amdhsa_accum_offset 256
  .amdhsa_group_segment_fixed_size 0
  .amdhsa_kernarg_size 112
  .amdhsa_user_sgpr_count 2
  .amdhsa_user_sgpr_kernarg_segment_ptr 1
  .amdhsa_system_sgpr_workgroup_id_x 1
.end_amdhsa_kernel''' % NAME)
    gen.points = getattr(k, 'points', [])
    txt = k.text()
    for a_, b_ in opt.get('sub', []):
        import re
        txt = re.sub(a_, b_, txt)
    return txt

if __name__ == '__main__':
    opt = json.loads(sys.argv[2]) if len(sys.argv) > 2 else {}
    open(sys.argv[1], 'w').write(gen(opt))
```

```python
from fw import *
from layout import *
import math, struct

S_WS, S_WQ, S_WK, S_WV, S_WO, S_M0, S_DBG = 8, 12, 16, 20, 24, 28, 32
S_H, S_W, S_STEP, S_TAG = 40, 41, 42, 43
S_KV, S_KVM, S_INW0, S_INW1, S_INR0, S_DEF, S_H2W, S_H2R, S_H2RST = 44, 45, 46, 47, 48, 49, 51, 52, 53
S_SPIN, S_T0, S_T1, S_T2 = 54, 55, 56, 57
S_C = 58
S_TS = 64

MEMF, ACCQK, ACCV, KVC, KVN, T1 = 0, 32, 48, 56, 72, 88
SELR, SELT = 96, 102
X0, X1 = 100, 101
IDX, L16, L16W, MEMR, SMW, SMR, OW, OR_, ST1, ST2, STRM, IDXR = 104, 105, 106, 107, 110, 111, 112, 113, 114, 115, 116, 117
X2, X3 = 118, 119
SBUF = 120
VSTAT = 144
L_MEM, L_SX, L_SM, L_OX, L_WS = 0, 8192, 8192 + 2 * 2048 + 1024, 8192 + 1024, 16384
WSTRIDE = 36864
OOR = 0x30000
SPIN_MAX = 1 << 20

def f2u(x):
    return struct.unpack('<I', struct.pack('<f', x))[0]

def srd(k, base, ptr_lo, nbytes):
    k('s_mov_b32 %s, %s' % (s(base), s(ptr_lo)))
    k('s_and_b32 %s, %s, 0xffff' % (s(base + 1), s(ptr_lo + 1)))
    k('s_mov_b32 %s, 0x%x' % (s(base + 2), nbytes))
    k('s_mov_b32 %s, 0x00020000' % s(base + 3))

ALLOPS = [(m, kap, t) for m in 'qkv' for kap in range(8) for t in range(2)] + [('o', a_, kap) for a_ in range(4) for kap in range(4)]
STREAM = [('q', 0, 0), ('k', 0, 0), ('q', 2, 1), ('q', 6, 0), ('k', 2, 1), ('k', 6, 0), ('q', 1, 1), ('q', 3, 1), ('q', 7, 0),
          ('k', 3, 1), ('k', 7, 0), ('v', 2, 0), ('v', 3, 0), ('v', 4, 0), ('o', 2, 0), ('o', 1, 2), ('o', 2, 1), ('o', 3, 3)]
NS = len(STREAM)

def op_locs():
    loc = {}
    na = nv = 0
    for o in ALLOPS:
        if o in STREAM:
            loc[o] = ('s', STREAM.index(o))
        elif na < 32:
            loc[o] = ('a', 8 * na); na += 1
        else:
            loc[o] = ('v', VSTAT + 8 * nv); nv += 1
    assert na == 32 and nv == 14 and NS == 18
    return loc

def dst(loc, r, n):
    return (a if loc[0] == 'a' else v)(loc[1] + r, n)

JS = 10240
def consts(k, LANE, H2L=0):
    k.c('===== chain: constants =====')
    tA, tB, tC, tD = 8, 9, 10, 11
    u4, u5, u6, u7 = 12, 13, 14, 15
    k('s_lshl_b32 %s, %s, 11' % (s(S_T0), s(S_W)))
    k('v_add_u32 %s, %s, %s' % (v(L16W), s(S_T0), v(L16)))
    for p in (1, 2, 3):
        k('v_xor_b32 %s, 0x%x, %s' % (v(MEMR + p - 1), p << 11, v(L16W)))
    k('v_and_b32 %s, 15, %s' % (v(tA), v(LANE)))
    k('v_lshrrev_b32 %s, 4, %s' % (v(tB), v(LANE)))
    k('v_and_b32 %s, 7, %s' % (v(tC), v(LANE)))
    k('v_cmp_gt_u32 vcc, 8, %s' % v(tA))
    k('v_mov_b32 %s, 0xeeee' % v(IDX))
    k('v_mov_b32 %s, 0x4444' % v(tD))
    k('v_cndmask_b32 %s, %s, %s, vcc' % (v(IDX), v(IDX), v(tD)))
    k('v_mov_b32 %s, 0x%x' % (v(tD), OOR))
    k('v_lshl_add_u32 %s, %s, 3, %s' % (v(OR_), v(tB), v(tC)))
    k('v_lshlrev_b32 %s, 4, %s' % (v(OR_), v(OR_)))
    k('s_and_b32 %s, %s, 1' % (s(S_T0), s(S_W)))
    k('s_lshl_b32 %s, %s, 9' % (s(S_T0), s(S_T0)))
    k('s_lshr_b32 %s, %s, 1' % (s(S_T1), s(S_W)))
    k('s_lshl_b32 %s, %s, 11' % (s(S_T1), s(S_T1)))
    k('s_add_u32 %s, %s, %s' % (s(S_T0), s(S_T0), s(S_T1)))
    k('v_add_u32 %s, %s, %s' % (v(OW), s(S_T0), v(OR_)))
    for p in (1, 2, 3):
        k('v_xor_b32 %s, 0x%x, %s' % (v([X0, X1, X2][p - 1]), ((p & 1) << 9) | ((p >> 1) << 11), v(OW)))
    k('v_cndmask_b32 %s, %s, %s, vcc' % (v(OW), v(tD), v(OW)))
    k('v_and_b32 %s, 0xff, %s' % (v(SMR), v(OR_)))
    k('v_and_b32 %s, 8, %s' % (v(u4), v(tA)))
    k('v_add_u32 %s, %s, %s' % (v(SMR), v(u4), v(SMR)))
    k('v_add_u32 %s, %d, %s' % (v(SMR), L_SM, v(SMR)))
    k('s_lshl_b32 %s, %s, 8' % (s(S_T0), s(S_W)))
    k('v_add_u32 %s, %s, %s' % (v(SMW), s(S_T0), v(SMR)))
    k('v_cmp_gt_u32 vcc, 32, %s' % v(LANE))
    k('v_cndmask_b32 %s, %s, %s, vcc' % (v(SMW), v(tD), v(SMW)))
    k('v_lshrrev_b32 %s, 3, %s' % (v(u4), v(LANE)))
    k('v_mul_u32_u24 %s, %d, %s' % (v(ST1), JS, v(u4)))
    k('v_lshl_add_u32 %s, %s, 3, %s' % (v(ST1), v(tC), v(ST1)))
    k('v_lshlrev_b32 %s, 2, %s' % (v(ST2), v(tA)))
    k('v_lshl_add_u32 %s, %s, 4, %s' % (v(ST2), v(tB), v(ST2)))
    k('s_lshr_b32 %s, %s, 3' % (s(S_T0), s(S_H)))
    k('s_lshl_b32 %s, %s, 11' % (s(S_T0), s(S_T0)))
    for (src, bit, sh) in ((S_W, 1, 10), (S_W, 0, 9), (S_H, 2, 8), (S_H, 0, 7), (S_H, 1, 6)):
        k('s_bfe_u32 %s, %s, 0x%x' % (s(S_T1), s(src), (1 << 16) | bit))
        k('s_lshl_b32 %s, %s, %d' % (s(S_T1), s(S_T1), sh))
        k('s_add_u32 %s, %s, %s' % (s(S_T0), s(S_T0), s(S_T1)))
    k('v_add_u32 %s, %s, %s' % (v(ST2), s(S_T0), v(ST2)))
    k('v_cmp_gt_u32 vcc, 4, %s' % v(tA))
    k('v_bfrev_b32 %s, 1' % v(u4))
    k('v_cndmask_b32 %s, %s, %s, vcc' % (v(ST2), v(u4), v(ST2)))
    k('v_and_b32 %s, 1, %s' % (v(tD), v(tB)))
    k('v_lshlrev_b32 %s, 2, %s' % (v(tD), v(tD)))
    k('v_sub_u32 %s, %s, %s' % (v(tD), v(tC), v(tD)))
    k('v_mov_b32 %s, 0x3f80' % v(u4))
    k('v_mov_b32 %s, 0x3f800000' % v(u5))
    for r in range(2):
        k('v_mov_b32 %s, 0' % v(SELT + r))
        k('v_cmp_eq_u32 vcc, %d, %s' % (2 * r, v(tD)))
        k('v_cndmask_b32 %s, %s, %s, vcc' % (v(SELT + r), v(SELT + r), v(u4)))
        k('v_cmp_eq_u32 vcc, %d, %s' % (2 * r + 1, v(tD)))
        k('v_cndmask_b32 %s, %s, %s, vcc' % (v(SELT + r), v(SELT + r), v(u5)))
    k('v_and_b32 %s, 2, %s' % (v(u6), v(tA)))
    k('v_cmp_eq_u32 vcc, 0, %s' % v(u6))
    k('v_mov_b32 %s, 0' % v(u7))
    k('v_cndmask_b32 %s, %s, %s, vcc' % (v(u6), v(u7), v(u4)))
    k('v_and_b32 %s, 1, %s' % (v(u5), v(tA)))
    k('v_cmp_eq_u32 vcc, 0, %s' % v(u5))
    k('v_cndmask_b32 %s, %s, %s, vcc' % (v(SELR), v(u7), v(u6)))
    k('v_cndmask_b32 %s, %s, %s, vcc' % (v(SELR + 1), v(u6), v(u7)))
    k('v_mov_b32 %s, %s' % (v(SELR + 2), v(SELR)))
    k('v_mov_b32 %s, %s' % (v(SELR + 3), v(SELR + 1)))
    k('v_lshrrev_b32 %s, 2, %s' % (v(u6), v(tA)))
    k('v_xor_b32 %s, 1, %s' % (v(u7), v(u6)))
    k('v_lshl_add_u32 %s, %s, 2, %s' % (v(u6), v(u7), v(u6)))
    k('v_mul_u32_u24 %s, 0x1111, %s' % (v(IDXR), v(u6)))

def loader(k, LANE, LOC, after_issue=None, hooks={}):
    k.c('===== chain: weight load =====')
    GQ, GO, TRQ, TRP, TRO, LW, u, u2 = 1, 2, 3, 4, 5, 6, 7, 8
    RAW = 8
    k('s_mul_i32 %s, %s, %d' % (s(S_T2), s(S_W), WSTRIDE))
    k('s_add_u32 %s, %s, %d' % (s(S_T2), s(S_T2), L_WS))
    k('v_lshrrev_b32 %s, 3, %s' % (v(u), v(LANE)))
    k('v_and_b32 %s, 7, %s' % (v(u2), v(LANE)))
    k('v_lshlrev_b32 %s, 4, %s' % (v(u2), v(u2)))
    k('v_lshl_add_u32 %s, %s, 13, %s' % (v(GQ), v(u), v(u2)))
    k('v_lshl_add_u32 %s, %s, 10, %s' % (v(GO), v(u), v(u2)))
    k('s_lshl_b32 %s, %s, 8' % (s(S_T0), s(S_H)))
    k('s_lshr_b32 %s, %s, 1' % (s(S_T1), s(S_W)))
    k('s_lshl_b32 %s, %s, 7' % (s(S_T1), s(S_T1)))
    k('s_add_u32 %s, %s, %s' % (s(S_T0), s(S_T0), s(S_T1)))
    k('v_add_u32 %s, %s, %s' % (v(GQ), s(S_T0), v(GQ)))
    k('s_lshl_b32 %s, %s, 17' % (s(S_T0), s(S_H)))
    k('s_lshl_b32 %s, %s, 8' % (s(S_T1), s(S_W)))
    k('s_add_u32 %s, %s, %s' % (s(S_T0), s(S_T0), s(S_T1)))
    k('v_add_u32 %s, %s, %s' % (v(GO), s(S_T0), v(GO)))
    its = [('o', 0, 0), ('o', 1, 0), ('o', 0, 1), ('o', 1, 1), ('v', 5), ('v', 1), ('v', 4), ('k', 5), ('q', 5), ('v', 0), ('k', 4), ('q', 4), ('k', 1), ('k', 0), ('q', 1), ('q', 0)]
    if k.wolast:
        its = [('v', 5), ('v', 1), ('v', 4), ('k', 5), ('q', 5), ('v', 0), ('k', 4), ('q', 4), ('k', 1), ('k', 0), ('q', 1), ('q', 0), ('o', 0, 0), ('o', 0, 1), ('o', 1, 0), ('o', 1, 1)]
    GP, PD = 50, 51
    GQ1, TRQ1, TRP1 = 47 + 1, 49, 52
    k('v_bfe_u32 %s, %s, 5, 1' % (v(PD), v(LANE)))
    k('v_lshlrev_b32 %s, 5, %s' % (v(PD), v(PD)))
    k('v_xor_b32 %s, %s, %s' % (v(GQ), v(PD), v(GQ)))
    k('v_xor_b32 %s, 64, %s' % (v(GQ1), v(GQ)))
    k('v_lshlrev_b32 %s, 13, %s' % (v(GP), v(u)))
    k('v_bfe_u32 %s, %s, 1, 2' % (v(PD), v(LANE)))
    k('v_lshl_add_u32 %s, %s, 8, %s' % (v(GP), v(PD), v(GP)))
    k('v_and_b32 %s, 1, %s' % (v(PD), v(LANE)))
    k('v_lshl_add_u32 %s, %s, 6, %s' % (v(GP), v(PD), v(GP)))
    k('s_and_b32 %s, %s, 3' % (s(S_T0), s(S_H)))
    k('s_lshl_b32 %s, %s, 16' % (s(S_T0), s(S_T0)))
    k('s_lshr_b32 %s, %s, 2' % (s(S_T1), s(S_H)))
    k('s_lshl_b32 %s, %s, 10' % (s(S_T1), s(S_T1)))
    k('s_add_u32 %s, %s, %s' % (s(S_T0), s(S_T0), s(S_T1)))
    k('s_lshr_b32 %s, %s, 1' % (s(S_T1), s(S_W)))
    k('s_lshl_b32 %s, %s, 7' % (s(S_T1), s(S_T1)))
    k('s_add_u32 %s, %s, %s' % (s(S_T0), s(S_T0), s(S_T1)))
    k('v_add_u32 %s, %s, %s' % (v(GP), s(S_T0), v(GP)))
    its = [(it, hf) for it in its for hf in range(2)]
    def touch(li):
        if li >= len(its) or not k.pdist: return
        it, hf = its[li]
        if it[0] == 'o': return
        k('s_lshl_b32 %s, %s, 2' % (s(S_T0), s(S_W)))
        k('s_xor_b32 %s, %s, %d' % (s(S_T0), s(S_T0), 2 * it[1] + hf))
        k('s_lshl_b32 %s, %s, 18' % (s(S_T0), s(S_T0)))
        k('buffer_load_dword %s, %s, %s, %s offen' % (v(PD), v(GP), s({'q': S_WQ, 'k': S_WK, 'v': S_WV}[it[0]], 4), s(S_T0)))
    NI, NSL = len(its), 9
    def issue(li):
        it, hf = its[li]; slot = li % NSL
        for i in range(4):
            if it[0] == 'o':
                srdn, ga = S_WO, GO
                if i == 0:
                    k('s_xor_b32 %s, %s, %d' % (s(S_T0), s(S_W), 2 * it[2] + hf))
                    k('s_lshl_b32 %s, %s, 15' % (s(S_T0), s(S_T0)))
                    k('s_add_u32 %s, %s, %d' % (s(S_T0), s(S_T0), it[1] * 128))
                else:
                    k('s_add_u32 %s, %s, %d' % (s(S_T0), s(S_T0), 8 * 1024))
            else:
                srdn, ga = {'q': S_WQ, 'k': S_WK, 'v': S_WV}[it[0]], (GQ1 if i & 1 else GQ)
                if i == 0:
                    k('s_lshl_b32 %s, %s, 2' % (s(S_T0), s(S_W)))
                    k('s_xor_b32 %s, %s, %d' % (s(S_T0), s(S_T0), 2 * it[1] + hf))
                    k('s_lshl_b32 %s, %s, 18' % (s(S_T0), s(S_T0)))
                else:
                    k('s_add_u32 %s, %s, %d' % (s(S_T0), s(S_T0), 8 * 8192))
            k('s_add_u32 m0, %s, %d' % (s(S_T2), slot * 4096 + i * 1024))
            k('buffer_load_dwordx4 %s, %s, %s offen lds' % (v(ga), s(srdn, 4), s(S_T0)), tag=('wl', li))
    LA = k.lookahead
    for li in range(LA): issue(li)
    k('v_bfe_u32 %s, %s, 5, 1' % (v(u), v(LANE)))
    k('v_lshlrev_b32 %s, 4, %s' % (v(TRQ), v(u)))
    k('v_lshlrev_b32 %s, 2, %s' % (v(TRO), v(u)))
    k('v_bfe_u32 %s, %s, 4, 1' % (v(u), v(LANE)))
    k('v_lshl_add_u32 %s, %s, 2, %s' % (v(TRQ), v(u), v(TRQ)))
    k('v_lshl_add_u32 %s, %s, 4, %s' % (v(TRO), v(u), v(TRO)))
    k('v_bfe_u32 %s, %s, 3, 1' % (v(u), v(LANE)))
    k('v_lshl_add_u32 %s, %s, 3, %s' % (v(TRQ), v(u), v(TRQ)))
    k('v_bfe_u32 %s, %s, 2, 1' % (v(u), v(LANE)))
    k('v_add_u32 %s, %s, %s' % (v(TRQ), v(u), v(TRQ)))
    k('v_bfe_u32 %s, %s, 2, 2' % (v(u), v(LANE)))
    k('v_add_u32 %s, %s, %s' % (v(TRO), v(TRO), v(u)))
    k('v_and_b32 %s, 3, %s' % (v(u), v(LANE)))
    for R in (TRQ, TRO):
        k('v_lshlrev_b32 %s, 7, %s' % (v(R), v(R)))
        k('v_lshl_add_u32 %s, %s, 3, %s' % (v(R), v(u), v(R)))
    k('v_add_u32 %s, %s, %s' % (v(TRO), s(S_T2), v(TRO)))
    k('s_and_b32 %s, %s, 1' % (s(S_T0), s(S_W)))
    k('s_lshl_b32 %s, %s, 6' % (s(S_T0), s(S_T0)))
    k('v_add_u32 %s, %s, %s' % (v(TRQ), s(S_T0), v(TRQ)))
    k('v_bfe_u32 %s, %s, 4, 1' % (v(u), v(LANE)))
    k('v_lshlrev_b32 %s, 5, %s' % (v(u), v(u)))
    k('v_xor_b32 %s, %s, %s' % (v(TRQ), v(u), v(TRQ)))
    k('v_bfe_u32 %s, %s, 3, 1' % (v(u), v(LANE)))
    k('v_lshlrev_b32 %s, 6, %s' % (v(u), v(u)))
    k('v_xor_b32 %s, %s, %s' % (v(TRQ), v(u), v(TRQ)))
    k('s_xor_b32 %s, %s, 1' % (s(S_T0), s(S_W)))
    k('s_mul_i32 %s, %s, %d' % (s(S_T0), s(S_T0), WSTRIDE))
    k('s_add_u32 %s, %s, %d' % (s(S_T0), s(S_T0), L_WS))
    k('v_add_u32 %s, %s, %s' % (v(TRP), s(S_T0), v(TRQ)))
    k('v_add_u32 %s, %s, %s' % (v(TRQ), s(S_T2), v(TRQ)))
    k('v_xor_b32 %s, 32, %s' % (v(TRQ1), v(TRQ)))
    k('v_xor_b32 %s, 32, %s' % (v(TRP1), v(TRP)))
    k('v_lshlrev_b32 %s, 4, %s' % (v(LW), v(LANE)))
    k('v_add_u32 %s, %s, %s' % (v(LW), s(S_T2), v(LW)))
    if after_issue: after_issue()
    freepark = [24, 40, 88, 96, 104, 112, 120, 128, 136, 72, 80, 8, 16]
    reserved = []
    if k.wolast:
        reserved = [LOC[('o', 3, 0)][1], LOC[('o', 3, 1)][1], LOC[('o', 3, 2)][1], LOC[('o', 2, 2)][1], LOC[('o', 2, 3)][1]]
        freepark = reserved + [24, 40, 88, 96, 104, 112, 120, 128, 136, 72, 80]
    parked = []; building = {}
    homes = {}
    freehome = []
    def target(op):
        loc = LOC[op]
        if loc[0] != 's':
            assert loc[0] == 'a' or all(p != loc[1] for _, p in parked), ('parked in', op)
            return loc
        if op not in building: building[op] = freepark.pop(0)
        return ('v', building[op])
    def done(op):
        if op in building: parked.append((op, building.pop(op)))
    def dump():
        any_ = False
        while parked and freehome:
            op, p = parked.pop(0); h_ = freehome.pop(0); homes[op] = h_
            k('ds_write_b128 %s, %s offset:%d' % (v(LW), v(p, 4), h_))
            k('ds_write_b128 %s, %s offset:%d' % (v(LW), v(p + 4, 4), h_ + 1024))
            if p not in reserved: freepark.append(p)
    def release(li):
        if li + NSL >= NI: freehome.extend([(li % NSL) * 4096, (li % NSL) * 4096 + 2048])
    def ahead(li):
        if li + LA < NI: issue(li + LA)
        touch(li + k.pdist)
    for li in range(NI):
        it, hf = its[li]; slot = li % NSL
        k.wait_vm(('wl', li))
        if it[0] != 'o':
            k('s_barrier')
            if li and its[li - 1][0][0] != 'o': release(li - 1)
            fin = []
            for (kap, ar) in ((it[1], (TRQ, TRQ1)), (it[1] + 2, (TRP, TRP1))):
                for t in range(2):
                    loc = target((it[0], kap, t))
                    for Q in range(2):
                        k('ds_read_b64_tr_b16 %s, %s offset:%d' % (dst(loc, 4 * hf + 2 * Q, 2), v(ar[t]), slot * 4096 + 2 * Q * 128))
                    if hf: fin.append((it[0], kap, t))
            ahead(li)
            dump()
            k('s_waitcnt lgkmcnt(0)')
            for o_ in fin: done(o_)
        else:
            if li and its[li - 1][0][0] != 'o':
                k('s_barrier'); release(li - 1)
            for aa in range(2):
                for H in range(2):
                    for tau in range(2):
                        k('ds_read_b64_tr_b16 %s, %s offset:%d' % (v(RAW + 8 * aa + 4 * H + 2 * tau, 2), v(TRO), slot * 4096 + 8 * H * 128 + 64 * aa + 32 * tau))
            ahead(li)
            dump()
            k('s_waitcnt lgkmcnt(0)')
            release(li)
            for aa in range(2):
                op = ('o', 2 * it[1] + aa, 2 * it[2] + hf)
                loc = target(op)
                mv = 'v_accvgpr_write_b32' if loc[0] == 'a' else 'v_mov_b32'
                for H in range(2):
                    for tau in range(2):
                        src = RAW + 8 * aa + 4 * H + 2 * tau
                        k('%s %s, %s' % (mv, dst(loc, 4 * H + tau, 1), v(src)))
                        k('%s %s, %s' % (mv, dst(loc, 4 * H + tau + 2, 1), v(src + 1)))
                done(op)
        if li in hooks: hooks[li]()
        if getattr(k, 'ltrace', 0):
            k.raw('  s_memtime s[4:5]\n  s_waitcnt lgkmcnt(0)\n  s_sub_u32 s4, s4, s100\n  v_writelane_b32 v53, s4, %d' % li)
    if its[NI - 1][0][0] != 'o':
        k('s_barrier')
        release(NI - 1)
    dump()
    k('s_waitcnt lgkmcnt(0)')
    assert not parked and len(homes) == NS
    return homes

def chain(k, nsteps=64, prof=False, dump=False, opt={}):
    LOC = op_locs()
    LANE = 0
    def early():
        if hasattr(k, 'hook_loading'): k.hook_loading()
        k('v_and_b32 %s, 7, %s' % (v(56), v(LANE)))
        k('v_lshlrev_b32 %s, 10, %s' % (v(57), v(56)))
        k('v_lshrrev_b32 %s, 4, %s' % (v(56), v(LANE)))
        k('v_lshl_add_u32 %s, %s, 5, %s' % (v(57), v(56), v(57)))
        k('v_bfe_u32 %s, %s, 3, 1' % (v(56), v(LANE)))
        k('v_lshl_add_u32 %s, %s, 4, %s' % (v(57), v(56), v(57)))
        k('s_lshl_b32 %s, %s, 8' % (s(S_T0), s(S_W)))
        for k2 in range(2):
            k('buffer_load_dwordx4 %s, %s, %s, %s offen offset:%d' % (v(32 + 4 * k2, 4), v(57), s(S_M0, 4), s(S_T0), k2 * 128))
        k('s_lshl_b32 %s, %s, 14' % (s(S_KV), s(S_H)))
        k('s_lshl_b32 %s, %s, 12' % (s(S_T0), s(S_W)))
        k('s_add_u32 %s, %s, %s' % (s(S_KV), s(S_KV), s(S_T0)))
        k('s_mov_b32 %s, 0' % s(S_STEP))
    def kvload():
        k('v_lshlrev_b32 %s, 4, %s' % (v(7), v(LANE)))
        for i in range(4):
            k('buffer_load_dwordx4 %s, %s, %s, %s offen offset:%d sc1' % (v(KVC + 4 * i, 4), v(7), s(S_WS, 4), s(S_KV), 1024 * i))
    hooks = dict(getattr(k, 'load_hooks', {}))
    h13 = hooks.get(28)
    hooks[28] = lambda: ((h13() if h13 else None), kvload())
    k.ltrace = opt.get('ltrace', 0); k.lookahead = opt.get('la', 4); k.pdist = opt.get('pd', 0); k.wolast = opt.get('wolast', 0)
    assert k.lookahead <= 7
    homes = loader(k, LANE, LOC, early, hooks)
    if prof: k.raw('  s_memtime %s' % s(S_TS + 28, 2))
    if opt.get('ltrace'):
        k('s_lshl_b32 s55, s40, 2\ns_add_u32 s55, s55, s41\ns_lshl_b32 s55, s55, 8\ns_add_u32 s55, s55, 0x%x' % (DBG + 0x1a0000))
        k('v_lshlrev_b32 v52, 2, v0')
        k('buffer_store_dword v53, v52, s[8:11], s55 offen')
    if opt.get('loadonly'): k('s_branch L_chain_exit')
    k('v_mov_b32 %s, %s' % (v(STRM), v(6)))
    k('v_lshlrev_b32 %s, 4, %s' % (v(L16), v(LANE)))
    k('v_mov_b32 %s, %s' % (v(X3), v(55)))
    k.c('===== chain: initial state =====')
    consts(k, LANE)
    k('s_mul_i32 %s, %s, %d' % (s(S_INR0), s(S_H), JS))
    k('s_lshl_b32 %s, %s, 11' % (s(S_T0), s(S_W)))
    k('s_add_u32 %s, %s, %s' % (s(S_INR0), s(S_INR0), s(S_T0)))
    k('s_add_u32 %s, %s, 0x%x' % (s(S_INR0), s(S_INR0), INB))
    k('s_mov_b32 %s, 0x%x' % (s(S_DEF), SCRATCH))
    k('s_mov_b32 %s, 0x%x' % (s(S_KVM), MEMX + 8192))
    k('s_mov_b32 %s, 0' % s(S_TAG))
    for i in range(8):
        k('v_min_u32 %s, -2, %s' % (v(MEMF + i), v(32 + i)))
    k('ds_write_b128 %s, %s offset:%d' % (v(L16W), v(MEMF, 4), L_MEM))
    k('ds_write_b128 %s, %s offset:%d' % (v(L16W), v(MEMF + 4, 4), L_MEM + 1024))
    k('s_mov_b32 %s, 0x%x' % (s(S_T0), H2 + 0x6000))
    k('buffer_store_dwordx4 %s, %s, %s, %s offen offset:1024' % (v(MEMF + 4, 4), v(L16W), s(S_WS, 4), s(S_T0)))
    k('s_waitcnt vmcnt(0)')
    k('s_cmp_eq_u32 %s, 0' % s(S_H))
    k('s_cselect_b32 %s, 0x%x, %s' % (s(S_T0), MEMX, s(S_DEF)))
    k('buffer_store_dwordx4 %s, %s, %s, %s offen sc1' % (v(MEMF, 4), v(L16W), s(S_WS, 4), s(S_T0)))
    k('buffer_store_dwordx4 %s, %s, %s, %s offen offset:1024 sc1' % (v(MEMF + 4, 4), v(L16W), s(S_WS, 4), s(S_T0)))
    k('s_add_u32 %s, %s, 0x80000' % (s(S_KV), s(S_KV)))
    k('s_mul_i32 %s, %s, %d' % (s(S_INW0), s(S_W), 8 * JS))
    k('s_lshl_b32 %s, %s, 6' % (s(S_T0), s(S_H)))
    k('s_add_u32 %s, %s, %s' % (s(S_INW0), s(S_INW0), s(S_T0)))
    k('s_add_u32 %s, %s, 0x%x' % (s(S_INW0), s(S_INW0), INB))
    k('s_add_u32 %s, %s, 0x1000' % (s(S_INW1), s(S_INW0)))
    k('s_lshl_b32 %s, %s, 11' % (s(S_T0), s(S_W)))
    k('s_mov_b32 %s, 0x%x' % (s(S_H2W), H2))
    k('s_add_u32 m0, %s, %d' % (s(S_T0), L_MEM))
    k('s_add_u32 %s, %s, 0x%x' % (s(S_H2R), s(S_T0), H2 + 0x6000))
    k('s_mov_b32 %s, 0x%x' % (s(S_H2RST), H2 + 0x4000))
    cc = (128 ** -0.5) * math.log2(math.e)
    k('s_mov_b32 %s, 0x%x' % (s(S_C), f2u(cc)))
    k('s_mov_b32 %s, 0x%x' % (s(S_C + 1), f2u(cc)))
    pend = [(i, hf) for i in range(3) for hf in range(2)]
    def RF(n=1):
        for _ in range(n):
            if pend:
                i, hf = pend.pop(0)
                k('ds_read_b128 %s, %s offset:%d' % (v(SBUF + 8 * (i % 3) + 4 * hf, 4), v(STRM), homes[STREAM[i]] + 1024 * hf), tag=('st', i))
    RF(6)
    for i in range(0, 24, 2): k('v_mov_b64 %s, 0' % v(ACCQK + i, 2))
    if prof:
        for i in range(8): k('s_mov_b32 %s, 0' % s(S_TS + 16 + i))
        k.raw('  s_memtime %s' % s(S_TS + 24, 2))
    k('s_waitcnt lgkmcnt(0)')

    used = []
    def smf(op, acc, afrag):
        loc = LOC[op]
        if loc[0] == 's':
            assert loc[1] == len(used), (op, loc, used)
            used.append(loc[1])
            assert all(p[0] != loc[1] for p in pend), ('refill not issued', op)
            k.wait_lg(('st', loc[1]))
            opnd = v(SBUF + 8 * (loc[1] % 3), 8)
        else:
            opnd = dst(loc, 0, 8)
        k('v_smfmac_f32_16x16x64_bf16 %s, %s, %s, %s' % (v(acc, 4), v(afrag, 4), opnd, v(IDX)))
        if loc[0] == 's':
            pend.append(((loc[1] + 3) % NS, 0)); pend.append(((loc[1] + 3) % NS, 1))
    ACC = {'q': ACCQK, 'k': ACCQK + 8, 'v': ACCV}
    def S(m, kap, j):
        if kap >= 2: k.wait_lg(('mf', kap))
        smf((m, kap, j), ACC[m] + 4 * j, MEMF + 4 * kap)
    k.points = []
    def pt(name):
        k.points.append(name)
        if opt.get('pt') == name:
            k.raw('  s_memtime %s' % s(S_TS + 2, 2))
    def cvt(d, x, y): k('v_cvt_pk_bf16_f32 %s, %s, %s' % (v(d), v(x), v(y)))
    def mf16(d, A, B, C=None): k('v_mfma_f32_16x16x16_bf16 %s, %s, %s, %s' % (v(d, 4), v(A, 2), v(B, 2), '0' if C is None else v(C, 4)))
    def mf32(d, A, B, C=None): k('v_mfma_f32_16x16x32_bf16 %s, %s, %s, %s' % (v(d, 4), v(A, 4), v(B, 4), '0' if C is None else v(C, 4)))
    def pkadd(d, x, y): k('v_pk_add_f32 %s, %s, %s' % (v(d, 2), v(x, 2), v(y, 2)))
    def pkfma_c(d, x, m): k('v_pk_fma_f32 %s, %s, %s, %s op_sel_hi:[1,1,0] neg_lo:[0,0,1] neg_hi:[0,0,1]' % (v(d, 2), v(x, 2), s(S_C, 2), v(m, 2)))
    def pkmul_b(d, x, m): k('v_pk_mul_f32 %s, %s, %s op_sel_hi:[1,0]' % (v(d, 2), v(x, 2), v(m, 2)))
    def add(d, x, y): k('v_add_f32 %s, %s, %s' % (v(d), v(x), v(y)))
    def mov64(d, x): k('v_mov_b64 %s, %s' % (v(d, 2), x))
    def BAR(tag): k.wait_lg(tag); k('s_barrier')
    def nops(n):
        while n > 0:
            k('s_nop %d' % (min(n, 16) - 1)); n -= 16
    ROR8 = 'row_ror:8 row_mask:0xf bank_mask:0xf'
    FAIL = 'L_fail'; DONE = 'L_chain_done'; BODY = 'L_chain_body'; BODY0 = 'L_chain_body0'
    RETRY2 = 'L_retry2'; RETRY1 = 'L_retry1'; RETRY3 = 'L_retry3'; RET3 = 'L_ret3'
    OFIRST = opt.get('o1', 1)
    D1 = opt.get('d1', 2); D2 = opt.get('d2', 2)
    HA, HB = T1 + 7, OR_
    ORR = [X0, X1, X2]
    H1R = MEMF + 8
    VM = KVC + 4; KA = T1 + 4
    def ldE(): k('buffer_load_dwordx4 %s, %s, %s offen sc1 lds' % (v(L16), s(S_WS, 4), s(S_H2R)), tag='pe')
    def ldO(): k('buffer_load_dwordx4 %s, %s, %s offen offset:1024 sc1 lds' % (v(L16), s(S_WS, 4), s(S_H2R)), tag='po')
    def own(k2): k('ds_read_b128 %s, %s offset:%d' % (v(MEMF + 4 * k2, 4), v(L16W), L_MEM + 1024 * k2), tag=('own', k2))
    def chk4(R):
        k('v_max3_u32 %s, %s, %s, %s' % (v(HA), v(R), v(R + 1), v(R + 2)))
        k('v_max_u32 %s, %s, %s' % (v(HA), v(HA), v(R + 3)))
        k('v_cmp_eq_u32 vcc, -1, %s' % v(HA))
    def R(kap):
        p = kap >> 1; k2 = kap & 1
        k('ds_read_b128 %s, %s offset:%d' % (v(MEMF + 4 * kap, 4), v(MEMR + p - 1), L_MEM + 1024 * k2), tag=('mf', kap))
    def pf(i): k('buffer_load_dwordx4 %s, %s, %s, %s offen offset:%d sc1' % (v(KVN + 4 * i, 4), v(L16), s(S_WS, 4), s(S_KV), 1024 * i))
    def stk(so): k('buffer_store_dwordx4 %s, %s, %s, %s offen sc1' % (v(KA, 4), v(L16), s(S_WS, 4), s(so)))
    def stv(so): k('buffer_store_dwordx4 %s, %s, %s, %s offen offset:1024 sc1' % (v(VM, 4), v(L16), s(S_WS, 4), s(so)))
    def sel(d, x): k('v_mov_b32_dpp %s, %s quad_perm:[0,1,2,3] row_mask:0xf bank_mask:0xc' % (v(d), v(x)))

    k('s_branch %s' % BODY0)
    k.raw('.p2align 6')
    for i in range(opt.get('shift', 0)): k.raw('  s_nop 0')
    EM = opt.get('em', 1)
    k.label(RETRY2)
    k('s_mov_b64 exec, vcc')
    ldE()
    if prof: k('s_add_u32 %s, %s, 1' % (s(S_TS + 23), s(S_TS + 23)))
    k('s_sub_u32 %s, %s, 1' % (s(S_SPIN), s(S_SPIN)))
    k('s_cbranch_scc1 %s' % FAIL)
    if EM: k('s_waitcnt vmcnt(%d)' % (1 + OFIRST))
    own(0)
    k.label('L_ew')
    k('s_waitcnt lgkmcnt(%d)' % (0 if EM else 1))
    chk4(MEMF)
    k('s_cbranch_vccnz %s' % RETRY2)
    k('s_mov_b64 exec, -1')
    k.label(BODY)
    if opt.get('trace') == 2: k.raw('  s_memtime %s' % s(S_TS + 8, 2))
    k.label(BODY0)
    if opt.get('o2', 1) and not opt.get('nohop'): ldO()
    abl = opt.get('abl', [])
    if abl:
        k0 = k._one
        def filt(t, tag):
            if 'vmem' in abl and t.startswith('buffer_'): return
            if 'bar' in abl and t.startswith('s_barrier'): return
            if 'stream' in abl and t.startswith('ds_read_b128') and (', %s ' % v(STRM)) in t: return
            if 'dsw' in abl and t.startswith('ds_write'): return
            if 'dsr' in abl and t.startswith('ds_read'): return
            return k0(t, tag)
        k._one = filt
    k.lg = ['x']; k.vm = []
    if opt.get('pt'): k.raw('  s_memtime %s' % s(S_TS, 2))
    k('s_barrier')
    pt('b1')
    if opt.get('trace') == 2: k.raw('  s_memtime %s' % s(S_TS + 14, 2))
    R(2)
    S('q', 0, 0); R(4); S('q', 0, 1); R(6); S('k', 0, 0); RF(); S('k', 0, 1); RF()
    pt('own0')
    S('q', 2, 0); RF(); S('q', 2, 1); RF(); S('q', 4, 0); RF(); S('q', 4, 1); RF()
    ev = [('q', 6, 0), ('q', 6, 1), ('k', 2, 0), ('k', 2, 1), ('k', 4, 0), ('k', 4, 1), ('k', 6, 0), ('k', 6, 1), ('v', 0, 0), ('v', 0, 1)]
    no = opt.get('oddat', 2)
    for o_ in ev[:no]: S(*o_); RF()
    k('s_waitcnt vmcnt(%d)' % (opt.get('o2', 1) if OFIRST else 0)); own(1)
    for o_ in ev[no:no + 4]: S(*o_); RF()
    k.wait_lg(('own', 1))
    k('v_max3_u32 %s, %s, %s, %s' % (v(HA), v(MEMF + 4), v(MEMF + 5), v(MEMF + 6)))
    S(*ev[no + 4]); RF()
    k('v_max_u32 %s, %s, %s' % (v(HA), v(HA), v(MEMF + 7)))
    k('v_cmp_eq_u32 vcc, -1, %s' % v(HA))
    S(*ev[no + 5])
    rest = [o_ for o_ in ev[no + 6:] if o_[0] != 'v']
    vleft = [o_[1:] for o_ in ev[no + 6:] if o_[0] == 'v']
    if not opt.get('nohop'): k('s_cbranch_vccnz %s' % RETRY3)
    k.label(RET3)
    k.vm = []
    pt('odd')
    if opt.get('trace'):
        k.raw('  s_memtime %s' % s(S_TS + 4, 2))
        k.raw('  s_memrealtime %s' % s(S_TS + 6, 2))
        k.raw('  s_waitcnt lgkmcnt(0)')
        k('v_mov_b32 %s, %s' % (v(T1), s(S_TS + 4)))
        k('v_mov_b32 %s, %s' % (v(T1 + 1), s(S_TS + 6)))
        k('s_lshl_b32 %s, %s, 2' % (s(S_T0), s(S_H)))
        k('s_add_u32 %s, %s, %s' % (s(S_T0), s(S_T0), s(S_W)))
        k('s_lshl_b32 %s, %s, 6' % (s(S_T0), s(S_T0)))
        k('s_add_u32 %s, %s, %s' % (s(S_T0), s(S_T0), s(S_STEP)))
        k('s_lshl_b32 %s, %s, 3' % (s(S_T0), s(S_T0)))
        k('s_add_u32 %s, %s, 0x%x' % (s(S_T0), s(S_T0), DBG + 0x120000))
        k('v_mov_b32 %s, 0' % v(T1 + 2))
        k('s_mov_b64 exec, 1')
        k('buffer_store_dwordx2 %s, %s, %s, %s offen' % (v(T1, 2), v(T1 + 2), s(S_WS, 4), s(S_T0)))
        if opt.get('trace') == 2:
            for i in range(4): k('v_mov_b32 %s, %s' % (v(T1 + 4 + i), s(S_TS + 8 + 2 * i)))
            k('s_sub_u32 %s, %s, 0x%x' % (s(S_T0), s(S_T0), DBG + 0x120000))
            k('s_lshl_b32 %s, %s, 1' % (s(S_T0), s(S_T0)))
            k('s_add_u32 %s, %s, 0x%x' % (s(S_T0), s(S_T0), DBG + 0x140000))
            k('buffer_store_dwordx4 %s, %s, %s, %s offen' % (v(T1 + 4, 4), v(T1 + 2), s(S_WS, 4), s(S_T0)))
        k('s_mov_b64 exec, -1')
    if dump:
        k('s_lshl_b32 %s, %s, 13' % (s(S_T0), s(S_STEP)))
        k('s_lshl_b32 %s, %s, 11' % (s(S_T1), s(S_W)))
        k('s_add_u32 %s, %s, %s' % (s(S_T0), s(S_T0), s(S_T1)))
        k('s_add_u32 %s, %s, 0x%x' % (s(S_T0), s(S_T0), DBG))
        k('buffer_store_dwordx4 %s, %s, %s, %s offen' % (v(MEMF, 4), v(L16), s(S_WS, 4), s(S_T0)))
        k('buffer_store_dwordx4 %s, %s, %s, %s offen offset:1024' % (v(MEMF + 4, 4), v(L16), s(S_WS, 4), s(S_T0)))
    k('s_barrier'); R(3)
    pt('b1b')
    for o_ in rest: S(*o_); RF()
    S('q', 1, 0); R(5)
    if hasattr(k, 'hook_prefetch'): k.hook_prefetch(0)
    S('q', 1, 1); R(7)
    if hasattr(k, 'hook_prefetch'): k.hook_prefetch(1)
    S('k', 1, 0); pf(0)
    S('k', 1, 1); RF()
    S('q', 3, 0); RF()
    S('q', 3, 1); RF()
    S('q', 5, 0); pf(1)
    S('q', 5, 1); RF()
    S('q', 7, 0); RF()
    S('q', 7, 1); RF()
    pt('Q')
    MXX, TA, PM = MEMF + 0, MEMF + 1, MEMF + 2
    AK = ACCQK + 8
    S('k', 3, 0); pf(2)
    S('k', 3, 1); RF(); cvt(T1, ACCQK, ACCQK + 1)
    S('k', 5, 0); RF(); cvt(T1 + 1, ACCQK + 2, ACCQK + 3)
    S('k', 5, 1); RF(); cvt(T1 + 2, ACCQK + 4, ACCQK + 5)
    S('k', 7, 0); pf(3); cvt(T1 + 3, ACCQK + 6, ACCQK + 7)
    S('k', 7, 1); RF()
    pt('K')
    vq = [(2, 0), (1, 0), (3, 0), (1, 1), (3, 1), (4, 0), (5, 0), (5, 1), (7, 0), (7, 1), (2, 1), (4, 1), (6, 0), (6, 1)]
    vq = vq[:6] + vleft + vq[6:]
    def V(n=1):
        for _ in range(n):
            kap, j = vq.pop(0)
            S('v', kap, j)
    mf16(ACCQK, T1, SELT); RF()
    k('s_add_u32 %s, %s, 0x80000' % (s(S_KV), s(S_KV)))
    mf16(ACCQK + 4, T1 + 2, SELT)
    k('buffer_store_dword %s, %s, %s, %s offen sc1' % (v(HB), v(ST2), s(S_WS, 4), s(S_DEF)))
    cvt(T1 + 4, AK, AK + 1); cvt(T1 + 5, AK + 2, AK + 3)
    V(1); RF()
    cvt(T1 + 6, AK + 4, AK + 5); cvt(T1 + 7, AK + 6, AK + 7)
    mf16(AK, T1 + 4, SELT); RF()
    cvt(T1, ACCQK, ACCQK + 1); cvt(T1 + 1, ACCQK + 2, ACCQK + 3)
    mf16(AK + 4, T1 + 6, SELT)
    if hasattr(k, 'hook_prefetch'): k.hook_prefetch(2)
    cvt(T1 + 2, ACCQK + 4, ACCQK + 5); cvt(T1 + 3, ACCQK + 6, ACCQK + 7)
    V(1)
    mf32(ACCQK, KVC, T1)
    cvt(T1 + 4, AK, AK + 1); cvt(T1 + 5, AK + 2, AK + 3)
    mf32(ACCQK + 4, KVC + 4, T1)
    cvt(T1 + 6, AK + 4, AK + 5); cvt(T1 + 7, AK + 6, AK + 7)
    V(1); RF()
    mf32(AK, T1 + 4, T1); RF()
    pt('sm')
    for j in range(4): sel(ACCQK + j, ACCQK + 4 + j)
    V(1)
    k('ds_write_b128 %s, %s offset:%d' % (v(L16W), v(ACCQK, 4), L_SX), tag='xw')
    sel(AK, AK + 2); sel(AK + 1, AK + 3)
    V(1)
    k('ds_write_b64 %s, %s' % (v(SMW), v(AK, 2)), tag='sw')
    pt('swr')
    WACC = MEMF + 16; OF = MEMF + 4
    V(1); RF(); V(1); RF(); V(opt.get('vb2', 3))
    BAR('sw')
    pt('b2')
    XSR = [KVC, KVC + 4, ACCQK + 4]
    def XR(p): k('ds_read_b128 %s, %s offset:%d' % (v(XSR[p], 4), v(MEMR + p), L_SX), tag=('xs', p))
    MS = AK; XS = KVC
    XR(0); V(1); XR(1); V(1); XR(2); V(1)
    k('ds_read2_b64 %s, %s offset0:0 offset1:32' % (v(MS, 4), v(SMR)), tag='ms0')
    V(1)
    k('ds_read2_b64 %s, %s offset0:64 offset1:96' % (v(MS + 4, 4), v(SMR)), tag='ms1')
    V(len(vq))
    k.wait_lg(('xs', 0))
    pkadd(XS, XS, ACCQK); pkadd(XS + 2, XS + 2, ACCQK + 2)
    k.wait_lg(('xs', 2))
    pkadd(ACCQK + 4, ACCQK + 4, XS + 4); pkadd(ACCQK + 6, ACCQK + 6, XS + 6)
    pkadd(XS, XS, ACCQK + 4); pkadd(XS + 2, XS + 2, ACCQK + 6)
    k.wait_lg('ms1')
    pkadd(MS, MS, MS + 2); pkadd(MS + 4, MS + 4, MS + 6)
    k('v_max3_f32 %s, %s, %s, %s' % (v(MXX), v(XS), v(XS + 1), v(XS + 2)))
    pkadd(MS, MS, MS + 4)
    pt('sums')
    k('v_max_f32 %s, %s, %s' % (v(MXX), v(MXX), v(XS + 3)))
    k('v_max3_f32 %s, %s, %s, %s' % (v(MXX), v(MXX), v(MS), v(MS + 1)))
    cvt(VM, ACCV, ACCV + 1); cvt(VM + 1, ACCV + 2, ACCV + 3)
    k('v_max_f32_dpp %s, %s, %s %s' % (v(MXX), v(MXX), v(MXX), ROR8))
    k('v_mov_b32 %s, %s' % (v(TA), v(MXX)))
    cvt(VM + 2, ACCV + 4, ACCV + 5); cvt(VM + 3, ACCV + 6, ACCV + 7)
    k('v_permlane16_swap_b32 %s, %s' % (v(MXX), v(TA)))
    k('v_max_f32 %s, %s, %s' % (v(MXX), v(MXX), v(TA)))
    k('v_mov_b32 %s, %s' % (v(TA), v(MXX)))
    mov64(WACC, '0'); mov64(WACC + 2, '0')
    k('v_permlane32_swap_b32 %s, %s' % (v(MXX), v(TA)))
    k('v_max_f32 %s, %s, %s' % (v(MXX), v(MXX), v(TA)))
    k('v_mul_f32 %s, %s, %s' % (v(MXX), s(S_C), v(MXX)))
    pt('max')
    def ex(d): k('v_exp_f32 %s, %s' % (v(d), v(d)))
    pkfma_c(XS, XS, MXX); pkfma_c(XS + 2, XS + 2, MXX); pkfma_c(MS, MS, MXX)
    for j in range(4): ex(XS + j)
    PX = T1
    ex(MS)
    cvt(PX, XS, XS + 1); cvt(PX + 1, XS + 2, XS + 3)
    ex(MS + 1)
    for j in range(2): k('v_mov_b32_dpp %s, %s %s' % (v(PX + 2 + j), v(PX + j), ROR8))
    cvt(PM, MS, MS + 1)
    pkadd(XS, XS, XS + 2)
    O0, O1 = ACCQK, ACCQK + 4
    LS = MXX
    mf32(O0, KVC + 8, PX)
    k('v_mov_b32_dpp %s, %s %s' % (v(PM + 1), v(PM), ROR8))
    add(MS, MS, MS + 1)
    mf32(O1, KVC + 12, PX)
    add(XS, XS, XS + 1)
    k('v_fma_f32 %s, %s, 0.5, %s' % (v(LS), v(MS), v(XS)))
    mf16(O0, VM, PM, O0)
    k('v_add_f32_dpp %s, %s, %s %s' % (v(LS), v(LS), v(LS), ROR8))
    k('v_mov_b32 %s, %s' % (v(TA), v(LS)))
    mf16(O1, VM + 2, PM, O1)
    pt('pv')
    k('v_permlane16_swap_b32 %s, %s' % (v(LS), v(TA)))
    add(LS, LS, TA)
    k('v_mov_b32 %s, %s' % (v(TA), v(LS)))
    mov64(WACC + 4, '0'); mov64(WACC + 6, '0')
    k('v_permlane32_swap_b32 %s, %s' % (v(LS), v(TA)))
    add(LS, LS, TA)
    k('v_rcp_f32 %s, %s' % (v(LS), v(LS)))
    mov64(WACC + 8, '0')
    pkmul_b(O0, O0, LS); pkmul_b(O0 + 2, O0 + 2, LS); pkmul_b(O1, O1, LS); pkmul_b(O1 + 2, O1 + 2, LS)
    for i in range(4): cvt(T1 + i, O0 + 2 * i, O0 + 2 * i + 1)
    k('ds_write_b128 %s, %s offset:%d' % (v(OW), v(T1, 4), L_OX), tag='ow')
    pt('owr')
    for j in range(4): k('v_mov_b32_dpp %s, %s row_ror:8 row_mask:0xf bank_mask:0xc' % (v(T1 + j), v(T1 + j)))
    for i in range(10, 16, 2): mov64(WACC + i, '0')
    for i in range(0, 8, 2): mov64(ACCV + i, '0')
    def WO(a_, kap):
        if kap: k.wait_lg(('of', kap))
        smf(('o', a_, kap), WACC + 4 * a_, T1 if kap == 0 else OF + 4 * (kap - 1))
    def OFR(kap): k('ds_read_b128 %s, %s offset:%d' % (v(OF + 4 * (kap - 1), 4), v(ORR[kap - 1]), L_OX), tag=('of', kap))
    k('s_mov_b32 %s, %s' % (s(S_DEF), s(S_KVM)))
    k('s_add_u32 %s, %s, 0x2000' % (s(S_KVM), s(S_KVM)))
    WO(0, 0); BAR('ow'); OFR(1)
    pt('b3')
    WO(1, 0); OFR(2)
    WO(2, 0); OFR(3)
    WO(3, 0); RF()
    PK = ACCQK
    def tag(r): k('v_bfi_b32 %s, 1, %s, %s' % (v(r), s(S_TAG), v(r)))
    def pack(a_):
        cvt(PK + 2 * a_, WACC + 4 * a_, WACC + 4 * a_ + 1); cvt(PK + 2 * a_ + 1, WACC + 4 * a_ + 2, WACC + 4 * a_ + 3); tag(PK + 2 * a_)
    def sto(a_):
        k('buffer_store_dwordx2 %s, %s, %s, %s offen offset:%d' % (v(PK + 2 * a_, 2), v(ST1), s(S_WS, 4), s(S_INW0 if a_ < 2 else S_INW1), 2048 * (a_ & 1)))
    RA = MEMF + 16
    WO(0, 1); RF(); mov64(ACCQK + 8, '0'); WO(0, 2); mov64(ACCQK + 10, '0'); WO(0, 3); mov64(ACCQK + 12, '0')
    WO(1, 1); mov64(ACCQK + 14, '0'); WO(1, 2); RF(); pack(0); WO(1, 3); sto(0)
    pt('st0')
    WO(2, 1); RF(); mov64(RA, '0'); WO(2, 2); RF(); pack(1); WO(2, 3); sto(1)
    pt('st1')
    WO(3, 1); RF(); mov64(RA + 2, '0'); WO(3, 2); pack(2); WO(3, 3); sto(2)
    RF(2)
    k('s_mov_b32 %s, %d' % (s(S_SPIN), SPIN_MAX))
    k('s_add_u32 %s, %s, 0x2000' % (s(S_H2R), s(S_H2R)))
    k('s_and_b32 %s, %s, 0x%x' % (s(S_H2R), s(S_H2R), 0xffff7fff))
    k('s_add_u32 %s, %s, 1' % (s(S_STEP), s(S_STEP)))
    mov64(PK, '0'); mov64(PK + 2, '0')
    pack(3); sto(3)
    pt('st2')
    if opt.get('trace') == 2: k.raw('  s_memtime %s' % s(S_TS + 10, 2))
    assert len(used) == NS and not pend
    k.c('--- H1')
    HSET = [MEMF + 8, MEMF + 20, MEMF + 0]
    def round1(i):
        k('buffer_load_dwordx4 %s, %s, %s, %s offen sc1' % (v(HSET[i], 4), v(L16), s(S_WS, 4), s(S_INR0)))
        k('buffer_load_dwordx4 %s, %s, %s, %s offen offset:1024 sc1' % (v(HSET[i] + 4, 4), v(L16), s(S_WS, 4), s(S_INR0)))
    def h1chk(i):
        Rg = HSET[i]
        k('s_waitcnt vmcnt(%d)' % (2 * (D1 - 1)))
        k('v_smfmac_f32_16x16x64_bf16 %s, %s, %s, %s' % (v(RA, 4), v(SELR, 4), v(Rg, 8), v(IDXR)))
        k('v_bitop3_b32 %s, %s, %s, %s bitop3:0x7e' % (v(HA), v(Rg), v(Rg + 2), s(S_TAG)))
        k('v_bitop3_b32 %s, %s, %s, %s bitop3:0x7e' % (v(HA - 1), v(Rg + 4), v(Rg + 6), s(S_TAG)))
        k('v_bitop3_b32 %s, %s, %s, 1 bitop3:0xa8' % (v(HA), v(HA), v(HA - 1)))
        k('v_cmp_ne_u32 vcc, 0, %s' % v(HA))
        k('v_mov_b32 %s, -1' % v(HA))
    def ptacc():
        if opt.get('pt'):
            k.raw('  s_waitcnt lgkmcnt(0)')
            k('s_sub_u32 %s, %s, %s' % (s(S_T0), s(S_TS + 2), s(S_TS)))
            k('s_add_u32 %s, %s, %s' % (s(S_TS + 16), s(S_TS + 16), s(S_T0)))
    if opt.get('nohop'):
        if abl: k._one = k0
        ptacc()
        mov64(PK + 4, '0'); mov64(PK + 6, '0')
        k('s_waitcnt vmcnt(0) lgkmcnt(0)')
        k('s_barrier')
        k('s_cmp_eq_u32 %s, %d' % (s(S_STEP), nsteps - 1))
        k('s_cbranch_scc1 %s' % DONE)
        k('s_branch %s' % BODY0)
    k('s_cmp_lt_u32 %s, 2' % s(S_W))
    k('s_cbranch_scc1 L_early')
    nops(opt.get('late1', 46))
    k.label('L_early')
    mov64(PK + 4, '0'); mov64(PK + 6, '0')
    nops(opt.get('pre1', 26))
    for i in range(D1):
        round1(i)
        if i < D1 - 1: nops(opt.get('gap1', 20))
    k('s_cmp_eq_u32 %s, %d' % (s(S_STEP), nsteps - 1))
    k.label('L_h1w')
    h1chk(0)
    k('s_cbranch_vccnz L_h1r0')
    k.label('L_h1ok')
    mov64(KVC, v(KVN, 2))
    for rr in ('row_ror:4', 'row_ror:8'):
        for j in range(2):
            k('v_add_f32_dpp %s, %s, %s %s row_mask:0xf bank_mask:0xf' % (v(RA + j), v(RA + j), v(RA + j), rr))
    cvt(HB, RA, RA + 1)
    k('v_min_u32 %s, -2, %s' % (v(HB), v(HB)))
    k('s_cbranch_scc1 %s' % DONE)
    k('buffer_store_dword %s, %s, %s, %s offen' % (v(HB), v(ST2), s(S_WS, 4), s(S_H2W)))
    k('buffer_store_dword %s, %s, %s, %s offen' % (v(HA), v(ST2), s(S_WS, 4), s(S_H2RST)))
    pt('p1ok')
    if opt.get('trace') == 2: k.raw('  s_memtime %s' % s(S_TS + 12, 2))
    def hk():
        for i in range(2, 16, 2): mov64(KVC + i, v(KVN + i, 2))
        ptacc()
        k('s_xor_b32 %s, %s, 1' % (s(S_TAG), s(S_TAG)))
        for r in (S_H2W, S_H2RST):
            k('s_add_u32 %s, %s, 0x2000' % (s(r), s(r)))
            k('s_and_b32 %s, %s, 0x%x' % (s(r), s(r), 0xffff7fff))
        k('s_mov_b32 %s, %d' % (s(S_SPIN), SPIN_MAX))
        k('s_waitcnt lgkmcnt(0)')
    k('s_cmp_lt_u32 %s, 2' % s(S_W))
    k('s_cbranch_scc1 L_early2')
    k.label('L_late2')
    nops(opt.get('pre2', 0))
    NE = 2
    ldE(); hk(); nops(opt.get('gapa', 24))
    ldE()
    if OFIRST: nops(opt.get('gap2', 14))
    if OFIRST: ldO()
    k('s_waitcnt vmcnt(%d)' % (NE - 1 + OFIRST))
    own(0)
    if not EM:
        nops(opt.get('rd2', 4))
        own(0)
    k('s_branch L_ew')
    for i in range(D1):
        k.label('L_h1r%d' % i)
        k('s_mov_b64 exec, vcc')
        round1(i)
        k('s_mov_b64 exec, -1')
        if prof: k('s_add_u32 %s, %s, 0x10000' % (s(S_TS + 23), s(S_TS + 23)))
        k('s_sub_u32 %s, %s, 1' % (s(S_SPIN), s(S_SPIN)))
        k('s_cbranch_scc1 %s' % FAIL)
        k('s_cmp_eq_u32 %s, %d' % (s(S_STEP), nsteps - 1))
        mov64(RA, '0'); mov64(RA + 2, '0')
        if i == D1 - 1:
            k('s_branch L_h1w')
        else:
            h1chk(i + 1)
            k('s_cbranch_vccz L_h1ok')
    k.label('L_early2')
    nops(opt.get('early2', 34))
    k('s_branch L_late2')
    k.label(RETRY3)
    k('s_mov_b64 exec, vcc')
    ldO()
    if prof: k('s_add_u32 %s, %s, 0x100' % (s(S_TS + 22), s(S_TS + 22)))
    k('s_sub_u32 %s, %s, 1' % (s(S_SPIN), s(S_SPIN)))
    k('s_cbranch_scc1 %s' % FAIL)
    k('s_waitcnt vmcnt(1)')
    own(1)
    k('s_waitcnt lgkmcnt(0)')
    chk4(MEMF + 4)
    k('s_cbranch_vccnz %s' % RETRY3)
    k('s_mov_b64 exec, -1')
    k('s_branch %s' % RET3)
    k.label(DONE)
    k('buffer_store_dword %s, %s, %s, %s offen sc1' % (v(HB), v(ST2), s(S_WS, 4), s(S_DEF)))
    k.label('L_chain_exit')
```

```python
from fw import *
from layout import *
from chain import srd, f2u, S_WS, S_WQ, S_WK, S_WV, S_WO, S_DBG, S_H, S_W, S_SPIN, S_T0, S_T1, S_T2, SPIN_MAX
import math

S_X, S_AUX, S_OUT = 28, 36, 12
S_R, S_NSEG, S_I, S_XS, S_OO, S_XB, S_FL, S_SEG, S_GRP, S_TK = 42, 43, 44, 45, 46, 47, 48, 49, 50, 51
S_T3, S_T4 = 52, 53
S_M = 92
P_X, P_MEM0, P_WQ, P_WK, P_WV, P_WO, P_SEG, P_BX, P_WB, P_WOB, P_GW, P_OUT, P_DBG, P_WS = [64 + 2 * i for i in range(14)]
FAIL = 'L_fail'

LANE, L16, GA, TR, XG, XR, VZ, VT = 0, 1, 2, 3, 4, 5, 6, 7
L_STG = 65536; STG_STRIDE = 24576

def cvt(k, d, x, y): k('v_cvt_pk_bf16_f32 %s, %s, %s' % (v(d), v(x), v(y)))
def R(loc, r, n): return (a if loc[0] == 'a' else v)(loc[1] + r, n)

def poll_flags(k, soff_reg, nlanes, minval, name, stride=4, srdn=S_WS, sleep=8, skip7=False, mask=None):
    L = k.newlabel('L_poll_' + name)
    k('v_mul_u32_u24 %s, %d, %s' % (v(VZ), stride, v(LANE)))
    k('s_mov_b32 %s, %d' % (s(S_SPIN), SPIN_MAX))
    if skip7:
        k('s_mov_b32 exec_lo, 0x7f7f7f7f')
        k('s_mov_b32 exec_hi, 0x7f7f7f7f')
    else:
        k('s_mov_b32 exec_lo, 0x%x' % (mask or ((1 << nlanes) - 1)))
        k('s_mov_b32 exec_hi, 0')
    k.label(L)
    k('buffer_load_dword %s, %s, %s, %s offen sc1' % (v(VT), v(VZ), s(srdn, 4), s(soff_reg)))
    k('s_sub_u32 %s, %s, 1' % (s(S_SPIN), s(S_SPIN)))
    k('s_cbranch_scc1 %s' % FAIL)
    k('s_waitcnt vmcnt(0)')
    k('v_cmp_gt_u32 vcc, %s, %s' % (minval, v(VT)))
    k('s_cbranch_vccz %s_ok' % L)
    k('s_sleep %d' % sleep)
    k('s_branch %s' % L)
    k.label(L + '_ok')
    k('s_mov_b64 exec, -1')

def set_flag(k, soff_reg, val, flags='sc1'):
    k('v_mov_b32 %s, %s' % (v(VT), val))
    k('v_mov_b32 %s, 0' % v(VZ))
    k('s_mov_b64 exec, 1')
    k('buffer_store_dword %s, %s, %s, %s offen %s' % (v(VT), v(VZ), s(S_WS, 4), s(soff_reg), flags))
    k('s_mov_b64 exec, -1')

def load_blocks(k, blocks, nslot):
    n = len(blocks)
    for i in range(min(nslot, n)):
        blocks[i]['issue']((i % nslot) * 4096, ('wl', i))
    for i in range(n):
        k.wait_vm(('wl', i))
        blocks[i]['read']((i % nslot) * 4096)
        k('s_waitcnt lgkmcnt(0)')
        if i + nslot < n:
            blocks[i + nslot]['issue']((i % nslot) * 4096, ('wl', i + nslot))

def setup_common(k):
    k('v_lshlrev_b32 %s, 4, %s' % (v(L16), v(LANE)))
    k('s_mul_i32 %s, %s, %d' % (s(S_T2), s(S_W), STG_STRIDE))
    k('s_add_u32 %s, %s, %d' % (s(S_T2), s(S_T2), L_STG))

def qkv_addr(k):
    k('v_lshrrev_b32 %s, 2, %s' % (v(VZ), v(LANE)))
    k('v_and_b32 %s, 3, %s' % (v(VT), v(LANE)))
    k('v_lshlrev_b32 %s, 4, %s' % (v(GA), v(VT)))
    k('v_lshl_add_u32 %s, %s, 13, %s' % (v(GA), v(VZ), v(GA)))
    k('s_lshl_b32 %s, %s, 8' % (s(S_T0), s(S_H)))
    k('s_lshl_b32 %s, %s, 6' % (s(S_T1), s(S_W)))
    k('s_add_u32 %s, %s, %s' % (s(S_T0), s(S_T0), s(S_T1)))
    k('v_add_u32 %s, %s, %s' % (v(GA), s(S_T0), v(GA)))
    k('v_lshrrev_b32 %s, 4, %s' % (v(TR), v(LANE)))
    k('v_lshlrev_b32 %s, 3, %s' % (v(TR), v(TR)))
    k('v_and_b32 %s, 3, %s' % (v(VZ), v(VZ)))
    k('v_add_u32 %s, %s, %s' % (v(TR), v(TR), v(VZ)))
    k('v_lshlrev_b32 %s, 6, %s' % (v(TR), v(TR)))
    k('v_lshl_add_u32 %s, %s, 3, %s' % (v(TR), v(VT), v(TR)))
    k('v_add_u32 %s, %s, %s' % (v(TR), s(S_T2), v(TR)))

def qkv_block(k, srdn, b, dest):
    def issue(off, tag):
        for i in range(4):
            k('s_mov_b32 %s, %d' % (s(S_T0), (64 * b + 16 * i) * 8192))
            k('s_add_u32 m0, %s, %d' % (s(S_T2), off + i * 1024))
            k('buffer_load_dwordx4 %s, %s, %s offen lds' % (v(GA), s(srdn, 4), s(S_T0)), tag=tag)
    def read(off):
        for k2 in range(2):
            for t in range(2):
                for hh in range(2):
                    k('ds_read_b64_tr_b16 %s, %s offset:%d' % (R(dest(t, 2 * b + k2), 2 * hh, 2), v(TR), off + (32 * k2 + 4 * hh) * 64 + 32 * t))
    return dict(issue=issue, read=read)

XG1, XR1 = 12, 13
def x_setup(k):
    k('v_lshrrev_b32 %s, 3, %s' % (v(VZ), v(LANE)))
    k('v_lshlrev_b32 %s, 10, %s' % (v(XG), v(VZ)))
    k('v_lshrrev_b32 %s, 4, %s' % (v(VZ), v(LANE)))
    k('v_and_b32 %s, 7, %s' % (v(VT), v(LANE)))
    k('v_xor_b32 %s, %s, %s' % (v(VT), v(VT), v(VZ)))
    k('v_lshl_add_u32 %s, %s, 4, %s' % (v(XG), v(VT), v(XG)))
    k('s_lshl_b32 %s, %s, 8' % (s(S_T0), s(S_W)))
    k('v_add_u32 %s, %s, %s' % (v(XG), s(S_T0), v(XG)))
    k('v_xor_b32 %s, 0x2040, %s' % (v(XG1), v(XG)))
    k('v_bfe_u32 %s, %s, 1, 3' % (v(VT), v(LANE)))
    k('v_xor_b32 %s, %s, %s' % (v(VT), v(VT), v(VZ)))
    k('v_and_b32 %s, 15, %s' % (v(VZ), v(LANE)))
    k('v_lshlrev_b32 %s, 7, %s' % (v(XR), v(VZ)))
    k('v_lshl_add_u32 %s, %s, 4, %s' % (v(XR), v(VT), v(XR)))
    k('v_xor_b32 %s, 64, %s' % (v(XR1), v(XR)))

def x_dma(k, tag):
    k('s_lshl_b32 %s, %s, 12' % (s(S_T0), s(S_W)))
    k('s_add_u32 %s, %s, %s' % (s(S_T0), s(S_T0), s(S_XB)))
    def one(T, j):
        k('s_add_u32 m0, %s, %d' % (s(S_T0), T * 16384 + j * 1024))
        k('s_add_u32 %s, %s, %d' % (s(S_T1), s(S_XS), T * 16384 + (j >> 1) * 128))
        k('buffer_load_dwordx4 %s, %s, %s offen lds' % (v(XG1 if j & 1 else XG), s(S_X, 4), s(S_T1)), tag=tag)
    def fin():
        k('s_add_u32 %s, %s, %d' % (s(S_XS), s(S_XS), 2 * 32768))
        k('s_min_u32 %s, %s, %d' % (s(S_XS), s(S_XS), 63 * 32768))
        k('s_add_u32 %s, %s, 0x8000' % (s(S_XB), s(S_XB)))
        k('s_cmp_eq_u32 %s, 0x%x' % (s(S_XB), NXB * 0x8000))
        k('s_cselect_b32 %s, 0, %s' % (s(S_XB), s(S_XB)))
    return [(lambda T=T, j=j: one(T, j)) for T in range(2) for j in range(4)] + [fin]
NXB = 5

def mfma32(d, A, B, first):
    return 'v_mfma_f32_16x16x32_bf16 %s, %s, %s, %s' % (v(d, 4), A, B, '0' if first else v(d, 4))

def proj(k, after_issue=None):
    k.c('===== projections =====')
    S_O0, S_O1, S_OST, S_KIND, S_PAR = S_OO, S_T3, S_T4, S_NSEG, S_SEG
    srd(k, S_X, P_X, 2 << 20)
    LB = k.newlabel('L_pj_b'); LJ = k.newlabel('L_pj_j'); LG = k.newlabel('L_pj_g'); LJ2 = k.newlabel('L_pj_j2')
    x_setup(k)
    qkv_addr(k)
    k('s_lshl_b32 %s, %s, 2' % (s(S_T0), s(S_H)))
    k('s_add_u32 %s, %s, %s' % (s(S_T0), s(S_T0), s(S_W)))
    k('s_lshl_b32 %s, %s, 3' % (s(S_FL), s(S_T0)))
    k('s_add_u32 %s, %s, %s' % (s(S_FL), s(S_FL), s(S_R)))
    k('s_lshl_b32 %s, %s, 4' % (s(S_FL), s(S_FL)))
    k('s_add_u32 %s, %s, 0x%x' % (s(S_FL), s(S_FL), F_KV))
    k('s_cmp_eq_u32 %s, 6' % s(S_R))
    k('s_cbranch_scc1 %s' % LB)
    k('s_and_b32 %s, %s, 1' % (s(S_PAR), s(S_R)))
    k('s_lshr_b32 %s, %s, 1' % (s(S_T1), s(S_R)))
    k('s_cmp_eq_u32 %s, 0' % s(S_T1))
    k('s_cselect_b64 %s, %s, %s' % (s(4, 2), s(P_WK, 2), s(P_WV, 2)))
    k('s_cmp_eq_u32 %s, 2' % s(S_T1))
    k('s_cselect_b64 %s, %s, %s' % (s(4, 2), s(P_WQ, 2), s(4, 2)))
    srd(k, S_AUX, 4, 4 << 20)
    k('s_cselect_b32 %s, 0x40000, 0x80000' % s(S_OST)) if False else None
    k('s_mov_b32 %s, 0x80000' % s(S_OST))
    k('s_lshl_b32 %s, %s, 12' % (s(S_O0), s(S_T0)))
    k('s_and_b32 %s, %s, 1' % (s(S_KIND), s(S_T1)))
    k('s_lshl_b32 %s, %s, 11' % (s(S_O1), s(S_KIND)))
    k('s_add_u32 %s, %s, %s' % (s(S_O0), s(S_O0), s(S_O1)))
    k('s_cmp_lg_u32 %s, 2' % s(S_T1))
    k('s_cbranch_scc1 %s_q' % LB)
    k('s_lshl_b32 %s, %s, 11' % (s(S_O0), s(S_T0)))
    k('s_add_u32 %s, %s, 0x%x' % (s(S_O0), s(S_O0), QX))
    k('s_mov_b32 %s, 0x40000' % s(S_OST))
    k.label(LB + '_q')
    k('s_add_u32 %s, %s, 1024' % (s(S_O1), s(S_O0)))
    k('s_mov_b32 s5, 8192')
    k('s_branch %s' % LJ)
    k.label(LB)
    k('s_and_b32 %s, %s, 1' % (s(S_PAR), s(S_H)))
    srd(k, S_AUX, P_WB, 512 * 3072)
    k('s_and_b32 %s, %s, 30' % (s(S_T1), s(S_H)))
    k('s_lshl_b32 %s, %s, 12' % (s(S_O0), s(S_T1)))
    k('s_lshl_b32 %s, %s, 10' % (s(S_T0), s(S_W)))
    k('s_add_u32 %s, %s, %s' % (s(S_O0), s(S_O0), s(S_T0)))
    k('s_add_u32 %s, %s, 0x%x' % (s(S_O0), s(S_O0), BX))
    k('s_add_u32 %s, %s, 4096' % (s(S_O1), s(S_O0)))
    k('s_mov_b32 %s, 0x20000' % s(S_OST))
    k('s_cmp_eq_u32 %s, 2' % s(S_W))
    k('s_cselect_b32 %s, 1, 2' % s(S_KIND))
    k('s_cmp_eq_u32 %s, 3' % s(S_W))
    k('s_cselect_b32 %s, 3, %s' % (s(S_KIND), s(S_KIND)))
    k('v_lshrrev_b32 %s, 2, %s' % (v(VZ), v(LANE)))
    k('v_mul_u32_u24 %s, 3072, %s' % (v(GA), v(VZ)))
    k('v_and_b32 %s, 3, %s' % (v(VT), v(LANE)))
    k('v_lshl_add_u32 %s, %s, 4, %s' % (v(GA), v(VT), v(GA)))
    k('s_min_u32 %s, %s, 2048' % (s(S_T0), s(S_T0)))
    k('s_lshl_b32 %s, %s, 5' % (s(S_T1), s(S_T1)))
    k('s_add_u32 %s, %s, %s' % (s(S_T0), s(S_T0), s(S_T1)))
    k('v_add_u32 %s, %s, %s' % (v(GA), s(S_T0), v(GA)))
    k('s_mov_b32 s5, 3072')
    k.label(LJ)
    k('s_lshl_b32 s5, s5, 4')
    k('s_mul_i32 %s, %s, %s' % (s(S_T0), s(S_PAR), s(S_OST)))
    k('s_add_u32 %s, %s, %s' % (s(S_O0), s(S_O0), s(S_T0)))
    k('s_add_u32 %s, %s, %s' % (s(S_O1), s(S_O1), s(S_T0)))
    k('s_lshl_b32 %s, %s, 1' % (s(S_OST), s(S_OST)))
    dW = lambda t, ks: ('a', (t * 16 + ks) * 4)
    k('s_lshl_b32 %s, %s, 15' % (s(S_XS), s(S_PAR)))
    k('s_mov_b32 %s, 0x20000' % s(S_XB))
    for f in x_dma(k, 'x'): f()
    if hasattr(k, 'after_x0'): k.after_x0()
    k('s_lshl_b32 s4, %s, 15' % s(S_W))
    k('v_subrev_u32 %s, %s, %s' % (v(TR), s(S_T2), v(TR)))
    k('v_add_u32 %s, s4, %s' % (v(TR), v(TR)))
    k('s_mov_b32 %s, 0' % s(S_T0))
    for i in range(32):
        k('s_add_u32 m0, s4, %d' % (i * 1024))
        k('buffer_load_dwordx4 %s, %s, %s offen lds' % (v(GA), s(S_AUX, 4), s(S_T0)), tag=('wl', i // 4))
        k('s_add_u32 %s, %s, s5' % (s(S_T0), s(S_T0)))
    if after_issue: after_issue()
    for b in range(8):
        k.wait_vm(('wl', b))
        for k2 in range(2):
            for t in range(2):
                for hh in range(2):
                    k('ds_read_b64_tr_b16 %s, %s offset:%d' % (R(dW(t, 2 * b + k2), 2 * hh, 2), v(TR), b * 4096 + (32 * k2 + 4 * hh) * 64 + 32 * t))
        if b % 2: k('s_waitcnt lgkmcnt(0)')
    k('s_cmp_ge_u32 %s, 4' % s(S_R))
    k('s_cbranch_scc1 L_pj_nokv')
    TQ = 15
    k('v_bfe_u32 %s, %s, 5, 1' % (v(VZ), v(LANE)))
    k('v_lshlrev_b32 %s, 4, %s' % (v(TQ), v(VZ)))
    for (bit, sh) in ((4, 2), (3, 3), (2, 0)):
        k('v_bfe_u32 %s, %s, %d, 1' % (v(VZ), v(LANE), bit))
        k('v_lshl_add_u32 %s, %s, %d, %s' % (v(TQ), v(VZ), sh, v(TQ)))
    k('v_and_b32 %s, 3, %s' % (v(VT), v(LANE)))
    k('v_lshlrev_b32 %s, 6, %s' % (v(TQ), v(TQ)))
    k('v_lshl_add_u32 %s, %s, 3, %s' % (v(TQ), v(VT), v(TQ)))
    k('s_lshl_b32 %s, %s, 14' % (s(S_T0), s(S_PAR)))
    k('s_add_u32 %s, %s, s4' % (s(S_T1), s(S_T0)))
    k('v_add_u32 %s, %s, %s' % (v(TQ), s(S_T1), v(TQ)))
    for ks in range(4):
        for t in range(2):
            for H in range(2):
                for Q in range(2):
                    k('ds_read_b64_tr_b16 %s, %s offset:%d' % (v(80 + (ks * 2 + t) * 8 + 4 * H + 2 * Q, 2), v(TQ), ks * 4096 + (32 * H + 2 * Q) * 64 + 32 * t))
        k('s_waitcnt lgkmcnt(0)')
    k('s_lshr_b32 %s, %s, 1' % (s(S_T1), s(S_R)))
    k('s_lshl_b32 %s, %s, 5' % (s(S_T1), s(S_T1)))
    k('s_add_u32 %s, %s, %s' % (s(S_T1), s(S_T1), s(S_H)))
    k('s_lshl_b32 %s, %s, 17' % (s(S_T1), s(S_T1)))
    k('s_add_u32 %s, %s, s4' % (s(S_T1), s(S_T1)))
    k('s_add_u32 %s, %s, %s' % (s(S_T1), s(S_T1), s(S_T0)))
    k('s_add_u32 s58, %s, 0x%x' % (s(S_T1), WKVF))
    k.label('L_pj_nokv')
    k('s_cmp_lg_u32 %s, 3' % s(S_KIND))
    k('s_cbranch_scc1 %s' % LJ2)
    srd(k, S_WQ, P_GW, 1024)
    k('v_lshrrev_b32 %s, 4, %s' % (v(GA), v(LANE)))
    k('v_lshlrev_b32 %s, 4, %s' % (v(GA), v(GA)))
    for ks in range(16):
        k('buffer_load_dwordx4 %s, %s, %s, 0 offen offset:%d' % (R(dW(0, ks), 0, 4), v(GA), s(S_WQ, 4), ks * 64))
    k.label(LJ2)
    k('s_waitcnt vmcnt(0)')
    if hasattr(k, 'stampw'): k.stampw(7)
    k('s_barrier')
    if hasattr(k, 'after_wload'): k.after_wload()
    k('s_mov_b32 %s, 0' % s(S_I))
    XR0 = 14; S_XRB = 60
    k('v_mov_b32 %s, %s' % (v(XR0), v(XR)))
    k('s_mov_b32 %s, 0x20000' % s(S_XRB))
    k('v_add_u32 %s, %s, %s' % (v(XR), s(S_XRB), v(XR0)))
    k('v_xor_b32 %s, 64, %s' % (v(XR1), v(XR)))
    for i in range(2):
        for f in x_dma(k, 'x'): f()
    ACC, XF, PKR = 16, 48, 72
    k('s_cmp_eq_u32 %s, 1' % s(S_KIND))
    k('s_cbranch_scc1 L_pj_td')
    for name in ('dt', 'td'):
        L = 'L_pj_' + name
        k.label(L)
        k.vm = []; k.lg = []
        k('s_waitcnt vmcnt(19)')
        k('s_barrier')
        dq = x_dma(k, 'x')
        def rd(ks, Ts=(0, 1)):
            for T in Ts:
                k('ds_read_b128 %s, %s offset:%d' % (v(XF + 8 * (ks % 3) + 4 * T, 4), v(XR1 if ks & 1 else XR), T * 16384 + (ks >> 1) * 2048), tag=('xf', ks))
        rd(0); rd(1)
        for ks in range(16):
            k.wait_lg(('xf', ks))
            xf = XF + 8 * (ks % 3)
            n = 0
            for T in range(2):
                for t in range(2):
                    if name == 'dt': k(mfma32(ACC + 4 * (2 * T + t), R(dW(t, ks), 0, 4), v(xf + 4 * T, 4), ks == 0))
                    else: k(mfma32(ACC + 4 * (2 * t + T), v(xf + 4 * T, 4), R(dW(t, ks), 0, 4), ks == 0))
                    if n < 2 and ks + 2 < 16: rd(ks + 2, (n,))
                    if n == 2 and dq and ks >= 7: dq.pop(0)()
                    n += 1
            if ks == 5:
                LF = k.newlabel('L_pjf')
                k('s_sub_i32 %s, %s, 1' % (s(S_T1), s(S_I)))
                k('s_cmp_gt_u32 %s, 1' % s(S_I))
                k('s_cbranch_scc1 %s' % LF)
                k('s_mov_b32 %s, %s' % (s(S_T1), s(S_I)))
                k('s_waitcnt vmcnt(0)')
                k.label(LF)
                k('s_lshl1_add_u32 %s, %s, %s' % (s(S_T1), s(S_T1), s(S_PAR)))
                k('s_waitcnt vmcnt(11)')
                set_flag(k, S_FL, s(S_T1))
        LS = k.newlabel('L_es')
        if name == 'dt':
            L2 = k.newlabel('L_e2'); L3 = k.newlabel('L_e3')
            k('s_cmp_eq_u32 %s, 2' % s(S_KIND))
            k('s_cbranch_scc1 %s' % L2)
            k('s_cmp_eq_u32 %s, 3' % s(S_KIND))
            k('s_cbranch_scc1 %s' % L3)
        for i in range(8): cvt(k, PKR + i, ACC + 2 * i, ACC + 2 * i + 1)
        k.label(LS)
        k('buffer_store_dwordx4 %s, %s, %s, %s offen sc1' % (v(PKR, 4), v(L16), s(S_WS, 4), s(S_O0)))
        k('buffer_store_dwordx4 %s, %s, %s, %s offen sc1' % (v(PKR + 4, 4), v(L16), s(S_WS, 4), s(S_O1)))
        k('s_add_u32 %s, %s, %s' % (s(S_O0), s(S_O0), s(S_OST)))
        k('s_add_u32 %s, %s, %s' % (s(S_O1), s(S_O1), s(S_OST)))
        k('s_add_u32 %s, %s, 0x8000' % (s(S_XRB), s(S_XRB)))
        k('s_cmp_eq_u32 %s, 0x%x' % (s(S_XRB), NXB * 0x8000))
        k('s_cselect_b32 %s, 0, %s' % (s(S_XRB), s(S_XRB)))
        k('v_add_u32 %s, %s, %s' % (v(XR), s(S_XRB), v(XR0)))
        k('v_xor_b32 %s, 64, %s' % (v(XR1), v(XR)))
        k('s_add_u32 %s, %s, 1' % (s(S_I), s(S_I)))
        k('s_cmp_lt_u32 %s, 32' % s(S_I))
        k('s_cbranch_scc1 %s' % L)
        k('s_branch L_pj_end')
        if name == 'dt':
            k.label(L2)
            k.flush(6)
            for t in range(2):
                for T in range(2):
                    for i in range(2):
                        cvt(k, PKR + 4 * t + 2 * T + i, ACC + 4 * (2 * T + t) + 2 * i, ACC + 4 * (2 * T + t) + 2 * i + 1)
            k('s_branch %s' % LS)
            k.label(L3)
            k.flush(6)
            P3 = PKR
            cvt(k, P3, ACC, ACC + 8)
            k('v_lshlrev_b32 %s, 16, %s' % (v(P3 + 2), v(P3)))
            k('v_and_b32 %s, 0xffff0000, %s' % (v(P3 + 3), v(P3)))
            for i in (2, 3): k('v_mul_f32 %s, 0x%x, %s' % (v(P3 + i), f2u(-math.log2(math.e)), v(P3 + i)))
            for i in (2, 3): k('v_exp_f32 %s, %s' % (v(P3 + i), v(P3 + i)))
            for i in (2, 3): k('v_add_f32 %s, 1.0, %s' % (v(P3 + i), v(P3 + i)))
            for i in (2, 3): k('v_rcp_f32 %s, %s' % (v(P3 + i), v(P3 + i)))
            cvt(k, P3 + 1, P3 + 2, P3 + 3)
            k('v_lshlrev_b32 %s, 16, %s' % (v(P3), v(P3 + 1)))
            k('v_and_b32 %s, 0xffff0000, %s' % (v(P3 + 1), v(P3 + 1)))
            k('v_sub_f32 %s, 1.0, %s' % (v(P3 + 2), v(P3)))
            k('v_sub_f32 %s, 1.0, %s' % (v(P3 + 3), v(P3 + 1)))
            cvt(k, P3 + 3, P3 + 2, P3 + 3)
            k('v_lshlrev_b32 %s, 16, %s' % (v(P3 + 2), v(P3 + 3)))
            k('v_and_b32 %s, 0xffff0000, %s' % (v(P3 + 3), v(P3 + 3)))
            for i in range(4): k('v_mov_b32 %s, %s' % (v(P3 + 4 + i), v(P3 + i)))
            k('s_branch %s' % LS)
    k.label('L_pj_end')
    k('s_cmp_ge_u32 %s, 4' % s(S_R))
    k('s_cbranch_scc1 L_pj_end2')
    for i in range(16):
        k('buffer_store_dwordx4 %s, %s, %s, s58 offen offset:%d sc1' % (v(80 + 4 * i, 4), v(L16), s(S_WS, 4), 1024 * (i & 3)))
        if i & 3 == 3: k('s_add_u32 s58, s58, 4096')
    k.label('L_pj_end2')
    k('s_waitcnt vmcnt(0)')
    set_flag(k, S_FL, '64')
    k('s_cmp_eq_u32 %s, 0' % s(S_R))
    k('s_cselect_b32 %s, 10, 9' % s(S_NSEG))

def diag_masks(k):
    k('v_lshrrev_b32 %s, 4, %s' % (v(VZ), v(LANE)))
    k('v_lshlrev_b32 %s, 2, %s' % (v(VZ), v(VZ)))
    k('v_and_b32 %s, 15, %s' % (v(VT), v(LANE)))
    k('v_sub_u32 %s, %s, %s' % (v(VT), v(VT), v(VZ)))
    for j in range(4):
        k('v_cmp_le_i32 %s, %d, %s' % (s(S_M + 2 * j, 2), j, v(VT)))

def xreduce(k, op, X, T):
    for sw in ('v_permlane16_swap_b32', 'v_permlane32_swap_b32'):
        k('v_mov_b32 %s, %s' % (v(T), v(X)))
        k('%s %s, %s' % (sw, v(X), v(T)))
        k('%s %s, %s, %s' % (op, v(X), v(X), v(T)))

def round_bf16(k, regs, T):
    for i in range(0, len(regs), 2):
        x, y = regs[i], regs[i + 1]
        cvt(k, y, x, y)
        k('v_lshlrev_b32 %s, 16, %s' % (v(x), v(y)))
        k('v_and_b32 %s, 0xffff0000, %s' % (v(y), v(y)))

def battn(k, waitflags=True, pre=None, post=None):
    k.c('===== B-branch sliding window attention =====')
    if waitflags:
        k('s_and_b32 %s, %s, 30' % (s(S_T3), s(S_H)))
        k('s_lshl_b32 %s, %s, 9' % (s(S_T3), s(S_T3)))
        k('s_add_u32 %s, %s, 0x%x' % (s(S_T3), s(S_T3), F_KV + 96))
        poll_flags(k, S_T3, 8, '64', 'd2', stride=128)
    diag_masks(k)
    QB, KB, VB, SC, NEG, MX, TT, LSUM, OO = 8, 12, 48, 84, 228, 230, 232, 234, 236
    def sc(j, kt, T): return SC + 4 * ((j * 2 + kt) * 2 + T)
    k('v_mov_b32 %s, 0xff800000' % v(NEG))
    k('s_mov_b32 %s, %s' % (s(S_I), s(S_W)))
    LOOP = 'L_ba_loop'; END = 'L_ba_end'
    S_RND = 61
    k('s_mov_b32 %s, 0' % s(S_RND))
    def dispatch(fns, name):
        if not fns: return
        J = 'L_ba_%s_j' % name
        for r, f in enumerate(fns):
            if r < len(fns) - 1:
                k('s_cmp_lg_u32 %s, %d' % (s(S_RND), r))
                k('s_cbranch_scc1 L_ba_%s_%d' % (name, r + 1))
            f()
            if r < len(fns) - 1:
                k('s_branch %s' % J)
                k.label('L_ba_%s_%d' % (name, r + 1))
        k.label(J)
    k.label(LOOP)
    k('s_cmp_ge_u32 %s, %s' % (s(S_I), s(S_NSEG)))
    k('s_cbranch_scc1 L_ba_nl')
    k('s_mul_i32 %s, %s, 7' % (s(S_SEG), s(S_I)))
    k('s_add_u32 %s, %s, %s' % (s(S_SEG), s(S_SEG), s(S_R)))
    k.vm = []
    k('s_lshl_b32 %s, %s, 12' % (s(S_T3), s(S_H)))
    k('s_add_u32 %s, %s, 0x%x' % (s(S_T3), s(S_T3), BX))
    k('s_lshl_b32 %s, %s, 17' % (s(S_T0), s(S_SEG)))
    k('s_add_u32 %s, %s, %s' % (s(S_T0), s(S_T0), s(S_T3)))
    k('buffer_load_dwordx4 %s, %s, %s, %s offen sc1' % (v(QB, 4), v(L16), s(S_WS, 4), s(S_T0)), tag='q')
    for j in range(9):
        k('s_sub_i32 %s, %s, %d' % (s(S_T0), s(S_SEG), 8 - j))
        k('s_max_i32 %s, %s, 0' % (s(S_T0), s(S_T0)))
        k('s_lshl_b32 %s, %s, 17' % (s(S_T0), s(S_T0)))
        k('s_add_u32 %s, %s, %s' % (s(S_T0), s(S_T0), s(S_T3)))
        k('buffer_load_dwordx4 %s, %s, %s, %s offen offset:1024 sc1' % (v(KB + 4 * j, 4), v(L16), s(S_WS, 4), s(S_T0)), tag=('k', j))
        k('buffer_load_dwordx4 %s, %s, %s, %s offen offset:2048 sc1' % (v(VB + 4 * j, 4), v(L16), s(S_WS, 4), s(S_T0)), tag=('v', j))
    k.label('L_ba_nl')
    dispatch(pre, 'pre')
    k('s_cmp_ge_u32 %s, %s' % (s(S_I), s(S_NSEG)))
    k('s_cbranch_scc1 L_ba_only')
    dead = {(0, 0, 1), (8, 1, 0)}
    for j in range(9):
        k.wait_vm(('k', j))
        for kt in range(2):
            for T in range(2):
                if (j, kt, T) in dead: continue
                k('v_mfma_f32_16x16x16_bf16 %s, %s, %s, 0' % (v(sc(j, kt, T), 4), v(KB + 4 * j + 2 * kt, 2), v(QB + 2 * T, 2)))
    k.flush(9)
    for T in range(2):
        for jj in range(4):
            k('v_cndmask_b32 %s, %s, %s, %s' % (v(sc(8, T, T) + jj), v(NEG), v(sc(8, T, T) + jj), s(S_M + 2 * jj, 2)))
            k('v_cndmask_b32 %s, %s, %s, %s' % (v(sc(0, T, T) + jj), v(sc(0, T, T) + jj), v(NEG), s(S_M + 2 * jj, 2)))
    LV = k.newlabel('L_ba_valid')
    for j in range(8):
        k('s_cmp_ge_u32 %s, %d' % (s(S_SEG), 8 - j))
        k('s_cbranch_scc1 %s' % LV)
        for r in range(16):
            k('v_mov_b32 %s, %s' % (v(sc(j, 0, 0) + r), v(NEG)))
    k.label(LV)
    c = 0.25 * math.log2(math.e)
    k('s_mov_b32 %s, 0x%x' % (s(S_T4), f2u(c)))
    if pre: k.sprinkle = [28, k.pb_dma, 28, 32]
    for T in range(2):
        regs = [sc(j, kt, T) + r for j in range(9) for kt in range(2) if (j, kt, T) not in dead for r in range(4)]
        round_bf16(k, regs, TT)
        k('v_max3_f32 %s, %s, %s, %s' % (v(MX), v(regs[0]), v(regs[1]), v(regs[2])))
        k('v_max3_f32 %s, %s, %s, %s' % (v(MX + 1), v(regs[3]), v(regs[4]), v(regs[5])))
        rest = regs[6:]
        for i in range(0, len(rest), 2):
            m = MX + ((i >> 1) & 1)
            k('v_max3_f32 %s, %s, %s, %s' % (v(m), v(m), v(rest[i]), v(rest[i + 1])))
        k('v_max_f32 %s, %s, %s' % (v(MX), v(MX), v(MX + 1)))
        xreduce(k, 'v_max_f32', MX, TT)
        k('v_mul_f32 %s, %s, %s' % (v(MX), s(S_T4), v(MX)))
        for r in regs: k('v_fma_f32 %s, %s, %s, -%s' % (v(r), v(r), s(S_T4), v(MX)))
        for r in regs: k('v_exp_f32 %s, %s' % (v(r), v(r)))
        k('v_add_f32 %s, %s, %s' % (v(LSUM), v(regs[0]), v(regs[1])))
        k('v_add_f32 %s, %s, %s' % (v(LSUM + 1), v(regs[2]), v(regs[3])))
        for i, r in enumerate(regs[4:]):
            m = LSUM + (i & 1)
            k('v_add_f32 %s, %s, %s' % (v(m), v(m), v(r)))
        k('v_add_f32 %s, %s, %s' % (v(LSUM), v(LSUM), v(LSUM + 1)))
        xreduce(k, 'v_add_f32', LSUM, TT)
        k('v_rcp_f32 %s, %s' % (v(LSUM), v(LSUM)))
        for r in regs: k('v_mul_f32 %s, %s, %s' % (v(r), v(r), v(LSUM)))
        for j in range(9):
            d = sc(j, 0, T)
            for kt in range(2):
                if (j, kt, T) in dead:
                    k('v_mov_b32 %s, 0' % v(d + 2 * kt)); k('v_mov_b32 %s, 0' % v(d + 2 * kt + 1))
                else:
                    b = sc(j, kt, T)
                    cvt(k, d + 2 * kt, b, b + 1); cvt(k, d + 2 * kt + 1, b + 2, b + 3)
        if T == 0: k.wait_vm(('v', 8))
        for j in range(9):
            k(mfma32(OO + 4 * T, v(VB + 4 * j, 4), v(sc(j, 0, T), 4), j == 0))
    if pre:
        assert k.sprinkle[3] == 0, k.sprinkle
        k.sprinkle = None
    for i in range(4): cvt(k, QB + i, OO + 2 * i, OO + 2 * i + 1)
    k('s_lshl_b32 %s, %s, 15' % (s(S_T0), s(S_SEG)))
    k('s_lshr_b32 %s, %s, 1' % (s(S_T1), s(S_H)))
    k('s_lshl_b32 %s, %s, 10' % (s(S_T1), s(S_T1)))
    k('s_add_u32 %s, %s, %s' % (s(S_T0), s(S_T0), s(S_T1)))
    k('s_and_b32 %s, %s, 1' % (s(S_T1), s(S_H)))
    k('s_lshl_b32 %s, %s, 3' % (s(S_T1), s(S_T1)))
    k('s_add_u32 %s, %s, %s' % (s(S_T0), s(S_T0), s(S_T1)))
    k('s_add_u32 %s, %s, 0x%x' % (s(S_T0), s(S_T0), OB))
    k('s_add_u32 %s, %s, 16384' % (s(S_T1), s(S_T0)))
    k('buffer_store_dwordx2 %s, %s, %s, %s offen sc1' % (v(QB, 2), v(L16), s(S_WS, 4), s(S_T0)))
    k('buffer_store_dwordx2 %s, %s, %s, %s offen sc1' % (v(QB + 2, 2), v(L16), s(S_WS, 4), s(S_T1)))
    k('s_branch L_ba_skip')
    k.label('L_ba_only')
    if pre:
        k('s_mov_b32 %s, 32' % s(S_T1))
        k.label('L_ba_dl')
        k.pb_dma()
        k('s_sub_u32 %s, %s, 1' % (s(S_T1), s(S_T1)))
        k('s_cmp_lg_u32 %s, 0' % s(S_T1))
        k('s_cbranch_scc1 L_ba_dl')
    k.label('L_ba_skip')
    k('s_add_u32 %s, %s, 4' % (s(S_I), s(S_I)))
    k('s_waitcnt vmcnt(0)')
    dispatch(post, 'post')
    k('s_add_u32 %s, %s, 1' % (s(S_RND), s(S_RND)))
    k('s_cmp_lt_u32 %s, 3' % s(S_RND))
    k('s_cbranch_scc1 %s' % LOOP)
    k.label(END)
    k('s_barrier')
    k('s_lshl_b32 %s, %s, 3' % (s(S_FL), s(S_H)))
    k('s_add_u32 %s, %s, %s' % (s(S_FL), s(S_FL), s(S_R)))
    k('s_lshl_b32 %s, %s, 2' % (s(S_FL), s(S_FL)))
    k('s_add_u32 %s, %s, 0x%x' % (s(S_FL), s(S_FL), F_D3))
    set_flag(k, S_FL, '1')


PB_GO, PB_TR, PB_GQ, PB_TRQ, PB_GB = 2, 3, 4, 5, 244
WOV, WBF, ACC, MEMF, AKV, QF, KF, VF, SX, BV, T8, SELT, IDX, NEG, MX, TT, LS = 16, 112, 128, 160, 192, 208, 212, 220, 228, 236, 240, 248, 250, 251, 252, 253, 254
S_STG = 63
wof = lambda dt, kk: (WOV + (dt * 4 + kk) * 4) if dt < 6 else (MEMF + ((dt - 6) * 4 + kk) * 4)
wkv = lambda m, ks, t: ((m * 8 + ks) * 2 + t) * 8

def pb_loader(k):
    S_LS, S_LST, S_LR = 58, 59, S_WK
    PB_GA = 245
    srd(k, S_AUX, P_WOB, 512 * 1024)
    k('s_barrier')
    k('s_mul_i32 %s, %s, 40960' % (s(S_STG), s(S_W)))
    S_LM = S_XB
    if k.pb_wait:
        k('s_lshl_b32 %s, %s, 9' % (s(S_T3), s(S_TK)))
        k('s_add_u32 %s, %s, 0x%x' % (s(S_T3), s(S_T3), F_KV))
        poll_flags(k, S_T3, 32, '64', 'wkv', stride=16, mask=0x0f0f0f0f)
    k('v_lshrrev_b32 %s, 2, %s' % (v(VZ), v(LANE)))
    k('v_and_b32 %s, 3, %s' % (v(VT), v(LANE)))
    k('v_mul_u32_u24 %s, 1056, %s' % (v(PB_TR), v(VZ)))
    k('v_lshl_add_u32 %s, %s, 3, %s' % (v(PB_TR), v(VT), v(PB_TR)))
    k('s_lshl_b32 %s, %s, 8' % (s(S_T1), s(S_W)))
    k('v_add_u32 %s, %s, %s' % (v(PB_TR), s(S_T1), v(PB_TR)))
    k('v_add_u32 %s, %s, %s' % (v(PB_TRQ), s(S_STG), v(L16)))
    k('v_lshrrev_b32 %s, 1, %s' % (v(VZ), v(LANE)))
    k('v_lshlrev_b32 %s, 10, %s' % (v(PB_GB), v(VZ)))
    k('v_and_b32 %s, 1, %s' % (v(VT), v(LANE)))
    k('v_lshl_add_u32 %s, %s, 4, %s' % (v(PB_GB), v(VT), v(PB_GB)))
    k('s_lshl_b32 %s, %s, 17' % (s(S_T0), s(S_W)))
    k('s_lshl_b32 %s, %s, 5' % (s(S_T1), s(S_TK)))
    k('s_add_u32 %s, %s, %s' % (s(S_T0), s(S_T0), s(S_T1)))
    k('v_add_u32 %s, %s, %s' % (v(PB_GB), s(S_T0), v(PB_GB)))
    for i in range(4):
        k('s_mov_b32 %s, %d' % (s(S_T0), 32 * i * 1024))
        k('s_add_u32 m0, %s, %d' % (s(S_STG), 36864 + i * 1024))
        k('buffer_load_dwordx4 %s, %s, %s offen lds' % (v(PB_GB), s(S_AUX, 4), s(S_T0)))
    def pb_dma():
        k('buffer_load_dwordx4 %s, %s, %s offen sc1 lds' % (v(L16), s(S_LR, 4), s(S_LS)))
        k('s_add_u32 m0, m0, %s' % s(S_LM))
        k('s_add_u32 %s, %s, 1024' % (s(S_LS), s(S_LS)))
    k.pb_dma = pb_dma
    def pre(m):
        def f():
            k('s_lshl_b32 %s, %s, 2' % (s(S_LS), s(S_TK)))
            k('s_add_u32 %s, %s, %s' % (s(S_LS), s(S_LS), s(S_W)))
            k('s_lshl_b32 %s, %s, 15' % (s(S_LS), s(S_LS)))
            if m < 2:
                srd(k, S_LR, P_WS, WS_BYTES)
                k('s_add_u32 %s, %s, 0x%x' % (s(S_LS), s(S_LS), WKVF + m * 0x400000))
            else:
                srd(k, S_LR, P_WO, 4 << 20)
            k('s_mov_b32 %s, %d' % (s(S_LM), 1024 if m < 2 else 1056))
            k('s_mov_b32 m0, %s' % s(S_STG))
        return f
    def post_kv(m):
        def f():
            for i in range(32):
                k('ds_read_b128 %s, %s offset:%d' % (a(128 * m + 4 * i, 4), v(PB_TRQ), i * 1024))
                if i % 8 == 7: k('s_waitcnt lgkmcnt(0)')
        return f
    def final():
        k('s_barrier')
        k('v_add_u32 %s, %d, %s' % (v(PB_GO), 2 * 40960, v(PB_TR)))
        for dt in range(8):
            for kk in range(4):
                for hh in range(2):
                    k('ds_read_b64_tr_b16 %s, %s offset:%d' % (v(wof(dt, kk) + 2 * hh, 2), v(PB_GO if kk >= 2 else PB_TR), (kk & 1) * 40960 + 16 * hh * 1056 + dt * 32))
            k('s_waitcnt lgkmcnt(0)')
        k('v_lshlrev_b32 %s, 3, %s' % (v(VZ), v(LANE)))
        k('v_add_u32 %s, %s, %s' % (v(VZ), s(S_STG), v(VZ)))
        for hb in range(8):
            k('ds_read_b64_tr_b16 %s, %s offset:%d' % (v(WBF + 2 * hb, 2), v(VZ), 36864 + hb * 512))
        k('s_waitcnt lgkmcnt(0)')
    return [pre(0), pre(1), pre(2)], [post_kv(0), post_kv(1), lambda: None], final

def phaseB(k, waitflags=True, opt={}):
    k.c('===== phase B =====')
    srd(k, S_OUT, P_OUT, 2 << 20)
    k('s_barrier')
    PFA, ST, OA, LW2, LW1, MEMA, MEMO, HOME = 8, 9, 10, 11, 12, 13, 14, 15
    BRA, GRA, L8, IDXR = 2, 3, 4, 5
    SELR = 244
    L_SMX, L_OX, L_HOME, L_BX = 16384, 20480, 32768, 8192
    S_PF = S_T2
    k('s_mul_i32 %s, %s, 12288' % (s(S_PF), s(S_W)))
    k('s_add_u32 %s, %s, 65536' % (s(S_PF), s(S_PF)))
    k('s_lshl_b32 %s, %s, 13' % (s(S_T0), s(S_W)))
    k('v_add_u32 %s, %s, %s' % (v(HOME), s(S_T0), v(L16)))
    k('s_lshl_b32 %s, %s, 11' % (s(S_T0), s(S_W)))
    k('v_add_u32 %s, %s, %s' % (v(LW2), s(S_T0), v(L16)))
    k('s_lshl_b32 %s, %s, 10' % (s(S_T0), s(S_W)))
    k('v_add_u32 %s, %s, %s' % (v(LW1), s(S_T0), v(L16)))
    for i in range(8):
        k('ds_write_b128 %s, %s offset:%d' % (v(HOME), v(MEMF + 4 * i, 4), L_HOME + 1024 * i))
    diag_masks(k)
    k('v_and_b32 %s, 15, %s' % (v(VT), v(LANE)))
    k('v_lshrrev_b32 %s, 4, %s' % (v(VZ), v(LANE)))
    k('v_cmp_gt_u32 vcc, 8, %s' % v(VT))
    k('v_mov_b32 %s, 0xeeee' % v(IDX))
    k('v_mov_b32 %s, 0x4444' % v(TT))
    k('v_cndmask_b32 %s, %s, %s, vcc' % (v(IDX), v(IDX), v(TT)))
    k('v_lshlrev_b32 %s, 3, %s' % (v(ST), v(VT)))
    k('v_lshl_add_u32 %s, %s, 12, %s' % (v(ST), v(VZ), v(ST)))
    k('v_and_b32 %s, 7, %s' % (v(MX), v(LANE)))
    k('v_lshrrev_b32 %s, 5, %s' % (v(TT), v(LANE)))
    k('v_lshl_add_u32 %s, %s, 1, %s' % (v(MX), v(MX), v(TT)))
    k('v_and_b32 %s, 1, %s' % (v(TT), v(VZ)))
    k('v_lshlrev_b32 %s, 10, %s' % (v(OA), v(MX)))
    k('v_lshl_add_u32 %s, %s, 2, %s' % (v(OA), v(TT), v(OA)))
    k('s_lshl_b32 %s, %s, 5' % (s(S_T0), s(S_H)))
    k('s_lshl_b32 %s, %s, 3' % (s(S_T1), s(S_W)))
    k('s_add_u32 %s, %s, %s' % (s(S_T0), s(S_T0), s(S_T1)))
    k('v_add_u32 %s, %s, %s' % (v(OA), s(S_T0), v(OA)))
    k('v_bfrev_b32 %s, 1' % v(LS))
    k('v_cndmask_b32 %s, %s, %s, vcc' % (v(OA), v(LS), v(OA)))
    k('v_lshlrev_b32 %s, 4, %s' % (v(GRA), v(MX)))
    k('v_lshl_add_u32 %s, %s, 3, %s' % (v(BRA), v(TT), v(GRA)))
    k('v_add_u32 %s, %s, %s' % (v(GRA), s(S_PF), v(GRA)))
    k('s_lshl_b32 %s, %s, 8' % (s(S_T0), s(S_W)))
    k('s_add_u32 %s, %s, %d' % (s(S_T0), s(S_T0), L_BX))
    k('v_add_u32 %s, %s, %s' % (v(BRA), s(S_T0), v(BRA)))
    k('v_add_u32 %s, %d, %s' % (v(L8), L_BX, v(LW1)))
    k('v_mov_b32 %s, 0x3f80' % v(MX))
    k('v_and_b32 %s, 2, %s' % (v(TT), v(VT)))
    k('v_cmp_eq_u32 s[4:5], 0, %s' % v(TT))
    k('v_mov_b32 %s, 0' % v(LS))
    k('v_cndmask_b32 %s, %s, %s, s[4:5]' % (v(TT), v(LS), v(MX)))
    k('v_cndmask_b32 %s, %s, %s, vcc' % (v(SELR), v(LS), v(TT)))
    k('v_cndmask_b32 %s, %s, %s, vcc' % (v(SELR + 1), v(TT), v(LS)))
    k('v_mov_b32 %s, %s' % (v(SELR + 2), v(SELR)))
    k('v_mov_b32 %s, %s' % (v(SELR + 3), v(SELR + 1)))
    k('v_bfe_u32 %s, %s, 2, 1' % (v(TT), v(VT)))
    k('v_and_b32 %s, 1, %s' % (v(LS), v(VT)))
    k('v_lshl_add_u32 %s, %s, 1, %s' % (v(TT), v(TT), v(LS)))
    k('v_xor_b32 %s, 1, %s' % (v(LS), v(TT)))
    k('v_lshl_add_u32 %s, %s, 2, %s' % (v(TT), v(LS), v(TT)))
    k('v_mul_u32_u24 %s, 0x1111, %s' % (v(IDXR), v(TT)))
    k('v_and_b32 %s, 1, %s' % (v(VZ), v(VZ)))
    k('v_lshlrev_b32 %s, 2, %s' % (v(VZ), v(VZ)))
    k('v_and_b32 %s, 7, %s' % (v(VT), v(LANE)))
    k('v_sub_u32 %s, %s, %s' % (v(VT), v(VT), v(VZ)))
    k('v_mov_b32 %s, 0x3f800000' % v(TT))
    for r in range(2):
        k('v_mov_b32 %s, 0' % v(SELT + r))
        k('v_cmp_eq_u32 vcc, %d, %s' % (2 * r, v(VT)))
        k('v_cndmask_b32 %s, %s, %s, vcc' % (v(SELT + r), v(SELT + r), v(MX)))
        k('v_cmp_eq_u32 vcc, %d, %s' % (2 * r + 1, v(VT)))
        k('v_cndmask_b32 %s, %s, %s, vcc' % (v(SELT + r), v(SELT + r), v(TT)))
    k('v_mov_b32 %s, 0xff800000' % v(NEG))
    if waitflags:
        for r in range(4):
            k('s_mov_b32 %s, 0x%x' % (s(S_T3), F_D3 + 256 * r))
            poll_flags(k, S_T3, 64, '1', 'd3', skip7=True)
    S_PBW, S_PBR, S_U, S_T, S_TG = S_XS, S_XB, S_R, S_NSEG, S_FL
    k('s_lshl_b32 %s, %s, 20' % (s(S_T0), s(S_GRP)))
    k('s_add_u32 %s, %s, 0x%x' % (s(S_T0), s(S_T0), PB))
    k('s_lshl_b32 %s, %s, 17' % (s(S_PBW), s(S_W)))
    k('s_add_u32 %s, %s, %s' % (s(S_PBW), s(S_PBW), s(S_T0)))
    k('s_lshl_b32 %s, %s, 7' % (s(S_T1), s(S_H)))
    k('s_add_u32 %s, %s, %s' % (s(S_PBW), s(S_PBW), s(S_T1)))
    k('s_lshl_b32 %s, %s, 14' % (s(S_PBR), s(S_H)))
    k('s_add_u32 %s, %s, %s' % (s(S_PBR), s(S_PBR), s(S_T0)))
    k('s_lshl_b32 %s, %s, 12' % (s(S_T1), s(S_W)))
    k('s_add_u32 %s, %s, %s' % (s(S_PBR), s(S_PBR), s(S_T1)))
    k('s_mov_b32 %s, 0' % s(S_I))
    k('s_sub_u32 %s, %s, 1' % (s(S_U), s(S_GRP)))
    k('s_mov_b32 %s, 0x%x' % (s(S_T4), f2u(128 ** -0.5)))
    def mf16(d, A, B, C=None): k('v_mfma_f32_16x16x16_bf16 %s, %s, %s, %s' % (v(d, 4), v(A, 2), v(B, 2), '0' if C is None else v(C, 4)))
    def rnd2(regs):
        round_bf16(k, regs, TT)
        for r in regs: k('v_mul_f32 %s, %s, %s' % (v(r), s(S_T4), v(r)))
        round_bf16(k, regs, TT)
    def add(d, x, y): k('v_add_f32 %s, %s, %s' % (v(d), v(x), v(y)))
    ld = lambda d, so, off, tag: k('buffer_load_dwordx4 %s, %s, %s, %s offen offset:%d sc1' % (v(d, 4), v(L16), s(S_WS, 4), s(so), off), tag=tag)
    S_MB = 60
    k('v_add_u32 %s, %s, %s' % (v(PFA), s(S_PF), v(L16)))
    k('v_mov_b32 %s, %s' % (v(MEMO), v(LW2)))
    k('v_mov_b32 %s, %s' % (v(MEMA), v(L16)))
    dma = lambda so, off, fl='sc1': k('buffer_load_dwordx4 %s, %s, %s offen offset:%d %s lds' % (v(L16), s(S_WS, 4), s(so), off, fl))
    def prefetch(su, mb):
        T = []
        def grp(pre, n, fl='sc1'):
            for i in range(n):
                def f(i=i):
                    if i == 0: k(pre)
                    k('buffer_load_dwordx4 %s, %s, s6 offen offset:%d %s lds' % (v(L16), s(S_WS, 4), 1024 * i, fl))
                T.append(f)
        d = dict(su=s(su), h=s(S_H), w=s(S_W), pf=s(S_PF), mb=s(mb), QX=QX, BX=BX + 3072, OB=OB, MX=MEMX)
        grp('s_lshr_b32 s4, %(su)s, 1\ns_lshl_b32 s5, s4, 5\ns_add_u32 s5, s5, %(h)s\ns_lshl_b32 s7, s5, 2\ns_add_u32 s7, s7, %(w)s\ns_lshl_b32 s6, s7, 12\ns_mov_b32 m0, %(pf)s' % d, 4)
        grp('s_and_b32 s6, %(su)s, 1\ns_lshl1_add_u32 s6, s7, s6\ns_lshl_b32 s6, s6, 10\ns_add_u32 s6, s6, 0x%(QX)x\ns_add_u32 m0, %(pf)s, 4096' % d, 1)
        grp('s_lshl_b32 s6, s5, 12\ns_add_u32 s6, s6, 0x%(BX)x\ns_add_u32 m0, %(pf)s, 5120' % d, 1)
        grp('s_lshl_b32 s6, %(su)s, 2\ns_add_u32 s6, s6, %(w)s\ns_lshl_b32 s6, s6, 12\ns_add_u32 s6, s6, 0x%(OB)x\ns_add_u32 m0, %(pf)s, 6144' % d, 4)
        grp('s_lshl_b32 s6, s4, 13\ns_lshl_b32 s7, %(w)s, 11\ns_add_u32 s6, s6, s7\ns_add_u32 s6, s6, 0x%(MX)x\ns_add_u32 m0, s7, %(mb)s' % d, 2)
        return T
    PFG = LW2
    k('v_add_u32 %s, 0x10000, %s' % (v(PFG), v(L16)))
    S_PD = 62
    k('s_mov_b32 %s, 49152' % s(S_PD))
    k('s_mov_b32 s61, %s' % s(S_PBR))
    k('s_mov_b32 %s, 0' % s(S_MB))
    for f in prefetch(S_U, S_MB): f()
    RA = ACC + 16; RR = AKV; S_RT, S_RO, S_RR = 58, 59, 61
    def reduce(name, issued=False):
        k('v_mov_b64 %s, 0' % v(RA, 2)); k('v_mov_b64 %s, 0' % v(RA + 2, 2))
        k('s_mov_b32 %s, %d' % (s(S_SPIN), SPIN_MAX))
        if issued: k('s_branch L_pb_w' + name)
        k('s_mov_b64 vcc, -1')
        k.label('L_pb_r' + name)
        k('s_mov_b64 exec, vcc')
        for i in range(4): ld(RR + 4 * i, S_RR, i * 1024, None)
        k('s_sub_u32 %s, %s, 1' % (s(S_SPIN), s(S_SPIN)))
        k('s_cbranch_scc1 %s' % FAIL)
        k.label('L_pb_w' + name)
        k('s_waitcnt vmcnt(0)')
        for i in range(4): k('v_bitop3_b32 %s, %s, %s, %s bitop3:0x7e' % (v(RA + 4 + i), v(RR + 4 * i), v(RR + 4 * i + 2), s(S_RT)))
        k('v_or3_b32 %s, %s, %s, %s' % (v(RA + 4), v(RA + 4), v(RA + 5), v(RA + 6)))
        k('v_bitop3_b32 %s, %s, %s, 1 bitop3:0xa8' % (v(RA + 4), v(RA + 4), v(RA + 7)))
        k('v_cmp_ne_u32 vcc, 0, %s' % v(RA + 4))
        k('s_cbranch_vccnz L_pb_r' + name)
        k('s_mov_b64 exec, -1')
        for i in range(2): k('v_smfmac_f32_16x16x64_bf16 %s, %s, %s, %s' % (v(RA, 4), v(SELR, 4), v(RR + 8 * i, 8), v(IDXR)))
        for j in range(2): k('v_add_f32_dpp %s, %s, %s row_ror:8 row_mask:0xf bank_mask:0xf' % (v(RA + j), v(RA + j), v(RA + j)))
        round_bf16(k, [RA, RA + 1], TT)
        for j in range(2): k('v_mul_f32 %s, %s, %s' % (v(RA + j), v(RA + j), v(BV + 2)))
        round_bf16(k, [RA, RA + 1], TT)
        for j in range(2): add(RA + j, RA + j, BV + j)
        cvt(k, RA, RA, RA + 1)
        k('buffer_store_dword %s, %s, %s, %s offen' % (v(RA), v(OA), s(S_OUT, 4), s(S_RO)))
    npt = [0]
    def PT():
        if opt.get('pbprof'):
            i = npt[0]; npt[0] += 1
            k.raw('  s_memtime s[64:65]\n  s_waitcnt lgkmcnt(0)\n  s_sub_u32 s67, s64, s66\n  s_add_u32 s%d, s%d, s67\n  s_mov_b32 s66, s64' % (70 + i, 70 + i))
    if opt.get('pbprof'):
        for i in range(12): k('s_mov_b32 s%d, 0' % (70 + i))
        k.raw('  s_memtime s[64:65]\n  s_waitcnt lgkmcnt(0)\n  s_mov_b32 s66, s64')
    k('s_waitcnt vmcnt(0) lgkmcnt(0)')
    LOOP = 'L_pb_loop'
    k.label(LOOP)
    k('s_waitcnt vmcnt(%d)' % 8)
    k('s_barrier')
    k.vm = []; k.lg = []
    OBF = ACC
    QA = MEMF
    for w_ in range(4): k('ds_read_b128 %s, %s offset:%d' % (v(QA + 4 * w_, 4), v(PFG), w_ * 12288 + 4096), tag=('qa', w_))
    def KR(w_):
        for kt in range(2): k('ds_read_b128 %s, %s offset:%d' % (v(MEMF + 16 + 8 * (w_ & 1) + 4 * kt, 4), v(PFG), w_ * 12288 + 1024 * kt), tag=('ka', w_))
    KR(0); KR(1)
    k('s_lshr_b32 %s, %s, 1' % (s(S_SEG), s(S_U)))
    k('s_and_b32 %s, %s, 1' % (s(S_T), s(S_U)))
    k('s_bfe_u32 %s, %s, 0x10001' % (s(S_TG), s(S_I)))
    for w_ in range(4):
        k.wait_lg(('ka', w_))
        for kt in range(2): k(mfma32(SX + 4 * kt, v(MEMF + 16 + 8 * (w_ & 1) + 4 * kt, 4), v(QA + 4 * w_, 4), w_ == 0))
        if w_ < 2: KR(w_ + 2)
        else:
            for i in range(2): k('ds_read_b128 %s, %s offset:%d' % (v(OBF + 8 * (w_ - 2) + 4 * i, 4), v(PFA), 6144 + 2048 * (w_ - 2) + 1024 * i), tag=('ob', w_ - 2))
    k('ds_read_b128 %s, %s offset:4096' % (v(QF, 4), v(PFA)))
    for i in range(2): k('ds_read_b128 %s, %s offset:%d' % (v(VF + 4 * i, 4), v(PFA), 2048 + 1024 * i))
    for i in range(4):
        k.wait_lg(('ob', i >> 1))
        k(mfma32(T8, v(WBF + 4 * i, 4), v(OBF + 4 * i, 4), i == 0))
        ld(RR + 4 * i, S_RR, i * 1024, None)
    rnd2([SX + i for i in range(8)])
    k('ds_write_b128 %s, %s' % (v(L8), v(T8, 4)))
    LT1 = k.newlabel('L_pb_t1'); LTJ = k.newlabel('L_pb_tj')
    k('s_cmp_eq_u32 %s, 1' % s(S_T))
    k('s_cbranch_scc1 %s' % LT1)
    for jj in range(4):
        k('v_cndmask_b32 %s, %s, %s, %s' % (v(SX + jj), v(NEG), v(SX + jj), s(S_M + 2 * jj, 2)))
        k('v_mov_b32 %s, %s' % (v(SX + 4 + jj), v(NEG)))
    k('s_branch %s' % LTJ)
    k.label(LT1)
    for jj in range(4):
        k('v_cndmask_b32 %s, %s, %s, %s' % (v(SX + 4 + jj), v(NEG), v(SX + 4 + jj), s(S_M + 2 * jj, 2)))
    k.label(LTJ)
    PL = 'L_pb_poll'
    def memchk():
        k('ds_read_b128 %s, %s' % (v(MEMF, 4), v(MEMO)))
        k('ds_read_b128 %s, %s offset:1024' % (v(MEMF + 4, 4), v(MEMO)))
        k('s_waitcnt lgkmcnt(0)')
        k('v_max3_u32 %s, %s, %s, %s' % (v(TT), v(MEMF), v(MEMF + 1), v(MEMF + 2)))
        k('v_max3_u32 %s, %s, %s, %s' % (v(MX), v(MEMF + 3), v(MEMF + 4), v(MEMF + 5)))
        k('v_max3_u32 %s, %s, %s, %s' % (v(TT), v(TT), v(MEMF + 6), v(MEMF + 7)))
        k('v_max_u32 %s, %s, %s' % (v(TT), v(TT), v(MX)))
        k('v_cmp_eq_u32 vcc, -1, %s' % v(TT))
    PT()
    k('s_cmp_eq_u32 %s, 0' % s(S_I))
    k('s_waitcnt vmcnt(0)')
    k('s_cbranch_scc1 L_pb_nored')
    reduce('a', True)
    k.label('L_pb_nored')
    k('s_lshl_b32 %s, %s, 2' % (s(S_T0), s(S_T)))
    k('v_add_u32 %s, %s, %s' % (v(TT), s(S_T0), v(GRA)))
    k('ds_read_b32 %s, %s offset:5120' % (v(BV + 2), v(TT)))
    k('ds_read_b32 %s, %s offset:5128' % (v(BV + 3), v(TT)))
    for i in range(0, 16, 2): k('v_mov_b64 %s, 0' % v(AKV + i, 2))
    k('s_add_u32 %s, %s, 7' % (s(S_OO), s(S_U)))
    k('s_min_u32 %s, %s, 127' % (s(S_OO), s(S_OO)))
    k('s_xor_b32 %s, %s, 24576' % (s(S_RT), s(S_MB)))
    k('s_add_u32 %s, %s, %s' % (s(S_PF), s(S_PF), s(S_PD)))
    if not opt.get('pfs', 0):
        k('s_cmp_ge_u32 %s, 121' % s(S_U))
        k('s_cbranch_scc1 L_pb_nopf')
        for f in prefetch(S_OO, S_RT): f()
        k.label('L_pb_nopf')
    for r in (PFA, PFG, GRA): k('v_add_u32 %s, %s, %s' % (v(r), s(S_PD), v(r)))
    k('s_sub_u32 %s, 0, %s' % (s(S_PD), s(S_PD)))
    PT()
    memchk()
    k('s_cbranch_vccz %s_ok' % PL)
    k('s_lshl_b32 %s, %s, 13' % (s(S_T0), s(S_SEG)))
    k('s_lshl_b32 %s, %s, 11' % (s(S_T1), s(S_W)))
    k('s_add_u32 m0, %s, %s' % (s(S_T1), s(S_MB)))
    k('s_add_u32 %s, %s, %s' % (s(S_T0), s(S_T0), s(S_T1)))
    k('s_add_u32 %s, %s, 0x%x' % (s(S_T0), s(S_T0), MEMX))
    k('s_mov_b32 %s, %d' % (s(S_SPIN), SPIN_MAX))
    k('s_sub_u32 %s, %s, 8192' % (s(S_T1), s(S_T0)))
    k('s_cmp_eq_u32 %s, 0' % s(S_SEG))
    k('s_cselect_b32 %s, %s, %s' % (s(S_T1), s(S_T0), s(S_T1)))
    k('s_mov_b32 %s, 0' % s(S_T3))
    k('s_mov_b64 exec, 1')
    k.label(PL)
    k('buffer_load_dword %s, %s, %s, %s offen sc1' % (v(TT), v(L16), s(S_WS, 4), s(S_T1)))
    k('s_sub_u32 %s, %s, 1' % (s(S_SPIN), s(S_SPIN)))
    k('s_cbranch_scc1 %s' % FAIL)
    k('s_waitcnt vmcnt(0)')
    k('v_cmp_eq_u32 vcc, -1, %s' % v(TT))
    k('s_cbranch_vccz %s_a' % PL)
    k('s_mov_b32 %s, 1' % s(S_T3))
    k('s_sleep %d' % opt.get('pbsleep', 6))
    k('s_branch %s' % PL)
    k.label(PL + '_a')
    k('s_mov_b64 exec, -1')
    k('s_cmp_eq_u32 %s, 0' % s(S_T3))
    k('s_cbranch_scc1 %s_b' % PL)
    k('s_sleep %d' % opt.get('pbsleep2', 12))
    k.label(PL + '_b')
    dma(S_T0, 0); dma(S_T0, 1024)
    k('s_sub_u32 %s, %s, 1' % (s(S_SPIN), s(S_SPIN)))
    k('s_cbranch_scc1 %s' % FAIL)
    if opt.get('pbd', 0): k('s_waitcnt vmcnt(%d)' % (2 * (opt.get('pbd', 0) - 1))); k('s_sleep %d' % opt.get('pbs3', 3))
    else: k('s_waitcnt vmcnt(0)')
    memchk()
    k('s_cbranch_vccnz %s_b' % PL)
    k.label(PL + '_ok')
    k('s_barrier')
    PT()
    k.lg = []
    def MR(ks): k('ds_read_b128 %s, %s offset:%d' % (v(MEMF + 4 * ks, 4), v(MEMA), 1024 * ks), tag=('mf', ks))
    def SMF(m, ks, t): k('v_smfmac_f32_16x16x64_bf16 %s, %s, %s, %s' % (v(AKV + 8 * m + 4 * t, 4), v(MEMF + 4 * ks, 4), a(wkv(m, ks, t), 8), v(IDX)))
    pq = prefetch(S_OO, S_RT) if opt.get('pfs', 0) else []
    cnt = [0]
    def PQ():
        cnt[0] += 1
        if pq and cnt[0] % opt.get('pqm', 4) == 0: pq.pop(0)()
    MR(0); MR(1); MR(2)
    for ks in range(8):
        k.wait_lg(('mf', ks))
        SMF(0, ks, 0)
        if ks + 3 < 8: MR(ks + 3)
        elif ks < 7:
            for i in range(2): k('ds_read_b64 %s, %s offset:%d' % (v(ACC + 4 * (ks - 5) + 2 * i, 2), v(BRA), 1024 * (2 * (ks - 5) + i)), tag='br')
        SMF(0, ks, 1)
        PQ(); PQ()
    vq = [(ks, t) for ks in range(8) for t in range(2)]
    hq = list(range(8))
    def V(n=1):
        for _ in range(n):
            ks, t = vq.pop(0); SMF(1, ks, t)
            if t == 1:
                k('ds_read_b128 %s, %s offset:%d' % (v(MEMF + 4 * ks, 4), v(HOME), L_HOME + 1024 * ks), tag=('wh', ks))
            else:
                PQ(); PQ()
    V(2)
    for i in range(4): cvt(k, ACC + 16 + i, AKV + 2 * i, AKV + 2 * i + 1)
    V(1)
    mf16(AKV, ACC + 16, SELT); mf16(AKV + 4, ACC + 18, SELT)
    V(2)
    for i in range(4): cvt(k, ACC + 16 + i, AKV + 2 * i, AKV + 2 * i + 1)
    V(1)
    k(mfma32(AKV, v(ACC + 16, 4), v(QF, 4), True))
    V(3)
    k('ds_write_b128 %s, %s offset:%d' % (v(LW1), v(AKV, 4), L_SMX), tag='sw')
    k.wait_lg('br')
    bq = [lambda j=j: add(ACC + j, ACC + j, ACC + 2 + j) for j in range(2)] + [lambda j=j: add(ACC + 4 + j, ACC + 4 + j, ACC + 6 + j) for j in range(2)] + [lambda j=j: add(BV + j, ACC + j, ACC + 4 + j) for j in range(2)]
    for i in range(7):
        V(1)
        if bq: bq.pop(0)()
    round_bf16(k, [BV, BV + 1], TT)
    for j in range(2): k('v_mul_f32 %s, %s, %s' % (v(BV + j), v(BV + j), v(BV + 3)))
    round_bf16(k, [BV, BV + 1], TT)
    k.wait_lg('sw')
    k('s_barrier')
    PT()
    k.sprinkle = [24, lambda: pq.pop(0)() if pq else None, 0, 4]
    VM = KF
    SR = [AKV, AKV + 4, KF + 4, T8]
    for w_ in range(4): k('ds_read_b128 %s, %s offset:%d' % (v(SR[w_], 4), v(L16), L_SMX + 1024 * w_), tag=('sr', w_))
    for i in range(4): cvt(k, VM + i, AKV + 8 + 2 * i, AKV + 8 + 2 * i + 1)
    k.wait_lg(('sr', 1))
    for j in range(4): add(AKV + j, AKV + j, AKV + 4 + j)
    k.wait_lg(('sr', 3))
    for j in range(4): add(T8 + j, T8 + j, KF + 4 + j)
    for j in range(4): add(AKV + j, AKV + j, T8 + j)
    mr = [AKV + j for j in range(4)]; xr = [SX + j for j in range(8)]
    rnd2(mr)
    k('s_mov_b32 %s, 0x%x' % (s(S_T3), f2u(math.log2(math.e))))
    regs = xr + mr
    k('v_max3_f32 %s, %s, %s, %s' % (v(MX), v(regs[0]), v(regs[1]), v(regs[2])))
    for i in range(3, len(regs) - 1, 2): k('v_max3_f32 %s, %s, %s, %s' % (v(MX), v(MX), v(regs[i]), v(regs[i + 1])))
    k('v_max_f32 %s, %s, %s' % (v(MX), v(MX), v(regs[-1])))
    xreduce(k, 'v_max_f32', MX, TT)
    k('v_mul_f32 %s, %s, %s' % (v(MX), s(S_T3), v(MX)))
    for r in regs: k('v_fma_f32 %s, %s, %s, -%s' % (v(r), v(r), s(S_T3), v(MX)))
    for r in regs: k('v_exp_f32 %s, %s' % (v(r), v(r)))
    add(LS, mr[0], mr[1]); add(LS + 1, mr[2], mr[3]); add(LS, LS, LS + 1)
    add(LS + 1, xr[0], xr[1])
    k('v_fma_f32 %s, %s, 0.5, %s' % (v(LS), v(LS), v(xr[2])))
    for i, r in enumerate(xr[3:]): add(LS + (i & 1), LS + (i & 1), r)
    add(LS, LS, LS + 1)
    xreduce(k, 'v_add_f32', LS, TT)
    k('v_rcp_f32 %s, %s' % (v(LS), v(LS)))
    for r in regs: k('v_mul_f32 %s, %s, %s' % (v(r), v(r), v(LS)))
    k.sprinkle = None
    assert not pq
    PX, PM, O = T8, ACC + 16, AKV + 8
    for i in range(4): cvt(k, PX + i, xr[2 * i], xr[2 * i + 1])
    cvt(k, PM, mr[0], mr[1]); cvt(k, PM + 1, mr[2], mr[3])
    for t in range(2): k(mfma32(O + 4 * t, v(VF + 4 * t, 4), v(PX, 4), True))
    for t in range(2): mf16(O + 4 * t, VM + 2 * t, PM, O + 4 * t)
    for i in range(4): cvt(k, T8 + i, O + 2 * i, O + 2 * i + 1)
    k('ds_write_b128 %s, %s offset:%d' % (v(LW1), v(T8, 4), L_OX))
    k('s_waitcnt lgkmcnt(0)')
    k('s_barrier')
    PT()
    OF = AKV
    for kk in range(4): k('ds_read_b128 %s, %s offset:%d' % (v(OF + 4 * kk, 4), v(L16), L_OX + 1024 * kk), tag=('of', kk))
    k('s_mov_b32 %s, %s' % (s(S_T0), s(S_PBW)))
    def pack(dt):
        r = ACC + 4 * dt
        cvt(k, r, r, r + 1); cvt(k, r + 1, r + 2, r + 3)
        k('v_bfi_b32 %s, 1, %s, %s' % (v(r), s(S_TG), v(r)))
    def st(dt):
        k('buffer_store_dwordx2 %s, %s, %s, %s offen' % (v(ACC + 4 * dt, 2), v(ST), s(S_WS, 4), s(S_T0)))
        k('s_add_u32 %s, %s, 0x4000' % (s(S_T0), s(S_T0)))
    for dt in range(8):
        for kk in range(4):
            if dt == 0: k.wait_lg(('of', kk))
            k(mfma32(ACC + 4 * dt, v(wof(dt, kk), 4), v(OF + 4 * kk, 4), kk == 0))
            if kk == 0 and pq: pq.pop(0)()
            if kk == 2 and dt > 0: pack(dt - 1)
            if kk == 3 and dt > 0: st(dt - 1)
    assert not pq
    k('s_mov_b32 %s, %s' % (s(S_RT), s(S_TG)))
    k('s_mov_b32 %s, %s' % (s(S_RR), s(S_PBR)))
    k('s_lshl_b32 %s, %s, 14' % (s(S_RO), s(S_U)))
    k('s_add_u32 %s, %s, 1' % (s(S_I), s(S_I)))
    k('s_xor_b32 %s, %s, 24576' % (s(S_MB), s(S_MB)))
    k('v_xor_b32 %s, 24576, %s' % (v(MEMO), v(MEMO)))
    k('v_xor_b32 %s, 24576, %s' % (v(MEMA), v(MEMA)))
    pack(7); st(7)
    k('s_xor_b32 %s, %s, 0x80000' % (s(S_PBW), s(S_PBW)))
    k('s_xor_b32 %s, %s, 0x80000' % (s(S_PBR), s(S_PBR)))
    k('s_add_u32 %s, %s, 7' % (s(S_U), s(S_U)))
    PT()
    k('s_cmp_lt_u32 %s, 128' % s(S_U))
    k('s_cbranch_scc1 %s' % LOOP)
    for i in range(opt.get('pbw', 3)): k('s_nop 15')
    reduce('b')
    if opt.get('pbprof'):
        for i in range(8): k('v_mov_b32 v%d, s%d' % (16 + i, 70 + i))
        k('s_lshl_b32 s55, s50, 5\ns_add_u32 s55, s55, s40\ns_lshl_b32 s55, s55, 2\ns_add_u32 s55, s55, s41\ns_lshl_b32 s55, s55, 5\ns_add_u32 s55, s55, 0x%x' % (DBG + 0x180000))
        k('v_mov_b32 v6, 0')
        k('buffer_store_dwordx4 v[16:19], v6, s[8:11], s55 offen')
        k('buffer_store_dwordx4 v[20:23], v6, s[8:11], s55 offen offset:16')
```

```python
import sys, json
sys.path.insert(0, 'gen')
from fw import *
from layout import *
import chain as C
import worker as W
NAME = 'gated_mix__memory_aug_recurrent_mem_tr__sliding_block__prompt_kernel'
HEAD = open('gated_mix__memory_aug_recurrent_mem_tr__sliding_block__prompt.s.ref').read().split('; Override')[0]
D_READY = 64

def gen(opt={}):
    C.JS = opt.get('js', 10240)
    roles = opt.get('roles', ['chain', 'pj', 'ba', 'pb'])
    full = len(roles) == 4
    k = K()
    k.raw(HEAD.rstrip())
    k.raw('; @launch grid=(256,1,1) block=(256,1,1) lds=163840')
    k.raw('.amdgcn_target "amdgcn-amd-amdhsa--gfx950"\n.text\n.globl %s\n.p2align 8\n.type %s,@function\n%s:' % (NAME, NAME, NAME))
    k('s_load_dwordx16 s[64:79], s[0:1], 0')
    k('s_load_dwordx8 s[80:87], s[0:1], 64')
    k('s_load_dwordx4 s[88:91], s[0:1], 96')
    if opt.get('prof'):
        k('s_memtime s[100:101]')
        k('s_memrealtime s[2:3]')
    if opt.get('cpf', 0):
        k('s_getpc_b64 s[4:5]')
        k.label('L_pc')
        k('v_lshlrev_b32 v10, 6, v0')
        k('v_mov_b32 v13, s5')
        for j in range(3):
            k('v_add_u32 v11, 0x%x, v10' % (j * 16384))
            k('v_min_u32 v11, L_end-L_pc, v11')
            k('v_add_co_u32 v12, vcc, s4, v11')
            k('v_addc_co_u32 v15, vcc, 0, v13, vcc')
            k('v_mov_b32 v14, v12')
            k('global_load_dword v%d, v[14:15], off' % (20 + j))
    k('s_getreg_b32 %s, hwreg(HW_REG_XCC_ID)' % s(W.S_GRP))
    k('s_and_b32 %s, %s, 7' % (s(W.S_GRP), s(W.S_GRP)))
    k('s_waitcnt lgkmcnt(0)')
    C.srd(k, C.S_WS, W.P_WS, WS_BYTES); C.srd(k, C.S_DBG, W.P_DBG, 256)
    k('''
  s_lshl_b32 s55, s50, 2
  v_mov_b32 v1, 0
  v_mov_b32 v2, 1
  v_cmp_eq_u32 vcc, 0, v0
  s_and_saveexec_b64 s[4:5], vcc
  s_cbranch_execz L_t1
  buffer_atomic_add v2, v1, s[32:35], s55 offen sc0 sc1
  s_waitcnt vmcnt(0)
  ds_write_b32 v1, v2
  s_waitcnt lgkmcnt(0)
L_t1:
  s_mov_b64 exec, s[4:5]
  s_barrier
  ds_read_b32 v2, v1
  v_lshrrev_b32 v3, 6, v0
  s_waitcnt lgkmcnt(0)
  v_readfirstlane_b32 s51, v2
  v_readfirstlane_b32 s41, v3
  v_and_b32 v0, 63, v0
  s_barrier
  s_cmp_ge_u32 s51, 32
  s_cbranch_scc1 L_end
''')
    TK, GRP = W.S_TK, W.S_GRP
    if opt.get('prof'):
        k('s_memtime s[98:99]')
        k('s_waitcnt lgkmcnt(0)')
    def ready_add(ra=6, rb=7, sync=True):
        if sync:
            k('s_waitcnt vmcnt(0)')
            k('s_barrier')
        L = k.newlabel('L_ra')
        k('s_cmp_lg_u32 %s, 0' % s(C.S_W))
        k('s_cbranch_scc1 %s' % L)
        k('v_mov_b32 v%d, %d' % (ra, D_READY))
        k('v_mov_b32 v%d, 1' % rb)
        k('s_mov_b64 exec, 1')
        k('buffer_atomic_add v%d, v%d, s[32:35], 0 offen sc1' % (rb, ra))
        k('s_mov_b64 exec, -1')
        k.label(L)
    k('v_lshlrev_b32 v1, 4, v0')
    for i in range(4): k('v_mov_b32 v%d, -1' % (8 + i))
    if opt.get('spread'):
        k('s_cmp_ge_u32 s2, 32')
        k('s_cbranch_scc1 L_spw')
        k('s_mov_b32 %s, s2' % s(TK))
    else:
        k('s_cmp_lg_u32 %s, 0' % s(GRP))
        k('s_cbranch_scc1 L_worker')
    if 'chain' in roles:
        k('s_mov_b32 %s, %s' % (s(C.S_H), s(TK)))
        C.srd(k, C.S_WQ, W.P_WQ, 4 << 20); C.srd(k, C.S_WK, W.P_WK, 4 << 20); C.srd(k, C.S_WV, W.P_WV, 4 << 20); C.srd(k, C.S_WO, W.P_WO, 4 << 20)
        C.srd(k, C.S_M0, W.P_MEM0, 8192)
        def hook_loading():
            k('v_lshlrev_b32 v24, 4, v0')
            for i in range(4): k('v_mov_b32 v%d, -1' % (28 + i))
            k('s_mul_i32 s55, s40, %d' % C.JS)
            k('s_lshl_b32 s56, s41, 11')
            k('s_add_u32 s55, s55, s56')
            k('s_add_u32 s55, s55, 0x%x' % INB)
            for i in range(2):
                k('buffer_store_dwordx4 v[28:31], v24, s[8:11], s55 offen offset:%d' % (1024 * i), tag='init')
            k('s_lshl_b32 s55, s40, 10')
            k('s_add_u32 s55, s55, 0x%x' % H2)
            k('buffer_store_dwordx4 v[28:31], v24, s[8:11], s55 offen', tag='init')
            k('s_nop 1')
        if opt.get('tlb', 0):
            k('v_lshlrev_b32 v24, 16, v0')
            for j, sr in enumerate((C.S_WV, C.S_WK, C.S_WQ)):
                k('buffer_load_dword v%d, v24, %s, 0 offen' % (25 + j, s(sr, 4)))
            if opt.get('tlb', 0) > 1:
                k('v_lshlrev_b32 v24, 19, v0')
                k('buffer_load_dword v25, v24, %s, 0 offen sc1' % s(C.S_WS, 4))
        hook_loading()
        def hook_loading2():
            k.wait_vm('init')
            k('s_barrier')
            n = len(k.vm)
            ready_add(58, 59, sync=False)
            k.vm = k.vm[:n]
        k.hook_loading = hook_loading2
        nready = 256
        S_RDY = 63
        S_FKV = 62
        def fl_load(B, A, tag=None):
            k('s_mov_b64 exec, 15')
            k('buffer_load_dword %s, %s, %s, %s offen sc1' % (v(B), v(A), s(C.S_WS, 4), s(S_FKV)), tag=tag)
            k('s_mov_b64 exec, -1')
        def wait_kv(first, B=C.X3, A=C.L16, part=None):
            if not full: return
            L = k.newlabel('L_kv')
            def chk():
                k('v_cmp_ge_u32 vcc, %s, %s' % (s(C.S_T0), v(B)))
                k('s_and_b32 %s, vcc_lo, 15' % s(C.S_T1))
            if part in (None, 0):
                k('s_add_u32 %s, %s, %d' % (s(C.S_T0), s(C.S_STEP), 0 if first else 1))
                k('v_cmp_ge_u32 vcc, %s, %s' % (s(C.S_T0), v(B)))
                if part == 0: return
            if part == 2:
                fl_load(B, A); return
            k('s_and_b32 %s, vcc_lo, 15' % s(C.S_T1))
            k('s_cbranch_scc1 %s_slow' % L)
            k.label(L + '_ret')
            def slow():
                k.label(L + '_slow')
                k('s_mov_b32 %s, %d' % (s(C.S_SPIN), C.SPIN_MAX))
                k.label(L + '_p')
                fl_load(B, A)
                k('s_sub_u32 %s, %s, 1' % (s(C.S_SPIN), s(C.S_SPIN)))
                k('s_cbranch_scc1 L_fail')
                k('s_waitcnt vmcnt(0)')
                chk()
                k('s_cbranch_scc0 %s_ret' % L)
                k('s_sleep 2')
                k('s_branch %s_p' % L)
            k.deferred.append(slow)
        k.deferred = []
        def h4():
            n = len(k.vm)
            ready_add(58, 59, sync=False)
            k.vm = k.vm[:n]
        def h7():
            k('v_mov_b32 v58, %d' % D_READY)
            k('buffer_load_dword v58, v58, %s, 0 offen sc1' % s(C.S_DBG, 4), tag='rdy')
        def h12():
            L = k.newlabel('L_rdy')
            k.wait_vm('rdy')
            k('v_cmp_gt_u32 vcc, %d, v58' % nready)
            k('s_cbranch_vccnz %s' % L)
            k.label(L + '_ret')
            def slow():
                k.label(L)
                k('s_mov_b32 %s, %d' % (s(C.S_SPIN), C.SPIN_MAX))
                k.label(L + '_p')
                k('v_mov_b32 v58, %d' % D_READY)
                k('buffer_load_dword v58, v58, %s, 0 offen sc1' % s(C.S_DBG, 4))
                k('s_sub_u32 %s, %s, 1' % (s(C.S_SPIN), s(C.S_SPIN)))
                k('s_cbranch_scc1 L_fail')
                k('s_waitcnt vmcnt(0)')
                k('v_cmp_gt_u32 vcc, %d, v58' % nready)
                k('s_cbranch_vccnz %s_p' % L)
                k('s_branch %s_ret' % L)
            k.deferred.append(slow)
            k('s_lshl_b32 %s, %s, 2' % (s(S_FKV), s(C.S_H)))
            k('s_add_u32 %s, %s, %s' % (s(S_FKV), s(S_FKV), s(C.S_W)))
            k('s_lshl_b32 %s, %s, 7' % (s(S_FKV), s(S_FKV)))
            k('s_add_u32 %s, %s, 0x%x' % (s(S_FKV), s(S_FKV), F_KV))
            k('v_lshlrev_b32 v54, 4, v0')
            fl_load(55, 54, 'fkv')
        def h13():
            k.wait_vm('fkv')
            wait_kv(True, 55, 54)
        k.load_hooks = {opt.get('hk0', 14): h7, opt.get('hk', 22): h12, 28: h13}
        k.hook_prefetch = lambda part: wait_kv(False, part=part)
        C.chain(k, prof=opt.get('prof'), dump=opt.get('dump'), opt=opt)
        if opt.get('prof'):
            T = C.S_TS
            k.raw('  s_memtime %s' % s(T + 26, 2))
            k.raw('  s_memrealtime s[4:5]')
            k.raw('  s_waitcnt lgkmcnt(0)')
            k('s_mov_b32 %s, s4' % s(T + 17))
            k('s_sub_u32 %s, %s, %s' % (s(T + 21), s(T + 26), s(T + 24)))
            k('s_mov_b32 %s, %s' % (s(T + 20), s(T + 22)))
            k('s_sub_u32 %s, %s, s100' % (s(T + 19), s(T + 28)))
            k('s_sub_u32 %s, s98, s100' % s(T + 18))
            k('s_sub_u32 %s, %s, s100' % (s(T + 22), s(T + 24)))
            for i in range(8): k('v_mov_b32 %s, %s' % (v(i), s(T + 16 + i)))
            k('s_lshl_b32 s55, s40, 2')
            k('s_add_u32 s55, s55, s41')
            k('s_lshl_b32 s55, s55, 5')
            k('s_add_u32 s55, s55, 0x%x' % (DBG + 0x100000))
            k('v_mov_b32 v8, 0')
            k('buffer_store_dwordx4 v[0:3], v8, s[8:11], s55 offen')
            k('buffer_store_dwordx4 v[4:7], v8, s[8:11], s55 offen offset:16')
            if opt.get('ddbg'):
                k('s_mov_b64 exec, 1')
                for i, r in enumerate((2, 3, 6, 5)):
                    k('buffer_atomic_umax v%d, v8, s[32:35], 0 offen offset:%d sc1' % (r, 32 + 4 * i))
                k('s_memrealtime s[4:5]')
                k('s_waitcnt lgkmcnt(0)')
                k('s_sub_u32 s4, s4, s2')
                k('v_mov_b32 v9, s4')
                k('buffer_atomic_umax v9, v8, s[32:35], 0 offen offset:48 sc1')
                k('s_mov_b64 exec, -1')
        k('s_branch L_end')
        for f in k.deferred: f()
    else:
        k('s_branch L_end')
    k.label('L_spw')
    k('s_max_u32 %s, %s, 1' % (s(GRP), s(GRP)))
    k.label('L_worker')
    k.hist = []
    def stampw(i):
        if opt.get('prof'):
            k('s_memtime s[4:5]')
            k('s_waitcnt lgkmcnt(0)')
            k('s_sub_u32 s4, s4, s100')
            k('v_mov_b32 v7, s4')
            k('s_lshl_b32 s55, s50, 5')
            k('s_add_u32 s55, s55, s51')
            k('s_lshl_b32 s55, s55, 2')
            k('s_add_u32 s55, s55, s41')
            k('s_lshl_b32 s55, s55, 5')
            k('s_add_u32 s55, s55, 0x%x' % (DBG + 0x110000 + 4 * i))
            k('v_mov_b32 v6, 0')
            k('buffer_store_dword v7, v6, s[8:11], s55 offen')
    k('s_sub_u32 s55, %s, 1' % s(GRP))
    k('s_lshl_b32 s55, s55, 5')
    k('s_add_u32 s55, s55, %s' % s(TK))
    k('s_mul_i32 %s, s55, 9363' % s(C.S_H))
    k('s_lshr_b32 %s, %s, 16' % (s(C.S_H), s(C.S_H)))
    k('s_mul_i32 s56, %s, 7' % s(C.S_H))
    k('s_sub_u32 %s, s55, s56' % s(W.S_R))
    k('s_cmp_eq_u32 %s, 0' % s(W.S_R))
    k('s_cselect_b32 %s, 10, 9' % s(W.S_NSEG))
    W.setup_common(k)
    def winit():
        if full:
            k('s_lshl_b32 s55, s40, 2\ns_add_u32 s55, s55, s41\ns_lshl_b32 s55, s55, 3\ns_add_u32 s55, s55, s42\ns_lshl_b32 s55, s55, 4\ns_add_u32 s55, s55, 0x%x' % F_KV)
            W.set_flag(k, 55, '0')
            k('s_lshl_b32 s55, s40, 3\ns_add_u32 s55, s55, s42\ns_lshl_b32 s55, s55, 2\ns_add_u32 s55, s55, 0x%x' % F_D3)
            W.set_flag(k, 55, '0')
        if 'pb' in roles:
            k('s_lshl_b32 s55, s50, 20\ns_lshl_b32 s56, s51, 14\ns_add_u32 s55, s55, s56\ns_lshl_b32 s56, s41, 12\ns_add_u32 s55, s55, s56\ns_add_u32 s55, s55, 0x%x' % PB)
            for sl in range(2):
                for i in range(4): k('buffer_store_dwordx4 v[8:11], v1, s[8:11], s55 offen offset:%d' % (1024 * i))
                k('s_add_u32 s55, s55, 0x80000')
        if full:
            k('s_sub_u32 s55, s50, 1\ns_lshl_b32 s55, s55, 5\ns_add_u32 s55, s55, s51\ns_lshl_b32 s55, s55, 2\ns_add_u32 s55, s55, s41\ns_and_b32 s55, s55, 511\ns_lshl_b32 s55, s55, 10\ns_add_u32 s55, s55, 0x%x' % MEMX)
            k('buffer_store_dwordx4 v[8:11], v1, s[8:11], s55 offen sc1')
    if opt.get('warm', 0) and 'pj' in roles:
        k('s_sub_u32 s55, s50, 1\ns_lshl_b32 s55, s55, 5\ns_add_u32 s55, s55, s51\ns_lshl_b32 s55, s55, 2\ns_add_u32 s55, s55, s41\ns_lshl_b32 s55, s55, 10')
        k('v_add_u32 v16, s55, v1')
        for t in range(1, 5): k('v_add_u32 v%d, 0x%x, v16' % (16 + t, 896 * 1024 * t))
        for j, P in enumerate(opt.get('worder', [W.P_WO])):
            C.srd(k, C.S_WQ + 4 * j, P, 4 << 20)
            for t in range(5):
                k('buffer_load_dwordx4 v[%d:%d], v%d, %s, 0 offen %s' % (24 + 4 * t, 27 + 4 * t, 16 + t, s(C.S_WQ + 4 * j, 4), opt.get('wfl', '')))
    stampw(0)
    k.stampw = stampw
    if 'pj' in roles:
        winit()
        def k_early():
            k('s_waitcnt vmcnt(8)')
            k('s_barrier')
            n = len(k.vm)
            ready_add(sync=False)
            k.vm = k.vm[:n]
        k.after_x0 = k_early
        after_issue = None
        def after_wload():
            if opt.get('hold'):
                k('s_cmp_lt_u32 %s, %d' % (s(W.S_R), opt.get('holdc', 4)))
                k('s_cbranch_scc1 L_nohold')
                for i in range(opt['hold']): k('s_sleep 127')
                k.label('L_nohold')
        k.after_wload = after_wload
        k.vload = full and opt.get('vload', 1)
        def wait_ready():
            k('s_mov_b32 s55, %d' % D_READY)
            k('s_mov_b32 s56, 256')
            W.poll_flags(k, 55, 1, 's56', 'rdy0', srdn=C.S_DBG)
        k.wait_ready = wait_ready
        W.proj(k, after_issue)
    else:
        winit(); ready_add()
    stampw(1)
    if full or 'pb' in roles:
        k('s_mov_b32 s55, %d' % D_READY)
        W.poll_flags(k, 55, 1, '%d' % (256 if 'chain' in roles else 224) if False else 's56', 'rdy', srdn=C.S_DBG) if False else None
        k('s_mov_b32 s56, %d' % (256 if 'chain' in roles else 224))
        W.poll_flags(k, 55, 1, 's56', 'rdy', srdn=C.S_DBG)
    pre = post = None
    k.pb_wait = full
    k.vload = full and opt.get('vload', 1)
    if 'pb' in roles: pre, post, final = W.pb_loader(k)
    if 'ba' in roles: W.battn(k, waitflags=full, pre=pre, post=post)
    elif 'pb' in roles:
        for a_, b_ in zip(pre, post):
            a_()
            for i in range(32): k.pb_dma()
            k('s_waitcnt vmcnt(0)'); b_()
    stampw(3)
    if 'pb' in roles:
        final()
        stampw(2)
        k('s_mov_b32 %s, %s' % (s(C.S_H), s(TK)))
        W.phaseB(k, waitflags=full, opt=opt)
    stampw(4)
    if opt.get('prof'):
        k('s_memrealtime s[4:5]')
        k('s_waitcnt lgkmcnt(0)')
        k('v_mov_b32 v7, s4')
        k('buffer_store_dword v7, v6, s[8:11], s55 offen offset:4')
        k('v_mov_b32 v7, s2')
        k('buffer_store_dword v7, v6, s[8:11], s55 offen offset:8')
        if opt.get('ddbg'):
            k('s_mov_b64 exec, 1')
            k('v_mov_b32 v9, s4')
            k('buffer_atomic_umax v9, v6, s[32:35], 0 offen offset:52 sc1')
            k('s_not_b32 s2, s2')
            k('v_mov_b32 v9, s2')
            k('buffer_atomic_umax v9, v6, s[32:35], 0 offen offset:56 sc1')
            k('s_mov_b64 exec, -1')
    k('s_branch L_end')
    k.label('L_fail')
    k('s_mov_b64 exec, 1')
    k('v_mov_b32 v1, 128')
    k('v_mov_b32 v2, 1')
    k('buffer_atomic_add v2, v1, s[32:35], 0 offen sc1')
    k.label('L_end')
    k('s_endpgm')
    k.raw('''.section .rodata,"a"
.p2align 6
.amdhsa_kernel %s
  .amdhsa_next_free_vgpr 512
  .amdhsa_next_free_sgpr 102
  .amdhsa_accum_offset 256
  .amdhsa_group_segment_fixed_size 0
  .amdhsa_kernarg_size 112
  .amdhsa_user_sgpr_count 2
  .amdhsa_user_sgpr_kernarg_segment_ptr 1
  .amdhsa_system_sgpr_workgroup_id_x 1
.end_amdhsa_kernel''' % NAME)
    gen.points = getattr(k, 'points', [])
    txt = k.text()
    for a_, b_ in opt.get('sub', []):
        import re
        txt = re.sub(a_, b_, txt)
    return txt

if __name__ == '__main__':
    opt = json.loads(sys.argv[2]) if len(sys.argv) > 2 else {}
    open(sys.argv[1], 'w').write(gen(opt))
```

```python
from fw import *
from layout import *
import math, struct

S_WS, S_WQ, S_WK, S_WV, S_WO, S_M0, S_DBG = 8, 12, 16, 20, 24, 28, 32
S_H, S_W, S_STEP, S_TAG = 40, 41, 42, 43
S_KV, S_KVM, S_INW0, S_INW1, S_INR0, S_DEF, S_H2W, S_H2R, S_H2RST = 44, 45, 46, 47, 48, 49, 51, 52, 53
S_SPIN, S_T0, S_T1, S_T2 = 54, 55, 56, 57
S_C = 58
S_TS = 64

MEMF, ACCQK, ACCV, KVC, KVN, T1 = 0, 32, 48, 56, 72, 88
SELR, SELT = 96, 102
X0, X1 = 100, 101
IDX, L16, L16W, MEMR, SMW, SMR, OW, OR_, ST1, ST2, STRM, IDXR = 104, 105, 106, 107, 110, 111, 112, 113, 114, 115, 116, 117
X2, X3 = 118, 119
SBUF = 120
VSTAT = 144
L_MEM, L_SX, L_SM, L_OX, L_WS = 0, 8192, 8192 + 2 * 2048 + 1024, 8192 + 1024, 16384
WSTRIDE = 36864
OOR = 0x30000
SPIN_MAX = 1 << 20

def f2u(x):
    return struct.unpack('<I', struct.pack('<f', x))[0]

def srd(k, base, ptr_lo, nbytes):
    k('s_mov_b32 %s, %s' % (s(base), s(ptr_lo)))
    k('s_and_b32 %s, %s, 0xffff' % (s(base + 1), s(ptr_lo + 1)))
    k('s_mov_b32 %s, 0x%x' % (s(base + 2), nbytes))
    k('s_mov_b32 %s, 0x00020000' % s(base + 3))

ALLOPS = [(m, kap, t) for m in 'qkv' for kap in range(8) for t in range(2)] + [('o', a_, kap) for a_ in range(4) for kap in range(4)]
STREAM = [('q', 0, 0), ('k', 0, 0), ('q', 2, 1), ('q', 6, 0), ('k', 2, 1), ('k', 6, 0), ('q', 1, 1), ('q', 3, 1), ('q', 7, 0),
          ('k', 3, 1), ('k', 7, 0), ('v', 2, 0), ('v', 3, 0), ('v', 4, 0), ('o', 2, 0), ('o', 1, 2), ('o', 2, 1), ('o', 3, 3)]
NS = len(STREAM)

def op_locs():
    loc = {}
    na = nv = 0
    for o in ALLOPS:
        if o in STREAM:
            loc[o] = ('s', STREAM.index(o))
        elif na < 32:
            loc[o] = ('a', 8 * na); na += 1
        else:
            loc[o] = ('v', VSTAT + 8 * nv); nv += 1
    assert na == 32 and nv == 14 and NS == 18
    return loc

def dst(loc, r, n):
    return (a if loc[0] == 'a' else v)(loc[1] + r, n)

JS = 10240
def consts(k, LANE, H2L=0):
    k.c('===== chain: constants =====')
    tA, tB, tC, tD = 8, 9, 10, 11
    u4, u5, u6, u7 = 12, 13, 14, 15
    k('s_lshl_b32 %s, %s, 11' % (s(S_T0), s(S_W)))
    k('v_add_u32 %s, %s, %s' % (v(L16W), s(S_T0), v(L16)))
    for p in (1, 2, 3):
        k('v_xor_b32 %s, 0x%x, %s' % (v(MEMR + p - 1), p << 11, v(L16W)))
    k('v_and_b32 %s, 15, %s' % (v(tA), v(LANE)))
    k('v_lshrrev_b32 %s, 4, %s' % (v(tB), v(LANE)))
    k('v_and_b32 %s, 7, %s' % (v(tC), v(LANE)))
    k('v_cmp_gt_u32 vcc, 8, %s' % v(tA))
    k('v_mov_b32 %s, 0xeeee' % v(IDX))
    k('v_mov_b32 %s, 0x4444' % v(tD))
    k('v_cndmask_b32 %s, %s, %s, vcc' % (v(IDX), v(IDX), v(tD)))
    k('v_mov_b32 %s, 0x%x' % (v(tD), OOR))
    k('v_lshl_add_u32 %s, %s, 3, %s' % (v(OR_), v(tB), v(tC)))
    k('v_lshlrev_b32 %s, 4, %s' % (v(OR_), v(OR_)))
    k('s_and_b32 %s, %s, 1' % (s(S_T0), s(S_W)))
    k('s_lshl_b32 %s, %s, 9' % (s(S_T0), s(S_T0)))
    k('s_lshr_b32 %s, %s, 1' % (s(S_T1), s(S_W)))
    k('s_lshl_b32 %s, %s, 11' % (s(S_T1), s(S_T1)))
    k('s_add_u32 %s, %s, %s' % (s(S_T0), s(S_T0), s(S_T1)))
    k('v_add_u32 %s, %s, %s' % (v(OW), s(S_T0), v(OR_)))
    for p in (1, 2, 3):
        k('v_xor_b32 %s, 0x%x, %s' % (v([X0, X1, X2][p - 1]), ((p & 1) << 9) | ((p >> 1) << 11), v(OW)))
    k('v_cndmask_b32 %s, %s, %s, vcc' % (v(OW), v(tD), v(OW)))
    k('v_and_b32 %s, 0xff, %s' % (v(SMR), v(OR_)))
    k('v_and_b32 %s, 8, %s' % (v(u4), v(tA)))
    k('v_add_u32 %s, %s, %s' % (v(SMR), v(u4), v(SMR)))
    k('v_add_u32 %s, %d, %s' % (v(SMR), L_SM, v(SMR)))
    k('s_lshl_b32 %s, %s, 8' % (s(S_T0), s(S_W)))
    k('v_add_u32 %s, %s, %s' % (v(SMW), s(S_T0), v(SMR)))
    k('v_cmp_gt_u32 vcc, 32, %s' % v(LANE))
    k('v_cndmask_b32 %s, %s, %s, vcc' % (v(SMW), v(tD), v(SMW)))
    k('v_lshrrev_b32 %s, 3, %s' % (v(u4), v(LANE)))
    k('v_mul_u32_u24 %s, %d, %s' % (v(ST1), JS, v(u4)))
    k('v_lshl_add_u32 %s, %s, 3, %s' % (v(ST1), v(tC), v(ST1)))
    k('v_lshlrev_b32 %s, 2, %s' % (v(ST2), v(tA)))
    k('v_lshl_add_u32 %s, %s, 4, %s' % (v(ST2), v(tB), v(ST2)))
    k('s_lshr_b32 %s, %s, 3' % (s(S_T0), s(S_H)))
    k('s_lshl_b32 %s, %s, 11' % (s(S_T0), s(S_T0)))
    for (src, bit, sh) in ((S_W, 1, 10), (S_W, 0, 9), (S_H, 2, 8), (S_H, 0, 7), (S_H, 1, 6)):
        k('s_bfe_u32 %s, %s, 0x%x' % (s(S_T1), s(src), (1 << 16) | bit))
        k('s_lshl_b32 %s, %s, %d' % (s(S_T1), s(S_T1), sh))
        k('s_add_u32 %s, %s, %s' % (s(S_T0), s(S_T0), s(S_T1)))
    k('v_add_u32 %s, %s, %s' % (v(ST2), s(S_T0), v(ST2)))
    k('v_cmp_gt_u32 vcc, 4, %s' % v(tA))
    k('v_bfrev_b32 %s, 1' % v(u4))
    k('v_cndmask_b32 %s, %s, %s, vcc' % (v(ST2), v(u4), v(ST2)))
    k('v_and_b32 %s, 1, %s' % (v(tD), v(tB)))
    k('v_lshlrev_b32 %s, 2, %s' % (v(tD), v(tD)))
    k('v_sub_u32 %s, %s, %s' % (v(tD), v(tC), v(tD)))
    k('v_mov_b32 %s, 0x3f80' % v(u4))
    k('v_mov_b32 %s, 0x3f800000' % v(u5))
    for r in range(2):
        k('v_mov_b32 %s, 0' % v(SELT + r))
        k('v_cmp_eq_u32 vcc, %d, %s' % (2 * r, v(tD)))
        k('v_cndmask_b32 %s, %s, %s, vcc' % (v(SELT + r), v(SELT + r), v(u4)))
        k('v_cmp_eq_u32 vcc, %d, %s' % (2 * r + 1, v(tD)))
        k('v_cndmask_b32 %s, %s, %s, vcc' % (v(SELT + r), v(SELT + r), v(u5)))
    k('v_and_b32 %s, 2, %s' % (v(u6), v(tA)))
    k('v_cmp_eq_u32 vcc, 0, %s' % v(u6))
    k('v_mov_b32 %s, 0' % v(u7))
    k('v_cndmask_b32 %s, %s, %s, vcc' % (v(u6), v(u7), v(u4)))
    k('v_and_b32 %s, 1, %s' % (v(u5), v(tA)))
    k('v_cmp_eq_u32 vcc, 0, %s' % v(u5))
    k('v_cndmask_b32 %s, %s, %s, vcc' % (v(SELR), v(u7), v(u6)))
    k('v_cndmask_b32 %s, %s, %s, vcc' % (v(SELR + 1), v(u6), v(u7)))
    k('v_mov_b32 %s, %s' % (v(SELR + 2), v(SELR)))
    k('v_mov_b32 %s, %s' % (v(SELR + 3), v(SELR + 1)))
    k('v_lshrrev_b32 %s, 2, %s' % (v(u6), v(tA)))
    k('v_xor_b32 %s, 1, %s' % (v(u7), v(u6)))
    k('v_lshl_add_u32 %s, %s, 2, %s' % (v(u6), v(u7), v(u6)))
    k('v_mul_u32_u24 %s, 0x1111, %s' % (v(IDXR), v(u6)))

def loader(k, LANE, LOC, after_issue=None, hooks={}):
    k.c('===== chain: weight load =====')
    GQ, GO, TRQ, TRP, TRO, LW, u, u2 = 1, 2, 3, 4, 5, 6, 7, 8
    RAW = 8
    k('s_mul_i32 %s, %s, %d' % (s(S_T2), s(S_W), WSTRIDE))
    k('s_add_u32 %s, %s, %d' % (s(S_T2), s(S_T2), L_WS))
    k('v_lshrrev_b32 %s, 3, %s' % (v(u), v(LANE)))
    k('v_and_b32 %s, 7, %s' % (v(u2), v(LANE)))
    k('v_lshlrev_b32 %s, 4, %s' % (v(u2), v(u2)))
    k('v_lshl_add_u32 %s, %s, 13, %s' % (v(GQ), v(u), v(u2)))
    k('v_lshl_add_u32 %s, %s, 10, %s' % (v(GO), v(u), v(u2)))
    k('s_lshl_b32 %s, %s, 8' % (s(S_T0), s(S_H)))
    k('s_lshr_b32 %s, %s, 1' % (s(S_T1), s(S_W)))
    k('s_lshl_b32 %s, %s, 7' % (s(S_T1), s(S_T1)))
    k('s_add_u32 %s, %s, %s' % (s(S_T0), s(S_T0), s(S_T1)))
    k('v_add_u32 %s, %s, %s' % (v(GQ), s(S_T0), v(GQ)))
    k('s_lshl_b32 %s, %s, 17' % (s(S_T0), s(S_H)))
    k('s_lshl_b32 %s, %s, 8' % (s(S_T1), s(S_W)))
    k('s_add_u32 %s, %s, %s' % (s(S_T0), s(S_T0), s(S_T1)))
    k('v_add_u32 %s, %s, %s' % (v(GO), s(S_T0), v(GO)))
    its = [('o', 0, 0), ('o', 1, 0), ('o', 0, 1), ('o', 1, 1), ('v', 5), ('v', 1), ('v', 4), ('k', 5), ('q', 5), ('v', 0), ('k', 4), ('q', 4), ('k', 1), ('k', 0), ('q', 1), ('q', 0)]
    if k.wolast:
        its = [('v', 5), ('v', 1), ('v', 4), ('k', 5), ('q', 5), ('v', 0), ('k', 4), ('q', 4), ('k', 1), ('k', 0), ('q', 1), ('q', 0), ('o', 0, 0), ('o', 0, 1), ('o', 1, 0), ('o', 1, 1)]
    GP, PD = 50, 51
    GQ1, TRQ1, TRP1 = 47 + 1, 49, 52
    k('v_bfe_u32 %s, %s, 5, 1' % (v(PD), v(LANE)))
    k('v_lshlrev_b32 %s, 5, %s' % (v(PD), v(PD)))
    k('v_xor_b32 %s, %s, %s' % (v(GQ), v(PD), v(GQ)))
    k('v_xor_b32 %s, 64, %s' % (v(GQ1), v(GQ)))
    k('v_lshlrev_b32 %s, 13, %s' % (v(GP), v(u)))
    k('v_bfe_u32 %s, %s, 1, 2' % (v(PD), v(LANE)))
    k('v_lshl_add_u32 %s, %s, 8, %s' % (v(GP), v(PD), v(GP)))
    k('v_and_b32 %s, 1, %s' % (v(PD), v(LANE)))
    k('v_lshl_add_u32 %s, %s, 6, %s' % (v(GP), v(PD), v(GP)))
    k('s_and_b32 %s, %s, 3' % (s(S_T0), s(S_H)))
    k('s_lshl_b32 %s, %s, 16' % (s(S_T0), s(S_T0)))
    k('s_lshr_b32 %s, %s, 2' % (s(S_T1), s(S_H)))
    k('s_lshl_b32 %s, %s, 10' % (s(S_T1), s(S_T1)))
    k('s_add_u32 %s, %s, %s' % (s(S_T0), s(S_T0), s(S_T1)))
    k('s_lshr_b32 %s, %s, 1' % (s(S_T1), s(S_W)))
    k('s_lshl_b32 %s, %s, 7' % (s(S_T1), s(S_T1)))
    k('s_add_u32 %s, %s, %s' % (s(S_T0), s(S_T0), s(S_T1)))
    k('v_add_u32 %s, %s, %s' % (v(GP), s(S_T0), v(GP)))
    its = [(it, hf) for it in its for hf in range(2)]
    def touch(li):
        if li >= len(its) or not k.pdist: return
        it, hf = its[li]
        if it[0] == 'o': return
        k('s_lshl_b32 %s, %s, 2' % (s(S_T0), s(S_W)))
        k('s_xor_b32 %s, %s, %d' % (s(S_T0), s(S_T0), 2 * it[1] + hf))
        k('s_lshl_b32 %s, %s, 18' % (s(S_T0), s(S_T0)))
        k('buffer_load_dword %s, %s, %s, %s offen' % (v(PD), v(GP), s({'q': S_WQ, 'k': S_WK, 'v': S_WV}[it[0]], 4), s(S_T0)))
    NI, NSL = len(its), 9
    def issue(li):
        it, hf = its[li]; slot = li % NSL
        for i in range(4):
            if it[0] == 'o':
                srdn, ga = S_WO, GO
                if i == 0:
                    k('s_xor_b32 %s, %s, %d' % (s(S_T0), s(S_W), 2 * it[2] + hf))
                    k('s_lshl_b32 %s, %s, 15' % (s(S_T0), s(S_T0)))
                    k('s_add_u32 %s, %s, %d' % (s(S_T0), s(S_T0), it[1] * 128))
                else:
                    k('s_add_u32 %s, %s, %d' % (s(S_T0), s(S_T0), 8 * 1024))
            else:
                srdn, ga = {'q': S_WQ, 'k': S_WK, 'v': S_WV}[it[0]], (GQ1 if i & 1 else GQ)
                if i == 0:
                    k('s_lshl_b32 %s, %s, 2' % (s(S_T0), s(S_W)))
                    k('s_xor_b32 %s, %s, %d' % (s(S_T0), s(S_T0), 2 * it[1] + hf))
                    k('s_lshl_b32 %s, %s, 18' % (s(S_T0), s(S_T0)))
                else:
                    k('s_add_u32 %s, %s, %d' % (s(S_T0), s(S_T0), 8 * 8192))
            k('s_add_u32 m0, %s, %d' % (s(S_T2), slot * 4096 + i * 1024))
            k('buffer_load_dwordx4 %s, %s, %s offen lds' % (v(ga), s(srdn, 4), s(S_T0)), tag=('wl', li))
    LA = k.lookahead
    for li in range(LA): issue(li)
    k('v_bfe_u32 %s, %s, 5, 1' % (v(u), v(LANE)))
    k('v_lshlrev_b32 %s, 4, %s' % (v(TRQ), v(u)))
    k('v_lshlrev_b32 %s, 2, %s' % (v(TRO), v(u)))
    k('v_bfe_u32 %s, %s, 4, 1' % (v(u), v(LANE)))
    k('v_lshl_add_u32 %s, %s, 2, %s' % (v(TRQ), v(u), v(TRQ)))
    k('v_lshl_add_u32 %s, %s, 4, %s' % (v(TRO), v(u), v(TRO)))
    k('v_bfe_u32 %s, %s, 3, 1' % (v(u), v(LANE)))
    k('v_lshl_add_u32 %s, %s, 3, %s' % (v(TRQ), v(u), v(TRQ)))
    k('v_bfe_u32 %s, %s, 2, 1' % (v(u), v(LANE)))
    k('v_add_u32 %s, %s, %s' % (v(TRQ), v(u), v(TRQ)))
    k('v_bfe_u32 %s, %s, 2, 2' % (v(u), v(LANE)))
    k('v_add_u32 %s, %s, %s' % (v(TRO), v(TRO), v(u)))
    k('v_and_b32 %s, 3, %s' % (v(u), v(LANE)))
    for R in (TRQ, TRO):
        k('v_lshlrev_b32 %s, 7, %s' % (v(R), v(R)))
        k('v_lshl_add_u32 %s, %s, 3, %s' % (v(R), v(u), v(R)))
    k('v_add_u32 %s, %s, %s' % (v(TRO), s(S_T2), v(TRO)))
    k('s_and_b32 %s, %s, 1' % (s(S_T0), s(S_W)))
    k('s_lshl_b32 %s, %s, 6' % (s(S_T0), s(S_T0)))
    k('v_add_u32 %s, %s, %s' % (v(TRQ), s(S_T0), v(TRQ)))
    k('v_bfe_u32 %s, %s, 4, 1' % (v(u), v(LANE)))
    k('v_lshlrev_b32 %s, 5, %s' % (v(u), v(u)))
    k('v_xor_b32 %s, %s, %s' % (v(TRQ), v(u), v(TRQ)))
    k('v_bfe_u32 %s, %s, 3, 1' % (v(u), v(LANE)))
    k('v_lshlrev_b32 %s, 6, %s' % (v(u), v(u)))
    k('v_xor_b32 %s, %s, %s' % (v(TRQ), v(u), v(TRQ)))
    k('s_xor_b32 %s, %s, 1' % (s(S_T0), s(S_W)))
    k('s_mul_i32 %s, %s, %d' % (s(S_T0), s(S_T0), WSTRIDE))
    k('s_add_u32 %s, %s, %d' % (s(S_T0), s(S_T0), L_WS))
    k('v_add_u32 %s, %s, %s' % (v(TRP), s(S_T0), v(TRQ)))
    k('v_add_u32 %s, %s, %s' % (v(TRQ), s(S_T2), v(TRQ)))
    k('v_xor_b32 %s, 32, %s' % (v(TRQ1), v(TRQ)))
    k('v_xor_b32 %s, 32, %s' % (v(TRP1), v(TRP)))
    k('v_lshlrev_b32 %s, 4, %s' % (v(LW), v(LANE)))
    k('v_add_u32 %s, %s, %s' % (v(LW), s(S_T2), v(LW)))
    if after_issue: after_issue()
    freepark = [24, 40, 88, 96, 104, 112, 120, 128, 136, 72, 80, 8, 16]
    reserved = []
    if k.wolast:
        reserved = [LOC[('o', 3, 0)][1], LOC[('o', 3, 1)][1], LOC[('o', 3, 2)][1], LOC[('o', 2, 2)][1], LOC[('o', 2, 3)][1]]
        freepark = reserved + [24, 40, 88, 96, 104, 112, 120, 128, 136, 72, 80]
    parked = []; building = {}
    homes = {}
    freehome = []
    def target(op):
        loc = LOC[op]
        if loc[0] != 's':
            assert loc[0] == 'a' or all(p != loc[1] for _, p in parked), ('parked in', op)
            return loc
        if op not in building: building[op] = freepark.pop(0)
        return ('v', building[op])
    def done(op):
        if op in building: parked.append((op, building.pop(op)))
    def dump():
        any_ = False
        while parked and freehome:
            op, p = parked.pop(0); h_ = freehome.pop(0); homes[op] = h_
            k('ds_write_b128 %s, %s offset:%d' % (v(LW), v(p, 4), h_))
            k('ds_write_b128 %s, %s offset:%d' % (v(LW), v(p + 4, 4), h_ + 1024))
            if p not in reserved: freepark.append(p)
    def release(li):
        if li + NSL >= NI: freehome.extend([(li % NSL) * 4096, (li % NSL) * 4096 + 2048])
    def ahead(li):
        if li + LA < NI: issue(li + LA)
        touch(li + k.pdist)
    for li in range(NI):
        it, hf = its[li]; slot = li % NSL
        k.wait_vm(('wl', li))
        if it[0] != 'o':
            k('s_barrier')
            if li and its[li - 1][0][0] != 'o': release(li - 1)
            fin = []
            for (kap, ar) in ((it[1], (TRQ, TRQ1)), (it[1] + 2, (TRP, TRP1))):
                for t in range(2):
                    loc = target((it[0], kap, t))
                    for Q in range(2):
                        k('ds_read_b64_tr_b16 %s, %s offset:%d' % (dst(loc, 4 * hf + 2 * Q, 2), v(ar[t]), slot * 4096 + 2 * Q * 128))
                    if hf: fin.append((it[0], kap, t))
            ahead(li)
            dump()
            k('s_waitcnt lgkmcnt(0)')
            for o_ in fin: done(o_)
        else:
            if li and its[li - 1][0][0] != 'o':
                k('s_barrier'); release(li - 1)
            for aa in range(2):
                for H in range(2):
                    for tau in range(2):
                        k('ds_read_b64_tr_b16 %s, %s offset:%d' % (v(RAW + 8 * aa + 4 * H + 2 * tau, 2), v(TRO), slot * 4096 + 8 * H * 128 + 64 * aa + 32 * tau))
            ahead(li)
            dump()
            k('s_waitcnt lgkmcnt(0)')
            release(li)
            for aa in range(2):
                op = ('o', 2 * it[1] + aa, 2 * it[2] + hf)
                loc = target(op)
                mv = 'v_accvgpr_write_b32' if loc[0] == 'a' else 'v_mov_b32'
                for H in range(2):
                    for tau in range(2):
                        src = RAW + 8 * aa + 4 * H + 2 * tau
                        k('%s %s, %s' % (mv, dst(loc, 4 * H + tau, 1), v(src)))
                        k('%s %s, %s' % (mv, dst(loc, 4 * H + tau + 2, 1), v(src + 1)))
                done(op)
        if li in hooks: hooks[li]()
        if getattr(k, 'ltrace', 0):
            k.raw('  s_memtime s[4:5]\n  s_waitcnt lgkmcnt(0)\n  s_sub_u32 s4, s4, s100\n  v_writelane_b32 v53, s4, %d' % li)
    if its[NI - 1][0][0] != 'o':
        k('s_barrier')
        release(NI - 1)
    dump()
    k('s_waitcnt lgkmcnt(0)')
    assert not parked and len(homes) == NS
    return homes

def chain(k, nsteps=64, prof=False, dump=False, opt={}):
    LOC = op_locs()
    LANE = 0
    def early():
        if hasattr(k, 'hook_loading'): k.hook_loading()
        k('v_and_b32 %s, 7, %s' % (v(56), v(LANE)))
        k('v_lshlrev_b32 %s, 10, %s' % (v(57), v(56)))
        k('v_lshrrev_b32 %s, 4, %s' % (v(56), v(LANE)))
        k('v_lshl_add_u32 %s, %s, 5, %s' % (v(57), v(56), v(57)))
        k('v_bfe_u32 %s, %s, 3, 1' % (v(56), v(LANE)))
        k('v_lshl_add_u32 %s, %s, 4, %s' % (v(57), v(56), v(57)))
        k('s_lshl_b32 %s, %s, 8' % (s(S_T0), s(S_W)))
        for k2 in range(2):
            k('buffer_load_dwordx4 %s, %s, %s, %s offen offset:%d' % (v(32 + 4 * k2, 4), v(57), s(S_M0, 4), s(S_T0), k2 * 128))
        k('s_lshl_b32 %s, %s, 20' % (s(S_KV), s(S_H)))
        k('s_lshl_b32 %s, %s, 12' % (s(S_T0), s(S_W)))
        k('s_add_u32 %s, %s, %s' % (s(S_KV), s(S_KV), s(S_T0)))
        k('s_mov_b32 %s, 0' % s(S_STEP))
    def kvload():
        k('v_lshlrev_b32 %s, 4, %s' % (v(7), v(LANE)))
        for i in range(4):
            k('buffer_load_dwordx4 %s, %s, %s, %s offen offset:%d sc1' % (v(KVC + 4 * i, 4), v(7), s(S_WS, 4), s(S_KV), 1024 * i))
    hooks = dict(getattr(k, 'load_hooks', {}))
    h13 = hooks.get(28)
    hooks[28] = lambda: ((h13() if h13 else None), kvload())
    k.ltrace = opt.get('ltrace', 0); k.lookahead = opt.get('la', 4); k.pdist = opt.get('pd', 0); k.wolast = opt.get('wolast', 0)
    assert k.lookahead <= 7
    homes = loader(k, LANE, LOC, early, hooks)
    if prof: k.raw('  s_memtime %s' % s(S_TS + 28, 2))
    if opt.get('ltrace'):
        k('s_lshl_b32 s55, s40, 2\ns_add_u32 s55, s55, s41\ns_lshl_b32 s55, s55, 8\ns_add_u32 s55, s55, 0x%x' % (DBG + 0x1a0000))
        k('v_lshlrev_b32 v52, 2, v0')
        k('buffer_store_dword v53, v52, s[8:11], s55 offen')
    if opt.get('loadonly'): k('s_branch L_chain_exit')
    k('v_mov_b32 %s, %s' % (v(STRM), v(6)))
    k('v_lshlrev_b32 %s, 4, %s' % (v(L16), v(LANE)))
    k('v_mov_b32 %s, %s' % (v(X3), v(55)))
    k.c('===== chain: initial state =====')
    consts(k, LANE)
    k('s_mul_i32 %s, %s, %d' % (s(S_INR0), s(S_H), JS))
    k('s_lshl_b32 %s, %s, 11' % (s(S_T0), s(S_W)))
    k('s_add_u32 %s, %s, %s' % (s(S_INR0), s(S_INR0), s(S_T0)))
    k('s_add_u32 %s, %s, 0x%x' % (s(S_INR0), s(S_INR0), INB))
    k('s_mov_b32 %s, 0x%x' % (s(S_DEF), SCRATCH))
    k('s_mov_b32 %s, 0x%x' % (s(S_KVM), MEMX + 8192))
    k('s_mov_b32 %s, 0' % s(S_TAG))
    for i in range(8):
        k('v_min_u32 %s, -2, %s' % (v(MEMF + i), v(32 + i)))
    k('ds_write_b128 %s, %s offset:%d' % (v(L16W), v(MEMF, 4), L_MEM))
    k('ds_write_b128 %s, %s offset:%d' % (v(L16W), v(MEMF + 4, 4), L_MEM + 1024))
    k('s_mov_b32 %s, 0x%x' % (s(S_T0), H2 + 0x6000))
    k('buffer_store_dwordx4 %s, %s, %s, %s offen offset:1024' % (v(MEMF + 4, 4), v(L16W), s(S_WS, 4), s(S_T0)))
    k('s_waitcnt vmcnt(0)')
    k('s_cmp_eq_u32 %s, 0' % s(S_H))
    k('s_cselect_b32 %s, 0x%x, %s' % (s(S_T0), MEMX, s(S_DEF)))
    k('buffer_store_dwordx4 %s, %s, %s, %s offen sc1' % (v(MEMF, 4), v(L16W), s(S_WS, 4), s(S_T0)))
    k('buffer_store_dwordx4 %s, %s, %s, %s offen offset:1024 sc1' % (v(MEMF + 4, 4), v(L16W), s(S_WS, 4), s(S_T0)))
    k('s_add_u32 %s, %s, 0x4000' % (s(S_KV), s(S_KV)))
    k('s_mul_i32 %s, %s, %d' % (s(S_INW0), s(S_W), 8 * JS))
    k('s_lshl_b32 %s, %s, 6' % (s(S_T0), s(S_H)))
    k('s_add_u32 %s, %s, %s' % (s(S_INW0), s(S_INW0), s(S_T0)))
    k('s_add_u32 %s, %s, 0x%x' % (s(S_INW0), s(S_INW0), INB))
    k('s_add_u32 %s, %s, 0x1000' % (s(S_INW1), s(S_INW0)))
    k('s_lshl_b32 %s, %s, 11' % (s(S_T0), s(S_W)))
    k('s_mov_b32 %s, 0x%x' % (s(S_H2W), H2))
    k('s_add_u32 m0, %s, %d' % (s(S_T0), L_MEM))
    k('s_add_u32 %s, %s, 0x%x' % (s(S_H2R), s(S_T0), H2 + 0x6000))
    k('s_mov_b32 %s, 0x%x' % (s(S_H2RST), H2 + 0x4000))
    cc = (128 ** -0.5) * math.log2(math.e)
    k('s_mov_b32 %s, 0x%x' % (s(S_C), f2u(cc)))
    k('s_mov_b32 %s, 0x%x' % (s(S_C + 1), f2u(cc)))
    pend = [(i, hf) for i in range(3) for hf in range(2)]
    def RF(n=1):
        for _ in range(n):
            if pend:
                i, hf = pend.pop(0)
                k('ds_read_b128 %s, %s offset:%d' % (v(SBUF + 8 * (i % 3) + 4 * hf, 4), v(STRM), homes[STREAM[i]] + 1024 * hf), tag=('st', i))
    RF(6)
    for i in range(0, 24, 2): k('v_mov_b64 %s, 0' % v(ACCQK + i, 2))
    if prof:
        for i in range(8): k('s_mov_b32 %s, 0' % s(S_TS + 16 + i))
        k.raw('  s_memtime %s' % s(S_TS + 24, 2))
    k('s_waitcnt lgkmcnt(0)')

    used = []
    def smf(op, acc, afrag):
        loc = LOC[op]
        if loc[0] == 's':
            assert loc[1] == len(used), (op, loc, used)
            used.append(loc[1])
            assert all(p[0] != loc[1] for p in pend), ('refill not issued', op)
            k.wait_lg(('st', loc[1]))
            opnd = v(SBUF + 8 * (loc[1] % 3), 8)
        else:
            opnd = dst(loc, 0, 8)
        k('v_smfmac_f32_16x16x64_bf16 %s, %s, %s, %s' % (v(acc, 4), v(afrag, 4), opnd, v(IDX)))
        if loc[0] == 's':
            pend.append(((loc[1] + 3) % NS, 0)); pend.append(((loc[1] + 3) % NS, 1))
    ACC = {'q': ACCQK, 'k': ACCQK + 8, 'v': ACCV}
    def S(m, kap, j):
        if kap >= 2: k.wait_lg(('mf', kap))
        smf((m, kap, j), ACC[m] + 4 * j, MEMF + 4 * kap)
    k.points = []
    def pt(name):
        k.points.append(name)
        if opt.get('pt') == name:
            k.raw('  s_memtime %s' % s(S_TS + 2, 2))
    def cvt(d, x, y): k('v_cvt_pk_bf16_f32 %s, %s, %s' % (v(d), v(x), v(y)))
    def mf16(d, A, B, C=None): k('v_mfma_f32_16x16x16_bf16 %s, %s, %s, %s' % (v(d, 4), v(A, 2), v(B, 2), '0' if C is None else v(C, 4)))
    def mf32(d, A, B, C=None): k('v_mfma_f32_16x16x32_bf16 %s, %s, %s, %s' % (v(d, 4), v(A, 4), v(B, 4), '0' if C is None else v(C, 4)))
    def pkadd(d, x, y): k('v_pk_add_f32 %s, %s, %s' % (v(d, 2), v(x, 2), v(y, 2)))
    def pkfma_c(d, x, m): k('v_pk_fma_f32 %s, %s, %s, %s op_sel_hi:[1,1,0] neg_lo:[0,0,1] neg_hi:[0,0,1]' % (v(d, 2), v(x, 2), s(S_C, 2), v(m, 2)))
    def pkmul_b(d, x, m): k('v_pk_mul_f32 %s, %s, %s op_sel_hi:[1,0]' % (v(d, 2), v(x, 2), v(m, 2)))
    def add(d, x, y): k('v_add_f32 %s, %s, %s' % (v(d), v(x), v(y)))
    def mov64(d, x): k('v_mov_b64 %s, %s' % (v(d, 2), x))
    def BAR(tag): k.wait_lg(tag); k('s_barrier')
    def nops(n):
        while n > 0:
            k('s_nop %d' % (min(n, 16) - 1)); n -= 16
    ROR8 = 'row_ror:8 row_mask:0xf bank_mask:0xf'
    FAIL = 'L_fail'; DONE = 'L_chain_done'; BODY = 'L_chain_body'; BODY0 = 'L_chain_body0'
    RETRY2 = 'L_retry2'; RETRY1 = 'L_retry1'; RETRY3 = 'L_retry3'; RET3 = 'L_ret3'
    OFIRST = opt.get('o1', 1)
    D1 = opt.get('d1', 2); D2 = opt.get('d2', 2)
    HA, HB = T1 + 7, OR_
    ORR = [X0, X1, X2]
    H1R = MEMF + 8
    VM = KVC + 4; KA = T1 + 4
    def ldE(): k('buffer_load_dwordx4 %s, %s, %s offen sc1 lds' % (v(L16), s(S_WS, 4), s(S_H2R)), tag='pe')
    def ldO(): k('buffer_load_dwordx4 %s, %s, %s offen offset:1024 sc1 lds' % (v(L16), s(S_WS, 4), s(S_H2R)), tag='po')
    def own(k2): k('ds_read_b128 %s, %s offset:%d' % (v(MEMF + 4 * k2, 4), v(L16W), L_MEM + 1024 * k2), tag=('own', k2))
    def chk4(R):
        k('v_max3_u32 %s, %s, %s, %s' % (v(HA), v(R), v(R + 1), v(R + 2)))
        k('v_max_u32 %s, %s, %s' % (v(HA), v(HA), v(R + 3)))
        k('v_cmp_eq_u32 vcc, -1, %s' % v(HA))
    def R(kap):
        p = kap >> 1; k2 = kap & 1
        k('ds_read_b128 %s, %s offset:%d' % (v(MEMF + 4 * kap, 4), v(MEMR + p - 1), L_MEM + 1024 * k2), tag=('mf', kap))
    TCH = opt.get('touch', 0); S_KV2 = 50
    def pf(i): k('buffer_load_dwordx4 %s, %s, %s, %s offen offset:%d %s' % (v(KVN + 4 * i, 4), v(L16), s(S_WS, 4), s(S_KV), 1024 * i, '' if TCH else 'sc1'))
    def touch(): k('buffer_load_dword %s, %s, %s, %s offen' % (v(KVN + 15), v(T1), s(S_WS, 4), s(S_KV2)))
    def pubm(): k('buffer_store_dword %s, %s, %s, %s offen sc1' % (v(HB), v(ST2), s(S_WS, 4), s(S_DEF)))
    def stk(so): k('buffer_store_dwordx4 %s, %s, %s, %s offen sc1' % (v(KA, 4), v(L16), s(S_WS, 4), s(so)))
    def stv(so): k('buffer_store_dwordx4 %s, %s, %s, %s offen offset:1024 sc1' % (v(VM, 4), v(L16), s(S_WS, 4), s(so)))
    def sel(d, x): k('v_mov_b32_dpp %s, %s quad_perm:[0,1,2,3] row_mask:0xf bank_mask:0xc' % (v(d), v(x)))

    k('s_branch %s' % BODY0)
    k.raw('.p2align 6')
    for i in range(opt.get('shift', 0)): k.raw('  s_nop 0')
    EM = opt.get('em', 1)
    k.label(RETRY2)
    k('s_mov_b64 exec, vcc')
    ldE()
    if prof: k('s_add_u32 %s, %s, 1' % (s(S_TS + 23), s(S_TS + 23)))
    k('s_sub_u32 %s, %s, 1' % (s(S_SPIN), s(S_SPIN)))
    k('s_cbranch_scc1 %s' % FAIL)
    if EM: k('s_waitcnt vmcnt(%d)' % (1 + OFIRST))
    own(0)
    k.label('L_ew')
    k('s_waitcnt lgkmcnt(%d)' % (0 if EM else 1))
    chk4(MEMF)
    k('s_cbranch_vccnz %s' % RETRY2)
    k('s_mov_b64 exec, -1')
    k.label(BODY)
    if opt.get('trace') == 2: k.raw('  s_memtime %s' % s(S_TS + 8, 2))
    k.label(BODY0)
    if opt.get('o2', 1) and not opt.get('nohop'): ldO()
    abl = opt.get('abl', [])
    if abl:
        k0 = k._one
        def filt(t, tag):
            if 'vmem' in abl and t.startswith('buffer_'): return
            if 'bar' in abl and t.startswith('s_barrier'): return
            if 'stream' in abl and t.startswith('ds_read_b128') and (', %s ' % v(STRM)) in t: return
            if 'dsw' in abl and t.startswith('ds_write'): return
            if 'dsr' in abl and t.startswith('ds_read'): return
            return k0(t, tag)
        k._one = filt
    k.lg = ['x']; k.vm = []
    if opt.get('pt'): k.raw('  s_memtime %s' % s(S_TS, 2))
    k('s_barrier')
    pt('b1')
    if opt.get('trace') == 2: k.raw('  s_memtime %s' % s(S_TS + 14, 2))
    R(2)
    S('q', 0, 0); R(4); S('q', 0, 1); R(6); S('k', 0, 0); RF(); S('k', 0, 1); RF()
    pt('own0')
    S('q', 2, 0); RF()
    if TCH and hasattr(k, 'hook_prefetch'): k.hook_prefetch(0)
    S('q', 2, 1); RF()
    if TCH and hasattr(k, 'hook_prefetch'): k.hook_prefetch(1)
    S('q', 4, 0); RF()
    if TCH:
        k('s_add_u32 %s, %s, 0x4000' % (s(S_KV2), s(S_KV)))
        k('v_lshlrev_b32 %s, 2, %s' % (v(T1), v(L16)))
    S('q', 4, 1); RF()
    ev = [('q', 6, 0), ('q', 6, 1), ('k', 2, 0), ('k', 2, 1), ('k', 4, 0), ('k', 4, 1), ('k', 6, 0), ('k', 6, 1), ('v', 0, 0), ('v', 0, 1)]
    no = opt.get('oddat', 2)
    for o_ in ev[:no]: S(*o_); RF()
    k('s_waitcnt vmcnt(%d)' % (opt.get('o2', 1) if OFIRST else 0)); own(1)
    for o_ in ev[no:no + 4]: S(*o_); RF()
    k.wait_lg(('own', 1))
    k('v_max3_u32 %s, %s, %s, %s' % (v(HA), v(MEMF + 4), v(MEMF + 5), v(MEMF + 6)))
    S(*ev[no + 4]); RF()
    k('v_max_u32 %s, %s, %s' % (v(HA), v(HA), v(MEMF + 7)))
    k('v_cmp_eq_u32 vcc, -1, %s' % v(HA))
    S(*ev[no + 5])
    rest = [o_ for o_ in ev[no + 6:] if o_[0] != 'v']
    vleft = [o_[1:] for o_ in ev[no + 6:] if o_[0] == 'v']
    if not opt.get('nohop'): k('s_cbranch_vccnz %s' % RETRY3)
    k.label(RET3)
    k.vm = []
    pt('odd')
    if opt.get('trace'):
        k.raw('  s_memtime %s' % s(S_TS + 4, 2))
        k.raw('  s_memrealtime %s' % s(S_TS + 6, 2))
        k.raw('  s_waitcnt lgkmcnt(0)')
        k('v_mov_b32 %s, %s' % (v(T1), s(S_TS + 4)))
        k('v_mov_b32 %s, %s' % (v(T1 + 1), s(S_TS + 6)))
        k('s_lshl_b32 %s, %s, 2' % (s(S_T0), s(S_H)))
        k('s_add_u32 %s, %s, %s' % (s(S_T0), s(S_T0), s(S_W)))
        k('s_lshl_b32 %s, %s, 6' % (s(S_T0), s(S_T0)))
        k('s_add_u32 %s, %s, %s' % (s(S_T0), s(S_T0), s(S_STEP)))
        k('s_lshl_b32 %s, %s, 3' % (s(S_T0), s(S_T0)))
        k('s_add_u32 %s, %s, 0x%x' % (s(S_T0), s(S_T0), DBG + 0x120000))
        k('v_mov_b32 %s, 0' % v(T1 + 2))
        k('s_mov_b64 exec, 1')
        k('buffer_store_dwordx2 %s, %s, %s, %s offen' % (v(T1, 2), v(T1 + 2), s(S_WS, 4), s(S_T0)))
        if opt.get('trace') == 2:
            for i in range(4): k('v_mov_b32 %s, %s' % (v(T1 + 4 + i), s(S_TS + 8 + 2 * i)))
            k('s_sub_u32 %s, %s, 0x%x' % (s(S_T0), s(S_T0), DBG + 0x120000))
            k('s_lshl_b32 %s, %s, 1' % (s(S_T0), s(S_T0)))
            k('s_add_u32 %s, %s, 0x%x' % (s(S_T0), s(S_T0), DBG + 0x140000))
            k('buffer_store_dwordx4 %s, %s, %s, %s offen' % (v(T1 + 4, 4), v(T1 + 2), s(S_WS, 4), s(S_T0)))
        k('s_mov_b64 exec, -1')
    if dump:
        k('s_lshl_b32 %s, %s, 13' % (s(S_T0), s(S_STEP)))
        k('s_lshl_b32 %s, %s, 11' % (s(S_T1), s(S_W)))
        k('s_add_u32 %s, %s, %s' % (s(S_T0), s(S_T0), s(S_T1)))
        k('s_add_u32 %s, %s, 0x%x' % (s(S_T0), s(S_T0), DBG))
        k('buffer_store_dwordx4 %s, %s, %s, %s offen' % (v(MEMF, 4), v(L16), s(S_WS, 4), s(S_T0)))
        k('buffer_store_dwordx4 %s, %s, %s, %s offen offset:1024' % (v(MEMF + 4, 4), v(L16), s(S_WS, 4), s(S_T0)))
    k('s_barrier'); R(3)
    pt('b1b')
    for o_ in rest: S(*o_); RF()
    HP = getattr(k, 'hook_prefetch', lambda p: None)
    if TCH:
        S('q', 1, 0); touch()
        S('q', 1, 1); R(5)
        S('k', 1, 0); R(7)
        S('k', 1, 1); pubm()
        S('q', 3, 0); RF()
        S('q', 3, 1); HP(2); RF()
        S('q', 5, 0); RF()
        S('q', 5, 1); RF()
        S('q', 7, 0); pf(0)
        S('q', 7, 1); RF()
    else:
        S('q', 1, 0); R(5); HP(0)
        S('q', 1, 1); R(7); HP(1)
        S('k', 1, 0); pf(0)
        S('k', 1, 1); RF()
        S('q', 3, 0); RF()
        S('q', 3, 1); RF()
        S('q', 5, 0); pf(1)
        S('q', 5, 1); RF()
        S('q', 7, 0); RF()
        S('q', 7, 1); RF()
    pt('Q')
    MXX, TA, PM = MEMF + 0, MEMF + 1, MEMF + 2
    AK = ACCQK + 8
    S('k', 3, 0); (RF() if TCH else pf(2))
    S('k', 3, 1); RF(); cvt(T1, ACCQK, ACCQK + 1)
    S('k', 5, 0); (pf(1) if TCH else RF()); cvt(T1 + 1, ACCQK + 2, ACCQK + 3)
    S('k', 5, 1); RF(); cvt(T1 + 2, ACCQK + 4, ACCQK + 5)
    S('k', 7, 0); (RF() if TCH else pf(3)); cvt(T1 + 3, ACCQK + 6, ACCQK + 7)
    S('k', 7, 1); RF()
    pt('K')
    vq = [(2, 0), (1, 0), (3, 0), (1, 1), (3, 1), (4, 0), (5, 0), (5, 1), (7, 0), (7, 1), (2, 1), (4, 1), (6, 0), (6, 1)]
    vq = vq[:6] + vleft + vq[6:]
    def V(n=1):
        for _ in range(n):
            kap, j = vq.pop(0)
            S('v', kap, j)
    mf16(ACCQK, T1, SELT); RF()
    if not TCH: k('s_add_u32 %s, %s, 0x4000' % (s(S_KV), s(S_KV)))
    mf16(ACCQK + 4, T1 + 2, SELT)
    (pf(2) if TCH else pubm())
    cvt(T1 + 4, AK, AK + 1); cvt(T1 + 5, AK + 2, AK + 3)
    V(1); RF()
    cvt(T1 + 6, AK + 4, AK + 5); cvt(T1 + 7, AK + 6, AK + 7)
    mf16(AK, T1 + 4, SELT); RF()
    cvt(T1, ACCQK, ACCQK + 1); cvt(T1 + 1, ACCQK + 2, ACCQK + 3)
    mf16(AK + 4, T1 + 6, SELT)
    if not TCH: HP(2)
    cvt(T1 + 2, ACCQK + 4, ACCQK + 5); cvt(T1 + 3, ACCQK + 6, ACCQK + 7)
    V(1)
    mf32(ACCQK, KVC, T1)
    if TCH:
        pf(3)
        k('s_add_u32 %s, %s, 0x4000' % (s(S_KV), s(S_KV)))
    cvt(T1 + 4, AK, AK + 1); cvt(T1 + 5, AK + 2, AK + 3)
    mf32(ACCQK + 4, KVC + 4, T1)
    cvt(T1 + 6, AK + 4, AK + 5); cvt(T1 + 7, AK + 6, AK + 7)
    V(1); RF()
    mf32(AK, T1 + 4, T1); RF()
    pt('sm')
    for j in range(4): sel(ACCQK + j, ACCQK + 4 + j)
    V(1)
    k('ds_write_b128 %s, %s offset:%d' % (v(L16W), v(ACCQK, 4), L_SX), tag='xw')
    sel(AK, AK + 2); sel(AK + 1, AK + 3)
    V(1)
    k('ds_write_b64 %s, %s' % (v(SMW), v(AK, 2)), tag='sw')
    pt('swr')
    WACC = MEMF + 16; OF = MEMF + 4
    V(1); RF(); V(1); RF(); V(opt.get('vb2', 3))
    BAR('sw')
    pt('b2')
    XSR = [KVC, KVC + 4, ACCQK + 4]
    def XR(p): k('ds_read_b128 %s, %s offset:%d' % (v(XSR[p], 4), v(MEMR + p), L_SX), tag=('xs', p))
    MS = AK; XS = KVC
    XR(0); V(1); XR(1); V(1); XR(2); V(1)
    k('ds_read2_b64 %s, %s offset0:0 offset1:32' % (v(MS, 4), v(SMR)), tag='ms0')
    V(1)
    k('ds_read2_b64 %s, %s offset0:64 offset1:96' % (v(MS + 4, 4), v(SMR)), tag='ms1')
    V(len(vq))
    k.wait_lg(('xs', 0))
    pkadd(XS, XS, ACCQK); pkadd(XS + 2, XS + 2, ACCQK + 2)
    k.wait_lg(('xs', 2))
    pkadd(ACCQK + 4, ACCQK + 4, XS + 4); pkadd(ACCQK + 6, ACCQK + 6, XS + 6)
    pkadd(XS, XS, ACCQK + 4); pkadd(XS + 2, XS + 2, ACCQK + 6)
    k.wait_lg('ms1')
    pkadd(MS, MS, MS + 2); pkadd(MS + 4, MS + 4, MS + 6)
    k('v_max3_f32 %s, %s, %s, %s' % (v(MXX), v(XS), v(XS + 1), v(XS + 2)))
    pkadd(MS, MS, MS + 4)
    pt('sums')
    k('v_max_f32 %s, %s, %s' % (v(MXX), v(MXX), v(XS + 3)))
    k('v_max3_f32 %s, %s, %s, %s' % (v(MXX), v(MXX), v(MS), v(MS + 1)))
    cvt(VM, ACCV, ACCV + 1); cvt(VM + 1, ACCV + 2, ACCV + 3)
    k('v_max_f32_dpp %s, %s, %s %s' % (v(MXX), v(MXX), v(MXX), ROR8))
    k('v_mov_b32 %s, %s' % (v(TA), v(MXX)))
    cvt(VM + 2, ACCV + 4, ACCV + 5); cvt(VM + 3, ACCV + 6, ACCV + 7)
    k('v_permlane16_swap_b32 %s, %s' % (v(MXX), v(TA)))
    k('v_max_f32 %s, %s, %s' % (v(MXX), v(MXX), v(TA)))
    k('v_mov_b32 %s, %s' % (v(TA), v(MXX)))
    mov64(WACC, '0'); mov64(WACC + 2, '0')
    k('v_permlane32_swap_b32 %s, %s' % (v(MXX), v(TA)))
    k('v_max_f32 %s, %s, %s' % (v(MXX), v(MXX), v(TA)))
    k('v_mul_f32 %s, %s, %s' % (v(MXX), s(S_C), v(MXX)))
    pt('max')
    def ex(d): k('v_exp_f32 %s, %s' % (v(d), v(d)))
    pkfma_c(XS, XS, MXX); pkfma_c(XS + 2, XS + 2, MXX); pkfma_c(MS, MS, MXX)
    for j in range(4): ex(XS + j)
    PX = T1
    ex(MS)
    cvt(PX, XS, XS + 1); cvt(PX + 1, XS + 2, XS + 3)
    ex(MS + 1)
    for j in range(2): k('v_mov_b32_dpp %s, %s %s' % (v(PX + 2 + j), v(PX + j), ROR8))
    cvt(PM, MS, MS + 1)
    pkadd(XS, XS, XS + 2)
    O0, O1 = ACCQK, ACCQK + 4
    LS = MXX
    mf32(O0, KVC + 8, PX)
    k('v_mov_b32_dpp %s, %s %s' % (v(PM + 1), v(PM), ROR8))
    add(MS, MS, MS + 1)
    mf32(O1, KVC + 12, PX)
    add(XS, XS, XS + 1)
    k('v_fma_f32 %s, %s, 0.5, %s' % (v(LS), v(MS), v(XS)))
    mf16(O0, VM, PM, O0)
    k('v_add_f32_dpp %s, %s, %s %s' % (v(LS), v(LS), v(LS), ROR8))
    k('v_mov_b32 %s, %s' % (v(TA), v(LS)))
    mf16(O1, VM + 2, PM, O1)
    pt('pv')
    k('v_permlane16_swap_b32 %s, %s' % (v(LS), v(TA)))
    add(LS, LS, TA)
    k('v_mov_b32 %s, %s' % (v(TA), v(LS)))
    mov64(WACC + 4, '0'); mov64(WACC + 6, '0')
    k('v_permlane32_swap_b32 %s, %s' % (v(LS), v(TA)))
    add(LS, LS, TA)
    k('v_rcp_f32 %s, %s' % (v(LS), v(LS)))
    mov64(WACC + 8, '0')
    pkmul_b(O0, O0, LS); pkmul_b(O0 + 2, O0 + 2, LS); pkmul_b(O1, O1, LS); pkmul_b(O1 + 2, O1 + 2, LS)
    for i in range(4): cvt(T1 + i, O0 + 2 * i, O0 + 2 * i + 1)
    k('ds_write_b128 %s, %s offset:%d' % (v(OW), v(T1, 4), L_OX), tag='ow')
    pt('owr')
    for j in range(4): k('v_mov_b32_dpp %s, %s row_ror:8 row_mask:0xf bank_mask:0xc' % (v(T1 + j), v(T1 + j)))
    for i in range(10, 16, 2): mov64(WACC + i, '0')
    for i in range(0, 8, 2): mov64(ACCV + i, '0')
    def WO(a_, kap):
        if kap: k.wait_lg(('of', kap))
        smf(('o', a_, kap), WACC + 4 * a_, T1 if kap == 0 else OF + 4 * (kap - 1))
    def OFR(kap): k('ds_read_b128 %s, %s offset:%d' % (v(OF + 4 * (kap - 1), 4), v(ORR[kap - 1]), L_OX), tag=('of', kap))
    k('s_mov_b32 %s, %s' % (s(S_DEF), s(S_KVM)))
    k('s_add_u32 %s, %s, 0x2000' % (s(S_KVM), s(S_KVM)))
    WO(0, 0); BAR('ow'); OFR(1)
    pt('b3')
    WO(1, 0); OFR(2)
    WO(2, 0); OFR(3)
    WO(3, 0); RF()
    PK = ACCQK
    def tag(r): k('v_bfi_b32 %s, 1, %s, %s' % (v(r), s(S_TAG), v(r)))
    def pack(a_):
        cvt(PK + 2 * a_, WACC + 4 * a_, WACC + 4 * a_ + 1); cvt(PK + 2 * a_ + 1, WACC + 4 * a_ + 2, WACC + 4 * a_ + 3); tag(PK + 2 * a_)
    def sto(a_):
        k('buffer_store_dwordx2 %s, %s, %s, %s offen offset:%d' % (v(PK + 2 * a_, 2), v(ST1), s(S_WS, 4), s(S_INW0 if a_ < 2 else S_INW1), 2048 * (a_ & 1)))
    RA = MEMF + 16
    WO(0, 1); RF(); mov64(ACCQK + 8, '0'); WO(0, 2); mov64(ACCQK + 10, '0'); WO(0, 3); mov64(ACCQK + 12, '0')
    WO(1, 1); mov64(ACCQK + 14, '0'); WO(1, 2); RF(); pack(0); WO(1, 3); sto(0)
    pt('st0')
    WO(2, 1); RF(); mov64(RA, '0'); WO(2, 2); RF(); pack(1); WO(2, 3); sto(1)
    pt('st1')
    WO(3, 1); RF(); mov64(RA + 2, '0'); WO(3, 2); pack(2); WO(3, 3); sto(2)
    RF(2)
    k('s_mov_b32 %s, %d' % (s(S_SPIN), SPIN_MAX))
    k('s_add_u32 %s, %s, 0x2000' % (s(S_H2R), s(S_H2R)))
    k('s_and_b32 %s, %s, 0x%x' % (s(S_H2R), s(S_H2R), 0xffff7fff))
    k('s_add_u32 %s, %s, 1' % (s(S_STEP), s(S_STEP)))
    mov64(PK, '0'); mov64(PK + 2, '0')
    pack(3); sto(3)
    pt('st2')
    if opt.get('trace') == 2: k.raw('  s_memtime %s' % s(S_TS + 10, 2))
    assert len(used) == NS and not pend
    k.c('--- H1')
    HSET = [MEMF + 8, MEMF + 20, MEMF + 0]
    def round1(i):
        k('buffer_load_dwordx4 %s, %s, %s, %s offen sc1' % (v(HSET[i], 4), v(L16), s(S_WS, 4), s(S_INR0)))
        k('buffer_load_dwordx4 %s, %s, %s, %s offen offset:1024 sc1' % (v(HSET[i] + 4, 4), v(L16), s(S_WS, 4), s(S_INR0)))
    def h1chk(i):
        Rg = HSET[i]
        k('s_waitcnt vmcnt(%d)' % (2 * (D1 - 1)))
        k('v_smfmac_f32_16x16x64_bf16 %s, %s, %s, %s' % (v(RA, 4), v(SELR, 4), v(Rg, 8), v(IDXR)))
        k('v_bitop3_b32 %s, %s, %s, %s bitop3:0x7e' % (v(HA), v(Rg), v(Rg + 2), s(S_TAG)))
        k('v_bitop3_b32 %s, %s, %s, %s bitop3:0x7e' % (v(HA - 1), v(Rg + 4), v(Rg + 6), s(S_TAG)))
        k('v_bitop3_b32 %s, %s, %s, 1 bitop3:0xa8' % (v(HA), v(HA), v(HA - 1)))
        k('v_cmp_ne_u32 vcc, 0, %s' % v(HA))
        k('v_mov_b32 %s, -1' % v(HA))
    def ptacc():
        if opt.get('pt'):
            k.raw('  s_waitcnt lgkmcnt(0)')
            k('s_sub_u32 %s, %s, %s' % (s(S_T0), s(S_TS + 2), s(S_TS)))
            k('s_add_u32 %s, %s, %s' % (s(S_TS + 16), s(S_TS + 16), s(S_T0)))
    if opt.get('nohop'):
        if abl: k._one = k0
        ptacc()
        mov64(PK + 4, '0'); mov64(PK + 6, '0')
        k('s_waitcnt vmcnt(0) lgkmcnt(0)')
        k('s_barrier')
        k('s_cmp_eq_u32 %s, %d' % (s(S_STEP), nsteps - 1))
        k('s_cbranch_scc1 %s' % DONE)
        k('s_branch %s' % BODY0)
    k('s_cmp_lt_u32 %s, 2' % s(S_W))
    k('s_cbranch_scc1 L_early')
    nops(opt.get('late1', 46))
    k.label('L_early')
    mov64(PK + 4, '0'); mov64(PK + 6, '0')
    nops(opt.get('pre1', 26))
    for i in range(D1):
        round1(i)
        if i < D1 - 1: nops(opt.get('gap1', 20))
    k('s_cmp_eq_u32 %s, %d' % (s(S_STEP), nsteps - 1))
    k.label('L_h1w')
    h1chk(0)
    k('s_cbranch_vccnz L_h1r0')
    k.label('L_h1ok')
    mov64(KVC, v(KVN, 2))
    for rr in ('row_ror:4', 'row_ror:8'):
        for j in range(2):
            k('v_add_f32_dpp %s, %s, %s %s row_mask:0xf bank_mask:0xf' % (v(RA + j), v(RA + j), v(RA + j), rr))
    cvt(HB, RA, RA + 1)
    k('v_min_u32 %s, -2, %s' % (v(HB), v(HB)))
    k('s_cbranch_scc1 %s' % DONE)
    k('buffer_store_dword %s, %s, %s, %s offen' % (v(HB), v(ST2), s(S_WS, 4), s(S_H2W)))
    k('buffer_store_dword %s, %s, %s, %s offen' % (v(HA), v(ST2), s(S_WS, 4), s(S_H2RST)))
    pt('p1ok')
    if opt.get('trace') == 2: k.raw('  s_memtime %s' % s(S_TS + 12, 2))
    def hk():
        for i in range(2, 16, 2): mov64(KVC + i, v(KVN + i, 2))
        ptacc()
        k('s_xor_b32 %s, %s, 1' % (s(S_TAG), s(S_TAG)))
        for r in (S_H2W, S_H2RST):
            k('s_add_u32 %s, %s, 0x2000' % (s(r), s(r)))
            k('s_and_b32 %s, %s, 0x%x' % (s(r), s(r), 0xffff7fff))
        k('s_mov_b32 %s, %d' % (s(S_SPIN), SPIN_MAX))
        k('s_waitcnt lgkmcnt(0)')
    k('s_cmp_lt_u32 %s, 2' % s(S_W))
    k('s_cbranch_scc1 L_early2')
    k.label('L_late2')
    nops(opt.get('pre2', 0))
    NE = 2
    ldE(); hk(); nops(opt.get('gapa', 24))
    ldE()
    if OFIRST: nops(opt.get('gap2', 14))
    if OFIRST: ldO()
    k('s_waitcnt vmcnt(%d)' % (NE - 1 + OFIRST))
    own(0)
    if not EM:
        nops(opt.get('rd2', 4))
        own(0)
    k('s_branch L_ew')
    for i in range(D1):
        k.label('L_h1r%d' % i)
        k('s_mov_b64 exec, vcc')
        round1(i)
        k('s_mov_b64 exec, -1')
        if prof: k('s_add_u32 %s, %s, 0x10000' % (s(S_TS + 23), s(S_TS + 23)))
        k('s_sub_u32 %s, %s, 1' % (s(S_SPIN), s(S_SPIN)))
        k('s_cbranch_scc1 %s' % FAIL)
        k('s_cmp_eq_u32 %s, %d' % (s(S_STEP), nsteps - 1))
        mov64(RA, '0'); mov64(RA + 2, '0')
        if i == D1 - 1:
            k('s_branch L_h1w')
        else:
            h1chk(i + 1)
            k('s_cbranch_vccz L_h1ok')
    k.label('L_early2')
    nops(opt.get('early2', 34))
    k('s_branch L_late2')
    k.label(RETRY3)
    k('s_mov_b64 exec, vcc')
    ldO()
    if prof: k('s_add_u32 %s, %s, 0x100' % (s(S_TS + 22), s(S_TS + 22)))
    k('s_sub_u32 %s, %s, 1' % (s(S_SPIN), s(S_SPIN)))
    k('s_cbranch_scc1 %s' % FAIL)
    k('s_waitcnt vmcnt(1)')
    own(1)
    k('s_waitcnt lgkmcnt(0)')
    chk4(MEMF + 4)
    k('s_cbranch_vccnz %s' % RETRY3)
    k('s_mov_b64 exec, -1')
    k('s_branch %s' % RET3)
    k.label(DONE)
    k('buffer_store_dword %s, %s, %s, %s offen sc1' % (v(HB), v(ST2), s(S_WS, 4), s(S_DEF)))
    k.label('L_chain_exit')
```

```python
from fw import *
from layout import *
from chain import srd, f2u, S_WS, S_WQ, S_WK, S_WV, S_WO, S_DBG, S_H, S_W, S_SPIN, S_T0, S_T1, S_T2, SPIN_MAX
import math

S_X, S_AUX, S_OUT = 28, 36, 12
S_R, S_NSEG, S_I, S_XS, S_OO, S_XB, S_FL, S_SEG, S_GRP, S_TK = 42, 43, 44, 45, 46, 47, 48, 49, 50, 51
S_T3, S_T4 = 52, 53
S_M = 92
P_X, P_MEM0, P_WQ, P_WK, P_WV, P_WO, P_SEG, P_BX, P_WB, P_WOB, P_GW, P_OUT, P_DBG, P_WS = [64 + 2 * i for i in range(14)]
FAIL = 'L_fail'

LANE, L16, GA, TR, XG, XR, VZ, VT = 0, 1, 2, 3, 4, 5, 6, 7
L_STG = 65536; STG_STRIDE = 24576

def cvt(k, d, x, y): k('v_cvt_pk_bf16_f32 %s, %s, %s' % (v(d), v(x), v(y)))
def R(loc, r, n): return (a if loc[0] == 'a' else v)(loc[1] + r, n)

def poll_flags(k, soff_reg, nlanes, minval, name, stride=4, srdn=S_WS, sleep=8, skip7=False, mask=None):
    L = k.newlabel('L_poll_' + name)
    k('v_mul_u32_u24 %s, %d, %s' % (v(VZ), stride, v(LANE)))
    k('s_mov_b32 %s, %d' % (s(S_SPIN), SPIN_MAX))
    if skip7:
        k('s_mov_b32 exec_lo, 0x7f7f7f7f')
        k('s_mov_b32 exec_hi, 0x7f7f7f7f')
    else:
        k('s_mov_b32 exec_lo, 0x%x' % (mask or ((1 << nlanes) - 1)))
        k('s_mov_b32 exec_hi, 0')
    k.label(L)
    k('buffer_load_dword %s, %s, %s, %s offen sc1' % (v(VT), v(VZ), s(srdn, 4), s(soff_reg)))
    k('s_sub_u32 %s, %s, 1' % (s(S_SPIN), s(S_SPIN)))
    k('s_cbranch_scc1 %s' % FAIL)
    k('s_waitcnt vmcnt(0)')
    k('v_cmp_gt_u32 vcc, %s, %s' % (minval, v(VT)))
    k('s_cbranch_vccz %s_ok' % L)
    k('s_sleep %d' % sleep)
    k('s_branch %s' % L)
    k.label(L + '_ok')
    k('s_mov_b64 exec, -1')

def set_flag(k, soff_reg, val, flags='sc1'):
    k('v_mov_b32 %s, %s' % (v(VT), val))
    k('v_mov_b32 %s, 0' % v(VZ))
    k('s_mov_b64 exec, 1')
    k('buffer_store_dword %s, %s, %s, %s offen %s' % (v(VT), v(VZ), s(S_WS, 4), s(soff_reg), flags))
    k('s_mov_b64 exec, -1')

def load_blocks(k, blocks, nslot):
    n = len(blocks)
    for i in range(min(nslot, n)):
        blocks[i]['issue']((i % nslot) * 4096, ('wl', i))
    for i in range(n):
        k.wait_vm(('wl', i))
        blocks[i]['read']((i % nslot) * 4096)
        k('s_waitcnt lgkmcnt(0)')
        if i + nslot < n:
            blocks[i + nslot]['issue']((i % nslot) * 4096, ('wl', i + nslot))

def setup_common(k):
    k('v_lshlrev_b32 %s, 4, %s' % (v(L16), v(LANE)))
    k('s_mul_i32 %s, %s, %d' % (s(S_T2), s(S_W), STG_STRIDE))
    k('s_add_u32 %s, %s, %d' % (s(S_T2), s(S_T2), L_STG))

def qkv_addr(k):
    k('v_lshrrev_b32 %s, 2, %s' % (v(VZ), v(LANE)))
    k('v_and_b32 %s, 3, %s' % (v(VT), v(LANE)))
    k('v_lshlrev_b32 %s, 4, %s' % (v(GA), v(VT)))
    k('v_lshl_add_u32 %s, %s, 13, %s' % (v(GA), v(VZ), v(GA)))
    k('s_lshl_b32 %s, %s, 8' % (s(S_T0), s(S_H)))
    k('s_lshl_b32 %s, %s, 6' % (s(S_T1), s(S_W)))
    k('s_add_u32 %s, %s, %s' % (s(S_T0), s(S_T0), s(S_T1)))
    k('v_add_u32 %s, %s, %s' % (v(GA), s(S_T0), v(GA)))
    k('v_lshrrev_b32 %s, 4, %s' % (v(TR), v(LANE)))
    k('v_lshlrev_b32 %s, 3, %s' % (v(TR), v(TR)))
    k('v_and_b32 %s, 3, %s' % (v(VZ), v(VZ)))
    k('v_add_u32 %s, %s, %s' % (v(TR), v(TR), v(VZ)))
    k('v_lshlrev_b32 %s, 6, %s' % (v(TR), v(TR)))
    k('v_lshl_add_u32 %s, %s, 3, %s' % (v(TR), v(VT), v(TR)))
    k('v_add_u32 %s, %s, %s' % (v(TR), s(S_T2), v(TR)))

def qkv_block(k, srdn, b, dest):
    def issue(off, tag):
        for i in range(4):
            k('s_mov_b32 %s, %d' % (s(S_T0), (64 * b + 16 * i) * 8192))
            k('s_add_u32 m0, %s, %d' % (s(S_T2), off + i * 1024))
            k('buffer_load_dwordx4 %s, %s, %s offen lds' % (v(GA), s(srdn, 4), s(S_T0)), tag=tag)
    def read(off):
        for k2 in range(2):
            for t in range(2):
                for hh in range(2):
                    k('ds_read_b64_tr_b16 %s, %s offset:%d' % (R(dest(t, 2 * b + k2), 2 * hh, 2), v(TR), off + (32 * k2 + 4 * hh) * 64 + 32 * t))
    return dict(issue=issue, read=read)

XG1, XR1 = 12, 13
def x_setup(k):
    k('v_lshrrev_b32 %s, 3, %s' % (v(VZ), v(LANE)))
    k('v_lshlrev_b32 %s, 10, %s' % (v(XG), v(VZ)))
    k('v_lshrrev_b32 %s, 4, %s' % (v(VZ), v(LANE)))
    k('v_and_b32 %s, 7, %s' % (v(VT), v(LANE)))
    k('v_xor_b32 %s, %s, %s' % (v(VT), v(VT), v(VZ)))
    k('v_lshl_add_u32 %s, %s, 4, %s' % (v(XG), v(VT), v(XG)))
    k('s_lshl_b32 %s, %s, 8' % (s(S_T0), s(S_W)))
    k('v_add_u32 %s, %s, %s' % (v(XG), s(S_T0), v(XG)))
    k('v_xor_b32 %s, 0x2040, %s' % (v(XG1), v(XG)))
    k('v_bfe_u32 %s, %s, 1, 3' % (v(VT), v(LANE)))
    k('v_xor_b32 %s, %s, %s' % (v(VT), v(VT), v(VZ)))
    k('v_and_b32 %s, 15, %s' % (v(VZ), v(LANE)))
    k('v_lshlrev_b32 %s, 7, %s' % (v(XR), v(VZ)))
    k('v_lshl_add_u32 %s, %s, 4, %s' % (v(XR), v(VT), v(XR)))
    k('v_xor_b32 %s, 64, %s' % (v(XR1), v(XR)))

def x_dma(k, tag):
    k('s_lshl_b32 %s, %s, 12' % (s(S_T0), s(S_W)))
    k('s_add_u32 %s, %s, %s' % (s(S_T0), s(S_T0), s(S_XB)))
    def one(T, j):
        k('s_add_u32 m0, %s, %d' % (s(S_T0), T * 16384 + j * 1024))
        k('s_add_u32 %s, %s, %d' % (s(S_T1), s(S_XS), T * 16384 + (j >> 1) * 128))
        k('buffer_load_dwordx4 %s, %s, %s offen lds' % (v(XG1 if j & 1 else XG), s(S_X, 4), s(S_T1)), tag=tag)
    def fin():
        k('s_add_u32 %s, %s, %d' % (s(S_XS), s(S_XS), 2 * 32768))
        k('s_min_u32 %s, %s, %d' % (s(S_XS), s(S_XS), 63 * 32768))
        k('s_add_u32 %s, %s, 0x8000' % (s(S_XB), s(S_XB)))
        k('s_cmp_eq_u32 %s, 0x%x' % (s(S_XB), NXB * 0x8000))
        k('s_cselect_b32 %s, 0, %s' % (s(S_XB), s(S_XB)))
    return [(lambda T=T, j=j: one(T, j)) for T in range(2) for j in range(4)] + [fin]
NXB = 5

def mfma32(d, A, B, first):
    return 'v_mfma_f32_16x16x32_bf16 %s, %s, %s, %s' % (v(d, 4), A, B, '0' if first else v(d, 4))

def proj(k, after_issue=None):
    k.c('===== projections =====')
    S_O0, S_O1, S_OST, S_KIND, S_PAR = S_OO, S_T3, S_T4, S_NSEG, S_SEG
    srd(k, S_X, P_X, 2 << 20)
    LB = k.newlabel('L_pj_b'); LJ = k.newlabel('L_pj_j'); LG = k.newlabel('L_pj_g'); LJ2 = k.newlabel('L_pj_j2')
    x_setup(k)
    qkv_addr(k)
    k('s_lshl_b32 %s, %s, 2' % (s(S_T0), s(S_H)))
    k('s_add_u32 %s, %s, %s' % (s(S_T0), s(S_T0), s(S_W)))
    k('s_lshl_b32 %s, %s, 3' % (s(S_FL), s(S_T0)))
    k('s_add_u32 %s, %s, %s' % (s(S_FL), s(S_FL), s(S_R)))
    k('s_lshl_b32 %s, %s, 4' % (s(S_FL), s(S_FL)))
    k('s_add_u32 %s, %s, 0x%x' % (s(S_FL), s(S_FL), F_KV))
    k('s_cmp_eq_u32 %s, 6' % s(S_R))
    k('s_cbranch_scc1 %s' % LB)
    k('s_and_b32 %s, %s, 1' % (s(S_PAR), s(S_R)))
    k('s_lshr_b32 %s, %s, 1' % (s(S_T1), s(S_R)))
    k('s_cmp_eq_u32 %s, 0' % s(S_T1))
    k('s_cselect_b64 %s, %s, %s' % (s(4, 2), s(P_WK, 2), s(P_WV, 2)))
    k('s_cmp_eq_u32 %s, 2' % s(S_T1))
    k('s_cselect_b64 %s, %s, %s' % (s(4, 2), s(P_WQ, 2), s(4, 2)))
    srd(k, S_AUX, 4, 4 << 20)
    k('s_cselect_b32 %s, 0x40000, 0x80000' % s(S_OST)) if False else None
    k('s_mov_b32 %s, 0x4000' % s(S_OST))
    k('s_lshl_b32 %s, %s, 8' % (s(S_T0), s(S_H)))
    k('s_add_u32 %s, %s, %s' % (s(S_T0), s(S_T0), s(S_W)))
    k('s_lshl_b32 %s, %s, 12' % (s(S_O0), s(S_T0)))
    k('s_and_b32 %s, %s, 1' % (s(S_KIND), s(S_T1)))
    k('s_lshl_b32 %s, %s, 11' % (s(S_O1), s(S_KIND)))
    k('s_add_u32 %s, %s, %s' % (s(S_O0), s(S_O0), s(S_O1)))
    k('s_cmp_lg_u32 %s, 2' % s(S_T1))
    k('s_cbranch_scc1 %s_q' % LB)
    k('s_lshl_b32 %s, %s, 11' % (s(S_O0), s(S_T0)))
    k('s_add_u32 %s, %s, 0x%x' % (s(S_O0), s(S_O0), QX))
    k('s_mov_b32 %s, 0x2000' % s(S_OST))
    k.label(LB + '_q')
    k('s_add_u32 %s, %s, 1024' % (s(S_O1), s(S_O0)))
    k('s_mov_b32 s5, 8192')
    k('s_branch %s' % LJ)
    k.label(LB)
    k('s_and_b32 %s, %s, 1' % (s(S_PAR), s(S_H)))
    srd(k, S_AUX, P_WB, 512 * 3072)
    k('s_and_b32 %s, %s, 30' % (s(S_T1), s(S_H)))
    k('s_lshl_b32 %s, %s, 18' % (s(S_O0), s(S_T1)))
    k('s_lshl_b32 %s, %s, 10' % (s(S_T0), s(S_W)))
    k('s_add_u32 %s, %s, %s' % (s(S_O0), s(S_O0), s(S_T0)))
    k('s_add_u32 %s, %s, 0x%x' % (s(S_O0), s(S_O0), BX))
    k('s_add_u32 %s, %s, 0x40000' % (s(S_O1), s(S_O0)))
    k('s_mov_b32 %s, 0x1000' % s(S_OST))
    k('s_cmp_eq_u32 %s, 2' % s(S_W))
    k('s_cselect_b32 %s, 1, 2' % s(S_KIND))
    k('s_cmp_eq_u32 %s, 3' % s(S_W))
    k('s_cselect_b32 %s, 3, %s' % (s(S_KIND), s(S_KIND)))
    k('v_lshrrev_b32 %s, 2, %s' % (v(VZ), v(LANE)))
    k('v_mul_u32_u24 %s, 3072, %s' % (v(GA), v(VZ)))
    k('v_and_b32 %s, 3, %s' % (v(VT), v(LANE)))
    k('v_lshl_add_u32 %s, %s, 4, %s' % (v(GA), v(VT), v(GA)))
    k('s_min_u32 %s, %s, 2048' % (s(S_T0), s(S_T0)))
    k('s_lshl_b32 %s, %s, 5' % (s(S_T1), s(S_T1)))
    k('s_add_u32 %s, %s, %s' % (s(S_T0), s(S_T0), s(S_T1)))
    k('v_add_u32 %s, %s, %s' % (v(GA), s(S_T0), v(GA)))
    k('s_mov_b32 s5, 3072')
    k.label(LJ)
    k('s_lshl_b32 s5, s5, 4')
    k('s_mul_i32 %s, %s, %s' % (s(S_T0), s(S_PAR), s(S_OST)))
    k('s_add_u32 %s, %s, %s' % (s(S_O0), s(S_O0), s(S_T0)))
    k('s_add_u32 %s, %s, %s' % (s(S_O1), s(S_O1), s(S_T0)))
    k('s_lshl_b32 %s, %s, 1' % (s(S_OST), s(S_OST)))
    dW = lambda t, ks: ('a', (t * 16 + ks) * 4)
    k('s_lshl_b32 %s, %s, 15' % (s(S_XS), s(S_PAR)))
    k('s_mov_b32 %s, 0x20000' % s(S_XB))
    for f in x_dma(k, 'x'): f()
    if hasattr(k, 'after_x0'): k.after_x0()
    k('s_lshl_b32 s4, %s, 15' % s(S_W))
    k('v_subrev_u32 %s, %s, %s' % (v(TR), s(S_T2), v(TR)))
    k('v_add_u32 %s, s4, %s' % (v(TR), v(TR)))
    k('s_mov_b32 %s, 0' % s(S_T0))
    for i in range(32):
        k('s_add_u32 m0, s4, %d' % (i * 1024))
        k('buffer_load_dwordx4 %s, %s, %s offen lds' % (v(GA), s(S_AUX, 4), s(S_T0)), tag=('wl', i // 4))
        k('s_add_u32 %s, %s, s5' % (s(S_T0), s(S_T0)))
    if after_issue: after_issue()
    for b in range(8):
        k.wait_vm(('wl', b))
        for k2 in range(2):
            for t in range(2):
                for hh in range(2):
                    k('ds_read_b64_tr_b16 %s, %s offset:%d' % (R(dW(t, 2 * b + k2), 2 * hh, 2), v(TR), b * 4096 + (32 * k2 + 4 * hh) * 64 + 32 * t))
        if b % 2: k('s_waitcnt lgkmcnt(0)')
    k('s_cmp_ge_u32 %s, 4' % s(S_R))
    k('s_cbranch_scc1 L_pj_nokv')
    TQ = 15
    k('v_bfe_u32 %s, %s, 5, 1' % (v(VZ), v(LANE)))
    k('v_lshlrev_b32 %s, 4, %s' % (v(TQ), v(VZ)))
    for (bit, sh) in ((4, 2), (3, 3), (2, 0)):
        k('v_bfe_u32 %s, %s, %d, 1' % (v(VZ), v(LANE), bit))
        k('v_lshl_add_u32 %s, %s, %d, %s' % (v(TQ), v(VZ), sh, v(TQ)))
    k('v_and_b32 %s, 3, %s' % (v(VT), v(LANE)))
    k('v_lshlrev_b32 %s, 6, %s' % (v(TQ), v(TQ)))
    k('v_lshl_add_u32 %s, %s, 3, %s' % (v(TQ), v(VT), v(TQ)))
    k('s_lshl_b32 %s, %s, 14' % (s(S_T0), s(S_PAR)))
    k('s_add_u32 %s, %s, s4' % (s(S_T1), s(S_T0)))
    k('v_add_u32 %s, %s, %s' % (v(TQ), s(S_T1), v(TQ)))
    for ks in range(4):
        for t in range(2):
            for H in range(2):
                for Q in range(2):
                    k('ds_read_b64_tr_b16 %s, %s offset:%d' % (v(80 + (ks * 2 + t) * 8 + 4 * H + 2 * Q, 2), v(TQ), ks * 4096 + (32 * H + 2 * Q) * 64 + 32 * t))
        k('s_waitcnt lgkmcnt(0)')
    k('s_lshr_b32 %s, %s, 1' % (s(S_T1), s(S_R)))
    k('s_lshl_b32 %s, %s, 5' % (s(S_T1), s(S_T1)))
    k('s_add_u32 %s, %s, %s' % (s(S_T1), s(S_T1), s(S_H)))
    k('s_lshl_b32 %s, %s, 17' % (s(S_T1), s(S_T1)))
    k('s_add_u32 %s, %s, s4' % (s(S_T1), s(S_T1)))
    k('s_add_u32 %s, %s, %s' % (s(S_T1), s(S_T1), s(S_T0)))
    k('s_add_u32 s58, %s, 0x%x' % (s(S_T1), WKVF))
    k.label('L_pj_nokv')
    k('s_cmp_lg_u32 %s, 3' % s(S_KIND))
    k('s_cbranch_scc1 %s' % LJ2)
    srd(k, S_WQ, P_GW, 1024)
    k('v_lshrrev_b32 %s, 4, %s' % (v(GA), v(LANE)))
    k('v_lshlrev_b32 %s, 4, %s' % (v(GA), v(GA)))
    for ks in range(16):
        k('buffer_load_dwordx4 %s, %s, %s, 0 offen offset:%d' % (R(dW(0, ks), 0, 4), v(GA), s(S_WQ, 4), ks * 64))
    k.label(LJ2)
    k('s_waitcnt vmcnt(0)')
    if hasattr(k, 'stampw'): k.stampw(7)
    k('s_barrier')
    if hasattr(k, 'after_wload'): k.after_wload()
    k('s_mov_b32 %s, 0' % s(S_I))
    XR0 = 14; S_XRB = 60
    k('v_mov_b32 %s, %s' % (v(XR0), v(XR)))
    k('s_mov_b32 %s, 0x20000' % s(S_XRB))
    k('v_add_u32 %s, %s, %s' % (v(XR), s(S_XRB), v(XR0)))
    k('v_xor_b32 %s, 64, %s' % (v(XR1), v(XR)))
    for i in range(2):
        for f in x_dma(k, 'x'): f()
    ACC, XF, PKR = 16, 48, 72
    k('s_cmp_eq_u32 %s, 1' % s(S_KIND))
    k('s_cbranch_scc1 L_pj_td')
    for name in ('dt', 'td'):
        L = 'L_pj_' + name
        k.label(L)
        k.vm = []; k.lg = []
        k('s_waitcnt vmcnt(19)')
        k('s_barrier')
        dq = x_dma(k, 'x')
        def rd(ks, Ts=(0, 1)):
            for T in Ts:
                k('ds_read_b128 %s, %s offset:%d' % (v(XF + 8 * (ks % 3) + 4 * T, 4), v(XR1 if ks & 1 else XR), T * 16384 + (ks >> 1) * 2048), tag=('xf', ks))
        rd(0); rd(1)
        for ks in range(16):
            k.wait_lg(('xf', ks))
            xf = XF + 8 * (ks % 3)
            n = 0
            for T in range(2):
                for t in range(2):
                    if name == 'dt': k(mfma32(ACC + 4 * (2 * T + t), R(dW(t, ks), 0, 4), v(xf + 4 * T, 4), ks == 0))
                    else: k(mfma32(ACC + 4 * (2 * t + T), v(xf + 4 * T, 4), R(dW(t, ks), 0, 4), ks == 0))
                    if n < 2 and ks + 2 < 16: rd(ks + 2, (n,))
                    if n == 2 and dq and ks >= 7: dq.pop(0)()
                    n += 1
            if ks == 5:
                LF = k.newlabel('L_pjf')
                k('s_sub_i32 %s, %s, 1' % (s(S_T1), s(S_I)))
                k('s_cmp_gt_u32 %s, 1' % s(S_I))
                k('s_cbranch_scc1 %s' % LF)
                k('s_mov_b32 %s, %s' % (s(S_T1), s(S_I)))
                k('s_waitcnt vmcnt(0)')
                k.label(LF)
                k('s_lshl1_add_u32 %s, %s, %s' % (s(S_T1), s(S_T1), s(S_PAR)))
                k('s_waitcnt vmcnt(11)')
                set_flag(k, S_FL, s(S_T1))
        LS = k.newlabel('L_es')
        if name == 'dt':
            L2 = k.newlabel('L_e2'); L3 = k.newlabel('L_e3')
            k('s_cmp_eq_u32 %s, 2' % s(S_KIND))
            k('s_cbranch_scc1 %s' % L2)
            k('s_cmp_eq_u32 %s, 3' % s(S_KIND))
            k('s_cbranch_scc1 %s' % L3)
        for i in range(8): cvt(k, PKR + i, ACC + 2 * i, ACC + 2 * i + 1)
        k.label(LS)
        k('buffer_store_dwordx4 %s, %s, %s, %s offen sc1' % (v(PKR, 4), v(L16), s(S_WS, 4), s(S_O0)))
        k('buffer_store_dwordx4 %s, %s, %s, %s offen sc1' % (v(PKR + 4, 4), v(L16), s(S_WS, 4), s(S_O1)))
        k('s_add_u32 %s, %s, %s' % (s(S_O0), s(S_O0), s(S_OST)))
        k('s_add_u32 %s, %s, %s' % (s(S_O1), s(S_O1), s(S_OST)))
        k('s_add_u32 %s, %s, 0x8000' % (s(S_XRB), s(S_XRB)))
        k('s_cmp_eq_u32 %s, 0x%x' % (s(S_XRB), NXB * 0x8000))
        k('s_cselect_b32 %s, 0, %s' % (s(S_XRB), s(S_XRB)))
        k('v_add_u32 %s, %s, %s' % (v(XR), s(S_XRB), v(XR0)))
        k('v_xor_b32 %s, 64, %s' % (v(XR1), v(XR)))
        k('s_add_u32 %s, %s, 1' % (s(S_I), s(S_I)))
        k('s_cmp_lt_u32 %s, 32' % s(S_I))
        k('s_cbranch_scc1 %s' % L)
        k('s_branch L_pj_end')
        if name == 'dt':
            k.label(L2)
            k.flush(6)
            for t in range(2):
                for T in range(2):
                    for i in range(2):
                        cvt(k, PKR + 4 * t + 2 * T + i, ACC + 4 * (2 * T + t) + 2 * i, ACC + 4 * (2 * T + t) + 2 * i + 1)
            k('s_branch %s' % LS)
            k.label(L3)
            k.flush(6)
            P3 = PKR
            cvt(k, P3, ACC, ACC + 8)
            k('v_lshlrev_b32 %s, 16, %s' % (v(P3 + 2), v(P3)))
            k('v_and_b32 %s, 0xffff0000, %s' % (v(P3 + 3), v(P3)))
            for i in (2, 3): k('v_mul_f32 %s, 0x%x, %s' % (v(P3 + i), f2u(-math.log2(math.e)), v(P3 + i)))
            for i in (2, 3): k('v_exp_f32 %s, %s' % (v(P3 + i), v(P3 + i)))
            for i in (2, 3): k('v_add_f32 %s, 1.0, %s' % (v(P3 + i), v(P3 + i)))
            for i in (2, 3): k('v_rcp_f32 %s, %s' % (v(P3 + i), v(P3 + i)))
            cvt(k, P3 + 1, P3 + 2, P3 + 3)
            k('v_lshlrev_b32 %s, 16, %s' % (v(P3), v(P3 + 1)))
            k('v_and_b32 %s, 0xffff0000, %s' % (v(P3 + 1), v(P3 + 1)))
            k('v_sub_f32 %s, 1.0, %s' % (v(P3 + 2), v(P3)))
            k('v_sub_f32 %s, 1.0, %s' % (v(P3 + 3), v(P3 + 1)))
            cvt(k, P3 + 3, P3 + 2, P3 + 3)
            k('v_lshlrev_b32 %s, 16, %s' % (v(P3 + 2), v(P3 + 3)))
            k('v_and_b32 %s, 0xffff0000, %s' % (v(P3 + 3), v(P3 + 3)))
            for i in range(4): k('v_mov_b32 %s, %s' % (v(P3 + 4 + i), v(P3 + i)))
            k('s_branch %s' % LS)
    k.label('L_pj_end')
    k('s_cmp_ge_u32 %s, 4' % s(S_R))
    k('s_cbranch_scc1 L_pj_end2')
    for i in range(16):
        k('buffer_store_dwordx4 %s, %s, %s, s58 offen offset:%d sc1' % (v(80 + 4 * i, 4), v(L16), s(S_WS, 4), 1024 * (i & 3)))
        if i & 3 == 3: k('s_add_u32 s58, s58, 4096')
    k.label('L_pj_end2')
    k('s_waitcnt vmcnt(0)')
    set_flag(k, S_FL, '64')
    k('s_cmp_eq_u32 %s, 0' % s(S_R))
    k('s_cselect_b32 %s, 10, 9' % s(S_NSEG))

def diag_masks(k):
    k('v_lshrrev_b32 %s, 4, %s' % (v(VZ), v(LANE)))
    k('v_lshlrev_b32 %s, 2, %s' % (v(VZ), v(VZ)))
    k('v_and_b32 %s, 15, %s' % (v(VT), v(LANE)))
    k('v_sub_u32 %s, %s, %s' % (v(VT), v(VT), v(VZ)))
    for j in range(4):
        k('v_cmp_le_i32 %s, %d, %s' % (s(S_M + 2 * j, 2), j, v(VT)))

def xreduce(k, op, X, T):
    for sw in ('v_permlane16_swap_b32', 'v_permlane32_swap_b32'):
        k('v_mov_b32 %s, %s' % (v(T), v(X)))
        k('%s %s, %s' % (sw, v(X), v(T)))
        k('%s %s, %s, %s' % (op, v(X), v(X), v(T)))

def round_bf16(k, regs, T):
    for i in range(0, len(regs), 2):
        x, y = regs[i], regs[i + 1]
        cvt(k, y, x, y)
        k('v_lshlrev_b32 %s, 16, %s' % (v(x), v(y)))
        k('v_and_b32 %s, 0xffff0000, %s' % (v(y), v(y)))

def battn(k, waitflags=True, pre=None, post=None):
    k.c('===== B-branch sliding window attention =====')
    if waitflags:
        k('s_and_b32 %s, %s, 30' % (s(S_T3), s(S_H)))
        k('s_lshl_b32 %s, %s, 9' % (s(S_T3), s(S_T3)))
        k('s_add_u32 %s, %s, 0x%x' % (s(S_T3), s(S_T3), F_KV + 96))
        poll_flags(k, S_T3, 8, '64', 'd2', stride=128)
    diag_masks(k)
    QB, KB, VB, SC, NEG, MX, TT, LSUM, OO = 8, 12, 48, 84, 228, 230, 232, 234, 236
    def sc(j, kt, T): return SC + 4 * ((j * 2 + kt) * 2 + T)
    k('v_mov_b32 %s, 0xff800000' % v(NEG))
    k('s_mov_b32 %s, %s' % (s(S_I), s(S_W)))
    LOOP = 'L_ba_loop'; END = 'L_ba_end'
    S_RND = 61
    k('s_mov_b32 %s, 0' % s(S_RND))
    def dispatch(fns, name):
        if not fns: return
        J = 'L_ba_%s_j' % name
        for r, f in enumerate(fns):
            if r < len(fns) - 1:
                k('s_cmp_lg_u32 %s, %d' % (s(S_RND), r))
                k('s_cbranch_scc1 L_ba_%s_%d' % (name, r + 1))
            f()
            if r < len(fns) - 1:
                k('s_branch %s' % J)
                k.label('L_ba_%s_%d' % (name, r + 1))
        k.label(J)
    k.label(LOOP)
    k('s_cmp_ge_u32 %s, %s' % (s(S_I), s(S_NSEG)))
    k('s_cbranch_scc1 L_ba_nl')
    k('s_mul_i32 %s, %s, 7' % (s(S_SEG), s(S_I)))
    k('s_add_u32 %s, %s, %s' % (s(S_SEG), s(S_SEG), s(S_R)))
    k.vm = []
    k('s_lshl_b32 %s, %s, 18' % (s(S_T3), s(S_H)))
    k('s_add_u32 %s, %s, 0x%x' % (s(S_T3), s(S_T3), BX))
    k('s_lshl_b32 %s, %s, 12' % (s(S_T0), s(S_SEG)))
    k('s_add_u32 %s, %s, %s' % (s(S_T0), s(S_T0), s(S_T3)))
    k('buffer_load_dwordx4 %s, %s, %s, %s offen sc1' % (v(QB, 4), v(L16), s(S_WS, 4), s(S_T0)), tag='q')
    for j in range(9):
        k('s_sub_i32 %s, %s, %d' % (s(S_T0), s(S_SEG), 8 - j))
        k('s_max_i32 %s, %s, 0' % (s(S_T0), s(S_T0)))
        k('s_lshl_b32 %s, %s, 12' % (s(S_T0), s(S_T0)))
        k('s_add_u32 %s, %s, %s' % (s(S_T0), s(S_T0), s(S_T3)))
        k('buffer_load_dwordx4 %s, %s, %s, %s offen offset:1024 sc1' % (v(KB + 4 * j, 4), v(L16), s(S_WS, 4), s(S_T0)), tag=('k', j))
        k('buffer_load_dwordx4 %s, %s, %s, %s offen offset:2048 sc1' % (v(VB + 4 * j, 4), v(L16), s(S_WS, 4), s(S_T0)), tag=('v', j))
    k.label('L_ba_nl')
    dispatch(pre, 'pre')
    k('s_cmp_ge_u32 %s, %s' % (s(S_I), s(S_NSEG)))
    k('s_cbranch_scc1 L_ba_only')
    dead = {(0, 0, 1), (8, 1, 0)}
    for j in range(9):
        k.wait_vm(('k', j))
        for kt in range(2):
            for T in range(2):
                if (j, kt, T) in dead: continue
                k('v_mfma_f32_16x16x16_bf16 %s, %s, %s, 0' % (v(sc(j, kt, T), 4), v(KB + 4 * j + 2 * kt, 2), v(QB + 2 * T, 2)))
    k.flush(9)
    for T in range(2):
        for jj in range(4):
            k('v_cndmask_b32 %s, %s, %s, %s' % (v(sc(8, T, T) + jj), v(NEG), v(sc(8, T, T) + jj), s(S_M + 2 * jj, 2)))
            k('v_cndmask_b32 %s, %s, %s, %s' % (v(sc(0, T, T) + jj), v(sc(0, T, T) + jj), v(NEG), s(S_M + 2 * jj, 2)))
    LV = k.newlabel('L_ba_valid')
    for j in range(8):
        k('s_cmp_ge_u32 %s, %d' % (s(S_SEG), 8 - j))
        k('s_cbranch_scc1 %s' % LV)
        for r in range(16):
            k('v_mov_b32 %s, %s' % (v(sc(j, 0, 0) + r), v(NEG)))
    k.label(LV)
    c = 0.25 * math.log2(math.e)
    k('s_mov_b32 %s, 0x%x' % (s(S_T4), f2u(c)))
    if pre: k.sprinkle = [28, k.pb_dma, 28, 32]
    for T in range(2):
        regs = [sc(j, kt, T) + r for j in range(9) for kt in range(2) if (j, kt, T) not in dead for r in range(4)]
        round_bf16(k, regs, TT)
        k('v_max3_f32 %s, %s, %s, %s' % (v(MX), v(regs[0]), v(regs[1]), v(regs[2])))
        k('v_max3_f32 %s, %s, %s, %s' % (v(MX + 1), v(regs[3]), v(regs[4]), v(regs[5])))
        rest = regs[6:]
        for i in range(0, len(rest), 2):
            m = MX + ((i >> 1) & 1)
            k('v_max3_f32 %s, %s, %s, %s' % (v(m), v(m), v(rest[i]), v(rest[i + 1])))
        k('v_max_f32 %s, %s, %s' % (v(MX), v(MX), v(MX + 1)))
        xreduce(k, 'v_max_f32', MX, TT)
        k('v_mul_f32 %s, %s, %s' % (v(MX), s(S_T4), v(MX)))
        for r in regs: k('v_fma_f32 %s, %s, %s, -%s' % (v(r), v(r), s(S_T4), v(MX)))
        for r in regs: k('v_exp_f32 %s, %s' % (v(r), v(r)))
        k('v_add_f32 %s, %s, %s' % (v(LSUM), v(regs[0]), v(regs[1])))
        k('v_add_f32 %s, %s, %s' % (v(LSUM + 1), v(regs[2]), v(regs[3])))
        for i, r in enumerate(regs[4:]):
            m = LSUM + (i & 1)
            k('v_add_f32 %s, %s, %s' % (v(m), v(m), v(r)))
        k('v_add_f32 %s, %s, %s' % (v(LSUM), v(LSUM), v(LSUM + 1)))
        xreduce(k, 'v_add_f32', LSUM, TT)
        k('v_rcp_f32 %s, %s' % (v(LSUM), v(LSUM)))
        for r in regs: k('v_mul_f32 %s, %s, %s' % (v(r), v(r), v(LSUM)))
        for j in range(9):
            d = sc(j, 0, T)
            for kt in range(2):
                if (j, kt, T) in dead:
                    k('v_mov_b32 %s, 0' % v(d + 2 * kt)); k('v_mov_b32 %s, 0' % v(d + 2 * kt + 1))
                else:
                    b = sc(j, kt, T)
                    cvt(k, d + 2 * kt, b, b + 1); cvt(k, d + 2 * kt + 1, b + 2, b + 3)
        if T == 0: k.wait_vm(('v', 8))
        for j in range(9):
            k(mfma32(OO + 4 * T, v(VB + 4 * j, 4), v(sc(j, 0, T), 4), j == 0))
    if pre:
        assert k.sprinkle[3] == 0, k.sprinkle
        k.sprinkle = None
    for i in range(4): cvt(k, QB + i, OO + 2 * i, OO + 2 * i + 1)
    k('s_lshl_b32 %s, %s, 15' % (s(S_T0), s(S_SEG)))
    k('s_lshr_b32 %s, %s, 1' % (s(S_T1), s(S_H)))
    k('s_lshl_b32 %s, %s, 10' % (s(S_T1), s(S_T1)))
    k('s_add_u32 %s, %s, %s' % (s(S_T0), s(S_T0), s(S_T1)))
    k('s_and_b32 %s, %s, 1' % (s(S_T1), s(S_H)))
    k('s_lshl_b32 %s, %s, 3' % (s(S_T1), s(S_T1)))
    k('s_add_u32 %s, %s, %s' % (s(S_T0), s(S_T0), s(S_T1)))
    k('s_add_u32 %s, %s, 0x%x' % (s(S_T0), s(S_T0), OB))
    k('s_add_u32 %s, %s, 16384' % (s(S_T1), s(S_T0)))
    k('buffer_store_dwordx2 %s, %s, %s, %s offen sc1' % (v(QB, 2), v(L16), s(S_WS, 4), s(S_T0)))
    k('buffer_store_dwordx2 %s, %s, %s, %s offen sc1' % (v(QB + 2, 2), v(L16), s(S_WS, 4), s(S_T1)))
    k('s_branch L_ba_skip')
    k.label('L_ba_only')
    if pre:
        k('s_mov_b32 %s, 32' % s(S_T1))
        k.label('L_ba_dl')
        k.pb_dma()
        k('s_sub_u32 %s, %s, 1' % (s(S_T1), s(S_T1)))
        k('s_cmp_lg_u32 %s, 0' % s(S_T1))
        k('s_cbranch_scc1 L_ba_dl')
    k.label('L_ba_skip')
    k('s_add_u32 %s, %s, 4' % (s(S_I), s(S_I)))
    k('s_waitcnt vmcnt(0)')
    dispatch(post, 'post')
    k('s_add_u32 %s, %s, 1' % (s(S_RND), s(S_RND)))
    k('s_cmp_lt_u32 %s, 3' % s(S_RND))
    k('s_cbranch_scc1 %s' % LOOP)
    k.label(END)
    k('s_barrier')
    k('s_lshl_b32 %s, %s, 3' % (s(S_FL), s(S_H)))
    k('s_add_u32 %s, %s, %s' % (s(S_FL), s(S_FL), s(S_R)))
    k('s_lshl_b32 %s, %s, 2' % (s(S_FL), s(S_FL)))
    k('s_add_u32 %s, %s, 0x%x' % (s(S_FL), s(S_FL), F_D3))
    set_flag(k, S_FL, '1')


PB_GO, PB_TR, PB_GQ, PB_TRQ, PB_GB = 2, 3, 4, 5, 244
WOV, WBF, ACC, MEMF, AKV, QF, KF, VF, SX, BV, T8, SELT, IDX, NEG, MX, TT, LS = 16, 112, 128, 160, 192, 208, 212, 220, 228, 236, 240, 248, 250, 251, 252, 253, 254
S_STG = 63
wof = lambda dt, kk: (WOV + (dt * 4 + kk) * 4) if dt < 6 else (MEMF + ((dt - 6) * 4 + kk) * 4)
wkv = lambda m, ks, t: ((m * 8 + ks) * 2 + t) * 8

def pb_loader(k):
    S_LS, S_LST, S_LR = 58, 59, S_WK
    PB_GA = 245
    srd(k, S_AUX, P_WOB, 512 * 1024)
    k('s_barrier')
    k('s_mul_i32 %s, %s, 40960' % (s(S_STG), s(S_W)))
    if k.pb_wait: k.pb_init()
    S_LM = S_XB
    if k.pb_wait:
        k('s_lshl_b32 %s, %s, 9' % (s(S_T3), s(S_TK)))
        k('s_add_u32 %s, %s, 0x%x' % (s(S_T3), s(S_T3), F_KV))
        poll_flags(k, S_T3, 32, '64', 'wkv', stride=16, mask=0x0f0f0f0f)
    k('v_lshrrev_b32 %s, 2, %s' % (v(VZ), v(LANE)))
    k('v_and_b32 %s, 3, %s' % (v(VT), v(LANE)))
    k('v_mul_u32_u24 %s, 1056, %s' % (v(PB_TR), v(VZ)))
    k('v_lshl_add_u32 %s, %s, 3, %s' % (v(PB_TR), v(VT), v(PB_TR)))
    k('s_lshl_b32 %s, %s, 8' % (s(S_T1), s(S_W)))
    k('v_add_u32 %s, %s, %s' % (v(PB_TR), s(S_T1), v(PB_TR)))
    k('v_add_u32 %s, %s, %s' % (v(PB_TRQ), s(S_STG), v(L16)))
    k('v_lshrrev_b32 %s, 1, %s' % (v(VZ), v(LANE)))
    k('v_lshlrev_b32 %s, 10, %s' % (v(PB_GB), v(VZ)))
    k('v_and_b32 %s, 1, %s' % (v(VT), v(LANE)))
    k('v_lshl_add_u32 %s, %s, 4, %s' % (v(PB_GB), v(VT), v(PB_GB)))
    k('s_lshl_b32 %s, %s, 17' % (s(S_T0), s(S_W)))
    k('s_lshl_b32 %s, %s, 5' % (s(S_T1), s(S_TK)))
    k('s_add_u32 %s, %s, %s' % (s(S_T0), s(S_T0), s(S_T1)))
    k('v_add_u32 %s, %s, %s' % (v(PB_GB), s(S_T0), v(PB_GB)))
    for i in range(4):
        k('s_mov_b32 %s, %d' % (s(S_T0), 32 * i * 1024))
        k('s_add_u32 m0, %s, %d' % (s(S_STG), 36864 + i * 1024))
        k('buffer_load_dwordx4 %s, %s, %s offen lds' % (v(PB_GB), s(S_AUX, 4), s(S_T0)))
    def pb_dma():
        if k.pb_lim: k('s_waitcnt vmcnt(%d)' % (k.pb_lim - 1))
        k('buffer_load_dwordx4 %s, %s, %s offen sc1 lds' % (v(L16), s(S_LR, 4), s(S_LS)))
        k('s_add_u32 m0, m0, %s' % s(S_LM))
        k('s_add_u32 %s, %s, 1024' % (s(S_LS), s(S_LS)))
    k.pb_dma = pb_dma
    def pre(m):
        def f():
            k('s_lshl_b32 %s, %s, 2' % (s(S_LS), s(S_TK)))
            k('s_add_u32 %s, %s, %s' % (s(S_LS), s(S_LS), s(S_W)))
            k('s_lshl_b32 %s, %s, 15' % (s(S_LS), s(S_LS)))
            if m < 2:
                srd(k, S_LR, P_WS, WS_BYTES)
                k('s_add_u32 %s, %s, 0x%x' % (s(S_LS), s(S_LS), WKVF + m * 0x400000))
            else:
                srd(k, S_LR, P_WO, 4 << 20)
            k('s_mov_b32 %s, %d' % (s(S_LM), 1024 if m < 2 else 1056))
            k('s_mov_b32 m0, %s' % s(S_STG))
        return f
    def post_kv(m):
        def f():
            for i in range(32):
                k('ds_read_b128 %s, %s offset:%d' % (a(128 * m + 4 * i, 4), v(PB_TRQ), i * 1024))
                if i % 8 == 7: k('s_waitcnt lgkmcnt(0)')
        return f
    def final():
        k('s_barrier')
        k('v_add_u32 %s, %d, %s' % (v(PB_GO), 2 * 40960, v(PB_TR)))
        for dt in range(8):
            for kk in range(4):
                for hh in range(2):
                    k('ds_read_b64_tr_b16 %s, %s offset:%d' % (v(wof(dt, kk) + 2 * hh, 2), v(PB_GO if kk >= 2 else PB_TR), (kk & 1) * 40960 + 16 * hh * 1056 + dt * 32))
            k('s_waitcnt lgkmcnt(0)')
        k('v_lshlrev_b32 %s, 3, %s' % (v(VZ), v(LANE)))
        k('v_add_u32 %s, %s, %s' % (v(VZ), s(S_STG), v(VZ)))
        for hb in range(8):
            k('ds_read_b64_tr_b16 %s, %s offset:%d' % (v(WBF + 2 * hb, 2), v(VZ), 36864 + hb * 512))
        k('s_waitcnt lgkmcnt(0)')
    return [pre(0), pre(1), pre(2)], [post_kv(0), post_kv(1), lambda: None], final

def phaseB(k, waitflags=True, opt={}):
    k.c('===== phase B =====')
    srd(k, S_OUT, P_OUT, 2 << 20)
    k('s_barrier')
    PFA, ST, OA, LW2, LW1, MEMA, MEMO, HOME = 8, 9, 10, 11, 12, 13, 14, 15
    BRA, GRA, L8, IDXR = 2, 3, 4, 5
    SELR = 244
    L_SMX, L_OX, L_HOME, L_BX = 16384, 20480, 32768, 8192
    S_PF = S_T2
    k('s_mul_i32 %s, %s, 12288' % (s(S_PF), s(S_W)))
    k('s_add_u32 %s, %s, 65536' % (s(S_PF), s(S_PF)))
    k('s_lshl_b32 %s, %s, 13' % (s(S_T0), s(S_W)))
    k('v_add_u32 %s, %s, %s' % (v(HOME), s(S_T0), v(L16)))
    k('s_lshl_b32 %s, %s, 11' % (s(S_T0), s(S_W)))
    k('v_add_u32 %s, %s, %s' % (v(LW2), s(S_T0), v(L16)))
    k('s_lshl_b32 %s, %s, 10' % (s(S_T0), s(S_W)))
    k('v_add_u32 %s, %s, %s' % (v(LW1), s(S_T0), v(L16)))
    for i in range(8):
        k('ds_write_b128 %s, %s offset:%d' % (v(HOME), v(MEMF + 4 * i, 4), L_HOME + 1024 * i))
    diag_masks(k)
    k('v_and_b32 %s, 15, %s' % (v(VT), v(LANE)))
    k('v_lshrrev_b32 %s, 4, %s' % (v(VZ), v(LANE)))
    k('v_cmp_gt_u32 vcc, 8, %s' % v(VT))
    k('v_mov_b32 %s, 0xeeee' % v(IDX))
    k('v_mov_b32 %s, 0x4444' % v(TT))
    k('v_cndmask_b32 %s, %s, %s, vcc' % (v(IDX), v(IDX), v(TT)))
    k('v_lshlrev_b32 %s, 3, %s' % (v(ST), v(VT)))
    k('v_lshl_add_u32 %s, %s, 12, %s' % (v(ST), v(VZ), v(ST)))
    k('v_and_b32 %s, 7, %s' % (v(MX), v(LANE)))
    k('v_lshrrev_b32 %s, 5, %s' % (v(TT), v(LANE)))
    k('v_lshl_add_u32 %s, %s, 1, %s' % (v(MX), v(MX), v(TT)))
    k('v_and_b32 %s, 1, %s' % (v(TT), v(VZ)))
    k('v_lshlrev_b32 %s, 10, %s' % (v(OA), v(MX)))
    k('v_lshl_add_u32 %s, %s, 2, %s' % (v(OA), v(TT), v(OA)))
    k('s_lshl_b32 %s, %s, 5' % (s(S_T0), s(S_H)))
    k('s_lshl_b32 %s, %s, 3' % (s(S_T1), s(S_W)))
    k('s_add_u32 %s, %s, %s' % (s(S_T0), s(S_T0), s(S_T1)))
    k('v_add_u32 %s, %s, %s' % (v(OA), s(S_T0), v(OA)))
    k('v_bfrev_b32 %s, 1' % v(LS))
    k('v_cndmask_b32 %s, %s, %s, vcc' % (v(OA), v(LS), v(OA)))
    k('v_lshlrev_b32 %s, 4, %s' % (v(GRA), v(MX)))
    k('v_lshl_add_u32 %s, %s, 3, %s' % (v(BRA), v(TT), v(GRA)))
    k('v_add_u32 %s, %s, %s' % (v(GRA), s(S_PF), v(GRA)))
    k('s_lshl_b32 %s, %s, 8' % (s(S_T0), s(S_W)))
    k('s_add_u32 %s, %s, %d' % (s(S_T0), s(S_T0), L_BX))
    k('v_add_u32 %s, %s, %s' % (v(BRA), s(S_T0), v(BRA)))
    k('v_add_u32 %s, %d, %s' % (v(L8), L_BX, v(LW1)))
    k('v_mov_b32 %s, 0x3f80' % v(MX))
    k('v_and_b32 %s, 2, %s' % (v(TT), v(VT)))
    k('v_cmp_eq_u32 s[4:5], 0, %s' % v(TT))
    k('v_mov_b32 %s, 0' % v(LS))
    k('v_cndmask_b32 %s, %s, %s, s[4:5]' % (v(TT), v(LS), v(MX)))
    k('v_cndmask_b32 %s, %s, %s, vcc' % (v(SELR), v(LS), v(TT)))
    k('v_cndmask_b32 %s, %s, %s, vcc' % (v(SELR + 1), v(TT), v(LS)))
    k('v_mov_b32 %s, %s' % (v(SELR + 2), v(SELR)))
    k('v_mov_b32 %s, %s' % (v(SELR + 3), v(SELR + 1)))
    k('v_bfe_u32 %s, %s, 2, 1' % (v(TT), v(VT)))
    k('v_and_b32 %s, 1, %s' % (v(LS), v(VT)))
    k('v_lshl_add_u32 %s, %s, 1, %s' % (v(TT), v(TT), v(LS)))
    k('v_xor_b32 %s, 1, %s' % (v(LS), v(TT)))
    k('v_lshl_add_u32 %s, %s, 2, %s' % (v(TT), v(LS), v(TT)))
    k('v_mul_u32_u24 %s, 0x1111, %s' % (v(IDXR), v(TT)))
    k('v_and_b32 %s, 1, %s' % (v(VZ), v(VZ)))
    k('v_lshlrev_b32 %s, 2, %s' % (v(VZ), v(VZ)))
    k('v_and_b32 %s, 7, %s' % (v(VT), v(LANE)))
    k('v_sub_u32 %s, %s, %s' % (v(VT), v(VT), v(VZ)))
    k('v_mov_b32 %s, 0x3f800000' % v(TT))
    for r in range(2):
        k('v_mov_b32 %s, 0' % v(SELT + r))
        k('v_cmp_eq_u32 vcc, %d, %s' % (2 * r, v(VT)))
        k('v_cndmask_b32 %s, %s, %s, vcc' % (v(SELT + r), v(SELT + r), v(MX)))
        k('v_cmp_eq_u32 vcc, %d, %s' % (2 * r + 1, v(VT)))
        k('v_cndmask_b32 %s, %s, %s, vcc' % (v(SELT + r), v(SELT + r), v(TT)))
    k('v_mov_b32 %s, 0xff800000' % v(NEG))
    if waitflags:
        for r in range(4):
            k('s_mov_b32 %s, 0x%x' % (s(S_T3), F_D3 + 256 * r))
            poll_flags(k, S_T3, 64, '1', 'd3', skip7=True)
    S_PBW, S_PBR, S_U, S_T, S_TG = S_XS, S_XB, S_R, S_NSEG, S_FL
    k('s_lshl_b32 %s, %s, 20' % (s(S_T0), s(S_GRP)))
    k('s_add_u32 %s, %s, 0x%x' % (s(S_T0), s(S_T0), PB))
    k('s_lshl_b32 %s, %s, 17' % (s(S_PBW), s(S_W)))
    k('s_add_u32 %s, %s, %s' % (s(S_PBW), s(S_PBW), s(S_T0)))
    k('s_lshl_b32 %s, %s, 7' % (s(S_T1), s(S_H)))
    k('s_add_u32 %s, %s, %s' % (s(S_PBW), s(S_PBW), s(S_T1)))
    k('s_lshl_b32 %s, %s, 14' % (s(S_PBR), s(S_H)))
    k('s_add_u32 %s, %s, %s' % (s(S_PBR), s(S_PBR), s(S_T0)))
    k('s_lshl_b32 %s, %s, 12' % (s(S_T1), s(S_W)))
    k('s_add_u32 %s, %s, %s' % (s(S_PBR), s(S_PBR), s(S_T1)))
    k('s_mov_b32 %s, 0' % s(S_I))
    k('s_sub_u32 %s, %s, 1' % (s(S_U), s(S_GRP)))
    k('s_mov_b32 %s, 0x%x' % (s(S_T4), f2u(128 ** -0.5)))
    S_SC, S_L2 = 84, 86
    for i in range(2):
        k('s_mov_b32 %s, 0x%x' % (s(S_SC + i), f2u(128 ** -0.5)))
        k('s_mov_b32 %s, 0x%x' % (s(S_L2 + i), f2u(math.log2(math.e))))
    def mf16(d, A, B, C=None): k('v_mfma_f32_16x16x16_bf16 %s, %s, %s, %s' % (v(d, 4), v(A, 2), v(B, 2), '0' if C is None else v(C, 4)))
    def rnd2(regs):
        round_bf16(k, regs, TT)
        for r in regs: k('v_mul_f32 %s, %s, %s' % (v(r), s(S_T4), v(r)))
        round_bf16(k, regs, TT)
    def add(d, x, y): k('v_add_f32 %s, %s, %s' % (v(d), v(x), v(y)))
    ld = lambda d, so, off, tag: k('buffer_load_dwordx4 %s, %s, %s, %s offen offset:%d sc1' % (v(d, 4), v(L16), s(S_WS, 4), s(so), off), tag=tag)
    S_MB = 60
    k('v_add_u32 %s, %s, %s' % (v(PFA), s(S_PF), v(L16)))
    k('v_mov_b32 %s, %s' % (v(MEMO), v(LW2)))
    k('v_mov_b32 %s, %s' % (v(MEMA), v(L16)))
    dma = lambda so, off, fl='sc1': k('buffer_load_dwordx4 %s, %s, %s offen offset:%d %s lds' % (v(L16), s(S_WS, 4), s(so), off, fl))
    def prefetch(su, mb):
        T = []
        def grp(pre, n, fl='sc1'):
            for i in range(n):
                def f(i=i):
                    if i == 0: k(pre)
                    k('buffer_load_dwordx4 %s, %s, s6 offen offset:%d %s lds' % (v(L16), s(S_WS, 4), 1024 * i, fl))
                T.append(f)
        d = dict(su=s(su), h=s(S_H), w=s(S_W), pf=s(S_PF), mb=s(mb), QX=QX, BX=BX + 3072, OB=OB, MX=MEMX)
        grp('s_lshr_b32 s4, %(su)s, 1\ns_lshl_b32 s5, %(h)s, 6\ns_add_u32 s5, s5, s4\ns_lshl_b32 s7, s5, 2\ns_add_u32 s7, s7, %(w)s\ns_lshl_b32 s6, s7, 12\ns_mov_b32 m0, %(pf)s' % d, 4)
        grp('s_and_b32 s6, %(su)s, 1\ns_lshl1_add_u32 s6, s7, s6\ns_lshl_b32 s6, s6, 10\ns_add_u32 s6, s6, 0x%(QX)x\ns_add_u32 m0, %(pf)s, 4096' % d, 1)
        grp('s_lshl_b32 s6, s5, 12\ns_add_u32 s6, s6, 0x%(BX)x\ns_add_u32 m0, %(pf)s, 5120' % d, 1)
        grp('s_lshl_b32 s6, %(su)s, 2\ns_add_u32 s6, s6, %(w)s\ns_lshl_b32 s6, s6, 12\ns_add_u32 s6, s6, 0x%(OB)x\ns_add_u32 m0, %(pf)s, 6144' % d, 4)
        grp('s_lshl_b32 s6, s4, 13\ns_lshl_b32 s7, %(w)s, 11\ns_add_u32 s6, s6, s7\ns_add_u32 s6, s6, 0x%(MX)x\ns_add_u32 m0, s7, %(mb)s' % d, 2)
        return T
    PFG = LW2
    k('v_add_u32 %s, 0x10000, %s' % (v(PFG), v(L16)))
    S_PD = 62
    k('s_mov_b32 %s, 49152' % s(S_PD))
    k('s_mov_b32 s61, %s' % s(S_PBR))
    k('s_mov_b32 %s, 0' % s(S_MB))
    for f in prefetch(S_U, S_MB): f()
    RA = ACC + 16; RR = AKV; S_RT, S_RO, S_RR = 58, 59, 61
    def reduce(name, issued=False):
        k('v_mov_b64 %s, 0' % v(RA, 2)); k('v_mov_b64 %s, 0' % v(RA + 2, 2))
        k('s_mov_b32 %s, %d' % (s(S_SPIN), SPIN_MAX))
        if issued: k('s_branch L_pb_w' + name)
        k('s_mov_b64 vcc, -1')
        k.label('L_pb_r' + name)
        k('s_mov_b64 exec, vcc')
        for i in range(4): ld(RR + 4 * i, S_RR, i * 1024, None)
        k('s_sub_u32 %s, %s, 1' % (s(S_SPIN), s(S_SPIN)))
        k('s_cbranch_scc1 %s' % FAIL)
        k.label('L_pb_w' + name)
        k('s_waitcnt vmcnt(0)')
        for i in range(4): k('v_bitop3_b32 %s, %s, %s, %s bitop3:0x7e' % (v(RA + 4 + i), v(RR + 4 * i), v(RR + 4 * i + 2), s(S_RT)))
        k('v_or3_b32 %s, %s, %s, %s' % (v(RA + 4), v(RA + 4), v(RA + 5), v(RA + 6)))
        k('v_bitop3_b32 %s, %s, %s, 1 bitop3:0xa8' % (v(RA + 4), v(RA + 4), v(RA + 7)))
        k('v_cmp_ne_u32 vcc, 0, %s' % v(RA + 4))
        k('s_cbranch_vccnz L_pb_r' + name)
        k('s_mov_b64 exec, -1')
        for i in range(2): k('v_smfmac_f32_16x16x64_bf16 %s, %s, %s, %s' % (v(RA, 4), v(SELR, 4), v(RR + 8 * i, 8), v(IDXR)))
        for j in range(2): k('v_add_f32_dpp %s, %s, %s row_ror:8 row_mask:0xf bank_mask:0xf' % (v(RA + j), v(RA + j), v(RA + j)))
        round_bf16(k, [RA, RA + 1], TT)
        for j in range(2): k('v_mul_f32 %s, %s, %s' % (v(RA + j), v(RA + j), v(BV + 2)))
        round_bf16(k, [RA, RA + 1], TT)
        for j in range(2): add(RA + j, RA + j, BV + j)
        cvt(k, RA, RA, RA + 1)
        k('buffer_store_dword %s, %s, %s, %s offen' % (v(RA), v(OA), s(S_OUT, 4), s(S_RO)))
    npt = [0]
    def PT():
        if opt.get('pbprof'):
            i = npt[0]; npt[0] += 1
            k.raw('  s_memtime s[64:65]\n  s_waitcnt lgkmcnt(0)\n  s_sub_u32 s67, s64, s66\n  s_add_u32 s%d, s%d, s67\n  s_mov_b32 s66, s64' % (70 + i, 70 + i))
    if opt.get('pbprof'):
        for i in range(12): k('s_mov_b32 s%d, 0' % (70 + i))
        k.raw('  s_memtime s[64:65]\n  s_waitcnt lgkmcnt(0)\n  s_mov_b32 s66, s64')
    k('s_waitcnt vmcnt(0) lgkmcnt(0)')
    LOOP = 'L_pb_loop'
    k.label(LOOP)
    k('s_waitcnt vmcnt(%d)' % 8)
    k('s_barrier')
    k.vm = []; k.lg = []
    OBF = ACC
    QA = MEMF
    for w_ in range(4): k('ds_read_b128 %s, %s offset:%d' % (v(QA + 4 * w_, 4), v(PFG), w_ * 12288 + 4096), tag=('qa', w_))
    def KR(w_):
        for kt in range(2): k('ds_read_b128 %s, %s offset:%d' % (v(MEMF + 16 + 8 * (w_ & 1) + 4 * kt, 4), v(PFG), w_ * 12288 + 1024 * kt), tag=('ka', w_))
    KR(0); KR(1)
    k('s_lshr_b32 %s, %s, 1' % (s(S_SEG), s(S_U)))
    k('s_and_b32 %s, %s, 1' % (s(S_T), s(S_U)))
    k('s_bfe_u32 %s, %s, 0x10001' % (s(S_TG), s(S_I)))
    for w_ in range(4):
        k.wait_lg(('ka', w_))
        for kt in range(2): k(mfma32(SX + 4 * kt, v(MEMF + 16 + 8 * (w_ & 1) + 4 * kt, 4), v(QA + 4 * w_, 4), w_ == 0))
        if w_ < 2: KR(w_ + 2)
        else:
            for i in range(2): k('ds_read_b128 %s, %s offset:%d' % (v(OBF + 8 * (w_ - 2) + 4 * i, 4), v(PFA), 6144 + 2048 * (w_ - 2) + 1024 * i), tag=('ob', w_ - 2))
    k('ds_read_b128 %s, %s offset:4096' % (v(QF, 4), v(PFA)))
    for i in range(2): k('ds_read_b128 %s, %s offset:%d' % (v(VF + 4 * i, 4), v(PFA), 2048 + 1024 * i))
    for i in range(4):
        k.wait_lg(('ob', i >> 1))
        k(mfma32(T8, v(WBF + 4 * i, 4), v(OBF + 4 * i, 4), i == 0))
        ld(RR + 4 * i, S_RR, i * 1024, None)
    rnd2([SX + i for i in range(8)])
    k('ds_write_b128 %s, %s' % (v(L8), v(T8, 4)))
    LT1 = k.newlabel('L_pb_t1'); LTJ = k.newlabel('L_pb_tj')
    k('s_cmp_eq_u32 %s, 1' % s(S_T))
    k('s_cbranch_scc1 %s' % LT1)
    for jj in range(4):
        k('v_cndmask_b32 %s, %s, %s, %s' % (v(SX + jj), v(NEG), v(SX + jj), s(S_M + 2 * jj, 2)))
        k('v_mov_b32 %s, %s' % (v(SX + 4 + jj), v(NEG)))
    k('s_branch %s' % LTJ)
    k.label(LT1)
    for jj in range(4):
        k('v_cndmask_b32 %s, %s, %s, %s' % (v(SX + 4 + jj), v(NEG), v(SX + 4 + jj), s(S_M + 2 * jj, 2)))
    k.label(LTJ)
    XM = VT
    k('v_max3_f32 %s, %s, %s, %s' % (v(XM), v(SX), v(SX + 1), v(SX + 2)))
    k('v_max3_f32 %s, %s, %s, %s' % (v(TT), v(SX + 3), v(SX + 4), v(SX + 5)))
    k('v_max3_f32 %s, %s, %s, %s' % (v(XM), v(XM), v(SX + 6), v(SX + 7)))
    k('v_max_f32 %s, %s, %s' % (v(XM), v(XM), v(TT)))
    xreduce(k, 'v_max_f32', XM, TT)
    PL = 'L_pb_poll'
    def memchk():
        k('ds_read_b128 %s, %s' % (v(MEMF, 4), v(MEMO)))
        k('ds_read_b128 %s, %s offset:1024' % (v(MEMF + 4, 4), v(MEMO)))
        k('s_waitcnt lgkmcnt(0)')
        k('v_max3_u32 %s, %s, %s, %s' % (v(TT), v(MEMF), v(MEMF + 1), v(MEMF + 2)))
        k('v_max3_u32 %s, %s, %s, %s' % (v(MX), v(MEMF + 3), v(MEMF + 4), v(MEMF + 5)))
        k('v_max3_u32 %s, %s, %s, %s' % (v(TT), v(TT), v(MEMF + 6), v(MEMF + 7)))
        k('v_max_u32 %s, %s, %s' % (v(TT), v(TT), v(MX)))
        k('v_cmp_eq_u32 vcc, -1, %s' % v(TT))
    PT()
    k('s_cmp_eq_u32 %s, 0' % s(S_I))
    k('s_waitcnt vmcnt(0)')
    k('s_cbranch_scc1 L_pb_nored')
    reduce('a', True)
    k.label('L_pb_nored')
    k('s_lshl_b32 %s, %s, 2' % (s(S_T0), s(S_T)))
    k('v_add_u32 %s, %s, %s' % (v(TT), s(S_T0), v(GRA)))
    k('ds_read_b32 %s, %s offset:5120' % (v(BV + 2), v(TT)))
    k('ds_read_b32 %s, %s offset:5128' % (v(BV + 3), v(TT)))
    for i in range(0, 16, 2): k('v_mov_b64 %s, 0' % v(AKV + i, 2))
    k('s_add_u32 %s, %s, 7' % (s(S_OO), s(S_U)))
    k('s_min_u32 %s, %s, 127' % (s(S_OO), s(S_OO)))
    k('s_xor_b32 %s, %s, 24576' % (s(S_RT), s(S_MB)))
    k('s_add_u32 %s, %s, %s' % (s(S_PF), s(S_PF), s(S_PD)))
    if not opt.get('pfs', 1):
        k('s_cmp_ge_u32 %s, 121' % s(S_U))
        k('s_cbranch_scc1 L_pb_nopf')
        for f in prefetch(S_OO, S_RT): f()
        k.label('L_pb_nopf')
    for r in (PFA, PFG, GRA): k('v_add_u32 %s, %s, %s' % (v(r), s(S_PD), v(r)))
    k('s_sub_u32 %s, 0, %s' % (s(S_PD), s(S_PD)))
    PT()
    memchk()
    k('s_cbranch_vccz %s_ok' % PL)
    k('s_lshl_b32 %s, %s, 13' % (s(S_T0), s(S_SEG)))
    k('s_lshl_b32 %s, %s, 11' % (s(S_T1), s(S_W)))
    k('s_add_u32 m0, %s, %s' % (s(S_T1), s(S_MB)))
    k('s_add_u32 %s, %s, %s' % (s(S_T0), s(S_T0), s(S_T1)))
    k('s_add_u32 %s, %s, 0x%x' % (s(S_T0), s(S_T0), MEMX))
    k('s_mov_b32 %s, %d' % (s(S_SPIN), SPIN_MAX))
    k('s_sub_u32 %s, %s, 8192' % (s(S_T1), s(S_T0)))
    k('s_cmp_eq_u32 %s, 0' % s(S_SEG))
    k('s_cselect_b32 %s, %s, %s' % (s(S_T1), s(S_T0), s(S_T1)))
    k('s_mov_b32 %s, 0' % s(S_T3))
    k('s_mov_b64 exec, 1')
    k.label(PL)
    k('buffer_load_dword %s, %s, %s, %s offen sc1' % (v(TT), v(L16), s(S_WS, 4), s(S_T1)))
    k('s_sub_u32 %s, %s, 1' % (s(S_SPIN), s(S_SPIN)))
    k('s_cbranch_scc1 %s' % FAIL)
    k('s_waitcnt vmcnt(0)')
    k('v_cmp_eq_u32 vcc, -1, %s' % v(TT))
    k('s_cbranch_vccz %s_a' % PL)
    k('s_mov_b32 %s, 1' % s(S_T3))
    k('s_sleep %d' % opt.get('pbsleep', 6))
    k('s_branch %s' % PL)
    k.label(PL + '_a')
    k('s_mov_b64 exec, -1')
    k('s_cmp_eq_u32 %s, 0' % s(S_T3))
    k('s_cbranch_scc1 %s_b' % PL)
    k('s_sleep %d' % opt.get('pbsleep2', 12))
    k.label(PL + '_b')
    dma(S_T0, 0); dma(S_T0, 1024)
    k('s_sub_u32 %s, %s, 1' % (s(S_SPIN), s(S_SPIN)))
    k('s_cbranch_scc1 %s' % FAIL)
    if opt.get('pbd', 0): k('s_waitcnt vmcnt(%d)' % (2 * (opt.get('pbd', 0) - 1))); k('s_sleep %d' % opt.get('pbs3', 3))
    else: k('s_waitcnt vmcnt(0)')
    memchk()
    k('s_cbranch_vccnz %s_b' % PL)
    k.label(PL + '_ok')
    k('s_barrier')
    PT()
    k.lg = []
    def MR(ks): k('ds_read_b128 %s, %s offset:%d' % (v(MEMF + 4 * ks, 4), v(MEMA), 1024 * ks), tag=('mf', ks))
    def SMF(m, ks, t): k('v_smfmac_f32_16x16x64_bf16 %s, %s, %s, %s' % (v(AKV + 8 * m + 4 * t, 4), v(MEMF + 4 * ks, 4), a(wkv(m, ks, t), 8), v(IDX)))
    pq = prefetch(S_OO, S_RT) if opt.get('pfs', 1) else []
    cnt = [0]
    def PQ():
        cnt[0] += 1
        if pq and cnt[0] % opt.get('pqm', 4) == 0: pq.pop(0)()
    MR(0); MR(1); MR(2)
    for ks in range(8):
        k.wait_lg(('mf', ks))
        SMF(0, ks, 0)
        if ks + 3 < 8: MR(ks + 3)
        elif ks < 7:
            for i in range(2): k('ds_read_b64 %s, %s offset:%d' % (v(ACC + 4 * (ks - 5) + 2 * i, 2), v(BRA), 1024 * (2 * (ks - 5) + i)), tag='br')
        SMF(0, ks, 1)
        PQ(); PQ()
    vq = [(ks, t) for ks in range(8) for t in range(2)]
    hq = list(range(8))
    def V(n=1):
        for _ in range(n):
            ks, t = vq.pop(0); SMF(1, ks, t)
            if t == 1:
                k('ds_read_b128 %s, %s offset:%d' % (v(MEMF + 4 * ks, 4), v(HOME), L_HOME + 1024 * ks), tag=('wh', ks))
            else:
                PQ(); PQ()
    V(2)
    for i in range(4): cvt(k, ACC + 16 + i, AKV + 2 * i, AKV + 2 * i + 1)
    V(1)
    mf16(AKV, ACC + 16, SELT); mf16(AKV + 4, ACC + 18, SELT)
    V(2)
    for i in range(4): cvt(k, ACC + 16 + i, AKV + 2 * i, AKV + 2 * i + 1)
    V(1)
    k(mfma32(AKV, v(ACC + 16, 4), v(QF, 4), True))
    V(3)
    k('ds_write_b128 %s, %s offset:%d' % (v(LW1), v(AKV, 4), L_SMX), tag='sw')
    k.wait_lg('br')
    bq = [lambda j=j: add(ACC + j, ACC + j, ACC + 2 + j) for j in range(2)] + [lambda j=j: add(ACC + 4 + j, ACC + 4 + j, ACC + 6 + j) for j in range(2)] + [lambda j=j: add(BV + j, ACC + j, ACC + 4 + j) for j in range(2)]
    for i in range(7):
        V(1)
        if bq: bq.pop(0)()
    round_bf16(k, [BV, BV + 1], TT)
    for j in range(2): k('v_mul_f32 %s, %s, %s' % (v(BV + j), v(BV + j), v(BV + 3)))
    round_bf16(k, [BV, BV + 1], TT)
    k.wait_lg('sw')
    k('s_barrier')
    PT()
    k.sprinkle = [14, lambda: pq.pop(0)() if pq else None, 0, 4]
    VM = KF
    SR = [AKV, AKV + 4, KF + 4, T8]
    for w_ in range(4): k('ds_read_b128 %s, %s offset:%d' % (v(SR[w_], 4), v(L16), L_SMX + 1024 * w_), tag=('sr', w_))
    for i in range(4): cvt(k, VM + i, AKV + 8 + 2 * i, AKV + 8 + 2 * i + 1)
    def pk(op, d, x, y, mod=''): k('%s %s, %s, %s %s' % (op, v(d, 2), x, y, mod))
    k.wait_lg(('sr', 1))
    for j in (0, 2): pk('v_pk_add_f32', AKV + j, v(AKV + j, 2), v(AKV + 4 + j, 2))
    k.wait_lg(('sr', 3))
    for j in (0, 2): pk('v_pk_add_f32', T8 + j, v(T8 + j, 2), v(KF + 4 + j, 2))
    for j in (0, 2): pk('v_pk_add_f32', AKV + j, v(AKV + j, 2), v(T8 + j, 2))
    mr = [AKV + j for j in range(4)]; xr = [SX + j for j in range(8)]
    round_bf16(k, mr, TT)
    for j in (0, 2): pk('v_pk_mul_f32', AKV + j, v(AKV + j, 2), s(S_SC, 2))
    round_bf16(k, mr, TT)
    regs = xr + mr
    k('v_max3_f32 %s, %s, %s, %s' % (v(MX), v(mr[0]), v(mr[1]), v(XM)))
    k('v_max3_f32 %s, %s, %s, %s' % (v(MX), v(MX), v(mr[2]), v(mr[3])))
    k('v_mov_b32 %s, %s' % (v(TT), v(MX)))
    k('v_permlane16_swap_b32 %s, %s' % (v(MX), v(TT)))
    k('v_max_f32 %s, %s, %s' % (v(MX), v(MX), v(TT)))
    k('v_mul_f32 %s, %s, %s' % (v(MX), s(S_L2), v(MX)))
    for r in regs[::2]: k('v_pk_fma_f32 %s, %s, %s, %s op_sel_hi:[1,1,0] neg_lo:[0,0,1] neg_hi:[0,0,1]' % (v(r, 2), v(r, 2), s(S_L2, 2), v(MX, 2)))
    for r in regs: k('v_exp_f32 %s, %s' % (v(r), v(r)))
    pk('v_pk_add_f32', T8, v(xr[0], 2), v(xr[2], 2)); pk('v_pk_add_f32', T8 + 2, v(xr[4], 2), v(xr[6], 2))
    pk('v_pk_add_f32', LS, v(mr[0], 2), v(mr[2], 2)); pk('v_pk_add_f32', T8, v(T8, 2), v(T8 + 2, 2))
    add(LS, LS, LS + 1); add(T8, T8, T8 + 1)
    k('v_fma_f32 %s, %s, 0.5, %s' % (v(LS), v(LS), v(T8)))
    xreduce(k, 'v_add_f32', LS, TT)
    k('v_rcp_f32 %s, %s' % (v(LS), v(LS)))
    for r in regs[::2]: pk('v_pk_mul_f32', r, v(r, 2), v(LS, 2), 'op_sel_hi:[1,0]')
    k.sprinkle = None
    assert not pq
    PX, PM, O = T8, ACC + 16, AKV + 8
    for i in range(4): cvt(k, PX + i, xr[2 * i], xr[2 * i + 1])
    cvt(k, PM, mr[0], mr[1]); cvt(k, PM + 1, mr[2], mr[3])
    for t in range(2): k(mfma32(O + 4 * t, v(VF + 4 * t, 4), v(PX, 4), True))
    for t in range(2): mf16(O + 4 * t, VM + 2 * t, PM, O + 4 * t)
    for i in range(4): cvt(k, T8 + i, O + 2 * i, O + 2 * i + 1)
    k('ds_write_b128 %s, %s offset:%d' % (v(LW1), v(T8, 4), L_OX))
    k('s_waitcnt lgkmcnt(0)')
    k('s_barrier')
    PT()
    OF = AKV
    for kk in range(4): k('ds_read_b128 %s, %s offset:%d' % (v(OF + 4 * kk, 4), v(L16), L_OX + 1024 * kk), tag=('of', kk))
    k('s_mov_b32 %s, %s' % (s(S_T0), s(S_PBW)))
    def pack(dt):
        r = ACC + 4 * dt
        cvt(k, r, r, r + 1); cvt(k, r + 1, r + 2, r + 3)
        k('v_bfi_b32 %s, 1, %s, %s' % (v(r), s(S_TG), v(r)))
    def st(dt):
        k('buffer_store_dwordx2 %s, %s, %s, %s offen' % (v(ACC + 4 * dt, 2), v(ST), s(S_WS, 4), s(S_T0)))
        k('s_add_u32 %s, %s, 0x4000' % (s(S_T0), s(S_T0)))
    for dt in range(8):
        for kk in range(4):
            if dt == 0: k.wait_lg(('of', kk))
            k(mfma32(ACC + 4 * dt, v(wof(dt, kk), 4), v(OF + 4 * kk, 4), kk == 0))
            if kk == 0 and pq: pq.pop(0)()
            if kk == 2 and dt > 0: pack(dt - 1)
            if kk == 3 and dt > 0: st(dt - 1)
    assert not pq
    k('s_mov_b32 %s, %s' % (s(S_RT), s(S_TG)))
    k('s_mov_b32 %s, %s' % (s(S_RR), s(S_PBR)))
    k('s_lshl_b32 %s, %s, 14' % (s(S_RO), s(S_U)))
    k('s_add_u32 %s, %s, 1' % (s(S_I), s(S_I)))
    k('s_xor_b32 %s, %s, 24576' % (s(S_MB), s(S_MB)))
    k('v_xor_b32 %s, 24576, %s' % (v(MEMO), v(MEMO)))
    k('v_xor_b32 %s, 24576, %s' % (v(MEMA), v(MEMA)))
    pack(7); st(7)
    k('s_xor_b32 %s, %s, 0x80000' % (s(S_PBW), s(S_PBW)))
    k('s_xor_b32 %s, %s, 0x80000' % (s(S_PBR), s(S_PBR)))
    k('s_add_u32 %s, %s, 7' % (s(S_U), s(S_U)))
    PT()
    k('s_cmp_lt_u32 %s, 128' % s(S_U))
    k('s_cbranch_scc1 %s' % LOOP)
    for i in range(opt.get('pbw', 3)): k('s_nop 15')
    reduce('b')
    if opt.get('pbprof'):
        for i in range(8): k('v_mov_b32 v%d, s%d' % (16 + i, 70 + i))
        k('s_lshl_b32 s55, s50, 5\ns_add_u32 s55, s55, s40\ns_lshl_b32 s55, s55, 2\ns_add_u32 s55, s55, s41\ns_lshl_b32 s55, s55, 5\ns_add_u32 s55, s55, 0x%x' % (DBG + 0x180000))
        k('v_mov_b32 v6, 0')
        k('buffer_store_dwordx4 v[16:19], v6, s[8:11], s55 offen')
        k('buffer_store_dwordx4 v[20:23], v6, s[8:11], s55 offen offset:16')
```

```python
import sys, json
sys.path.insert(0, 'gen')
from fw import *
from layout import *
import chain as C
import worker as W
NAME = 'gated_mix__memory_aug_recurrent_mem_tr__sliding_block__prompt_kernel'
HEAD = open('gated_mix__memory_aug_recurrent_mem_tr__sliding_block__prompt.s.ref').read().split('; Override')[0]
D_READY = 64

def gen(opt={}):
    C.JS = opt.get('js', 10240)
    roles = opt.get('roles', ['chain', 'pj', 'ba', 'pb'])
    full = len(roles) == 4
    k = K()
    k.raw(HEAD.rstrip())
    k.raw('; @launch grid=(256,1,1) block=(256,1,1) lds=163840')
    k.raw('.amdgcn_target "amdgcn-amd-amdhsa--gfx950"\n.text\n.globl %s\n.p2align 8\n.type %s,@function\n%s:' % (NAME, NAME, NAME))
    k('s_load_dwordx16 s[64:79], s[0:1], 0')
    k('s_load_dwordx8 s[80:87], s[0:1], 64')
    k('s_load_dwordx4 s[88:91], s[0:1], 96')
    if opt.get('prof'):
        k('s_memtime s[100:101]')
        k('s_memrealtime s[2:3]')
    if opt.get('cpf', 0):
        k('s_getpc_b64 s[4:5]')
        k.label('L_pc')
        k('v_lshlrev_b32 v10, 6, v0')
        k('v_mov_b32 v13, s5')
        for j in range(3):
            k('v_add_u32 v11, 0x%x, v10' % (j * 16384))
            k('v_min_u32 v11, L_end-L_pc, v11')
            k('v_add_co_u32 v12, vcc, s4, v11')
            k('v_addc_co_u32 v15, vcc, 0, v13, vcc')
            k('v_mov_b32 v14, v12')
            k('global_load_dword v%d, v[14:15], off' % (20 + j))
    k('s_getreg_b32 %s, hwreg(HW_REG_XCC_ID)' % s(W.S_GRP))
    k('s_and_b32 %s, %s, 7' % (s(W.S_GRP), s(W.S_GRP)))
    k('s_waitcnt lgkmcnt(0)')
    C.srd(k, C.S_WS, W.P_WS, WS_BYTES); C.srd(k, C.S_DBG, W.P_DBG, 256)
    NT = opt.get('etouch', 0)
    k("""
  s_lshl_b32 s55, s50, 2
  v_mov_b32 v1, 0
  v_mov_b32 v2, 1
  v_cmp_eq_u32 vcc, 0, v0
  s_and_saveexec_b64 s[4:5], vcc
  s_cbranch_execz L_t0
  buffer_atomic_add v2, v1, s[32:35], s55 offen sc0 sc1
L_t0:
  s_mov_b64 exec, s[4:5]
""")
    if NT:
        C.srd(k, C.S_WO, W.P_WO, 4 << 20)
        k("""
  s_cmp_lg_u32 s50, 0
  s_cbranch_scc1 L_t2
  s_bfe_u32 s56, s2, 0x50003
  s_lshl_b32 s56, s56, 17
  v_lshrrev_b32 v3, 6, v0
  v_and_b32 v4, 63, v0
  v_and_b32 v5, 2, v3
  v_lshl_add_u32 v4, v5, 5, v4
  v_lshlrev_b32 v4, 10, v4
  v_lshl_add_u32 v4, v3, 8, v4
""")
        for i in range(NT):
            if i == 2: k('v_xor_b32 v4, 0x10000, v4')
            k('buffer_load_dword v%d, v4, %s, s56 offen offset:%d' % (20 + i, s(C.S_WO, 4), 128 * (i & 1)))
        k('s_waitcnt vmcnt(%d)' % NT)
        k('s_branch L_t3')
        k.label('L_t2')
    k("""
  s_waitcnt vmcnt(0)
L_t3:
  s_and_saveexec_b64 s[4:5], vcc
  s_cbranch_execz L_t1
  ds_write_b32 v1, v2
  s_waitcnt lgkmcnt(0)
L_t1:
  s_mov_b64 exec, s[4:5]
  s_barrier
  ds_read_b32 v2, v1
  v_lshrrev_b32 v3, 6, v0
  s_waitcnt lgkmcnt(0)
  v_readfirstlane_b32 s51, v2
  v_readfirstlane_b32 s41, v3
  v_and_b32 v0, 63, v0
  s_barrier
  s_cmp_ge_u32 s51, 32
  s_cbranch_scc1 L_end
""")
    k.vm = []
    TK, GRP = W.S_TK, W.S_GRP
    if opt.get('prof'):
        k('s_memtime s[98:99]')
        k('s_waitcnt lgkmcnt(0)')
    def ready_add(ra=6, rb=7, sync=True):
        if sync:
            k('s_waitcnt vmcnt(0)')
            k('s_barrier')
        L = k.newlabel('L_ra')
        k('s_cmp_lg_u32 %s, 0' % s(C.S_W))
        k('s_cbranch_scc1 %s' % L)
        k('v_mov_b32 v%d, %d' % (ra, D_READY))
        k('v_mov_b32 v%d, 1' % rb)
        k('s_mov_b64 exec, 1')
        k('buffer_atomic_add v%d, v%d, s[32:35], 0 offen sc1' % (rb, ra))
        k('s_mov_b64 exec, -1')
        k.label(L)
    k('v_lshlrev_b32 v1, 4, v0')
    for i in range(4): k('v_mov_b32 v%d, -1' % (8 + i))
    if opt.get('spread'):
        k('s_cmp_ge_u32 s2, 32')
        k('s_cbranch_scc1 L_spw')
        k('s_mov_b32 %s, s2' % s(TK))
    else:
        k('s_cmp_lg_u32 %s, 0' % s(GRP))
        k('s_cbranch_scc1 L_worker')
    if 'chain' in roles:
        k('s_mov_b32 %s, %s' % (s(C.S_H), s(TK)))
        C.srd(k, C.S_WQ, W.P_WQ, 4 << 20); C.srd(k, C.S_WK, W.P_WK, 4 << 20); C.srd(k, C.S_WV, W.P_WV, 4 << 20); C.srd(k, C.S_WO, W.P_WO, 4 << 20)
        C.srd(k, C.S_M0, W.P_MEM0, 8192)
        def hook_loading():
            k('v_lshlrev_b32 v24, 4, v0')
            for i in range(4): k('v_mov_b32 v%d, -1' % (28 + i))
            k('s_mul_i32 s55, s40, %d' % C.JS)
            k('s_lshl_b32 s56, s41, 11')
            k('s_add_u32 s55, s55, s56')
            k('s_add_u32 s55, s55, 0x%x' % INB)
            for i in range(2):
                k('buffer_store_dwordx4 v[28:31], v24, s[8:11], s55 offen offset:%d' % (1024 * i), tag='init')
            k('s_lshl_b32 s55, s40, 10')
            k('s_add_u32 s55, s55, 0x%x' % H2)
            k('buffer_store_dwordx4 v[28:31], v24, s[8:11], s55 offen', tag='init')
            k('s_nop 1')
        if opt.get('tlb', 0):
            k('v_lshlrev_b32 v24, 16, v0')
            for j, sr in enumerate((C.S_WV, C.S_WK, C.S_WQ)):
                k('buffer_load_dword v%d, v24, %s, 0 offen' % (25 + j, s(sr, 4)))
            if opt.get('tlb', 0) > 1:
                k('v_lshlrev_b32 v24, 19, v0')
                k('buffer_load_dword v25, v24, %s, 0 offen sc1' % s(C.S_WS, 4))
        hook_loading()
        def hook_loading2():
            k.wait_vm('init')
            k('s_barrier')
            n = len(k.vm)
            ready_add(58, 59, sync=False)
            k.vm = k.vm[:n]
        k.hook_loading = hook_loading2
        nready = 256
        S_RDY = 63
        S_FKV = 62
        def fl_load(B, A, tag=None):
            k('s_mov_b64 exec, 15')
            k('buffer_load_dword %s, %s, %s, %s offen sc1' % (v(B), v(A), s(C.S_WS, 4), s(S_FKV)), tag=tag)
            k('s_mov_b64 exec, -1')
        def wait_kv(first, B=C.X3, A=C.L16, part=None):
            if not full: return
            L = k.newlabel('L_kv')
            def chk():
                k('v_cmp_ge_u32 vcc, %s, %s' % (s(C.S_T0), v(B)))
                k('s_and_b32 %s, vcc_lo, 15' % s(C.S_T1))
            if part in (None, 0):
                AH = 1 + opt.get('touch', 0)
                k('s_add_u32 %s, %s, %d' % (s(C.S_T0), s(C.S_STEP), AH - 1 if first else AH))
                if AH > 1: k('s_min_u32 %s, %s, 63' % (s(C.S_T0), s(C.S_T0)))
                k('v_cmp_ge_u32 vcc, %s, %s' % (s(C.S_T0), v(B)))
                if part == 0: return
            if part == 2:
                fl_load(B, A); return
            k('s_and_b32 %s, vcc_lo, 15' % s(C.S_T1))
            k('s_cbranch_scc1 %s_slow' % L)
            k.label(L + '_ret')
            def slow():
                k.label(L + '_slow')
                k('s_mov_b32 %s, %d' % (s(C.S_SPIN), C.SPIN_MAX))
                k.label(L + '_p')
                fl_load(B, A)
                k('s_sub_u32 %s, %s, 1' % (s(C.S_SPIN), s(C.S_SPIN)))
                k('s_cbranch_scc1 L_fail')
                k('s_waitcnt vmcnt(0)')
                chk()
                k('s_cbranch_scc0 %s_ret' % L)
                k('s_sleep 2')
                k('s_branch %s_p' % L)
            k.deferred.append(slow)
        k.deferred = []
        def h4():
            n = len(k.vm)
            ready_add(58, 59, sync=False)
            k.vm = k.vm[:n]
        def h7():
            k('v_mov_b32 v58, %d' % D_READY)
            k('buffer_load_dword v58, v58, %s, 0 offen sc1' % s(C.S_DBG, 4), tag='rdy')
        def h12():
            L = k.newlabel('L_rdy')
            k.wait_vm('rdy')
            k('v_cmp_gt_u32 vcc, %d, v58' % nready)
            k('s_cbranch_vccnz %s' % L)
            k.label(L + '_ret')
            def slow():
                k.label(L)
                k('s_mov_b32 %s, %d' % (s(C.S_SPIN), C.SPIN_MAX))
                k.label(L + '_p')
                k('v_mov_b32 v58, %d' % D_READY)
                k('buffer_load_dword v58, v58, %s, 0 offen sc1' % s(C.S_DBG, 4))
                k('s_sub_u32 %s, %s, 1' % (s(C.S_SPIN), s(C.S_SPIN)))
                k('s_cbranch_scc1 L_fail')
                k('s_waitcnt vmcnt(0)')
                k('v_cmp_gt_u32 vcc, %d, v58' % nready)
                k('s_cbranch_vccnz %s_p' % L)
                k('s_branch %s_ret' % L)
            k.deferred.append(slow)
            k('s_lshl_b32 %s, %s, 2' % (s(S_FKV), s(C.S_H)))
            k('s_add_u32 %s, %s, %s' % (s(S_FKV), s(S_FKV), s(C.S_W)))
            k('s_lshl_b32 %s, %s, 7' % (s(S_FKV), s(S_FKV)))
            k('s_add_u32 %s, %s, 0x%x' % (s(S_FKV), s(S_FKV), F_KV))
            k('v_lshlrev_b32 v54, 4, v0')
            fl_load(55, 54, 'fkv')
        def h13():
            k.wait_vm('fkv')
            wait_kv(True, 55, 54)
        k.load_hooks = {opt.get('hk0', 14): h7, opt.get('hk', 22): h12, 28: h13}
        k.hook_prefetch = lambda part: wait_kv(False, part=part)
        C.chain(k, prof=opt.get('prof'), dump=opt.get('dump'), opt=opt)
        if opt.get('prof'):
            T = C.S_TS
            k.raw('  s_memtime %s' % s(T + 26, 2))
            k.raw('  s_memrealtime s[4:5]')
            k.raw('  s_waitcnt lgkmcnt(0)')
            k('s_mov_b32 %s, s4' % s(T + 17))
            k('s_sub_u32 %s, %s, %s' % (s(T + 21), s(T + 26), s(T + 24)))
            k('s_mov_b32 %s, %s' % (s(T + 20), s(T + 22)))
            k('s_sub_u32 %s, %s, s100' % (s(T + 19), s(T + 28)))
            k('s_sub_u32 %s, s98, s100' % s(T + 18))
            k('s_sub_u32 %s, %s, s100' % (s(T + 22), s(T + 24)))
            for i in range(8): k('v_mov_b32 %s, %s' % (v(i), s(T + 16 + i)))
            k('s_lshl_b32 s55, s40, 2')
            k('s_add_u32 s55, s55, s41')
            k('s_lshl_b32 s55, s55, 5')
            k('s_add_u32 s55, s55, 0x%x' % (DBG + 0x100000))
            k('v_mov_b32 v8, 0')
            k('buffer_store_dwordx4 v[0:3], v8, s[8:11], s55 offen')
            k('buffer_store_dwordx4 v[4:7], v8, s[8:11], s55 offen offset:16')
            if opt.get('ddbg'):
                k('s_mov_b64 exec, 1')
                for i, r in enumerate((2, 3, 6, 5)):
                    k('buffer_atomic_umax v%d, v8, s[32:35], 0 offen offset:%d sc1' % (r, 32 + 4 * i))
                k('s_memrealtime s[4:5]')
                k('s_waitcnt lgkmcnt(0)')
                k('s_sub_u32 s4, s4, s2')
                k('v_mov_b32 v9, s4')
                k('buffer_atomic_umax v9, v8, s[32:35], 0 offen offset:48 sc1')
                k('s_mov_b64 exec, -1')
        k('s_branch L_end')
        for f in k.deferred: f()
    else:
        k('s_branch L_end')
    k.label('L_spw')
    k('s_max_u32 %s, %s, 1' % (s(GRP), s(GRP)))
    k.label('L_worker')
    k.hist = []
    def stampw(i):
        if opt.get('prof'):
            k('s_memtime s[4:5]')
            k('s_waitcnt lgkmcnt(0)')
            k('s_sub_u32 s4, s4, s100')
            k('v_mov_b32 v7, s4')
            k('s_lshl_b32 s55, s50, 5')
            k('s_add_u32 s55, s55, s51')
            k('s_lshl_b32 s55, s55, 2')
            k('s_add_u32 s55, s55, s41')
            k('s_lshl_b32 s55, s55, 5')
            k('s_add_u32 s55, s55, 0x%x' % (DBG + 0x110000 + 4 * i))
            k('v_mov_b32 v6, 0')
            k('buffer_store_dword v7, v6, s[8:11], s55 offen')
    k('s_sub_u32 s55, %s, 1' % s(GRP))
    k('s_lshl_b32 s55, s55, 5')
    k('s_add_u32 s55, s55, %s' % s(TK))
    k('s_mul_i32 %s, s55, 9363' % s(C.S_H))
    k('s_lshr_b32 %s, %s, 16' % (s(C.S_H), s(C.S_H)))
    k('s_mul_i32 s56, %s, 7' % s(C.S_H))
    k('s_sub_u32 %s, s55, s56' % s(W.S_R))
    k('s_cmp_eq_u32 %s, 0' % s(W.S_R))
    k('s_cselect_b32 %s, 10, 9' % s(W.S_NSEG))
    W.setup_common(k)
    def winit():
        if full:
            k('s_lshl_b32 s55, s40, 2\ns_add_u32 s55, s55, s41\ns_lshl_b32 s55, s55, 3\ns_add_u32 s55, s55, s42\ns_lshl_b32 s55, s55, 4\ns_add_u32 s55, s55, 0x%x' % F_KV)
            W.set_flag(k, 55, '0')
            k('s_lshl_b32 s55, s40, 3\ns_add_u32 s55, s55, s42\ns_lshl_b32 s55, s55, 2\ns_add_u32 s55, s55, 0x%x' % F_D3)
            W.set_flag(k, 55, '0')
        if 'pb' in roles and not full: pb_init()
    def pb_init():
        if True:
            for i in range(4): k('v_mov_b32 v%d, -1' % (8 + i))
            k('s_lshl_b32 s55, s50, 20\ns_lshl_b32 s56, s51, 14\ns_add_u32 s55, s55, s56\ns_lshl_b32 s56, s41, 12\ns_add_u32 s55, s55, s56\ns_add_u32 s55, s55, 0x%x' % PB)
            for sl in range(2):
                for i in range(4): k('buffer_store_dwordx4 v[8:11], v1, s[8:11], s55 offen offset:%d' % (1024 * i))
                k('s_add_u32 s55, s55, 0x80000')
    k.pb_init = pb_init
    winit0 = winit
    def winit():
        winit0()
        if full:
            k('s_sub_u32 s55, s50, 1\ns_lshl_b32 s55, s55, 5\ns_add_u32 s55, s55, s51\ns_lshl_b32 s55, s55, 2\ns_add_u32 s55, s55, s41\ns_and_b32 s55, s55, 511\ns_lshl_b32 s55, s55, 10\ns_add_u32 s55, s55, 0x%x' % MEMX)
            k('buffer_store_dwordx4 v[8:11], v1, s[8:11], s55 offen sc1')
    if opt.get('warm', 0) and 'pj' in roles:
        k('s_sub_u32 s55, s50, 1\ns_lshl_b32 s55, s55, 5\ns_add_u32 s55, s55, s51\ns_lshl_b32 s55, s55, 2\ns_add_u32 s55, s55, s41\ns_lshl_b32 s55, s55, 10')
        k('v_add_u32 v16, s55, v1')
        for t in range(1, 5): k('v_add_u32 v%d, 0x%x, v16' % (16 + t, 896 * 1024 * t))
        for j, P in enumerate(opt.get('worder', [W.P_WO])):
            C.srd(k, C.S_WQ + 4 * j, P, 4 << 20)
            for t in range(5):
                k('buffer_load_dwordx4 v[%d:%d], v%d, %s, 0 offen %s' % (24 + 4 * t, 27 + 4 * t, 16 + t, s(C.S_WQ + 4 * j, 4), opt.get('wfl', '')))
    stampw(0)
    k.stampw = stampw
    if 'pj' in roles:
        winit()
        def k_early():
            k('s_waitcnt vmcnt(8)')
            k('s_barrier')
            n = len(k.vm)
            ready_add(sync=False)
            k.vm = k.vm[:n]
        k.after_x0 = k_early
        after_issue = None
        def after_wload():
            if opt.get('hold'):
                k('s_cmp_lt_u32 %s, %d' % (s(W.S_R), opt.get('holdc', 4)))
                k('s_cbranch_scc1 L_nohold')
                for i in range(opt['hold']): k('s_sleep 127')
                k.label('L_nohold')
        k.after_wload = after_wload
        k.vload = full and opt.get('vload', 1)
        def wait_ready():
            k('s_mov_b32 s55, %d' % D_READY)
            k('s_mov_b32 s56, 256')
            W.poll_flags(k, 55, 1, 's56', 'rdy0', srdn=C.S_DBG)
        k.wait_ready = wait_ready
        W.proj(k, after_issue)
    else:
        winit(); ready_add()
    stampw(1)
    if full or 'pb' in roles:
        k('s_mov_b32 s55, %d' % D_READY)
        W.poll_flags(k, 55, 1, '%d' % (256 if 'chain' in roles else 224) if False else 's56', 'rdy', srdn=C.S_DBG) if False else None
        k('s_mov_b32 s56, %d' % (256 if 'chain' in roles else 224))
        W.poll_flags(k, 55, 1, 's56', 'rdy', srdn=C.S_DBG)
    pre = post = None
    k.pb_wait = full; k.pb_lim = opt.get('pblim', 3)
    k.vload = full and opt.get('vload', 1)
    if 'pb' in roles: pre, post, final = W.pb_loader(k)
    if 'ba' in roles: W.battn(k, waitflags=full, pre=pre, post=post)
    elif 'pb' in roles:
        for a_, b_ in zip(pre, post):
            a_()
            for i in range(32): k.pb_dma()
            k('s_waitcnt vmcnt(0)'); b_()
    stampw(3)
    if 'pb' in roles:
        final()
        stampw(2)
        k('s_mov_b32 %s, %s' % (s(C.S_H), s(TK)))
        W.phaseB(k, waitflags=full, opt=opt)
    stampw(4)
    if opt.get('prof'):
        k('s_memrealtime s[4:5]')
        k('s_waitcnt lgkmcnt(0)')
        k('v_mov_b32 v7, s4')
        k('buffer_store_dword v7, v6, s[8:11], s55 offen offset:4')
        k('v_mov_b32 v7, s2')
        k('buffer_store_dword v7, v6, s[8:11], s55 offen offset:8')
        if opt.get('ddbg'):
            k('s_mov_b64 exec, 1')
            k('v_mov_b32 v9, s4')
            k('buffer_atomic_umax v9, v6, s[32:35], 0 offen offset:52 sc1')
            k('s_not_b32 s2, s2')
            k('v_mov_b32 v9, s2')
            k('buffer_atomic_umax v9, v6, s[32:35], 0 offen offset:56 sc1')
            k('s_mov_b64 exec, -1')
    k('s_branch L_end')
    k.label('L_fail')
    k('s_mov_b64 exec, 1')
    k('v_mov_b32 v1, 128')
    k('v_mov_b32 v2, 1')
    k('buffer_atomic_add v2, v1, s[32:35], 0 offen sc1')
    k.label('L_end')
    k('s_endpgm')
    k.raw('''.section .rodata,"a"
.p2align 6
.amdhsa_kernel %s
  .amdhsa_next_free_vgpr 512
  .amdhsa_next_free_sgpr 102
  .amdhsa_accum_offset 256
  .amdhsa_group_segment_fixed_size 0
  .amdhsa_kernarg_size 112
  .amdhsa_user_sgpr_count 2
  .amdhsa_user_sgpr_kernarg_segment_ptr 1
  .amdhsa_system_sgpr_workgroup_id_x 1
.end_amdhsa_kernel''' % NAME)
    gen.points = getattr(k, 'points', [])
    txt = k.text()
    for a_, b_ in opt.get('sub', []):
        import re
        txt = re.sub(a_, b_, txt)
    return txt

if __name__ == '__main__':
    opt = json.loads(sys.argv[2]) if len(sys.argv) > 2 else {}
    open(sys.argv[1], 'w').write(gen(opt))
```

```python
from fw import *
from layout import *
from chain import srd, f2u, S_WS, S_WQ, S_WK, S_WV, S_WO, S_DBG, S_H, S_W, S_SPIN, S_T0, S_T1, S_T2, SPIN_MAX
import math

S_X, S_AUX, S_OUT = 28, 36, 12
S_R, S_NSEG, S_I, S_XS, S_OO, S_XB, S_FL, S_SEG, S_GRP, S_TK = 42, 43, 44, 45, 46, 47, 48, 49, 50, 51
S_T3, S_T4 = 52, 53
S_M = 92
P_X, P_MEM0, P_WQ, P_WK, P_WV, P_WO, P_SEG, P_BX, P_WB, P_WOB, P_GW, P_OUT, P_DBG, P_WS = [64 + 2 * i for i in range(14)]
FAIL = 'L_fail'

LANE, L16, GA, TR, XG, XR, VZ, VT = 0, 1, 2, 3, 4, 5, 6, 7
L_STG = 65536; STG_STRIDE = 24576

def cvt(k, d, x, y): k('v_cvt_pk_bf16_f32 %s, %s, %s' % (v(d), v(x), v(y)))
def R(loc, r, n): return (a if loc[0] == 'a' else v)(loc[1] + r, n)

def poll_flags(k, soff_reg, nlanes, minval, name, stride=4, srdn=S_WS, sleep=8, skip7=False, mask=None):
    L = k.newlabel('L_poll_' + name)
    k('v_mul_u32_u24 %s, %d, %s' % (v(VZ), stride, v(LANE)))
    k('s_mov_b32 %s, %d' % (s(S_SPIN), SPIN_MAX))
    if skip7:
        k('s_mov_b32 exec_lo, 0x7f7f7f7f')
        k('s_mov_b32 exec_hi, 0x7f7f7f7f')
    else:
        k('s_mov_b32 exec_lo, 0x%x' % (mask or ((1 << nlanes) - 1)))
        k('s_mov_b32 exec_hi, 0')
    k.label(L)
    k('buffer_load_dword %s, %s, %s, %s offen sc1' % (v(VT), v(VZ), s(srdn, 4), s(soff_reg)))
    k('s_sub_u32 %s, %s, 1' % (s(S_SPIN), s(S_SPIN)))
    k('s_cbranch_scc1 %s' % FAIL)
    k('s_waitcnt vmcnt(0)')
    k('v_cmp_gt_u32 vcc, %s, %s' % (minval, v(VT)))
    k('s_cbranch_vccz %s_ok' % L)
    k('s_sleep %d' % sleep)
    k('s_branch %s' % L)
    k.label(L + '_ok')
    k('s_mov_b64 exec, -1')

def set_flag(k, soff_reg, val, flags='sc1'):
    k('v_mov_b32 %s, %s' % (v(VT), val))
    k('v_mov_b32 %s, 0' % v(VZ))
    k('s_mov_b64 exec, 1')
    k('buffer_store_dword %s, %s, %s, %s offen %s' % (v(VT), v(VZ), s(S_WS, 4), s(soff_reg), flags))
    k('s_mov_b64 exec, -1')

def load_blocks(k, blocks, nslot):
    n = len(blocks)
    for i in range(min(nslot, n)):
        blocks[i]['issue']((i % nslot) * 4096, ('wl', i))
    for i in range(n):
        k.wait_vm(('wl', i))
        blocks[i]['read']((i % nslot) * 4096)
        k('s_waitcnt lgkmcnt(0)')
        if i + nslot < n:
            blocks[i + nslot]['issue']((i % nslot) * 4096, ('wl', i + nslot))

def setup_common(k):
    k('v_lshlrev_b32 %s, 4, %s' % (v(L16), v(LANE)))
    k('s_mul_i32 %s, %s, %d' % (s(S_T2), s(S_W), STG_STRIDE))
    k('s_add_u32 %s, %s, %d' % (s(S_T2), s(S_T2), L_STG))

def qkv_addr(k):
    k('v_lshrrev_b32 %s, 2, %s' % (v(VZ), v(LANE)))
    k('v_and_b32 %s, 3, %s' % (v(VT), v(LANE)))
    k('v_lshlrev_b32 %s, 4, %s' % (v(GA), v(VT)))
    k('v_lshl_add_u32 %s, %s, 13, %s' % (v(GA), v(VZ), v(GA)))
    k('s_lshl_b32 %s, %s, 8' % (s(S_T0), s(S_H)))
    k('s_lshl_b32 %s, %s, 6' % (s(S_T1), s(S_W)))
    k('s_add_u32 %s, %s, %s' % (s(S_T0), s(S_T0), s(S_T1)))
    k('v_add_u32 %s, %s, %s' % (v(GA), s(S_T0), v(GA)))
    k('v_lshrrev_b32 %s, 4, %s' % (v(TR), v(LANE)))
    k('v_lshlrev_b32 %s, 3, %s' % (v(TR), v(TR)))
    k('v_and_b32 %s, 3, %s' % (v(VZ), v(VZ)))
    k('v_add_u32 %s, %s, %s' % (v(TR), v(TR), v(VZ)))
    k('v_lshlrev_b32 %s, 6, %s' % (v(TR), v(TR)))
    k('v_lshl_add_u32 %s, %s, 3, %s' % (v(TR), v(VT), v(TR)))
    k('v_add_u32 %s, %s, %s' % (v(TR), s(S_T2), v(TR)))

def qkv_block(k, srdn, b, dest):
    def issue(off, tag):
        for i in range(4):
            k('s_mov_b32 %s, %d' % (s(S_T0), (64 * b + 16 * i) * 8192))
            k('s_add_u32 m0, %s, %d' % (s(S_T2), off + i * 1024))
            k('buffer_load_dwordx4 %s, %s, %s offen lds' % (v(GA), s(srdn, 4), s(S_T0)), tag=tag)
    def read(off):
        for k2 in range(2):
            for t in range(2):
                for hh in range(2):
                    k('ds_read_b64_tr_b16 %s, %s offset:%d' % (R(dest(t, 2 * b + k2), 2 * hh, 2), v(TR), off + (32 * k2 + 4 * hh) * 64 + 32 * t))
    return dict(issue=issue, read=read)

XG1, XR1 = 12, 13
def x_setup(k):
    k('v_lshrrev_b32 %s, 3, %s' % (v(VZ), v(LANE)))
    k('v_lshlrev_b32 %s, 10, %s' % (v(XG), v(VZ)))
    k('v_lshrrev_b32 %s, 4, %s' % (v(VZ), v(LANE)))
    k('v_and_b32 %s, 7, %s' % (v(VT), v(LANE)))
    k('v_xor_b32 %s, %s, %s' % (v(VT), v(VT), v(VZ)))
    k('v_lshl_add_u32 %s, %s, 4, %s' % (v(XG), v(VT), v(XG)))
    k('s_lshl_b32 %s, %s, 8' % (s(S_T0), s(S_W)))
    k('v_add_u32 %s, %s, %s' % (v(XG), s(S_T0), v(XG)))
    k('v_xor_b32 %s, 0x2040, %s' % (v(XG1), v(XG)))
    k('v_bfe_u32 %s, %s, 1, 3' % (v(VT), v(LANE)))
    k('v_xor_b32 %s, %s, %s' % (v(VT), v(VT), v(VZ)))
    k('v_and_b32 %s, 15, %s' % (v(VZ), v(LANE)))
    k('v_lshlrev_b32 %s, 7, %s' % (v(XR), v(VZ)))
    k('v_lshl_add_u32 %s, %s, 4, %s' % (v(XR), v(VT), v(XR)))
    k('v_xor_b32 %s, 64, %s' % (v(XR1), v(XR)))

def x_dma(k, tag):
    k('s_lshl_b32 %s, %s, 12' % (s(S_T0), s(S_W)))
    k('s_add_u32 %s, %s, %s' % (s(S_T0), s(S_T0), s(S_XB)))
    def one(T, j):
        k('s_add_u32 m0, %s, %d' % (s(S_T0), T * 16384 + j * 1024))
        k('s_add_u32 %s, %s, %d' % (s(S_T1), s(S_XS), T * 16384 + (j >> 1) * 128))
        k('buffer_load_dwordx4 %s, %s, %s offen lds' % (v(XG1 if j & 1 else XG), s(S_X, 4), s(S_T1)), tag=tag)
    def fin():
        k('s_add_u32 %s, %s, s61' % (s(S_XS), s(S_XS)))
        k('s_min_u32 %s, %s, %d' % (s(S_XS), s(S_XS), 63 * 32768))
        k('s_add_u32 %s, %s, 0x8000' % (s(S_XB), s(S_XB)))
        k('s_cmp_eq_u32 %s, 0x%x' % (s(S_XB), NXB * 0x8000))
        k('s_cselect_b32 %s, 0, %s' % (s(S_XB), s(S_XB)))
    return [(lambda T=T, j=j: one(T, j)) for T in range(2) for j in range(4)] + [fin]
NXB = 5

def mfma32(d, A, B, first):
    return 'v_mfma_f32_16x16x32_bf16 %s, %s, %s, %s' % (v(d, 4), A, B, '0' if first else v(d, 4))

def proj(k, after_issue=None):
    k.c('===== projections =====')
    S_O0, S_O1, S_OST, S_KIND, S_PAR = S_OO, S_T3, S_T4, S_NSEG, S_SEG
    srd(k, S_X, P_X, 2 << 20)
    S_CS, S_CNT, S_STR = 58, 59, 62
    k('s_mov_b32 %s, %s' % (s(S_CS), s(S_R)))
    k('s_mov_b32 %s, 32' % s(S_CNT))
    k('s_mov_b32 %s, 2' % s(S_STR))
    k.label('L_pj_top')
    LB = k.newlabel('L_pj_b'); LJ = k.newlabel('L_pj_j'); LG = k.newlabel('L_pj_g'); LJ2 = k.newlabel('L_pj_j2')
    x_setup(k)
    qkv_addr(k)
    k('s_lshl_b32 %s, %s, 2' % (s(S_T0), s(S_H)))
    k('s_add_u32 %s, %s, %s' % (s(S_T0), s(S_T0), s(S_W)))
    k('s_lshl_b32 %s, %s, 3' % (s(S_FL), s(S_T0)))
    k('s_add_u32 %s, %s, %s' % (s(S_FL), s(S_FL), s(S_R)))
    k('s_lshl_b32 %s, %s, 4' % (s(S_FL), s(S_FL)))
    k('s_add_u32 %s, %s, 0x%x' % (s(S_FL), s(S_FL), F_KV))
    k('s_cmp_eq_u32 %s, 6' % s(S_R))
    k('s_cbranch_scc1 %s' % LB)
    k('s_and_b32 %s, %s, 1' % (s(S_PAR), s(S_R)))
    k('s_lshr_b32 %s, %s, 1' % (s(S_T1), s(S_R)))
    k('s_cmp_eq_u32 %s, 0' % s(S_T1))
    k('s_cselect_b64 %s, %s, %s' % (s(4, 2), s(P_WK, 2), s(P_WV, 2)))
    k('s_cmp_eq_u32 %s, 2' % s(S_T1))
    k('s_cselect_b64 %s, %s, %s' % (s(4, 2), s(P_WQ, 2), s(4, 2)))
    srd(k, S_AUX, 4, 4 << 20)
    k('s_cselect_b32 %s, 0x40000, 0x80000' % s(S_OST)) if False else None
    k('s_mov_b32 %s, 0x4000' % s(S_OST))
    k('s_lshl_b32 %s, %s, 8' % (s(S_T0), s(S_H)))
    k('s_add_u32 %s, %s, %s' % (s(S_T0), s(S_T0), s(S_W)))
    k('s_lshl_b32 %s, %s, 12' % (s(S_O0), s(S_T0)))
    k('s_and_b32 %s, %s, 1' % (s(S_KIND), s(S_T1)))
    k('s_lshl_b32 %s, %s, 11' % (s(S_O1), s(S_KIND)))
    k('s_add_u32 %s, %s, %s' % (s(S_O0), s(S_O0), s(S_O1)))
    k('s_cmp_lg_u32 %s, 2' % s(S_T1))
    k('s_cbranch_scc1 %s_q' % LB)
    k('s_lshl_b32 %s, %s, 11' % (s(S_O0), s(S_T0)))
    k('s_add_u32 %s, %s, 0x%x' % (s(S_O0), s(S_O0), QX))
    k('s_mov_b32 %s, 0x2000' % s(S_OST))
    k.label(LB + '_q')
    k('s_add_u32 %s, %s, 1024' % (s(S_O1), s(S_O0)))
    k('s_mov_b32 s5, 8192')
    k('s_branch %s' % LJ)
    k.label(LB)
    k('s_and_b32 %s, %s, 1' % (s(S_PAR), s(S_H)))
    k('s_mul_i32 %s, %s, 6' % (s(S_PAR), s(S_PAR)))
    k('s_add_u32 %s, %s, %s' % (s(S_PAR), s(S_PAR), s(S_CS)))
    k('s_cmp_lt_u32 %s, 4' % s(S_PAR))
    k('s_cselect_b32 %s, 6, 5' % s(S_CNT))
    k('s_mov_b32 %s, 12' % s(S_STR))
    k('s_lshl_b32 %s, %s, 5' % (s(S_FL), s(S_GRP)))
    k('s_add_u32 %s, %s, %s' % (s(S_FL), s(S_FL), s(S_TK)))
    k('s_lshl_b32 %s, %s, 2' % (s(S_FL), s(S_FL)))
    k('s_add_u32 %s, %s, %s' % (s(S_FL), s(S_FL), s(S_W)))
    k('s_lshl_b32 %s, %s, 7' % (s(S_FL), s(S_FL)))
    k('s_add_u32 %s, %s, 0x%x' % (s(S_FL), s(S_FL), SCRATCH + 0x10000))
    srd(k, S_AUX, P_WB, 512 * 3072)
    k('s_and_b32 %s, %s, 30' % (s(S_T1), s(S_H)))
    k('s_lshl_b32 %s, %s, 18' % (s(S_O0), s(S_T1)))
    k('s_lshl_b32 %s, %s, 10' % (s(S_T0), s(S_W)))
    k('s_add_u32 %s, %s, %s' % (s(S_O0), s(S_O0), s(S_T0)))
    k('s_add_u32 %s, %s, 0x%x' % (s(S_O0), s(S_O0), BX))
    k('s_add_u32 %s, %s, 0x40000' % (s(S_O1), s(S_O0)))
    k('s_mov_b32 %s, 0x1000' % s(S_OST))
    k('s_cmp_eq_u32 %s, 2' % s(S_W))
    k('s_cselect_b32 %s, 1, 2' % s(S_KIND))
    k('s_cmp_eq_u32 %s, 3' % s(S_W))
    k('s_cselect_b32 %s, 3, %s' % (s(S_KIND), s(S_KIND)))
    k('v_lshrrev_b32 %s, 2, %s' % (v(VZ), v(LANE)))
    k('v_mul_u32_u24 %s, 3072, %s' % (v(GA), v(VZ)))
    k('v_and_b32 %s, 3, %s' % (v(VT), v(LANE)))
    k('v_lshl_add_u32 %s, %s, 4, %s' % (v(GA), v(VT), v(GA)))
    k('s_min_u32 %s, %s, 2048' % (s(S_T0), s(S_T0)))
    k('s_lshl_b32 %s, %s, 5' % (s(S_T1), s(S_T1)))
    k('s_add_u32 %s, %s, %s' % (s(S_T0), s(S_T0), s(S_T1)))
    k('v_add_u32 %s, %s, %s' % (v(GA), s(S_T0), v(GA)))
    k('s_mov_b32 s5, 3072')
    k.label(LJ)
    k('s_lshl_b32 s5, s5, 4')
    k('s_mul_i32 %s, %s, %s' % (s(S_T0), s(S_PAR), s(S_OST)))
    k('s_add_u32 %s, %s, %s' % (s(S_O0), s(S_O0), s(S_T0)))
    k('s_add_u32 %s, %s, %s' % (s(S_O1), s(S_O1), s(S_T0)))
    k('s_mul_i32 %s, %s, %s' % (s(S_OST), s(S_OST), s(S_STR)))
    k('s_lshl_b32 s61, %s, 15' % s(S_STR))
    dW = lambda t, ks: ('a', (t * 16 + ks) * 4)
    k('s_lshl_b32 %s, %s, 15' % (s(S_XS), s(S_PAR)))
    k('s_mov_b32 %s, 0x20000' % s(S_XB))
    for f in x_dma(k, 'x'): f()
    if hasattr(k, 'after_x0'):
        k('s_cmp_eq_u32 %s, 6' % s(S_R))
        k('s_cbranch_scc1 L_pj_nr')
        keep = list(k.vm)
        k.after_x0()
        k.vm = keep
        k.label('L_pj_nr')
    if k.bfrag:
        k('s_cmp_lg_u32 %s, 6' % s(S_R))
        k('s_cbranch_scc1 L_pj_stg')
        k('s_cmp_eq_u32 %s, 3' % s(S_KIND))
        k('s_cbranch_scc1 L_pj_gate')
        k.wait_ready()
        k('s_and_b32 s4, %s, 30' % s(S_H))
        k('s_lshl_b32 s5, s4, 5')
        k('s_add_u32 s5, s5, 0x%x' % (F_D2 + 24))
        poll_flags(k, 5, 2, '1', 'bf', stride=32)
        k('s_lshl_b32 s4, s4, 1')
        k('s_add_u32 s4, s4, %s' % s(S_W))
        k('s_lshl_b32 s4, s4, 15')
        k('s_add_u32 s4, s4, 0x%x' % WBFR)
        for i in range(32):
            k('buffer_load_dwordx4 %s, %s, %s, s4 offen offset:%d sc1' % (a(4 * i, 4), v(L16), s(S_WS, 4), 1024 * (i & 3)))
            if i & 3 == 3: k('s_add_u32 s4, s4, 4096')
        k('s_branch %s' % LJ2)
        k.label('L_pj_stg')
        k.vm = []
    k('s_lshl_b32 s4, %s, 15' % s(S_W))
    k('v_subrev_u32 %s, %s, %s' % (v(TR), s(S_T2), v(TR)))
    k('v_add_u32 %s, s4, %s' % (v(TR), v(TR)))
    k('s_mov_b32 %s, 0' % s(S_T0))
    for i in range(32):
        k('s_add_u32 m0, s4, %d' % (i * 1024))
        k('buffer_load_dwordx4 %s, %s, %s offen lds' % (v(GA), s(S_AUX, 4), s(S_T0)), tag=('wl', i // 4))
        k('s_add_u32 %s, %s, s5' % (s(S_T0), s(S_T0)))
    if after_issue: after_issue()
    for b in range(8):
        k.wait_vm(('wl', b))
        for k2 in range(2):
            for t in range(2):
                for hh in range(2):
                    k('ds_read_b64_tr_b16 %s, %s offset:%d' % (R(dW(t, 2 * b + k2), 2 * hh, 2), v(TR), b * 4096 + (32 * k2 + 4 * hh) * 64 + 32 * t))
        if b % 2: k('s_waitcnt lgkmcnt(0)')
    k('s_cmp_lg_u32 %s, 3' % s(S_KIND))
    k('s_cbranch_scc1 %s' % LJ2)
    k.label('L_pj_gate')
    srd(k, S_WQ, P_GW, 1024)
    k('v_lshrrev_b32 %s, 4, %s' % (v(GA), v(LANE)))
    k('v_lshlrev_b32 %s, 4, %s' % (v(GA), v(GA)))
    for ks in range(16):
        k('buffer_load_dwordx4 %s, %s, %s, 0 offen offset:%d' % (R(dW(0, ks), 0, 4), v(GA), s(S_WQ, 4), ks * 64))
    k.label(LJ2)
    k('s_waitcnt vmcnt(0)')
    if hasattr(k, 'stampw'): k.stampw(7)
    k('s_barrier')
    if hasattr(k, 'after_wload'): k.after_wload()
    k('s_mov_b32 %s, 0' % s(S_I))
    XR0 = 14; S_XRB = 60
    k('v_mov_b32 %s, %s' % (v(XR0), v(XR)))
    k('s_mov_b32 %s, 0x20000' % s(S_XRB))
    k('v_add_u32 %s, %s, %s' % (v(XR), s(S_XRB), v(XR0)))
    k('v_xor_b32 %s, 64, %s' % (v(XR1), v(XR)))
    for i in range(2):
        for f in x_dma(k, 'x'): f()
    ACC, XF, PKR = 16, 48, 72
    k('s_cmp_eq_u32 %s, 1' % s(S_KIND))
    k('s_cbranch_scc1 L_pj_td')
    for name in ('dt', 'td'):
        L = 'L_pj_' + name
        k.label(L)
        k.vm = []; k.lg = []
        k('s_waitcnt vmcnt(19)')
        k('s_barrier')
        dq = x_dma(k, 'x')
        def rd(ks, Ts=(0, 1)):
            for T in Ts:
                k('ds_read_b128 %s, %s offset:%d' % (v(XF + 8 * (ks % 3) + 4 * T, 4), v(XR1 if ks & 1 else XR), T * 16384 + (ks >> 1) * 2048), tag=('xf', ks))
        rd(0); rd(1)
        for ks in range(16):
            k.wait_lg(('xf', ks))
            xf = XF + 8 * (ks % 3)
            n = 0
            for T in range(2):
                for t in range(2):
                    if name == 'dt': k(mfma32(ACC + 4 * (2 * T + t), R(dW(t, ks), 0, 4), v(xf + 4 * T, 4), ks == 0))
                    else: k(mfma32(ACC + 4 * (2 * t + T), v(xf + 4 * T, 4), R(dW(t, ks), 0, 4), ks == 0))
                    if n < 2 and ks + 2 < 16: rd(ks + 2, (n,))
                    if n == 2 and dq and ks >= 7: dq.pop(0)()
                    n += 1
            if ks == 5:
                LF = k.newlabel('L_pjf')
                k('s_sub_i32 %s, %s, 1' % (s(S_T1), s(S_I)))
                k('s_cmp_gt_u32 %s, 1' % s(S_I))
                k('s_cbranch_scc1 %s' % LF)
                k('s_mov_b32 %s, %s' % (s(S_T1), s(S_I)))
                k('s_waitcnt vmcnt(0)')
                k.label(LF)
                k('s_lshl1_add_u32 %s, %s, %s' % (s(S_T1), s(S_T1), s(S_PAR)))
                k('s_waitcnt vmcnt(11)')
                set_flag(k, S_FL, s(S_T1))
        LS = k.newlabel('L_es')
        if name == 'dt':
            L2 = k.newlabel('L_e2'); L3 = k.newlabel('L_e3')
            k('s_cmp_eq_u32 %s, 2' % s(S_KIND))
            k('s_cbranch_scc1 %s' % L2)
            k('s_cmp_eq_u32 %s, 3' % s(S_KIND))
            k('s_cbranch_scc1 %s' % L3)
        for i in range(8): cvt(k, PKR + i, ACC + 2 * i, ACC + 2 * i + 1)
        k.label(LS)
        k('buffer_store_dwordx4 %s, %s, %s, %s offen sc1' % (v(PKR, 4), v(L16), s(S_WS, 4), s(S_O0)))
        k('buffer_store_dwordx4 %s, %s, %s, %s offen sc1' % (v(PKR + 4, 4), v(L16), s(S_WS, 4), s(S_O1)))
        k('s_add_u32 %s, %s, %s' % (s(S_O0), s(S_O0), s(S_OST)))
        k('s_add_u32 %s, %s, %s' % (s(S_O1), s(S_O1), s(S_OST)))
        k('s_add_u32 %s, %s, 0x8000' % (s(S_XRB), s(S_XRB)))
        k('s_cmp_eq_u32 %s, 0x%x' % (s(S_XRB), NXB * 0x8000))
        k('s_cselect_b32 %s, 0, %s' % (s(S_XRB), s(S_XRB)))
        k('v_add_u32 %s, %s, %s' % (v(XR), s(S_XRB), v(XR0)))
        k('v_xor_b32 %s, 64, %s' % (v(XR1), v(XR)))
        k('s_add_u32 %s, %s, 1' % (s(S_I), s(S_I)))
        k('s_cmp_lt_u32 %s, %s' % (s(S_I), s(S_CNT)))
        k('s_cbranch_scc1 %s' % L)
        k('s_branch L_pj_end')
        if name == 'dt':
            k.label(L2)
            k.flush(6)
            for t in range(2):
                for T in range(2):
                    for i in range(2):
                        cvt(k, PKR + 4 * t + 2 * T + i, ACC + 4 * (2 * T + t) + 2 * i, ACC + 4 * (2 * T + t) + 2 * i + 1)
            k('s_branch %s' % LS)
            k.label(L3)
            k.flush(6)
            P3 = PKR
            cvt(k, P3, ACC, ACC + 8)
            k('v_lshlrev_b32 %s, 16, %s' % (v(P3 + 2), v(P3)))
            k('v_and_b32 %s, 0xffff0000, %s' % (v(P3 + 3), v(P3)))
            for i in (2, 3): k('v_mul_f32 %s, 0x%x, %s' % (v(P3 + i), f2u(-math.log2(math.e)), v(P3 + i)))
            for i in (2, 3): k('v_exp_f32 %s, %s' % (v(P3 + i), v(P3 + i)))
            for i in (2, 3): k('v_add_f32 %s, 1.0, %s' % (v(P3 + i), v(P3 + i)))
            for i in (2, 3): k('v_rcp_f32 %s, %s' % (v(P3 + i), v(P3 + i)))
            cvt(k, P3 + 1, P3 + 2, P3 + 3)
            k('v_lshlrev_b32 %s, 16, %s' % (v(P3), v(P3 + 1)))
            k('v_and_b32 %s, 0xffff0000, %s' % (v(P3 + 1), v(P3 + 1)))
            k('v_sub_f32 %s, 1.0, %s' % (v(P3 + 2), v(P3)))
            k('v_sub_f32 %s, 1.0, %s' % (v(P3 + 3), v(P3 + 1)))
            cvt(k, P3 + 3, P3 + 2, P3 + 3)
            k('v_lshlrev_b32 %s, 16, %s' % (v(P3 + 2), v(P3 + 3)))
            k('v_and_b32 %s, 0xffff0000, %s' % (v(P3 + 3), v(P3 + 3)))
            for i in range(4): k('v_mov_b32 %s, %s' % (v(P3 + 4 + i), v(P3 + i)))
            k('s_branch %s' % LS)
    k.label('L_pj_end')
    k.label('L_pj_end2')
    k('s_waitcnt vmcnt(0)')
    set_flag(k, S_FL, '64')
    k('s_barrier')
    k('s_cmp_eq_u32 %s, 6' % s(S_R))
    k('s_mov_b32 %s, 6' % s(S_R))
    k('s_cbranch_scc0 L_pj_top')
    k('s_mov_b32 %s, %s' % (s(S_R), s(S_CS)))
    k('s_lshl_b32 %s, %s, 3' % (s(S_FL), s(S_H)))
    k('s_add_u32 %s, %s, %s' % (s(S_FL), s(S_FL), s(S_R)))
    k('s_lshl_b32 %s, %s, 2' % (s(S_FL), s(S_FL)))
    k('s_add_u32 %s, %s, 0x%x' % (s(S_FL), s(S_FL), F_D2))
    set_flag(k, S_FL, '1')
    k('s_cmp_lt_u32 %s, 4' % s(S_R))
    k('s_cselect_b32 %s, 11, 10' % s(S_NSEG))

def diag_masks(k):
    k('v_lshrrev_b32 %s, 4, %s' % (v(VZ), v(LANE)))
    k('v_lshlrev_b32 %s, 2, %s' % (v(VZ), v(VZ)))
    k('v_and_b32 %s, 15, %s' % (v(VT), v(LANE)))
    k('v_sub_u32 %s, %s, %s' % (v(VT), v(VT), v(VZ)))
    for j in range(4):
        k('v_cmp_le_i32 %s, %d, %s' % (s(S_M + 2 * j, 2), j, v(VT)))

def xreduce(k, op, X, T):
    for sw in ('v_permlane16_swap_b32', 'v_permlane32_swap_b32'):
        k('v_mov_b32 %s, %s' % (v(T), v(X)))
        k('%s %s, %s' % (sw, v(X), v(T)))
        k('%s %s, %s, %s' % (op, v(X), v(X), v(T)))

def round_bf16(k, regs, T):
    for i in range(0, len(regs), 2):
        x, y = regs[i], regs[i + 1]
        cvt(k, y, x, y)
        k('v_lshlrev_b32 %s, 16, %s' % (v(x), v(y)))
        k('v_and_b32 %s, 0xffff0000, %s' % (v(y), v(y)))

def battn(k, waitflags=True, pre=None, post=None):
    k.c('===== B-branch sliding window attention =====')
    if waitflags:
        k('s_and_b32 %s, %s, 30' % (s(S_T3), s(S_H)))
        k('s_lshl_b32 %s, %s, 5' % (s(S_T3), s(S_T3)))
        k('s_add_u32 %s, %s, 0x%x' % (s(S_T3), s(S_T3), F_D2))
        poll_flags(k, S_T3, 16, '1', 'd2', mask=0x3f3f)
    diag_masks(k)
    QB, KB, VB, SC, NEG, MX, TT, LSUM, OO = 8, 12, 48, 84, 228, 230, 232, 234, 236
    def sc(j, kt, T): return SC + 4 * ((j * 2 + kt) * 2 + T)
    k('v_mov_b32 %s, 0xff800000' % v(NEG))
    k('s_mov_b32 %s, %s' % (s(S_I), s(S_W)))
    LOOP = 'L_ba_loop'; END = 'L_ba_end'
    S_RND = 61
    k('s_mov_b32 %s, 0' % s(S_RND))
    def dispatch(fns, name):
        if not fns: return
        J = 'L_ba_%s_j' % name
        for r, f in enumerate(fns):
            if r < len(fns) - 1:
                k('s_cmp_lg_u32 %s, %d' % (s(S_RND), r))
                k('s_cbranch_scc1 L_ba_%s_%d' % (name, r + 1))
            f()
            if r < len(fns) - 1:
                k('s_branch %s' % J)
                k.label('L_ba_%s_%d' % (name, r + 1))
        k.label(J)
    k.label(LOOP)
    k('s_cmp_ge_u32 %s, %s' % (s(S_I), s(S_NSEG)))
    k('s_cbranch_scc1 L_ba_nl')
    k('s_mul_i32 %s, %s, 6' % (s(S_SEG), s(S_I)))
    k('s_add_u32 %s, %s, %s' % (s(S_SEG), s(S_SEG), s(S_R)))
    k.vm = []
    k('s_lshl_b32 %s, %s, 18' % (s(S_T3), s(S_H)))
    k('s_add_u32 %s, %s, 0x%x' % (s(S_T3), s(S_T3), BX))
    k('s_lshl_b32 %s, %s, 12' % (s(S_T0), s(S_SEG)))
    k('s_add_u32 %s, %s, %s' % (s(S_T0), s(S_T0), s(S_T3)))
    k('buffer_load_dwordx4 %s, %s, %s, %s offen sc1' % (v(QB, 4), v(L16), s(S_WS, 4), s(S_T0)), tag='q')
    for j in range(9):
        k('s_sub_i32 %s, %s, %d' % (s(S_T0), s(S_SEG), 8 - j))
        k('s_max_i32 %s, %s, 0' % (s(S_T0), s(S_T0)))
        k('s_lshl_b32 %s, %s, 12' % (s(S_T0), s(S_T0)))
        k('s_add_u32 %s, %s, %s' % (s(S_T0), s(S_T0), s(S_T3)))
        k('buffer_load_dwordx4 %s, %s, %s, %s offen offset:1024 sc1' % (v(KB + 4 * j, 4), v(L16), s(S_WS, 4), s(S_T0)), tag=('k', j))
        k('buffer_load_dwordx4 %s, %s, %s, %s offen offset:2048 sc1' % (v(VB + 4 * j, 4), v(L16), s(S_WS, 4), s(S_T0)), tag=('v', j))
    k.label('L_ba_nl')
    dispatch(pre, 'pre')
    k('s_cmp_ge_u32 %s, %s' % (s(S_I), s(S_NSEG)))
    k('s_cbranch_scc1 L_ba_only')
    dead = {(0, 0, 1), (8, 1, 0)}
    for j in range(9):
        k.wait_vm(('k', j))
        for kt in range(2):
            for T in range(2):
                if (j, kt, T) in dead: continue
                k('v_mfma_f32_16x16x16_bf16 %s, %s, %s, 0' % (v(sc(j, kt, T), 4), v(KB + 4 * j + 2 * kt, 2), v(QB + 2 * T, 2)))
    k.flush(9)
    for T in range(2):
        for jj in range(4):
            k('v_cndmask_b32 %s, %s, %s, %s' % (v(sc(8, T, T) + jj), v(NEG), v(sc(8, T, T) + jj), s(S_M + 2 * jj, 2)))
            k('v_cndmask_b32 %s, %s, %s, %s' % (v(sc(0, T, T) + jj), v(sc(0, T, T) + jj), v(NEG), s(S_M + 2 * jj, 2)))
    LV = k.newlabel('L_ba_valid')
    for j in range(8):
        k('s_cmp_ge_u32 %s, %d' % (s(S_SEG), 8 - j))
        k('s_cbranch_scc1 %s' % LV)
        for r in range(16):
            k('v_mov_b32 %s, %s' % (v(sc(j, 0, 0) + r), v(NEG)))
    k.label(LV)
    c = 0.25 * math.log2(math.e)
    k('s_mov_b32 %s, 0x%x' % (s(S_T4), f2u(c)))
    k('s_mov_b32 %s, 0x%x' % (s(S_T3), f2u(c)))
    if pre: k.sprinkle = [56, k.pb_dma, 56, 11]
    for T in range(2):
        regs = [sc(j, kt, T) + r for j in range(9) for kt in range(2) if (j, kt, T) not in dead for r in range(4)]
        round_bf16(k, regs, TT)
        k('v_max3_f32 %s, %s, %s, %s' % (v(MX), v(regs[0]), v(regs[1]), v(regs[2])))
        k('v_max3_f32 %s, %s, %s, %s' % (v(MX + 1), v(regs[3]), v(regs[4]), v(regs[5])))
        rest = regs[6:]
        for i in range(0, len(rest), 2):
            m = MX + ((i >> 1) & 1)
            k('v_max3_f32 %s, %s, %s, %s' % (v(m), v(m), v(rest[i]), v(rest[i + 1])))
        k('v_max_f32 %s, %s, %s' % (v(MX), v(MX), v(MX + 1)))
        xreduce(k, 'v_max_f32', MX, TT)
        k('v_mul_f32 %s, %s, %s' % (v(MX), s(S_T4), v(MX)))
        for r in regs[::2]: k('v_pk_fma_f32 %s, %s, %s, %s op_sel_hi:[1,1,0] neg_lo:[0,0,1] neg_hi:[0,0,1]' % (v(r, 2), v(r, 2), s(S_T3, 2), v(MX, 2)))
        for r in regs: k('v_exp_f32 %s, %s' % (v(r), v(r)))
        k('v_pk_add_f32 %s, %s, %s' % (v(LSUM, 2), v(regs[0], 2), v(regs[2], 2)))
        k('v_pk_add_f32 %s, %s, %s' % (v(TT, 2), v(regs[4], 2), v(regs[6], 2)))
        for i, r in enumerate(regs[8::2]):
            m = (LSUM, TT)[i & 1]
            k('v_pk_add_f32 %s, %s, %s' % (v(m, 2), v(m, 2), v(r, 2)))
        k('v_pk_add_f32 %s, %s, %s' % (v(LSUM, 2), v(LSUM, 2), v(TT, 2)))
        k('v_add_f32 %s, %s, %s' % (v(LSUM), v(LSUM), v(LSUM + 1)))
        xreduce(k, 'v_add_f32', LSUM, TT)
        k('v_rcp_f32 %s, %s' % (v(LSUM), v(LSUM)))
        for r in regs[::2]: k('v_pk_mul_f32 %s, %s, %s op_sel_hi:[1,0]' % (v(r, 2), v(r, 2), v(LSUM, 2)))
        for j in range(9):
            d = sc(j, 0, T)
            for kt in range(2):
                if (j, kt, T) in dead:
                    k('v_mov_b32 %s, 0' % v(d + 2 * kt)); k('v_mov_b32 %s, 0' % v(d + 2 * kt + 1))
                else:
                    b = sc(j, kt, T)
                    cvt(k, d + 2 * kt, b, b + 1); cvt(k, d + 2 * kt + 1, b + 2, b + 3)
        if T == 0: k.wait_vm(('v', 8))
        for j in range(9):
            k(mfma32(OO + 4 * T, v(VB + 4 * j, 4), v(sc(j, 0, T), 4), j == 0))
    if pre:
        assert k.sprinkle[3] == 0, k.sprinkle
        k.sprinkle = None
    for i in range(4): cvt(k, QB + i, OO + 2 * i, OO + 2 * i + 1)
    k('s_lshl_b32 %s, %s, 15' % (s(S_T0), s(S_SEG)))
    k('s_lshr_b32 %s, %s, 1' % (s(S_T1), s(S_H)))
    k('s_lshl_b32 %s, %s, 10' % (s(S_T1), s(S_T1)))
    k('s_add_u32 %s, %s, %s' % (s(S_T0), s(S_T0), s(S_T1)))
    k('s_and_b32 %s, %s, 1' % (s(S_T1), s(S_H)))
    k('s_lshl_b32 %s, %s, 3' % (s(S_T1), s(S_T1)))
    k('s_add_u32 %s, %s, %s' % (s(S_T0), s(S_T0), s(S_T1)))
    k('s_add_u32 %s, %s, 0x%x' % (s(S_T0), s(S_T0), OB))
    k('s_add_u32 %s, %s, 16384' % (s(S_T1), s(S_T0)))
    k('buffer_store_dwordx2 %s, %s, %s, %s offen sc1' % (v(QB, 2), v(L16), s(S_WS, 4), s(S_T0)))
    k('buffer_store_dwordx2 %s, %s, %s, %s offen sc1' % (v(QB + 2, 2), v(L16), s(S_WS, 4), s(S_T1)))
    k('s_branch L_ba_skip')
    k.label('L_ba_only')
    if pre:
        k('s_mov_b32 %s, 11' % s(S_T1))
        k.label('L_ba_dl')
        k.pb_dma()
        k('s_sub_u32 %s, %s, 1' % (s(S_T1), s(S_T1)))
        k('s_cmp_lg_u32 %s, 0' % s(S_T1))
        k('s_cbranch_scc1 L_ba_dl')
    k.label('L_ba_skip')
    k('s_add_u32 %s, %s, 4' % (s(S_I), s(S_I)))
    k('s_waitcnt vmcnt(0)')
    dispatch(post, 'post')
    k('s_add_u32 %s, %s, 1' % (s(S_RND), s(S_RND)))
    k('s_cmp_lt_u32 %s, 3' % s(S_RND))
    k('s_cbranch_scc1 %s' % LOOP)
    k.label(END)
    k('s_barrier')
    k('s_lshl_b32 %s, %s, 3' % (s(S_FL), s(S_H)))
    k('s_add_u32 %s, %s, %s' % (s(S_FL), s(S_FL), s(S_R)))
    k('s_lshl_b32 %s, %s, 2' % (s(S_FL), s(S_FL)))
    k('s_add_u32 %s, %s, 0x%x' % (s(S_FL), s(S_FL), F_D3))
    set_flag(k, S_FL, '1')


PB_GO, PB_TR, PB_GQ, PB_TRQ, PB_GB = 2, 3, 4, 5, 244
WOV, WBF, ACC, MEMF, AKV, QF, KF, VF, SX, BV, T8, SELT, IDX, NEG, MX, TT, LS = 16, 112, 128, 160, 192, 208, 212, 220, 228, 236, 240, 248, 250, 251, 252, 253, 254
S_STG = 63
wof = lambda dt, kk: (dt * 4 + kk) * 4
wkv = lambda m, ks, t: ((m * 8 + ks) * 2 + t) * 8

def pb_loader(k):
    S_LS, S_LST, S_LR = 58, 59, S_WK
    PB_GA = 245
    srd(k, S_AUX, P_WOB, 512 * 1024)
    k('s_barrier')
    k('s_mul_i32 %s, %s, 40960' % (s(S_STG), s(S_W)))
    k.pb_init()
    S_LM = S_XB
    k('v_lshrrev_b32 %s, 2, %s' % (v(VZ), v(LANE)))
    k('v_and_b32 %s, 3, %s' % (v(VT), v(LANE)))
    k('v_mul_u32_u24 %s, 1056, %s' % (v(PB_TR), v(VZ)))
    k('v_lshl_add_u32 %s, %s, 3, %s' % (v(PB_TR), v(VT), v(PB_TR)))
    k('s_lshl_b32 %s, %s, 8' % (s(S_T1), s(S_W)))
    k('v_add_u32 %s, %s, %s' % (v(PB_TR), s(S_T1), v(PB_TR)))
    k('v_add_u32 %s, %s, %s' % (v(PB_TRQ), s(S_STG), v(L16)))
    k('v_lshrrev_b32 %s, 1, %s' % (v(VZ), v(LANE)))
    k('v_lshlrev_b32 %s, 10, %s' % (v(PB_GB), v(VZ)))
    k('v_and_b32 %s, 1, %s' % (v(VT), v(LANE)))
    k('v_lshl_add_u32 %s, %s, 4, %s' % (v(PB_GB), v(VT), v(PB_GB)))
    k('s_lshl_b32 %s, %s, 17' % (s(S_T0), s(S_W)))
    k('s_lshl_b32 %s, %s, 5' % (s(S_T1), s(S_TK)))
    k('s_add_u32 %s, %s, %s' % (s(S_T0), s(S_T0), s(S_T1)))
    k('v_add_u32 %s, %s, %s' % (v(PB_GB), s(S_T0), v(PB_GB)))
    for i in range(4):
        k('s_mov_b32 %s, %d' % (s(S_T0), 32 * i * 1024))
        k('s_add_u32 m0, %s, %d' % (s(S_STG), 36864 + i * 1024))
        k('buffer_load_dwordx4 %s, %s, %s offen lds' % (v(PB_GB), s(S_AUX, 4), s(S_T0)))
    def pb_dma():
        if k.pb_lim: k('s_waitcnt vmcnt(%d)' % (k.pb_lim - 1))
        k('buffer_load_dwordx4 %s, %s, %s offen lds' % (v(L16), s(S_LR, 4), s(S_LS)))
        k('s_add_u32 m0, m0, %s' % s(S_LM))
        k('s_add_u32 %s, %s, 1024' % (s(S_LS), s(S_LS)))
        k('s_min_u32 %s, %s, 0x%x' % (s(S_LS), s(S_LS), (4 << 20) - 1024))
    k.pb_dma = pb_dma
    def pre(m):
        def f():
            k('s_lshl_b32 %s, %s, 2' % (s(S_LS), s(S_TK)))
            k('s_add_u32 %s, %s, %s' % (s(S_LS), s(S_LS), s(S_W)))
            k('s_lshl_b32 %s, %s, 15' % (s(S_LS), s(S_LS)))
            if m < 2:
                srd(k, S_LR, P_WS, WS_BYTES)
                k('s_add_u32 %s, %s, 0x%x' % (s(S_LS), s(S_LS), WKVF + m * 0x400000))
            else:
                srd(k, S_LR, P_WO, 4 << 20)
            k('s_mov_b32 %s, %d' % (s(S_LM), 1024 if m < 2 else 1056))
            k('s_mov_b32 m0, %s' % s(S_STG))
        return f
    def post_kv(m):
        def f():
            for i in range(32):
                k('ds_read_b128 %s, %s offset:%d' % (a(128 * m + 4 * i, 4), v(PB_TRQ), i * 1024))
                if i % 8 == 7: k('s_waitcnt lgkmcnt(0)')
        return f
    def final():
        k('s_barrier')
        k('v_add_u32 %s, %d, %s' % (v(PB_GO), 2 * 40960, v(PB_TR)))
        for dt in range(8):
            for kk in range(4):
                for hh in range(2):
                    k('ds_read_b64_tr_b16 %s, %s offset:%d' % (a(wof(dt, kk) + 2 * hh, 2), v(PB_GO if kk >= 2 else PB_TR), (kk & 1) * 40960 + 16 * hh * 1056 + dt * 32))
            k('s_waitcnt lgkmcnt(0)')
        k('v_lshlrev_b32 %s, 3, %s' % (v(VZ), v(LANE)))
        k('v_add_u32 %s, %s, %s' % (v(VZ), s(S_STG), v(VZ)))
        for hb in range(8):
            k('ds_read_b64_tr_b16 %s, %s offset:%d' % (v(WBF + 2 * hb, 2), v(VZ), 36864 + hb * 512))
        k('s_waitcnt lgkmcnt(0)')
    pre(2)()
    return [lambda: None], None, final

def phaseB(k, waitflags=True, opt={}):
    k.c('===== phase B =====')
    srd(k, S_OUT, P_OUT, 2 << 20)
    k('s_barrier')
    PFA, ST, OA, LW2, LW1, MEMA, MEMO, HOME = 8, 9, 10, 11, 12, 13, 14, 15
    BRA, GRA, L8, IDXR = 2, 3, 4, 5
    SELR = 244
    L_SMX, L_OX, L_HOME, L_BX = 16384, 20480, 32768, 8192
    S_PF = S_T2
    k('s_mul_i32 %s, %s, 12288' % (s(S_PF), s(S_W)))
    k('s_add_u32 %s, %s, 65536' % (s(S_PF), s(S_PF)))
    k('s_lshl_b32 %s, %s, 13' % (s(S_T0), s(S_W)))
    k('v_add_u32 %s, %s, %s' % (v(HOME), s(S_T0), v(L16)))
    k('s_lshl_b32 %s, %s, 11' % (s(S_T0), s(S_W)))
    k('v_add_u32 %s, %s, %s' % (v(LW2), s(S_T0), v(L16)))
    k('s_lshl_b32 %s, %s, 10' % (s(S_T0), s(S_W)))
    k('v_add_u32 %s, %s, %s' % (v(LW1), s(S_T0), v(L16)))
    diag_masks(k)
    k('v_and_b32 %s, 15, %s' % (v(VT), v(LANE)))
    k('v_lshrrev_b32 %s, 4, %s' % (v(VZ), v(LANE)))
    k('v_cmp_gt_u32 vcc, 8, %s' % v(VT))
    k('v_mov_b32 %s, 0xeeee' % v(IDX))
    k('v_mov_b32 %s, 0x4444' % v(TT))
    k('v_cndmask_b32 %s, %s, %s, vcc' % (v(IDX), v(IDX), v(TT)))
    k('v_lshlrev_b32 %s, 3, %s' % (v(ST), v(VT)))
    k('v_lshl_add_u32 %s, %s, 12, %s' % (v(ST), v(VZ), v(ST)))
    k('v_and_b32 %s, 7, %s' % (v(MX), v(LANE)))
    k('v_lshrrev_b32 %s, 5, %s' % (v(TT), v(LANE)))
    k('v_lshl_add_u32 %s, %s, 1, %s' % (v(MX), v(MX), v(TT)))
    k('v_and_b32 %s, 1, %s' % (v(TT), v(VZ)))
    k('v_lshlrev_b32 %s, 10, %s' % (v(OA), v(MX)))
    k('v_lshl_add_u32 %s, %s, 2, %s' % (v(OA), v(TT), v(OA)))
    k('s_lshl_b32 %s, %s, 5' % (s(S_T0), s(S_H)))
    k('s_lshl_b32 %s, %s, 3' % (s(S_T1), s(S_W)))
    k('s_add_u32 %s, %s, %s' % (s(S_T0), s(S_T0), s(S_T1)))
    k('v_add_u32 %s, %s, %s' % (v(OA), s(S_T0), v(OA)))
    k('v_bfrev_b32 %s, 1' % v(LS))
    k('v_cndmask_b32 %s, %s, %s, vcc' % (v(OA), v(LS), v(OA)))
    k('v_lshlrev_b32 %s, 4, %s' % (v(GRA), v(MX)))
    k('v_lshl_add_u32 %s, %s, 3, %s' % (v(BRA), v(TT), v(GRA)))
    k('v_add_u32 %s, %s, %s' % (v(GRA), s(S_PF), v(GRA)))
    k('s_lshl_b32 %s, %s, 8' % (s(S_T0), s(S_W)))
    k('s_add_u32 %s, %s, %d' % (s(S_T0), s(S_T0), L_BX))
    k('v_add_u32 %s, %s, %s' % (v(BRA), s(S_T0), v(BRA)))
    k('v_add_u32 %s, %d, %s' % (v(L8), L_BX, v(LW1)))
    k('v_mov_b32 %s, 0x3f80' % v(MX))
    k('v_and_b32 %s, 2, %s' % (v(TT), v(VT)))
    k('v_cmp_eq_u32 s[4:5], 0, %s' % v(TT))
    k('v_mov_b32 %s, 0' % v(LS))
    k('v_cndmask_b32 %s, %s, %s, s[4:5]' % (v(TT), v(LS), v(MX)))
    k('v_cndmask_b32 %s, %s, %s, vcc' % (v(SELR), v(LS), v(TT)))
    k('v_cndmask_b32 %s, %s, %s, vcc' % (v(SELR + 1), v(TT), v(LS)))
    k('v_mov_b32 %s, %s' % (v(SELR + 2), v(SELR)))
    k('v_mov_b32 %s, %s' % (v(SELR + 3), v(SELR + 1)))
    k('v_bfe_u32 %s, %s, 2, 1' % (v(TT), v(VT)))
    k('v_and_b32 %s, 1, %s' % (v(LS), v(VT)))
    k('v_lshl_add_u32 %s, %s, 1, %s' % (v(TT), v(TT), v(LS)))
    k('v_xor_b32 %s, 1, %s' % (v(LS), v(TT)))
    k('v_lshl_add_u32 %s, %s, 2, %s' % (v(TT), v(LS), v(TT)))
    k('v_mul_u32_u24 %s, 0x1111, %s' % (v(IDXR), v(TT)))
    k('v_and_b32 %s, 1, %s' % (v(VZ), v(VZ)))
    k('v_lshlrev_b32 %s, 2, %s' % (v(VZ), v(VZ)))
    k('v_and_b32 %s, 7, %s' % (v(VT), v(LANE)))
    k('v_sub_u32 %s, %s, %s' % (v(VT), v(VT), v(VZ)))
    k('v_mov_b32 %s, 0x3f800000' % v(TT))
    for r in range(2):
        k('v_mov_b32 %s, 0' % v(SELT + r))
        k('v_cmp_eq_u32 vcc, %d, %s' % (2 * r, v(VT)))
        k('v_cndmask_b32 %s, %s, %s, vcc' % (v(SELT + r), v(SELT + r), v(MX)))
        k('v_cmp_eq_u32 vcc, %d, %s' % (2 * r + 1, v(VT)))
        k('v_cndmask_b32 %s, %s, %s, vcc' % (v(SELT + r), v(SELT + r), v(TT)))
    k('v_mov_b32 %s, 0xff800000' % v(NEG))
    if waitflags:
        for r in range(4):
            k('s_mov_b32 %s, 0x%x' % (s(S_T3), F_D3 + 256 * r))
            poll_flags(k, S_T3, 64, '1', 'd3', skip7=True)
    S_PBW, S_PBR, S_U, S_T, S_TG = S_XS, S_XB, S_R, S_NSEG, S_FL
    k('s_lshl_b32 %s, %s, 20' % (s(S_T0), s(S_GRP)))
    k('s_add_u32 %s, %s, 0x%x' % (s(S_T0), s(S_T0), PB))
    k('s_lshl_b32 %s, %s, 17' % (s(S_PBW), s(S_W)))
    k('s_add_u32 %s, %s, %s' % (s(S_PBW), s(S_PBW), s(S_T0)))
    k('s_lshl_b32 %s, %s, 7' % (s(S_T1), s(S_H)))
    k('s_add_u32 %s, %s, %s' % (s(S_PBW), s(S_PBW), s(S_T1)))
    k('s_lshl_b32 %s, %s, 14' % (s(S_PBR), s(S_H)))
    k('s_add_u32 %s, %s, %s' % (s(S_PBR), s(S_PBR), s(S_T0)))
    k('s_lshl_b32 %s, %s, 12' % (s(S_T1), s(S_W)))
    k('s_add_u32 %s, %s, %s' % (s(S_PBR), s(S_PBR), s(S_T1)))
    k('s_mov_b32 %s, 0' % s(S_I))
    k('s_sub_u32 %s, %s, 2' % (s(S_U), s(S_GRP)))
    k('s_mov_b32 %s, 0x%x' % (s(S_T4), f2u(128 ** -0.5)))
    S_SC, S_L2 = 84, 86
    for i in range(2):
        k('s_mov_b32 %s, 0x%x' % (s(S_SC + i), f2u(128 ** -0.5)))
        k('s_mov_b32 %s, 0x%x' % (s(S_L2 + i), f2u(math.log2(math.e))))
    def mf16(d, A, B, C=None): k('v_mfma_f32_16x16x16_bf16 %s, %s, %s, %s' % (v(d, 4), v(A, 2), v(B, 2), '0' if C is None else v(C, 4)))
    def rnd2(regs):
        round_bf16(k, regs, TT)
        for r in regs: k('v_mul_f32 %s, %s, %s' % (v(r), s(S_T4), v(r)))
        round_bf16(k, regs, TT)
    def add(d, x, y): k('v_add_f32 %s, %s, %s' % (v(d), v(x), v(y)))
    ld = lambda d, so, off, tag: k('buffer_load_dwordx4 %s, %s, %s, %s offen offset:%d sc1' % (v(d, 4), v(L16), s(S_WS, 4), s(so), off), tag=tag)
    S_MB = 60
    k('v_add_u32 %s, %s, %s' % (v(PFA), s(S_PF), v(L16)))
    KAA, VMA = MEMO, MEMA
    k('v_and_b32 %s, 0x370, %s' % (v(KAA), v(L16)))
    k('v_add_u32 %s, 0x10000, %s' % (v(KAA), v(KAA)))
    k('v_and_b32 %s, 0x1f0, %s' % (v(VMA), v(L16)))
    k('v_add_u32 %s, %s, %s' % (v(VMA), s(S_PF), v(VMA)))
    dma = lambda so, off, fl='sc1': k('buffer_load_dwordx4 %s, %s, %s offen offset:%d %s lds' % (v(L16), s(S_WS, 4), s(so), off, fl))
    def prefetch(su, mb):
        T = []
        def grp(pre, n, fl='sc1'):
            for i in range(n):
                def f(i=i):
                    if i == 0: k(pre)
                    k('buffer_load_dwordx4 %s, %s, s6 offen offset:%d %s lds' % (v(L16), s(S_WS, 4), 1024 * i, fl))
                T.append(f)
        d = dict(su=s(su), h=s(S_H), w=s(S_W), pf=s(S_PF), mb=s(mb), QX=QX, BX=BX + 3072, OB=OB, MX=WKVF)
        grp('s_lshr_b32 s4, %(su)s, 1\ns_lshl_b32 s5, %(h)s, 6\ns_add_u32 s5, s5, s4\ns_lshl_b32 s7, s5, 2\ns_add_u32 s7, s7, %(w)s\ns_lshl_b32 s6, s7, 12\ns_mov_b32 m0, %(pf)s' % d, 4)
        grp('s_and_b32 s6, %(su)s, 1\ns_lshl1_add_u32 s6, s7, s6\ns_lshl_b32 s6, s6, 10\ns_add_u32 s6, s6, 0x%(QX)x\ns_add_u32 m0, %(pf)s, 4096' % d, 1)
        grp('s_lshl_b32 s6, s5, 12\ns_add_u32 s6, s6, 0x%(BX)x\ns_add_u32 m0, %(pf)s, 5120' % d, 1)
        grp('s_lshl_b32 s6, %(su)s, 2\ns_add_u32 s6, s6, %(w)s\ns_lshl_b32 s6, s6, 12\ns_add_u32 s6, s6, 0x%(OB)x\ns_add_u32 m0, %(pf)s, 6144' % d, 4)
        grp('s_lshl_b32 s6, s7, 10\ns_add_u32 s6, s6, 0x%(MX)x\ns_add_u32 m0, %(pf)s, 10240' % d, 1)
        return T
    PFG = LW2
    k('v_add_u32 %s, 0x10000, %s' % (v(PFG), v(L16)))
    S_PD = 62
    k('s_mov_b32 %s, 49152' % s(S_PD))
    k('s_mov_b32 s61, %s' % s(S_PBR))
    k('s_mov_b32 %s, 0' % s(S_MB))
    for f in prefetch(S_U, S_MB): f()
    RA = ACC + 16; RR = AKV; S_RT, S_RO, S_RR = 58, 59, 61
    def reduce(name, issued=False):
        k('v_mov_b64 %s, 0' % v(RA, 2)); k('v_mov_b64 %s, 0' % v(RA + 2, 2))
        k('s_mov_b32 %s, %d' % (s(S_SPIN), SPIN_MAX))
        if issued: k('s_branch L_pb_w' + name)
        k('s_mov_b64 vcc, -1')
        k.label('L_pb_r' + name)
        k('s_mov_b64 exec, vcc')
        for i in range(4): ld(RR + 4 * i, S_RR, i * 1024, None)
        k('s_sub_u32 %s, %s, 1' % (s(S_SPIN), s(S_SPIN)))
        k('s_cbranch_scc1 %s' % FAIL)
        k('s_waitcnt vmcnt(0)')
        k.label('L_pb_w' + name)
        for i in range(4): k('v_bitop3_b32 %s, %s, %s, %s bitop3:0x7e' % (v(RA + 4 + i), v(RR + 4 * i), v(RR + 4 * i + 2), s(S_RT)))
        k('v_or3_b32 %s, %s, %s, %s' % (v(RA + 4), v(RA + 4), v(RA + 5), v(RA + 6)))
        k('v_bitop3_b32 %s, %s, %s, 1 bitop3:0xa8' % (v(RA + 4), v(RA + 4), v(RA + 7)))
        k('v_cmp_ne_u32 vcc, 0, %s' % v(RA + 4))
        k('s_cbranch_vccnz L_pb_r' + name)
        k('s_mov_b64 exec, -1')
        for i in range(2): k('v_smfmac_f32_16x16x64_bf16 %s, %s, %s, %s' % (v(RA, 4), v(SELR, 4), v(RR + 8 * i, 8), v(IDXR)))
        for j in range(2): k('v_add_f32_dpp %s, %s, %s row_ror:8 row_mask:0xf bank_mask:0xf' % (v(RA + j), v(RA + j), v(RA + j)))
        round_bf16(k, [RA, RA + 1], TT)
        for j in range(2): k('v_mul_f32 %s, %s, %s' % (v(RA + j), v(RA + j), v(BV + 2)))
        round_bf16(k, [RA, RA + 1], TT)
        for j in range(2): add(RA + j, RA + j, BV + j)
        cvt(k, RA, RA, RA + 1)
        k('buffer_store_dword %s, %s, %s, %s offen' % (v(RA), v(OA), s(S_OUT, 4), s(S_RO)))
    npt = [0]
    def PT():
        if opt.get('pbprof'):
            i = npt[0]; npt[0] += 1
            k.raw('  s_memtime s[64:65]\n  s_waitcnt lgkmcnt(0)\n  s_sub_u32 s67, s64, s66\n  s_add_u32 s%d, s%d, s67\n  s_mov_b32 s66, s64' % (70 + i, 70 + i))
    if opt.get('pbprof'):
        for i in range(12): k('s_mov_b32 s%d, 0' % (70 + i))
        k.raw('  s_memtime s[64:65]\n  s_waitcnt lgkmcnt(0)\n  s_mov_b32 s66, s64')
    k('s_waitcnt vmcnt(0) lgkmcnt(0)')
    LOOP = 'L_pb_loop'
    k.label(LOOP)
    k('s_waitcnt vmcnt(%d)' % 8)
    k('s_barrier')
    k.vm = []; k.lg = []
    OBF = ACC
    QA = MEMF
    for w_ in range(4): k('ds_read_b128 %s, %s offset:%d' % (v(QA + 4 * w_, 4), v(PFG), w_ * 12288 + 4096), tag=('qa', w_))
    def KR(w_):
        for kt in range(2): k('ds_read_b128 %s, %s offset:%d' % (v(MEMF + 16 + 8 * (w_ & 1) + 4 * kt, 4), v(PFG), w_ * 12288 + 1024 * kt), tag=('ka', w_))
    KR(0); KR(1)
    k('s_lshr_b32 %s, %s, 1' % (s(S_SEG), s(S_U)))
    k('s_and_b32 %s, %s, 1' % (s(S_T), s(S_U)))
    k('s_bfe_u32 %s, %s, 0x10001' % (s(S_TG), s(S_I)))
    for w_ in range(4):
        k.wait_lg(('ka', w_))
        for kt in range(2): k(mfma32(SX + 4 * kt, v(MEMF + 16 + 8 * (w_ & 1) + 4 * kt, 4), v(QA + 4 * w_, 4), w_ == 0))
        if w_ < 2: KR(w_ + 2)
        else:
            for i in range(2): k('ds_read_b128 %s, %s offset:%d' % (v(OBF + 8 * (w_ - 2) + 4 * i, 4), v(PFA), 6144 + 2048 * (w_ - 2) + 1024 * i), tag=('ob', w_ - 2))
    for i in range(2): k('ds_read_b128 %s, %s offset:%d' % (v(VF + 4 * i, 4), v(PFA), 2048 + 1024 * i))
    for i in range(4):
        k.wait_lg(('ob', i >> 1))
        k(mfma32(T8, v(WBF + 4 * i, 4), v(OBF + 4 * i, 4), i == 0))
        if opt.get('rearly', 1): ld(RR + 4 * i, S_RR, i * 1024, None)
    rnd2([SX + i for i in range(8)])
    k('ds_write_b128 %s, %s' % (v(L8), v(T8, 4)))
    LT1 = k.newlabel('L_pb_t1'); LTJ = k.newlabel('L_pb_tj')
    k('s_cmp_eq_u32 %s, 1' % s(S_T))
    k('s_cbranch_scc1 %s' % LT1)
    for jj in range(4):
        k('v_cndmask_b32 %s, %s, %s, %s' % (v(SX + jj), v(NEG), v(SX + jj), s(S_M + 2 * jj, 2)))
        k('v_mov_b32 %s, %s' % (v(SX + 4 + jj), v(NEG)))
    k('s_branch %s' % LTJ)
    k.label(LT1)
    for jj in range(4):
        k('v_cndmask_b32 %s, %s, %s, %s' % (v(SX + 4 + jj), v(NEG), v(SX + 4 + jj), s(S_M + 2 * jj, 2)))
    k.label(LTJ)
    XM = VT
    if not opt.get('rearly', 1):
        for i in range(4): ld(RR + 4 * i, S_RR, i * 1024, None)
    k('v_max3_f32 %s, %s, %s, %s' % (v(XM), v(SX), v(SX + 1), v(SX + 2)))
    k('v_max3_f32 %s, %s, %s, %s' % (v(TT), v(SX + 3), v(SX + 4), v(SX + 5)))
    k('v_max3_f32 %s, %s, %s, %s' % (v(XM), v(XM), v(SX + 6), v(SX + 7)))
    k('v_max_f32 %s, %s, %s' % (v(XM), v(XM), v(TT)))
    xreduce(k, 'v_max_f32', XM, TT)
    PL = 'L_pb_poll'
    def memchk():
        k('ds_read_b128 %s, %s offset:10240' % (v(QF, 4), v(PFA)))
        k('s_waitcnt lgkmcnt(0)')
        k('v_max3_u32 %s, %s, %s, %s' % (v(TT), v(QF), v(QF + 1), v(QF + 2)))
        k('v_max_u32 %s, %s, %s' % (v(TT), v(TT), v(QF + 3)))
        k('v_cmp_eq_u32 vcc, -1, %s' % v(TT))
    PT()
    k('s_cmp_eq_u32 %s, 0' % s(S_I))
    k('s_waitcnt vmcnt(0)')
    k('s_cbranch_scc1 L_pb_nored')
    reduce('a', True)
    k.label('L_pb_nored')
    k('s_lshl_b32 %s, %s, 2' % (s(S_T0), s(S_T)))
    k('v_add_u32 %s, %s, %s' % (v(TT), s(S_T0), v(GRA)))
    k('ds_read_b32 %s, %s offset:5120' % (v(BV + 2), v(TT)))
    k('ds_read_b32 %s, %s offset:5128' % (v(BV + 3), v(TT)))
    k('s_add_u32 %s, %s, 6' % (s(S_OO), s(S_U)))
    k('s_mov_b32 %s, %s' % (s(S_MB), s(S_PF)))
    k('s_add_u32 %s, %s, %s' % (s(S_PF), s(S_PF), s(S_PD)))
    k('s_cmp_ge_u32 %s, 122' % s(S_U))
    k('s_cbranch_scc1 L_pb_nopf')
    for f in prefetch(S_OO, S_RT): f()
    k.label('L_pb_nopf')
    PT()
    memchk()
    k('s_cbranch_vccz %s_ok' % PL)
    k('s_lshl_b32 %s, %s, 6' % (s(S_T0), s(S_H)))
    k('s_add_u32 %s, %s, %s' % (s(S_T0), s(S_T0), s(S_SEG)))
    k('s_lshl_b32 %s, %s, 2' % (s(S_T0), s(S_T0)))
    k('s_add_u32 %s, %s, %s' % (s(S_T0), s(S_T0), s(S_W)))
    k('s_lshl_b32 %s, %s, 10' % (s(S_T0), s(S_T0)))
    k('s_add_u32 %s, %s, 0x%x' % (s(S_T0), s(S_T0), WKVF))
    k('s_add_u32 m0, %s, 10240' % s(S_MB))
    k('s_mov_b32 %s, %d' % (s(S_SPIN), SPIN_MAX))
    k('s_sub_u32 %s, %s, 4096' % (s(S_T1), s(S_T0)))
    k('s_cmp_eq_u32 %s, 0' % s(S_SEG))
    k('s_cselect_b32 %s, %s, %s' % (s(S_T1), s(S_T0), s(S_T1)))
    k('s_mov_b32 %s, 0' % s(S_T3))
    k('s_mov_b64 exec, 1')
    k.label(PL)
    k('buffer_load_dword %s, %s, %s, %s offen sc1' % (v(TT), v(L16), s(S_WS, 4), s(S_T1)))
    k('s_sub_u32 %s, %s, 1' % (s(S_SPIN), s(S_SPIN)))
    k('s_cbranch_scc1 %s' % FAIL)
    k('s_waitcnt vmcnt(0)')
    k('v_cmp_eq_u32 vcc, -1, %s' % v(TT))
    k('s_cbranch_vccz %s_a' % PL)
    k('s_mov_b32 %s, 1' % s(S_T3))
    k('s_sleep %d' % opt.get('pbsleep', 6))
    k('s_branch %s' % PL)
    k.label(PL + '_a')
    k('s_mov_b64 exec, -1')
    k('s_cmp_eq_u32 %s, 0' % s(S_T3))
    k('s_cbranch_scc1 %s_b' % PL)
    k('s_sleep %d' % opt.get('pbsleep2', 12))
    k.label(PL + '_b')
    dma(S_T0, 0)
    k('s_sub_u32 %s, %s, 1' % (s(S_SPIN), s(S_SPIN)))
    k('s_cbranch_scc1 %s' % FAIL)
    if opt.get('pbd', 0): k('s_waitcnt vmcnt(%d)' % (2 * (opt.get('pbd', 0) - 1))); k('s_sleep %d' % opt.get('pbs3', 3))
    else: k('s_waitcnt vmcnt(0)')
    memchk()
    k('s_cbranch_vccnz %s_b' % PL)
    k.label(PL + '_ok')
    k('s_barrier')
    PT()
    k.lg = []
    VM = KF; KA = MEMF + 16
    def pk(op, d, x, y, mod=''): k('%s %s, %s, %s %s' % (op, v(d, 2), x, y, mod))
    for w_ in range(4):
        for hh in range(2): k('ds_read_b64 %s, %s offset:%d' % (v(KA + 4 * w_ + 2 * hh, 2), v(KAA), w_ * 12288 + 10240 + 128 * hh), tag=('km', w_))
    for t in range(2): k('ds_read_b64 %s, %s offset:%d' % (v(VM + 2 * t, 2), v(VMA), 10248 + 512 * t))
    for i in range(4): k('ds_read_b64 %s, %s offset:%d' % (v(ACC + 2 * i, 2), v(BRA), 1024 * i), tag='br')
    for w_ in range(4):
        k.wait_lg(('km', w_))
        k(mfma32(AKV, v(KA + 4 * w_, 4), v(QA + 4 * w_, 4), w_ == 0))
    k.wait_lg('br')
    for j in range(2): add(ACC + j, ACC + j, ACC + 2 + j)
    for j in range(2): add(ACC + 4 + j, ACC + 4 + j, ACC + 6 + j)
    for j in range(2): add(BV + j, ACC + j, ACC + 4 + j)
    PT()
    mr = [AKV + j for j in range(4)]; xr = [SX + j for j in range(8)]
    round_bf16(k, mr, TT)
    for j in (0, 2): pk('v_pk_mul_f32', AKV + j, v(AKV + j, 2), s(S_SC, 2))
    round_bf16(k, mr, TT)
    regs = xr + mr
    k('v_max3_f32 %s, %s, %s, %s' % (v(MX), v(mr[0]), v(mr[1]), v(XM)))
    k('v_max3_f32 %s, %s, %s, %s' % (v(MX), v(MX), v(mr[2]), v(mr[3])))
    k('v_mov_b32 %s, %s' % (v(TT), v(MX)))
    k('v_permlane16_swap_b32 %s, %s' % (v(MX), v(TT)))
    k('v_max_f32 %s, %s, %s' % (v(MX), v(MX), v(TT)))
    k('v_mul_f32 %s, %s, %s' % (v(MX), s(S_L2), v(MX)))
    for r in regs[::2]: k('v_pk_fma_f32 %s, %s, %s, %s op_sel_hi:[1,1,0] neg_lo:[0,0,1] neg_hi:[0,0,1]' % (v(r, 2), v(r, 2), s(S_L2, 2), v(MX, 2)))
    for r in regs: k('v_exp_f32 %s, %s' % (v(r), v(r)))
    pk('v_pk_add_f32', T8, v(xr[0], 2), v(xr[2], 2)); pk('v_pk_add_f32', T8 + 2, v(xr[4], 2), v(xr[6], 2))
    pk('v_pk_add_f32', LS, v(mr[0], 2), v(mr[2], 2)); pk('v_pk_add_f32', T8, v(T8, 2), v(T8 + 2, 2))
    add(LS, LS, LS + 1); add(T8, T8, T8 + 1)
    k('v_fma_f32 %s, %s, 0.5, %s' % (v(LS), v(LS), v(T8)))
    xreduce(k, 'v_add_f32', LS, TT)
    k('v_rcp_f32 %s, %s' % (v(LS), v(LS)))
    for r in regs[::2]: pk('v_pk_mul_f32', r, v(r, 2), v(LS, 2), 'op_sel_hi:[1,0]')
    PX, PM, O = T8, ACC + 16, AKV + 8
    for i in range(4): cvt(k, PX + i, xr[2 * i], xr[2 * i + 1])
    cvt(k, PM, mr[0], mr[1]); cvt(k, PM + 1, mr[2], mr[3])
    k('s_mov_b32 exec_lo, 0')
    k('v_mov_b64 %s, 0' % v(PM, 2))
    k('s_mov_b32 exec_lo, -1')
    for t in range(2): k(mfma32(O + 4 * t, v(VF + 4 * t, 4), v(PX, 4), True))
    for t in range(2): mf16(O + 4 * t, VM + 2 * t, PM, O + 4 * t)
    round_bf16(k, [BV, BV + 1], TT)
    for j in range(2): k('v_mul_f32 %s, %s, %s' % (v(BV + j), v(BV + j), v(BV + 3)))
    round_bf16(k, [BV, BV + 1], TT)
    for i in range(4): cvt(k, T8 + i, O + 2 * i, O + 2 * i + 1)
    k('ds_write_b128 %s, %s offset:%d' % (v(LW1), v(T8, 4), L_OX))
    k('s_waitcnt lgkmcnt(0)')
    k('s_barrier')
    PT()
    OF = AKV
    for kk in range(4): k('ds_read_b128 %s, %s offset:%d' % (v(OF + 4 * kk, 4), v(L16), L_OX + 1024 * kk), tag=('of', kk))
    k('s_mov_b32 %s, %s' % (s(S_T0), s(S_PBW)))
    def pack(dt):
        r = ACC + 4 * dt
        cvt(k, r, r, r + 1); cvt(k, r + 1, r + 2, r + 3)
        k('v_bfi_b32 %s, 1, %s, %s' % (v(r), s(S_TG), v(r)))
    def st(dt):
        k('buffer_store_dwordx2 %s, %s, %s, %s offen' % (v(ACC + 4 * dt, 2), v(ST), s(S_WS, 4), s(S_T0)))
        k('s_add_u32 %s, %s, 0x4000' % (s(S_T0), s(S_T0)))
    for dt in range(8):
        for kk in range(4):
            if dt == 0: k.wait_lg(('of', kk))
            k(mfma32(ACC + 4 * dt, a(wof(dt, kk), 4), v(OF + 4 * kk, 4), kk == 0))
            if kk == 2 and dt > 0: pack(dt - 1)
            if kk == 3 and dt > 0: st(dt - 1)
    k('s_mov_b32 %s, %s' % (s(S_RT), s(S_TG)))
    k('s_mov_b32 %s, %s' % (s(S_RR), s(S_PBR)))
    k('s_lshl_b32 %s, %s, 14' % (s(S_RO), s(S_U)))
    k('s_add_u32 %s, %s, 1' % (s(S_I), s(S_I)))
    for r in (PFA, PFG, GRA, KAA, VMA): k('v_add_u32 %s, %s, %s' % (v(r), s(S_PD), v(r)))
    k('s_sub_u32 %s, 0, %s' % (s(S_PD), s(S_PD)))
    pack(7); st(7)
    k('s_xor_b32 %s, %s, 0x80000' % (s(S_PBW), s(S_PBW)))
    k('s_xor_b32 %s, %s, 0x80000' % (s(S_PBR), s(S_PBR)))
    k('s_add_u32 %s, %s, 6' % (s(S_U), s(S_U)))
    PT()
    k('s_cmp_lt_u32 %s, 128' % s(S_U))
    k('s_cbranch_scc1 %s' % LOOP)
    for i in range(opt.get('pbw', 3)): k('s_nop 15')
    reduce('b')
    if opt.get('pbprof'):
        for i in range(8): k('v_mov_b32 v%d, s%d' % (16 + i, 70 + i))
        k('s_lshl_b32 s55, s50, 5\ns_add_u32 s55, s55, s40\ns_lshl_b32 s55, s55, 2\ns_add_u32 s55, s55, s41\ns_lshl_b32 s55, s55, 5\ns_add_u32 s55, s55, 0x%x' % (DBG + 0x180000))
        k('v_mov_b32 v6, 0')
        k('buffer_store_dwordx4 v[16:19], v6, s[8:11], s55 offen')
        k('buffer_store_dwordx4 v[20:23], v6, s[8:11], s55 offen offset:16')


def kvserver(k, opt={}):
    k.c('===== k/v server =====')
    srd(k, S_WK, P_WK, 4 << 20); srd(k, S_WV, P_WV, 4 << 20)
    k('s_barrier')
    TRQ, OWN, ALL, IDX, SELT, TT, MX = 8, 9, 10, 11, 12, 14, 15
    MEMF, AKV, T8 = 16, 48, 64
    qkv_addr(k)
    if k.bfrag:
        srd(k, S_AUX, P_WB, 512 * 3072)
        k('s_cmp_eq_u32 %s, 3' % s(S_W))
        k('s_cbranch_scc1 L_ks_nb')
        k('v_lshrrev_b32 %s, 2, %s' % (v(VZ), v(LANE)))
        k('v_mul_u32_u24 %s, 3072, %s' % (v(OWN), v(VZ)))
        k('v_and_b32 %s, 3, %s' % (v(VT), v(LANE)))
        k('v_lshl_add_u32 %s, %s, 4, %s' % (v(OWN), v(VT), v(OWN)))
        k('s_lshl_b32 %s, %s, 10' % (s(S_T0), s(S_W)))
        k('s_and_b32 s4, %s, 30' % s(S_H))
        k('s_lshl_b32 %s, s4, 5' % s(S_T1))
        k('s_add_u32 %s, %s, %s' % (s(S_T0), s(S_T0), s(S_T1)))
        k('s_and_b32 s5, %s, 1' % s(S_H))
        k('s_mul_i32 %s, s5, %d' % (s(S_T1), 256 * 3072))
        k('s_add_u32 %s, %s, %s' % (s(S_T0), s(S_T0), s(S_T1)))
        for i in range(16):
            k('s_add_u32 m0, %s, %d' % (s(S_T2), i * 1024))
            k('buffer_load_dwordx4 %s, %s, %s offen lds' % (v(OWN), s(S_AUX, 4), s(S_T0)))
            k('s_add_u32 %s, %s, %d' % (s(S_T0), s(S_T0), 16 * 3072))
        k('s_waitcnt vmcnt(0)')
        for t in range(2):
            for ks in range(8):
                for hh in range(2):
                    k('ds_read_b64_tr_b16 %s, %s offset:%d' % (v(80 + (t * 8 + ks) * 4 + 2 * hh, 2), v(TR), (32 * ks + 4 * hh) * 64 + 32 * t))
                if ks & 3 == 3: k('s_waitcnt lgkmcnt(0)')
        k('s_lshl_b32 s4, s4, 1')
        k('s_add_u32 s4, s4, %s' % s(S_W))
        k('s_lshl_b32 s4, s4, 15')
        k('s_lshl_b32 s5, s5, 13')
        k('s_add_u32 s4, s4, s5')
        k('s_add_u32 s4, s4, 0x%x' % WBFR)
        for i in range(16):
            k('buffer_store_dwordx4 %s, %s, %s, s4 offen offset:%d sc1' % (v(80 + 4 * i, 4), v(L16), s(S_WS, 4), 1024 * (i & 3)))
            if i & 3 == 3: k('s_add_u32 s4, s4, %d' % (4096 if i != 7 else 4096 + 8192))
        k.label('L_ks_nb')
        k.vm = []
    k('v_bfe_u32 %s, %s, 5, 1' % (v(VZ), v(LANE)))
    k('v_lshlrev_b32 %s, 4, %s' % (v(TRQ), v(VZ)))
    for (bit, sh) in ((4, 2), (3, 3), (2, 0)):
        k('v_bfe_u32 %s, %s, %d, 1' % (v(VZ), v(LANE), bit))
        k('v_lshl_add_u32 %s, %s, %d, %s' % (v(TRQ), v(VZ), sh, v(TRQ)))
    k('v_and_b32 %s, 3, %s' % (v(VT), v(LANE)))
    k('v_lshlrev_b32 %s, 6, %s' % (v(TRQ), v(TRQ)))
    k('v_lshl_add_u32 %s, %s, 3, %s' % (v(TRQ), v(VT), v(TRQ)))
    k('v_add_u32 %s, %s, %s' % (v(TRQ), s(S_T2), v(TRQ)))
    bl = []
    for m in range(2):
        for ks in range(8):
            def issue(off, tag, m=m, ks=ks):
                for i in range(4):
                    k('s_mov_b32 %s, %d' % (s(S_T0), (64 * ks + 16 * i) * 8192))
                    k('s_add_u32 m0, %s, %d' % (s(S_T2), off + i * 1024))
                    k('buffer_load_dwordx4 %s, %s, %s offen lds' % (v(GA), s((S_WK, S_WV)[m], 4), s(S_T0)), tag=tag)
            def read(off, m=m, ks=ks):
                for t in range(2):
                    for H in range(2):
                        for Q in range(2):
                            k('ds_read_b64_tr_b16 %s, %s offset:%d' % (a(wkv(m, ks, t) + 4 * H + 2 * Q, 2), v(TRQ), off + (32 * H + 2 * Q) * 64 + 32 * t))
            bl.append(dict(issue=issue, read=read))
    load_blocks(k, bl, opt.get('ksl', 2))
    if k.bfrag:
        k('s_barrier')
        k('s_lshl_b32 %s, %s, 5' % (s(S_FL), s(S_H)))
        k('s_add_u32 %s, %s, 0x%x' % (s(S_FL), s(S_FL), F_D2 + 24))
        set_flag(k, S_FL, '1')
    k.ks_ready()
    k('v_and_b32 %s, 15, %s' % (v(VT), v(LANE)))
    k('v_cmp_gt_u32 vcc, 8, %s' % v(VT))
    k('v_mov_b32 %s, 0xeeee' % v(IDX))
    k('v_mov_b32 %s, 0x4444' % v(TT))
    k('v_cndmask_b32 %s, %s, %s, vcc' % (v(IDX), v(IDX), v(TT)))
    k('v_bfe_u32 %s, %s, 4, 1' % (v(VZ), v(LANE)))
    k('v_lshlrev_b32 %s, 2, %s' % (v(VZ), v(VZ)))
    k('v_and_b32 %s, 7, %s' % (v(VT), v(LANE)))
    k('v_sub_u32 %s, %s, %s' % (v(VT), v(VT), v(VZ)))
    k('v_mov_b32 %s, 0x3f80' % v(MX))
    k('v_mov_b32 %s, 0x3f800000' % v(TT))
    for r in range(2):
        k('v_mov_b32 %s, 0' % v(SELT + r))
        k('v_cmp_eq_u32 vcc, %d, %s' % (2 * r, v(VT)))
        k('v_cndmask_b32 %s, %s, %s, vcc' % (v(SELT + r), v(SELT + r), v(MX)))
        k('v_cmp_eq_u32 vcc, %d, %s' % (2 * r + 1, v(VT)))
        k('v_cndmask_b32 %s, %s, %s, vcc' % (v(SELT + r), v(SELT + r), v(TT)))
    S_MR, S_KO, S_MB = S_XS, S_OO, S_XB
    k('s_lshl_b32 %s, %s, 11' % (s(S_MB), s(S_W)))
    k('v_add_u32 %s, %s, %s' % (v(OWN), s(S_MB), v(L16)))
    k('v_mov_b32 %s, %s' % (v(ALL), v(L16)))
    k('s_add_u32 %s, %s, 0x%x' % (s(S_MR), s(S_MB), MEMX))
    k('s_lshl_b32 %s, %s, 8' % (s(S_KO), s(S_H)))
    k('s_add_u32 %s, %s, %s' % (s(S_KO), s(S_KO), s(S_W)))
    k('s_lshl_b32 %s, %s, 10' % (s(S_KO), s(S_KO)))
    k('s_add_u32 %s, %s, 0x%x' % (s(S_KO), s(S_KO), WKVF))
    k('s_mov_b32 %s, 0' % s(S_I))
    S_IN = S_T3
    k('s_add_u32 %s, %s, %d' % (s(S_IN), s(S_KO), 63 * 4096))
    for i in range(4): k('v_mov_b32 %s, -1' % v(T8 + 4 + i))
    k('s_lshl_b32 %s, %s, 5' % (s(S_FL), s(S_H)))
    k('s_add_u32 %s, %s, 0x%x' % (s(S_FL), s(S_FL), F_D3 + 24))
    def dma2():
        k('buffer_load_dwordx4 %s, %s, %s offen sc1 lds' % (v(L16), s(S_WS, 4), s(S_MR)))
        k('buffer_load_dwordx4 %s, %s, %s offen offset:1024 sc1 lds' % (v(L16), s(S_WS, 4), s(S_MR)))
    k('s_mov_b32 m0, %s' % s(S_MB))
    dma2()
    k('s_waitcnt vmcnt(0)')
    k.label('L_ks_loop')
    for i in range(0, 16, 2): k('v_mov_b64 %s, 0' % v(AKV + i, 2))
    k('s_mov_b32 %s, %d' % (s(S_SPIN), SPIN_MAX))
    k('s_waitcnt vmcnt(1)')
    k('s_branch L_ks_c')
    k.label('L_ks_r')
    k('s_sleep %d' % opt.get('kss', 2))
    dma2()
    k('s_sub_u32 %s, %s, 1' % (s(S_SPIN), s(S_SPIN)))
    k('s_cbranch_scc1 %s' % FAIL)
    k('s_waitcnt vmcnt(%d)' % opt.get('ksd', 2))
    k.label('L_ks_c')
    k('ds_read_b128 %s, %s' % (v(MEMF, 4), v(OWN)))
    k('ds_read_b128 %s, %s offset:1024' % (v(MEMF + 4, 4), v(OWN)))
    k('s_waitcnt lgkmcnt(0)')
    k('v_max3_u32 %s, %s, %s, %s' % (v(TT), v(MEMF), v(MEMF + 1), v(MEMF + 2)))
    k('v_max3_u32 %s, %s, %s, %s' % (v(MX), v(MEMF + 3), v(MEMF + 4), v(MEMF + 5)))
    k('v_max3_u32 %s, %s, %s, %s' % (v(TT), v(TT), v(MEMF + 6), v(MEMF + 7)))
    k('v_max_u32 %s, %s, %s' % (v(TT), v(TT), v(MX)))
    k('v_cmp_eq_u32 vcc, -1, %s' % v(TT))
    k('s_cbranch_vccnz L_ks_r')
    k('s_barrier')
    k.lg = []
    def MR(ks): k('ds_read_b128 %s, %s offset:%d' % (v(MEMF + 4 * ks, 4), v(ALL), 1024 * ks), tag=('mf', ks))
    def SMF(m, ks, t): k('v_smfmac_f32_16x16x64_bf16 %s, %s, %s, %s' % (v(AKV + 8 * m + 4 * t, 4), v(MEMF + 4 * ks, 4), a(wkv(m, ks, t), 8), v(IDX)))
    def mf16(d, A, B): k('v_mfma_f32_16x16x16_bf16 %s, %s, %s, 0' % (v(d, 4), v(A, 2), v(B, 2)))
    MR(0); MR(1); MR(2)
    k('s_add_u32 %s, %s, 8192' % (s(S_MR), s(S_MR)))
    k('s_xor_b32 %s, %s, 8192' % (s(S_MB), s(S_MB)))
    k('s_mov_b32 m0, %s' % s(S_MB))
    for ks in range(8):
        k.wait_lg(('mf', ks))
        SMF(0, ks, 0)
        if ks + 3 < 8: MR(ks + 3)
        SMF(0, ks, 1)
    vq = [(ks, t) for ks in range(8) for t in range(2)]
    def V(n):
        for _ in range(n): SMF(1, *vq.pop(0))
    V(3)
    dma2()
    for i in range(4): cvt(k, T8 + i, AKV + 2 * i, AKV + 2 * i + 1)
    V(1)
    mf16(AKV, T8, SELT); mf16(AKV + 4, T8 + 2, SELT)
    V(4)
    for i in range(4): cvt(k, T8 + i, AKV + 2 * i, AKV + 2 * i + 1)
    V(2)
    for i in range(2): k('v_mov_b32_dpp %s, %s quad_perm:[0,1,2,3] row_mask:0xf bank_mask:0xc' % (v(T8 + i), v(T8 + 2 + i)))
    for i in range(2): k('v_min_u32 %s, -2, %s' % (v(T8 + i), v(T8 + i)))
    k('v_xor_b32 %s, 8192, %s' % (v(OWN), v(OWN)))
    k('v_xor_b32 %s, 8192, %s' % (v(ALL), v(ALL)))
    V(6)
    for j in range(4): k('v_permlane32_swap_b32 %s, %s' % (v(AKV + 8 + j), v(AKV + 12 + j)))
    for j in range(4): k('v_add_f32 %s, %s, %s' % (v(AKV + 8 + j), v(AKV + 8 + j), v(AKV + 12 + j)))
    cvt(k, T8 + 2, AKV + 8, AKV + 9); cvt(k, T8 + 3, AKV + 10, AKV + 11)
    for i in (2, 3): k('v_min_u32 %s, -2, %s' % (v(T8 + i), v(T8 + i)))
    k('buffer_store_dwordx4 %s, %s, %s, %s offen sc1' % (v(T8, 4), v(L16), s(S_WS, 4), s(S_KO)))
    k('s_add_u32 %s, %s, 4096' % (s(S_KO), s(S_KO)))
    k('s_add_u32 %s, %s, 1' % (s(S_I), s(S_I)))
    k('s_cmp_gt_u32 %s, 16' % s(S_I))
    k('s_cbranch_scc1 L_ks_n')
    for i in range(3):
        k('buffer_store_dwordx4 %s, %s, %s, %s offen sc1' % (v(T8 + 4, 4), v(L16), s(S_WS, 4), s(S_IN)))
        k('s_sub_u32 %s, %s, 4096' % (s(S_IN), s(S_IN)))
    k('s_cmp_lt_u32 %s, 16' % s(S_I))
    k('s_cbranch_scc1 L_ks_loop')
    k('s_waitcnt vmcnt(0)')
    k('s_barrier')
    set_flag(k, S_FL, '1')
    k.label('L_ks_n')
    k('s_cmp_lt_u32 %s, 64' % s(S_I))
    k('s_cbranch_scc1 L_ks_loop')
```

```python
import sys, json
sys.path.insert(0, 'gen')
from fw import *
from layout import *
import chain as C
import worker as W
NAME = 'gated_mix__memory_aug_recurrent_mem_tr__sliding_block__prompt_kernel'
HEAD = open('gated_mix__memory_aug_recurrent_mem_tr__sliding_block__prompt.s.ref').read().split('; Override')[0]
D_READY = 64

def gen(opt={}):
    C.JS = opt.get('js', 10240)
    roles = opt.get('roles', ['chain', 'pj', 'ba', 'pb'])
    full = len(roles) == 4
    k = K()
    k.raw(HEAD.rstrip())
    k.raw('; @launch grid=(256,1,1) block=(256,1,1) lds=163840')
    k.raw('.amdgcn_target "amdgcn-amd-amdhsa--gfx950"\n.text\n.globl %s\n.p2align 8\n.type %s,@function\n%s:' % (NAME, NAME, NAME))
    k('s_load_dwordx16 s[64:79], s[0:1], 0')
    k('s_load_dwordx8 s[80:87], s[0:1], 64')
    k('s_load_dwordx4 s[88:91], s[0:1], 96')
    if opt.get('prof'):
        k('s_memtime s[100:101]')
        k('s_memrealtime s[2:3]')
    if opt.get('cpf', 0):
        k('s_getpc_b64 s[4:5]')
        k.label('L_pc')
        k('v_lshlrev_b32 v10, 7, v0')
        k('s_bfe_u32 s6, s2, 0x10003')
        k('s_lshl_b32 s6, s6, 15')
        k('v_add_u32 v11, s6, v10')
        k('v_min_u32 v11, L_end-L_pc, v11')
        k('v_mov_b32 v13, s5')
        k('v_add_co_u32 v14, vcc, s4, v11')
        k('v_addc_co_u32 v15, vcc, 0, v13, vcc')
        if opt['cpf'] == 2:
            k('s_cmp_ge_u32 s2, 64')
            k('s_cbranch_scc1 L_nocpf')
        k('global_load_dword v20, v[14:15], off')
        k.label('L_nocpf')
    k('s_getreg_b32 %s, hwreg(HW_REG_XCC_ID)' % s(W.S_GRP))
    k('s_and_b32 %s, %s, 7' % (s(W.S_GRP), s(W.S_GRP)))
    if opt.get('cx', 1): k('s_xor_b32 %s, %s, %d' % (s(W.S_GRP), s(W.S_GRP), opt.get('cx', 1)))
    k('s_waitcnt lgkmcnt(0)')
    C.srd(k, C.S_WS, W.P_WS, WS_BYTES); C.srd(k, C.S_DBG, W.P_DBG, 256)
    NT = opt.get('etouch', 0)
    k("""
  s_lshl_b32 s55, s50, 2
  s_cselect_b32 s55, s55, 192
  v_mov_b32 v1, 0
  v_mov_b32 v2, 1
  v_cmp_eq_u32 vcc, 0, v0
  s_and_saveexec_b64 s[4:5], vcc
  s_cbranch_execz L_t0
  buffer_atomic_add v2, v1, s[32:35], s55 offen sc0 sc1
L_t0:
  s_mov_b64 exec, s[4:5]
""")
    if NT:
        C.srd(k, C.S_WO, W.P_WO, 4 << 20)
        k("""
  s_cmp_lg_u32 s50, 0
  s_cbranch_scc1 L_t2
  s_bfe_u32 s56, s2, 0x50003
  s_lshl_b32 s56, s56, 17
  v_lshrrev_b32 v3, 6, v0
  v_and_b32 v4, 63, v0
  v_and_b32 v5, 2, v3
  v_lshl_add_u32 v4, v5, 5, v4
  v_lshlrev_b32 v4, 10, v4
  v_lshl_add_u32 v4, v3, 8, v4
""")
        for i in range(NT):
            if i == 2: k('v_xor_b32 v4, 0x10000, v4')
            k('buffer_load_dword v%d, v4, %s, s56 offen offset:%d' % (20 + i, s(C.S_WO, 4), 128 * (i & 1)))
        k('s_waitcnt vmcnt(%d)' % NT)
        k('s_branch L_t3')
        k.label('L_t2')
    k("""
  s_waitcnt vmcnt(0)
L_t3:
  s_and_saveexec_b64 s[4:5], vcc
  s_cbranch_execz L_t1
  ds_write_b32 v1, v2
  s_waitcnt lgkmcnt(0)
L_t1:
  s_mov_b64 exec, s[4:5]
  s_barrier
  ds_read_b32 v2, v1
  v_lshrrev_b32 v3, 6, v0
  s_waitcnt lgkmcnt(0)
  v_readfirstlane_b32 s51, v2
  v_readfirstlane_b32 s41, v3
  v_and_b32 v0, 63, v0
  s_barrier
  s_cmp_ge_u32 s51, 32
  s_cbranch_scc1 L_end
""")
    k.vm = []
    TK, GRP = W.S_TK, W.S_GRP
    if opt.get('prof'):
        k('s_memtime s[98:99]')
        k('s_waitcnt lgkmcnt(0)')
    def ready_add(ra=6, rb=7, sync=True):
        if sync:
            k('s_waitcnt vmcnt(0)')
            k('s_barrier')
        L = k.newlabel('L_ra')
        k('s_cmp_lg_u32 %s, 0' % s(C.S_W))
        k('s_cbranch_scc1 %s' % L)
        k('v_mov_b32 v%d, %d' % (ra, D_READY))
        k('v_mov_b32 v%d, 1' % rb)
        k('s_mov_b64 exec, 1')
        k('buffer_atomic_add v%d, v%d, s[32:35], 0 offen sc1' % (rb, ra))
        k('s_mov_b64 exec, -1')
        k.label(L)
    k('v_lshlrev_b32 v1, 4, v0')
    for i in range(4): k('v_mov_b32 v%d, -1' % (8 + i))
    if opt.get('spread'):
        k('s_cmp_ge_u32 s2, 32')
        k('s_cbranch_scc1 L_spw')
        k('s_mov_b32 %s, s2' % s(TK))
    else:
        k('s_cmp_lg_u32 %s, 0' % s(GRP))
        k('s_cbranch_scc1 L_worker')
    if 'chain' in roles:
        k('s_mov_b32 %s, %s' % (s(C.S_H), s(TK)))
        C.srd(k, C.S_WQ, W.P_WQ, 4 << 20); C.srd(k, C.S_WK, W.P_WK, 4 << 20); C.srd(k, C.S_WV, W.P_WV, 4 << 20); C.srd(k, C.S_WO, W.P_WO, 4 << 20)
        C.srd(k, C.S_M0, W.P_MEM0, 8192)
        def hook_loading():
            k('v_lshlrev_b32 v24, 4, v0')
            for i in range(4): k('v_mov_b32 v%d, -1' % (28 + i))
            k('s_mul_i32 s55, s40, %d' % C.JS)
            k('s_lshl_b32 s56, s41, 11')
            k('s_add_u32 s55, s55, s56')
            k('s_add_u32 s55, s55, 0x%x' % INB)
            for i in range(2):
                k('buffer_store_dwordx4 v[28:31], v24, s[8:11], s55 offen offset:%d' % (1024 * i), tag='init')
            k('s_lshl_b32 s55, s40, 10')
            k('s_add_u32 s55, s55, 0x%x' % H2)
            k('buffer_store_dwordx4 v[28:31], v24, s[8:11], s55 offen', tag='init')
            k('s_nop 1')
        if opt.get('tlb', 0):
            k('v_lshlrev_b32 v24, 16, v0')
            for j, sr in enumerate((C.S_WV, C.S_WK, C.S_WQ)):
                k('buffer_load_dword v%d, v24, %s, 0 offen' % (25 + j, s(sr, 4)))
            if opt.get('tlb', 0) > 1:
                k('v_lshlrev_b32 v24, 19, v0')
                k('buffer_load_dword v25, v24, %s, 0 offen sc1' % s(C.S_WS, 4))
        hook_loading()
        def hook_loading2():
            k.wait_vm('init')
            k('s_barrier')
            n = len(k.vm)
            ready_add(58, 59, sync=False)
            k.vm = k.vm[:n]
        k.hook_loading = hook_loading2
        nready = 256
        S_RDY = 63
        S_FKV = 62
        def fl_load(B, A, tag=None):
            k('s_mov_b64 exec, 15')
            k('buffer_load_dword %s, %s, %s, %s offen sc1' % (v(B), v(A), s(C.S_WS, 4), s(S_FKV)), tag=tag)
            k('s_mov_b64 exec, -1')
        def wait_kv(first, B=C.X3, A=C.L16, part=None):
            if not full: return
            L = k.newlabel('L_kv')
            def chk():
                k('v_cmp_ge_u32 vcc, %s, %s' % (s(C.S_T0), v(B)))
                k('s_and_b32 %s, vcc_lo, 15' % s(C.S_T1))
            if part in (None, 0):
                AH = 1 + opt.get('touch', 0)
                k('s_add_u32 %s, %s, %d' % (s(C.S_T0), s(C.S_STEP), AH - 1 if first else AH))
                if AH > 1: k('s_min_u32 %s, %s, 63' % (s(C.S_T0), s(C.S_T0)))
                k('v_cmp_ge_u32 vcc, %s, %s' % (s(C.S_T0), v(B)))
                if part == 0: return
            if part == 2:
                fl_load(B, A); return
            k('s_and_b32 %s, vcc_lo, 15' % s(C.S_T1))
            k('s_cbranch_scc1 %s_slow' % L)
            k.label(L + '_ret')
            def slow():
                k.label(L + '_slow')
                k('s_mov_b32 %s, %d' % (s(C.S_SPIN), C.SPIN_MAX))
                k.label(L + '_p')
                fl_load(B, A)
                k('s_sub_u32 %s, %s, 1' % (s(C.S_SPIN), s(C.S_SPIN)))
                k('s_cbranch_scc1 L_fail')
                k('s_waitcnt vmcnt(0)')
                chk()
                k('s_cbranch_scc0 %s_ret' % L)
                k('s_sleep 2')
                k('s_branch %s_p' % L)
            k.deferred.append(slow)
        k.deferred = []
        def h4():
            n = len(k.vm)
            ready_add(58, 59, sync=False)
            k.vm = k.vm[:n]
        def h7():
            k('v_mov_b32 v58, %d' % D_READY)
            k('buffer_load_dword v58, v58, %s, 0 offen sc1' % s(C.S_DBG, 4), tag='rdy')
        def h12():
            L = k.newlabel('L_rdy')
            k.wait_vm('rdy')
            k('v_cmp_gt_u32 vcc, %d, v58' % nready)
            k('s_cbranch_vccnz %s' % L)
            k.label(L + '_ret')
            def slow():
                k.label(L)
                k('s_mov_b32 %s, %d' % (s(C.S_SPIN), C.SPIN_MAX))
                k.label(L + '_p')
                k('v_mov_b32 v58, %d' % D_READY)
                k('buffer_load_dword v58, v58, %s, 0 offen sc1' % s(C.S_DBG, 4))
                k('s_sub_u32 %s, %s, 1' % (s(C.S_SPIN), s(C.S_SPIN)))
                k('s_cbranch_scc1 L_fail')
                k('s_waitcnt vmcnt(0)')
                k('v_cmp_gt_u32 vcc, %d, v58' % nready)
                k('s_cbranch_vccnz %s_p' % L)
                k('s_branch %s_ret' % L)
            k.deferred.append(slow)
            k('s_lshl_b32 %s, %s, 2' % (s(S_FKV), s(C.S_H)))
            k('s_add_u32 %s, %s, %s' % (s(S_FKV), s(S_FKV), s(C.S_W)))
            k('s_lshl_b32 %s, %s, 7' % (s(S_FKV), s(S_FKV)))
            k('s_add_u32 %s, %s, 0x%x' % (s(S_FKV), s(S_FKV), F_KV))
            k('v_lshlrev_b32 v54, 4, v0')
            fl_load(55, 54, 'fkv')
        def h13():
            k.wait_vm('fkv')
            wait_kv(True, 55, 54)
        k.load_hooks = {opt.get('hk0', 14): h7, opt.get('hk', 22): h12, 28: h13}
        k.hook_prefetch = lambda part: wait_kv(False, part=part)
        C.chain(k, prof=opt.get('prof'), dump=opt.get('dump'), opt=opt)
        if opt.get('prof'):
            T = C.S_TS
            k.raw('  s_memtime %s' % s(T + 26, 2))
            k.raw('  s_memrealtime s[4:5]')
            k.raw('  s_waitcnt lgkmcnt(0)')
            k('s_mov_b32 %s, s4' % s(T + 17))
            k('s_sub_u32 %s, %s, %s' % (s(T + 21), s(T + 26), s(T + 24)))
            k('s_mov_b32 %s, %s' % (s(T + 20), s(T + 22)))
            k('s_sub_u32 %s, %s, s100' % (s(T + 19), s(T + 28)))
            k('s_sub_u32 %s, s98, s100' % s(T + 18))
            k('s_sub_u32 %s, %s, s100' % (s(T + 22), s(T + 24)))
            for i in range(8): k('v_mov_b32 %s, %s' % (v(i), s(T + 16 + i)))
            k('s_lshl_b32 s55, s40, 2')
            k('s_add_u32 s55, s55, s41')
            k('s_lshl_b32 s55, s55, 5')
            k('s_add_u32 s55, s55, 0x%x' % (DBG + 0x100000))
            k('v_mov_b32 v8, 0')
            k('buffer_store_dwordx4 v[0:3], v8, s[8:11], s55 offen')
            k('buffer_store_dwordx4 v[4:7], v8, s[8:11], s55 offen offset:16')
            if opt.get('ddbg'):
                k('s_mov_b64 exec, 1')
                for i, r in enumerate((2, 3, 6, 5)):
                    k('buffer_atomic_umax v%d, v8, s[32:35], 0 offen offset:%d sc1' % (r, 32 + 4 * i))
                k('s_memrealtime s[4:5]')
                k('s_waitcnt lgkmcnt(0)')
                k('s_sub_u32 s4, s4, s2')
                k('v_mov_b32 v9, s4')
                k('buffer_atomic_umax v9, v8, s[32:35], 0 offen offset:48 sc1')
                k('s_mov_b64 exec, -1')
        k('s_branch L_end')
        for f in k.deferred: f()
    else:
        k('s_branch L_end')
    k.label('L_spw')
    k('s_max_u32 %s, %s, 1' % (s(GRP), s(GRP)))
    k.label('L_worker')
    k.hist = []
    def stampw(i):
        if opt.get('prof'):
            k('s_memtime s[4:5]')
            k('s_waitcnt lgkmcnt(0)')
            k('s_sub_u32 s4, s4, s100')
            k('v_mov_b32 v7, s4')
            k('s_lshl_b32 s55, s50, 5')
            k('s_add_u32 s55, s55, s51')
            k('s_lshl_b32 s55, s55, 2')
            k('s_add_u32 s55, s55, s41')
            k('s_lshl_b32 s55, s55, 5')
            k('s_add_u32 s55, s55, 0x%x' % (DBG + 0x110000 + 4 * i))
            k('v_mov_b32 v6, 0')
            k('buffer_store_dword v7, v6, s[8:11], s55 offen')
    k('s_sub_u32 s55, %s, 2' % s(GRP))
    k('s_lshl_b32 s55, s55, 5')
    k('s_add_u32 s55, s55, %s' % s(TK))
    k('s_mul_i32 %s, s55, 10923' % s(C.S_H))
    k('s_lshr_b32 %s, %s, 16' % (s(C.S_H), s(C.S_H)))
    k('s_mul_i32 s56, %s, 6' % s(C.S_H))
    k('s_sub_u32 %s, s55, s56' % s(W.S_R))
    k('s_cmp_eq_u32 %s, 1' % s(GRP))
    k('s_cselect_b32 %s, %s, %s' % (s(C.S_H), s(TK), s(C.S_H)))
    k('s_cselect_b32 %s, 6, %s' % (s(W.S_R), s(W.S_R)))
    W.setup_common(k)
    def winit():
        if full:
            k('s_lshl_b32 s55, s40, 2\ns_add_u32 s55, s55, s41\ns_lshl_b32 s55, s55, 3\ns_add_u32 s55, s55, s42\ns_lshl_b32 s55, s55, 4\ns_add_u32 s55, s55, 0x%x' % F_KV)
            W.set_flag(k, 55, '0')
            k('s_lshl_b32 s55, s40, 3\ns_add_u32 s55, s55, s42\ns_lshl_b32 s55, s55, 2\ns_add_u32 s55, s55, 0x%x' % F_D3)
            W.set_flag(k, 55, '0')
            k('s_sub_u32 s55, s55, 0x%x' % (F_D3 - F_D2))
            W.set_flag(k, 55, '0')
        pass
    def pb_init():
        if True:
            for i in range(4): k('v_mov_b32 v%d, -1' % (8 + i))
            k('s_lshl_b32 s55, s50, 20\ns_lshl_b32 s56, s51, 14\ns_add_u32 s55, s55, s56\ns_lshl_b32 s56, s41, 12\ns_add_u32 s55, s55, s56\ns_add_u32 s55, s55, 0x%x' % PB)
            for sl in range(2):
                for i in range(4): k('buffer_store_dwordx4 v[8:11], v1, s[8:11], s55 offen offset:%d' % (1024 * i))
                k('s_add_u32 s55, s55, 0x80000')
    k.pb_init = pb_init
    winit0 = winit
    def winit():
        winit0()
        if full:
            k('s_sub_u32 s55, s50, 1\ns_lshl_b32 s55, s55, 5\ns_add_u32 s55, s55, s51\ns_lshl_b32 s55, s55, 2\ns_add_u32 s55, s55, s41\ns_and_b32 s55, s55, 511\ns_lshl_b32 s55, s55, 10\ns_add_u32 s55, s55, 0x%x' % MEMX)
            k('buffer_store_dwordx4 v[8:11], v1, s[8:11], s55 offen sc1')
    if opt.get('warm', 0) and 'pj' in roles:
        k('s_sub_u32 s55, s50, 1\ns_lshl_b32 s55, s55, 5\ns_add_u32 s55, s55, s51\ns_lshl_b32 s55, s55, 2\ns_add_u32 s55, s55, s41\ns_lshl_b32 s55, s55, 10')
        k('v_add_u32 v16, s55, v1')
        for t in range(1, 5): k('v_add_u32 v%d, 0x%x, v16' % (16 + t, 896 * 1024 * t))
        for j, P in enumerate(opt.get('worder', [W.P_WO])):
            C.srd(k, C.S_WQ + 4 * j, P, 4 << 20)
            for t in range(5):
                k('buffer_load_dwordx4 v[%d:%d], v%d, %s, 0 offen %s' % (24 + 4 * t, 27 + 4 * t, 16 + t, s(C.S_WQ + 4 * j, 4), opt.get('wfl', '')))
    stampw(0)
    k.stampw = stampw
    k.bfrag = full and opt.get('bfrag', 1)
    if 'pj' in roles:
        winit()
        k('s_cmp_lg_u32 %s, 1' % s(GRP))
        k('s_cbranch_scc1 L_wk3')
        ready_add()
        if full:
            def ks_ready():
                k('s_mov_b32 s55, %d' % D_READY)
                k('s_mov_b32 s56, 256')
                W.poll_flags(k, 55, 1, 's56', 'rdyk', srdn=C.S_DBG)
            k.ks_ready = ks_ready
            W.kvserver(k, opt)
            stampw(3)
        k('s_branch L_end')
        k.label('L_wk3')
        k.vm = []
        def k_early():
            k('s_waitcnt vmcnt(8)')
            k('s_barrier')
            n = len(k.vm)
            ready_add(sync=False)
            k.vm = k.vm[:n]
            if opt.get('skipmask'):
                k('s_lshr_b32 s55, %d, s50' % opt['skipmask'])
                k('s_and_b32 s55, s55, 1')
                k('s_cbranch_scc1 L_end')
        k.after_x0 = k_early
        after_issue = None
        def after_wload():
            if opt.get('hold'):
                k('s_cmp_lt_u32 %s, %d' % (s(W.S_R), opt.get('holdc', 4)))
                k('s_cbranch_scc1 L_nohold')
                for i in range(opt['hold']): k('s_sleep 127')
                k.label('L_nohold')
        k.after_wload = after_wload
        k.vload = full and opt.get('vload', 1)
        def wait_ready():
            k('s_mov_b32 s55, %d' % D_READY)
            k('s_mov_b32 s56, 256')
            W.poll_flags(k, 55, 1, 's56', 'rdy0', srdn=C.S_DBG)
        k.wait_ready = wait_ready
        W.proj(k, after_issue)
    else:
        winit(); ready_add()
    stampw(1)
    if full or 'pb' in roles:
        k('s_mov_b32 s55, %d' % D_READY)
        W.poll_flags(k, 55, 1, '%d' % (256 if 'chain' in roles else 224) if False else 's56', 'rdy', srdn=C.S_DBG) if False else None
        k('s_mov_b32 s56, %d' % (256 if 'chain' in roles else 224))
        W.poll_flags(k, 55, 1, 's56', 'rdy', srdn=C.S_DBG)
    pre = post = None
    k.pb_wait = full; k.pb_lim = opt.get('pblim', 0)
    k.vload = full and opt.get('vload', 1)
    if 'pb' in roles: pre, post, final = W.pb_loader(k)
    if 'ba' in roles: W.battn(k, waitflags=full, pre=pre, post=post)
    elif 'pb' in roles:
        for a_, b_ in zip(pre, post):
            a_()
            for i in range(32): k.pb_dma()
            k('s_waitcnt vmcnt(0)'); b_()
    stampw(3)
    if 'pb' in roles:
        final()
        stampw(2)
        k('s_mov_b32 %s, %s' % (s(C.S_H), s(TK)))
        W.phaseB(k, waitflags=full, opt=opt)
    stampw(4)
    if opt.get('prof'):
        k('s_memrealtime s[4:5]')
        k('s_waitcnt lgkmcnt(0)')
        k('v_mov_b32 v7, s4')
        k('buffer_store_dword v7, v6, s[8:11], s55 offen offset:4')
        k('v_mov_b32 v7, s2')
        k('buffer_store_dword v7, v6, s[8:11], s55 offen offset:8')
        if opt.get('ddbg'):
            k('s_mov_b64 exec, 1')
            k('v_mov_b32 v9, s4')
            k('buffer_atomic_umax v9, v6, s[32:35], 0 offen offset:52 sc1')
            k('s_not_b32 s2, s2')
            k('v_mov_b32 v9, s2')
            k('buffer_atomic_umax v9, v6, s[32:35], 0 offen offset:56 sc1')
            k('s_mov_b64 exec, -1')
    k('s_branch L_end')
    k.label('L_fail')
    k('s_mov_b64 exec, 1')
    k('v_mov_b32 v1, 128')
    k('v_mov_b32 v2, 1')
    k('buffer_atomic_add v2, v1, s[32:35], 0 offen sc1')
    k.label('L_end')
    k('s_endpgm')
    k.raw('''.section .rodata,"a"
.p2align 6
.amdhsa_kernel %s
  .amdhsa_next_free_vgpr 512
  .amdhsa_next_free_sgpr 102
  .amdhsa_accum_offset 256
  .amdhsa_group_segment_fixed_size 0
  .amdhsa_kernarg_size 112
  .amdhsa_user_sgpr_count 2
  .amdhsa_user_sgpr_kernarg_segment_ptr 1
  .amdhsa_system_sgpr_workgroup_id_x 1
.end_amdhsa_kernel''' % NAME)
    gen.points = getattr(k, 'points', [])
    txt = k.text()
    for a_, b_ in opt.get('sub', []):
        import re
        txt = re.sub(a_, b_, txt)
    return txt

if __name__ == '__main__':
    opt = json.loads(sys.argv[2]) if len(sys.argv) > 2 else {}
    open(sys.argv[1], 'w').write(gen(opt))
```

```python
from fw import *
from layout import *
import math, struct, re

S_WS, S_WQ, S_WK, S_WV, S_WO, S_M0, S_DBG = 8, 12, 16, 20, 24, 28, 32
S_H, S_W, S_STEP, S_TAG = 40, 41, 42, 43
S_KV, S_KVM, S_INW0, S_INW1, S_INR0, S_DEF, S_H2W, S_H2R, S_H2RST = 44, 45, 46, 47, 48, 49, 51, 52, 53
S_SPIN, S_T0, S_T1, S_T2 = 54, 55, 56, 57
S_C = 58
S_TS = 64

MEMF, ACCQK, ACCV, KVC, KVN, T1 = 0, 32, 48, 56, 72, 88
SELR, SELT = 96, 102
X0, X1 = 100, 101
IDX, L16, L16W, MEMR, SMW, SMR, OW, OR_, ST1, ST2, STRM, IDXR = 104, 105, 106, 107, 110, 111, 112, 113, 114, 115, 116, 117
X2, X3 = 118, 119
SBUF = 120
VSTAT = 144
L_MEM, L_SX, L_SM, L_OX, L_WS = 0, 8192, 8192 + 2 * 2048 + 1024, 8192 + 1024, 16384
WSTRIDE = 36864
OOR = 0x30000
SPIN_MAX = 1 << 20

def f2u(x):
    return struct.unpack('<I', struct.pack('<f', x))[0]

def srd(k, base, ptr_lo, nbytes):
    k('s_mov_b32 %s, %s' % (s(base), s(ptr_lo)))
    k('s_and_b32 %s, %s, 0xffff' % (s(base + 1), s(ptr_lo + 1)))
    k('s_mov_b32 %s, 0x%x' % (s(base + 2), nbytes))
    k('s_mov_b32 %s, 0x00020000' % s(base + 3))

ALLOPS = [(m, kap, t) for m in 'qkv' for kap in range(8) for t in range(2)] + [('o', a_, kap) for a_ in range(4) for kap in range(4)]
STREAM = [('q', 0, 0), ('k', 0, 0), ('q', 2, 1), ('q', 6, 0), ('k', 2, 1), ('k', 6, 0), ('q', 1, 1), ('q', 3, 1), ('q', 7, 0),
          ('k', 3, 1), ('k', 7, 0), ('v', 2, 0), ('v', 3, 0), ('v', 4, 0), ('o', 2, 0), ('o', 1, 2), ('o', 2, 1), ('o', 3, 3)]
NS = len(STREAM)

def op_locs():
    loc = {}
    na = nv = 0
    for o in ALLOPS:
        if o in STREAM:
            loc[o] = ('s', STREAM.index(o))
        elif na < 32:
            loc[o] = ('a', 8 * na); na += 1
        else:
            loc[o] = ('v', VSTAT + 8 * nv); nv += 1
    assert na == 32 and nv == 14 and NS == 18
    return loc

def dst(loc, r, n):
    return (a if loc[0] == 'a' else v)(loc[1] + r, n)

JS = 10240
def consts(k, LANE, H2L=0):
    k.c('===== chain: constants =====')
    tA, tB, tC, tD = 8, 9, 10, 11
    u4, u5, u6, u7 = 12, 13, 14, 15
    k('s_lshl_b32 %s, %s, 11' % (s(S_T0), s(S_W)))
    k('v_add_u32 %s, %s, %s' % (v(L16W), s(S_T0), v(L16)))
    for p in (1, 2, 3):
        k('v_xor_b32 %s, 0x%x, %s' % (v(MEMR + p - 1), p << 11, v(L16W)))
    k('v_and_b32 %s, 15, %s' % (v(tA), v(LANE)))
    k('v_lshrrev_b32 %s, 4, %s' % (v(tB), v(LANE)))
    k('v_and_b32 %s, 7, %s' % (v(tC), v(LANE)))
    k('v_cmp_gt_u32 vcc, 8, %s' % v(tA))
    k('v_mov_b32 %s, 0xeeee' % v(IDX))
    k('v_mov_b32 %s, 0x4444' % v(tD))
    k('v_cndmask_b32 %s, %s, %s, vcc' % (v(IDX), v(IDX), v(tD)))
    k('v_mov_b32 %s, 0x%x' % (v(tD), OOR))
    k('v_lshl_add_u32 %s, %s, 3, %s' % (v(OR_), v(tB), v(tC)))
    k('v_lshlrev_b32 %s, 4, %s' % (v(OR_), v(OR_)))
    k('s_and_b32 %s, %s, 1' % (s(S_T0), s(S_W)))
    k('s_lshl_b32 %s, %s, 9' % (s(S_T0), s(S_T0)))
    k('s_lshr_b32 %s, %s, 1' % (s(S_T1), s(S_W)))
    k('s_lshl_b32 %s, %s, 11' % (s(S_T1), s(S_T1)))
    k('s_add_u32 %s, %s, %s' % (s(S_T0), s(S_T0), s(S_T1)))
    k('v_add_u32 %s, %s, %s' % (v(OW), s(S_T0), v(OR_)))
    for p in (1, 2, 3):
        k('v_xor_b32 %s, 0x%x, %s' % (v([X0, X1, X2][p - 1]), ((p & 1) << 9) | ((p >> 1) << 11), v(OW)))
    k('v_cndmask_b32 %s, %s, %s, vcc' % (v(OW), v(tD), v(OW)))
    k('v_and_b32 %s, 0xff, %s' % (v(SMR), v(OR_)))
    k('v_and_b32 %s, 8, %s' % (v(u4), v(tA)))
    k('v_add_u32 %s, %s, %s' % (v(SMR), v(u4), v(SMR)))
    k('v_add_u32 %s, %d, %s' % (v(SMR), L_SM, v(SMR)))
    k('s_lshl_b32 %s, %s, 8' % (s(S_T0), s(S_W)))
    k('v_add_u32 %s, %s, %s' % (v(SMW), s(S_T0), v(SMR)))
    k('v_cmp_gt_u32 vcc, 32, %s' % v(LANE))
    k('v_cndmask_b32 %s, %s, %s, vcc' % (v(SMW), v(tD), v(SMW)))
    k('v_lshrrev_b32 %s, 3, %s' % (v(u4), v(LANE)))
    k('v_mul_u32_u24 %s, %d, %s' % (v(ST1), JS, v(u4)))
    k('v_lshl_add_u32 %s, %s, 3, %s' % (v(ST1), v(tC), v(ST1)))
    k('v_lshlrev_b32 %s, 2, %s' % (v(ST2), v(tA)))
    k('v_lshl_add_u32 %s, %s, 4, %s' % (v(ST2), v(tB), v(ST2)))
    k('s_lshr_b32 %s, %s, 3' % (s(S_T0), s(S_H)))
    k('s_lshl_b32 %s, %s, 11' % (s(S_T0), s(S_T0)))
    for (src, bit, sh) in ((S_W, 1, 10), (S_W, 0, 9), (S_H, 2, 8), (S_H, 0, 7), (S_H, 1, 6)):
        k('s_bfe_u32 %s, %s, 0x%x' % (s(S_T1), s(src), (1 << 16) | bit))
        k('s_lshl_b32 %s, %s, %d' % (s(S_T1), s(S_T1), sh))
        k('s_add_u32 %s, %s, %s' % (s(S_T0), s(S_T0), s(S_T1)))
    k('v_add_u32 %s, %s, %s' % (v(ST2), s(S_T0), v(ST2)))
    k('v_cmp_gt_u32 vcc, 4, %s' % v(tA))
    k('v_bfrev_b32 %s, 1' % v(u4))
    k('v_cndmask_b32 %s, %s, %s, vcc' % (v(ST2), v(u4), v(ST2)))
    k('v_and_b32 %s, 1, %s' % (v(tD), v(tB)))
    k('v_lshlrev_b32 %s, 2, %s' % (v(tD), v(tD)))
    k('v_sub_u32 %s, %s, %s' % (v(tD), v(tC), v(tD)))
    k('v_mov_b32 %s, 0x3f80' % v(u4))
    k('v_mov_b32 %s, 0x3f800000' % v(u5))
    for r in range(2):
        k('v_mov_b32 %s, 0' % v(SELT + r))
        k('v_cmp_eq_u32 vcc, %d, %s' % (2 * r, v(tD)))
        k('v_cndmask_b32 %s, %s, %s, vcc' % (v(SELT + r), v(SELT + r), v(u4)))
        k('v_cmp_eq_u32 vcc, %d, %s' % (2 * r + 1, v(tD)))
        k('v_cndmask_b32 %s, %s, %s, vcc' % (v(SELT + r), v(SELT + r), v(u5)))
    k('v_and_b32 %s, 2, %s' % (v(u6), v(tA)))
    k('v_cmp_eq_u32 vcc, 0, %s' % v(u6))
    k('v_mov_b32 %s, 0' % v(u7))
    k('v_cndmask_b32 %s, %s, %s, vcc' % (v(u6), v(u7), v(u4)))
    k('v_and_b32 %s, 1, %s' % (v(u5), v(tA)))
    k('v_cmp_eq_u32 vcc, 0, %s' % v(u5))
    k('v_cndmask_b32 %s, %s, %s, vcc' % (v(SELR), v(u7), v(u6)))
    k('v_cndmask_b32 %s, %s, %s, vcc' % (v(SELR + 1), v(u6), v(u7)))
    k('v_mov_b32 %s, %s' % (v(SELR + 2), v(SELR)))
    k('v_mov_b32 %s, %s' % (v(SELR + 3), v(SELR + 1)))
    k('v_lshrrev_b32 %s, 2, %s' % (v(u6), v(tA)))
    k('v_xor_b32 %s, 1, %s' % (v(u7), v(u6)))
    k('v_lshl_add_u32 %s, %s, 2, %s' % (v(u6), v(u7), v(u6)))
    k('v_mul_u32_u24 %s, 0x1111, %s' % (v(IDXR), v(u6)))

def loader(k, LANE, LOC, after_issue=None, hooks={}):
    k.c('===== chain: weight load =====')
    GQ, GO, TRQ, TRP, TRO, LW, u, u2 = 1, 2, 3, 4, 5, 6, 7, 8
    RAW = 8
    k('s_mul_i32 %s, %s, %d' % (s(S_T2), s(S_W), WSTRIDE))
    k('s_add_u32 %s, %s, %d' % (s(S_T2), s(S_T2), L_WS))
    k('v_lshrrev_b32 %s, 3, %s' % (v(u), v(LANE)))
    k('v_and_b32 %s, 7, %s' % (v(u2), v(LANE)))
    k('v_lshlrev_b32 %s, 4, %s' % (v(u2), v(u2)))
    k('v_lshl_add_u32 %s, %s, 13, %s' % (v(GQ), v(u), v(u2)))
    k('v_lshl_add_u32 %s, %s, 10, %s' % (v(GO), v(u), v(u2)))
    k('s_lshl_b32 %s, %s, 8' % (s(S_T0), s(S_H)))
    k('s_lshr_b32 %s, %s, 1' % (s(S_T1), s(S_W)))
    k('s_lshl_b32 %s, %s, 7' % (s(S_T1), s(S_T1)))
    k('s_add_u32 %s, %s, %s' % (s(S_T0), s(S_T0), s(S_T1)))
    k('v_add_u32 %s, %s, %s' % (v(GQ), s(S_T0), v(GQ)))
    k('s_lshl_b32 %s, %s, 17' % (s(S_T0), s(S_H)))
    k('s_lshl_b32 %s, %s, 8' % (s(S_T1), s(S_W)))
    k('s_add_u32 %s, %s, %s' % (s(S_T0), s(S_T0), s(S_T1)))
    k('v_add_u32 %s, %s, %s' % (v(GO), s(S_T0), v(GO)))
    its = [('o', 0, 0), ('o', 1, 0), ('o', 0, 1), ('o', 1, 1), ('v', 5), ('v', 1), ('v', 4), ('k', 5), ('q', 5), ('v', 0), ('k', 4), ('q', 4), ('k', 1), ('k', 0), ('q', 1), ('q', 0)]
    if k.wolast:
        its = [('v', 5), ('v', 1), ('v', 4), ('k', 5), ('q', 5), ('v', 0), ('k', 4), ('q', 4), ('k', 1), ('k', 0), ('q', 1), ('q', 0), ('o', 0, 0), ('o', 0, 1), ('o', 1, 0), ('o', 1, 1)]
    GP, PD = 50, 51
    GQ1, TRQ1, TRP1 = 47 + 1, 49, 52
    k('v_bfe_u32 %s, %s, 5, 1' % (v(PD), v(LANE)))
    k('v_lshlrev_b32 %s, 5, %s' % (v(PD), v(PD)))
    k('v_xor_b32 %s, %s, %s' % (v(GQ), v(PD), v(GQ)))
    k('v_xor_b32 %s, 64, %s' % (v(GQ1), v(GQ)))
    k('v_lshlrev_b32 %s, 13, %s' % (v(GP), v(u)))
    k('v_bfe_u32 %s, %s, 1, 2' % (v(PD), v(LANE)))
    k('v_lshl_add_u32 %s, %s, 8, %s' % (v(GP), v(PD), v(GP)))
    k('v_and_b32 %s, 1, %s' % (v(PD), v(LANE)))
    k('v_lshl_add_u32 %s, %s, 6, %s' % (v(GP), v(PD), v(GP)))
    k('s_and_b32 %s, %s, 3' % (s(S_T0), s(S_H)))
    k('s_lshl_b32 %s, %s, 16' % (s(S_T0), s(S_T0)))
    k('s_lshr_b32 %s, %s, 2' % (s(S_T1), s(S_H)))
    k('s_lshl_b32 %s, %s, 10' % (s(S_T1), s(S_T1)))
    k('s_add_u32 %s, %s, %s' % (s(S_T0), s(S_T0), s(S_T1)))
    k('s_lshr_b32 %s, %s, 1' % (s(S_T1), s(S_W)))
    k('s_lshl_b32 %s, %s, 7' % (s(S_T1), s(S_T1)))
    k('s_add_u32 %s, %s, %s' % (s(S_T0), s(S_T0), s(S_T1)))
    k('v_add_u32 %s, %s, %s' % (v(GP), s(S_T0), v(GP)))
    its = [(it, hf) for it in its for hf in range(2)]
    def touch(li):
        if li >= len(its) or not k.pdist: return
        it, hf = its[li]
        if it[0] == 'o': return
        k('s_lshl_b32 %s, %s, 2' % (s(S_T0), s(S_W)))
        k('s_xor_b32 %s, %s, %d' % (s(S_T0), s(S_T0), 2 * it[1] + hf))
        k('s_lshl_b32 %s, %s, 18' % (s(S_T0), s(S_T0)))
        k('buffer_load_dword %s, %s, %s, %s offen' % (v(PD), v(GP), s({'q': S_WQ, 'k': S_WK, 'v': S_WV}[it[0]], 4), s(S_T0)))
    NI, NSL = len(its), 9
    def issue(li):
        it, hf = its[li]; slot = li % NSL
        for i in range(4):
            if it[0] == 'o':
                srdn, ga = S_WO, GO
                if i == 0:
                    k('s_xor_b32 %s, %s, %d' % (s(S_T0), s(S_W), 2 * it[2] + hf))
                    k('s_lshl_b32 %s, %s, 15' % (s(S_T0), s(S_T0)))
                    k('s_add_u32 %s, %s, %d' % (s(S_T0), s(S_T0), it[1] * 128))
                else:
                    k('s_add_u32 %s, %s, %d' % (s(S_T0), s(S_T0), 8 * 1024))
            else:
                srdn, ga = {'q': S_WQ, 'k': S_WK, 'v': S_WV}[it[0]], (GQ1 if i & 1 else GQ)
                if i == 0:
                    k('s_lshl_b32 %s, %s, 2' % (s(S_T0), s(S_W)))
                    k('s_xor_b32 %s, %s, %d' % (s(S_T0), s(S_T0), 2 * it[1] + hf))
                    k('s_lshl_b32 %s, %s, 18' % (s(S_T0), s(S_T0)))
                else:
                    k('s_add_u32 %s, %s, %d' % (s(S_T0), s(S_T0), 8 * 8192))
            k('s_add_u32 m0, %s, %d' % (s(S_T2), slot * 4096 + i * 1024))
            k('buffer_load_dwordx4 %s, %s, %s offen lds' % (v(ga), s(srdn, 4), s(S_T0)), tag=('wl', li))
    LA = k.lookahead
    for li in range(LA): issue(li)
    k('v_bfe_u32 %s, %s, 5, 1' % (v(u), v(LANE)))
    k('v_lshlrev_b32 %s, 4, %s' % (v(TRQ), v(u)))
    k('v_lshlrev_b32 %s, 2, %s' % (v(TRO), v(u)))
    k('v_bfe_u32 %s, %s, 4, 1' % (v(u), v(LANE)))
    k('v_lshl_add_u32 %s, %s, 2, %s' % (v(TRQ), v(u), v(TRQ)))
    k('v_lshl_add_u32 %s, %s, 4, %s' % (v(TRO), v(u), v(TRO)))
    k('v_bfe_u32 %s, %s, 3, 1' % (v(u), v(LANE)))
    k('v_lshl_add_u32 %s, %s, 3, %s' % (v(TRQ), v(u), v(TRQ)))
    k('v_bfe_u32 %s, %s, 2, 1' % (v(u), v(LANE)))
    k('v_add_u32 %s, %s, %s' % (v(TRQ), v(u), v(TRQ)))
    k('v_bfe_u32 %s, %s, 2, 2' % (v(u), v(LANE)))
    k('v_add_u32 %s, %s, %s' % (v(TRO), v(TRO), v(u)))
    k('v_and_b32 %s, 3, %s' % (v(u), v(LANE)))
    for R in (TRQ, TRO):
        k('v_lshlrev_b32 %s, 7, %s' % (v(R), v(R)))
        k('v_lshl_add_u32 %s, %s, 3, %s' % (v(R), v(u), v(R)))
    k('v_add_u32 %s, %s, %s' % (v(TRO), s(S_T2), v(TRO)))
    k('s_and_b32 %s, %s, 1' % (s(S_T0), s(S_W)))
    k('s_lshl_b32 %s, %s, 6' % (s(S_T0), s(S_T0)))
    k('v_add_u32 %s, %s, %s' % (v(TRQ), s(S_T0), v(TRQ)))
    k('v_bfe_u32 %s, %s, 4, 1' % (v(u), v(LANE)))
    k('v_lshlrev_b32 %s, 5, %s' % (v(u), v(u)))
    k('v_xor_b32 %s, %s, %s' % (v(TRQ), v(u), v(TRQ)))
    k('v_bfe_u32 %s, %s, 3, 1' % (v(u), v(LANE)))
    k('v_lshlrev_b32 %s, 6, %s' % (v(u), v(u)))
    k('v_xor_b32 %s, %s, %s' % (v(TRQ), v(u), v(TRQ)))
    k('s_xor_b32 %s, %s, 1' % (s(S_T0), s(S_W)))
    k('s_mul_i32 %s, %s, %d' % (s(S_T0), s(S_T0), WSTRIDE))
    k('s_add_u32 %s, %s, %d' % (s(S_T0), s(S_T0), L_WS))
    k('v_add_u32 %s, %s, %s' % (v(TRP), s(S_T0), v(TRQ)))
    k('v_add_u32 %s, %s, %s' % (v(TRQ), s(S_T2), v(TRQ)))
    k('v_xor_b32 %s, 32, %s' % (v(TRQ1), v(TRQ)))
    k('v_xor_b32 %s, 32, %s' % (v(TRP1), v(TRP)))
    k('v_lshlrev_b32 %s, 4, %s' % (v(LW), v(LANE)))
    k('v_add_u32 %s, %s, %s' % (v(LW), s(S_T2), v(LW)))
    if after_issue: after_issue()
    freepark = [24, 40, 88, 96, 104, 112, 120, 128, 136, 72, 80, 8, 16]
    reserved = []
    if k.wolast:
        reserved = [LOC[('o', 3, 0)][1], LOC[('o', 3, 1)][1], LOC[('o', 3, 2)][1], LOC[('o', 2, 2)][1], LOC[('o', 2, 3)][1]]
        freepark = reserved + [24, 40, 88, 96, 104, 112, 120, 128, 136, 72, 80]
    parked = []; building = {}
    homes = {}
    freehome = []
    def target(op):
        loc = LOC[op]
        if loc[0] != 's':
            assert loc[0] == 'a' or all(p != loc[1] for _, p in parked), ('parked in', op)
            return loc
        if op not in building: building[op] = freepark.pop(0)
        return ('v', building[op])
    def done(op):
        if op in building: parked.append((op, building.pop(op)))
    def dump():
        any_ = False
        while parked and freehome:
            op, p = parked.pop(0); h_ = freehome.pop(0); homes[op] = h_
            k('ds_write_b128 %s, %s offset:%d' % (v(LW), v(p, 4), h_))
            k('ds_write_b128 %s, %s offset:%d' % (v(LW), v(p + 4, 4), h_ + 1024))
            if p not in reserved: freepark.append(p)
    def release(li):
        if li + NSL >= NI: freehome.extend([(li % NSL) * 4096, (li % NSL) * 4096 + 2048])
    def ahead(li):
        if li + LA < NI: issue(li + LA)
        touch(li + k.pdist)
    for li in range(NI):
        it, hf = its[li]; slot = li % NSL
        k.wait_vm(('wl', li))
        if it[0] != 'o':
            k('s_barrier')
            if li and its[li - 1][0][0] != 'o': release(li - 1)
            fin = []
            for (kap, ar) in ((it[1], (TRQ, TRQ1)), (it[1] + 2, (TRP, TRP1))):
                for t in range(2):
                    loc = target((it[0], kap, t))
                    for Q in range(2):
                        k('ds_read_b64_tr_b16 %s, %s offset:%d' % (dst(loc, 4 * hf + 2 * Q, 2), v(ar[t]), slot * 4096 + 2 * Q * 128))
                    if hf: fin.append((it[0], kap, t))
            ahead(li)
            dump()
            k('s_waitcnt lgkmcnt(0)')
            for o_ in fin: done(o_)
        else:
            if li and its[li - 1][0][0] != 'o':
                k('s_barrier'); release(li - 1)
            for aa in range(2):
                for H in range(2):
                    for tau in range(2):
                        k('ds_read_b64_tr_b16 %s, %s offset:%d' % (v(RAW + 8 * aa + 4 * H + 2 * tau, 2), v(TRO), slot * 4096 + 8 * H * 128 + 64 * aa + 32 * tau))
            ahead(li)
            dump()
            k('s_waitcnt lgkmcnt(0)')
            release(li)
            for aa in range(2):
                op = ('o', 2 * it[1] + aa, 2 * it[2] + hf)
                loc = target(op)
                mv = 'v_accvgpr_write_b32' if loc[0] == 'a' else 'v_mov_b32'
                for H in range(2):
                    for tau in range(2):
                        src = RAW + 8 * aa + 4 * H + 2 * tau
                        k('%s %s, %s' % (mv, dst(loc, 4 * H + tau, 1), v(src)))
                        k('%s %s, %s' % (mv, dst(loc, 4 * H + tau + 2, 1), v(src + 1)))
                done(op)
        if li in hooks: hooks[li]()
        if getattr(k, 'ltrace', 0):
            k.raw('  s_memtime s[4:5]\n  s_waitcnt lgkmcnt(0)\n  s_sub_u32 s4, s4, s100\n  v_writelane_b32 v53, s4, %d' % li)
    if its[NI - 1][0][0] != 'o':
        k('s_barrier')
        release(NI - 1)
    dump()
    k('s_waitcnt lgkmcnt(0)')
    assert not parked and len(homes) == NS
    return homes

def chain(k, nsteps=64, prof=False, dump=False, opt={}):
    LOC = op_locs()
    LANE = 0
    def early():
        if hasattr(k, 'hook_loading'): k.hook_loading()
        k('v_and_b32 %s, 7, %s' % (v(56), v(LANE)))
        k('v_lshlrev_b32 %s, 10, %s' % (v(57), v(56)))
        k('v_lshrrev_b32 %s, 4, %s' % (v(56), v(LANE)))
        k('v_lshl_add_u32 %s, %s, 5, %s' % (v(57), v(56), v(57)))
        k('v_bfe_u32 %s, %s, 3, 1' % (v(56), v(LANE)))
        k('v_lshl_add_u32 %s, %s, 4, %s' % (v(57), v(56), v(57)))
        k('s_lshl_b32 %s, %s, 8' % (s(S_T0), s(S_W)))
        for k2 in range(2):
            k('buffer_load_dwordx4 %s, %s, %s, %s offen offset:%d' % (v(32 + 4 * k2, 4), v(57), s(S_M0, 4), s(S_T0), k2 * 128))
        k('s_lshl_b32 %s, %s, 20' % (s(S_KV), s(S_H)))
        k('s_lshl_b32 %s, %s, 12' % (s(S_T0), s(S_W)))
        k('s_add_u32 %s, %s, %s' % (s(S_KV), s(S_KV), s(S_T0)))
        k('s_mov_b32 %s, 0' % s(S_STEP))
    def kvload():
        if opt.get('ptouch', 1):
            k('v_lshlrev_b32 %s, 7, %s' % (v(7), v(LANE)))
            k('s_lshl_b32 %s, %s, 13' % (s(S_T0), s(S_W)))
            k('s_add_u32 %s, %s, 0x%x' % (s(S_T0), s(S_T0), H2))
            k('buffer_load_dword %s, %s, %s, %s offen sc1' % (v(KVC), v(7), s(S_WS, 4), s(S_T0)))
            k('s_mul_i32 %s, %s, %d' % (s(S_T0), s(S_H), JS))
            k('s_add_u32 %s, %s, 0x%x' % (s(S_T0), s(S_T0), INB))
            k('buffer_load_dword %s, %s, %s, %s offen sc1' % (v(KVC), v(7), s(S_WS, 4), s(S_T0)))
        k('v_lshlrev_b32 %s, 4, %s' % (v(7), v(LANE)))
        for i in range(4):
            k('buffer_load_dwordx4 %s, %s, %s, %s offen offset:%d sc1' % (v(KVC + 4 * i, 4), v(7), s(S_WS, 4), s(S_KV), 1024 * i))
    hooks = dict(getattr(k, 'load_hooks', {}))
    h13 = hooks.get(28)
    hooks[28] = lambda: ((h13() if h13 else None), kvload())
    k.ltrace = opt.get('ltrace', 0); k.lookahead = opt.get('la', 4); k.pdist = opt.get('pd', 0); k.wolast = opt.get('wolast', 0)
    assert k.lookahead <= 7
    homes = loader(k, LANE, LOC, early, hooks)
    if prof: k.raw('  s_memtime %s' % s(S_TS + 28, 2))
    if opt.get('ltrace'):
        k('s_lshl_b32 s55, s40, 2\ns_add_u32 s55, s55, s41\ns_lshl_b32 s55, s55, 8\ns_add_u32 s55, s55, 0x%x' % (DBG + 0x1a0000))
        k('v_lshlrev_b32 v52, 2, v0')
        k('buffer_store_dword v53, v52, s[8:11], s55 offen')
    if opt.get('loadonly'): k('s_branch L_chain_exit')
    k('v_mov_b32 %s, %s' % (v(STRM), v(6)))
    k('v_lshlrev_b32 %s, 4, %s' % (v(L16), v(LANE)))
    k('v_mov_b32 %s, %s' % (v(X3), v(55)))
    k.c('===== chain: initial state =====')
    consts(k, LANE)
    k('s_mul_i32 %s, %s, %d' % (s(S_INR0), s(S_H), JS))
    k('s_lshl_b32 %s, %s, 11' % (s(S_T0), s(S_W)))
    k('s_add_u32 %s, %s, %s' % (s(S_INR0), s(S_INR0), s(S_T0)))
    k('s_add_u32 %s, %s, 0x%x' % (s(S_INR0), s(S_INR0), INB))
    k('s_mov_b32 %s, 0x%x' % (s(S_DEF), SCRATCH))
    k('s_mov_b32 %s, 0x%x' % (s(S_KVM), MEMX + 8192))
    k('s_mov_b32 %s, 0' % s(S_TAG))
    for i in range(8):
        k('v_min_u32 %s, -2, %s' % (v(MEMF + i), v(32 + i)))
    k('ds_write_b128 %s, %s offset:%d' % (v(L16W), v(MEMF, 4), L_MEM))
    k('ds_write_b128 %s, %s offset:%d' % (v(L16W), v(MEMF + 4, 4), L_MEM + 1024))
    k('s_mov_b32 %s, 0x%x' % (s(S_T0), H2 + 0x6000))
    k('buffer_store_dwordx4 %s, %s, %s, %s offen offset:1024' % (v(MEMF + 4, 4), v(L16W), s(S_WS, 4), s(S_T0)))
    k('s_waitcnt vmcnt(0)')
    k('s_cmp_eq_u32 %s, 0' % s(S_H))
    k('s_cselect_b32 %s, 0x%x, %s' % (s(S_T0), MEMX, s(S_DEF)))
    k('buffer_store_dwordx4 %s, %s, %s, %s offen sc1' % (v(MEMF, 4), v(L16W), s(S_WS, 4), s(S_T0)))
    k('buffer_store_dwordx4 %s, %s, %s, %s offen offset:1024 sc1' % (v(MEMF + 4, 4), v(L16W), s(S_WS, 4), s(S_T0)))
    k('s_add_u32 %s, %s, 0x4000' % (s(S_KV), s(S_KV)))
    k('s_mul_i32 %s, %s, %d' % (s(S_INW0), s(S_W), 8 * JS))
    k('s_lshl_b32 %s, %s, 6' % (s(S_T0), s(S_H)))
    k('s_add_u32 %s, %s, %s' % (s(S_INW0), s(S_INW0), s(S_T0)))
    k('s_add_u32 %s, %s, 0x%x' % (s(S_INW0), s(S_INW0), INB))
    k('s_add_u32 %s, %s, 0x1000' % (s(S_INW1), s(S_INW0)))
    k('s_lshl_b32 %s, %s, 11' % (s(S_T0), s(S_W)))
    k('s_mov_b32 %s, 0x%x' % (s(S_H2W), H2))
    k('s_add_u32 m0, %s, %d' % (s(S_T0), L_MEM))
    k('s_add_u32 %s, %s, 0x%x' % (s(S_H2R), s(S_T0), H2 + 0x6000))
    k('s_mov_b32 %s, 0x%x' % (s(S_H2RST), H2 + 0x4000))
    cc = (128 ** -0.5) * math.log2(math.e)
    k('s_mov_b32 %s, 0x%x' % (s(S_C), f2u(cc)))
    k('s_mov_b32 %s, 0x%x' % (s(S_C + 1), f2u(cc)))
    pend = [(i, hf) for i in range(3) for hf in range(2)]
    def RF(n=1):
        for _ in range(n):
            if pend:
                i, hf = pend.pop(0)
                k('ds_read_b128 %s, %s offset:%d' % (v(SBUF + 8 * (i % 3) + 4 * hf, 4), v(STRM), homes[STREAM[i]] + 1024 * hf), tag=('st', i))
    RF(6)
    for i in range(0, 24, 2): k('v_mov_b64 %s, 0' % v(ACCQK + i, 2))
    if prof:
        for i in range(8): k('s_mov_b32 %s, 0' % s(S_TS + 16 + i))
        k.raw('  s_memtime %s' % s(S_TS + 24, 2))
    k('s_waitcnt lgkmcnt(0)')

    NSW = opt.get('nsw', 22) if hasattr(k, 'hook_prefetch') and k.full else 0
    k.nsw = NSW
    out = {}
    def emit(first):
        n0 = len(k.lines)
        used = []
        def smf(op, acc, afrag):
            loc = LOC[op]
            if loc[0] == 's':
                assert loc[1] == len(used), (op, loc, used)
                used.append(loc[1])
                assert all(p[0] != loc[1] for p in pend), ('refill not issued', op)
                k.wait_lg(('st', loc[1]))
                opnd = v(SBUF + 8 * (loc[1] % 3), 8)
            else:
                opnd = dst(loc, 0, 8)
            k('v_smfmac_f32_16x16x64_bf16 %s, %s, %s, %s' % (v(acc, 4), v(afrag, 4), opnd, v(IDX)))
            if loc[0] == 's':
                pend.append(((loc[1] + 3) % NS, 0)); pend.append(((loc[1] + 3) % NS, 1))
        ACC = {'q': ACCQK, 'k': ACCQK + 8, 'v': ACCV}
        def S(m, kap, j):
            if kap >= 2: k.wait_lg(('mf', kap))
            smf((m, kap, j), ACC[m] + 4 * j, MEMF + 4 * kap)
        k.points = []
        def pt(name):
            k.points.append(name)
            if opt.get('pt') == name:
                k.raw('  s_memtime %s' % s(S_TS + 2, 2))
        def cvt(d, x, y): k('v_cvt_pk_bf16_f32 %s, %s, %s' % (v(d), v(x), v(y)))
        def mf16(d, A, B, C=None): k('v_mfma_f32_16x16x16_bf16 %s, %s, %s, %s' % (v(d, 4), v(A, 2), v(B, 2), '0' if C is None else v(C, 4)))
        def mf32(d, A, B, C=None): k('v_mfma_f32_16x16x32_bf16 %s, %s, %s, %s' % (v(d, 4), v(A, 4), v(B, 4), '0' if C is None else v(C, 4)))
        def pkadd(d, x, y): k('v_pk_add_f32 %s, %s, %s' % (v(d, 2), v(x, 2), v(y, 2)))
        def pkfma_c(d, x, m): k('v_pk_fma_f32 %s, %s, %s, %s op_sel_hi:[1,1,0] neg_lo:[0,0,1] neg_hi:[0,0,1]' % (v(d, 2), v(x, 2), s(S_C, 2), v(m, 2)))
        def pkmul_b(d, x, m): k('v_pk_mul_f32 %s, %s, %s op_sel_hi:[1,0]' % (v(d, 2), v(x, 2), v(m, 2)))
        def add(d, x, y): k('v_add_f32 %s, %s, %s' % (v(d), v(x), v(y)))
        def mov64(d, x): k('v_mov_b64 %s, %s' % (v(d, 2), x))
        def BAR(tag): k.wait_lg(tag); k('s_barrier')
        def nops(n):
            while n > 0:
                k('s_nop %d' % (min(n, 16) - 1)); n -= 16
        ROR8 = 'row_ror:8 row_mask:0xf bank_mask:0xf'
        FAIL = 'L_fail'; DONE = 'L_chain_done'; BODY = 'L_chain_body'; BODY0 = 'L_chain_body0'
        RETRY2 = 'L_retry2'; RETRY1 = 'L_retry1'; RETRY3 = 'L_retry3'; RET3 = 'L_ret3'
        OFIRST = opt.get('o1', 1)
        D1 = opt.get('d1', 2); D2 = opt.get('d2', 2)
        HA, HB = T1 + 7, OR_
        ORR = [X0, X1, X2]
        H1R = MEMF + 8
        VM = KVC + 4; KA = T1 + 4
        def ldE(): k('buffer_load_dwordx4 %s, %s, %s offen sc1 lds' % (v(L16), s(S_WS, 4), s(S_H2R)), tag='pe')
        def ldO(): k('buffer_load_dwordx4 %s, %s, %s offen offset:1024 sc1 lds' % (v(L16), s(S_WS, 4), s(S_H2R)), tag='po')
        def own(k2): k('ds_read_b128 %s, %s offset:%d' % (v(MEMF + 4 * k2, 4), v(L16W), L_MEM + 1024 * k2), tag=('own', k2))
        def chk4(R):
            k('v_max3_u32 %s, %s, %s, %s' % (v(HA), v(R), v(R + 1), v(R + 2)))
            k('v_max_u32 %s, %s, %s' % (v(HA), v(HA), v(R + 3)))
            k('v_cmp_eq_u32 vcc, -1, %s' % v(HA))
        def R(kap):
            p = kap >> 1; k2 = kap & 1
            k('ds_read_b128 %s, %s offset:%d' % (v(MEMF + 4 * kap, 4), v(MEMR + p - 1), L_MEM + 1024 * k2), tag=('mf', kap))
        TCH = opt.get('touch', 0); S_KV2 = 50
        def pf(i): k('buffer_load_dwordx4 %s, %s, %s, %s offen offset:%d %s' % (v(KVN + 4 * i, 4), v(L16), s(S_WS, 4), s(S_KV), 1024 * i, '' if TCH else 'sc1'))
        def touch(): k('buffer_load_dword %s, %s, %s, %s offen' % (v(KVN + 15), v(T1), s(S_WS, 4), s(S_KV2)))
        def pubm(): k('buffer_store_dword %s, %s, %s, %s offen sc1' % (v(HB), v(ST2), s(S_WS, 4), s(S_DEF)))
        def stk(so): k('buffer_store_dwordx4 %s, %s, %s, %s offen sc1' % (v(KA, 4), v(L16), s(S_WS, 4), s(so)))
        def stv(so): k('buffer_store_dwordx4 %s, %s, %s, %s offen offset:1024 sc1' % (v(VM, 4), v(L16), s(S_WS, 4), s(so)))
        def sel(d, x): k('v_mov_b32_dpp %s, %s quad_perm:[0,1,2,3] row_mask:0xf bank_mask:0xc' % (v(d), v(x)))

        if first: k('s_branch %s' % BODY0)
        k.raw('.p2align 6')
        for i in range(opt.get('shift', 0)): k.raw('  s_nop 0')
        EM = opt.get('em', 1)
        k.label(RETRY2)
        k('s_mov_b64 exec, vcc')
        ldE()
        if prof: k('s_add_u32 %s, %s, 1' % (s(S_TS + 23), s(S_TS + 23)))
        k('s_sub_u32 %s, %s, 1' % (s(S_SPIN), s(S_SPIN)))
        k('s_cbranch_scc1 %s' % FAIL)
        if EM: k('s_waitcnt vmcnt(%d)' % (1 + OFIRST))
        own(0)
        k.label('L_ew')
        k('s_waitcnt lgkmcnt(%d)' % (0 if EM else 1))
        chk4(MEMF)
        k('s_cbranch_vccnz %s' % RETRY2)
        k('s_mov_b64 exec, -1')
        k.label(BODY)
        if opt.get('trace') == 2: k.raw('  s_memtime %s' % s(S_TS + 8, 2))
        k.label(BODY0)
        if opt.get('o2', 1) and not opt.get('nohop'): ldO()
        abl = opt.get('abl', [])
        if abl:
            k0 = k._one
            def filt(t, tag):
                if 'vmem' in abl and t.startswith('buffer_'): return
                if 'bar' in abl and t.startswith('s_barrier'): return
                if 'stream' in abl and t.startswith('ds_read_b128') and (', %s ' % v(STRM)) in t: return
                if 'dsw' in abl and t.startswith('ds_write'): return
                if 'dsr' in abl and t.startswith('ds_read'): return
                return k0(t, tag)
            k._one = filt
        k.lg = ['x']; k.vm = []
        if opt.get('pt'): k.raw('  s_memtime %s' % s(S_TS, 2))
        k('s_barrier')
        pt('b1')
        if opt.get('trace') == 2: k.raw('  s_memtime %s' % s(S_TS + 14, 2))
        R(2)
        S('q', 0, 0); R(4); S('q', 0, 1); R(6); S('k', 0, 0); RF(); S('k', 0, 1); RF()
        pt('own0')
        S('q', 2, 0); RF()
        if TCH and hasattr(k, 'hook_prefetch'): k.hook_prefetch(0)
        S('q', 2, 1); RF()
        if TCH and hasattr(k, 'hook_prefetch'): k.hook_prefetch(1)
        S('q', 4, 0); RF()
        if TCH:
            k('s_add_u32 %s, %s, 0x4000' % (s(S_KV2), s(S_KV)))
            k('v_lshlrev_b32 %s, 2, %s' % (v(T1), v(L16)))
        S('q', 4, 1); RF()
        ev = [('q', 6, 0), ('q', 6, 1), ('k', 2, 0), ('k', 2, 1), ('k', 4, 0), ('k', 4, 1), ('k', 6, 0), ('k', 6, 1), ('v', 0, 0), ('v', 0, 1)]
        no = opt.get('oddat', 2)
        for o_ in ev[:no]: S(*o_); RF()
        k('s_waitcnt vmcnt(%d)' % (opt.get('o2', 1) if OFIRST else 0)); own(1)
        for o_ in ev[no:no + 4]: S(*o_); RF()
        k.wait_lg(('own', 1))
        k('v_max3_u32 %s, %s, %s, %s' % (v(HA), v(MEMF + 4), v(MEMF + 5), v(MEMF + 6)))
        S(*ev[no + 4]); RF()
        k('v_max_u32 %s, %s, %s' % (v(HA), v(HA), v(MEMF + 7)))
        k('v_cmp_eq_u32 vcc, -1, %s' % v(HA))
        S(*ev[no + 5])
        rest = [o_ for o_ in ev[no + 6:] if o_[0] != 'v']
        vleft = [o_[1:] for o_ in ev[no + 6:] if o_[0] == 'v']
        if not opt.get('nohop'): k('s_cbranch_vccnz %s' % RETRY3)
        k.label(RET3)
        k.vm = []
        pt('odd')
        if opt.get('trace'):
            k.raw('  s_memtime %s' % s(S_TS + 4, 2))
            k.raw('  s_memrealtime %s' % s(S_TS + 6, 2))
            k.raw('  s_waitcnt lgkmcnt(0)')
            k('v_mov_b32 %s, %s' % (v(T1), s(S_TS + 4)))
            k('v_mov_b32 %s, %s' % (v(T1 + 1), s(S_TS + 6)))
            k('s_lshl_b32 %s, %s, 2' % (s(S_T0), s(S_H)))
            k('s_add_u32 %s, %s, %s' % (s(S_T0), s(S_T0), s(S_W)))
            k('s_lshl_b32 %s, %s, 6' % (s(S_T0), s(S_T0)))
            k('s_add_u32 %s, %s, %s' % (s(S_T0), s(S_T0), s(S_STEP)))
            k('s_lshl_b32 %s, %s, 3' % (s(S_T0), s(S_T0)))
            k('s_add_u32 %s, %s, 0x%x' % (s(S_T0), s(S_T0), DBG + 0x120000))
            k('v_mov_b32 %s, 0' % v(T1 + 2))
            k('s_mov_b64 exec, 1')
            k('buffer_store_dwordx2 %s, %s, %s, %s offen' % (v(T1, 2), v(T1 + 2), s(S_WS, 4), s(S_T0)))
            if opt.get('trace') == 2:
                for i in range(4): k('v_mov_b32 %s, %s' % (v(T1 + 4 + i), s(S_TS + 8 + 2 * i)))
                k('s_sub_u32 %s, %s, 0x%x' % (s(S_T0), s(S_T0), DBG + 0x120000))
                k('s_lshl_b32 %s, %s, 1' % (s(S_T0), s(S_T0)))
                k('s_add_u32 %s, %s, 0x%x' % (s(S_T0), s(S_T0), DBG + 0x140000))
                k('buffer_store_dwordx4 %s, %s, %s, %s offen' % (v(T1 + 4, 4), v(T1 + 2), s(S_WS, 4), s(S_T0)))
            k('s_mov_b64 exec, -1')
        if dump:
            k('s_lshl_b32 %s, %s, 13' % (s(S_T0), s(S_STEP)))
            k('s_lshl_b32 %s, %s, 11' % (s(S_T1), s(S_W)))
            k('s_add_u32 %s, %s, %s' % (s(S_T0), s(S_T0), s(S_T1)))
            k('s_add_u32 %s, %s, 0x%x' % (s(S_T0), s(S_T0), DBG))
            k('buffer_store_dwordx4 %s, %s, %s, %s offen' % (v(MEMF, 4), v(L16), s(S_WS, 4), s(S_T0)))
            k('buffer_store_dwordx4 %s, %s, %s, %s offen offset:1024' % (v(MEMF + 4, 4), v(L16), s(S_WS, 4), s(S_T0)))
        k('s_barrier'); R(3)
        pt('b1b')
        for o_ in rest: S(*o_); RF()
        HP = getattr(k, 'hook_prefetch', lambda p: None)
        if TCH:
            S('q', 1, 0); touch()
            S('q', 1, 1); R(5)
            S('k', 1, 0); R(7)
            S('k', 1, 1); pubm()
            S('q', 3, 0); RF()
            S('q', 3, 1); HP(2); RF()
            S('q', 5, 0); RF()
            S('q', 5, 1); RF()
            S('q', 7, 0); pf(0)
            S('q', 7, 1); RF()
        else:
            S('q', 1, 0); R(5); HP(0)
            S('q', 1, 1); R(7); HP(1)
            S('k', 1, 0); pf(0)
            S('k', 1, 1); RF()
            S('q', 3, 0); RF()
            S('q', 3, 1); RF()
            S('q', 5, 0); pf(1)
            S('q', 5, 1); RF()
            S('q', 7, 0); RF()
            S('q', 7, 1); RF()
        pt('Q')
        MXX, TA, PM = MEMF + 0, MEMF + 1, MEMF + 2
        AK = ACCQK + 8
        S('k', 3, 0); (RF() if TCH else pf(2))
        S('k', 3, 1); RF(); cvt(T1, ACCQK, ACCQK + 1)
        S('k', 5, 0); (pf(1) if TCH else RF()); cvt(T1 + 1, ACCQK + 2, ACCQK + 3)
        S('k', 5, 1); RF(); cvt(T1 + 2, ACCQK + 4, ACCQK + 5)
        S('k', 7, 0); (RF() if TCH else pf(3)); cvt(T1 + 3, ACCQK + 6, ACCQK + 7)
        S('k', 7, 1); RF()
        pt('K')
        vq = [(2, 0), (1, 0), (3, 0), (1, 1), (3, 1), (4, 0), (5, 0), (5, 1), (7, 0), (7, 1), (2, 1), (4, 1), (6, 0), (6, 1)]
        vq = vq[:6] + vleft + vq[6:]
        def V(n=1):
            for _ in range(n):
                kap, j = vq.pop(0)
                S('v', kap, j)
        mf16(ACCQK, T1, SELT); RF()
        if not TCH: k('s_add_u32 %s, %s, 0x4000' % (s(S_KV), s(S_KV)))
        mf16(ACCQK + 4, T1 + 2, SELT)
        (pf(2) if TCH else pubm())
        cvt(T1 + 4, AK, AK + 1); cvt(T1 + 5, AK + 2, AK + 3)
        V(1); RF()
        cvt(T1 + 6, AK + 4, AK + 5); cvt(T1 + 7, AK + 6, AK + 7)
        mf16(AK, T1 + 4, SELT); RF()
        cvt(T1, ACCQK, ACCQK + 1); cvt(T1 + 1, ACCQK + 2, ACCQK + 3)
        mf16(AK + 4, T1 + 6, SELT)
        if not TCH: HP(2)
        cvt(T1 + 2, ACCQK + 4, ACCQK + 5); cvt(T1 + 3, ACCQK + 6, ACCQK + 7)
        V(1)
        mf32(ACCQK, KVC, T1)
        if TCH:
            pf(3)
            k('s_add_u32 %s, %s, 0x4000' % (s(S_KV), s(S_KV)))
        cvt(T1 + 4, AK, AK + 1); cvt(T1 + 5, AK + 2, AK + 3)
        mf32(ACCQK + 4, KVC + 4, T1)
        cvt(T1 + 6, AK + 4, AK + 5); cvt(T1 + 7, AK + 6, AK + 7)
        V(1); RF()
        mf32(AK, T1 + 4, T1); RF()
        pt('sm')
        for j in range(4): sel(ACCQK + j, ACCQK + 4 + j)
        V(1)
        k('ds_write_b128 %s, %s offset:%d' % (v(L16W), v(ACCQK, 4), L_SX), tag='xw')
        sel(AK, AK + 2); sel(AK + 1, AK + 3)
        V(1)
        k('ds_write_b64 %s, %s' % (v(SMW), v(AK, 2)), tag='sw')
        pt('swr')
        WACC = MEMF + 16; OF = MEMF + 4
        V(1); RF(); V(1); RF(); V(opt.get('vb2', 3))
        BAR('sw')
        pt('b2')
        XSR = [KVC, KVC + 4, ACCQK + 4]
        def XR(p): k('ds_read_b128 %s, %s offset:%d' % (v(XSR[p], 4), v(MEMR + p), L_SX), tag=('xs', p))
        MS = AK; XS = KVC
        XR(0); V(1); XR(1); V(1); XR(2); V(1)
        k('ds_read2_b64 %s, %s offset0:0 offset1:32' % (v(MS, 4), v(SMR)), tag='ms0')
        V(1)
        k('ds_read2_b64 %s, %s offset0:64 offset1:96' % (v(MS + 4, 4), v(SMR)), tag='ms1')
        V(len(vq))
        k.wait_lg(('xs', 0))
        pkadd(XS, XS, ACCQK); pkadd(XS + 2, XS + 2, ACCQK + 2)
        k.wait_lg(('xs', 2))
        pkadd(ACCQK + 4, ACCQK + 4, XS + 4); pkadd(ACCQK + 6, ACCQK + 6, XS + 6)
        pkadd(XS, XS, ACCQK + 4); pkadd(XS + 2, XS + 2, ACCQK + 6)
        k.wait_lg('ms1')
        pkadd(MS, MS, MS + 2); pkadd(MS + 4, MS + 4, MS + 6)
        k('v_max3_f32 %s, %s, %s, %s' % (v(MXX), v(XS), v(XS + 1), v(XS + 2)))
        pkadd(MS, MS, MS + 4)
        pt('sums')
        k('v_max_f32 %s, %s, %s' % (v(MXX), v(MXX), v(XS + 3)))
        k('v_max3_f32 %s, %s, %s, %s' % (v(MXX), v(MXX), v(MS), v(MS + 1)))
        cvt(VM, ACCV, ACCV + 1); cvt(VM + 1, ACCV + 2, ACCV + 3)
        k('v_max_f32_dpp %s, %s, %s %s' % (v(MXX), v(MXX), v(MXX), ROR8))
        k('v_mov_b32 %s, %s' % (v(TA), v(MXX)))
        cvt(VM + 2, ACCV + 4, ACCV + 5); cvt(VM + 3, ACCV + 6, ACCV + 7)
        k('v_permlane16_swap_b32 %s, %s' % (v(MXX), v(TA)))
        k('v_max_f32 %s, %s, %s' % (v(MXX), v(MXX), v(TA)))
        k('v_mov_b32 %s, %s' % (v(TA), v(MXX)))
        mov64(WACC, '0'); mov64(WACC + 2, '0')
        k('v_permlane32_swap_b32 %s, %s' % (v(MXX), v(TA)))
        k('v_max_f32 %s, %s, %s' % (v(MXX), v(MXX), v(TA)))
        k('v_mul_f32 %s, %s, %s' % (v(MXX), s(S_C), v(MXX)))
        pt('max')
        def ex(d): k('v_exp_f32 %s, %s' % (v(d), v(d)))
        pkfma_c(XS, XS, MXX); pkfma_c(XS + 2, XS + 2, MXX); pkfma_c(MS, MS, MXX)
        for j in range(4): ex(XS + j)
        PX = T1
        ex(MS)
        cvt(PX, XS, XS + 1); cvt(PX + 1, XS + 2, XS + 3)
        ex(MS + 1)
        for j in range(2): k('v_mov_b32_dpp %s, %s %s' % (v(PX + 2 + j), v(PX + j), ROR8))
        cvt(PM, MS, MS + 1)
        pkadd(XS, XS, XS + 2)
        O0, O1 = ACCQK, ACCQK + 4
        LS = MXX
        mf32(O0, KVC + 8, PX)
        k('v_mov_b32_dpp %s, %s %s' % (v(PM + 1), v(PM), ROR8))
        add(MS, MS, MS + 1)
        mf32(O1, KVC + 12, PX)
        add(XS, XS, XS + 1)
        k('v_fma_f32 %s, %s, 0.5, %s' % (v(LS), v(MS), v(XS)))
        mf16(O0, VM, PM, O0)
        k('v_add_f32_dpp %s, %s, %s %s' % (v(LS), v(LS), v(LS), ROR8))
        k('v_mov_b32 %s, %s' % (v(TA), v(LS)))
        mf16(O1, VM + 2, PM, O1)
        pt('pv')
        k('v_permlane16_swap_b32 %s, %s' % (v(LS), v(TA)))
        add(LS, LS, TA)
        k('v_mov_b32 %s, %s' % (v(TA), v(LS)))
        mov64(WACC + 4, '0'); mov64(WACC + 6, '0')
        k('v_permlane32_swap_b32 %s, %s' % (v(LS), v(TA)))
        add(LS, LS, TA)
        k('v_rcp_f32 %s, %s' % (v(LS), v(LS)))
        mov64(WACC + 8, '0')
        pkmul_b(O0, O0, LS); pkmul_b(O0 + 2, O0 + 2, LS); pkmul_b(O1, O1, LS); pkmul_b(O1 + 2, O1 + 2, LS)
        for i in range(4): cvt(T1 + i, O0 + 2 * i, O0 + 2 * i + 1)
        k('ds_write_b128 %s, %s offset:%d' % (v(OW), v(T1, 4), L_OX), tag='ow')
        pt('owr')
        for j in range(4): k('v_mov_b32_dpp %s, %s row_ror:8 row_mask:0xf bank_mask:0xc' % (v(T1 + j), v(T1 + j)))
        for i in range(10, 16, 2): mov64(WACC + i, '0')
        for i in range(0, 8, 2): mov64(ACCV + i, '0')
        def WO(a_, kap):
            if kap: k.wait_lg(('of', kap))
            smf(('o', a_, kap), WACC + 4 * a_, T1 if kap == 0 else OF + 4 * (kap - 1))
        def OFR(kap): k('ds_read_b128 %s, %s offset:%d' % (v(OF + 4 * (kap - 1), 4), v(ORR[kap - 1]), L_OX), tag=('of', kap))
        k('s_mov_b32 %s, %s' % (s(S_DEF), s(S_KVM)))
        k('s_add_u32 %s, %s, 0x2000' % (s(S_KVM), s(S_KVM)))
        WO(0, 0); BAR('ow'); OFR(1)
        pt('b3')
        WO(1, 0); OFR(2)
        WO(2, 0); OFR(3)
        WO(3, 0); RF()
        PK = ACCQK
        def tag(r): k('v_bfi_b32 %s, 1, %s, %s' % (v(r), s(S_TAG), v(r)))
        def pack(a_):
            cvt(PK + 2 * a_, WACC + 4 * a_, WACC + 4 * a_ + 1); cvt(PK + 2 * a_ + 1, WACC + 4 * a_ + 2, WACC + 4 * a_ + 3); tag(PK + 2 * a_)
        def sto(a_):
            k('buffer_store_dwordx2 %s, %s, %s, %s offen offset:%d' % (v(PK + 2 * a_, 2), v(ST1), s(S_WS, 4), s(S_INW0 if a_ < 2 else S_INW1), 2048 * (a_ & 1)))
        RA = MEMF + 16
        WO(0, 1); RF(); mov64(ACCQK + 8, '0'); WO(0, 2); mov64(ACCQK + 10, '0'); WO(0, 3); mov64(ACCQK + 12, '0')
        WO(1, 1); mov64(ACCQK + 14, '0'); WO(1, 2); RF(); pack(0); WO(1, 3); sto(0)
        pt('st0')
        WO(2, 1); RF(); mov64(RA, '0'); WO(2, 2); RF(); pack(1); WO(2, 3); sto(1)
        pt('st1')
        WO(3, 1); RF(); mov64(RA + 2, '0'); WO(3, 2); pack(2); WO(3, 3); sto(2)
        RF(2)
        k('s_mov_b32 %s, %d' % (s(S_SPIN), SPIN_MAX))
        k('s_add_u32 %s, %s, 0x2000' % (s(S_H2R), s(S_H2R)))
        k('s_and_b32 %s, %s, 0x%x' % (s(S_H2R), s(S_H2R), 0xffff7fff))
        k('s_add_u32 %s, %s, 1' % (s(S_STEP), s(S_STEP)))
        mov64(PK, '0'); mov64(PK + 2, '0')
        pack(3); sto(3)
        pt('st2')
        if opt.get('trace') == 2: k.raw('  s_memtime %s' % s(S_TS + 10, 2))
        assert len(used) == NS and not pend
        k.c('--- H1')
        HSET = [MEMF + 8, MEMF + 20, MEMF + 0]
        def round1(i):
            k('buffer_load_dwordx4 %s, %s, %s, %s offen sc1' % (v(HSET[i], 4), v(L16), s(S_WS, 4), s(S_INR0)))
            k('buffer_load_dwordx4 %s, %s, %s, %s offen offset:1024 sc1' % (v(HSET[i] + 4, 4), v(L16), s(S_WS, 4), s(S_INR0)))
        def h1chk(i):
            Rg = HSET[i]
            k('s_waitcnt vmcnt(%d)' % (2 * (D1 - 1)))
            k('v_smfmac_f32_16x16x64_bf16 %s, %s, %s, %s' % (v(RA, 4), v(SELR, 4), v(Rg, 8), v(IDXR)))
            k('v_bitop3_b32 %s, %s, %s, %s bitop3:0x7e' % (v(HA), v(Rg), v(Rg + 2), s(S_TAG)))
            k('v_bitop3_b32 %s, %s, %s, %s bitop3:0x7e' % (v(HA - 1), v(Rg + 4), v(Rg + 6), s(S_TAG)))
            k('v_bitop3_b32 %s, %s, %s, 1 bitop3:0xa8' % (v(HA), v(HA), v(HA - 1)))
            k('v_cmp_ne_u32 vcc, 0, %s' % v(HA))
            k('v_mov_b32 %s, -1' % v(HA))
        def ptacc():
            if opt.get('pt'):
                k.raw('  s_waitcnt lgkmcnt(0)')
                k('s_sub_u32 %s, %s, %s' % (s(S_T0), s(S_TS + 2), s(S_TS)))
                k('s_add_u32 %s, %s, %s' % (s(S_TS + 16), s(S_TS + 16), s(S_T0)))
        if opt.get('nohop'):
            if abl: k._one = k0
            ptacc()
            mov64(PK + 4, '0'); mov64(PK + 6, '0')
            k('s_waitcnt vmcnt(0) lgkmcnt(0)')
            k('s_barrier')
            k('s_cmp_eq_u32 %s, %d' % (s(S_STEP), nsteps - 1))
            k('s_cbranch_scc1 %s' % DONE)
            k('s_branch %s' % BODY0)
        k('s_cmp_lt_u32 %s, 2' % s(S_W))
        k('s_cbranch_scc1 L_early')
        nops(opt.get('late1', 46))
        k.label('L_early')
        mov64(PK + 4, '0'); mov64(PK + 6, '0')
        nops(opt.get('pre1', 26))
        for i in range(D1):
            round1(i)
            if i < D1 - 1: nops(opt.get('gap1', 20))
        k('s_cmp_eq_u32 %s, %d' % (s(S_STEP), nsteps - 1))
        k.label('L_h1w')
        h1chk(0)
        k('s_cbranch_vccnz L_h1r0')
        k.label('L_h1ok')
        mov64(KVC, v(KVN, 2))
        for rr in ('row_ror:4', 'row_ror:8'):
            for j in range(2):
                k('v_add_f32_dpp %s, %s, %s %s row_mask:0xf bank_mask:0xf' % (v(RA + j), v(RA + j), v(RA + j), rr))
        cvt(HB, RA, RA + 1)
        k('v_min_u32 %s, -2, %s' % (v(HB), v(HB)))
        k('s_cbranch_scc1 %s' % DONE)
        k('buffer_store_dword %s, %s, %s, %s offen' % (v(HB), v(ST2), s(S_WS, 4), s(S_H2W)))
        RL = opt.get('rlate', 0)
        def rstore(): k('buffer_store_dword %s, %s, %s, %s offen' % (v(HA), v(ST2), s(S_WS, 4), s(S_H2RST)))
        if not RL: rstore()
        pt('p1ok')
        if opt.get('trace') == 2: k.raw('  s_memtime %s' % s(S_TS + 12, 2))
        def hk():
            for i in range(2, 16, 2): mov64(KVC + i, v(KVN + i, 2))
            ptacc()
            k('s_xor_b32 %s, %s, 1' % (s(S_TAG), s(S_TAG)))
            for r in (S_H2W, S_H2RST):
                k('s_add_u32 %s, %s, 0x2000' % (s(r), s(r)))
                k('s_and_b32 %s, %s, 0x%x' % (s(r), s(r), 0xffff7fff))
            k('s_mov_b32 %s, %d' % (s(S_SPIN), SPIN_MAX))
            k('s_waitcnt lgkmcnt(0)')
        k('s_cmp_lt_u32 %s, 2' % s(S_W))
        k('s_cbranch_scc1 L_early2')
        k.label('L_late2')
        nops(opt.get('pre2', 0))
        NE = 2
        ldE()
        if RL: rstore()
        hk(); nops(opt.get('gapa', 24))
        ldE()
        if OFIRST: nops(opt.get('gap2', 14))
        if OFIRST: ldO()
        k('s_waitcnt vmcnt(%d)' % (NE - 1 + OFIRST + RL))
        own(0)
        if not EM:
            nops(opt.get('rd2', 4))
            own(0)
        if first and NSW:
            k('s_cmp_eq_u32 %s, %d' % (s(S_STEP), NSW))
            k('s_cbranch_scc1 L_ew_b')
        k('s_branch L_ew')
        for i in range(D1):
            k.label('L_h1r%d' % i)
            k('s_mov_b64 exec, vcc')
            round1(i)
            k('s_mov_b64 exec, -1')
            if prof: k('s_add_u32 %s, %s, 0x10000' % (s(S_TS + 23), s(S_TS + 23)))
            k('s_sub_u32 %s, %s, 1' % (s(S_SPIN), s(S_SPIN)))
            k('s_cbranch_scc1 %s' % FAIL)
            k('s_cmp_eq_u32 %s, %d' % (s(S_STEP), nsteps - 1))
            mov64(RA, '0'); mov64(RA + 2, '0')
            if i == D1 - 1:
                k('s_branch L_h1w')
            else:
                h1chk(i + 1)
                k('s_cbranch_vccz L_h1ok')
        k.label('L_early2')
        nops(opt.get('early2', 34))
        k('s_branch L_late2')
        k.label(RETRY3)
        k('s_mov_b64 exec, vcc')
        ldO()
        if prof: k('s_add_u32 %s, %s, 0x100' % (s(S_TS + 22), s(S_TS + 22)))
        k('s_sub_u32 %s, %s, 1' % (s(S_SPIN), s(S_SPIN)))
        k('s_cbranch_scc1 %s' % FAIL)
        k('s_waitcnt vmcnt(1)')
        own(1)
        k('s_waitcnt lgkmcnt(0)')
        chk4(MEMF + 4)
        k('s_cbranch_vccnz %s' % RETRY3)
        k('s_mov_b64 exec, -1')
        k('s_branch %s' % RET3)
        out['HB'] = HB
        if not first:
            names = ['L_chain_body0', 'L_chain_body', 'L_retry2', 'L_retry3', 'L_ret3', 'L_ew', 'L_early2', 'L_early', 'L_late2', 'L_h1w', 'L_h1ok', 'L_h1r0', 'L_h1r1', 'L_h1r2']
            pat = re.compile(r'\b(' + '|'.join(names) + r')\b')
            k.lines[n0:] = [pat.sub(lambda m: m.group(1) + '_b', l) for l in k.lines[n0:]]
    emit(True)
    if NSW:
        hp = k.hook_prefetch
        del k.hook_prefetch
        k.hist = []
        emit(False)
        k.hook_prefetch = hp
    HB = out['HB']; DONE = 'L_chain_done'
    k.label(DONE)
    if not (k.full and opt.get('lastkv', 1)):
        k('buffer_store_dword %s, %s, %s, %s offen sc1' % (v(HB), v(ST2), s(S_WS, 4), s(S_DEF)))
    else:
        k.hist = []; k.lg = []; k.vm = []
        HA = T1 + 7
        k('buffer_store_dword %s, %s, %s, %s offen' % (v(HB), v(ST2), s(S_WS, 4), s(S_H2W)))
        spare = [SBUF, SBUF + 8, SBUF + 16, KVC, KVC + 8, KVN, KVN + 8, VSTAT + 16, VSTAT + 24]
        loc2 = dict(LOC)
        k('s_waitcnt lgkmcnt(0)')
        for o in STREAM:
            if o[0] in 'kv':
                r = spare.pop(0); loc2[o] = ('v', r)
                for hf in range(2): k('ds_read_b128 %s, %s offset:%d' % (v(r + 4 * hf, 4), v(STRM), homes[o] + 1024 * hf))
                if len(spare) % 4 == 1: k('s_waitcnt lgkmcnt(0)')
        k('s_lshl_b32 %s, %s, 8' % (s(S_T0), s(S_H)))
        k('s_add_u32 %s, %s, %s' % (s(S_T0), s(S_T0), s(S_W)))
        k('s_lshl_b32 %s, %s, 10' % (s(S_T0), s(S_T0)))
        k('s_add_u32 %s, %s, 0x%x' % (s(S_T0), s(S_T0), WKVF + 63 * 4096))
        k('s_mov_b32 %s, %d' % (s(S_SPIN), SPIN_MAX))
        k('s_mov_b64 vcc, -1')
        k.label('L_fin_r')
        k('s_mov_b64 exec, vcc')
        k('buffer_load_dwordx4 %s, %s, %s offen sc1 lds' % (v(L16), s(S_WS, 4), s(S_H2R)))
        k('buffer_load_dwordx4 %s, %s, %s offen offset:1024 sc1 lds' % (v(L16), s(S_WS, 4), s(S_H2R)))
        k('s_sub_u32 %s, %s, 1' % (s(S_SPIN), s(S_SPIN)))
        k('s_cbranch_scc1 L_fail')
        k('s_waitcnt vmcnt(0)')
        for k2 in range(2): k('ds_read_b128 %s, %s offset:%d' % (v(MEMF + 4 * k2, 4), v(L16W), L_MEM + 1024 * k2))
        k('s_waitcnt lgkmcnt(0)')
        k('v_max3_u32 %s, %s, %s, %s' % (v(HA), v(MEMF), v(MEMF + 1), v(MEMF + 2)))
        k('v_max3_u32 %s, %s, %s, %s' % (v(HA - 1), v(MEMF + 3), v(MEMF + 4), v(MEMF + 5)))
        k('v_max3_u32 %s, %s, %s, %s' % (v(HA), v(HA), v(MEMF + 6), v(MEMF + 7)))
        k('v_max_u32 %s, %s, %s' % (v(HA), v(HA), v(HA - 1)))
        k('v_cmp_eq_u32 vcc, -1, %s' % v(HA))
        k('s_cbranch_vccnz L_fin_r')
        k('s_mov_b64 exec, -1')
        k('s_barrier')
        AK = ACCQK + 8
        rq = [2, 3, 4, 5, 6, 7]
        def F(m, kap, t):
            if kap >= 2: k.wait_lg(('mf', kap))
            k('v_smfmac_f32_16x16x64_bf16 %s, %s, %s, %s' % (v((AK if m == 'k' else ACCV) + 4 * t, 4), v(MEMF + 4 * kap, 4), dst(loc2[(m, kap, t)], 0, 8), v(IDX)))
            if rq:
                kp = rq.pop(0)
                k('ds_read_b128 %s, %s offset:%d' % (v(MEMF + 4 * kp, 4), v(MEMR + (kp >> 1) - 1), L_MEM + 1024 * (kp & 1)), tag=('mf', kp))
        def cv(d, x, y): k('v_cvt_pk_bf16_f32 %s, %s, %s' % (v(d), v(x), v(y)))
        for kap in range(2):
            for t in range(2): F('k', kap, t)
        F('v', 0, 0); F('v', 0, 1)
        for kap in range(2, 8):
            for t in range(2): F('k', kap, t)
        vq = [(kap, t) for kap in range(1, 8) for t in range(2)]
        def V(n):
            for _ in range(n): F('v', *vq.pop(0))
        V(3)
        for i in range(4): cv(T1 + i, AK + 2 * i, AK + 2 * i + 1)
        V(1)
        for t in range(2): k('v_mfma_f32_16x16x16_bf16 %s, %s, %s, 0' % (v(AK + 4 * t, 4), v(T1 + 2 * t, 2), v(SELT, 2)))
        V(4)
        for i in range(4): cv(T1 + i, AK + 2 * i, AK + 2 * i + 1)
        V(2)
        for i in range(2): k('v_mov_b32_dpp %s, %s quad_perm:[0,1,2,3] row_mask:0xf bank_mask:0xc' % (v(T1 + i), v(T1 + 2 + i)))
        for i in range(2): k('v_min_u32 %s, -2, %s' % (v(T1 + i), v(T1 + i)))
        V(4)
        for j in range(4): k('v_permlane32_swap_b32 %s, %s' % (v(ACCV + j), v(ACCV + 4 + j)))
        for j in range(4): k('v_add_f32 %s, %s, %s' % (v(ACCV + j), v(ACCV + j), v(ACCV + 4 + j)))
        cv(T1 + 2, ACCV, ACCV + 1); cv(T1 + 3, ACCV + 2, ACCV + 3)
        for i in (2, 3): k('v_min_u32 %s, -2, %s' % (v(T1 + i), v(T1 + i)))
        k('buffer_store_dwordx4 %s, %s, %s, %s offen sc1' % (v(T1, 4), v(L16), s(S_WS, 4), s(S_T0)))
    k.label('L_chain_exit')
```

```python
from fw import *
from layout import *
from chain import srd, f2u, S_WS, S_WQ, S_WK, S_WV, S_WO, S_DBG, S_H, S_W, S_SPIN, S_T0, S_T1, S_T2, SPIN_MAX
import math

S_X, S_AUX, S_OUT = 28, 36, 12
S_R, S_NSEG, S_I, S_XS, S_OO, S_XB, S_FL, S_SEG, S_GRP, S_TK = 42, 43, 44, 45, 46, 47, 48, 49, 50, 51
S_T3, S_T4 = 52, 53
S_M = 92
P_X, P_MEM0, P_WQ, P_WK, P_WV, P_WO, P_SEG, P_BX, P_WB, P_WOB, P_GW, P_OUT, P_DBG, P_WS = [64 + 2 * i for i in range(14)]
FAIL = 'L_fail'

LANE, L16, GA, TR, XG, XR, VZ, VT = 0, 1, 2, 3, 4, 5, 6, 7
L_STG = 65536; STG_STRIDE = 24576

def cvt(k, d, x, y): k('v_cvt_pk_bf16_f32 %s, %s, %s' % (v(d), v(x), v(y)))
def R(loc, r, n): return (a if loc[0] == 'a' else v)(loc[1] + r, n)

def poll_flags(k, soff_reg, nlanes, minval, name, stride=4, srdn=S_WS, sleep=8, skip7=False, mask=None):
    L = k.newlabel('L_poll_' + name)
    k('v_mul_u32_u24 %s, %d, %s' % (v(VZ), stride, v(LANE)))
    k('s_mov_b32 %s, %d' % (s(S_SPIN), SPIN_MAX))
    if skip7:
        k('s_mov_b32 exec_lo, 0x7f7f7f7f')
        k('s_mov_b32 exec_hi, 0x7f7f7f7f')
    else:
        k('s_mov_b32 exec_lo, 0x%x' % (mask or ((1 << nlanes) - 1)))
        k('s_mov_b32 exec_hi, 0')
    k.label(L)
    k('buffer_load_dword %s, %s, %s, %s offen sc1' % (v(VT), v(VZ), s(srdn, 4), s(soff_reg)))
    k('s_sub_u32 %s, %s, 1' % (s(S_SPIN), s(S_SPIN)))
    k('s_cbranch_scc1 %s' % FAIL)
    k('s_waitcnt vmcnt(0)')
    k('v_cmp_gt_u32 vcc, %s, %s' % (minval, v(VT)))
    k('s_cbranch_vccz %s_ok' % L)
    k('s_sleep %d' % sleep)
    k('s_branch %s' % L)
    k.label(L + '_ok')
    k('s_mov_b64 exec, -1')

def set_flag(k, soff_reg, val, flags='sc1'):
    k('v_mov_b32 %s, %s' % (v(VT), val))
    k('v_mov_b32 %s, 0' % v(VZ))
    k('s_mov_b64 exec, 1')
    k('buffer_store_dword %s, %s, %s, %s offen %s' % (v(VT), v(VZ), s(S_WS, 4), s(soff_reg), flags))
    k('s_mov_b64 exec, -1')

def load_blocks(k, blocks, nslot):
    n = len(blocks)
    for i in range(min(nslot, n)):
        blocks[i]['issue']((i % nslot) * 4096, ('wl', i))
    for i in range(n):
        k.wait_vm(('wl', i))
        blocks[i]['read']((i % nslot) * 4096)
        k('s_waitcnt lgkmcnt(0)')
        if i + nslot < n:
            blocks[i + nslot]['issue']((i % nslot) * 4096, ('wl', i + nslot))

def setup_common(k):
    k('v_lshlrev_b32 %s, 4, %s' % (v(L16), v(LANE)))
    k('s_mul_i32 %s, %s, %d' % (s(S_T2), s(S_W), STG_STRIDE))
    k('s_add_u32 %s, %s, %d' % (s(S_T2), s(S_T2), L_STG))

def qkv_addr(k):
    k('v_lshrrev_b32 %s, 2, %s' % (v(VZ), v(LANE)))
    k('v_and_b32 %s, 3, %s' % (v(VT), v(LANE)))
    k('v_lshlrev_b32 %s, 4, %s' % (v(GA), v(VT)))
    k('v_lshl_add_u32 %s, %s, 13, %s' % (v(GA), v(VZ), v(GA)))
    k('s_lshl_b32 %s, %s, 8' % (s(S_T0), s(S_H)))
    k('s_lshl_b32 %s, %s, 6' % (s(S_T1), s(S_W)))
    k('s_add_u32 %s, %s, %s' % (s(S_T0), s(S_T0), s(S_T1)))
    k('v_add_u32 %s, %s, %s' % (v(GA), s(S_T0), v(GA)))
    k('v_lshrrev_b32 %s, 4, %s' % (v(TR), v(LANE)))
    k('v_lshlrev_b32 %s, 3, %s' % (v(TR), v(TR)))
    k('v_and_b32 %s, 3, %s' % (v(VZ), v(VZ)))
    k('v_add_u32 %s, %s, %s' % (v(TR), v(TR), v(VZ)))
    k('v_lshlrev_b32 %s, 6, %s' % (v(TR), v(TR)))
    k('v_lshl_add_u32 %s, %s, 3, %s' % (v(TR), v(VT), v(TR)))
    k('v_add_u32 %s, %s, %s' % (v(TR), s(S_T2), v(TR)))

def qkv_block(k, srdn, b, dest):
    def issue(off, tag):
        for i in range(4):
            k('s_mov_b32 %s, %d' % (s(S_T0), (64 * b + 16 * i) * 8192))
            k('s_add_u32 m0, %s, %d' % (s(S_T2), off + i * 1024))
            k('buffer_load_dwordx4 %s, %s, %s offen lds' % (v(GA), s(srdn, 4), s(S_T0)), tag=tag)
    def read(off):
        for k2 in range(2):
            for t in range(2):
                for hh in range(2):
                    k('ds_read_b64_tr_b16 %s, %s offset:%d' % (R(dest(t, 2 * b + k2), 2 * hh, 2), v(TR), off + (32 * k2 + 4 * hh) * 64 + 32 * t))
    return dict(issue=issue, read=read)

XG1, XR1 = 12, 13
def x_setup(k):
    k('v_lshrrev_b32 %s, 3, %s' % (v(VZ), v(LANE)))
    k('v_lshlrev_b32 %s, 10, %s' % (v(XG), v(VZ)))
    k('v_lshrrev_b32 %s, 4, %s' % (v(VZ), v(LANE)))
    k('v_and_b32 %s, 7, %s' % (v(VT), v(LANE)))
    k('v_xor_b32 %s, %s, %s' % (v(VT), v(VT), v(VZ)))
    k('v_lshl_add_u32 %s, %s, 4, %s' % (v(XG), v(VT), v(XG)))
    k('s_lshl_b32 %s, %s, 8' % (s(S_T0), s(S_W)))
    k('v_add_u32 %s, %s, %s' % (v(XG), s(S_T0), v(XG)))
    k('v_xor_b32 %s, 0x2040, %s' % (v(XG1), v(XG)))
    k('v_bfe_u32 %s, %s, 1, 3' % (v(VT), v(LANE)))
    k('v_xor_b32 %s, %s, %s' % (v(VT), v(VT), v(VZ)))
    k('v_and_b32 %s, 15, %s' % (v(VZ), v(LANE)))
    k('v_lshlrev_b32 %s, 7, %s' % (v(XR), v(VZ)))
    k('v_lshl_add_u32 %s, %s, 4, %s' % (v(XR), v(VT), v(XR)))
    k('v_xor_b32 %s, 64, %s' % (v(XR1), v(XR)))

def x_dma(k, tag):
    k('s_lshl_b32 %s, %s, 12' % (s(S_T0), s(S_W)))
    k('s_add_u32 %s, %s, %s' % (s(S_T0), s(S_T0), s(S_XB)))
    def one(T, j):
        k('s_add_u32 m0, %s, %d' % (s(S_T0), T * 16384 + j * 1024))
        k('s_add_u32 %s, %s, %d' % (s(S_T1), s(S_XS), T * 16384 + (j >> 1) * 128))
        k('buffer_load_dwordx4 %s, %s, %s offen lds' % (v(XG1 if j & 1 else XG), s(S_X, 4), s(S_T1)), tag=tag)
    def fin():
        k('s_add_u32 %s, %s, s61' % (s(S_XS), s(S_XS)))
        k('s_min_u32 %s, %s, %d' % (s(S_XS), s(S_XS), 63 * 32768))
        k('s_add_u32 %s, %s, 0x8000' % (s(S_XB), s(S_XB)))
        k('s_cmp_eq_u32 %s, 0x%x' % (s(S_XB), NXB * 0x8000))
        k('s_cselect_b32 %s, 0, %s' % (s(S_XB), s(S_XB)))
    return [(lambda T=T, j=j: one(T, j)) for T in range(2) for j in range(4)] + [fin]
NXB = 5

def mfma32(d, A, B, first):
    return 'v_mfma_f32_16x16x32_bf16 %s, %s, %s, %s' % (v(d, 4), A, B, '0' if first else v(d, 4))

def proj(k, after_issue=None):
    k.c('===== projections =====')
    S_O0, S_O1, S_OST, S_KIND, S_PAR = S_OO, S_T3, S_T4, S_NSEG, S_SEG
    srd(k, S_X, P_X, 2 << 20)
    S_CS, S_CNT, S_STR = 58, 59, 62
    k('s_mov_b32 %s, %s' % (s(S_CS), s(S_R)))
    k('s_mov_b32 %s, 32' % s(S_CNT))
    k('s_mov_b32 %s, 2' % s(S_STR))
    k.label('L_pj_top')
    LB = k.newlabel('L_pj_b'); LJ = k.newlabel('L_pj_j'); LG = k.newlabel('L_pj_g'); LJ2 = k.newlabel('L_pj_j2')
    x_setup(k)
    qkv_addr(k)
    k('s_lshl_b32 %s, %s, 2' % (s(S_T0), s(S_H)))
    k('s_add_u32 %s, %s, %s' % (s(S_T0), s(S_T0), s(S_W)))
    k('s_lshl_b32 %s, %s, 3' % (s(S_FL), s(S_T0)))
    k('s_add_u32 %s, %s, %s' % (s(S_FL), s(S_FL), s(S_R)))
    k('s_lshl_b32 %s, %s, 4' % (s(S_FL), s(S_FL)))
    k('s_add_u32 %s, %s, 0x%x' % (s(S_FL), s(S_FL), F_KV))
    k('s_cmp_eq_u32 %s, 6' % s(S_R))
    k('s_cbranch_scc1 %s' % LB)
    k('s_and_b32 %s, %s, 1' % (s(S_PAR), s(S_R)))
    k('s_lshr_b32 %s, %s, 1' % (s(S_T1), s(S_R)))
    k('s_cmp_eq_u32 %s, 0' % s(S_T1))
    k('s_cselect_b64 %s, %s, %s' % (s(4, 2), s(P_WK, 2), s(P_WV, 2)))
    k('s_cmp_eq_u32 %s, 2' % s(S_T1))
    k('s_cselect_b64 %s, %s, %s' % (s(4, 2), s(P_WQ, 2), s(4, 2)))
    srd(k, S_AUX, 4, 4 << 20)
    k('s_cselect_b32 %s, 0x40000, 0x80000' % s(S_OST)) if False else None
    k('s_mov_b32 %s, 0x4000' % s(S_OST))
    k('s_lshl_b32 %s, %s, 8' % (s(S_T0), s(S_H)))
    k('s_add_u32 %s, %s, %s' % (s(S_T0), s(S_T0), s(S_W)))
    k('s_lshl_b32 %s, %s, 12' % (s(S_O0), s(S_T0)))
    k('s_and_b32 %s, %s, 1' % (s(S_KIND), s(S_T1)))
    k('s_lshl_b32 %s, %s, 11' % (s(S_O1), s(S_KIND)))
    k('s_add_u32 %s, %s, %s' % (s(S_O0), s(S_O0), s(S_O1)))
    k('s_cmp_lg_u32 %s, 2' % s(S_T1))
    k('s_cbranch_scc1 %s_q' % LB)
    k('s_lshl_b32 %s, %s, 11' % (s(S_O0), s(S_T0)))
    k('s_add_u32 %s, %s, 0x%x' % (s(S_O0), s(S_O0), QX))
    k('s_mov_b32 %s, 0x2000' % s(S_OST))
    k.label(LB + '_q')
    k('s_add_u32 %s, %s, 1024' % (s(S_O1), s(S_O0)))
    k('s_mov_b32 s5, 8192')
    k('s_branch %s' % LJ)
    k.label(LB)
    k('s_and_b32 %s, %s, 1' % (s(S_PAR), s(S_H)))
    k('s_mul_i32 %s, %s, 6' % (s(S_PAR), s(S_PAR)))
    k('s_add_u32 %s, %s, %s' % (s(S_PAR), s(S_PAR), s(S_CS)))
    k('s_cmp_lt_u32 %s, 4' % s(S_PAR))
    k('s_cselect_b32 %s, 6, 5' % s(S_CNT))
    k('s_mov_b32 %s, 12' % s(S_STR))
    k('s_lshl_b32 %s, %s, 5' % (s(S_FL), s(S_GRP)))
    k('s_add_u32 %s, %s, %s' % (s(S_FL), s(S_FL), s(S_TK)))
    k('s_lshl_b32 %s, %s, 2' % (s(S_FL), s(S_FL)))
    k('s_add_u32 %s, %s, %s' % (s(S_FL), s(S_FL), s(S_W)))
    k('s_lshl_b32 %s, %s, 7' % (s(S_FL), s(S_FL)))
    k('s_add_u32 %s, %s, 0x%x' % (s(S_FL), s(S_FL), SCRATCH + 0x10000))
    srd(k, S_AUX, P_WB, 512 * 3072)
    k('s_and_b32 %s, %s, 30' % (s(S_T1), s(S_H)))
    k('s_lshl_b32 %s, %s, 18' % (s(S_O0), s(S_T1)))
    k('s_lshl_b32 %s, %s, 10' % (s(S_T0), s(S_W)))
    k('s_add_u32 %s, %s, %s' % (s(S_O0), s(S_O0), s(S_T0)))
    k('s_add_u32 %s, %s, 0x%x' % (s(S_O0), s(S_O0), BX))
    k('s_add_u32 %s, %s, 0x40000' % (s(S_O1), s(S_O0)))
    k('s_mov_b32 %s, 0x1000' % s(S_OST))
    k('s_cmp_eq_u32 %s, 2' % s(S_W))
    k('s_cselect_b32 %s, 1, 2' % s(S_KIND))
    k('s_cmp_eq_u32 %s, 3' % s(S_W))
    k('s_cselect_b32 %s, 3, %s' % (s(S_KIND), s(S_KIND)))
    k('v_lshrrev_b32 %s, 2, %s' % (v(VZ), v(LANE)))
    k('v_mul_u32_u24 %s, 3072, %s' % (v(GA), v(VZ)))
    k('v_and_b32 %s, 3, %s' % (v(VT), v(LANE)))
    k('v_lshl_add_u32 %s, %s, 4, %s' % (v(GA), v(VT), v(GA)))
    k('s_min_u32 %s, %s, 2048' % (s(S_T0), s(S_T0)))
    k('s_lshl_b32 %s, %s, 5' % (s(S_T1), s(S_T1)))
    k('s_add_u32 %s, %s, %s' % (s(S_T0), s(S_T0), s(S_T1)))
    k('v_add_u32 %s, %s, %s' % (v(GA), s(S_T0), v(GA)))
    k('s_mov_b32 s5, 3072')
    k.label(LJ)
    k('s_lshl_b32 s5, s5, 4')
    k('s_mul_i32 %s, %s, %s' % (s(S_T0), s(S_PAR), s(S_OST)))
    k('s_add_u32 %s, %s, %s' % (s(S_O0), s(S_O0), s(S_T0)))
    k('s_add_u32 %s, %s, %s' % (s(S_O1), s(S_O1), s(S_T0)))
    k('s_mul_i32 %s, %s, %s' % (s(S_OST), s(S_OST), s(S_STR)))
    k('s_lshl_b32 s61, %s, 15' % s(S_STR))
    dW = lambda t, ks: ('a', (t * 16 + ks) * 4)
    k('s_lshl_b32 %s, %s, 15' % (s(S_XS), s(S_PAR)))
    k('s_mov_b32 %s, 0x20000' % s(S_XB))
    for f in x_dma(k, 'x'): f()
    if hasattr(k, 'after_x0'):
        k('s_cmp_eq_u32 %s, 6' % s(S_R))
        k('s_cbranch_scc1 L_pj_nr')
        keep = list(k.vm)
        k.after_x0()
        k.vm = keep
        k.label('L_pj_nr')
    if k.bfrag:
        k('s_cmp_lg_u32 %s, 6' % s(S_R))
        k('s_cbranch_scc1 L_pj_stg')
        k('s_cmp_eq_u32 %s, 3' % s(S_KIND))
        k('s_cbranch_scc1 L_pj_gate')
        k.wait_ready()
        k('s_and_b32 s4, %s, 30' % s(S_H))
        k('s_lshl_b32 s5, s4, 5')
        k('s_add_u32 s5, s5, 0x%x' % (F_D2 + 24))
        poll_flags(k, 5, 2, '1', 'bf', stride=32)
        k('s_lshl_b32 s4, s4, 1')
        k('s_add_u32 s4, s4, %s' % s(S_W))
        k('s_lshl_b32 s4, s4, 15')
        k('s_add_u32 s4, s4, 0x%x' % WBFR)
        for i in range(32):
            k('buffer_load_dwordx4 %s, %s, %s, s4 offen offset:%d sc1' % (a(4 * i, 4), v(L16), s(S_WS, 4), 1024 * (i & 3)))
            if i & 3 == 3: k('s_add_u32 s4, s4, 4096')
        k('s_branch %s' % LJ2)
        k.label('L_pj_stg')
        k.vm = []
    k('s_lshl_b32 s4, %s, 15' % s(S_W))
    k('v_subrev_u32 %s, %s, %s' % (v(TR), s(S_T2), v(TR)))
    k('v_add_u32 %s, s4, %s' % (v(TR), v(TR)))
    k('s_mov_b32 %s, 0' % s(S_T0))
    for i in range(32):
        k('s_add_u32 m0, s4, %d' % (i * 1024))
        k('buffer_load_dwordx4 %s, %s, %s offen lds' % (v(GA), s(S_AUX, 4), s(S_T0)), tag=('wl', i // 4))
        k('s_add_u32 %s, %s, s5' % (s(S_T0), s(S_T0)))
    if after_issue: after_issue()
    for b in range(8):
        k.wait_vm(('wl', b))
        for k2 in range(2):
            for t in range(2):
                for hh in range(2):
                    k('ds_read_b64_tr_b16 %s, %s offset:%d' % (R(dW(t, 2 * b + k2), 2 * hh, 2), v(TR), b * 4096 + (32 * k2 + 4 * hh) * 64 + 32 * t))
        if b % 2: k('s_waitcnt lgkmcnt(0)')
    k('s_cmp_lg_u32 %s, 3' % s(S_KIND))
    k('s_cbranch_scc1 %s' % LJ2)
    k.label('L_pj_gate')
    srd(k, S_WQ, P_GW, 1024)
    k('v_lshrrev_b32 %s, 4, %s' % (v(GA), v(LANE)))
    k('v_lshlrev_b32 %s, 4, %s' % (v(GA), v(GA)))
    for ks in range(16):
        k('buffer_load_dwordx4 %s, %s, %s, 0 offen offset:%d' % (R(dW(0, ks), 0, 4), v(GA), s(S_WQ, 4), ks * 64))
    k.label(LJ2)
    k('s_waitcnt vmcnt(0)')
    if hasattr(k, 'stampw'): k.stampw(7)
    k('s_barrier')
    if hasattr(k, 'after_wload'): k.after_wload()
    k('s_mov_b32 %s, 0' % s(S_I))
    XR0 = 14; S_XRB = 60
    k('v_mov_b32 %s, %s' % (v(XR0), v(XR)))
    k('s_mov_b32 %s, 0x20000' % s(S_XRB))
    k('v_add_u32 %s, %s, %s' % (v(XR), s(S_XRB), v(XR0)))
    k('v_xor_b32 %s, 64, %s' % (v(XR1), v(XR)))
    for i in range(2):
        for f in x_dma(k, 'x'): f()
    ACC, XF, PKR = 16, 48, 72
    k('s_cmp_eq_u32 %s, 1' % s(S_KIND))
    k('s_cbranch_scc1 L_pj_td')
    for name in ('dt', 'td'):
        L = 'L_pj_' + name
        k.label(L)
        k.vm = []; k.lg = []
        k('s_waitcnt vmcnt(19)')
        k('s_barrier')
        dq = x_dma(k, 'x')
        def rd(ks, Ts=(0, 1)):
            for T in Ts:
                k('ds_read_b128 %s, %s offset:%d' % (v(XF + 8 * (ks % 3) + 4 * T, 4), v(XR1 if ks & 1 else XR), T * 16384 + (ks >> 1) * 2048), tag=('xf', ks))
        rd(0); rd(1)
        for ks in range(16):
            k.wait_lg(('xf', ks))
            xf = XF + 8 * (ks % 3)
            n = 0
            for T in range(2):
                for t in range(2):
                    if name == 'dt': k(mfma32(ACC + 4 * (2 * T + t), R(dW(t, ks), 0, 4), v(xf + 4 * T, 4), ks == 0))
                    else: k(mfma32(ACC + 4 * (2 * t + T), v(xf + 4 * T, 4), R(dW(t, ks), 0, 4), ks == 0))
                    if n < 2 and ks + 2 < 16: rd(ks + 2, (n,))
                    if n == 2 and dq and ks >= 7: dq.pop(0)()
                    n += 1
            if ks == 5:
                LF = k.newlabel('L_pjf')
                k('s_sub_i32 %s, %s, 1' % (s(S_T1), s(S_I)))
                k('s_cmp_gt_u32 %s, 1' % s(S_I))
                k('s_cbranch_scc1 %s' % LF)
                k('s_mov_b32 %s, %s' % (s(S_T1), s(S_I)))
                k('s_waitcnt vmcnt(0)')
                k.label(LF)
                k('s_lshl1_add_u32 %s, %s, %s' % (s(S_T1), s(S_T1), s(S_PAR)))
                k('s_waitcnt vmcnt(11)')
                set_flag(k, S_FL, s(S_T1))
        LS = k.newlabel('L_es')
        if name == 'dt':
            L2 = k.newlabel('L_e2'); L3 = k.newlabel('L_e3')
            k('s_cmp_eq_u32 %s, 2' % s(S_KIND))
            k('s_cbranch_scc1 %s' % L2)
            k('s_cmp_eq_u32 %s, 3' % s(S_KIND))
            k('s_cbranch_scc1 %s' % L3)
        for i in range(8): cvt(k, PKR + i, ACC + 2 * i, ACC + 2 * i + 1)
        k.label(LS)
        k('buffer_store_dwordx4 %s, %s, %s, %s offen sc1' % (v(PKR, 4), v(L16), s(S_WS, 4), s(S_O0)))
        k('buffer_store_dwordx4 %s, %s, %s, %s offen sc1' % (v(PKR + 4, 4), v(L16), s(S_WS, 4), s(S_O1)))
        k('s_add_u32 %s, %s, %s' % (s(S_O0), s(S_O0), s(S_OST)))
        k('s_add_u32 %s, %s, %s' % (s(S_O1), s(S_O1), s(S_OST)))
        k('s_add_u32 %s, %s, 0x8000' % (s(S_XRB), s(S_XRB)))
        k('s_cmp_eq_u32 %s, 0x%x' % (s(S_XRB), NXB * 0x8000))
        k('s_cselect_b32 %s, 0, %s' % (s(S_XRB), s(S_XRB)))
        k('v_add_u32 %s, %s, %s' % (v(XR), s(S_XRB), v(XR0)))
        k('v_xor_b32 %s, 64, %s' % (v(XR1), v(XR)))
        k('s_add_u32 %s, %s, 1' % (s(S_I), s(S_I)))
        k('s_cmp_lt_u32 %s, %s' % (s(S_I), s(S_CNT)))
        k('s_cbranch_scc1 %s' % L)
        k('s_branch L_pj_end')
        if name == 'dt':
            k.label(L2)
            k.flush(6)
            for t in range(2):
                for T in range(2):
                    for i in range(2):
                        cvt(k, PKR + 4 * t + 2 * T + i, ACC + 4 * (2 * T + t) + 2 * i, ACC + 4 * (2 * T + t) + 2 * i + 1)
            k('s_branch %s' % LS)
            k.label(L3)
            k.flush(6)
            P3 = PKR
            cvt(k, P3, ACC, ACC + 8)
            k('v_lshlrev_b32 %s, 16, %s' % (v(P3 + 2), v(P3)))
            k('v_and_b32 %s, 0xffff0000, %s' % (v(P3 + 3), v(P3)))
            for i in (2, 3): k('v_mul_f32 %s, 0x%x, %s' % (v(P3 + i), f2u(-math.log2(math.e)), v(P3 + i)))
            for i in (2, 3): k('v_exp_f32 %s, %s' % (v(P3 + i), v(P3 + i)))
            for i in (2, 3): k('v_add_f32 %s, 1.0, %s' % (v(P3 + i), v(P3 + i)))
            for i in (2, 3): k('v_rcp_f32 %s, %s' % (v(P3 + i), v(P3 + i)))
            cvt(k, P3 + 1, P3 + 2, P3 + 3)
            k('v_lshlrev_b32 %s, 16, %s' % (v(P3), v(P3 + 1)))
            k('v_and_b32 %s, 0xffff0000, %s' % (v(P3 + 1), v(P3 + 1)))
            k('v_sub_f32 %s, 1.0, %s' % (v(P3 + 2), v(P3)))
            k('v_sub_f32 %s, 1.0, %s' % (v(P3 + 3), v(P3 + 1)))
            cvt(k, P3 + 3, P3 + 2, P3 + 3)
            k('v_lshlrev_b32 %s, 16, %s' % (v(P3 + 2), v(P3 + 3)))
            k('v_and_b32 %s, 0xffff0000, %s' % (v(P3 + 3), v(P3 + 3)))
            for i in range(4): k('v_mov_b32 %s, %s' % (v(P3 + 4 + i), v(P3 + i)))
            k('s_branch %s' % LS)
    k.label('L_pj_end')
    k.label('L_pj_end2')
    k('s_waitcnt vmcnt(0)')
    set_flag(k, S_FL, '64')
    k('s_barrier')
    k('s_cmp_eq_u32 %s, 6' % s(S_R))
    k('s_mov_b32 %s, 6' % s(S_R))
    k('s_cbranch_scc0 L_pj_top')
    k('s_mov_b32 %s, %s' % (s(S_R), s(S_CS)))
    k('s_lshl_b32 %s, %s, 3' % (s(S_FL), s(S_H)))
    k('s_add_u32 %s, %s, %s' % (s(S_FL), s(S_FL), s(S_R)))
    k('s_lshl_b32 %s, %s, 2' % (s(S_FL), s(S_FL)))
    k('s_add_u32 %s, %s, 0x%x' % (s(S_FL), s(S_FL), F_D2))
    set_flag(k, S_FL, '1')
    k('s_cmp_lt_u32 %s, 4' % s(S_R))
    k('s_cselect_b32 %s, 11, 10' % s(S_NSEG))

def diag_masks(k):
    k('v_lshrrev_b32 %s, 4, %s' % (v(VZ), v(LANE)))
    k('v_lshlrev_b32 %s, 2, %s' % (v(VZ), v(VZ)))
    k('v_and_b32 %s, 15, %s' % (v(VT), v(LANE)))
    k('v_sub_u32 %s, %s, %s' % (v(VT), v(VT), v(VZ)))
    for j in range(4):
        k('v_cmp_le_i32 %s, %d, %s' % (s(S_M + 2 * j, 2), j, v(VT)))

def xreduce(k, op, X, T):
    for sw in ('v_permlane16_swap_b32', 'v_permlane32_swap_b32'):
        k('v_mov_b32 %s, %s' % (v(T), v(X)))
        k('%s %s, %s' % (sw, v(X), v(T)))
        k('%s %s, %s, %s' % (op, v(X), v(X), v(T)))

def round_bf16(k, regs, T):
    for i in range(0, len(regs), 2):
        x, y = regs[i], regs[i + 1]
        cvt(k, y, x, y)
        k('v_lshlrev_b32 %s, 16, %s' % (v(x), v(y)))
        k('v_and_b32 %s, 0xffff0000, %s' % (v(y), v(y)))

def battn(k, waitflags=True, pre=None, post=None):
    k.c('===== B-branch sliding window attention =====')
    if waitflags:
        k('s_and_b32 %s, %s, 30' % (s(S_T3), s(S_H)))
        k('s_lshl_b32 %s, %s, 5' % (s(S_T3), s(S_T3)))
        k('s_add_u32 %s, %s, 0x%x' % (s(S_T3), s(S_T3), F_D2))
        poll_flags(k, S_T3, 16, '1', 'd2', mask=0x3f3f)
    diag_masks(k)
    QB, KB, VB, SC, NEG, MX, TT, LSUM, OO = 8, 12, 48, 84, 228, 230, 232, 234, 236
    def sc(j, kt, T): return SC + 4 * ((j * 2 + kt) * 2 + T)
    k('v_mov_b32 %s, 0xff800000' % v(NEG))
    k('s_mov_b32 %s, %s' % (s(S_I), s(S_W)))
    LOOP = 'L_ba_loop'; END = 'L_ba_end'
    S_RND = 61
    k('s_mov_b32 %s, 0' % s(S_RND))
    def dispatch(fns, name):
        if not fns: return
        J = 'L_ba_%s_j' % name
        for r, f in enumerate(fns):
            if r < len(fns) - 1:
                k('s_cmp_lg_u32 %s, %d' % (s(S_RND), r))
                k('s_cbranch_scc1 L_ba_%s_%d' % (name, r + 1))
            f()
            if r < len(fns) - 1:
                k('s_branch %s' % J)
                k.label('L_ba_%s_%d' % (name, r + 1))
        k.label(J)
    k.label(LOOP)
    k('s_cmp_ge_u32 %s, %s' % (s(S_I), s(S_NSEG)))
    k('s_cbranch_scc1 L_ba_nl')
    k('s_mul_i32 %s, %s, 6' % (s(S_SEG), s(S_I)))
    k('s_add_u32 %s, %s, %s' % (s(S_SEG), s(S_SEG), s(S_R)))
    k.vm = []
    k('s_lshl_b32 %s, %s, 18' % (s(S_T3), s(S_H)))
    k('s_add_u32 %s, %s, 0x%x' % (s(S_T3), s(S_T3), BX))
    k('s_lshl_b32 %s, %s, 12' % (s(S_T0), s(S_SEG)))
    k('s_add_u32 %s, %s, %s' % (s(S_T0), s(S_T0), s(S_T3)))
    k('buffer_load_dwordx4 %s, %s, %s, %s offen sc1' % (v(QB, 4), v(L16), s(S_WS, 4), s(S_T0)), tag='q')
    for j in range(9):
        k('s_sub_i32 %s, %s, %d' % (s(S_T0), s(S_SEG), 8 - j))
        k('s_max_i32 %s, %s, 0' % (s(S_T0), s(S_T0)))
        k('s_lshl_b32 %s, %s, 12' % (s(S_T0), s(S_T0)))
        k('s_add_u32 %s, %s, %s' % (s(S_T0), s(S_T0), s(S_T3)))
        k('buffer_load_dwordx4 %s, %s, %s, %s offen offset:1024 sc1' % (v(KB + 4 * j, 4), v(L16), s(S_WS, 4), s(S_T0)), tag=('k', j))
        k('buffer_load_dwordx4 %s, %s, %s, %s offen offset:2048 sc1' % (v(VB + 4 * j, 4), v(L16), s(S_WS, 4), s(S_T0)), tag=('v', j))
    k.label('L_ba_nl')
    dispatch(pre, 'pre')
    k('s_cmp_ge_u32 %s, %s' % (s(S_I), s(S_NSEG)))
    k('s_cbranch_scc1 L_ba_only')
    dead = {(0, 0, 1), (8, 1, 0)}
    for j in range(9):
        k.wait_vm(('k', j))
        for kt in range(2):
            for T in range(2):
                if (j, kt, T) in dead: continue
                k('v_mfma_f32_16x16x16_bf16 %s, %s, %s, 0' % (v(sc(j, kt, T), 4), v(KB + 4 * j + 2 * kt, 2), v(QB + 2 * T, 2)))
    k.flush(9)
    for T in range(2):
        for jj in range(4):
            k('v_cndmask_b32 %s, %s, %s, %s' % (v(sc(8, T, T) + jj), v(NEG), v(sc(8, T, T) + jj), s(S_M + 2 * jj, 2)))
            k('v_cndmask_b32 %s, %s, %s, %s' % (v(sc(0, T, T) + jj), v(sc(0, T, T) + jj), v(NEG), s(S_M + 2 * jj, 2)))
    LV = k.newlabel('L_ba_valid')
    for j in range(8):
        k('s_cmp_ge_u32 %s, %d' % (s(S_SEG), 8 - j))
        k('s_cbranch_scc1 %s' % LV)
        for r in range(16):
            k('v_mov_b32 %s, %s' % (v(sc(j, 0, 0) + r), v(NEG)))
    k.label(LV)
    c = 0.25 * math.log2(math.e)
    k('s_mov_b32 %s, 0x%x' % (s(S_T4), f2u(c)))
    k('s_mov_b32 %s, 0x%x' % (s(S_T3), f2u(c)))
    if pre: k.sprinkle = [56, k.pb_dma, 56, 11]
    for T in range(2):
        regs = [sc(j, kt, T) + r for j in range(9) for kt in range(2) if (j, kt, T) not in dead for r in range(4)]
        round_bf16(k, regs, TT)
        k('v_max3_f32 %s, %s, %s, %s' % (v(MX), v(regs[0]), v(regs[1]), v(regs[2])))
        k('v_max3_f32 %s, %s, %s, %s' % (v(MX + 1), v(regs[3]), v(regs[4]), v(regs[5])))
        rest = regs[6:]
        for i in range(0, len(rest), 2):
            m = MX + ((i >> 1) & 1)
            k('v_max3_f32 %s, %s, %s, %s' % (v(m), v(m), v(rest[i]), v(rest[i + 1])))
        k('v_max_f32 %s, %s, %s' % (v(MX), v(MX), v(MX + 1)))
        xreduce(k, 'v_max_f32', MX, TT)
        k('v_mul_f32 %s, %s, %s' % (v(MX), s(S_T4), v(MX)))
        for r in regs[::2]: k('v_pk_fma_f32 %s, %s, %s, %s op_sel_hi:[1,1,0] neg_lo:[0,0,1] neg_hi:[0,0,1]' % (v(r, 2), v(r, 2), s(S_T3, 2), v(MX, 2)))
        for r in regs: k('v_exp_f32 %s, %s' % (v(r), v(r)))
        k('v_pk_add_f32 %s, %s, %s' % (v(LSUM, 2), v(regs[0], 2), v(regs[2], 2)))
        k('v_pk_add_f32 %s, %s, %s' % (v(TT, 2), v(regs[4], 2), v(regs[6], 2)))
        for i, r in enumerate(regs[8::2]):
            m = (LSUM, TT)[i & 1]
            k('v_pk_add_f32 %s, %s, %s' % (v(m, 2), v(m, 2), v(r, 2)))
        k('v_pk_add_f32 %s, %s, %s' % (v(LSUM, 2), v(LSUM, 2), v(TT, 2)))
        k('v_add_f32 %s, %s, %s' % (v(LSUM), v(LSUM), v(LSUM + 1)))
        xreduce(k, 'v_add_f32', LSUM, TT)
        k('v_rcp_f32 %s, %s' % (v(LSUM), v(LSUM)))
        for r in regs[::2]: k('v_pk_mul_f32 %s, %s, %s op_sel_hi:[1,0]' % (v(r, 2), v(r, 2), v(LSUM, 2)))
        for j in range(9):
            d = sc(j, 0, T)
            for kt in range(2):
                if (j, kt, T) in dead:
                    k('v_mov_b32 %s, 0' % v(d + 2 * kt)); k('v_mov_b32 %s, 0' % v(d + 2 * kt + 1))
                else:
                    b = sc(j, kt, T)
                    cvt(k, d + 2 * kt, b, b + 1); cvt(k, d + 2 * kt + 1, b + 2, b + 3)
        if T == 0: k.wait_vm(('v', 8))
        for j in range(9):
            k(mfma32(OO + 4 * T, v(VB + 4 * j, 4), v(sc(j, 0, T), 4), j == 0))
    if pre:
        assert k.sprinkle[3] == 0, k.sprinkle
        k.sprinkle = None
    for i in range(4): cvt(k, QB + i, OO + 2 * i, OO + 2 * i + 1)
    k('s_lshl_b32 %s, %s, 15' % (s(S_T0), s(S_SEG)))
    k('s_lshr_b32 %s, %s, 1' % (s(S_T1), s(S_H)))
    k('s_lshl_b32 %s, %s, 10' % (s(S_T1), s(S_T1)))
    k('s_add_u32 %s, %s, %s' % (s(S_T0), s(S_T0), s(S_T1)))
    k('s_and_b32 %s, %s, 1' % (s(S_T1), s(S_H)))
    k('s_lshl_b32 %s, %s, 3' % (s(S_T1), s(S_T1)))
    k('s_add_u32 %s, %s, %s' % (s(S_T0), s(S_T0), s(S_T1)))
    k('s_add_u32 %s, %s, 0x%x' % (s(S_T0), s(S_T0), OB))
    k('s_add_u32 %s, %s, 16384' % (s(S_T1), s(S_T0)))
    k('buffer_store_dwordx2 %s, %s, %s, %s offen sc1' % (v(QB, 2), v(L16), s(S_WS, 4), s(S_T0)))
    k('buffer_store_dwordx2 %s, %s, %s, %s offen sc1' % (v(QB + 2, 2), v(L16), s(S_WS, 4), s(S_T1)))
    k('s_branch L_ba_skip')
    k.label('L_ba_only')
    if pre:
        k('s_mov_b32 %s, 11' % s(S_T1))
        k.label('L_ba_dl')
        k.pb_dma()
        k('s_sub_u32 %s, %s, 1' % (s(S_T1), s(S_T1)))
        k('s_cmp_lg_u32 %s, 0' % s(S_T1))
        k('s_cbranch_scc1 L_ba_dl')
    k.label('L_ba_skip')
    k('s_add_u32 %s, %s, 4' % (s(S_I), s(S_I)))
    k('s_waitcnt vmcnt(0)')
    dispatch(post, 'post')
    k('s_add_u32 %s, %s, 1' % (s(S_RND), s(S_RND)))
    k('s_cmp_lt_u32 %s, 3' % s(S_RND))
    k('s_cbranch_scc1 %s' % LOOP)
    k.label(END)
    k('s_barrier')
    k('s_lshl_b32 %s, %s, 3' % (s(S_FL), s(S_H)))
    k('s_add_u32 %s, %s, %s' % (s(S_FL), s(S_FL), s(S_R)))
    k('s_lshl_b32 %s, %s, 2' % (s(S_FL), s(S_FL)))
    k('s_add_u32 %s, %s, 0x%x' % (s(S_FL), s(S_FL), F_D3))
    set_flag(k, S_FL, '1')


PB_GO, PB_TR, PB_GQ, PB_TRQ, PB_GB = 2, 3, 4, 5, 244
WOV, WBF, ACC, MEMF, AKV, QF, KF, VF, SX, BV, T8, SELT, IDX, NEG, MX, TT, LS = 16, 112, 128, 160, 192, 208, 212, 220, 228, 236, 240, 248, 250, 251, 252, 253, 254
S_STG = 63
wof = lambda dt, kk: (dt * 4 + kk) * 4
wkv = lambda m, ks, t: ((m * 8 + ks) * 2 + t) * 8

def pb_loader(k):
    S_LS, S_LST, S_LR = 58, 59, S_WK
    PB_GA = 245
    srd(k, S_AUX, P_WOB, 512 * 1024)
    k('s_barrier')
    k('s_mul_i32 %s, %s, 40960' % (s(S_STG), s(S_W)))
    k.pb_init()
    S_LM = S_XB
    k('v_lshrrev_b32 %s, 2, %s' % (v(VZ), v(LANE)))
    k('v_and_b32 %s, 3, %s' % (v(VT), v(LANE)))
    k('v_mul_u32_u24 %s, 1056, %s' % (v(PB_TR), v(VZ)))
    k('v_lshl_add_u32 %s, %s, 3, %s' % (v(PB_TR), v(VT), v(PB_TR)))
    k('s_lshl_b32 %s, %s, 8' % (s(S_T1), s(S_W)))
    k('v_add_u32 %s, %s, %s' % (v(PB_TR), s(S_T1), v(PB_TR)))
    k('v_add_u32 %s, %s, %s' % (v(PB_TRQ), s(S_STG), v(L16)))
    k('v_lshrrev_b32 %s, 1, %s' % (v(VZ), v(LANE)))
    k('v_lshlrev_b32 %s, 10, %s' % (v(PB_GB), v(VZ)))
    k('v_and_b32 %s, 1, %s' % (v(VT), v(LANE)))
    k('v_lshl_add_u32 %s, %s, 4, %s' % (v(PB_GB), v(VT), v(PB_GB)))
    k('s_lshl_b32 %s, %s, 17' % (s(S_T0), s(S_W)))
    k('s_lshl_b32 %s, %s, 5' % (s(S_T1), s(S_TK)))
    k('s_add_u32 %s, %s, %s' % (s(S_T0), s(S_T0), s(S_T1)))
    k('v_add_u32 %s, %s, %s' % (v(PB_GB), s(S_T0), v(PB_GB)))
    for i in range(4):
        k('s_mov_b32 %s, %d' % (s(S_T0), 32 * i * 1024))
        k('s_add_u32 m0, %s, %d' % (s(S_STG), 36864 + i * 1024))
        k('buffer_load_dwordx4 %s, %s, %s offen lds' % (v(PB_GB), s(S_AUX, 4), s(S_T0)))
    def pb_dma():
        if k.pb_lim: k('s_waitcnt vmcnt(%d)' % (k.pb_lim - 1))
        k('buffer_load_dwordx4 %s, %s, %s offen lds' % (v(L16), s(S_LR, 4), s(S_LS)))
        k('s_add_u32 m0, m0, %s' % s(S_LM))
        k('s_add_u32 %s, %s, 1024' % (s(S_LS), s(S_LS)))
        k('s_min_u32 %s, %s, 0x%x' % (s(S_LS), s(S_LS), (4 << 20) - 1024))
    k.pb_dma = pb_dma
    def pre(m):
        def f():
            k('s_lshl_b32 %s, %s, 2' % (s(S_LS), s(S_TK)))
            k('s_add_u32 %s, %s, %s' % (s(S_LS), s(S_LS), s(S_W)))
            k('s_lshl_b32 %s, %s, 15' % (s(S_LS), s(S_LS)))
            if m < 2:
                srd(k, S_LR, P_WS, WS_BYTES)
                k('s_add_u32 %s, %s, 0x%x' % (s(S_LS), s(S_LS), WKVF + m * 0x400000))
            else:
                srd(k, S_LR, P_WO, 4 << 20)
            k('s_mov_b32 %s, %d' % (s(S_LM), 1024 if m < 2 else 1056))
            k('s_mov_b32 m0, %s' % s(S_STG))
        return f
    def post_kv(m):
        def f():
            for i in range(32):
                k('ds_read_b128 %s, %s offset:%d' % (a(128 * m + 4 * i, 4), v(PB_TRQ), i * 1024))
                if i % 8 == 7: k('s_waitcnt lgkmcnt(0)')
        return f
    def final():
        k('s_barrier')
        k('v_add_u32 %s, %d, %s' % (v(PB_GO), 2 * 40960, v(PB_TR)))
        for dt in range(8):
            for kk in range(4):
                for hh in range(2):
                    k('ds_read_b64_tr_b16 %s, %s offset:%d' % (a(wof(dt, kk) + 2 * hh, 2), v(PB_GO if kk >= 2 else PB_TR), (kk & 1) * 40960 + 16 * hh * 1056 + dt * 32))
            k('s_waitcnt lgkmcnt(0)')
        k('v_lshlrev_b32 %s, 3, %s' % (v(VZ), v(LANE)))
        k('v_add_u32 %s, %s, %s' % (v(VZ), s(S_STG), v(VZ)))
        for hb in range(8):
            k('ds_read_b64_tr_b16 %s, %s offset:%d' % (v(WBF + 2 * hb, 2), v(VZ), 36864 + hb * 512))
        k('s_waitcnt lgkmcnt(0)')
    pre(2)()
    return [lambda: None], None, final

def phaseB(k, waitflags=True, opt={}):
    k.c('===== phase B =====')
    srd(k, S_OUT, P_OUT, 2 << 20)
    k('s_barrier')
    PFA, ST, OA, LW2, LW1, MEMA, MEMO, HOME = 8, 9, 10, 11, 12, 13, 14, 15
    BRA, GRA, L8, IDXR = 2, 3, 4, 5
    SELR = 244
    L_SMX, L_OX, L_HOME, L_BX = 16384, 20480, 32768, 8192
    S_PF = S_T2
    k('s_mul_i32 %s, %s, 12288' % (s(S_PF), s(S_W)))
    k('s_add_u32 %s, %s, 65536' % (s(S_PF), s(S_PF)))
    k('s_lshl_b32 %s, %s, 13' % (s(S_T0), s(S_W)))
    k('v_add_u32 %s, %s, %s' % (v(HOME), s(S_T0), v(L16)))
    k('s_lshl_b32 %s, %s, 11' % (s(S_T0), s(S_W)))
    k('v_add_u32 %s, %s, %s' % (v(LW2), s(S_T0), v(L16)))
    k('s_lshl_b32 %s, %s, 10' % (s(S_T0), s(S_W)))
    k('v_add_u32 %s, %s, %s' % (v(LW1), s(S_T0), v(L16)))
    diag_masks(k)
    k('v_and_b32 %s, 15, %s' % (v(VT), v(LANE)))
    k('v_lshrrev_b32 %s, 4, %s' % (v(VZ), v(LANE)))
    k('v_cmp_gt_u32 vcc, 8, %s' % v(VT))
    k('v_mov_b32 %s, 0xeeee' % v(IDX))
    k('v_mov_b32 %s, 0x4444' % v(TT))
    k('v_cndmask_b32 %s, %s, %s, vcc' % (v(IDX), v(IDX), v(TT)))
    k('v_lshlrev_b32 %s, 3, %s' % (v(ST), v(VT)))
    k('v_lshl_add_u32 %s, %s, 12, %s' % (v(ST), v(VZ), v(ST)))
    k('v_and_b32 %s, 7, %s' % (v(MX), v(LANE)))
    k('v_lshrrev_b32 %s, 5, %s' % (v(TT), v(LANE)))
    k('v_lshl_add_u32 %s, %s, 1, %s' % (v(MX), v(MX), v(TT)))
    k('v_and_b32 %s, 1, %s' % (v(TT), v(VZ)))
    k('v_lshlrev_b32 %s, 10, %s' % (v(OA), v(MX)))
    k('v_lshl_add_u32 %s, %s, 2, %s' % (v(OA), v(TT), v(OA)))
    k('s_lshl_b32 %s, %s, 5' % (s(S_T0), s(S_H)))
    k('s_lshl_b32 %s, %s, 3' % (s(S_T1), s(S_W)))
    k('s_add_u32 %s, %s, %s' % (s(S_T0), s(S_T0), s(S_T1)))
    k('v_add_u32 %s, %s, %s' % (v(OA), s(S_T0), v(OA)))
    k('v_bfrev_b32 %s, 1' % v(LS))
    k('v_cndmask_b32 %s, %s, %s, vcc' % (v(OA), v(LS), v(OA)))
    k('v_lshlrev_b32 %s, 4, %s' % (v(GRA), v(MX)))
    k('v_lshl_add_u32 %s, %s, 3, %s' % (v(BRA), v(TT), v(GRA)))
    k('v_add_u32 %s, %s, %s' % (v(GRA), s(S_PF), v(GRA)))
    k('s_lshl_b32 %s, %s, 8' % (s(S_T0), s(S_W)))
    k('s_add_u32 %s, %s, %d' % (s(S_T0), s(S_T0), L_BX))
    k('v_add_u32 %s, %s, %s' % (v(BRA), s(S_T0), v(BRA)))
    k('v_add_u32 %s, %d, %s' % (v(L8), L_BX, v(LW1)))
    k('v_mov_b32 %s, 0x3f80' % v(MX))
    k('v_and_b32 %s, 2, %s' % (v(TT), v(VT)))
    k('v_cmp_eq_u32 s[4:5], 0, %s' % v(TT))
    k('v_mov_b32 %s, 0' % v(LS))
    k('v_cndmask_b32 %s, %s, %s, s[4:5]' % (v(TT), v(LS), v(MX)))
    k('v_cndmask_b32 %s, %s, %s, vcc' % (v(SELR), v(LS), v(TT)))
    k('v_cndmask_b32 %s, %s, %s, vcc' % (v(SELR + 1), v(TT), v(LS)))
    k('v_mov_b32 %s, %s' % (v(SELR + 2), v(SELR)))
    k('v_mov_b32 %s, %s' % (v(SELR + 3), v(SELR + 1)))
    k('v_bfe_u32 %s, %s, 2, 1' % (v(TT), v(VT)))
    k('v_and_b32 %s, 1, %s' % (v(LS), v(VT)))
    k('v_lshl_add_u32 %s, %s, 1, %s' % (v(TT), v(TT), v(LS)))
    k('v_xor_b32 %s, 1, %s' % (v(LS), v(TT)))
    k('v_lshl_add_u32 %s, %s, 2, %s' % (v(TT), v(LS), v(TT)))
    k('v_mul_u32_u24 %s, 0x1111, %s' % (v(IDXR), v(TT)))
    k('v_and_b32 %s, 1, %s' % (v(VZ), v(VZ)))
    k('v_lshlrev_b32 %s, 2, %s' % (v(VZ), v(VZ)))
    k('v_and_b32 %s, 7, %s' % (v(VT), v(LANE)))
    k('v_sub_u32 %s, %s, %s' % (v(VT), v(VT), v(VZ)))
    k('v_mov_b32 %s, 0x3f800000' % v(TT))
    for r in range(2):
        k('v_mov_b32 %s, 0' % v(SELT + r))
        k('v_cmp_eq_u32 vcc, %d, %s' % (2 * r, v(VT)))
        k('v_cndmask_b32 %s, %s, %s, vcc' % (v(SELT + r), v(SELT + r), v(MX)))
        k('v_cmp_eq_u32 vcc, %d, %s' % (2 * r + 1, v(VT)))
        k('v_cndmask_b32 %s, %s, %s, vcc' % (v(SELT + r), v(SELT + r), v(TT)))
    k('v_mov_b32 %s, 0xff800000' % v(NEG))
    if waitflags:
        for r in range(4):
            k('s_mov_b32 %s, 0x%x' % (s(S_T3), F_D3 + 256 * r))
            poll_flags(k, S_T3, 64, '1', 'd3', skip7=True)
    S_PBW, S_PBR, S_U, S_T, S_TG = S_XS, S_XB, S_R, S_NSEG, S_FL
    k('s_lshl_b32 %s, %s, 20' % (s(S_T0), s(S_GRP)))
    k('s_add_u32 %s, %s, 0x%x' % (s(S_T0), s(S_T0), PB))
    k('s_lshl_b32 %s, %s, 17' % (s(S_PBW), s(S_W)))
    k('s_add_u32 %s, %s, %s' % (s(S_PBW), s(S_PBW), s(S_T0)))
    k('s_lshl_b32 %s, %s, 7' % (s(S_T1), s(S_H)))
    k('s_add_u32 %s, %s, %s' % (s(S_PBW), s(S_PBW), s(S_T1)))
    k('s_lshl_b32 %s, %s, 14' % (s(S_PBR), s(S_H)))
    k('s_add_u32 %s, %s, %s' % (s(S_PBR), s(S_PBR), s(S_T0)))
    k('s_lshl_b32 %s, %s, 12' % (s(S_T1), s(S_W)))
    k('s_add_u32 %s, %s, %s' % (s(S_PBR), s(S_PBR), s(S_T1)))
    k('s_mov_b32 %s, 0' % s(S_I))
    k('s_sub_u32 %s, %s, 2' % (s(S_U), s(S_GRP)))
    k('s_mov_b32 %s, 0x%x' % (s(S_T4), f2u(128 ** -0.5)))
    S_SC, S_L2 = 84, 86
    for i in range(2):
        k('s_mov_b32 %s, 0x%x' % (s(S_SC + i), f2u(128 ** -0.5)))
        k('s_mov_b32 %s, 0x%x' % (s(S_L2 + i), f2u(math.log2(math.e))))
    def mf16(d, A, B, C=None): k('v_mfma_f32_16x16x16_bf16 %s, %s, %s, %s' % (v(d, 4), v(A, 2), v(B, 2), '0' if C is None else v(C, 4)))
    def rnd2(regs):
        round_bf16(k, regs, TT)
        for r in regs: k('v_mul_f32 %s, %s, %s' % (v(r), s(S_T4), v(r)))
        round_bf16(k, regs, TT)
    def add(d, x, y): k('v_add_f32 %s, %s, %s' % (v(d), v(x), v(y)))
    ld = lambda d, so, off, tag: k('buffer_load_dwordx4 %s, %s, %s, %s offen offset:%d sc1' % (v(d, 4), v(L16), s(S_WS, 4), s(so), off), tag=tag)
    S_MB = 60
    k('v_add_u32 %s, %s, %s' % (v(PFA), s(S_PF), v(L16)))
    KAA, VMA = MEMO, MEMA
    k('v_and_b32 %s, 0x370, %s' % (v(KAA), v(L16)))
    k('v_add_u32 %s, 0x10000, %s' % (v(KAA), v(KAA)))
    k('v_and_b32 %s, 0x1f0, %s' % (v(VMA), v(L16)))
    k('v_add_u32 %s, %s, %s' % (v(VMA), s(S_PF), v(VMA)))
    dma = lambda so, off, fl='sc1': k('buffer_load_dwordx4 %s, %s, %s offen offset:%d %s lds' % (v(L16), s(S_WS, 4), s(so), off, fl))
    def prefetch(su, mb):
        T = []
        def grp(pre, n, fl='sc1'):
            for i in range(n):
                def f(i=i):
                    if i == 0: k(pre)
                    k('buffer_load_dwordx4 %s, %s, s6 offen offset:%d %s lds' % (v(L16), s(S_WS, 4), 1024 * i, fl))
                T.append(f)
        d = dict(su=s(su), h=s(S_H), w=s(S_W), pf=s(S_PF), mb=s(mb), QX=QX, BX=BX + 3072, OB=OB, MX=WKVF)
        grp('s_lshr_b32 s4, %(su)s, 1\ns_lshl_b32 s5, %(h)s, 6\ns_add_u32 s5, s5, s4\ns_lshl_b32 s7, s5, 2\ns_add_u32 s7, s7, %(w)s\ns_lshl_b32 s6, s7, 12\ns_mov_b32 m0, %(pf)s' % d, 4)
        grp('s_and_b32 s6, %(su)s, 1\ns_lshl1_add_u32 s6, s7, s6\ns_lshl_b32 s6, s6, 10\ns_add_u32 s6, s6, 0x%(QX)x\ns_add_u32 m0, %(pf)s, 4096' % d, 1)
        grp('s_lshl_b32 s6, s5, 12\ns_add_u32 s6, s6, 0x%(BX)x\ns_add_u32 m0, %(pf)s, 5120' % d, 1)
        grp('s_lshl_b32 s6, %(su)s, 2\ns_add_u32 s6, s6, %(w)s\ns_lshl_b32 s6, s6, 12\ns_add_u32 s6, s6, 0x%(OB)x\ns_add_u32 m0, %(pf)s, 6144' % d, 4)
        grp('s_lshl_b32 s6, s7, 10\ns_add_u32 s6, s6, 0x%(MX)x\ns_add_u32 m0, %(pf)s, 10240' % d, 1)
        return T
    PFG = LW2
    k('v_add_u32 %s, 0x10000, %s' % (v(PFG), v(L16)))
    S_PD = 62
    k('s_mov_b32 %s, 49152' % s(S_PD))
    k('s_mov_b32 s61, %s' % s(S_PBR))
    k('s_mov_b32 %s, 0' % s(S_MB))
    for f in prefetch(S_U, S_MB): f()
    RA = ACC + 16; RR = AKV; S_RT, S_RO, S_RR = 58, 59, 61
    def reduce(name, issued=False):
        k('v_mov_b64 %s, 0' % v(RA, 2)); k('v_mov_b64 %s, 0' % v(RA + 2, 2))
        k('s_mov_b32 %s, %d' % (s(S_SPIN), SPIN_MAX))
        if issued: k('s_branch L_pb_w' + name)
        k('s_mov_b64 vcc, -1')
        k.label('L_pb_r' + name)
        k('s_mov_b64 exec, vcc')
        for i in range(4): ld(RR + 4 * i, S_RR, i * 1024, None)
        k('s_sub_u32 %s, %s, 1' % (s(S_SPIN), s(S_SPIN)))
        k('s_cbranch_scc1 %s' % FAIL)
        k('s_waitcnt vmcnt(0)')
        k.label('L_pb_w' + name)
        for i in range(4): k('v_bitop3_b32 %s, %s, %s, %s bitop3:0x7e' % (v(RA + 4 + i), v(RR + 4 * i), v(RR + 4 * i + 2), s(S_RT)))
        k('v_or3_b32 %s, %s, %s, %s' % (v(RA + 4), v(RA + 4), v(RA + 5), v(RA + 6)))
        k('v_bitop3_b32 %s, %s, %s, 1 bitop3:0xa8' % (v(RA + 4), v(RA + 4), v(RA + 7)))
        k('v_cmp_ne_u32 vcc, 0, %s' % v(RA + 4))
        k('s_cbranch_vccnz L_pb_r' + name)
        k('s_mov_b64 exec, -1')
        for i in range(2): k('v_smfmac_f32_16x16x64_bf16 %s, %s, %s, %s' % (v(RA, 4), v(SELR, 4), v(RR + 8 * i, 8), v(IDXR)))
        for j in range(2): k('v_add_f32_dpp %s, %s, %s row_ror:8 row_mask:0xf bank_mask:0xf' % (v(RA + j), v(RA + j), v(RA + j)))
        round_bf16(k, [RA, RA + 1], TT)
        for j in range(2): k('v_mul_f32 %s, %s, %s' % (v(RA + j), v(RA + j), v(BV + 2)))
        round_bf16(k, [RA, RA + 1], TT)
        for j in range(2): add(RA + j, RA + j, BV + j)
        cvt(k, RA, RA, RA + 1)
        k('buffer_store_dword %s, %s, %s, %s offen' % (v(RA), v(OA), s(S_OUT, 4), s(S_RO)))
    npt = [0]
    def PT():
        if opt.get('pbprof'):
            i = npt[0]; npt[0] += 1
            k.raw('  s_memtime s[64:65]\n  s_waitcnt lgkmcnt(0)\n  s_sub_u32 s67, s64, s66\n  s_add_u32 s%d, s%d, s67\n  s_mov_b32 s66, s64' % (70 + i, 70 + i))
    if opt.get('pbprof'):
        for i in range(12): k('s_mov_b32 s%d, 0' % (70 + i))
        k.raw('  s_memtime s[64:65]\n  s_waitcnt lgkmcnt(0)\n  s_mov_b32 s66, s64')
    k('s_waitcnt vmcnt(0) lgkmcnt(0)')
    LOOP = 'L_pb_loop'
    k.label(LOOP)
    k('s_waitcnt vmcnt(%d)' % 8)
    k('s_barrier')
    k.vm = []; k.lg = []
    OBF = ACC
    QA = MEMF
    for w_ in range(4): k('ds_read_b128 %s, %s offset:%d' % (v(QA + 4 * w_, 4), v(PFG), w_ * 12288 + 4096), tag=('qa', w_))
    def KR(w_):
        for kt in range(2): k('ds_read_b128 %s, %s offset:%d' % (v(MEMF + 16 + 8 * (w_ & 1) + 4 * kt, 4), v(PFG), w_ * 12288 + 1024 * kt), tag=('ka', w_))
    KR(0); KR(1)
    k('s_lshr_b32 %s, %s, 1' % (s(S_SEG), s(S_U)))
    k('s_and_b32 %s, %s, 1' % (s(S_T), s(S_U)))
    k('s_bfe_u32 %s, %s, 0x10001' % (s(S_TG), s(S_I)))
    for w_ in range(4):
        k.wait_lg(('ka', w_))
        for kt in range(2): k(mfma32(SX + 4 * kt, v(MEMF + 16 + 8 * (w_ & 1) + 4 * kt, 4), v(QA + 4 * w_, 4), w_ == 0))
        if w_ < 2: KR(w_ + 2)
        else:
            for i in range(2): k('ds_read_b128 %s, %s offset:%d' % (v(OBF + 8 * (w_ - 2) + 4 * i, 4), v(PFA), 6144 + 2048 * (w_ - 2) + 1024 * i), tag=('ob', w_ - 2))
    for i in range(2): k('ds_read_b128 %s, %s offset:%d' % (v(VF + 4 * i, 4), v(PFA), 2048 + 1024 * i))
    for i in range(4):
        k.wait_lg(('ob', i >> 1))
        k(mfma32(T8, v(WBF + 4 * i, 4), v(OBF + 4 * i, 4), i == 0))
        if opt.get('rearly', 1): ld(RR + 4 * i, S_RR, i * 1024, None)
    rnd2([SX + i for i in range(8)])
    k('ds_write_b128 %s, %s' % (v(L8), v(T8, 4)))
    LT1 = k.newlabel('L_pb_t1'); LTJ = k.newlabel('L_pb_tj')
    k('s_cmp_eq_u32 %s, 1' % s(S_T))
    k('s_cbranch_scc1 %s' % LT1)
    for jj in range(4):
        k('v_cndmask_b32 %s, %s, %s, %s' % (v(SX + jj), v(NEG), v(SX + jj), s(S_M + 2 * jj, 2)))
        k('v_mov_b32 %s, %s' % (v(SX + 4 + jj), v(NEG)))
    k('s_branch %s' % LTJ)
    k.label(LT1)
    for jj in range(4):
        k('v_cndmask_b32 %s, %s, %s, %s' % (v(SX + 4 + jj), v(NEG), v(SX + 4 + jj), s(S_M + 2 * jj, 2)))
    k.label(LTJ)
    XM = VT
    if not opt.get('rearly', 1):
        for i in range(4): ld(RR + 4 * i, S_RR, i * 1024, None)
    k('v_max3_f32 %s, %s, %s, %s' % (v(XM), v(SX), v(SX + 1), v(SX + 2)))
    k('v_max3_f32 %s, %s, %s, %s' % (v(TT), v(SX + 3), v(SX + 4), v(SX + 5)))
    k('v_max3_f32 %s, %s, %s, %s' % (v(XM), v(XM), v(SX + 6), v(SX + 7)))
    k('v_max_f32 %s, %s, %s' % (v(XM), v(XM), v(TT)))
    xreduce(k, 'v_max_f32', XM, TT)
    PL = 'L_pb_poll'
    def memchk():
        k('ds_read_b128 %s, %s offset:10240' % (v(QF, 4), v(PFA)))
        k('s_waitcnt lgkmcnt(0)')
        k('v_max3_u32 %s, %s, %s, %s' % (v(TT), v(QF), v(QF + 1), v(QF + 2)))
        k('v_max_u32 %s, %s, %s' % (v(TT), v(TT), v(QF + 3)))
        k('v_cmp_eq_u32 vcc, -1, %s' % v(TT))
    PT()
    k('s_cmp_eq_u32 %s, 0' % s(S_I))
    k('s_waitcnt vmcnt(0)')
    k('s_cbranch_scc1 L_pb_nored')
    reduce('a', True)
    k.label('L_pb_nored')
    k('s_lshl_b32 %s, %s, 2' % (s(S_T0), s(S_T)))
    k('v_add_u32 %s, %s, %s' % (v(TT), s(S_T0), v(GRA)))
    k('ds_read_b32 %s, %s offset:5120' % (v(BV + 2), v(TT)))
    k('ds_read_b32 %s, %s offset:5128' % (v(BV + 3), v(TT)))
    k('s_add_u32 %s, %s, 6' % (s(S_OO), s(S_U)))
    k('s_mov_b32 %s, %s' % (s(S_MB), s(S_PF)))
    k('s_add_u32 %s, %s, %s' % (s(S_PF), s(S_PF), s(S_PD)))
    k('s_cmp_ge_u32 %s, 122' % s(S_U))
    k('s_cbranch_scc1 L_pb_nopf')
    for f in prefetch(S_OO, S_RT): f()
    k.label('L_pb_nopf')
    PT()
    memchk()
    k('s_cbranch_vccz %s_ok' % PL)
    k('s_lshl_b32 %s, %s, 6' % (s(S_T0), s(S_H)))
    k('s_add_u32 %s, %s, %s' % (s(S_T0), s(S_T0), s(S_SEG)))
    k('s_lshl_b32 %s, %s, 2' % (s(S_T0), s(S_T0)))
    k('s_add_u32 %s, %s, %s' % (s(S_T0), s(S_T0), s(S_W)))
    k('s_lshl_b32 %s, %s, 10' % (s(S_T0), s(S_T0)))
    k('s_add_u32 %s, %s, 0x%x' % (s(S_T0), s(S_T0), WKVF))
    k('s_add_u32 m0, %s, 10240' % s(S_MB))
    k('s_mov_b32 %s, %d' % (s(S_SPIN), SPIN_MAX))
    k('s_sub_u32 %s, %s, 4096' % (s(S_T1), s(S_T0)))
    k('s_cmp_eq_u32 %s, 0' % s(S_SEG))
    k('s_cselect_b32 %s, %s, %s' % (s(S_T1), s(S_T0), s(S_T1)))
    k('s_mov_b32 %s, 0' % s(S_T3))
    k('s_mov_b64 exec, 1')
    k.label(PL)
    k('buffer_load_dword %s, %s, %s, %s offen sc1' % (v(TT), v(L16), s(S_WS, 4), s(S_T1)))
    k('s_sub_u32 %s, %s, 1' % (s(S_SPIN), s(S_SPIN)))
    k('s_cbranch_scc1 %s' % FAIL)
    k('s_waitcnt vmcnt(0)')
    k('v_cmp_eq_u32 vcc, -1, %s' % v(TT))
    k('s_cbranch_vccz %s_a' % PL)
    k('s_mov_b32 %s, 1' % s(S_T3))
    k('s_sleep %d' % opt.get('pbsleep', 6))
    k('s_branch %s' % PL)
    k.label(PL + '_a')
    k('s_mov_b64 exec, -1')
    k('s_cmp_eq_u32 %s, 0' % s(S_T3))
    k('s_cbranch_scc1 %s_b' % PL)
    k('s_sleep %d' % opt.get('pbsleep2', 4))
    k.label(PL + '_b')
    dma(S_T0, 0)
    k('s_sub_u32 %s, %s, 1' % (s(S_SPIN), s(S_SPIN)))
    k('s_cbranch_scc1 %s' % FAIL)
    if opt.get('pbd', 0): k('s_waitcnt vmcnt(%d)' % (2 * (opt.get('pbd', 0) - 1))); k('s_sleep %d' % opt.get('pbs3', 3))
    else: k('s_waitcnt vmcnt(0)')
    memchk()
    k('s_cbranch_vccnz %s_b' % PL)
    k.label(PL + '_ok')
    k('s_barrier')
    PT()
    k.lg = []
    VM = KF; KA = MEMF + 16
    def pk(op, d, x, y, mod=''): k('%s %s, %s, %s %s' % (op, v(d, 2), x, y, mod))
    for w_ in range(4):
        for hh in range(2): k('ds_read_b64 %s, %s offset:%d' % (v(KA + 4 * w_ + 2 * hh, 2), v(KAA), w_ * 12288 + 10240 + 128 * hh), tag=('km', w_))
    for t in range(2): k('ds_read_b64 %s, %s offset:%d' % (v(VM + 2 * t, 2), v(VMA), 10248 + 512 * t))
    for i in range(4): k('ds_read_b64 %s, %s offset:%d' % (v(ACC + 2 * i, 2), v(BRA), 1024 * i), tag='br')
    for w_ in range(4):
        k.wait_lg(('km', w_))
        k(mfma32(AKV, v(KA + 4 * w_, 4), v(QA + 4 * w_, 4), w_ == 0))
    k.wait_lg('br')
    for j in range(2): add(ACC + j, ACC + j, ACC + 2 + j)
    for j in range(2): add(ACC + 4 + j, ACC + 4 + j, ACC + 6 + j)
    for j in range(2): add(BV + j, ACC + j, ACC + 4 + j)
    PT()
    mr = [AKV + j for j in range(4)]; xr = [SX + j for j in range(8)]
    round_bf16(k, mr, TT)
    for j in (0, 2): pk('v_pk_mul_f32', AKV + j, v(AKV + j, 2), s(S_SC, 2))
    round_bf16(k, mr, TT)
    regs = xr + mr
    k('v_max3_f32 %s, %s, %s, %s' % (v(MX), v(mr[0]), v(mr[1]), v(XM)))
    k('v_max3_f32 %s, %s, %s, %s' % (v(MX), v(MX), v(mr[2]), v(mr[3])))
    k('v_mov_b32 %s, %s' % (v(TT), v(MX)))
    k('v_permlane16_swap_b32 %s, %s' % (v(MX), v(TT)))
    k('v_max_f32 %s, %s, %s' % (v(MX), v(MX), v(TT)))
    k('v_mul_f32 %s, %s, %s' % (v(MX), s(S_L2), v(MX)))
    for r in regs[::2]: k('v_pk_fma_f32 %s, %s, %s, %s op_sel_hi:[1,1,0] neg_lo:[0,0,1] neg_hi:[0,0,1]' % (v(r, 2), v(r, 2), s(S_L2, 2), v(MX, 2)))
    for r in regs: k('v_exp_f32 %s, %s' % (v(r), v(r)))
    pk('v_pk_add_f32', T8, v(xr[0], 2), v(xr[2], 2)); pk('v_pk_add_f32', T8 + 2, v(xr[4], 2), v(xr[6], 2))
    pk('v_pk_add_f32', LS, v(mr[0], 2), v(mr[2], 2)); pk('v_pk_add_f32', T8, v(T8, 2), v(T8 + 2, 2))
    add(LS, LS, LS + 1); add(T8, T8, T8 + 1)
    k('v_fma_f32 %s, %s, 0.5, %s' % (v(LS), v(LS), v(T8)))
    xreduce(k, 'v_add_f32', LS, TT)
    k('v_rcp_f32 %s, %s' % (v(LS), v(LS)))
    for r in regs[::2]: pk('v_pk_mul_f32', r, v(r, 2), v(LS, 2), 'op_sel_hi:[1,0]')
    PX, PM, O = T8, ACC + 16, AKV + 8
    for i in range(4): cvt(k, PX + i, xr[2 * i], xr[2 * i + 1])
    cvt(k, PM, mr[0], mr[1]); cvt(k, PM + 1, mr[2], mr[3])
    k('s_mov_b32 exec_lo, 0')
    k('v_mov_b64 %s, 0' % v(PM, 2))
    k('s_mov_b32 exec_lo, -1')
    for t in range(2): k(mfma32(O + 4 * t, v(VF + 4 * t, 4), v(PX, 4), True))
    for t in range(2): mf16(O + 4 * t, VM + 2 * t, PM, O + 4 * t)
    round_bf16(k, [BV, BV + 1], TT)
    for j in range(2): k('v_mul_f32 %s, %s, %s' % (v(BV + j), v(BV + j), v(BV + 3)))
    round_bf16(k, [BV, BV + 1], TT)
    for i in range(4): cvt(k, T8 + i, O + 2 * i, O + 2 * i + 1)
    k('ds_write_b128 %s, %s offset:%d' % (v(LW1), v(T8, 4), L_OX))
    k('s_waitcnt lgkmcnt(0)')
    k('s_barrier')
    PT()
    OF = AKV
    for kk in range(4): k('ds_read_b128 %s, %s offset:%d' % (v(OF + 4 * kk, 4), v(L16), L_OX + 1024 * kk), tag=('of', kk))
    k('s_mov_b32 %s, %s' % (s(S_T0), s(S_PBW)))
    def pack(dt):
        r = ACC + 4 * dt
        cvt(k, r, r, r + 1); cvt(k, r + 1, r + 2, r + 3)
        k('v_bfi_b32 %s, 1, %s, %s' % (v(r), s(S_TG), v(r)))
    def st(dt):
        k('buffer_store_dwordx2 %s, %s, %s, %s offen' % (v(ACC + 4 * dt, 2), v(ST), s(S_WS, 4), s(S_T0)))
        k('s_add_u32 %s, %s, 0x4000' % (s(S_T0), s(S_T0)))
    for dt in range(8):
        for kk in range(4):
            if dt == 0: k.wait_lg(('of', kk))
            k(mfma32(ACC + 4 * dt, a(wof(dt, kk), 4), v(OF + 4 * kk, 4), kk == 0))
            if kk == 2 and dt > 0: pack(dt - 1)
            if kk == 3 and dt > 0: st(dt - 1)
    k('s_mov_b32 %s, %s' % (s(S_RT), s(S_TG)))
    k('s_mov_b32 %s, %s' % (s(S_RR), s(S_PBR)))
    k('s_lshl_b32 %s, %s, 14' % (s(S_RO), s(S_U)))
    k('s_add_u32 %s, %s, 1' % (s(S_I), s(S_I)))
    for r in (PFA, PFG, GRA, KAA, VMA): k('v_add_u32 %s, %s, %s' % (v(r), s(S_PD), v(r)))
    k('s_sub_u32 %s, 0, %s' % (s(S_PD), s(S_PD)))
    pack(7); st(7)
    k('s_xor_b32 %s, %s, 0x80000' % (s(S_PBW), s(S_PBW)))
    k('s_xor_b32 %s, %s, 0x80000' % (s(S_PBR), s(S_PBR)))
    k('s_add_u32 %s, %s, 6' % (s(S_U), s(S_U)))
    PT()
    k('s_cmp_lt_u32 %s, 128' % s(S_U))
    k('s_cbranch_scc1 %s' % LOOP)
    for i in range(opt.get('pbw', 3)): k('s_nop 15')
    reduce('b')
    if opt.get('pbprof'):
        for i in range(8): k('v_mov_b32 v%d, s%d' % (16 + i, 70 + i))
        k('s_lshl_b32 s55, s50, 5\ns_add_u32 s55, s55, s40\ns_lshl_b32 s55, s55, 2\ns_add_u32 s55, s55, s41\ns_lshl_b32 s55, s55, 5\ns_add_u32 s55, s55, 0x%x' % (DBG + 0x180000))
        k('v_mov_b32 v6, 0')
        k('buffer_store_dwordx4 v[16:19], v6, s[8:11], s55 offen')
        k('buffer_store_dwordx4 v[20:23], v6, s[8:11], s55 offen offset:16')


def kvserver(k, opt={}):
    k.c('===== k/v server =====')
    srd(k, S_WK, P_WK, 4 << 20); srd(k, S_WV, P_WV, 4 << 20)
    k('s_barrier')
    TRQ, OWN, ALL, IDX, SELT, TT, MX = 8, 9, 10, 11, 12, 14, 15
    MEMF, AKV, T8 = 16, 48, 64
    qkv_addr(k)
    if k.bfrag:
        srd(k, S_AUX, P_WB, 512 * 3072)
        k('s_cmp_eq_u32 %s, 3' % s(S_W))
        k('s_cbranch_scc1 L_ks_nb')
        k('v_lshrrev_b32 %s, 2, %s' % (v(VZ), v(LANE)))
        k('v_mul_u32_u24 %s, 3072, %s' % (v(OWN), v(VZ)))
        k('v_and_b32 %s, 3, %s' % (v(VT), v(LANE)))
        k('v_lshl_add_u32 %s, %s, 4, %s' % (v(OWN), v(VT), v(OWN)))
        k('s_lshl_b32 %s, %s, 10' % (s(S_T0), s(S_W)))
        k('s_and_b32 s4, %s, 30' % s(S_H))
        k('s_lshl_b32 %s, s4, 5' % s(S_T1))
        k('s_add_u32 %s, %s, %s' % (s(S_T0), s(S_T0), s(S_T1)))
        k('s_and_b32 s5, %s, 1' % s(S_H))
        k('s_mul_i32 %s, s5, %d' % (s(S_T1), 256 * 3072))
        k('s_add_u32 %s, %s, %s' % (s(S_T0), s(S_T0), s(S_T1)))
        for i in range(16):
            k('s_add_u32 m0, %s, %d' % (s(S_T2), i * 1024))
            k('buffer_load_dwordx4 %s, %s, %s offen lds' % (v(OWN), s(S_AUX, 4), s(S_T0)))
            k('s_add_u32 %s, %s, %d' % (s(S_T0), s(S_T0), 16 * 3072))
        k('s_waitcnt vmcnt(0)')
        for t in range(2):
            for ks in range(8):
                for hh in range(2):
                    k('ds_read_b64_tr_b16 %s, %s offset:%d' % (v(80 + (t * 8 + ks) * 4 + 2 * hh, 2), v(TR), (32 * ks + 4 * hh) * 64 + 32 * t))
                if ks & 3 == 3: k('s_waitcnt lgkmcnt(0)')
        k('s_lshl_b32 s4, s4, 1')
        k('s_add_u32 s4, s4, %s' % s(S_W))
        k('s_lshl_b32 s4, s4, 15')
        k('s_lshl_b32 s5, s5, 13')
        k('s_add_u32 s4, s4, s5')
        k('s_add_u32 s4, s4, 0x%x' % WBFR)
        for i in range(16):
            k('buffer_store_dwordx4 %s, %s, %s, s4 offen offset:%d sc1' % (v(80 + 4 * i, 4), v(L16), s(S_WS, 4), 1024 * (i & 3)))
            if i & 3 == 3: k('s_add_u32 s4, s4, %d' % (4096 if i != 7 else 4096 + 8192))
        k.label('L_ks_nb')
        k.vm = []
    k('v_bfe_u32 %s, %s, 5, 1' % (v(VZ), v(LANE)))
    k('v_lshlrev_b32 %s, 4, %s' % (v(TRQ), v(VZ)))
    for (bit, sh) in ((4, 2), (3, 3), (2, 0)):
        k('v_bfe_u32 %s, %s, %d, 1' % (v(VZ), v(LANE), bit))
        k('v_lshl_add_u32 %s, %s, %d, %s' % (v(TRQ), v(VZ), sh, v(TRQ)))
    k('v_and_b32 %s, 3, %s' % (v(VT), v(LANE)))
    k('v_lshlrev_b32 %s, 6, %s' % (v(TRQ), v(TRQ)))
    k('v_lshl_add_u32 %s, %s, 3, %s' % (v(TRQ), v(VT), v(TRQ)))
    k('v_add_u32 %s, %s, %s' % (v(TRQ), s(S_T2), v(TRQ)))
    bl = []
    for m in range(2):
        for ks in range(8):
            def issue(off, tag, m=m, ks=ks):
                for i in range(4):
                    k('s_mov_b32 %s, %d' % (s(S_T0), (64 * ks + 16 * i) * 8192))
                    k('s_add_u32 m0, %s, %d' % (s(S_T2), off + i * 1024))
                    k('buffer_load_dwordx4 %s, %s, %s offen lds' % (v(GA), s((S_WK, S_WV)[m], 4), s(S_T0)), tag=tag)
            def read(off, m=m, ks=ks):
                for t in range(2):
                    for H in range(2):
                        for Q in range(2):
                            k('ds_read_b64_tr_b16 %s, %s offset:%d' % (a(wkv(m, ks, t) + 4 * H + 2 * Q, 2), v(TRQ), off + (32 * H + 2 * Q) * 64 + 32 * t))
            bl.append(dict(issue=issue, read=read))
    load_blocks(k, bl, opt.get('ksl', 2))
    if k.bfrag:
        k('s_barrier')
        k('s_lshl_b32 %s, %s, 5' % (s(S_FL), s(S_H)))
        k('s_add_u32 %s, %s, 0x%x' % (s(S_FL), s(S_FL), F_D2 + 24))
        set_flag(k, S_FL, '1')
    k.ks_ready()
    k('v_and_b32 %s, 15, %s' % (v(VT), v(LANE)))
    k('v_cmp_gt_u32 vcc, 8, %s' % v(VT))
    k('v_mov_b32 %s, 0xeeee' % v(IDX))
    k('v_mov_b32 %s, 0x4444' % v(TT))
    k('v_cndmask_b32 %s, %s, %s, vcc' % (v(IDX), v(IDX), v(TT)))
    k('v_bfe_u32 %s, %s, 4, 1' % (v(VZ), v(LANE)))
    k('v_lshlrev_b32 %s, 2, %s' % (v(VZ), v(VZ)))
    k('v_and_b32 %s, 7, %s' % (v(VT), v(LANE)))
    k('v_sub_u32 %s, %s, %s' % (v(VT), v(VT), v(VZ)))
    k('v_mov_b32 %s, 0x3f80' % v(MX))
    k('v_mov_b32 %s, 0x3f800000' % v(TT))
    for r in range(2):
        k('v_mov_b32 %s, 0' % v(SELT + r))
        k('v_cmp_eq_u32 vcc, %d, %s' % (2 * r, v(VT)))
        k('v_cndmask_b32 %s, %s, %s, vcc' % (v(SELT + r), v(SELT + r), v(MX)))
        k('v_cmp_eq_u32 vcc, %d, %s' % (2 * r + 1, v(VT)))
        k('v_cndmask_b32 %s, %s, %s, vcc' % (v(SELT + r), v(SELT + r), v(TT)))
    S_MR, S_KO, S_MB = S_XS, S_OO, S_XB
    k('s_lshl_b32 %s, %s, 11' % (s(S_MB), s(S_W)))
    k('v_add_u32 %s, %s, %s' % (v(OWN), s(S_MB), v(L16)))
    k('v_mov_b32 %s, %s' % (v(ALL), v(L16)))
    k('s_add_u32 %s, %s, 0x%x' % (s(S_MR), s(S_MB), MEMX))
    k('s_lshl_b32 %s, %s, 8' % (s(S_KO), s(S_H)))
    k('s_add_u32 %s, %s, %s' % (s(S_KO), s(S_KO), s(S_W)))
    k('s_lshl_b32 %s, %s, 10' % (s(S_KO), s(S_KO)))
    k('s_add_u32 %s, %s, 0x%x' % (s(S_KO), s(S_KO), WKVF))
    k('s_mov_b32 %s, 0' % s(S_I))
    S_IN = S_T3
    LK = opt.get('lastkv', 1)
    k('s_add_u32 %s, %s, %d' % (s(S_IN), s(S_KO), 16 * 4096))
    k('s_add_u32 %s, %s, %d' % (s(S_T4), s(S_KO), (63 - LK) * 4096))
    for i in range(4): k('v_mov_b32 %s, -1' % v(T8 + 4 + i))
    k('s_lshl_b32 %s, %s, 5' % (s(S_FL), s(S_H)))
    k('s_add_u32 %s, %s, 0x%x' % (s(S_FL), s(S_FL), F_D3 + 24))
    def dma2():
        k('buffer_load_dwordx4 %s, %s, %s offen sc1 lds' % (v(L16), s(S_WS, 4), s(S_MR)))
        k('buffer_load_dwordx4 %s, %s, %s offen offset:1024 sc1 lds' % (v(L16), s(S_WS, 4), s(S_MR)))
    k('s_mov_b32 m0, %s' % s(S_MB))
    dma2()
    k('s_waitcnt vmcnt(0)')
    k.label('L_ks_loop')
    for i in range(0, 16, 2): k('v_mov_b64 %s, 0' % v(AKV + i, 2))
    k('s_mov_b32 %s, %d' % (s(S_SPIN), SPIN_MAX))
    k('s_waitcnt vmcnt(1)')
    k('s_branch L_ks_c')
    k.label('L_ks_r')
    if opt.get('ks1', 0):
        k('s_cmp_lg_u32 %s, %d' % (s(S_SPIN), SPIN_MAX))
        k('s_cbranch_scc1 L_ks_q')
        k('s_sleep %d' % opt.get('ks1b', 8))
        k('s_cmp_eq_u32 %s, 63' % s(S_I))
        k('s_cbranch_scc1 L_ks_q')
        k('s_sleep %d' % opt.get('ks1', 0))
        k.label('L_ks_q')
    k('s_sleep %d' % opt.get('kss', 2))
    dma2()
    k('s_sub_u32 %s, %s, 1' % (s(S_SPIN), s(S_SPIN)))
    k('s_cbranch_scc1 %s' % FAIL)
    k('s_waitcnt vmcnt(%d)' % opt.get('ksd', 2))
    k.label('L_ks_c')
    k('ds_read_b128 %s, %s' % (v(MEMF, 4), v(OWN)))
    k('ds_read_b128 %s, %s offset:1024' % (v(MEMF + 4, 4), v(OWN)))
    k('s_waitcnt lgkmcnt(0)')
    k('v_max3_u32 %s, %s, %s, %s' % (v(TT), v(MEMF), v(MEMF + 1), v(MEMF + 2)))
    k('v_max3_u32 %s, %s, %s, %s' % (v(MX), v(MEMF + 3), v(MEMF + 4), v(MEMF + 5)))
    k('v_max3_u32 %s, %s, %s, %s' % (v(TT), v(TT), v(MEMF + 6), v(MEMF + 7)))
    k('v_max_u32 %s, %s, %s' % (v(TT), v(TT), v(MX)))
    k('v_cmp_eq_u32 vcc, -1, %s' % v(TT))
    k('s_cbranch_vccnz L_ks_r')
    k('s_barrier')
    k.lg = []
    def MR(ks): k('ds_read_b128 %s, %s offset:%d' % (v(MEMF + 4 * ks, 4), v(ALL), 1024 * ks), tag=('mf', ks))
    def SMF(m, ks, t): k('v_smfmac_f32_16x16x64_bf16 %s, %s, %s, %s' % (v(AKV + 8 * m + 4 * t, 4), v(MEMF + 4 * ks, 4), a(wkv(m, ks, t), 8), v(IDX)))
    def mf16(d, A, B): k('v_mfma_f32_16x16x16_bf16 %s, %s, %s, 0' % (v(d, 4), v(A, 2), v(B, 2)))
    MR(0); MR(1); MR(2)
    k('s_add_u32 %s, %s, 8192' % (s(S_MR), s(S_MR)))
    k('s_xor_b32 %s, %s, 8192' % (s(S_MB), s(S_MB)))
    k('s_mov_b32 m0, %s' % s(S_MB))
    for ks in range(8):
        k.wait_lg(('mf', ks))
        SMF(0, ks, 0)
        if ks + 3 < 8: MR(ks + 3)
        SMF(0, ks, 1)
    vq = [(ks, t) for ks in range(8) for t in range(2)]
    def V(n):
        for _ in range(n): SMF(1, *vq.pop(0))
    V(3)
    dma2()
    for i in range(4): cvt(k, T8 + i, AKV + 2 * i, AKV + 2 * i + 1)
    V(1)
    mf16(AKV, T8, SELT); mf16(AKV + 4, T8 + 2, SELT)
    V(4)
    for i in range(4): cvt(k, T8 + i, AKV + 2 * i, AKV + 2 * i + 1)
    V(2)
    for i in range(2): k('v_mov_b32_dpp %s, %s quad_perm:[0,1,2,3] row_mask:0xf bank_mask:0xc' % (v(T8 + i), v(T8 + 2 + i)))
    for i in range(2): k('v_min_u32 %s, -2, %s' % (v(T8 + i), v(T8 + i)))
    k('v_xor_b32 %s, 8192, %s' % (v(OWN), v(OWN)))
    k('v_xor_b32 %s, 8192, %s' % (v(ALL), v(ALL)))
    V(6)
    for j in range(4): k('v_permlane32_swap_b32 %s, %s' % (v(AKV + 8 + j), v(AKV + 12 + j)))
    for j in range(4): k('v_add_f32 %s, %s, %s' % (v(AKV + 8 + j), v(AKV + 8 + j), v(AKV + 12 + j)))
    cvt(k, T8 + 2, AKV + 8, AKV + 9); cvt(k, T8 + 3, AKV + 10, AKV + 11)
    for i in (2, 3): k('v_min_u32 %s, -2, %s' % (v(T8 + i), v(T8 + i)))
    k('buffer_store_dwordx4 %s, %s, %s, %s offen sc1' % (v(T8, 4), v(L16), s(S_WS, 4), s(S_KO)))
    k('s_add_u32 %s, %s, 4096' % (s(S_KO), s(S_KO)))
    k('s_add_u32 %s, %s, 1' % (s(S_I), s(S_I)))
    k('s_cmp_gt_u32 %s, 16' % s(S_I))
    k('s_cbranch_scc1 L_ks_n')
    for i in range(3):
        k('buffer_store_dwordx4 %s, %s, %s, %s offen sc1' % (v(T8 + 4, 4), v(L16), s(S_WS, 4), s(S_IN)))
        k('s_add_u32 %s, %s, 4096' % (s(S_IN), s(S_IN)))
        k('s_min_u32 %s, %s, %s' % (s(S_IN), s(S_IN), s(S_T4)))
    k('s_cmp_lt_u32 %s, 16' % s(S_I))
    k('s_cbranch_scc1 L_ks_loop')
    k('s_waitcnt vmcnt(0)')
    k('s_barrier')
    set_flag(k, S_FL, '1')
    k.label('L_ks_n')
    k('s_cmp_lt_u32 %s, %d' % (s(S_I), 64 - LK))
    k('s_cbranch_scc1 L_ks_loop')
```

```python
import sys, json
sys.path.insert(0, 'gen')
from fw import *
from layout import *
import chain as C
import worker as W
NAME = 'gated_mix__memory_aug_recurrent_mem_tr__sliding_block__prompt_kernel'
HEAD = open('gated_mix__memory_aug_recurrent_mem_tr__sliding_block__prompt.s.ref').read().split('; Override')[0]
D_READY = 64

DOC = r'''
; ---------------------------------------------------------------------------------------------
;
; s_nop / s_sleep runs next to the polling loads are poll back-off (a premature poll only adds L2 traffic in front
; ---------------------------------------------------------------------------------------------'''

def gen(opt={}):
    C.JS = opt.get('js', 10240)
    roles = opt.get('roles', ['chain', 'pj', 'ba', 'pb'])
    full = len(roles) == 4
    k = K()
    k.raw(HEAD.rstrip())
    k.raw('; @launch grid=(256,1,1) block=(256,1,1) lds=163840')
    k.raw(DOC.strip('\n'))
    k.raw('.amdgcn_target "amdgcn-amd-amdhsa--gfx950"\n.text\n.globl %s\n.p2align 8\n.type %s,@function\n%s:' % (NAME, NAME, NAME))
    k('s_load_dwordx16 s[64:79], s[0:1], 0')
    k('s_load_dwordx8 s[80:87], s[0:1], 64')
    k('s_load_dwordx4 s[88:91], s[0:1], 96')
    if opt.get('prof'):
        k('s_memtime s[100:101]')
        k('s_memrealtime s[2:3]')
    if opt.get('cpf', 0):
        k('s_getpc_b64 s[4:5]')
        k.label('L_pc')
        k('v_lshlrev_b32 v10, 7, v0')
        k('s_bfe_u32 s6, s2, 0x10003')
        k('s_lshl_b32 s6, s6, 15')
        k('v_add_u32 v11, s6, v10')
        k('v_min_u32 v11, L_end-L_pc, v11')
        k('v_mov_b32 v13, s5')
        k('v_add_co_u32 v14, vcc, s4, v11')
        k('v_addc_co_u32 v15, vcc, 0, v13, vcc')
        if opt['cpf'] == 2:
            k('s_cmp_ge_u32 s2, 64')
            k('s_cbranch_scc1 L_nocpf')
        k('global_load_dword v20, v[14:15], off')
        k.label('L_nocpf')
    k('s_getreg_b32 %s, hwreg(HW_REG_XCC_ID)' % s(W.S_GRP))
    k('s_and_b32 %s, %s, 7' % (s(W.S_GRP), s(W.S_GRP)))
    if opt.get('cx', 1): k('s_xor_b32 %s, %s, %d' % (s(W.S_GRP), s(W.S_GRP), opt.get('cx', 1)))
    k('s_waitcnt lgkmcnt(0)')
    C.srd(k, C.S_WS, W.P_WS, WS_BYTES); C.srd(k, C.S_DBG, W.P_DBG, 256)
    NT = opt.get('etouch', 0)
    k("""
  s_lshl_b32 s55, s50, 2
  s_cselect_b32 s55, s55, 192
  v_mov_b32 v1, 0
  v_mov_b32 v2, 1
  v_cmp_eq_u32 vcc, 0, v0
  s_and_saveexec_b64 s[4:5], vcc
  s_cbranch_execz L_t0
  buffer_atomic_add v2, v1, s[32:35], s55 offen sc0 sc1
L_t0:
  s_mov_b64 exec, s[4:5]
""")
    if NT:
        C.srd(k, C.S_WO, W.P_WO, 4 << 20)
        k("""
  s_cmp_lg_u32 s50, 0
  s_cbranch_scc1 L_t2
  s_bfe_u32 s56, s2, 0x50003
  s_lshl_b32 s56, s56, 17
  v_lshrrev_b32 v3, 6, v0
  v_and_b32 v4, 63, v0
  v_and_b32 v5, 2, v3
  v_lshl_add_u32 v4, v5, 5, v4
  v_lshlrev_b32 v4, 10, v4
  v_lshl_add_u32 v4, v3, 8, v4
""")
        for i in range(NT):
            if i == 2: k('v_xor_b32 v4, 0x10000, v4')
            k('buffer_load_dword v%d, v4, %s, s56 offen offset:%d' % (20 + i, s(C.S_WO, 4), 128 * (i & 1)))
        k('s_waitcnt vmcnt(%d)' % NT)
        k('s_branch L_t3')
        k.label('L_t2')
    k("""
  s_waitcnt vmcnt(0)
L_t3:
  s_and_saveexec_b64 s[4:5], vcc
  s_cbranch_execz L_t1
  ds_write_b32 v1, v2
  s_waitcnt lgkmcnt(0)
L_t1:
  s_mov_b64 exec, s[4:5]
  s_barrier
  ds_read_b32 v2, v1
  v_lshrrev_b32 v3, 6, v0
  s_waitcnt lgkmcnt(0)
  v_readfirstlane_b32 s51, v2
  v_readfirstlane_b32 s41, v3
  v_and_b32 v0, 63, v0
  s_barrier
  s_cmp_ge_u32 s51, 32
  s_cbranch_scc1 L_end
""")
    k.vm = []
    TK, GRP = W.S_TK, W.S_GRP
    if opt.get('prof'):
        k('s_memtime s[98:99]')
        k('s_waitcnt lgkmcnt(0)')
    def ready_add(ra=6, rb=7, sync=True):
        if sync:
            k('s_waitcnt vmcnt(0)')
            k('s_barrier')
        L = k.newlabel('L_ra')
        k('s_cmp_lg_u32 %s, 0' % s(C.S_W))
        k('s_cbranch_scc1 %s' % L)
        k('v_mov_b32 v%d, %d' % (ra, D_READY))
        k('v_mov_b32 v%d, 1' % rb)
        k('s_mov_b64 exec, 1')
        k('buffer_atomic_add v%d, v%d, s[32:35], 0 offen sc1' % (rb, ra))
        k('s_mov_b64 exec, -1')
        k.label(L)
    k('v_lshlrev_b32 v1, 4, v0')
    for i in range(4): k('v_mov_b32 v%d, -1' % (8 + i))
    if opt.get('spread'):
        k('s_cmp_ge_u32 s2, 32')
        k('s_cbranch_scc1 L_spw')
        k('s_mov_b32 %s, s2' % s(TK))
    else:
        k('s_cmp_lg_u32 %s, 0' % s(GRP))
        k('s_cbranch_scc1 L_worker')
    if 'chain' in roles:
        k('s_mov_b32 %s, %s' % (s(C.S_H), s(TK)))
        C.srd(k, C.S_WQ, W.P_WQ, 4 << 20); C.srd(k, C.S_WK, W.P_WK, 4 << 20); C.srd(k, C.S_WV, W.P_WV, 4 << 20); C.srd(k, C.S_WO, W.P_WO, 4 << 20)
        C.srd(k, C.S_M0, W.P_MEM0, 8192)
        def hook_loading():
            k('v_lshlrev_b32 v24, 4, v0')
            for i in range(4): k('v_mov_b32 v%d, -1' % (28 + i))
            k('s_mul_i32 s55, s40, %d' % C.JS)
            k('s_lshl_b32 s56, s41, 11')
            k('s_add_u32 s55, s55, s56')
            k('s_add_u32 s55, s55, 0x%x' % INB)
            for i in range(2):
                k('buffer_store_dwordx4 v[28:31], v24, s[8:11], s55 offen offset:%d' % (1024 * i), tag='init')
            k('s_lshl_b32 s55, s40, 10')
            k('s_add_u32 s55, s55, 0x%x' % H2)
            k('buffer_store_dwordx4 v[28:31], v24, s[8:11], s55 offen', tag='init')
            if full and opt.get('lastkv', 1):
                k('s_lshl_b32 s55, s40, 8\ns_add_u32 s55, s55, s41\ns_lshl_b32 s55, s55, 10\ns_add_u32 s55, s55, 0x%x' % (WKVF + 63 * 4096))
                k('buffer_store_dwordx4 v[28:31], v24, s[8:11], s55 offen sc1', tag='init')
            k('s_nop 1')
        if opt.get('tlb', 0):
            k('v_lshlrev_b32 v24, 16, v0')
            for j, sr in enumerate((C.S_WV, C.S_WK, C.S_WQ)):
                k('buffer_load_dword v%d, v24, %s, 0 offen' % (25 + j, s(sr, 4)))
            if opt.get('tlb', 0) > 1:
                k('v_lshlrev_b32 v24, 19, v0')
                k('buffer_load_dword v25, v24, %s, 0 offen sc1' % s(C.S_WS, 4))
        hook_loading()
        def hook_loading2():
            k.wait_vm('init')
            k('s_barrier')
            n = len(k.vm)
            ready_add(58, 59, sync=False)
            k.vm = k.vm[:n]
        k.hook_loading = hook_loading2
        nready = 256
        S_RDY = 63
        S_FKV = 62
        def fl_load(B, A, tag=None):
            k('s_mov_b64 exec, 15')
            k('buffer_load_dword %s, %s, %s, %s offen sc1' % (v(B), v(A), s(C.S_WS, 4), s(S_FKV)), tag=tag)
            k('s_mov_b64 exec, -1')
        def wait_kv(first, B=C.X3, A=C.L16, part=None):
            if not full: return
            L = k.newlabel('L_kv')
            def chk():
                k('v_cmp_ge_u32 vcc, %s, %s' % (s(C.S_T0), v(B)))
                k('s_and_b32 %s, vcc_lo, 15' % s(C.S_T1))
            if part in (None, 0):
                AH = 1 + opt.get('touch', 0)
                k('s_add_u32 %s, %s, %d' % (s(C.S_T0), s(C.S_STEP), AH - 1 if first else AH))
                if AH > 1: k('s_min_u32 %s, %s, 63' % (s(C.S_T0), s(C.S_T0)))
                if not first and k.nsw:
                    k('s_cmp_eq_u32 %s, %d' % (s(C.S_T0), k.nsw))
                    k('s_cselect_b32 %s, 63, %s' % (s(C.S_T0), s(C.S_T0)))
                k('v_cmp_ge_u32 vcc, %s, %s' % (s(C.S_T0), v(B)))
                if part == 0: return
            if part == 2:
                fl_load(B, A); return
            k('s_and_b32 %s, vcc_lo, 15' % s(C.S_T1))
            k('s_cbranch_scc1 %s_slow' % L)
            k.label(L + '_ret')
            def slow():
                k.label(L + '_slow')
                k('s_mov_b32 %s, %d' % (s(C.S_SPIN), C.SPIN_MAX))
                k.label(L + '_p')
                fl_load(B, A)
                k('s_sub_u32 %s, %s, 1' % (s(C.S_SPIN), s(C.S_SPIN)))
                k('s_cbranch_scc1 L_fail')
                k('s_waitcnt vmcnt(0)')
                chk()
                k('s_cbranch_scc0 %s_ret' % L)
                k('s_sleep 2')
                k('s_branch %s_p' % L)
            k.deferred.append(slow)
        k.deferred = []
        def h4():
            n = len(k.vm)
            ready_add(58, 59, sync=False)
            k.vm = k.vm[:n]
        def h7():
            k('v_mov_b32 v58, %d' % D_READY)
            k('buffer_load_dword v58, v58, %s, 0 offen sc1' % s(C.S_DBG, 4), tag='rdy')
        def h12():
            L = k.newlabel('L_rdy')
            k.wait_vm('rdy')
            k('v_cmp_gt_u32 vcc, %d, v58' % nready)
            k('s_cbranch_vccnz %s' % L)
            k.label(L + '_ret')
            def slow():
                k.label(L)
                k('s_mov_b32 %s, %d' % (s(C.S_SPIN), C.SPIN_MAX))
                k.label(L + '_p')
                k('v_mov_b32 v58, %d' % D_READY)
                k('buffer_load_dword v58, v58, %s, 0 offen sc1' % s(C.S_DBG, 4))
                k('s_sub_u32 %s, %s, 1' % (s(C.S_SPIN), s(C.S_SPIN)))
                k('s_cbranch_scc1 L_fail')
                k('s_waitcnt vmcnt(0)')
                k('v_cmp_gt_u32 vcc, %d, v58' % nready)
                k('s_cbranch_vccnz %s_p' % L)
                k('s_branch %s_ret' % L)
            k.deferred.append(slow)
            k('s_lshl_b32 %s, %s, 2' % (s(S_FKV), s(C.S_H)))
            k('s_add_u32 %s, %s, %s' % (s(S_FKV), s(S_FKV), s(C.S_W)))
            k('s_lshl_b32 %s, %s, 7' % (s(S_FKV), s(S_FKV)))
            k('s_add_u32 %s, %s, 0x%x' % (s(S_FKV), s(S_FKV), F_KV))
            k('v_lshlrev_b32 v54, 4, v0')
            fl_load(55, 54, 'fkv')
        def h13():
            k.wait_vm('fkv')
            wait_kv(True, 55, 54)
        k.load_hooks = {opt.get('hk0', 14): h7, opt.get('hk', 22): h12, 28: h13}
        k.hook_prefetch = lambda part: wait_kv(False, part=part)
        k.full = full
        C.chain(k, prof=opt.get('prof'), dump=opt.get('dump'), opt=opt)
        if opt.get('prof'):
            T = C.S_TS
            k.raw('  s_memtime %s' % s(T + 26, 2))
            k.raw('  s_memrealtime s[4:5]')
            k.raw('  s_waitcnt lgkmcnt(0)')
            k('s_mov_b32 %s, s4' % s(T + 17))
            k('s_sub_u32 %s, %s, %s' % (s(T + 21), s(T + 26), s(T + 24)))
            k('s_mov_b32 %s, %s' % (s(T + 20), s(T + 22)))
            k('s_sub_u32 %s, %s, s100' % (s(T + 19), s(T + 28)))
            k('s_sub_u32 %s, s98, s100' % s(T + 18))
            k('s_sub_u32 %s, %s, s100' % (s(T + 22), s(T + 24)))
            for i in range(8): k('v_mov_b32 %s, %s' % (v(i), s(T + 16 + i)))
            k('s_lshl_b32 s55, s40, 2')
            k('s_add_u32 s55, s55, s41')
            k('s_lshl_b32 s55, s55, 5')
            k('s_add_u32 s55, s55, 0x%x' % (DBG + 0x100000))
            k('v_mov_b32 v8, 0')
            k('buffer_store_dwordx4 v[0:3], v8, s[8:11], s55 offen')
            k('buffer_store_dwordx4 v[4:7], v8, s[8:11], s55 offen offset:16')
            if opt.get('ddbg'):
                k('s_mov_b64 exec, 1')
                for i, r in enumerate((2, 3, 6, 5)):
                    k('buffer_atomic_umax v%d, v8, s[32:35], 0 offen offset:%d sc1' % (r, 32 + 4 * i))
                k('s_memrealtime s[4:5]')
                k('s_waitcnt lgkmcnt(0)')
                k('s_sub_u32 s4, s4, s2')
                k('v_mov_b32 v9, s4')
                k('buffer_atomic_umax v9, v8, s[32:35], 0 offen offset:48 sc1')
                k('s_mov_b64 exec, -1')
        k('s_branch L_end')
        for f in k.deferred: f()
    else:
        k('s_branch L_end')
    k.label('L_spw')
    k('s_max_u32 %s, %s, 1' % (s(GRP), s(GRP)))
    k.label('L_worker')
    k.hist = []
    def stampw(i):
        if opt.get('prof'):
            k('s_memtime s[4:5]')
            k('s_waitcnt lgkmcnt(0)')
            k('s_sub_u32 s4, s4, s100')
            k('v_mov_b32 v7, s4')
            k('s_lshl_b32 s55, s50, 5')
            k('s_add_u32 s55, s55, s51')
            k('s_lshl_b32 s55, s55, 2')
            k('s_add_u32 s55, s55, s41')
            k('s_lshl_b32 s55, s55, 5')
            k('s_add_u32 s55, s55, 0x%x' % (DBG + 0x110000 + 4 * i))
            k('v_mov_b32 v6, 0')
            k('buffer_store_dword v7, v6, s[8:11], s55 offen')
    k('s_sub_u32 s55, %s, 2' % s(GRP))
    k('s_lshl_b32 s55, s55, 5')
    k('s_add_u32 s55, s55, %s' % s(TK))
    k('s_mul_i32 %s, s55, 10923' % s(C.S_H))
    k('s_lshr_b32 %s, %s, 16' % (s(C.S_H), s(C.S_H)))
    k('s_mul_i32 s56, %s, 6' % s(C.S_H))
    k('s_sub_u32 %s, s55, s56' % s(W.S_R))
    k('s_cmp_eq_u32 %s, 1' % s(GRP))
    k('s_cselect_b32 %s, %s, %s' % (s(C.S_H), s(TK), s(C.S_H)))
    k('s_cselect_b32 %s, 6, %s' % (s(W.S_R), s(W.S_R)))
    W.setup_common(k)
    def winit():
        if full:
            k('s_lshl_b32 s55, s40, 2\ns_add_u32 s55, s55, s41\ns_lshl_b32 s55, s55, 3\ns_add_u32 s55, s55, s42\ns_lshl_b32 s55, s55, 4\ns_add_u32 s55, s55, 0x%x' % F_KV)
            W.set_flag(k, 55, '0')
            k('s_lshl_b32 s55, s40, 3\ns_add_u32 s55, s55, s42\ns_lshl_b32 s55, s55, 2\ns_add_u32 s55, s55, 0x%x' % F_D3)
            W.set_flag(k, 55, '0')
            k('s_sub_u32 s55, s55, 0x%x' % (F_D3 - F_D2))
            W.set_flag(k, 55, '0')
        pass
    def pb_init():
        if True:
            for i in range(4): k('v_mov_b32 v%d, -1' % (8 + i))
            k('s_lshl_b32 s55, s50, 20\ns_lshl_b32 s56, s51, 14\ns_add_u32 s55, s55, s56\ns_lshl_b32 s56, s41, 12\ns_add_u32 s55, s55, s56\ns_add_u32 s55, s55, 0x%x' % PB)
            for sl in range(2):
                for i in range(4): k('buffer_store_dwordx4 v[8:11], v1, s[8:11], s55 offen offset:%d' % (1024 * i))
                k('s_add_u32 s55, s55, 0x80000')
    k.pb_init = pb_init
    winit0 = winit
    def winit():
        winit0()
        if full:
            k('s_sub_u32 s55, s50, 1\ns_lshl_b32 s55, s55, 5\ns_add_u32 s55, s55, s51\ns_lshl_b32 s55, s55, 2\ns_add_u32 s55, s55, s41\ns_and_b32 s55, s55, 511\ns_lshl_b32 s55, s55, 10\ns_add_u32 s55, s55, 0x%x' % MEMX)
            k('buffer_store_dwordx4 v[8:11], v1, s[8:11], s55 offen sc1')
    if opt.get('warm', 0) and 'pj' in roles:
        k('s_sub_u32 s55, s50, 1\ns_lshl_b32 s55, s55, 5\ns_add_u32 s55, s55, s51\ns_lshl_b32 s55, s55, 2\ns_add_u32 s55, s55, s41\ns_lshl_b32 s55, s55, 10')
        k('v_add_u32 v16, s55, v1')
        for t in range(1, 5): k('v_add_u32 v%d, 0x%x, v16' % (16 + t, 896 * 1024 * t))
        for j, P in enumerate(opt.get('worder', [W.P_WO])):
            C.srd(k, C.S_WQ + 4 * j, P, 4 << 20)
            for t in range(5):
                k('buffer_load_dwordx4 v[%d:%d], v%d, %s, 0 offen %s' % (24 + 4 * t, 27 + 4 * t, 16 + t, s(C.S_WQ + 4 * j, 4), opt.get('wfl', '')))
    stampw(0)
    k.stampw = stampw
    k.bfrag = full and opt.get('bfrag', 1)
    if 'pj' in roles:
        winit()
        k('s_cmp_lg_u32 %s, 1' % s(GRP))
        k('s_cbranch_scc1 L_wk3')
        ready_add()
        if full:
            def ks_ready():
                k('s_mov_b32 s55, %d' % D_READY)
                k('s_mov_b32 s56, 256')
                W.poll_flags(k, 55, 1, 's56', 'rdyk', srdn=C.S_DBG)
            k.ks_ready = ks_ready
            W.kvserver(k, opt)
            stampw(3)
        k('s_branch L_end')
        k.label('L_wk3')
        k.vm = []
        def k_early():
            k('s_waitcnt vmcnt(8)')
            k('s_barrier')
            n = len(k.vm)
            ready_add(sync=False)
            k.vm = k.vm[:n]
            if opt.get('skipmask'):
                k('s_lshr_b32 s55, %d, s50' % opt['skipmask'])
                k('s_and_b32 s55, s55, 1')
                k('s_cbranch_scc1 L_end')
        k.after_x0 = k_early
        after_issue = None
        def after_wload():
            if opt.get('hold'):
                k('s_cmp_lt_u32 %s, %d' % (s(W.S_R), opt.get('holdc', 4)))
                k('s_cbranch_scc1 L_nohold')
                for i in range(opt['hold']): k('s_sleep 127')
                k.label('L_nohold')
        k.after_wload = after_wload
        k.vload = full and opt.get('vload', 1)
        def wait_ready():
            k('s_mov_b32 s55, %d' % D_READY)
            k('s_mov_b32 s56, 256')
            W.poll_flags(k, 55, 1, 's56', 'rdy0', srdn=C.S_DBG)
        k.wait_ready = wait_ready
        W.proj(k, after_issue)
    else:
        winit(); ready_add()
    stampw(1)
    if full or 'pb' in roles:
        k('s_mov_b32 s55, %d' % D_READY)
        W.poll_flags(k, 55, 1, '%d' % (256 if 'chain' in roles else 224) if False else 's56', 'rdy', srdn=C.S_DBG) if False else None
        k('s_mov_b32 s56, %d' % (256 if 'chain' in roles else 224))
        W.poll_flags(k, 55, 1, 's56', 'rdy', srdn=C.S_DBG)
    pre = post = None
    k.pb_wait = full; k.pb_lim = opt.get('pblim', 0)
    k.vload = full and opt.get('vload', 1)
    if 'pb' in roles: pre, post, final = W.pb_loader(k)
    if 'ba' in roles: W.battn(k, waitflags=full, pre=pre, post=post)
    elif 'pb' in roles:
        for a_, b_ in zip(pre, post):
            a_()
            for i in range(32): k.pb_dma()
            k('s_waitcnt vmcnt(0)'); b_()
    stampw(3)
    if 'pb' in roles:
        final()
        stampw(2)
        k('s_mov_b32 %s, %s' % (s(C.S_H), s(TK)))
        W.phaseB(k, waitflags=full, opt=opt)
    stampw(4)
    if opt.get('prof'):
        k('s_memrealtime s[4:5]')
        k('s_waitcnt lgkmcnt(0)')
        k('v_mov_b32 v7, s4')
        k('buffer_store_dword v7, v6, s[8:11], s55 offen offset:4')
        k('v_mov_b32 v7, s2')
        k('buffer_store_dword v7, v6, s[8:11], s55 offen offset:8')
        if opt.get('ddbg'):
            k('s_mov_b64 exec, 1')
            k('v_mov_b32 v9, s4')
            k('buffer_atomic_umax v9, v6, s[32:35], 0 offen offset:52 sc1')
            k('s_not_b32 s2, s2')
            k('v_mov_b32 v9, s2')
            k('buffer_atomic_umax v9, v6, s[32:35], 0 offen offset:56 sc1')
            k('s_mov_b64 exec, -1')
    k('s_branch L_end')
    k.label('L_fail')
    k('s_mov_b64 exec, 1')
    k('v_mov_b32 v1, 128')
    k('v_mov_b32 v2, 1')
    k('buffer_atomic_add v2, v1, s[32:35], 0 offen sc1')
    k.label('L_end')
    k('s_endpgm')
    k.raw('''.section .rodata,"a"
.p2align 6
.amdhsa_kernel %s
  .amdhsa_next_free_vgpr 512
  .amdhsa_next_free_sgpr 102
  .amdhsa_accum_offset 256
  .amdhsa_group_segment_fixed_size 0
  .amdhsa_kernarg_size 112
  .amdhsa_user_sgpr_count 2
  .amdhsa_user_sgpr_kernarg_segment_ptr 1
  .amdhsa_system_sgpr_workgroup_id_x 1
.end_amdhsa_kernel''' % NAME)
    gen.points = getattr(k, 'points', [])
    txt = k.text()
    for a_, b_ in opt.get('sub', []):
        import re
        txt = re.sub(a_, b_, txt)
    return txt

if __name__ == '__main__':
    opt = json.loads(sys.argv[2]) if len(sys.argv) > 2 else {}
    open(sys.argv[1], 'w').write(gen(opt))
```
